```python
import torch

def _softmax(x, axis=-1):
    return torch.softmax(x, dim=axis)

def _gelu(x):
    return torch.nn.functional.gelu(x, approximate='tanh')

def _silu(x):
    return torch.nn.functional.silu(x)

def _sigmoid(x):
    return torch.sigmoid(x)

def _layernorm(x, axis=-1, eps=1e-05):
    m = x.mean(dim=axis, keepdim=True)
    v = x.var(dim=axis, keepdim=True, unbiased=False)
    return (x - m) / torch.sqrt(v + eps)

def _scatter_add(tgt, idx, src, axis=0):
    return tgt.clone().index_add_(axis, idx, src)

def _segment_sum(src, seg, n):
    out = torch.zeros((n,) + src.shape[1:], dtype=src.dtype)
    return out.index_add_(0, seg, src)

def _pad(x, pw):
    flat = tuple((v for pair in reversed(pw) for v in pair))
    return torch.nn.functional.pad(x, flat)
kernel_name = 'gated_mix__memory_aug_recurrent_mem_tr__glu_gated_bilinear__prompt'

def setup_inputs():

    _w = lambda a: (lambda t: t.to(torch.bfloat16) if t.is_floating_point() else t)(torch.as_tensor(a))

    def _A_setup():
        B, S, Dm = (1, 2048, 512)
        H, Dh = (32, 128)
        M, seg = (8, 32)
        seg = min(seg, S)
        S = S // seg * seg
        return {'x': _w((lambda *s: torch.randn(*s, dtype=torch.bfloat16) * 0.05)(B, S, Dm)), 'mem0': _w((lambda *s: torch.randn(*s, dtype=torch.bfloat16) * 0.4)(B, M, Dm)), 'Wq': _w((lambda *s: torch.randn(*s, dtype=torch.bfloat16) * 6.4)(Dm, H, Dh) * Dm ** (-0.5)), 'Wk': _w((lambda *s: torch.randn(*s, dtype=torch.bfloat16) * 6.4)(Dm, H, Dh) * Dm ** (-0.5)), 'Wv': _w((lambda *s: torch.randn(*s, dtype=torch.bfloat16) * 0.4)(Dm, H, Dh) * Dm ** (-0.5)), 'Wo': _w((lambda *s: torch.randn(*s, dtype=torch.bfloat16) * 0.4)(H, Dh, Dm) * (H * Dh) ** (-0.5)), 'seg_len': seg}
    _A_in = _A_setup()

    def _B_setup():
        B, S, D, F = (1, 2048, 512, 1376)
        return {'x': _w((lambda *s: torch.randn(*s, dtype=torch.bfloat16) * 0.05)(B, S, D)), 'w_gate': _w((lambda *s: torch.randn(*s, dtype=torch.bfloat16) * 1.6)(D, F) * D ** (-0.5)), 'w_up': _w((lambda *s: torch.randn(*s, dtype=torch.bfloat16) * 1.6)(D, F) * D ** (-0.5)), 'w_down': _w((lambda *s: torch.randn(*s, dtype=torch.bfloat16) * 1.6)(F, D) * F ** (-0.5))}
    _B_in = _B_setup()
    return {'A_x': _A_in['x'], 'A_mem0': _A_in['mem0'], 'A_Wq': _A_in['Wq'], 'A_Wk': _A_in['Wk'], 'A_Wv': _A_in['Wv'], 'A_Wo': _A_in['Wo'], 'A_seg_len': _A_in['seg_len'], 'B_x': _B_in['x'], 'B_w_gate': _B_in['w_gate'], 'B_w_up': _B_in['w_up'], 'B_w_down': _B_in['w_down'], 'gate_w': _w((lambda *s: torch.randn(*s, dtype=torch.bfloat16) * 0.05)(512) * 16.0)}

def reference(A_x, A_mem0, A_Wq, A_Wk, A_Wv, A_Wo, A_seg_len, B_x, B_w_gate, B_w_up, B_w_down, gate_w):

    def _A_ref(x, mem0, Wq, Wk, Wv, Wo, seg_len):
        B, S, Dm = x.shape
        H, Dh = (Wq.shape[1], Wq.shape[2])
        M = mem0.shape[1]
        scale = Dh ** (-0.5)
        n_seg = S // seg_len
        L = M + seg_len
        idx = torch.arange(L)
        mask = (idx[:, None] < M) | (idx[:, None] >= idx[None, :])
        mem = mem0
        outs = []
        for s in range(n_seg):
            xs = x[:, s * seg_len:(s + 1) * seg_len, :].clone()
            h = torch.concatenate([mem, xs], axis=1)
            q = torch.einsum('btd,dhe->bhte', h, Wq)
            k = torch.einsum('btd,dhe->bhte', h, Wk)
            v = torch.einsum('btd,dhe->bhte', h, Wv)
            scores = torch.einsum('bhqe,bhke->bhqk', q, k) * scale
            scores = torch.where(mask[None, None], scores, -1000000000.0)
            p = _softmax(scores, axis=-1)
            o = torch.einsum('bhqk,bhke->bhqe', p, v)
            o = torch.einsum('bhte,hed->btd', o, Wo)
            mem = o[:, :M, :].clone()
            outs.append(o[:, M:, :])
        return torch.concatenate(outs, axis=1)

    def _B_ref(x, w_gate, w_up, w_down):
        g = torch.einsum('bsd,df->bsf', x, w_gate)
        u = torch.einsum('bsd,df->bsf', x, w_up)
        h = g * u
        return torch.einsum('bsf,fd->bsd', h, w_down)
    x = A_x
    g = _sigmoid((x * gate_w).sum(-1, keepdims=True))
    a = _A_ref(x, A_mem0, A_Wq, A_Wk, A_Wv, A_Wo, A_seg_len)
    b = _B_ref(x, B_w_gate, B_w_up, B_w_down)
    return g * a + (1 - g) * b
```

```python
import re

def _regs(tok):
    tok = tok.strip()
    if tok.startswith('-'): tok = tok[1:]
    if tok.startswith('|') and tok.endswith('|'): tok = tok[1:-1]
    m = re.fullmatch(r'([vas])(\d+)', tok)
    if m: return [(m.group(1), int(m.group(2)))]
    m = re.fullmatch(r'([vas])\[(\d+):(\d+)\]', tok)
    if m: return [(m.group(1), i) for i in range(int(m.group(2)), int(m.group(3))+1)]
    if tok in ('vcc', 'vcc_lo', 'vcc_hi'): return [('s', 'vcc')]
    if tok == 'exec': return [('s', 'exec')]
    if tok == 'm0': return [('s', 'm0')]
    return []

TRANS = ('v_exp_f32','v_log_f32','v_rcp_f32','v_rsq_f32','v_sqrt_f32','v_sin_f32','v_cos_f32')

class Ins:
    __slots__ = ('text','op','cls','rd','wr','srcC','passes','dpp','states','wide_data','lds_dma','ab','t')
    def __init__(self, text):
        self.text = text
        body = text.split(';')[0].strip()
        parts = body.split(None, 1)
        op = parts[0]; self.op = op
        rest = parts[1] if len(parts) > 1 else ''
        toks = [t.strip() for t in rest.split(',')] if rest else []
        mods = ''
        if toks:
            j = ','.join(toks)
            m = re.search(r'\s(quad_perm|row_|offset|sc0|sc1|nt|wave_|op_sel|neg_|clamp|mul:|div:|offen|idxen|lds|bound_ctrl|bank_mask|cbsz|abid|blgp|src0_sel|dst_sel|gds)', ' ' + j)
            if m:
                mods = j[m.start():]; j = j[:m.start()] if m.start() > 0 else ''
                j = j.rstrip()
            toks = [t.strip() for t in j.split(',')] if j else []
        ops = [_regs(t) for t in toks]
        self.rd = set(); self.wr = set(); self.srcC = set(); self.ab = set()
        self.passes = 0; self.dpp = ('quad_perm' in mods or 'row_' in mods or 'wave_' in mods or op.endswith('_dpp'))
        self.states = 1; self.wide_data = set(); self.lds_dma = False
        flat = lambda L: set(x for l in L for x in l)
        if op.startswith('v_mfma') or op.startswith('v_smfmac'):
            self.cls = 'mfma'
            self.passes = 8 if '32x32' in op else 4
            self.wr = set(ops[0]); self.ab = flat(ops[1:3])
            if op.startswith('v_smfmac'):
                self.srcC = set(ops[0]); self.ab |= set(ops[3])
            else:
                self.srcC = set(ops[3])
            self.rd = self.ab | self.srcC
        elif op.startswith('v_'):
            self.cls = 'valu'
            if 'permlane' in op and 'swap' in op:
                self.wr = flat(ops[:2]); self.rd = flat(ops[:2])
            elif op.startswith('v_cmpx'):
                self.wr = {('s','exec')} | set(ops[0]); self.rd = flat(ops[1:])
            elif op in ('v_add_co_u32','v_sub_co_u32','v_addc_co_u32','v_subb_co_u32') :
                self.wr = flat(ops[:2]); self.rd = flat(ops[2:])
            else:
                self.wr = set(ops[0]); self.rd = flat(ops[1:])
                if op.startswith(('v_fmac','v_mac','v_dot2c','v_writelane')) or self.dpp or 'sdwa' in op or 'op_sel' in mods: self.rd |= set(ops[0])
                if op.startswith('v_cndmask') and len(ops) == 3: self.rd.add(('s','vcc'))
        elif op.startswith('ds_'):
            self.cls = 'ds'
            if op.startswith(('ds_read','ds_bpermute','ds_permute','ds_swizzle')) or '_rtn' in op:
                self.wr = set(ops[0]); self.rd = flat(ops[1:])
                if 'd16' in op: self.rd |= set(ops[0])
            else:
                self.rd = flat(ops)
        elif op.startswith(('global_','buffer_','flat_')):
            self.cls = 'vmem'
            if 'load_lds' in op or ' lds' in mods:
                self.rd = flat(ops); self.lds_dma = True
            elif 'load' in op or ('atomic' in op and 'sc0' in mods):
                self.wr = set(ops[0]); self.rd = flat(ops[1:])
                if 'd16' in op: self.rd |= set(ops[0])
                if op.startswith('buffer_atomic'): self.rd |= set(ops[0])
            else:
                self.rd = flat(ops)
                if 'dwordx4' in op or 'dwordx3' in op:
                    self.wide_data = set(ops[1] if op.startswith('global') else ops[0])
        elif op == 's_nop':
            self.cls = 'nop'; self.states = int(toks[0], 0) + 1
        elif op.startswith('s_'):
            self.cls = 'salu'
            if op.startswith(('s_cmp','s_cbranch','s_branch','s_waitcnt','s_barrier','s_endpgm','s_sleep','s_setprio','s_bitcmp')):
                self.rd = flat(ops)
            else:
                self.wr = set(ops[0]) if ops else set(); self.rd = flat(ops[1:])
                if 'saveexec' in op: self.wr.add(('s','exec'))
        else:
            raise ValueError('unknown op ' + text)

def need(p, c):
    n = 0
    vw = lambda s: set(x for x in s if x[0] in 'va')
    sw = lambda s: set(x for x in s if x[0] == 's')
    if p.cls == 'valu':
        pv = vw(p.wr); ps = sw(p.wr)
        if c.cls == 'mfma':
            if pv & c.rd: n = max(n, 2)
            if ('s','exec') in ps: n = max(n, 4)
        if c.cls == 'valu':
            if c.dpp and (pv & c.rd): n = max(n, 2)
            if c.dpp and ('s','exec') in ps: n = max(n, 5)
            if 'permlane' in c.op and (pv & c.rd): n = max(n, 2)
            if 'permlane' in c.op and ('s','exec') in ps: n = max(n, 4)
            if c.op.startswith(('v_readlane','v_readfirstlane')):
                if pv & c.rd: n = max(n, 1)
                if ('s','exec') in ps: n = max(n, 4)
            if c.op.startswith(('v_readlane','v_writelane')) and (ps & c.rd): n = max(n, 4)
            if ps & c.rd: n = max(n, 2)
            if p.op.startswith(TRANS) and not c.op.startswith(TRANS) and (pv & c.rd): n = max(n, 1)
            if ('sdwa' in p.op or 'op_sel' in p.text) and (pv & (c.rd | c.wr)): n = max(n, 1)
        if c.cls == 'vmem' and (ps & c.rd): n = max(n, 5)
    if p.cls == 'mfma':
        big = {4: 8, 8: 12}[p.passes]
        if c.cls == 'mfma':
            if p.wr & c.ab: n = max(n, big)
            if p.wr & c.srcC:
                if not (p.wr == c.srcC and p.passes == c.passes): n = max(n, big - 2)
            elif p.wr & c.wr: n = max(n, big - 2)
        elif c.cls in ('valu','ds','vmem'):
            if p.wr & (c.rd | c.wr): n = max(n, big)
            if c.cls == 'valu' and (p.srcC & c.wr): n = max(n, {4: 3, 8: 7}[p.passes])
    if p.cls == 'vmem' and p.wide_data and (p.wide_data & c.wr):
        n = max(n, 2 if c.cls in ('valu','mfma') else 1)
    if p.cls == 'salu' and ('s','m0') in p.wr and c.cls == 'vmem' and c.lds_dma: n = max(n, 1)
    return n

class Asm:
    def __init__(self):
        self.items = []
        self.nds = 0; self.nvm = 0
        self.npad = 0; self.tnow = 0
    def raw(self, s): self.items.append(s)
    def label(self, l): self.items.append(l + ':')
    def _push(self, ins): self.items.append(ins)
    def _viol(self, ins, k):
        d = k; dm = 0 if ins.cls == 'mfma' else None; n = 0
        for it in reversed(self.items):
            if isinstance(it, str): continue
            n += 1
            if n > 14: break
            d = d + it.states
            if it.cls == 'mfma':
                if dm is not None: d = max(d, dm + it.passes)
                dm = d
            if d - 1 < need(it, ins): return True
        return False
    def _pad(self, ins):
        k = 0
        while self._viol(ins, k): k += 1
        return k
    def __call__(self, text):
        last = None
        for line in text.strip('\n').split('\n'):
            line = line.strip()
            if not line or line.startswith(';'): continue
            if line.endswith(':'): self.items.append(line); continue
            ins = Ins(line)
            k = self._pad(ins)
            if k > 0:
                self._push(Ins(f's_nop {k-1}')); self.npad += k
            self._push(ins)
            if ins.cls == 'ds': self.nds += 1; last = self.nds
            if ins.cls == 'vmem': self.nvm += 1; last = self.nvm
        return last
    def wds(self, tag):
        n = min(self.nds - tag, 15); self(f's_waitcnt lgkmcnt({n})')
    def wvm(self, tag):
        n = min(self.nvm - tag, 63); self(f's_waitcnt vmcnt({n})')
    def nops(self, n):
        while n > 0:
            k = min(n, 16); self(f's_nop {k-1}'); n -= k
    def check_branches(self):
        lab = {it[:-1]: i for i, it in enumerate(self.items) if isinstance(it, str) and it.endswith(':')}
        bad = 0
        for i, it in enumerate(self.items):
            if isinstance(it, str) or not it.op.startswith(('s_cbranch','s_branch')): continue
            tgt = it.text.split(';')[0].split()[-1]
            pre = [x for x in self.items[max(0,i-30):i+1] if not isinstance(x, str)]
            post = [x for x in self.items[lab[tgt]:lab[tgt]+30] if not isinstance(x, str)]
            d2 = 0
            for c in post:
                if d2 >= 12: break
                d = d2
                for p in reversed(pre):
                    if d >= 12: break
                    if need(p, c) > d:
                        print('BRANCH HAZARD', it.text, '|', p.text, '->', c.text, need(p, c), d); bad += 1
                    d += p.states
                d2 += c.states
        return bad
    def text(self):
        return '\n'.join(it if isinstance(it, str) else '    ' + it.text for it in self.items) + '\n'

def kdesc(name, vgprs=512, accum=256, sgprs=102):
    return f""".p2align 6
.amdhsa_kernel {name}
  .amdhsa_next_free_vgpr {vgprs}
  .amdhsa_next_free_sgpr {sgprs}
  .amdhsa_accum_offset {accum}
  .amdhsa_group_segment_fixed_size 0
  .amdhsa_kernarg_size 120
  .amdhsa_user_sgpr_count 2
  .amdhsa_user_sgpr_kernarg_segment_ptr 1
  .amdhsa_system_sgpr_workgroup_id_x 1
.end_amdhsa_kernel
"""
def khead(name):
    return f".globl {name}\n.p2align 8\n.type {name},@function\n{name}:"
def vr(b, n=1, k='v'): return f'{k}{b}' if n == 1 else f'{k}[{b}:{b+n-1}]'
```

```python
from asmlib import *
import struct, math
WS_KV = 0; WS_QX = 32<<20; WS_KVM = 48<<20; WS_RA = 60<<20; WS_RM = 61<<20; WS_PROF = 62<<20
RA_SLOT = 128*2048; RM_SLOT = 8192
SLAB = 131072
def f32(x): return struct.unpack('<I', struct.pack('<f', x))[0]
QSCALE = f32(128**-0.5 * math.log2(math.e))

M=0; QV=32; KA=40; KX=48; XO=40; VX=56; S=64; T=96
vIdx,vLin,vSo,vS,vXw,vXr,vPst,vMst,vLw,vOw,vM0,vM1,HK,_,HV,_2 = range(112,128)
sMem,sWq,sWk,sWv,sWo,sDbg,sWs = 4,6,8,10,12,14,16
sH,sW,sT,sSpin = 18,19,20,21
sTmp=22; sLb=24; sA=25; sB=26; sC=27
sKV=30; sKVM=32; sSt0=34; sSt1=36; sAld=38; sArs=40; sMld=42; sMst=44
sRA=46; sRAo=48; sRMl=50; sRMs=52
sB1=54; sSel=56; sPm=64; sPub=66; sM0kv=68; sQc=69
sFl=28; sXcc=3; sFm=100
sP=70
SPIN=200000
def sp(x): return f's[{x}:{x+1}]'

LDS_BLK = [('q',0),('q',1),('k',2),('k',3),('v',2),('v',3),('o',6),('o',7)]
REG_BLK = [(m,i) for m in 'qkvo' for i in range(8) if (m,i) not in LDS_BLK]
def dest(b):
    i = REG_BLK.index(b)
    return ('a', 16*i) if i < 16 else ('v', 128 + 16*(i-16))

def chain(a, tag, sc='', mega=False, prof=False, nsteps=64, preA=48, preB=48, gapA=48, gapB=48, nV0=4, nV1=4, nV3=2, wdr=2, wdr2=1, stamps=()):
    L = lambda x: f'L{tag}_{x}'
    stc = (' ' + sc) if sc else ''
    LE = L('end')
    staged = {}
    def B(m, i, u):
        if (m,i) in staged: return vr(staged[(m,i)] + 8*u, 8)
        k, b = dest((m,i)); return vr(b + 8*u, 8, k)
    def SM(acc, A, m, i, u): a(f'v_smfmac_f32_16x16x64_bf16 {vr(acc,4)}, {vr(A,4)}, {B(m,i,u)}, v{vIdx}')
    def stage(batch):
        tags = []
        for n in range(2):
            slot = 2*batch + n; staged[LDS_BLK[slot]] = S + 16*n
            for u in range(2):
                for hf in range(2):
                    t_ = a(f'ds_read_b128 {vr(S+16*n+8*u+4*hf,4)}, v{vLw} offset:{slot*4096+u*2048+hf*1024}')
                tags.append(t_)
        return tags
    def stamp(i):
        if prof and i in stamps: a(f's_memtime {sp(sP+2*i)}')

    lane,n_,g_,t1,t2,t3 = T,T+1,T+2,T+3,T+4,T+5
    vWa, vOa = T+8, T+9
    vTr = T+10
    a(f'''
    v_and_b32 v{lane}, 63, v0
    v_and_b32 v{n_}, 15, v0
    v_lshrrev_b32 v{g_}, 4, v{lane}
    v_lshlrev_b32 v{vLin}, 4, v{lane}
    s_lshl_b32 s{sLb}, s{sW}, 15
    s_lshl_b32 s{sA}, s{sW}, 13
    s_add_u32 s{sM0kv}, s{sA}, {SLAB}
    v_add_u32 v{vLw}, s{sLb}, v{vLin}
    v_add_u32 v{vSo}, s{sM0kv}, v{vLin}
    v_add_u32 v{vS}, {SLAB}, v{vLin}
    ; DMA lane offsets: r=(l/4)%4, gb=l/16, cc=(l%4)^(2*gb0)
    v_and_b32 v{t1}, 1, v{g_}
    v_lshlrev_b32 v{t2}, 1, v{t1}
    v_xor_b32 v{t2}, v{t2}, v{lane}
    v_and_b32 v{t2}, 3, v{t2}
    v_lshlrev_b32 v{t2}, 4, v{t2}          ; cc*16
    v_lshrrev_b32 v{t3}, 1, v{g_}          ; gb1
    v_lshl_add_u32 v{vWa}, v{t3}, 2, v{t1}
    v_and_b32 v{vTr}, 4, v{lane}
    v_lshl_add_u32 v{vWa}, v{vTr}, 2, v{vWa}
    v_and_b32 v{vTr}, 8, v{lane}
    v_lshrrev_b32 v{vTr}, 2, v{vTr}
    v_add_u32 v{vWa}, v{vWa}, v{vTr}
    v_lshl_add_u32 v{vWa}, v{vWa}, 13, v{t2}
    v_lshlrev_b32 v{vOa}, 5, v{t1}
    v_lshl_add_u32 v{vOa}, v{t3}, 2, v{vOa}
    v_and_b32 v{vTr}, 8, v{lane}
    v_lshl_add_u32 v{vOa}, v{vTr}, 1, v{vOa}
    v_bfe_u32 v{vTr}, v{lane}, 2, 1
    v_add_u32 v{vOa}, v{vOa}, v{vTr}
    v_lshl_add_u32 v{vOa}, v{vOa}, 10, v{t2}
    s_lshl_b32 s{sA}, s{sH}, 8
    s_lshl_b32 s{sB}, s{sW}, 6
    s_add_u32 s{sA}, s{sA}, s{sB}
    v_add_u32 v{vWa}, s{sA}, v{vWa}
    s_lshl_b32 s{sA}, s{sH}, 17
    s_lshl_b32 s{sB}, s{sW}, 8
    s_add_u32 s{sA}, s{sA}, s{sB}
    v_add_u32 v{vOa}, s{sA}, v{vOa}
    ''')
    order = REG_BLK + LDS_BLK
    def dma(bi):
        m, i = order[bi]; slot = bi % 8; tg = None
        if m != 'o':
            base = {'q': sWq, 'k': sWk, 'v': sWv}[m]
            a(f's_xor_b32 s{sA}, s{sW}, {i//2}\ns_lshl_b32 s{sA}, s{sA}, 20')
        for J in range(4):
            if m != 'o':
                off = (64*(i%2) + 32*(J&1) + 8*(J>>1))*8192
                a(f's_add_u32 s{sB}, s{sA}, {off}\ns_add_u32 s{sTmp}, s{base}, s{sB}\ns_addc_u32 s{sTmp+1}, s{base+1}, 0')
                va = vWa
            else:
                kap, jp = i % 2, i // 2
                off = jp*64 + (64*kap + 8*(J>>1) + 2*(J&1))*1024
                a(f's_add_u32 s{sTmp}, s{sWo}, {off}\ns_addc_u32 s{sTmp+1}, s{sWo+1}, 0')
                va = vOa
            a(f's_add_u32 m0, s{sLb}, {slot*4096+J*1024}')
            tg = a(f'global_load_lds_dwordx4 v{va}, {sp(sTmp)}')
        return tg
    dtag = {}
    for bi in range(8): dtag[bi] = dma(bi)
    a(f'''
    v_lshlrev_b32 v{vTr}, 8, v{g_}
    v_lshrrev_b32 v{t2}, 2, v{n_}
    v_lshl_add_u32 v{vTr}, v{t2}, 6, v{vTr}
    v_lshl_add_u32 v{vTr}, v{t1}, 5, v{vTr}
    v_and_b32 v{t3}, 3, v{lane}
    v_lshl_add_u32 v{vTr}, v{t3}, 3, v{vTr}
    v_add_u32 v{vTr}, s{sLb}, v{vTr}
    v_xor_b32 v{vTr+1}, 32, v{vTr}
    v_xor_b32 v{vXw}, v{g_}, v{t2}
    v_lshlrev_b32 v{vXw}, 3, v{vXw}
    v_lshl_add_u32 v{vXw}, v{n_}, 5, v{vXw}
    s_add_u32 s{sA}, s{sM0kv}, 7168
    v_add_u32 v{vXw}, s{sA}, v{vXw}
    v_xor_b32 v{vXr}, v{t3}, v{g_}
    v_lshlrev_b32 v{vXr}, 3, v{vXr}
    v_lshl_add_u32 v{vXr}, v{t2}, 5, v{vXr}
    v_lshl_add_u32 v{vXr}, v{g_}, 7, v{vXr}
    v_add_u32 v{vXr}, {SLAB+7168}, v{vXr}
    v_lshl_add_u32 v{vPst}, v{t2}, 2, v{g_}
    v_lshlrev_b32 v{vPst}, 11, v{vPst}
    v_lshl_add_u32 v{vPst}, v{t3}, 4, v{vPst}
    s_lshl_b32 s{sA}, s{sW}, 16
    s_lshl_b32 s{sB}, s{sH}, 6
    s_add_u32 s{sA}, s{sA}, s{sB}
    v_add_u32 v{vPst}, s{sA}, v{vPst}
    ; publish: (c/2)*32 + p*16 + (c%2)*8 + (i/2)*4 ; c=g, p=bit2, i=lane%4
    v_lshrrev_b32 v{vMst}, 1, v{g_}
    v_lshlrev_b32 v{vMst}, 5, v{vMst}
    v_lshl_add_u32 v{vMst}, v{t1}, 3, v{vMst}
    v_and_b32 v{t2}, 4, v{lane}
    v_lshl_add_u32 v{vMst}, v{t2}, 2, v{vMst}
    v_and_b32 v{t2}, 2, v{lane}
    v_lshl_add_u32 v{vMst}, v{t2}, 1, v{vMst}
    ; O write: slab + 4096 + (w/2)*1024 + lane*16 + (w%2)*8
    s_lshr_b32 s{sA}, s{sW}, 1
    s_lshl_b32 s{sA}, s{sA}, 10
    s_and_b32 s{sB}, s{sW}, 1
    s_lshl_b32 s{sB}, s{sB}, 3
    s_add_u32 s{sA}, s{sA}, s{sB}
    s_add_u32 s{sA}, s{sA}, {SLAB+4096}
    v_add_u32 v{vOw}, s{sA}, v{vLin}
    s_mov_b32 s{sB1}, 0xcccccccc
    s_mov_b32 s{sB1+1}, 0xcccccccc
    s_mov_b32 s{sPm}, 0xf0f0f0f0
    s_mov_b32 s{sPm+1}, 0xf0f0f0f0
    s_mov_b32 s{sPub}, 0x00550055
    s_mov_b32 s{sPub+1}, 0x00550055
    s_mov_b32 s{sQc}, {QSCALE}
    v_mov_b32 v{t2}, 0x4444
    v_mov_b32 v{t3}, 0xeeee
    v_cndmask_b32 v{vIdx}, v{t2}, v{t3}, {sp(sB1)}
    v_cndmask_b32 v{vM0}, -1, 0, {sp(sB1)}
    v_cndmask_b32 v{vM1}, 0, -1, {sp(sB1)}
    ''')
    for i in range(4):
        a(f's_mov_b32 s{sSel+2*i}, {0x00110011 << i}\ns_mov_b32 s{sSel+2*i+1}, {0x00110011 << i}')
    a(f'''
    s_lshl_b32 s{sA}, s{sH}, 2
    s_add_u32 s{sA}, s{sA}, s{sW}
    s_add_u32 s{sRA}, s{sWs}, {WS_RA}
    s_addc_u32 s{sRA+1}, s{sWs+1}, 0
    s_lshl_b32 s{sB}, s{sA}, 11
    s_add_u32 s{sRAo}, s{sRA}, s{sB}
    s_addc_u32 s{sRAo+1}, s{sRA+1}, 0
    s_lshl_b32 s{sB}, s{sA}, 6
    s_add_u32 s{sB}, s{sB}, {WS_RM}
    s_add_u32 s{sRMs}, s{sWs}, s{sB}
    s_addc_u32 s{sRMs+1}, s{sWs+1}, 0
    s_lshl_b32 s{sB}, s{sW}, 11
    s_add_u32 s{sB}, s{sB}, {WS_RM}
    s_add_u32 s{sRMl}, s{sWs}, s{sB}
    s_addc_u32 s{sRMl+1}, s{sWs+1}, 0
    s_lshl_b32 s{sB}, s{sA}, 12
    s_add_u32 s{sKV}, s{sWs}, s{sB}
    s_addc_u32 s{sKV+1}, s{sWs+1}, 0
    s_lshl_b32 s{sB}, s{sA}, 10
    s_add_u32 s{sB}, s{sB}, {WS_KVM-32*4096}
    s_add_u32 s{sKVM}, s{sWs}, s{sB}
    s_addc_u32 s{sKVM+1}, s{sWs+1}, 0
    s_lshl_b32 s{sB}, s{sH}, 2
    s_add_u32 s{sB}, s{sB}, 128
    s_add_u32 s{sFl}, s{sDbg}, s{sB}
    s_addc_u32 s{sFl+1}, s{sDbg+1}, 0
    s_cmp_eq_u32 s{sW}, 0
    s_cselect_b32 s{sFm}, 1, 0
    s_mov_b32 s{sFm+1}, 0
    v_mov_b64 {vr(HK,2)}, 0
    v_mov_b64 {vr(HV,2)}, 0
    v_mov_b32 v{T+12}, -1
    v_mov_b32 v{T+13}, -1
    v_mov_b32 v{T+14}, -1
    v_mov_b32 v{T+15}, -1
    s_add_u32 s{sTmp}, s{sRAo}, {RA_SLOT}
    s_addc_u32 s{sTmp+1}, s{sRAo+1}, 0
    global_store_dwordx4 v{vLin}, {vr(T+12,4)}, {sp(sRAo)} sc1
    global_store_dwordx4 v{vLin}, {vr(T+12,4)}, {sp(sRAo)} offset:1024 sc1
    global_store_dwordx4 v{vLin}, {vr(T+12,4)}, {sp(sTmp)} sc1
    global_store_dwordx4 v{vLin}, {vr(T+12,4)}, {sp(sTmp)} offset:1024 sc1
    s_add_u32 s{sTmp}, s{sRMs}, {RM_SLOT}
    s_addc_u32 s{sTmp+1}, s{sRMs+1}, 0
    s_mov_b64 exec, {sp(sPub)}
    global_store_dword v{vMst}, v{T+12}, {sp(sRMs)} sc1
    global_store_dword v{vMst}, v{T+12}, {sp(sTmp)} sc1
    s_mov_b64 exec, -1
    ; M(0) gather: lane(row: b0=t%2,b1=half,b3:2=t/2 ; ga): byte = t*1024 + (128w + 64s + 16(ea%4) + 4ga + 2half + ea/4)*2
    v_lshrrev_b32 v{t2}, 2, v{n_}
    v_lshlrev_b32 v{t2}, 11, v{t2}
    v_and_b32 v{t3}, 1, v{lane}
    v_lshl_add_u32 v{t2}, v{t3}, 10, v{t2}
    v_lshl_add_u32 v{t2}, v{g_}, 3, v{t2}
    v_and_b32 v{t3}, 2, v{lane}
    v_lshl_add_u32 v{t2}, v{t3}, 1, v{t2}
    s_lshl_b32 s{sA}, s{sW}, 8
    v_add_u32 v{t2}, s{sA}, v{t2}
    ''')
    for s_ in range(2):
        for ea in range(8):
            off = (64*s_ + 16*(ea%4) + ea//4)*2
            a(f'global_load_ushort v{S+8*s_+ea}, v{t2}, {sp(sMem)} offset:{off}')
    for bi in range(32):
        m, i = order[bi]; slot = bi % 8
        a.wvm(dtag[bi])
        if bi == 8:
            a(f"""
            v_mov_b32 v{t1}, 64
            s_cmp_eq_u32 s{sXcc}, 0
            s_cselect_b32 s{sA}, 1, 0x10001
            v_mov_b32 v{t3}, s{sA}
            s_mov_b64 exec, 1
            global_atomic_add v{t1}, v{t3}, {sp(sDbg)} sc1
            s_mov_b64 exec, -1
            """)
            for r in range(8): a(f'v_lshl_or_b32 v{M+r}, v{S+2*r+1}, 16, v{S+2*r}')
        if bi < 24: k, b = dest((m,i))
        else: k, b = 'v', S
        for u in range(2):
            for J in range(4):
                a(f'ds_read_b64_tr_b16 {vr(b+8*u+2*J,2,k)}, v{vTr+u} offset:{slot*4096+J*1024}')
        a('s_waitcnt lgkmcnt(0)')
        if bi + 8 < 32: dtag[bi+8] = dma(bi+8)
        if bi == 23:
            if mega:
                a(f'''
                v_mov_b32 v{t1}, 72
                s_mov_b32 s{sSpin}, 0
                {L('kw')}:
                global_load_dword v{t3}, v{t1}, {sp(sDbg)} sc1
                s_add_u32 s{sSpin}, s{sSpin}, 1
                s_cmp_gt_u32 s{sSpin}, {SPIN}
                s_cbranch_scc1 {L('end')}
                s_waitcnt vmcnt(0)
                v_cmp_gt_u32 vcc, 896, v{t3}
                s_cbranch_vccnz {L('kw')}
                ''')
            a(f's_mov_b32 m0, s{sM0kv}')
            for j in range(4): kvtag = a(f'global_load_lds_dwordx4 v{vLin}, {sp(sKV)} offset:{j*1024} sc1')
        if bi >= 24:
            for u in range(2):
                for hf in range(2):
                    a(f'ds_write_b128 v{vLw}, {vr(S+8*u+4*hf,4)} offset:{slot*4096+u*2048+hf*1024}')
            a('s_waitcnt lgkmcnt(0)')
    a(f'''
    v_mov_b32 v{t1}, 64
    s_mov_b32 s{sSpin}, 0
    {L('tb')}:
    global_load_dword v{t3}, v{t1}, {sp(sDbg)} sc1
    s_add_u32 s{sSpin}, s{sSpin}, 1
    s_cmp_gt_u32 s{sSpin}, {SPIN}
    s_cbranch_scc1 {L('end')}
    s_waitcnt vmcnt(0)
    v_readfirstlane_b32 s{sXcc}, v{t3}
    s_and_b32 s{sA}, s{sXcc}, 0xffff
    s_cmp_lt_u32 s{sA}, 0x80
    s_cbranch_scc1 {L('tb')}
    s_mov_b32 s{sT}, 0
    s_mov_b32 s{sSpin}, 0
    ''')
    if prof:
        for i in range(8): a(f's_mov_b32 s{sP+20+i}, 0')
        a(f's_memtime {sp(sP+28)}')
    st1 = stage(0)

    DPPM = 'row_mask:0xf bank_mask:0xf'
    QA = T+8; VA = QV
    def pre1():
        a(f"""
        s_and_b32 s{sA}, s{sT}, 1
        s_lshl_b32 s{sC}, s{sA}, 13
        s_add_u32 s{sMld}, s{sRMl}, s{sC}
        s_addc_u32 s{sMld+1}, s{sRMl+1}, 0
        s_xor_b32 s{sB}, s{sA}, 1
        ds_read_b128 {vr(KX,4)}, v{vSo}
        ds_read_b128 {vr(KX+4,4)}, v{vSo} offset:1024
        ds_read_b128 {vr(VX,4)}, v{vSo} offset:2048
        ds_read_b128 {vr(VX+4,4)}, v{vSo} offset:3072
        """)
        for i in range(0,16,2): a(f'v_mov_b64 {vr(VA+i,2)}, 0')
        for i in range(0,8,2): a(f'v_mov_b64 {vr(QA+i,2)}, 0')
        return 21
    def pre2():
        a(f"""
        s_lshl_b32 s{sC}, s{sB}, 13
        s_add_u32 s{sMst}, s{sRMs}, s{sC}
        s_addc_u32 s{sMst+1}, s{sRMs+1}, 0
        s_lshl_b32 s{sC}, s{sA}, 18
        s_add_u32 s{sSt0}, s{sRA}, s{sC}
        s_addc_u32 s{sSt0+1}, s{sRA+1}, 0
        s_add_u32 s{sSt1}, s{sSt0}, 32768
        s_addc_u32 s{sSt1+1}, s{sSt0+1}, 0
        s_add_u32 s{sAld}, s{sRAo}, s{sC}
        s_addc_u32 s{sAld+1}, s{sRAo+1}, 0
        s_lshl_b32 s{sC}, s{sB}, 18
        s_add_u32 s{sArs}, s{sRAo}, s{sC}
        s_addc_u32 s{sArs+1}, s{sRAo+1}, 0
        s_add_u32 s{sKV}, s{sKV}, {32*16384}
        s_addc_u32 s{sKV+1}, s{sKV+1}, 0
        s_mov_b32 m0, s{sM0kv}
        """)
        for i in range(1,4): a(f'v_xor_b32 v{T+i-1}, {i*8192}, v{vSo}')
        a(f's_lshl_b32 s{sC}, s{sW}, 13\nv_add_u32 v{T+3}, s{sC}, v{vXr}')
        for i in (0,2): a(f'v_mov_b64 {vr(T+4+i,2)}, -1')
        return 23
    def ldM(r): a(f'global_load_dwordx4 {vr(r,4)}, v{vLin}, {sp(sMld)} sc1\nglobal_load_dwordx4 {vr(r+4,4)}, v{vLin}, {sp(sMld)} offset:1024 sc1')
    def ldA(r): a(f'global_load_dwordx4 {vr(r,4)}, v{vLin}, {sp(sAld)} sc1\nglobal_load_dwordx4 {vr(r+4,4)}, v{vLin}, {sp(sAld)} offset:1024 sc1')
    def spin(): a(f's_add_u32 s{sSpin}, s{sSpin}, 1\ns_cmp_gt_u32 s{sSpin}, {SPIN}\ns_cbranch_scc1 {LE}')
    acc = {'q': QA, 'k': KA, 'v': VA}
    def P_(m, sg, u): SM(acc[m]+4*u, M+4*sg, m, sg, u)
    def stage_ins(batch):
        out = []
        for n in range(2):
            slot = 2*batch + n; staged[LDS_BLK[slot]] = S + 16*n
            for u in range(2):
                for hf in range(2):
                    out.append(f'ds_read_b128 {vr(S+16*n+8*u+4*hf,4)}, v{vLw} offset:{slot*4096+u*2048+hf*1024}')
        return out
    for r in (0,2,4,6): a(f'v_min_u32 v{M+r}, -2, v{M+r}')
    pre1(); pre2()
    a('s_waitcnt lgkmcnt(0)')
    if mega: a(f's_cmp_gt_u32 s{sXcc}, 0xffff\ns_cbranch_scc1 {L("s_try")}')
    a(f's_branch {L("try")}')
    staged0 = dict(staged)
    def loop(L, stc):
        staged.clear(); staged.update(staged0)
        a.label(L('retry'))
        spin()
        a('s_waitcnt vmcnt(0)')
        for i in range(0,8,2): a(f'v_mov_b64 {vr(M+i,2)}, {vr(M+24+i,2)}')
        ldM(M+24)
        for i in range(0,8,2): a(f'v_mov_b64 {vr(QA+i,2)}, 0')
        a(f's_branch {L("try")}')
        a.label(L('step'))
        n = pre1(); a.nops(preB - n)
        ldM(M)
        n = pre2(); a.nops(gapB - n - 2)
        ldM(M+24)
        a(f's_waitcnt vmcnt(2) lgkmcnt(0)')
        a.label(L('try'))
        a.nds = 0; a.nvm = 2; set2 = 2
        stamp(0)
        ck = M+8
        a(f'ds_write_b128 v{vSo}, {vr(M,4)} offset:4096\nds_write_b128 v{vSo}, {vr(M+4,4)} offset:5120')
        P_('q',0,0); a(f'v_max3_u32 v{ck}, v{M}, v{M+2}, v{M+4}')
        P_('q',0,1); a(f'v_max_u32 v{ck}, v{ck}, v{M+6}')
        P_('q',1,0); a(f'v_cmp_eq_u32 vcc, -1, v{ck}')
        P_('q',1,1); a(f's_cbranch_vccnz {L("retry")}\ns_waitcnt lgkmcnt(0)\ns_barrier')
        mt = {}
        def rdM(sg): mt[sg] = a(f'ds_read_b128 {vr(M+4*sg,4)}, v{T+sg//2-1} offset:{4096+1024*(sg%2)}')
        rdM(2); rdM(3)
        P_('k',0,0); rdM(4); rdM(5)
        P_('k',0,1); a(f'global_store_dwordx4 v{vLin}, {vr(T+4,4)}, {sp(sArs)}{stc}\nglobal_store_dwordx4 v{vLin}, {vr(T+4,4)}, {sp(sArs)} offset:1024{stc}')
        P_('k',1,0); a(f's_mov_b64 exec, {sp(sPub)}\nglobal_store_dword v{vMst}, v{T+4}, {sp(sMst)}{stc}\ns_mov_b64 exec, -1')
        rst = a.nvm
        a(f'v_mov_b32 v{T}, s{sT}')
        dm = [f'global_load_lds_dwordx4 v{vLin}, {sp(sKV)} offset:{j*1024} sc1' for j in range(4)]
        P_('k',1,1); a(dm[0]); a(dm[1])
        vq = [(sg,u) for sg in (0,1,2,3,4,5,6,7) for u in (0,1)]
        def V_():
            sg, u = vq.pop(0); P_('v', sg, u)
        s2 = stage_ins(1)
        for i in range(nV0):
            V_()
            if i == 0: a(dm[2]); a(dm[3])
            if i == 1: a(f'global_store_dwordx4 v{vLin}, {vr(HK,4)}, {sp(sKVM)} sc1\ns_add_u32 s{sKVM}, s{sKVM}, {32*4096}\ns_addc_u32 s{sKVM+1}, s{sKVM+1}, 0')
            if i == 2: a(f's_mov_b64 exec, {sp(sFm)}\nglobal_store_dword v{vLin}, v{T}, {sp(sFl)} sc1\ns_mov_b64 exec, -1')
        assert nV0 >= 3
        if nV0 == 0: a(dm[2]); a(dm[3])
        a.wds(mt[2]); P_('q',2,0); a(s2[0])
        P_('q',2,1); a(s2[1]); a.wds(mt[3])
        P_('q',3,0); a.wvm(set2); rdM(6)
        P_('q',3,1); rdM(7); a.wds(mt[4])
        P_('q',4,0); a(s2[2]); a.wds(mt[5])
        P_('q',5,0); a(s2[3])
        P_('q',4,1); a(s2[4])
        P_('q',5,1); a(s2[5]); a.wds(mt[6])
        P_('q',6,0); a(s2[6]); a.wds(mt[7])
        P_('q',7,0); st2 = a(s2[7])
        P_('q',6,1)
        P_('q',7,1)
        stamp(1)
        Y = T+4; D0 = T+8; D1 = T+12
        def qcvt(u):
            q = QA+4*u
            return [f'v_add_f32 v{q}, v{q}, v{q+2}', f'v_add_f32 v{q+1}, v{q+1}, v{q+3}',
                    f'v_mul_f32 v{q}, s{sQc}, v{q}', f'v_mul_f32 v{q+1}, s{sQc}, v{q+1}',
                    f'v_cvt_pk_bf16_f32 v{q+2}, v{q}, v{q+1}',
                    f'ds_write2_b32 v{vXw}, v{q+2}, v{q+2} offset0:{128*u} offset1:{128*u+1}',
                    f'ds_read_b64_tr_b16 {vr(Y+2*u,2)}, v{T+3} offset:{512*u}']
        f0 = qcvt(0); f1 = qcvt(1)
        a(f0[0]); a(f0[1])
        P_('k',4,0); a(f0[2]); a(f0[3])
        P_('k',5,0); a(f0[4]); a(f1[0])
        P_('k',6,0); a(f0[5]); a(f0[6]); a(f1[1]); a(f1[2])
        P_('k',7,0); a.wds(st2); a(f1[3]); a(f1[4])
        P_('k',2,0); a(f1[5]); yt = a(f1[6])
        P_('k',3,0)
        P_('k',2,1)
        P_('k',3,1); s3 = stage_ins(2); a(s3[0]); a(f'v_add_f32 v{KA}, v{KA}, v{KA+2}')
        P_('k',4,1); a(s3[1]); a(s3[2]); a(f'v_add_f32 v{KA+1}, v{KA+1}, v{KA+3}')
        P_('k',5,1); a(s3[3]); a.wds(yt); a(f'v_cvt_pk_bf16_f32 v{HK}, v{KA}, v{KA+1}')
        a(f'v_mfma_f32_16x16x32_bf16 {vr(D0,4)}, {vr(KX,4)}, {vr(Y,4)}, 0')
        a(f'ds_write_b32 v{vXw}, v{HK} offset:4'); a(s3[4]); a(s3[5])
        a(f'v_mfma_f32_16x16x32_bf16 {vr(D1,4)}, {vr(KX+4,4)}, {vr(Y,4)}, 0')
        a(s3[6]); st3 = a(s3[7])
        P_('k',6,1)
        P_('k',7,1)
        for r in range(4): a(f'v_cndmask_b32 v{D0+r}, v{D0+r}, v{D1+r}, {sp(sB1)}')
        a(f'ds_write_b128 v{vSo}, {vr(D0,4)} offset:6144')
        a(f'v_add_f32 v{KA+4}, v{KA+4}, v{KA+6}\nv_add_f32 v{KA+5}, v{KA+5}, v{KA+7}')
        a(f'v_cvt_pk_bf16_f32 v{HK+1}, v{KA+4}, v{KA+5}')
        a(f'ds_write_b32 v{vXw}, v{HK+1} offset:516')
        a.wds(st3)
        for i in range(nV1): V_()
        a('s_waitcnt lgkmcnt(0)\ns_barrier')
        stamp(2)
        xr = [f'ds_read_b64_tr_b16 {vr(XO+4*i+2*v,2)}, v{vXr} offset:{i*8192+v*512}' for i in range(4) for v in range(2)]
        sr = [f'ds_read_b128 {vr(T+4*i,4)}, v{vS} offset:{i*8192+6144}' for i in range(4)]
        rd = xr[:4] + sr[:2] + xr[4:] + sr[2:]; tg = {}
        for i, x_ in enumerate(rd):
            tg[x_] = a(x_)
            if i % 3 == 2 and vq: V_()
        nrest = len(vq) - nV3
        for i in range(nrest): V_()
        assert all(s_ >= 4 for s_, _ in vq)
        s4 = stage_ins(3)
        Dm = M
        ad = [f'v_add_f32 v{T+r}, v{T+r}, v{T+4+r}' for r in range(4)] + [f'v_add_f32 v{T+8+r}, v{T+8+r}, v{T+12+r}' for r in range(4)] + \
             [f'v_add_f32 v{T+r}, v{T+r}, v{T+8+r}' for r in range(4)]
        def SMM(i): a(f'v_mfma_f32_16x16x32_bf16 {vr(Dm,4)}, {vr(XO+4*i,4)}, {vr(XO+4*i,4)}, {vr(Dm,4) if i else 0}')
        a.wds(tg[xr[1]]); SMM(0); a.wds(tg[sr[1]])
        a(ad[0]); a(ad[1]); SMM(1); a.wds(tg[xr[5]]); a(ad[2]); a(ad[3])
        SMM(2); a.wds(tg[sr[3]]); a(ad[4]); a(ad[5])
        SMM(3); a(s4[0]); a(ad[6]); a(ad[7])
        for i in range(8,12): a(ad[i])
        mx = T+4; tm = T+5; ma = T+6
        a(f'v_max3_f32 v{mx}, v{T}, v{T+1}, v{T+2}')
        a(f'v_max_f32 v{mx}, v{mx}, v{T+3}')
        a(f'v_max_f32 v{ma}, v{Dm+2}, v{Dm+3}')
        a(s4[1])
        a(f'v_max_f32_dpp v{mx}, v{mx}, v{mx} quad_perm:[2,3,0,1] {DPPM}')
        a(f'v_max_f32_dpp v{tm}, v{ma}, v{mx} quad_perm:[0,1,0,1] {DPPM}')
        a(f'v_max_f32_dpp v{mx}, v{ma}, v{mx} quad_perm:[0,1,0,1] {DPPM}')
        if vq: V_()
        a(s4[2]); a(s4[3])
        a(f'v_permlane16_swap_b32 v{mx}, v{tm}\nv_max_f32 v{ma}, v{mx}, v{tm}\nv_max_f32 v{mx}, v{mx}, v{tm}')
        if vq: V_()
        a(s4[4]); a(s4[5])
        assert not vq
        a(f'v_permlane32_swap_b32 v{mx}, v{ma}\nv_max_f32 v{mx}, v{mx}, v{ma}')
        for r in range(4): a(f'v_sub_f32 v{T+r}, v{T+r}, v{mx}')
        for r in range(4): a(f'v_exp_f32 v{T+r}, v{T+r}')
        a(f'v_sub_f32_dpp v{T+6}, v{Dm+2}, v{mx} quad_perm:[0,1,0,1] {DPPM}')
        P = T+8; Pm = T+10; Ba = XO; Bb = XO+4; Dd = XO+8; ON = XO+10; OZ = XO+12; Po = T+12; Lr = M+4
        a(f"""
        v_cvt_pk_bf16_f32 v{P}, v{T}, v{T+1}
        v_cvt_pk_bf16_f32 v{P+1}, v{T+2}, v{T+3}
        v_sub_f32_dpp v{T+7}, v{Dm+3}, v{mx} quad_perm:[0,1,0,1] {DPPM}
        v_and_b32 v{Ba}, v{P}, v{vM0}
        v_and_b32 v{Ba+1}, v{P+1}, v{vM0}
        v_and_b32_dpp v{Ba+2}, v{P}, v{vM0} quad_perm:[2,3,0,1] {DPPM}
        v_and_b32_dpp v{Ba+3}, v{P+1}, v{vM0} quad_perm:[2,3,0,1] {DPPM}
        v_exp_f32 v{T+6}, v{T+6}
        v_exp_f32 v{T+7}, v{T+7}
        v_mfma_f32_16x16x32_bf16 {vr(Po,4)}, {vr(VX,4)}, {vr(Ba,4)}, 0
        {s4[6]}
        v_and_b32_dpp v{Bb}, v{P}, v{vM1} quad_perm:[2,3,0,1] {DPPM}
        v_and_b32_dpp v{Bb+1}, v{P+1}, v{vM1} quad_perm:[2,3,0,1] {DPPM}
        v_and_b32 v{Bb+2}, v{P}, v{vM1}
        v_and_b32 v{Bb+3}, v{P+1}, v{vM1}
        v_cvt_pk_bf16_f32 v{Pm}, v{T+6}, v{T+7}
        v_add_f32 v{T}, v{T}, v{T+1}
        v_mfma_f32_16x16x32_bf16 {vr(Po,4)}, {vr(VX+4,4)}, {vr(Bb,4)}, {vr(Po,4)}
        {s4[7]}
        v_and_b32 v{Dd}, v{Pm}, v{vM0}
        v_and_b32 v{Dd+1}, v{Pm}, v{vM1}
        """)
        return_here = None
        a(f"""
        v_add_f32 v{VA}, v{VA}, v{VA+2}
        v_add_f32 v{VA+1}, v{VA+1}, v{VA+3}
        v_add_f32 v{VA+4}, v{VA+4}, v{VA+6}
        v_add_f32 v{VA+5}, v{VA+5}, v{VA+7}
        v_cvt_pk_bf16_f32 v{HV}, v{VA}, v{VA+1}
        v_cvt_pk_bf16_f32 v{HV+1}, v{VA+4}, v{VA+5}
        v_add_f32 v{T+2}, v{T+2}, v{T+3}
        v_add_f32 v{T+6}, v{T+6}, v{T+7}
        v_mfma_f32_16x16x16_bf16 {vr(Po,4)}, {vr(HV,2)}, {vr(Dd,2)}, {vr(Po,4)}
        v_add_f32 v{T}, v{T}, v{T+2}
        v_fmac_f32 v{T}, 0.5, v{T+6}
        s_cmp_eq_u32 s{sT}, {nsteps-1}
        s_cbranch_scc1 {LE}
        v_add_f32_dpp v{T+1}, v{T}, v{T} quad_perm:[2,3,0,1] {DPPM}
        v_add_f32_dpp v{T}, v{T}, v{T} quad_perm:[2,3,0,1] {DPPM}
        v_permlane16_swap_b32 v{T}, v{T+1}
        v_add_f32 v{T+2}, v{T}, v{T+1}
        v_add_f32 v{T}, v{T}, v{T+1}
        v_mov_b64 {vr(M,2)}, 0
        v_mov_b64 {vr(M+2,2)}, 0
        v_permlane32_swap_b32 v{T}, v{T+2}
        v_add_f32 v{T}, v{T}, v{T+2}
        v_rcp_f32 v{T}, v{T}
        v_mov_b64 {vr(M+4,2)}, 0
        v_mul_f32 v{Po}, v{Po}, v{T}
        v_mul_f32 v{Po+1}, v{Po+1}, v{T}
        v_mul_f32 v{Po+2}, v{Po+2}, v{T}
        v_mul_f32 v{Po+3}, v{Po+3}, v{T}
        v_cvt_pk_bf16_f32 v{Po}, v{Po}, v{Po+1}
        v_cvt_pk_bf16_f32 v{Po+1}, v{Po+2}, v{Po+3}
        ds_write_b64 v{vOw}, {vr(Po,2)}
        """)
        for i in range(6,16,2): a(f'v_mov_b64 {vr(M+i,2)}, 0')
        a.wvm(rst)
        a('s_waitcnt lgkmcnt(0)\ns_barrier')
        stamp(3)
        O = VX
        ot = [a(f'ds_read_b128 {vr(O+4*k_,4)}, v{vS} offset:{4096+1024*k_}') for k_ in range(2)]
        for i in range(16,32,2): a(f'v_mov_b64 {vr(M+i,2)}, 0')
        Sel = T+4; Dr = T+8
        a(f'v_mov_b32 v{T+2}, 0x3f80\nv_mov_b32 v{T+3}, 0x3f800000')
        a(f'v_cndmask_b32 v{T+2}, v{T+2}, v{T+3}, {sp(sPm)}')
        for i in range(4): a(f'v_cndmask_b32 v{Sel+i}, 0, v{T+2}, {sp(sSel+2*i)}')
        PS = VA
        def fin(j):
            c = M+4*j
            r = [f'v_add_f32 v{c}, v{c}, v{c+2}', f'v_add_f32 v{c+1}, v{c+1}, v{c+3}', f'v_cvt_pk_bf16_f32 v{PS+j}, v{c}, v{c+1}']
            if j % 4 == 0: r.append(f'v_min_u32 v{PS+j}, -2, v{PS+j}')
            return r
        pend = []
        def drain(n):
            for _ in range(n):
                if pend: a(pend.pop(0))
        a.wds(ot[0])
        seq = [(0,0),(1,0),(0,1),(1,1)] + [(j,k_) for j in range(2,8) for k_ in range(2)]
        done_at = {}
        for i, (j, kap) in enumerate(seq):
            if i == 2: a.wds(ot[1])
            SM(M+4*j, O+4*kap, 'o', 2*(j//2)+kap, j%2)
            if kap == 1: done_at[i+2] = j
            if i in done_at:
                pend += fin(done_at[i])
                if done_at[i] == 3: pend.append(f'global_store_dwordx4 v{vPst}, {vr(PS,4)}, {sp(sSt0)}{stc}')
            drain(wdr if i % 2 else wdr2)
        drain(99)
        pend += fin(7); drain(99)
        a(f'global_store_dwordx4 v{vPst}, {vr(PS+4,4)}, {sp(sSt1)}{stc}')
        stamp(4)
        for x_ in stage_ins(0): a(x_)
        a.nops(preA - 8)
        R1 = M+8; R2 = M+16
        def redA(R):
            a(f"""
            s_waitcnt vmcnt(3)
            v_mfma_f32_16x16x32_bf16 {vr(Dr,4)}, {vr(R,4)}, {vr(Sel,4)}, 0
            s_waitcnt vmcnt(2)
            v_mfma_f32_16x16x32_bf16 {vr(Dr,4)}, {vr(R+4,4)}, {vr(Sel,4)}, {vr(Dr,4)}
            v_max_u32 v{T}, v{R}, v{R+4}
            v_cmp_eq_u32 vcc, -1, v{T}
            """)
        ldA(R1)
        a.nops(gapA - 2)
        a.label(L('pa'))
        ldA(R2)
        redA(R1)
        a(f's_cbranch_vccz {L("qa")}')
        ldA(R1); spin()
        redA(R2)
        a(f's_cbranch_vccnz {L("pa")}')
        a.label(L('qa'))
        stamp(5)
        a(f"""
        v_permlane32_swap_b32 v{Dr}, v{Dr+2}
        v_permlane32_swap_b32 v{Dr+1}, v{Dr+3}
        v_add_f32 v{Dr}, v{Dr}, v{Dr+2}
        v_add_f32 v{Dr+1}, v{Dr+1}, v{Dr+3}
        v_permlane16_swap_b32 v{Dr}, v{Dr+1}
        v_add_f32 v{Dr}, v{Dr}, v{Dr+1}
        v_mov_b32_dpp v{Dr+1}, v{Dr} quad_perm:[1,0,3,2] {DPPM}
        v_cvt_pk_bf16_f32 v{Dr}, v{Dr}, v{Dr+1}
        s_mov_b64 exec, {sp(sPub)}
        v_min_u32 v{Dr}, -2, v{Dr}
        global_store_dword v{vMst}, v{Dr}, {sp(sMst)}{stc}
        s_mov_b64 exec, -1
        """)
        stamp(6)
        if prof and len(stamps) >= 2:
            a('s_waitcnt lgkmcnt(0)')
            for i in range(len(stamps)-1): a(f's_sub_u32 s{sA}, s{sP+2*stamps[i+1]}, s{sP+2*stamps[i]}\ns_add_u32 s{sP+21+i}, s{sP+21+i}, s{sA}')
        a(f's_add_u32 s{sT}, s{sT}, 1\ns_branch {L("step")}')
    loop(L, stc)
    if mega: loop(lambda x: L('s_' + x), ' sc1')
    a.label(L('end'))
    a('s_mov_b64 exec, -1\ns_nop 7')
    a(f'''
    global_store_dwordx4 v{vLin}, {vr(HK,4)}, {sp(sKVM)} sc1
    v_mov_b32 v{T}, 0x41
    s_waitcnt vmcnt(0)
    s_barrier
    s_mov_b64 exec, {sp(sFm)}
    global_store_dword v{vLin}, v{T}, {sp(sFl)} sc1
    s_mov_b64 exec, -1
    ''')
    if prof:
        a(f's_memtime {sp(sP)}\ns_waitcnt lgkmcnt(0)\ns_sub_u32 s{sP+20}, s{sP}, s{sP+28}')
        for i in range(7): a(f'v_mov_b32 v{T+i}, s{sP+20+i}')
        a(f'''
        v_mov_b32 v{T+7}, s{sSpin}
        s_lshl_b32 s{sA}, s{sH}, 2
        s_add_u32 s{sA}, s{sA}, s{sW}
        s_lshl_b32 s{sA}, s{sA}, 5
        s_add_u32 s{sA}, s{sA}, {WS_PROF}
        v_mov_b32 v{T+8}, s{sA}
        s_mov_b64 exec, 1
        global_store_dwordx4 v{T+8}, {vr(T,4)}, {sp(sWs)}
        global_store_dwordx4 v{T+8}, {vr(T+4,4)}, {sp(sWs)} offset:16
        s_mov_b64 exec, -1
        ''')
    a('s_waitcnt vmcnt(0) lgkmcnt(0)')

def standalone(name='chain_kernel', **kw):
    a = Asm()
    a.raw(khead(name))
    a(f'''
    s_load_dwordx2 {sp(sMem)}, s[0:1], 8
    s_load_dwordx4 s[8:11], s[0:1], 24
    s_load_dwordx2 {sp(sWq)}, s[0:1], 16
    s_load_dwordx2 {sp(sWo)}, s[0:1], 40
    s_load_dwordx2 {sp(sDbg)}, s[0:1], 104
    s_load_dwordx2 {sp(sWs)}, s[0:1], 112
    s_getreg_b32 s{sA}, hwreg(HW_REG_XCC_ID)
    s_and_b32 s{sA}, s{sA}, 15
    s_mov_b32 s{sXcc}, s{sA}
    s_waitcnt lgkmcnt(0)
    s_cmp_lg_u32 s{sA}, 0
    s_cbranch_scc1 L_done_{name}
    v_mov_b32 v1, 0
    v_mov_b32 v2, 1
    v_lshrrev_b32 v4, 6, v0
    v_readfirstlane_b32 s{sW}, v4
    s_cmp_lg_u32 s{sW}, 0
    s_cbranch_scc1 L_t_{name}
    s_mov_b64 exec, 1
    global_atomic_add v3, v1, v2, {sp(sDbg)} sc0 sc1
    s_waitcnt vmcnt(0)
    ds_write_b32 v1, v3
    s_waitcnt lgkmcnt(0)
    s_mov_b64 exec, -1
    L_t_{name}:
    s_barrier
    ds_read_b32 v3, v1
    s_waitcnt lgkmcnt(0)
    v_readfirstlane_b32 s{sH}, v3
    s_barrier
    s_cmp_gt_u32 s{sH}, 31
    s_cbranch_scc1 L_done_{name}
    ''')
    chain(a, name, **kw)
    a.label(f'L_done_{name}')
    a('s_endpgm')
    bad = a.check_branches()
    assert bad == 0
    return a

if __name__ == '__main__':
    import sys
    variants = eval(sys.argv[1]) if len(sys.argv) > 1 else [dict()]
    out = ''.join(f'; @launch kernel=c{i}_kernel grid=(256,1,1) block=(256,1,1) lds=163840\n' for i in range(len(variants)))
    out += '.amdgcn_target "amdgcn-amd-amdhsa--gfx950"\n.text\n'
    for i, v in enumerate(variants):
        a = standalone(f'c{i}_kernel', prof=True, **v); out += a.text()
    out += '.section .rodata,"a"\n' + ''.join(kdesc(f'c{i}_kernel') for i in range(len(variants)))
    open('chain.s','w').write(out)
    open('chain.json','w').write(repr(variants))
```

```python
from asmlib import *
import gen_chain as C
from gen_chain import sp, sMem,sWq,sWk,sWv,sWo,sDbg,sWs,sH,sW,sXcc,QSCALE,WS_KVM,f32
import math
NAME = 'gated_mix__memory_aug_recurrent_mem_tr__glu_gated_bilinear__prompt_kernel'
WS_QX = 64<<20; WS_ACT = 128<<20; ACT_T = 180224; WS_F2 = 63<<20
WSPIN = 60000
sGrp = 20; sSpin = 21; sA, sB, sC, sD = 22, 23, 24, 25
sX, sWg, sWu, sWd, sGw, sOut = 30, 32, 34, 36, 38, 40
MF = 'v_mfma_f32_16x16x32_bf16'

def add64(a, d, s, off):
    o = f's{off}' if isinstance(off, str) is False and False else off
    a(f's_add_u32 s{d}, s{s}, {off}\ns_addc_u32 s{d+1}, s{s+1}, 0')

def wait_cnt(a, lab, off, val, fail):
    a(f'''
    s_cmp_lg_u32 s{sW}, 0
    s_cbranch_scc1 {lab}_b
    v_mov_b32 v1, {off}
    s_mov_b32 s{sSpin}, 0
    {lab}_p:
    global_load_dword v2, v1, {sp(sDbg)} sc1
    s_add_u32 s{sSpin}, s{sSpin}, 1
    s_cmp_gt_u32 s{sSpin}, {WSPIN}
    s_cbranch_scc1 {lab}_b
    s_waitcnt vmcnt(0)
    v_cmp_le_u32 vcc, {val}, v2
    s_cbranch_vccnz {lab}_b
    s_sleep 8
    s_branch {lab}_p
    {lab}_b:
    s_waitcnt vmcnt(0)
    s_barrier
    ''')

def signal(a, off):
    a(f'''
    s_waitcnt vmcnt(0)
    v_mov_b32 v1, {off}
    v_mov_b32 v2, 1
    s_mov_b64 exec, 1
    global_atomic_add v1, v2, {sp(sDbg)} sc1
    s_mov_b64 exec, -1
    ''')

def t1(a):
    sTile, sBuf, sStr, sW0, sW1, sO0, sO1, sBlk, sM, sXb = 44, 45, 46, 48, 50, 52, 54, 56, 57, 58
    ACC = 16; WF = 80; PK = 112
    vLane, vN, vG, vLin, vTr, vRow, vCh, vA, vXo = 3, 4, 5, 6, 8, 10, 11, 12, 13
    acc = lambda T, hf, v: ACC + 16*T + 8*hf + 4*v
    a(f'''
    v_and_b32 v{vLane}, 63, v0
    v_and_b32 v{vN}, 15, v0
    v_lshrrev_b32 v{vG}, 4, v{vLane}
    v_lshlrev_b32 v{vLin}, 4, v{vLane}
    s_and_b32 s{sBlk}, s{sH}, 7
    s_lshr_b32 s{sA}, s{sH}, 3
    s_sub_u32 s{sTile}, s{sGrp}, 1
    s_lshl_b32 s{sTile}, s{sTile}, 2
    s_add_u32 s{sTile}, s{sTile}, s{sA}
    ; DMA lane: row = l/4 + 128w ; chunk = (l%4) ^ (2*bit5)
    v_lshrrev_b32 v{vRow}, 2, v{vLane}
    s_lshl_b32 s{sA}, s{sW}, 7
    v_add_u32 v{vRow}, s{sA}, v{vRow}
    v_lshrrev_b32 v{vCh}, 4, v{vLane}
    v_and_b32 v{vCh}, 2, v{vCh}
    v_xor_b32 v{vCh}, v{vCh}, v{vLane}
    v_and_b32 v{vCh}, 3, v{vCh}
    v_lshlrev_b32 v{vCh}, 4, v{vCh}
    s_mov_b32 s{sBuf}, 0
    ''')
    def wsrc(tag, tile):
        a(f'''
        s_cmp_ge_u32 s{tile}, 192
        s_cbranch_scc1 Lt1_{tag}_gu
        s_lshr_b32 s{sA}, s{tile}, 6
        s_cmp_eq_u32 s{sA}, 0
        s_cselect_b64 {sp(sW0)}, {sp(sWk)}, {sp(sWv)}
        s_cmp_eq_u32 s{sA}, 2
        s_cselect_b64 {sp(sW0)}, {sp(sWq)}, {sp(sW0)}
        s_and_b32 s{sA}, s{tile}, 63
        s_lshl_b32 s{sA}, s{sA}, 7
        s_add_u32 s{sW0}, s{sW0}, s{sA}
        s_addc_u32 s{sW0+1}, s{sW0+1}, 0
        s_add_u32 s{sW1}, s{sW0}, 64
        s_addc_u32 s{sW1+1}, s{sW0+1}, 0
        s_mov_b32 s{sStr}, 8192
        s_branch Lt1_{tag}_e
        Lt1_{tag}_gu:
        s_min_u32 s{sA}, s{tile}, 234
        s_sub_u32 s{sA}, s{sA}, 192
        s_lshl_b32 s{sA}, s{sA}, 6
        s_add_u32 s{sW0}, s{sWg}, s{sA}
        s_addc_u32 s{sW0+1}, s{sWg+1}, 0
        s_add_u32 s{sW1}, s{sWu}, s{sA}
        s_addc_u32 s{sW1+1}, s{sWu+1}, 0
        s_mov_b32 s{sStr}, 2752
        Lt1_{tag}_e:
        v_mad_u32_u24 v{vA}, v{vRow}, s{sStr}, v{vCh}
        s_lshl_b32 s{sStr}, s{sStr}, 4
        ''')
    def dma(i):
        r = [f's_add_u32 m0, s{sM}, {i*1024}', f'global_load_lds_dwordx4 v{vA}, {sp(sW0)}',
             f's_add_u32 m0, s{sM}, {32768+i*1024}', f'global_load_lds_dwordx4 v{vA}, {sp(sW1)}']
        if i < 7: r.append(f'v_add_u32 v{vA}, s{sStr}, v{vA}')
        return r
    wsrc('p', sTile)
    a(f's_lshl_b32 s{sM}, s{sW}, 13')
    for i in range(8):
        for x in dma(i): a(x)
    a(f'''
    s_lshl_b32 s{sA}, s{sBlk}, 18
    s_lshl_b32 s{sB}, s{sW}, 16
    s_add_u32 s{sA}, s{sA}, s{sB}
    s_add_u32 s{sXb}, s{sX}, s{sA}
    s_addc_u32 s{sXb+1}, s{sX+1}, 0
    v_lshlrev_b32 v{vXo}, 10, v{vN}
    v_lshl_add_u32 v{vXo}, v{vG}, 4, v{vXo}
    ''')
    for T in range(4):
        for ks in range(16):
            a(f'global_load_dwordx4 {vr(64*T+4*ks,4,"a")}, v{vXo}, {sp(sXb)} offset:{ks*64}')
        if T < 3: a(f'v_add_u32 v{vXo}, 16384, v{vXo}')
    a(f'''
    v_lshlrev_b32 v{vTr}, 9, v{vG}
    v_and_b32 v1, 12, v{vLane}
    v_lshl_add_u32 v{vTr}, v1, 4, v{vTr}
    v_and_b32 v1, 3, v{vLane}
    v_lshl_add_u32 v{vTr}, v1, 3, v{vTr}
    v_and_b32 v1, 1, v{vG}
    v_lshl_add_u32 v{vTr}, v1, 5, v{vTr}
    v_xor_b32 v{vTr+1}, 32, v{vTr}
    s_cmp_lg_u32 s{sTile}, 0
    s_cbranch_scc1 Lt1_nz
    s_cmp_lg_u32 s{sBlk}, 0
    s_cbranch_scc1 Lt1_nz
    v_mov_b64 {vr(PK,2)}, 0
    v_mov_b64 {vr(PK+2,2)}, 0
    v_lshlrev_b32 v1, 4, v0
    s_add_u32 s{sO0}, s{sWs}, {WS_F2}
    s_addc_u32 s{sO0+1}, s{sWs+1}, 0
    global_store_dwordx4 v1, {vr(PK,4)}, {sp(sO0)} sc1
    v_add_u32 v1, 4096, v1
    global_store_dwordx4 v1, {vr(PK,4)}, {sp(sO0)} sc1
    Lt1_nz:
    s_waitcnt vmcnt(0)
    s_barrier
    ''')
    a.label('Lt1_tile')
    a(f's_add_u32 s{sD}, s{sTile}, 28')
    wsrc('n', sD)
    a(f's_xor_b32 s{sM}, s{sM}, 65536')
    a(f'''
    s_lshr_b32 s{sA}, s{sTile}, 6
    s_cmp_eq_u32 s{sA}, 1
    s_cbranch_scc1 Lt1_mv
    ''')
    def frags(ks):
        return [f'ds_read_b64_tr_b16 {vr(WF+16*(ks%2)+8*hf+4*v+2*q,2)}, v{vTr+v} offset:{hf*32768+ks*2048+q*256}'
                for hf in range(2) for v in range(2) for q in range(2)]
    def mainloop(swap):
        a.nds = 0
        tg = None
        for x in frags(0): tg = a(x)
        for ks in range(16):
            fill = (frags(ks+1) if ks < 15 else [])
            d = (dma(2*ks) + dma(2*ks+1)) if ks < 4 else []
            a.wds(tg)
            n = 0
            for hf in range(2):
                for v in range(2):
                    for T in range(4):
                        w_ = vr(WF+16*(ks%2)+8*hf+4*v,4); x_ = vr(64*T+4*ks,4,'a'); c = vr(acc(T,hf,v),4)
                        p, q = (w_, x_) if swap else (x_, w_)
                        a(f'{MF} {c}, {p}, {q}, {c if ks else 0}')
                        if fill and n < 8: tg = a(fill.pop(0))
                        elif d:
                            a(d.pop(0))
                            if d and d[0].startswith('global'): a(d.pop(0))
                        n += 1
            assert not fill and not d
        a(f'''
        v_xor_b32 v{vTr}, 0x10000, v{vTr}
        v_xor_b32 v{vTr+1}, 0x10000, v{vTr+1}
        s_waitcnt vmcnt(0)
        s_barrier
        ''')
    def kvbase(base):
        a(f'''
        s_lshl_b32 s{sA}, s{sBlk}, 22
        s_lshl_b32 s{sB}, s{sW}, 20
        s_add_u32 s{sA}, s{sA}, s{sB}
        s_and_b32 s{sB}, s{sTile}, 63
        s_lshl_b32 s{sB}, s{sB}, 13
        s_add_u32 s{sA}, s{sA}, s{sB}
        s_add_u32 s{sA}, s{sA}, {base}
        s_add_u32 s{sO0}, s{sWs}, s{sA}
        s_addc_u32 s{sO0+1}, s{sWs+1}, 0
        s_add_u32 s{sO1}, s{sO0}, 524288
        s_addc_u32 s{sO1+1}, s{sO0+1}, 0
        ''')
    def pack(d, c0, c1):
        a(f'v_cvt_pk_bf16_f32 v{d}, v{c0}, v{c0+1}\nv_cvt_pk_bf16_f32 v{d+1}, v{c0+2}, v{c0+3}')
        a(f'v_cvt_pk_bf16_f32 v{d+2}, v{c1}, v{c1+1}\nv_cvt_pk_bf16_f32 v{d+3}, v{c1+2}, v{c1+3}')
    mainloop(True)
    a(f'''
    s_cmp_ge_u32 s{sTile}, 192
    s_cbranch_scc1 Lt1_eg
    s_mov_b32 s{sC}, 4096
    s_cmp_lt_u32 s{sTile}, 64
    s_cbranch_scc1 Lt1_ek
    s_mov_b32 s{sC}, {QSCALE}
    ''')
    for r in range(64): a(f'v_mul_f32 v{ACC+r}, s{sC}, v{ACC+r}')
    a(f's_mov_b32 s{sC}, {WS_QX+4096}')
    a.label('Lt1_ek')
    kvbase(f's{sC}')
    i = 0
    for T in range(4):
        for hf in range(2):
            d = PK + 4*(i%4); i += 1
            pack(d, acc(T,hf,0), acc(T,hf,1))
            a(f'global_store_dwordx4 v{vLin}, {vr(d,4)}, {sp(sO1 if T//2 else sO0)} offset:{hf*4096-4096+(T%2)*1024} sc1')
    a('s_branch Lt1_next')
    a.label('Lt1_eg')
    a(f'''
    s_lshl_b32 s{sA}, s{sBlk}, 4
    s_lshl_b32 s{sB}, s{sW}, 2
    s_add_u32 s{sA}, s{sA}, s{sB}
    s_mul_i32 s{sA}, s{sA}, {ACT_T}
    s_sub_u32 s{sB}, s{sTile}, 64
    s_lshl_b32 s{sB}, s{sB}, 10
    s_add_u32 s{sA}, s{sA}, s{sB}
    s_add_u32 s{sA}, s{sA}, {WS_ACT}
    s_add_u32 s{sO0}, s{sWs}, s{sA}
    s_addc_u32 s{sO0+1}, s{sWs+1}, 0
    ''')
    for T in range(4):
        for r in range(8): a(f'v_mul_f32 v{acc(T,0,0)+r}, v{acc(T,0,0)+r}, v{acc(T,1,0)+r}')
        d = PK + 4*T
        pack(d, acc(T,0,0), acc(T,0,1))
        a(f'global_store_dwordx4 v{vLin}, {vr(d,4)}, {sp(sO0)} sc1')
        if T < 3: a(f's_add_u32 s{sO0}, s{sO0}, {ACT_T}\ns_addc_u32 s{sO0+1}, s{sO0+1}, 0')
    a('s_branch Lt1_next')
    a.label('Lt1_mv')
    mainloop(False)
    kvbase(4096)
    i = 0
    for s_ in range(2):
        for hf in range(2):
            for u in range(2):
                d = PK + 4*(i%4); i += 1
                pack(d, acc(2*s_,hf,u), acc(2*s_+1,hf,u))
                a(f'global_store_dwordx4 v{vLin}, {vr(d,4)}, {sp(sO1 if s_ else sO0)} offset:{hf*4096-4096+(2+u)*1024} sc1')
    a(f'''
    s_cmp_lt_u32 s{sTile}, 100
    s_cbranch_scc1 Lt1_next
    ''')
    signal(a, 72)
    a.label('Lt1_next')
    a(f'''
    s_add_u32 s{sTile}, s{sTile}, 28
    s_cmp_lt_u32 s{sTile}, 235
    s_cbranch_scc1 Lt1_tile
    ''')
    signal(a, 76)

def t2(a):
    sT, sHd, sK, sQ, sKM, sO, sFl, sMk, sF2 = 44, 45, 46, 48, 50, 52, 54, 56, 64
    vLane, vN, vG, vLin, vKw, vKr, vL2, vNeg = 3, 4, 5, 6, 7, 8, 9, 10
    Q, KX, VX, KM, KT, S, O, P = 16, 48, 80, 112, 128, 144, 176, 240
    DP = 'row_mask:0xf bank_mask:0xf'
    a(f'''
    s_sub_u32 s{sT}, s{sGrp}, 5
    s_lshl_b32 s{sT}, s{sT}, 2
    s_lshr_b32 s{sA}, s{sH}, 3
    s_add_u32 s{sT}, s{sT}, s{sA}
    s_and_b32 s{sHd}, s{sH}, 7
    s_lshl_b32 s{sHd}, s{sHd}, 2
    s_add_u32 s{sHd}, s{sHd}, s{sW}
    s_lshl_b32 s{sA}, s{sW}, 12
    v_lshlrev_b32 v{vKw}, 5, v{vN}
    v_lshl_add_u32 v{vKw}, v{vG}, 3, v{vKw}
    v_add_u32 v{vKw}, s{sA}, v{vKw}
    v_lshlrev_b32 v{vKr}, 3, v{vLane}
    v_add_u32 v{vKr}, s{sA}, v{vKr}
    v_add_u32 v{vL2}, 8192, v{vLin}
    v_mov_b32 v{vNeg}, 0xff800000
    v_lshlrev_b32 v1, 2, v{vG}
    s_lshl_b32 s{sA}, s{sHd}, 2
    s_add_u32 s{sA}, s{sA}, 128
    s_add_u32 s{sFl}, s{sDbg}, s{sA}
    s_addc_u32 s{sFl+1}, s{sDbg+1}, 0
    ''')
    for r in range(4):
        a(f'v_add_u32 v2, {r}, v1\nv_cmp_le_u32 {sp(sMk+2*r)}, v2, v{vN}')
    wait_cnt(a, 'Lt2_w', 76, 896, None)
    a.label('Lt2_seg')
    a(f'''
    s_lshl_b32 s{sA}, s{sT}, 5
    s_add_u32 s{sA}, s{sA}, s{sHd}
    s_lshl_b32 s{sB}, s{sA}, 14
    s_add_u32 s{sB}, s{sB}, 4096
    s_add_u32 s{sK}, s{sWs}, s{sB}
    s_addc_u32 s{sK+1}, s{sWs+1}, 0
    s_add_u32 s{sQ}, s{sK}, {WS_QX}
    s_addc_u32 s{sQ+1}, s{sK+1}, 0
    s_lshl_b32 s{sB}, s{sA}, 12
    s_add_u32 s{sB}, s{sB}, {WS_KVM}
    s_add_u32 s{sKM}, s{sWs}, s{sB}
    s_addc_u32 s{sKM+1}, s{sWs+1}, 0
    s_lshl_b32 s{sB}, s{sA}, 2
    s_add_u32 s{sB}, s{sB}, {WS_F2}
    s_add_u32 s{sF2}, s{sWs}, s{sB}
    s_addc_u32 s{sF2+1}, s{sWs+1}, 0
    s_mul_i32 s{sB}, s{sT}, {2*ACT_T}
    s_lshl_b32 s{sC}, s{sHd}, 12
    s_add_u32 s{sB}, s{sB}, s{sC}
    s_add_u32 s{sB}, s{sB}, {WS_ACT}
    s_add_u32 s{sO}, s{sWs}, s{sB}
    s_addc_u32 s{sO+1}, s{sWs+1}, 0
    ''')
    a.nvm = 0; tq = {}
    for w in range(4):
        for T in range(2):
            va = vL2 if w >= 2 else vLin; off = (w%2)*4096 - 4096
            a(f'global_load_dwordx4 {vr(Q+8*w+4*T,4)}, v{va}, {sp(sQ)} offset:{off+T*1024} sc1')
            tq[w] = a(f'global_load_dwordx4 {vr(KX+8*w+4*T,4)}, v{va}, {sp(sK)} offset:{off+T*1024} sc1')
    for w in range(4):
        for u in range(2):
            va = vL2 if w >= 2 else vLin; off = (w%2)*4096 - 4096
            a(f'global_load_dwordx4 {vr(VX+8*w+4*u,4)}, v{va}, {sp(sK)} offset:{off+2048+u*1024} sc1')
    S00, S01, S11, M0, M1 = S, S+4, S+8, S+12, S+16
    for w in range(4):
        a.wvm(tq[w])
        for (d, tk, tq_) in ((S00,0,0),(S01,0,1),(S11,1,1)):
            a(f'{MF} {vr(d,4)}, {vr(KX+8*w+4*tk,4)}, {vr(Q+8*w+4*tq_,4)}, {vr(d,4) if w else 0}')
    for r in range(4):
        a(f'v_cndmask_b32 v{S00+r}, v{vNeg}, v{S00+r}, {sp(sMk+2*r)}')
        a(f'v_cndmask_b32 v{S11+r}, v{vNeg}, v{S11+r}, {sp(sMk+2*r)}')
    mx0, mx1, t0, t1_ = S+20, S+21, S+22, S+23
    a(f'''
    v_max3_f32 v{mx0}, v{S00}, v{S00+1}, v{S00+2}
    v_max_f32 v{mx0}, v{mx0}, v{S00+3}
    v_max3_f32 v{mx1}, v{S01}, v{S01+1}, v{S01+2}
    v_max3_f32 v{mx1}, v{mx1}, v{S01+3}, v{S11}
    v_max3_f32 v{mx1}, v{mx1}, v{S11+1}, v{S11+2}
    v_max_f32 v{mx1}, v{mx1}, v{S11+3}
    s_add_u32 s{sA}, s{sT}, 2
    v_mov_b32 v1, 0
    s_mov_b32 s{sSpin}, 0
    Lt2_p:
    global_load_dword v2, v1, {sp(sFl)} sc1
    s_add_u32 s{sSpin}, s{sSpin}, 1
    s_cmp_gt_u32 s{sSpin}, {WSPIN}
    s_cbranch_scc1 Lt2_go
    s_waitcnt vmcnt(0)
    v_cmp_le_u32 vcc, s{sA}, v2
    s_cbranch_vccnz Lt2_go
    s_sleep 4
    s_branch Lt2_p
    Lt2_go:
    ''')
    for w in range(4): a(f'global_load_dwordx4 {vr(KM+4*w,4)}, v{vLin}, {sp(sKM)} offset:{w*1024} sc1')
    a('s_waitcnt vmcnt(0)')
    for w in range(4):
        for u in range(2): a(f'ds_write_b32 v{vKw}, v{KM+4*w+u} offset:{w*1024+u*512}')
    a('s_waitcnt lgkmcnt(0)')
    for w in range(4):
        for v in range(2): a(f'ds_read_b64_tr_b16 {vr(KT+4*w+2*v,2)}, v{vKr} offset:{w*1024+v*512}')
    a('s_waitcnt lgkmcnt(0)')
    for w in range(4):
        for T, d in ((0,M0),(1,M1)):
            a(f'{MF} {vr(d,4)}, {vr(KT+4*w,4)}, {vr(Q+8*w+4*T,4)}, {vr(d,4) if w else 0}')
    def xred(op, x, y):
        a(f'''
        v_mov_b32 v{t0}, v{x}
        v_mov_b32 v{t1_}, v{y}
        v_permlane16_swap_b32 v{x}, v{t0}
        v_permlane16_swap_b32 v{y}, v{t1_}
        {op} v{x}, v{x}, v{t0}
        {op} v{y}, v{y}, v{t1_}
        v_mov_b32 v{t0}, v{x}
        v_mov_b32 v{t1_}, v{y}
        v_permlane32_swap_b32 v{x}, v{t0}
        v_permlane32_swap_b32 v{y}, v{t1_}
        {op} v{x}, v{x}, v{t0}
        {op} v{y}, v{y}, v{t1_}
        ''')
    a(f'v_max3_f32 v{mx0}, v{mx0}, v{M0}, v{M0+1}\nv_max3_f32 v{mx1}, v{mx1}, v{M1}, v{M1+1}')
    xred('v_max_f32', mx0, mx1)
    e0 = [S00+r for r in range(4)] + [M0, M0+1]; e1 = [S01+r for r in range(8)] + [M1, M1+1]
    for r in e0: a(f'v_sub_f32 v{r}, v{r}, v{mx0}')
    for r in e1: a(f'v_sub_f32 v{r}, v{r}, v{mx1}')
    for r in e0 + e1: a(f'v_exp_f32 v{r}, v{r}')
    P0, P1, Z0, Z1 = P, P+4, P+8, P+12
    a(f'''
    v_cvt_pk_bf16_f32 v{P0}, v{S00}, v{S00+1}
    v_cvt_pk_bf16_f32 v{P0+1}, v{S00+2}, v{S00+3}
    v_mov_b64 {vr(P0+2,2)}, 0
    v_cvt_pk_bf16_f32 v{P1}, v{S01}, v{S01+1}
    v_cvt_pk_bf16_f32 v{P1+1}, v{S01+2}, v{S01+3}
    v_cvt_pk_bf16_f32 v{P1+2}, v{S11}, v{S11+1}
    v_cvt_pk_bf16_f32 v{P1+3}, v{S11+2}, v{S11+3}
    v_cvt_pk_bf16_f32 v{Z0}, v{M0}, v{M0+1}
    v_mov_b32 v{Z0+1}, 0
    v_mov_b32 v{Z0+2}, 0
    v_mov_b32 v{Z0+3}, v{Z0}
    v_cvt_pk_bf16_f32 v{Z1}, v{M1}, v{M1+1}
    v_mov_b32 v{Z1+1}, 0
    v_mov_b32 v{Z1+2}, 0
    v_mov_b32 v{Z1+3}, v{Z1}
    ''')
    oa = lambda T, w, u: O + 32*T + 8*w + 4*u
    for T in range(2):
        for w in range(4):
            for u in range(2):
                a(f'{MF} {vr(oa(T,w,u),4)}, {vr(VX+8*w+4*u,4)}, {vr(P+4*T,4)}, 0')
    for T in range(2):
        for w in range(4):
            for u in range(2):
                a(f'v_mfma_f32_16x16x16_bf16 {vr(oa(T,w,u),4)}, {vr(KM+4*w+2,2)}, {vr(Z0+4*T+2*u,2)}, {vr(oa(T,w,u),4)}')
    for e in (e0, e1):
        for r in e[1:]: a(f'v_add_f32 v{e[0]}, v{e[0]}, v{r}')
    xred('v_add_f32', e0[0], e1[0])
    a(f'v_rcp_f32 v{e0[0]}, v{e0[0]}\nv_rcp_f32 v{e1[0]}, v{e1[0]}')
    for T in range(2):
        l = (e0, e1)[T][0]
        for w in range(4):
            b = oa(T,w,0)
            for r in range(8): a(f'v_mul_f32 v{b+r}, v{b+r}, v{l}')
            for r in range(4): a(f'v_cvt_pk_bf16_f32 v{b+r}, v{b+2*r}, v{b+2*r+1}')
            a(f'global_store_dwordx4 v{vLin}, {vr(b,4)}, {sp(sO)} offset:{w*1024} sc1')
        if T == 0: a(f's_add_u32 s{sO}, s{sO}, {ACT_T}\ns_addc_u32 s{sO+1}, s{sO+1}, 0')
    a(f'''
    v_mov_b32 v2, 1
    s_waitcnt vmcnt(0)
    s_mov_b64 exec, 1
    global_store_dword v1, v2, {sp(sF2)} sc1
    s_mov_b64 exec, -1
    s_add_u32 s{sT}, s{sT}, 12
    s_cmp_lt_u32 s{sT}, 64
    s_cbranch_scc1 Lt2_seg
    ''')

def t3(a):
    sTau, sAo, sAh, sXa, sF2, sOo, sLb, sTm, sRb = 44, 46, 48, 50, 52, 54, 56, 58, 60
    vLane, vN, vG, vLin, vD, vTr, vXo, vFl, vRs, vOo = 3, 4, 5, 6, 7, 8, 9, 10, 11, 12
    AC = 16; GW = 32; XB = 48; HB = 64; OB = 128; R = 108
    a(f'''
    s_lshl_b32 s{sLb}, s{sW}, 15
    ; DMA lane: row = l/2, chunk = l%2 ; row stride 1024
    v_lshrrev_b32 v{vD}, 1, v{vLane}
    v_lshlrev_b32 v{vD}, 10, v{vD}
    v_and_b32 v1, 1, v{vLane}
    v_lshl_add_u32 v{vD}, v1, 4, v{vD}
    s_lshl_b32 s{sA}, s{sH}, 5
    v_add_u32 v{vD}, s{sA}, v{vD}
    v_lshlrev_b32 v{vTr}, 3, v{vLane}
    v_add_u32 v{vTr}, s{sLb}, v{vTr}
    s_lshl_b32 s{sA}, s{sW}, 20
    s_add_u32 s{sTm}, s{sWo}, s{sA}
    s_addc_u32 s{sTm+1}, s{sWo+1}, 0
    s_barrier
    ''')
    for b in range(32):
        a(f's_add_u32 m0, s{sLb}, {b*1024}\nglobal_load_lds_dwordx4 v{vD}, {sp(sTm)}')
        a(f's_add_u32 s{sTm}, s{sTm}, 32768\ns_addc_u32 s{sTm+1}, s{sTm+1}, 0')
    a(f'''
    v_lshlrev_b32 v1, 4, v{vG}
    s_lshl_b32 s{sA}, s{sW}, 8
    v_add_u32 v1, s{sA}, v1
    v_lshl_add_u32 v{vXo}, v{vN}, 10, v1
    ''')
    for k in range(4): a(f'global_load_dwordx4 {vr(GW+4*k,4)}, v1, {sp(sGw)} offset:{64*k}')
    a('s_waitcnt vmcnt(0)')
    for b in range(32):
        for v in range(2): a(f'ds_read_b64_tr_b16 {vr(4*b+2*v,2,"a")}, v{vTr} offset:{b*1024+v*512}')
    a(f'''
    s_mul_i32 s{sRb}, s{sW}, 11
    s_cmp_eq_u32 s{sW}, 3
    s_subb_u32 s{sRb}, s{sRb}, 0
    s_lshl_b32 s{sA}, s{sRb}, 15
    s_add_u32 s{sTm}, s{sWd}, s{sA}
    s_addc_u32 s{sTm+1}, s{sWd+1}, 0
    s_waitcnt lgkmcnt(0)
    ''')
    for b in range(11):
        a(f's_add_u32 m0, s{sLb}, {b*1024}\nglobal_load_lds_dwordx4 v{vD}, {sp(sTm)}')
        if b < 10: a(f's_add_u32 s{sTm}, s{sTm}, 32768\ns_addc_u32 s{sTm+1}, s{sTm+1}, 0')
    a('s_waitcnt vmcnt(0)')
    for b in range(11):
        for v in range(2): a(f'ds_read_b64_tr_b16 {vr(128+4*b+2*v,2,"a")}, v{vTr} offset:{b*1024+v*512}')
    a(f'''
    s_waitcnt lgkmcnt(0)
    s_cmp_lg_u32 s{sW}, 3
    s_cbranch_scc1 Lt3_nz
    ''')
    for r in range(4): a(f'v_accvgpr_write_b32 a{128+r}, 0')
    a(f'''
    Lt3_nz:
    s_sub_u32 s{sTau}, s{sGrp}, 1
    v_and_b32 v{vFl}, 7, v{vLane}
    v_lshlrev_b32 v{vFl}, 2, v{vFl}
    s_lshl_b32 s{sA}, s{sW}, 5
    v_add_u32 v{vFl}, s{sA}, v{vFl}
    s_mul_i32 s{sA}, s{sW}, 3072
    v_add_u32 v{vRs}, s{sA}, v{vLin}
    v_lshlrev_b32 v{vOo}, 10, v{vN}
    v_lshl_add_u32 v{vOo}, v{vG}, 3, v{vOo}
    s_lshl_b32 s{sA}, s{sH}, 5
    v_add_u32 v{vOo}, s{sA}, v{vOo}
    ''')
    wait_cnt(a, 'Lt3_w', 76, 896, None)
    a.label('Lt3_tile')
    a(f'''
    s_mul_i32 s{sA}, s{sTau}, {ACT_T}
    s_add_u32 s{sA}, s{sA}, {WS_ACT+4096}
    s_lshl_b32 s{sB}, s{sW}, 15
    s_add_u32 s{sB}, s{sB}, s{sA}
    s_add_u32 s{sAo}, s{sWs}, s{sB}
    s_addc_u32 s{sAo+1}, s{sWs+1}, 0
    s_lshl_b32 s{sB}, s{sRb}, 10
    s_add_u32 s{sB}, s{sB}, s{sA}
    s_add_u32 s{sB}, s{sB}, {128*1024}
    s_add_u32 s{sAh}, s{sWs}, s{sB}
    s_addc_u32 s{sAh+1}, s{sWs+1}, 0
    s_lshl_b32 s{sA}, s{sTau}, 14
    s_add_u32 s{sXa}, s{sX}, s{sA}
    s_addc_u32 s{sXa+1}, s{sX+1}, 0
    s_add_u32 s{sOo}, s{sOut}, s{sA}
    s_addc_u32 s{sOo+1}, s{sOut+1}, 0
    s_lshr_b32 s{sA}, s{sTau}, 1
    s_lshl_b32 s{sA}, s{sA}, 7
    s_add_u32 s{sA}, s{sA}, {WS_F2}
    s_add_u32 s{sF2}, s{sWs}, s{sA}
    s_addc_u32 s{sF2+1}, s{sWs+1}, 0
    ''')
    for k in range(4): a(f'global_load_dwordx4 {vr(XB+4*k,4)}, v{vXo}, {sp(sXa)} offset:{64*k}')
    for b in range(11):
        if b == 8: a(f's_add_u32 s{sAh}, s{sAh}, 8192\ns_addc_u32 s{sAh+1}, s{sAh+1}, 0')
        a(f'global_load_dwordx4 {vr(HB+4*b,4)}, v{vLin}, {sp(sAh)} offset:{(b%8)*1024-4096} sc1')
    a(f'''
    s_mov_b32 s{sSpin}, 0
    Lt3_p:
    global_load_dword v2, v{vFl}, {sp(sF2)} sc1
    s_add_u32 s{sSpin}, s{sSpin}, 1
    s_cmp_gt_u32 s{sSpin}, {WSPIN}
    s_cbranch_scc1 Lt3_go
    s_waitcnt vmcnt(0)
    v_cmp_ne_u32 vcc, 1, v2
    s_cbranch_vccz Lt3_go
    s_sleep 4
    s_branch Lt3_p
    Lt3_go:
    s_waitcnt vmcnt(0)
    ''')
    a.nvm = 0; tg = []
    for b in range(32):
        if b and b % 8 == 0: a(f's_add_u32 s{sAo}, s{sAo}, 8192\ns_addc_u32 s{sAo+1}, s{sAo+1}, 0')
        tg.append(a(f'global_load_dwordx4 {vr(OB+4*b,4)}, v{vLin}, {sp(sAo)} offset:{(b%8)*1024-4096} sc1'))
    for k in range(4): a(f'{MF} {vr(AC+8,4)}, {vr(GW+4*k,4)}, {vr(XB+4*k,4)}, {vr(AC+8,4) if k else 0}')
    for b in range(11): a(f'{MF} {vr(AC+4,4)}, {vr(128+4*b,4,"a")}, {vr(HB+4*b,4)}, {vr(AC+4,4) if b else 0}')
    for b in range(32):
        a.wvm(tg[b])
        a(f'{MF} {vr(AC,4)}, {vr(4*b,4,"a")}, {vr(OB+4*b,4)}, {vr(AC,4) if b else 0}')
    a(f'''
    ds_write_b128 v{vRs}, {vr(AC+4,4)} offset:1024
    ds_write_b128 v{vRs}, {vr(AC+8,4)} offset:2048
    ds_write_b128 v{vRs}, {vr(AC,4)}
    s_waitcnt lgkmcnt(0)
    s_barrier
    s_cmp_lg_u32 s{sW}, 0
    s_cbranch_scc1 Lt3_nx
    ''')
    for w in range(1,4):
        for j in range(3): a(f'ds_read_b128 {vr(HB+12*w+4*j,4)}, v{vRs} offset:{3072*w+1024*j}')
    a('s_waitcnt lgkmcnt(0)')
    for w in range(1,4):
        for r in range(9): a(f'v_add_f32 v{AC+r}, v{AC+r}, v{HB+12*w+r}')
    g = AC+8
    a(f'''
    v_mul_f32 v{g}, {f32(-math.log2(math.e))}, v{g}
    v_exp_f32 v{g}, v{g}
    v_add_f32 v{g}, 1.0, v{g}
    v_rcp_f32 v{g}, v{g}
    v_sub_f32 v{g+1}, 1.0, v{g}
    ''')
    for r in range(4): a(f'v_mul_f32 v{AC+r}, v{AC+r}, v{g}\nv_fmac_f32 v{AC+r}, v{AC+4+r}, v{g+1}')
    a(f'''
    v_cvt_pk_bf16_f32 v{AC}, v{AC}, v{AC+1}
    v_cvt_pk_bf16_f32 v{AC+1}, v{AC+2}, v{AC+3}
    global_store_dwordx2 v{vOo}, {vr(AC,2)}, {sp(sOo)}
    Lt3_nx:
    v_xor_b32 v{vRs}, 0x4000, v{vRs}
    s_add_u32 s{sTau}, s{sTau}, 4
    s_cmp_lt_u32 s{sTau}, 128
    s_cbranch_scc1 Lt3_tile
    ''')

def build(name=NAME, **kw):
    a = Asm()
    a.raw(khead(name))
    a(f'''
    s_cmp_ge_u32 s2, 256
    s_cbranch_scc1 L_done
    s_load_dwordx2 {sp(sDbg)}, s[0:1], 104
    s_load_dwordx2 {sp(sMem)}, s[0:1], 8
    s_load_dwordx4 s[8:11], s[0:1], 24
    s_load_dwordx2 {sp(sWq)}, s[0:1], 16
    s_load_dwordx2 {sp(sWo)}, s[0:1], 40
    s_load_dwordx2 {sp(sWs)}, s[0:1], 112
    s_load_dwordx2 {sp(sX)}, s[0:1], 0
    s_load_dwordx8 s[32:39], s[0:1], 64
    s_load_dwordx2 {sp(sOut)}, s[0:1], 96
    s_getreg_b32 s{sXcc}, hwreg(HW_REG_XCC_ID)
    s_and_b32 s{sXcc}, s{sXcc}, 7
    v_lshrrev_b32 v4, 6, v0
    v_mov_b32 v5, 0
    v_readfirstlane_b32 s{sW}, v4
    s_mov_b32 s{sGrp}, s{sXcc}
    s_lshr_b32 s{sH}, s2, 3
    s_mov_b32 s{sSpin}, 0
    s_waitcnt lgkmcnt(0)
    s_cmp_lg_u32 s{sW}, 0
    s_cbranch_scc1 L_cl_b
    s_mov_b64 exec, 1
    L_cl:
    s_lshl_b32 s{sA}, s{sGrp}, 2
    s_lshl_b32 s{sB}, 1, s{sH}
    v_mov_b32 v1, s{sA}
    v_mov_b32 v2, s{sB}
    global_atomic_or v3, v1, v2, {sp(sDbg)} sc0 sc1
    s_add_u32 s{sSpin}, s{sSpin}, 1
    s_waitcnt vmcnt(0)
    v_readfirstlane_b32 s{sC}, v3
    s_and_b32 s{sA}, s{sC}, s{sB}
    s_cbranch_scc0 L_cl_ok
    s_cmp_gt_u32 s{sSpin}, 400
    s_cbranch_scc1 L_cl_fail
    s_ff0_i32_b32 s{sH}, s{sC}
    s_cmp_lg_i32 s{sH}, -1
    s_cbranch_scc1 L_cl
    s_add_u32 s{sGrp}, s{sGrp}, 1
    s_and_b32 s{sGrp}, s{sGrp}, 7
    s_mov_b32 s{sH}, 0
    s_cmp_lg_u32 s{sGrp}, s{sXcc}
    s_cbranch_scc1 L_cl
    L_cl_fail:
    s_mov_b32 s{sGrp}, 8
    s_mov_b32 s{sH}, 0
    L_cl_ok:
    s_lshl_b32 s{sA}, s{sGrp}, 5
    s_add_u32 s{sA}, s{sA}, s{sH}
    v_mov_b32 v3, s{sA}
    ds_write_b32 v5, v3
    s_waitcnt lgkmcnt(0)
    s_mov_b64 exec, -1
    L_cl_b:
    s_barrier
    ds_read_b32 v3, v5
    s_waitcnt lgkmcnt(0)
    v_readfirstlane_b32 s{sA}, v3
    s_barrier
    s_and_b32 s{sH}, s{sA}, 31
    s_lshr_b32 s{sGrp}, s{sA}, 5
    s_cmp_gt_u32 s{sGrp}, 7
    s_cbranch_scc1 L_done
    s_cmp_lg_u32 s{sGrp}, 0
    s_cbranch_scc1 L_work
    ''')
    C.chain(a, 'c', mega=True, **kw)
    a('s_endpgm')
    a.label('L_work')
    t1(a)
    a(f's_cmp_lt_u32 s{sGrp}, 5\ns_cbranch_scc1 L_t3')
    t2(a)
    a('s_endpgm')
    a.label('L_t3')
    t3(a)
    a.label('L_done')
    a('s_endpgm')
    assert a.check_branches() == 0
    return a

if __name__ == '__main__':
    import sys
    kw = eval(sys.argv[2]) if len(sys.argv) > 2 else {}
    ref = open('gated_mix__memory_aug_recurrent_mem_tr__glu_gated_bilinear__prompt.s.ref').read().split('\n')
    head = [l for l in ref if l.startswith(';') and '@launch' not in l]
    out = '\n'.join(head) + '\n; @launch grid=(256,1,1) block=(256,1,1) lds=163840\n'
    out += '.amdgcn_target "amdgcn-amd-amdhsa--gfx950"\n.text\n' + build(**kw).text()
    out += '.section .rodata,"a"\n' + kdesc(NAME)
    open(sys.argv[1], 'w').write(out)
```

```python
from asmlib import *
import struct, math
WS_KV = 0; WS_QX = 32<<20; WS_KVM = 48<<20; WS_RA = 60<<20; WS_RM = 61<<20; WS_PROF = 62<<20
RA_SLOT = 128*2048; RM_SLOT = 8192
SLAB = 131072
def f32(x): return struct.unpack('<I', struct.pack('<f', x))[0]
QSCALE = f32(128**-0.5 * math.log2(math.e))

M=0; QV=32; KA=40; KX=48; XO=40; VX=56; S=64; T=96
vIdx,vLin,vSo,vS,vXw,vXr,vPst,vMst,vLw,vOw,vM0,vM1,HK,_,HV,_2 = range(112,128)
sMem,sWq,sWk,sWv,sWo,sDbg,sWs = 4,6,8,10,12,14,16
sH,sW,sT,sSpin = 18,19,20,21
sTmp=22; sLb=24; sA=25; sB=26; sC=27
sKV=30; sKVM=32; sSt0=34; sSt1=36; sAld=38; sArs=40; sMld=42; sMst=44
sRA=46; sRAo=48; sRMl=50; sRMs=52
sB1=54; sSel=56; sPm=64; sPub=66; sM0kv=68; sQc=69
sFl=28; sXcc=3; sFm=100; sRdy=86; sVer=87; sFK=84; sGot=88
WS_FL = 63<<20; FL_K = 8192; FL_G = 16384; FL_P = 20480
ROLE_LDS = 163832
VERIFY = None
sP=70
SPIN=200000
def sp(x): return f's[{x}:{x+1}]'

LDS_BLK = [('q',0),('q',1),('k',2),('k',3),('v',2),('v',3),('o',6),('o',7)]
REG_BLK = [(m,i) for m in 'qkvo' for i in range(8) if (m,i) not in LDS_BLK]
def dest(b):
    i = REG_BLK.index(b)
    return ('a', 16*i) if i < 16 else ('v', 128 + 16*(i-16))

WS_TL = (62<<20) + 65536
TL = False
def tl(a, i, v1, role_hi):
    if not TL: return
    a(f"""
    s_memrealtime s[98:99]
    s_memtime s[90:91]
    s_lshl_b32 s97, {role_hi}, 5
    s_add_u32 s97, s97, s{sH}
    s_lshl_b32 s97, s97, 2
    s_add_u32 s97, s97, s{sW}
    s_lshl_b32 s97, s97, 6
    s_add_u32 s97, s97, {WS_TL+4*i}
    v_mov_b32 v{v1}, s97
    s_waitcnt lgkmcnt(0)
    v_mov_b32 v{v1+1}, s98
    s_mov_b64 exec, 1
    global_store_dword v{v1}, v{v1+1}, {sp(sWs)}
    s_nop 1
    v_mov_b32 v{v1+1}, s90
    global_store_dword v{v1}, v{v1+1}, {sp(sWs)} offset:32
    s_mov_b64 exec, -1
    """)

def chain(a, tag, sc='', mega=False, prof=False, nsteps=64, preA=48, preB=48, gapA=48, gapB=48, nV0=4, nV1=4, nV3=2, wdr=2, wdr2=1, stamps=(), wnt=' nt'):
    L = lambda x: f'L{tag}_{x}'
    stc = (' ' + sc) if sc else ''
    LE = L('end')
    staged = {}
    def B(m, i, u):
        if (m,i) in staged: return vr(staged[(m,i)] + 8*u, 8)
        k, b = dest((m,i)); return vr(b + 8*u, 8, k)
    def SM(acc, A, m, i, u): a(f'v_smfmac_f32_16x16x64_bf16 {vr(acc,4)}, {vr(A,4)}, {B(m,i,u)}, v{vIdx}')
    def stage(batch):
        tags = []
        for n in range(2):
            slot = 2*batch + n; staged[LDS_BLK[slot]] = S + 16*n
            for u in range(2):
                for hf in range(2):
                    t_ = a(f'ds_read_b128 {vr(S+16*n+8*u+4*hf,4)}, v{vLw} offset:{slot*4096+u*2048+hf*1024}')
                tags.append(t_)
        return tags
    def stamp(i):
        if prof and i in stamps: a(f's_memtime {sp(sP+2*i)}')

    lane,n_,g_,t1,t2,t3 = T,T+1,T+2,T+3,T+4,T+5
    vWa, vOa = T+8, T+9
    vTr = T+10
    vL4, vFd, vFk = T+6, T+7, KX
    a(f'''
    v_and_b32 v{lane}, 63, v0
    v_and_b32 v{n_}, 15, v0
    v_lshrrev_b32 v{g_}, 4, v{lane}
    v_lshlrev_b32 v{vLin}, 4, v{lane}
    s_lshl_b32 s{sLb}, s{sW}, 15
    s_lshl_b32 s{sA}, s{sW}, 13
    s_add_u32 s{sM0kv}, s{sA}, {SLAB}
    v_add_u32 v{vLw}, s{sLb}, v{vLin}
    v_add_u32 v{vSo}, s{sM0kv}, v{vLin}
    v_add_u32 v{vS}, {SLAB}, v{vLin}
    ; DMA lane offsets: r=(l/4)%4, gb=l/16, cc=(l%4)^(2*gb0)
    v_and_b32 v{t1}, 1, v{g_}
    v_lshlrev_b32 v{t2}, 1, v{t1}
    v_xor_b32 v{t2}, v{t2}, v{lane}
    v_and_b32 v{t2}, 3, v{t2}
    v_lshlrev_b32 v{t2}, 4, v{t2}          ; cc*16
    v_lshrrev_b32 v{t3}, 1, v{g_}          ; gb1
    v_lshl_add_u32 v{vWa}, v{t3}, 2, v{t1}
    v_and_b32 v{vTr}, 4, v{lane}
    v_lshl_add_u32 v{vWa}, v{vTr}, 2, v{vWa}
    v_and_b32 v{vTr}, 8, v{lane}
    v_lshrrev_b32 v{vTr}, 2, v{vTr}
    v_add_u32 v{vWa}, v{vWa}, v{vTr}
    v_lshl_add_u32 v{vWa}, v{vWa}, 13, v{t2}
    v_lshlrev_b32 v{vOa}, 5, v{t1}
    v_lshl_add_u32 v{vOa}, v{t3}, 2, v{vOa}
    v_and_b32 v{vTr}, 8, v{lane}
    v_lshl_add_u32 v{vOa}, v{vTr}, 1, v{vOa}
    v_bfe_u32 v{vTr}, v{lane}, 2, 1
    v_add_u32 v{vOa}, v{vOa}, v{vTr}
    v_lshl_add_u32 v{vOa}, v{vOa}, 10, v{t2}
    s_lshl_b32 s{sA}, s{sH}, 8
    s_lshl_b32 s{sB}, s{sW}, 6
    s_add_u32 s{sA}, s{sA}, s{sB}
    v_add_u32 v{vWa}, s{sA}, v{vWa}
    s_lshl_b32 s{sA}, s{sH}, 17
    s_lshl_b32 s{sB}, s{sW}, 8
    s_add_u32 s{sA}, s{sA}, s{sB}
    v_add_u32 v{vOa}, s{sA}, v{vOa}
    ''')
    order = REG_BLK + LDS_BLK
    def dma(bi):
        m, i = order[bi]; slot = bi % 8; tg = None
        if m != 'o':
            base = {'q': sWq, 'k': sWk, 'v': sWv}[m]
            a(f's_xor_b32 s{sA}, s{sW}, {i//2}\ns_lshl_b32 s{sA}, s{sA}, 20')
        for J in range(4):
            if m != 'o':
                off = (64*(i%2) + 32*(J&1) + 8*(J>>1))*8192
                a(f's_add_u32 s{sB}, s{sA}, {off}\ns_add_u32 s{sTmp}, s{base}, s{sB}\ns_addc_u32 s{sTmp+1}, s{base+1}, 0')
                va = vWa
            else:
                kap, jp = i % 2, i // 2
                off = jp*64 + (64*kap + 8*(J>>1) + 2*(J&1))*1024
                a(f's_add_u32 s{sTmp}, s{sWo}, {off}\ns_addc_u32 s{sTmp+1}, s{sWo+1}, 0')
                va = vOa
            a(f's_add_u32 m0, s{sLb}, {slot*4096+J*1024}')
            tg = a(f'global_load_lds_dwordx4 v{va}, {sp(sTmp)}{wnt}')
        return tg
    dtag = {}
    arr = 9; fkp = (17, 20, 23)
    def fkeval(v):
        a(f"""
        v_cmp_eq_u32 vcc, 0x01010101, v{v}
        s_or_b32 s{sTmp}, vcc_lo, 0xaaaaaaaa
        s_or_b32 s{sTmp+1}, vcc_hi, 0xaaaaaaaa
        s_ff0_i32_b64 s{sRdy}, {sp(sTmp)}
        s_min_u32 s{sRdy}, s{sRdy}, 100
        """)
    def kvdma():
        a(f's_mov_b32 m0, s{sM0kv}\ns_mov_b32 s{sGot}, 1')
        for j in range(4): a(f'global_load_lds_dwordx4 v{vLin}, {sp(sKV)} offset:{j*1024} sc1')
    for bi in range(8): dtag[bi] = dma(bi)
    if mega: VERIFY(a, 'c', 32)
    a(f'''
    v_lshlrev_b32 v{vTr}, 8, v{g_}
    v_lshrrev_b32 v{t2}, 2, v{n_}
    v_lshl_add_u32 v{vTr}, v{t2}, 6, v{vTr}
    v_lshl_add_u32 v{vTr}, v{t1}, 5, v{vTr}
    v_and_b32 v{t3}, 3, v{lane}
    v_lshl_add_u32 v{vTr}, v{t3}, 3, v{vTr}
    v_add_u32 v{vTr}, s{sLb}, v{vTr}
    v_xor_b32 v{vTr+1}, 32, v{vTr}
    v_xor_b32 v{vXw}, v{g_}, v{t2}
    v_lshlrev_b32 v{vXw}, 3, v{vXw}
    v_lshl_add_u32 v{vXw}, v{n_}, 5, v{vXw}
    s_add_u32 s{sA}, s{sM0kv}, 7168
    v_add_u32 v{vXw}, s{sA}, v{vXw}
    v_xor_b32 v{vXr}, v{t3}, v{g_}
    v_lshlrev_b32 v{vXr}, 3, v{vXr}
    v_lshl_add_u32 v{vXr}, v{t2}, 5, v{vXr}
    v_lshl_add_u32 v{vXr}, v{g_}, 7, v{vXr}
    v_add_u32 v{vXr}, {SLAB+7168}, v{vXr}
    v_lshl_add_u32 v{vPst}, v{t2}, 2, v{g_}
    v_lshlrev_b32 v{vPst}, 11, v{vPst}
    v_lshl_add_u32 v{vPst}, v{t3}, 4, v{vPst}
    s_lshl_b32 s{sA}, s{sW}, 16
    s_lshl_b32 s{sB}, s{sH}, 6
    s_add_u32 s{sA}, s{sA}, s{sB}
    v_add_u32 v{vPst}, s{sA}, v{vPst}
    ; publish: (c/2)*32 + p*16 + (c%2)*8 + (i/2)*4 ; c=g, p=bit2, i=lane%4
    v_lshrrev_b32 v{vMst}, 1, v{g_}
    v_lshlrev_b32 v{vMst}, 5, v{vMst}
    v_lshl_add_u32 v{vMst}, v{t1}, 3, v{vMst}
    v_and_b32 v{t2}, 4, v{lane}
    v_lshl_add_u32 v{vMst}, v{t2}, 2, v{vMst}
    v_and_b32 v{t2}, 2, v{lane}
    v_lshl_add_u32 v{vMst}, v{t2}, 1, v{vMst}
    ; O write: slab + 4096 + (w/2)*1024 + lane*16 + (w%2)*8
    s_lshr_b32 s{sA}, s{sW}, 1
    s_lshl_b32 s{sA}, s{sA}, 10
    s_and_b32 s{sB}, s{sW}, 1
    s_lshl_b32 s{sB}, s{sB}, 3
    s_add_u32 s{sA}, s{sA}, s{sB}
    s_add_u32 s{sA}, s{sA}, {SLAB+4096}
    v_add_u32 v{vOw}, s{sA}, v{vLin}
    s_mov_b32 s{sB1}, 0xcccccccc
    s_mov_b32 s{sB1+1}, 0xcccccccc
    s_mov_b32 s{sPm}, 0xf0f0f0f0
    s_mov_b32 s{sPm+1}, 0xf0f0f0f0
    s_mov_b32 s{sPub}, 0x00550055
    s_mov_b32 s{sPub+1}, 0x00550055
    s_mov_b32 s{sQc}, {QSCALE}
    v_mov_b32 v{t2}, 0x4444
    v_mov_b32 v{t3}, 0xeeee
    v_cndmask_b32 v{vIdx}, v{t2}, v{t3}, {sp(sB1)}
    v_cndmask_b32 v{vM0}, -1, 0, {sp(sB1)}
    v_cndmask_b32 v{vM1}, 0, -1, {sp(sB1)}
    ''')
    for i in range(4):
        a(f's_mov_b32 s{sSel+2*i}, {0x00110011 << i}\ns_mov_b32 s{sSel+2*i+1}, {0x00110011 << i}')
    a(f'''
    s_lshl_b32 s{sA}, s{sH}, 2
    s_add_u32 s{sA}, s{sA}, s{sW}
    s_add_u32 s{sRA}, s{sWs}, {WS_RA}
    s_addc_u32 s{sRA+1}, s{sWs+1}, 0
    s_lshl_b32 s{sB}, s{sA}, 11
    s_add_u32 s{sRAo}, s{sRA}, s{sB}
    s_addc_u32 s{sRAo+1}, s{sRA+1}, 0
    s_lshl_b32 s{sB}, s{sA}, 6
    s_add_u32 s{sB}, s{sB}, {WS_RM}
    s_add_u32 s{sRMs}, s{sWs}, s{sB}
    s_addc_u32 s{sRMs+1}, s{sWs+1}, 0
    s_lshl_b32 s{sB}, s{sW}, 11
    s_add_u32 s{sB}, s{sB}, {WS_RM}
    s_add_u32 s{sRMl}, s{sWs}, s{sB}
    s_addc_u32 s{sRMl+1}, s{sWs+1}, 0
    s_lshl_b32 s{sB}, s{sA}, 12
    s_add_u32 s{sKV}, s{sWs}, s{sB}
    s_addc_u32 s{sKV+1}, s{sWs+1}, 0
    s_lshl_b32 s{sB}, s{sA}, 10
    s_add_u32 s{sB}, s{sB}, {WS_KVM-32*4096}
    s_add_u32 s{sKVM}, s{sWs}, s{sB}
    s_addc_u32 s{sKVM+1}, s{sWs+1}, 0
    s_lshl_b32 s{sB}, s{sH}, 7
    s_add_u32 s{sB}, s{sB}, {WS_FL+FL_P}
    s_add_u32 s{sFl}, s{sWs}, s{sB}
    s_addc_u32 s{sFl+1}, s{sWs+1}, 0
    s_lshl_b32 s{sB}, s{sH}, 8
    s_add_u32 s{sB}, s{sB}, {WS_FL+FL_K}
    s_add_u32 s{sFK}, s{sWs}, s{sB}
    s_addc_u32 s{sFK+1}, s{sWs+1}, 0
    s_mov_b32 s{sRdy}, {0 if mega else 100}
    s_mov_b32 s{sGot}, 0
    v_lshlrev_b32 v{vL4}, 2, v{lane}
    s_cmp_eq_u32 s{sW}, 0
    s_cselect_b32 s{sFm}, 1, 0
    s_mov_b32 s{sFm+1}, 0
    v_mov_b64 {vr(HK,2)}, 0
    v_mov_b64 {vr(HV,2)}, 0
    v_mov_b32 v{T+12}, -1
    v_mov_b32 v{T+13}, -1
    v_mov_b32 v{T+14}, -1
    v_mov_b32 v{T+15}, -1
    s_add_u32 s{sTmp}, s{sRAo}, {RA_SLOT}
    s_addc_u32 s{sTmp+1}, s{sRAo+1}, 0
    global_store_dwordx4 v{vLin}, {vr(T+12,4)}, {sp(sRAo)} sc1
    global_store_dwordx4 v{vLin}, {vr(T+12,4)}, {sp(sRAo)} offset:1024 sc1
    global_store_dwordx4 v{vLin}, {vr(T+12,4)}, {sp(sTmp)} sc1
    global_store_dwordx4 v{vLin}, {vr(T+12,4)}, {sp(sTmp)} offset:1024 sc1
    s_add_u32 s{sTmp}, s{sRMs}, {RM_SLOT}
    s_addc_u32 s{sTmp+1}, s{sRMs+1}, 0
    s_mov_b64 exec, {sp(sPub)}
    global_store_dword v{vMst}, v{T+12}, {sp(sRMs)} sc1
    global_store_dword v{vMst}, v{T+12}, {sp(sTmp)} sc1
    s_mov_b64 exec, -1
    ; M(0) gather: lane(row: b0=t%2,b1=half,b3:2=t/2 ; ga): byte = t*1024 + (128w + 64s + 16(ea%4) + 4ga + 2half + ea/4)*2
    v_lshrrev_b32 v{t2}, 2, v{n_}
    v_lshlrev_b32 v{t2}, 11, v{t2}
    v_and_b32 v{t3}, 1, v{lane}
    v_lshl_add_u32 v{t2}, v{t3}, 10, v{t2}
    v_lshl_add_u32 v{t2}, v{g_}, 3, v{t2}
    v_and_b32 v{t3}, 2, v{lane}
    v_lshl_add_u32 v{t2}, v{t3}, 1, v{t2}
    s_lshl_b32 s{sA}, s{sW}, 8
    v_add_u32 v{t2}, s{sA}, v{t2}
    ''')
    for s_ in range(2):
        for ea in range(8):
            off = (64*s_ + 16*(ea%4) + ea//4)*2
            a(f'global_load_ushort v{S+8*s_+ea}, v{t2}, {sp(sMem)} offset:{off}')
    for bi in range(32):
        m, i = order[bi]; slot = bi % 8
        a.wvm(dtag[bi])
        if bi == 8:
            a(f"""
            s_lshl_b32 s{sA}, s{sH}, 2
            s_add_u32 s{sA}, s{sA}, s{sW}
            s_add_u32 s{sA}, s{sA}, 32
            v_mov_b32 v{t1}, s{sA}
            s_cmp_eq_u32 s{sXcc}, 0
            s_cselect_b32 s{sA}, 1, 3
            v_mov_b32 v{t3}, s{sA}
            s_mov_b64 exec, 1
            global_store_byte v{t1}, v{t3}, {sp(sDbg)} sc1
            s_mov_b64 exec, -1
            """)
            for r in range(8): a(f'v_lshl_or_b32 v{M+r}, v{S+2*r+1}, 16, v{S+2*r}')
        if bi == arr: a(f'global_load_dword v{vFd}, v{vL4}, {sp(sDbg)} sc1')
        if bi == arr + 8:
            msk = ((1 << (41 if mega else 40)) - 1) ^ 0xff
            a(f"""
            s_mov_b32 s{sSpin}, 0
            {L('tb')}:
            v_and_b32 v{t1}, 0x01010101, v{vFd}
            v_cmp_ne_u32 vcc, 0x01010101, v{t1}
            s_and_b32 s{sA}, vcc_lo, {msk & 0xffffffff}
            s_and_b32 s{sB}, vcc_hi, {msk >> 32}
            s_or_b32 s{sA}, s{sA}, s{sB}
            s_cbranch_scc0 {L('tbo')}
            s_sleep 4
            global_load_dword v{vFd}, v{vL4}, {sp(sDbg)} sc1
            s_add_u32 s{sSpin}, s{sSpin}, 1
            s_cmp_gt_u32 s{sSpin}, {SPIN}
            s_cbranch_scc1 {L('end')}
            s_waitcnt vmcnt(0)
            s_branch {L('tb')}
            {L('tbo')}:
            v_and_b32 v{t1}, 0x02020202, v{vFd}
            v_cmp_ne_u32 vcc, 0, v{t1}
            s_and_b32 s{sA}, vcc_lo, 0xffffff00
            s_and_b32 s{sB}, vcc_hi, 0xff
            s_or_b32 s{sXcc}, s{sA}, s{sB}
            """)
            a.nvm -= 1
        if mega and bi in fkp: a(f'global_load_dword v{vFk}, v{vL4}, {sp(sFK)} sc1')
        if mega and bi - 8 in fkp:
            a(f's_cmp_lg_u32 s{sGot}, 0\ns_cbranch_scc1 {L(f"fk{bi}")}')
            fkeval(vFk)
            a(f's_cmp_eq_u32 s{sRdy}, 0\ns_cbranch_scc1 {L(f"fk{bi}")}')
            kvdma(); a.nvm -= 4
            a.label(L(f'fk{bi}'))
        if not mega and bi == 24: kvdma()
        if bi < 24: k, b = dest((m,i))
        else: k, b = 'v', S
        for u in range(2):
            for J in range(4):
                a(f'ds_read_b64_tr_b16 {vr(b+8*u+2*J,2,k)}, v{vTr+u} offset:{slot*4096+J*1024}')
        a('s_waitcnt lgkmcnt(0)')
        if bi + 8 < 32: dtag[bi+8] = dma(bi+8)
        if bi == 23: tl(a, 1, t1, 0)
        if bi >= 24:
            for u in range(2):
                for hf in range(2):
                    a(f'ds_write_b128 v{vLw}, {vr(S+8*u+4*hf,4)} offset:{slot*4096+u*2048+hf*1024}')
            a('s_waitcnt lgkmcnt(0)')
    tl(a, 2, t1, 0)
    if mega:
        a(f"""
        s_mov_b32 s{sSpin}, 0
        s_cmp_lg_u32 s{sGot}, 0
        s_cbranch_scc1 {L('kwo')}
        {L('kw')}:
        global_load_dword v{vFk}, v{vL4}, {sp(sFK)} sc1
        s_add_u32 s{sSpin}, s{sSpin}, 1
        s_cmp_gt_u32 s{sSpin}, {SPIN}
        s_cbranch_scc1 {L('end')}
        s_waitcnt vmcnt(0)
        """)
        fkeval(vFk)
        a(f's_cmp_lg_u32 s{sRdy}, 0\ns_cbranch_scc1 {L("kwd")}\ns_sleep 2\ns_branch {L("kw")}')
        a.label(L('kwd'))
        kvdma()
        a.label(L('kwo'))
    a(f"""
    s_waitcnt vmcnt(0)
    s_mov_b32 s{sT}, 0
    s_mov_b32 s{sSpin}, 0
    """)
    tl(a, 3, t1, 0)
    if prof:
        for i in range(8): a(f's_mov_b32 s{sP+20+i}, 0')
        a(f's_memtime {sp(sP+28)}')
    st1 = stage(0)

    DPPM = 'row_mask:0xf bank_mask:0xf'
    QA = T+8; VA = QV
    def pre1():
        a(f"""
        s_and_b32 s{sA}, s{sT}, 1
        s_lshl_b32 s{sC}, s{sA}, 13
        s_add_u32 s{sMld}, s{sRMl}, s{sC}
        s_addc_u32 s{sMld+1}, s{sRMl+1}, 0
        s_xor_b32 s{sB}, s{sA}, 1
        ds_read_b128 {vr(KX,4)}, v{vSo}
        ds_read_b128 {vr(KX+4,4)}, v{vSo} offset:1024
        ds_read_b128 {vr(VX,4)}, v{vSo} offset:2048
        ds_read_b128 {vr(VX+4,4)}, v{vSo} offset:3072
        """)
        for i in range(0,16,2): a(f'v_mov_b64 {vr(VA+i,2)}, 0')
        for i in range(0,8,2): a(f'v_mov_b64 {vr(QA+i,2)}, 0')
        return 21
    def pre2():
        a(f"""
        s_lshl_b32 s{sC}, s{sB}, 13
        s_add_u32 s{sMst}, s{sRMs}, s{sC}
        s_addc_u32 s{sMst+1}, s{sRMs+1}, 0
        s_lshl_b32 s{sC}, s{sA}, 18
        s_add_u32 s{sSt0}, s{sRA}, s{sC}
        s_addc_u32 s{sSt0+1}, s{sRA+1}, 0
        s_add_u32 s{sSt1}, s{sSt0}, 32768
        s_addc_u32 s{sSt1+1}, s{sSt0+1}, 0
        s_add_u32 s{sAld}, s{sRAo}, s{sC}
        s_addc_u32 s{sAld+1}, s{sRAo+1}, 0
        s_lshl_b32 s{sC}, s{sB}, 18
        s_add_u32 s{sArs}, s{sRAo}, s{sC}
        s_addc_u32 s{sArs+1}, s{sRAo+1}, 0
        s_add_u32 s{sKV}, s{sKV}, {32*16384}
        s_addc_u32 s{sKV+1}, s{sKV+1}, 0
        s_mov_b32 m0, s{sM0kv}
        """)
        for i in range(1,4): a(f'v_xor_b32 v{T+i-1}, {i*8192}, v{vSo}')
        a(f's_lshl_b32 s{sC}, s{sW}, 13\nv_add_u32 v{T+3}, s{sC}, v{vXr}')
        for i in (0,2): a(f'v_mov_b64 {vr(T+4+i,2)}, -1')
        return 23
    def ldM(r): a(f'global_load_dwordx4 {vr(r,4)}, v{vLin}, {sp(sMld)} sc1\nglobal_load_dwordx4 {vr(r+4,4)}, v{vLin}, {sp(sMld)} offset:1024 sc1')
    def ldA(r): a(f'global_load_dwordx4 {vr(r,4)}, v{vLin}, {sp(sAld)} sc1\nglobal_load_dwordx4 {vr(r+4,4)}, v{vLin}, {sp(sAld)} offset:1024 sc1')
    def spin(): a(f's_add_u32 s{sSpin}, s{sSpin}, 1\ns_cmp_gt_u32 s{sSpin}, {SPIN}\ns_cbranch_scc1 {LE}')
    acc = {'q': QA, 'k': KA, 'v': VA}
    def P_(m, sg, u): SM(acc[m]+4*u, M+4*sg, m, sg, u)
    def stage_ins(batch):
        out = []
        for n in range(2):
            slot = 2*batch + n; staged[LDS_BLK[slot]] = S + 16*n
            for u in range(2):
                for hf in range(2):
                    out.append(f'ds_read_b128 {vr(S+16*n+8*u+4*hf,4)}, v{vLw} offset:{slot*4096+u*2048+hf*1024}')
        return out
    for r in (0,2,4,6): a(f'v_min_u32 v{M+r}, -2, v{M+r}')
    pre1(); pre2()
    a('s_waitcnt lgkmcnt(0)')
    if mega: a(f's_cmp_lg_u32 s{sXcc}, 0\ns_cbranch_scc1 {L("s_try")}')
    a(f's_branch {L("try")}')
    staged0 = dict(staged)
    def loop(L, stc):
        staged.clear(); staged.update(staged0)
        a.label(L('retry'))
        spin()
        a('s_waitcnt vmcnt(0)')
        for i in range(0,8,2): a(f'v_mov_b64 {vr(M+i,2)}, {vr(M+24+i,2)}')
        ldM(M+24)
        for i in range(0,8,2): a(f'v_mov_b64 {vr(QA+i,2)}, 0')
        a(f's_branch {L("try")}')
        a.label(L('step'))
        n = pre1(); a.nops(preB - n)
        ldM(M)
        n = pre2(); a.nops(gapB - n - 2)
        ldM(M+24)
        a(f's_waitcnt vmcnt(2) lgkmcnt(0)')
        a.label(L('try'))
        a.nds = 0; a.nvm = 2; set2 = 2
        stamp(0)
        ck = M+8
        a(f'ds_write_b128 v{vSo}, {vr(M,4)} offset:4096\nds_write_b128 v{vSo}, {vr(M+4,4)} offset:5120')
        P_('q',0,0); a(f'v_max3_u32 v{ck}, v{M}, v{M+2}, v{M+4}')
        P_('q',0,1); a(f'v_max_u32 v{ck}, v{ck}, v{M+6}')
        P_('q',1,0); a(f'v_cmp_eq_u32 vcc, -1, v{ck}')
        P_('q',1,1); a(f's_cbranch_vccnz {L("retry")}\ns_waitcnt lgkmcnt(0)\ns_barrier')
        mt = {}
        def rdM(sg): mt[sg] = a(f'ds_read_b128 {vr(M+4*sg,4)}, v{T+sg//2-1} offset:{4096+1024*(sg%2)}')
        rdM(2); rdM(3)
        P_('k',0,0); rdM(4); rdM(5)
        P_('k',0,1); a(f'global_store_dwordx4 v{vLin}, {vr(T+4,4)}, {sp(sArs)}{stc}\nglobal_store_dwordx4 v{vLin}, {vr(T+4,4)}, {sp(sArs)} offset:1024{stc}')
        P_('k',1,0); a(f's_mov_b64 exec, {sp(sPub)}\nglobal_store_dword v{vMst}, v{T+4}, {sp(sMst)}{stc}\ns_mov_b64 exec, -1')
        rst = a.nvm
        a(f'v_mov_b32 v{T}, s{sT}')
        dm = [f'global_load_lds_dwordx4 v{vLin}, {sp(sKV)} offset:{j*1024} sc1' for j in range(4)]
        P_('k',1,1); a(dm[0]); a(dm[1])
        vq = [(sg,u) for sg in (0,1,2,3,4,5,6,7) for u in (0,1)]
        def V_():
            sg, u = vq.pop(0); P_('v', sg, u)
        s2 = stage_ins(1)
        for i in range(nV0):
            V_()
            if i == 0: a(dm[2]); a(dm[3])
            if i == 1: a(f'global_store_dwordx4 v{vLin}, {vr(HK,4)}, {sp(sKVM)} sc1\ns_add_u32 s{sKVM}, s{sKVM}, {32*4096}\ns_addc_u32 s{sKVM+1}, s{sKVM+1}, 0')
            if i == 2: a(f's_mov_b64 exec, {sp(sFm)}\nglobal_store_dword v{vLin}, v{T}, {sp(sFl)} sc1\ns_mov_b64 exec, -1')
        assert nV0 >= 3
        if nV0 == 0: a(dm[2]); a(dm[3])
        a.wds(mt[2]); P_('q',2,0); a(s2[0])
        P_('q',2,1); a(s2[1]); a.wds(mt[3])
        P_('q',3,0); a.wvm(set2); rdM(6)
        P_('q',3,1); rdM(7); a.wds(mt[4])
        P_('q',4,0); a(s2[2]); a.wds(mt[5])
        P_('q',5,0); a(s2[3])
        P_('q',4,1); a(s2[4])
        P_('q',5,1); a(s2[5]); a.wds(mt[6])
        P_('q',6,0); a(s2[6]); a.wds(mt[7])
        P_('q',7,0); st2 = a(s2[7])
        P_('q',6,1)
        P_('q',7,1)
        stamp(1)
        Y = T+4; D0 = T+8; D1 = T+12
        def qcvt(u):
            q = QA+4*u
            return [f'v_add_f32 v{q}, v{q}, v{q+2}', f'v_add_f32 v{q+1}, v{q+1}, v{q+3}',
                    f'v_mul_f32 v{q}, s{sQc}, v{q}', f'v_mul_f32 v{q+1}, s{sQc}, v{q+1}',
                    f'v_cvt_pk_bf16_f32 v{q+2}, v{q}, v{q+1}',
                    f'ds_write2_b32 v{vXw}, v{q+2}, v{q+2} offset0:{128*u} offset1:{128*u+1}',
                    f'ds_read_b64_tr_b16 {vr(Y+2*u,2)}, v{T+3} offset:{512*u}']
        f0 = qcvt(0); f1 = qcvt(1)
        a(f0[0]); a(f0[1])
        P_('k',4,0); a(f0[2]); a(f0[3])
        P_('k',5,0); a(f0[4]); a(f1[0])
        P_('k',6,0); a(f0[5]); a(f0[6]); a(f1[1]); a(f1[2])
        P_('k',7,0); a.wds(st2); a(f1[3]); a(f1[4])
        P_('k',2,0); a(f1[5]); yt = a(f1[6])
        P_('k',3,0)
        P_('k',2,1)
        P_('k',3,1); s3 = stage_ins(2); a(s3[0]); a(f'v_add_f32 v{KA}, v{KA}, v{KA+2}')
        P_('k',4,1); a(s3[1]); a(s3[2]); a(f'v_add_f32 v{KA+1}, v{KA+1}, v{KA+3}')
        P_('k',5,1); a(s3[3]); a.wds(yt); a(f'v_cvt_pk_bf16_f32 v{HK}, v{KA}, v{KA+1}')
        a(f'v_mfma_f32_16x16x32_bf16 {vr(D0,4)}, {vr(KX,4)}, {vr(Y,4)}, 0')
        a(f'ds_write_b32 v{vXw}, v{HK} offset:4'); a(s3[4]); a(s3[5])
        a(f'v_mfma_f32_16x16x32_bf16 {vr(D1,4)}, {vr(KX+4,4)}, {vr(Y,4)}, 0')
        a(s3[6]); st3 = a(s3[7])
        P_('k',6,1)
        P_('k',7,1)
        for r in range(4): a(f'v_cndmask_b32 v{D0+r}, v{D0+r}, v{D1+r}, {sp(sB1)}')
        a(f'ds_write_b128 v{vSo}, {vr(D0,4)} offset:6144')
        a(f'v_add_f32 v{KA+4}, v{KA+4}, v{KA+6}\nv_add_f32 v{KA+5}, v{KA+5}, v{KA+7}')
        a(f'v_cvt_pk_bf16_f32 v{HK+1}, v{KA+4}, v{KA+5}')
        a(f'ds_write_b32 v{vXw}, v{HK+1} offset:516')
        a.wds(st3)
        for i in range(nV1): V_()
        a('s_waitcnt lgkmcnt(0)\ns_barrier')
        stamp(2)
        xr = [f'ds_read_b64_tr_b16 {vr(XO+4*i+2*v,2)}, v{vXr} offset:{i*8192+v*512}' for i in range(4) for v in range(2)]
        sr = [f'ds_read_b128 {vr(T+4*i,4)}, v{vS} offset:{i*8192+6144}' for i in range(4)]
        rd = xr[:4] + sr[:2] + xr[4:] + sr[2:]; tg = {}
        for i, x_ in enumerate(rd):
            tg[x_] = a(x_)
            if i % 3 == 2 and vq: V_()
        nrest = len(vq) - nV3
        for i in range(nrest): V_()
        assert all(s_ >= 4 for s_, _ in vq)
        s4 = stage_ins(3)
        Dm = M
        ad = [f'v_add_f32 v{T+r}, v{T+r}, v{T+4+r}' for r in range(4)] + [f'v_add_f32 v{T+8+r}, v{T+8+r}, v{T+12+r}' for r in range(4)] + \
             [f'v_add_f32 v{T+r}, v{T+r}, v{T+8+r}' for r in range(4)]
        def SMM(i): a(f'v_mfma_f32_16x16x32_bf16 {vr(Dm,4)}, {vr(XO+4*i,4)}, {vr(XO+4*i,4)}, {vr(Dm,4) if i else 0}')
        a.wds(tg[xr[1]]); SMM(0); a.wds(tg[sr[1]])
        a(ad[0]); a(ad[1]); SMM(1); a.wds(tg[xr[5]]); a(ad[2]); a(ad[3])
        SMM(2); a.wds(tg[sr[3]]); a(ad[4]); a(ad[5])
        SMM(3); a(s4[0]); a(ad[6]); a(ad[7])
        for i in range(8,12): a(ad[i])
        mx = T+4; tm = T+5; ma = T+6
        a(f'v_max3_f32 v{mx}, v{T}, v{T+1}, v{T+2}')
        a(f'v_max_f32 v{mx}, v{mx}, v{T+3}')
        a(f'v_max_f32 v{ma}, v{Dm+2}, v{Dm+3}')
        a(s4[1])
        a(f'v_max_f32_dpp v{mx}, v{mx}, v{mx} quad_perm:[2,3,0,1] {DPPM}')
        a(f'v_max_f32_dpp v{tm}, v{ma}, v{mx} quad_perm:[0,1,0,1] {DPPM}')
        a(f'v_max_f32_dpp v{mx}, v{ma}, v{mx} quad_perm:[0,1,0,1] {DPPM}')
        if vq: V_()
        a(s4[2]); a(s4[3])
        a(f'v_permlane16_swap_b32 v{mx}, v{tm}\nv_max_f32 v{ma}, v{mx}, v{tm}\nv_max_f32 v{mx}, v{mx}, v{tm}')
        if vq: V_()
        a(s4[4]); a(s4[5])
        assert not vq
        a(f'v_permlane32_swap_b32 v{mx}, v{ma}\nv_max_f32 v{mx}, v{mx}, v{ma}')
        for r in range(4): a(f'v_sub_f32 v{T+r}, v{T+r}, v{mx}')
        for r in range(4): a(f'v_exp_f32 v{T+r}, v{T+r}')
        a(f'v_sub_f32_dpp v{T+6}, v{Dm+2}, v{mx} quad_perm:[0,1,0,1] {DPPM}')
        P = T+8; Pm = T+10; Ba = XO; Bb = XO+4; Dd = XO+8; ON = XO+10; OZ = XO+12; Po = T+12; Lr = M+4
        a(f"""
        v_cvt_pk_bf16_f32 v{P}, v{T}, v{T+1}
        v_cvt_pk_bf16_f32 v{P+1}, v{T+2}, v{T+3}
        v_sub_f32_dpp v{T+7}, v{Dm+3}, v{mx} quad_perm:[0,1,0,1] {DPPM}
        v_and_b32 v{Ba}, v{P}, v{vM0}
        v_and_b32 v{Ba+1}, v{P+1}, v{vM0}
        v_and_b32_dpp v{Ba+2}, v{P}, v{vM0} quad_perm:[2,3,0,1] {DPPM}
        v_and_b32_dpp v{Ba+3}, v{P+1}, v{vM0} quad_perm:[2,3,0,1] {DPPM}
        v_exp_f32 v{T+6}, v{T+6}
        v_exp_f32 v{T+7}, v{T+7}
        v_mfma_f32_16x16x32_bf16 {vr(Po,4)}, {vr(VX,4)}, {vr(Ba,4)}, 0
        {s4[6]}
        v_and_b32_dpp v{Bb}, v{P}, v{vM1} quad_perm:[2,3,0,1] {DPPM}
        v_and_b32_dpp v{Bb+1}, v{P+1}, v{vM1} quad_perm:[2,3,0,1] {DPPM}
        v_and_b32 v{Bb+2}, v{P}, v{vM1}
        v_and_b32 v{Bb+3}, v{P+1}, v{vM1}
        v_cvt_pk_bf16_f32 v{Pm}, v{T+6}, v{T+7}
        v_add_f32 v{T}, v{T}, v{T+1}
        v_mfma_f32_16x16x32_bf16 {vr(Po,4)}, {vr(VX+4,4)}, {vr(Bb,4)}, {vr(Po,4)}
        {s4[7]}
        v_and_b32 v{Dd}, v{Pm}, v{vM0}
        v_and_b32 v{Dd+1}, v{Pm}, v{vM1}
        """)
        return_here = None
        a(f"""
        v_add_f32 v{VA}, v{VA}, v{VA+2}
        v_add_f32 v{VA+1}, v{VA+1}, v{VA+3}
        v_add_f32 v{VA+4}, v{VA+4}, v{VA+6}
        v_add_f32 v{VA+5}, v{VA+5}, v{VA+7}
        v_cvt_pk_bf16_f32 v{HV}, v{VA}, v{VA+1}
        v_cvt_pk_bf16_f32 v{HV+1}, v{VA+4}, v{VA+5}
        v_add_f32 v{T+2}, v{T+2}, v{T+3}
        v_add_f32 v{T+6}, v{T+6}, v{T+7}
        v_mfma_f32_16x16x16_bf16 {vr(Po,4)}, {vr(HV,2)}, {vr(Dd,2)}, {vr(Po,4)}
        v_add_f32 v{T}, v{T}, v{T+2}
        v_fmac_f32 v{T}, 0.5, v{T+6}
        s_cmp_eq_u32 s{sT}, {nsteps-1}
        s_cbranch_scc1 {LE}
        v_add_f32_dpp v{T+1}, v{T}, v{T} quad_perm:[2,3,0,1] {DPPM}
        v_add_f32_dpp v{T}, v{T}, v{T} quad_perm:[2,3,0,1] {DPPM}
        v_permlane16_swap_b32 v{T}, v{T+1}
        v_add_f32 v{T+2}, v{T}, v{T+1}
        v_add_f32 v{T}, v{T}, v{T+1}
        v_mov_b64 {vr(M,2)}, 0
        v_mov_b64 {vr(M+2,2)}, 0
        v_permlane32_swap_b32 v{T}, v{T+2}
        v_add_f32 v{T}, v{T}, v{T+2}
        v_rcp_f32 v{T}, v{T}
        v_mov_b64 {vr(M+4,2)}, 0
        v_mul_f32 v{Po}, v{Po}, v{T}
        v_mul_f32 v{Po+1}, v{Po+1}, v{T}
        v_mul_f32 v{Po+2}, v{Po+2}, v{T}
        v_mul_f32 v{Po+3}, v{Po+3}, v{T}
        v_cvt_pk_bf16_f32 v{Po}, v{Po}, v{Po+1}
        v_cvt_pk_bf16_f32 v{Po+1}, v{Po+2}, v{Po+3}
        ds_write_b64 v{vOw}, {vr(Po,2)}
        """)
        for i in range(6,16,2): a(f'v_mov_b64 {vr(M+i,2)}, 0')
        a.wvm(rst)
        a('s_waitcnt lgkmcnt(0)\ns_barrier')
        stamp(3)
        O = VX
        ot = [a(f'ds_read_b128 {vr(O+4*k_,4)}, v{vS} offset:{4096+1024*k_}') for k_ in range(2)]
        for i in range(16,32,2): a(f'v_mov_b64 {vr(M+i,2)}, 0')
        Sel = T+4; Dr = T+8
        a(f'v_mov_b32 v{T+2}, 0x3f80\nv_mov_b32 v{T+3}, 0x3f800000')
        a(f'v_cndmask_b32 v{T+2}, v{T+2}, v{T+3}, {sp(sPm)}')
        for i in range(4): a(f'v_cndmask_b32 v{Sel+i}, 0, v{T+2}, {sp(sSel+2*i)}')
        PS = VA
        def fin(j):
            c = M+4*j
            r = [f'v_add_f32 v{c}, v{c}, v{c+2}', f'v_add_f32 v{c+1}, v{c+1}, v{c+3}', f'v_cvt_pk_bf16_f32 v{PS+j}, v{c}, v{c+1}']
            if j % 4 == 0: r.append(f'v_min_u32 v{PS+j}, -2, v{PS+j}')
            return r
        pend = []
        def drain(n):
            for _ in range(n):
                if pend: a(pend.pop(0))
        a.wds(ot[0])
        seq = [(0,0),(1,0),(0,1),(1,1)] + [(j,k_) for j in range(2,8) for k_ in range(2)]
        done_at = {}
        for i, (j, kap) in enumerate(seq):
            if i == 2: a.wds(ot[1])
            SM(M+4*j, O+4*kap, 'o', 2*(j//2)+kap, j%2)
            if kap == 1: done_at[i+2] = j
            if i in done_at:
                pend += fin(done_at[i])
                if done_at[i] == 3: pend.append(f'global_store_dwordx4 v{vPst}, {vr(PS,4)}, {sp(sSt0)}{stc}')
            drain(wdr if i % 2 else wdr2)
        drain(99)
        pend += fin(7); drain(99)
        a(f'global_store_dwordx4 v{vPst}, {vr(PS+4,4)}, {sp(sSt1)}{stc}')
        stamp(4)
        for x_ in stage_ins(0): a(x_)
        a.nops(preA - 8)
        R1 = M+8; R2 = M+16
        def redA(R):
            a(f"""
            s_waitcnt vmcnt(3)
            v_mfma_f32_16x16x32_bf16 {vr(Dr,4)}, {vr(R,4)}, {vr(Sel,4)}, 0
            s_waitcnt vmcnt(2)
            v_mfma_f32_16x16x32_bf16 {vr(Dr,4)}, {vr(R+4,4)}, {vr(Sel,4)}, {vr(Dr,4)}
            v_max_u32 v{T}, v{R}, v{R+4}
            v_cmp_eq_u32 vcc, -1, v{T}
            """)
        ldA(R1)
        a.nops(gapA - 2)
        a.label(L('pa'))
        ldA(R2)
        redA(R1)
        a(f's_cbranch_vccz {L("qa")}')
        ldA(R1); spin()
        redA(R2)
        a(f's_cbranch_vccnz {L("pa")}')
        a.label(L('qa'))
        stamp(5)
        a(f"""
        v_permlane32_swap_b32 v{Dr}, v{Dr+2}
        v_permlane32_swap_b32 v{Dr+1}, v{Dr+3}
        v_add_f32 v{Dr}, v{Dr}, v{Dr+2}
        v_add_f32 v{Dr+1}, v{Dr+1}, v{Dr+3}
        v_permlane16_swap_b32 v{Dr}, v{Dr+1}
        v_add_f32 v{Dr}, v{Dr}, v{Dr+1}
        v_mov_b32_dpp v{Dr+1}, v{Dr} quad_perm:[1,0,3,2] {DPPM}
        v_cvt_pk_bf16_f32 v{Dr}, v{Dr}, v{Dr+1}
        s_mov_b64 exec, {sp(sPub)}
        v_min_u32 v{Dr}, -2, v{Dr}
        global_store_dword v{vMst}, v{Dr}, {sp(sMst)}{stc}
        s_mov_b64 exec, -1
        """)
        stamp(6)
        if prof and len(stamps) >= 2:
            a('s_waitcnt lgkmcnt(0)')
            for i in range(len(stamps)-1): a(f's_sub_u32 s{sA}, s{sP+2*stamps[i+1]}, s{sP+2*stamps[i]}\ns_add_u32 s{sP+21+i}, s{sP+21+i}, s{sA}')
        a(f's_add_u32 s{sT}, s{sT}, 1\ns_add_u32 s{sA}, s{sT}, 1\ns_cmp_lt_u32 s{sA}, s{sRdy}\ns_cbranch_scc1 {L("step")}')
        a(f'v_lshrrev_b32 v{T}, 2, v{vLin}')
        a.label(L('rp'))
        a(f'global_load_dword v{T+1}, v{T}, {sp(sFK)} sc1')
        spin()
        a('s_waitcnt vmcnt(0)')
        fkeval(T+1)
        a(f's_cmp_lt_u32 s{sA}, s{sRdy}\ns_cbranch_scc1 {L("step")}\ns_sleep 2\ns_branch {L("rp")}')
    loop(L, stc)
    if mega: loop(lambda x: L('s_' + x), ' sc1')
    a.label(L('end'))
    a('s_mov_b64 exec, -1\ns_nop 7')
    a(f'''
    global_store_dwordx4 v{vLin}, {vr(HK,4)}, {sp(sKVM)} sc1
    v_mov_b32 v{T}, 0x41
    s_waitcnt vmcnt(0)
    s_barrier
    s_mov_b64 exec, {sp(sFm)}
    global_store_dword v{vLin}, v{T}, {sp(sFl)} sc1
    s_mov_b64 exec, -1
    ''')
    if prof:
        a(f's_memtime {sp(sP)}\ns_waitcnt lgkmcnt(0)\ns_sub_u32 s{sP+20}, s{sP}, s{sP+28}')
        for i in range(7): a(f'v_mov_b32 v{T+i}, s{sP+20+i}')
        a(f'''
        v_mov_b32 v{T+7}, s{sSpin}
        s_lshl_b32 s{sA}, s{sH}, 2
        s_add_u32 s{sA}, s{sA}, s{sW}
        s_lshl_b32 s{sA}, s{sA}, 5
        s_add_u32 s{sA}, s{sA}, {WS_PROF}
        v_mov_b32 v{T+8}, s{sA}
        s_mov_b64 exec, 1
        global_store_dwordx4 v{T+8}, {vr(T,4)}, {sp(sWs)}
        global_store_dwordx4 v{T+8}, {vr(T+4,4)}, {sp(sWs)} offset:16
        s_mov_b64 exec, -1
        ''')
    tl(a, 4, T, 0)
    a('s_waitcnt vmcnt(0) lgkmcnt(0)')

def standalone(name='chain_kernel', **kw):
    a = Asm()
    a.raw(khead(name))
    a(f'''
    s_load_dwordx2 {sp(sMem)}, s[0:1], 8
    s_load_dwordx4 s[8:11], s[0:1], 24
    s_load_dwordx2 {sp(sWq)}, s[0:1], 16
    s_load_dwordx2 {sp(sWo)}, s[0:1], 40
    s_load_dwordx2 {sp(sDbg)}, s[0:1], 104
    s_load_dwordx2 {sp(sWs)}, s[0:1], 112
    s_getreg_b32 s{sA}, hwreg(HW_REG_XCC_ID)
    s_and_b32 s{sA}, s{sA}, 15
    s_mov_b32 s{sXcc}, s{sA}
    s_waitcnt lgkmcnt(0)
    s_cmp_lg_u32 s{sA}, 0
    s_cbranch_scc1 L_done_{name}
    v_mov_b32 v1, 0
    v_mov_b32 v2, 1
    v_lshrrev_b32 v4, 6, v0
    v_readfirstlane_b32 s{sW}, v4
    s_cmp_lg_u32 s{sW}, 0
    s_cbranch_scc1 L_t_{name}
    s_mov_b64 exec, 1
    global_atomic_add v3, v1, v2, {sp(sDbg)} sc0 sc1
    s_waitcnt vmcnt(0)
    ds_write_b32 v1, v3
    s_waitcnt lgkmcnt(0)
    s_mov_b64 exec, -1
    L_t_{name}:
    s_barrier
    ds_read_b32 v3, v1
    s_waitcnt lgkmcnt(0)
    v_readfirstlane_b32 s{sH}, v3
    s_barrier
    s_cmp_gt_u32 s{sH}, 31
    s_cbranch_scc1 L_done_{name}
    ''')
    chain(a, name, **kw)
    a.label(f'L_done_{name}')
    a('s_endpgm')
    bad = a.check_branches()
    assert bad == 0
    return a

if __name__ == '__main__':
    import sys
    variants = eval(sys.argv[1]) if len(sys.argv) > 1 else [dict()]
    out = ''.join(f'; @launch kernel=c{i}_kernel grid=(256,1,1) block=(256,1,1) lds=163840\n' for i in range(len(variants)))
    out += '.amdgcn_target "amdgcn-amd-amdhsa--gfx950"\n.text\n'
    for i, v in enumerate(variants):
        a = standalone(f'c{i}_kernel', prof=True, **v); out += a.text()
    out += '.section .rodata,"a"\n' + ''.join(kdesc(f'c{i}_kernel') for i in range(len(variants)))
    open('chain.s','w').write(out)
    open('chain.json','w').write(repr(variants))
```

```python
from asmlib import *
import gen_chain as C
from gen_chain import sp, sMem,sWq,sWk,sWv,sWo,sDbg,sWs,sH,sW,sXcc,QSCALE,WS_KVM,f32,sVer,WS_FL,FL_K,FL_G,FL_P,ROLE_LDS
import math
NAME = 'gated_mix__memory_aug_recurrent_mem_tr__glu_gated_bilinear__prompt_kernel'
WS_QX = 64<<20; WS_ACT = 128<<20; ACT_T = 180224; WS_F2 = 63<<20
WSPIN = 60000
sGrp = 20; sSpin = 21; sA, sB, sC, sD = 22, 23, 24, 25
sX, sWg, sWu, sWd, sGw, sOut = 30, 32, 34, 36, 38, 40
MF = 'v_mfma_f32_16x16x32_bf16'
X = {}

def add64(a, d, s, off):
    o = f's{off}' if isinstance(off, str) is False and False else off
    a(f's_add_u32 s{d}, s{s}, {off}\ns_addc_u32 s{d+1}, s{s+1}, 0')

vCl = 250
def verify(a, tag, n):
    sA, sB, sC, sD = 70, 71, 72, 73
    a(f"""
    s_cmp_lg_u32 s{sVer}, 0
    s_cbranch_scc1 Lv{tag}_ok
    s_lshl_b32 s{sD}, s{sGrp}, 5
    s_add_u32 s{sD}, s{sD}, s{sH}
    v_mov_b32 v{vCl+1}, {ROLE_LDS}
    s_cmp_lg_u32 s{sW}, 0
    s_cbranch_scc1 Lv{tag}_b
    s_mov_b64 exec, 1
    s_mov_b32 s{sSpin}, 0
    s_waitcnt vmcnt({min(n,63)})
    Lv{tag}_c:
    s_lshl_b32 s{sB}, 1, s{sH}
    v_readfirstlane_b32 s{sC}, v{vCl}
    s_and_b32 s{sA}, s{sC}, s{sB}
    s_cbranch_scc0 Lv{tag}_w
    s_add_u32 s{sSpin}, s{sSpin}, 1
    s_cmp_gt_u32 s{sSpin}, 400
    s_cbranch_scc1 Lv{tag}_f
    s_ff0_i32_b32 s{sH}, s{sC}
    s_cmp_lg_i32 s{sH}, -1
    s_cbranch_scc1 Lv{tag}_r
    s_add_u32 s{sGrp}, s{sGrp}, 1
    s_and_b32 s{sGrp}, s{sGrp}, 7
    s_mov_b32 s{sH}, 0
    s_cmp_eq_u32 s{sGrp}, s{sXcc}
    s_cbranch_scc1 Lv{tag}_f
    Lv{tag}_r:
    s_lshl_b32 s{sA}, s{sGrp}, 2
    s_lshl_b32 s{sB}, 1, s{sH}
    v_mov_b32 v{vCl+2}, s{sA}
    v_mov_b32 v{vCl+3}, s{sB}
    global_atomic_or v{vCl}, v{vCl+2}, v{vCl+3}, {sp(sDbg)} sc0 sc1
    s_waitcnt vmcnt(0)
    s_branch Lv{tag}_c
    Lv{tag}_f:
    s_mov_b32 s{sGrp}, 8
    s_mov_b32 s{sH}, 0
    Lv{tag}_w:
    s_lshl_b32 s{sA}, s{sGrp}, 5
    s_add_u32 s{sA}, s{sA}, s{sH}
    v_mov_b32 v{vCl}, s{sA}
    ds_write_b32 v{vCl+1}, v{vCl}
    s_waitcnt lgkmcnt(0)
    s_mov_b64 exec, -1
    Lv{tag}_b:
    s_barrier
    ds_read_b32 v{vCl}, v{vCl+1}
    s_mov_b32 s{sVer}, 1
    s_waitcnt lgkmcnt(0)
    v_readfirstlane_b32 s{sA}, v{vCl}
    s_cmp_eq_u32 s{sA}, s{sD}
    s_cbranch_scc1 Lv{tag}_ok
    s_and_b32 s{sH}, s{sA}, 31
    s_lshr_b32 s{sGrp}, s{sA}, 5
    s_waitcnt vmcnt(0)
    s_barrier
    s_branch L_role
    Lv{tag}_ok:
    """)
    a.nvm -= 1; a.nds -= 1
C.VERIFY = verify

def poll(a, lab, loads, check, sl=8):
    a(f"""
    s_mov_b32 s{sSpin}, 0
    {lab}_p:
    {loads}
    s_add_u32 s{sSpin}, s{sSpin}, 1
    s_cmp_gt_u32 s{sSpin}, {WSPIN}
    s_cbranch_scc1 {lab}_b
    s_waitcnt vmcnt(0)
    {check}
    s_cbranch_vccz {lab}_b
    s_sleep {sl}
    s_branch {lab}_p
    {lab}_b:
    s_waitcnt vmcnt(0)
    """)

class Filt:
    def __init__(s, a): s.__dict__['a'] = a
    def __getattr__(s, k): return getattr(s.a, k)
    def __setattr__(s, k, v): setattr(s.a, k, v)
    def __call__(s, t):
        if t.startswith('global_store_dwordx4 v6'):
            if X.get('nost'): return None
            if X.get('plain'): t = t.replace(' sc1', '')
            if X.get('nt'): t = t.replace(' sc1', ' sc1 nt')
        return s.a(t)
def t1(a):
    a = Filt(a)
    sTile, sBuf, sStr, sW0, sW1, sO0, sO1, sBlk, sM, sXb = 44, 45, 46, 48, 50, 52, 54, 56, 57, 58
    sStep, sFo, sFb = 47, 60, 62
    vOne, vFo, vPf, vPr, vRa, vRd, vXr = 14, 15, 7, 128, 129, 130, 131
    XR = 23
    ACC = 16; WF = 80; PK = 112
    vLane, vN, vG, vLin, vTr, vRow, vCh, vA, vXo = 3, 4, 5, 6, 8, 10, 11, 12, 13
    acc = lambda T, hf, v: ACC + 16*T + 8*hf + 4*v
    a(f'''
    s_add_u32 s{sFb}, s{sWs}, {WS_FL}
    s_addc_u32 s{sFb+1}, s{sWs+1}, 0
    v_mov_b32 v{vOne}, 1
    s_cmp_lg_u32 s{sGrp}, 7
    s_cbranch_scc1 Lt1_nz
    s_cmp_lg_u32 s{sH}, 31
    s_cbranch_scc1 Lt1_nz
    ''')
    verify(a, 'z', 0)
    a(f'''
    v_mov_b64 {vr(PK,2)}, 0
    v_mov_b64 {vr(PK+2,2)}, 0
    v_lshlrev_b32 v1, 4, v0
    ''')
    for i in range(6):
        a(f'global_store_dwordx4 v1, {vr(PK,4)}, {sp(sFb)} sc1')
        if i < 5: a('v_add_u32 v1, 4096, v1')
    a(f'''
    s_add_u32 s{sA}, s{sW}, 160
    v_mov_b32 v1, s{sA}
    s_waitcnt vmcnt(0)
    s_mov_b64 exec, 1
    global_store_byte v1, v{vOne}, {sp(sDbg)} sc1
    s_mov_b64 exec, -1
    Lt1_nz:
    ''')
    a(f'''
    v_and_b32 v{vLane}, 63, v0
    v_and_b32 v{vN}, 15, v0
    v_lshrrev_b32 v{vG}, 4, v{vLane}
    v_lshlrev_b32 v{vLin}, 4, v{vLane}
    s_sub_u32 s{sB}, s{sGrp}, 1
    s_mul_i32 s{sA}, s{sH}, 37
    s_lshr_b32 s{sA}, s{sA}, 8
    s_mul_i32 s{sBlk}, s{sA}, 7
    s_sub_u32 s{sBlk}, s{sH}, s{sBlk}
    s_add_u32 s{sBlk}, s{sBlk}, 1
    s_mul_i32 s{sTile}, s{sB}, 3
    s_add_u32 s{sTile}, s{sTile}, s{sA}
    s_mul_i32 s{sB}, s{sB}, 11
    s_add_u32 s{sB}, s{sB}, s{sH}
    s_sub_u32 s{sB}, s{sB}, 21
    s_cmp_lt_u32 s{sH}, 21
    s_cselect_b32 s{sBlk}, s{sBlk}, 0
    s_cselect_b32 s{sTile}, s{sTile}, s{sB}
    s_cselect_b32 s{sStep}, 21, 77
    ; W prefetch rows: 32*((4*(blk-1)+w)&15) + lane%32
    s_lshl_b32 s{sA}, s{sBlk}, 2
    s_add_u32 s{sA}, s{sA}, s{sW}
    s_and_b32 s{sA}, s{sA}, 7
    s_lshl_b32 s{sA}, s{sA}, 6
    v_add_u32 v{vPr}, s{sA}, v{vLane}
    ; DMA lane: row = l/4 + 128w ; chunk = (l%4) ^ (2*bit5)
    v_lshrrev_b32 v{vRow}, 2, v{vLane}
    s_lshl_b32 s{sA}, s{sW}, 7
    v_add_u32 v{vRow}, s{sA}, v{vRow}
    v_lshrrev_b32 v{vCh}, 4, v{vLane}
    v_and_b32 v{vCh}, 2, v{vCh}
    v_xor_b32 v{vCh}, v{vCh}, v{vLane}
    v_and_b32 v{vCh}, 3, v{vCh}
    v_lshlrev_b32 v{vCh}, 4, v{vCh}
    s_mov_b32 s{sBuf}, 0
    ''')
    def wsrc(tag, tile):
        a(f'''
        s_cmp_ge_u32 s{tile}, 192
        s_cbranch_scc1 Lt1_{tag}_gu
        s_lshr_b32 s{sA}, s{tile}, 6
        s_cmp_eq_u32 s{sA}, 0
        s_cselect_b64 {sp(sW0)}, {sp(sWk)}, {sp(sWv)}
        s_cmp_eq_u32 s{sA}, 2
        s_cselect_b64 {sp(sW0)}, {sp(sWq)}, {sp(sW0)}
        s_and_b32 s{sA}, s{tile}, 63
        s_lshl_b32 s{sA}, s{sA}, 7
        s_add_u32 s{sW0}, s{sW0}, s{sA}
        s_addc_u32 s{sW0+1}, s{sW0+1}, 0
        s_add_u32 s{sW1}, s{sW0}, 64
        s_addc_u32 s{sW1+1}, s{sW0+1}, 0
        s_mov_b32 s{sStr}, 8192
        s_branch Lt1_{tag}_e
        Lt1_{tag}_gu:
        s_min_u32 s{sA}, s{tile}, 234
        s_sub_u32 s{sA}, s{sA}, 192
        s_lshl_b32 s{sA}, s{sA}, 6
        s_add_u32 s{sW0}, s{sWg}, s{sA}
        s_addc_u32 s{sW0+1}, s{sWg+1}, 0
        s_add_u32 s{sW1}, s{sWu}, s{sA}
        s_addc_u32 s{sW1+1}, s{sWu+1}, 0
        s_mov_b32 s{sStr}, 2752
        Lt1_{tag}_e:
        v_mad_u32_u24 v{vA}, v{vRow}, s{sStr}, v{vCh}
        s_lshl_b32 s{sStr}, s{sStr}, 4
        ''')
    def dma(i):
        r = [f's_add_u32 m0, s{sM}, {i*1024}', f'global_load_lds_dwordx4 v{vA}, {sp(sW0)}',
             f's_add_u32 m0, s{sM}, {32768+i*1024}', f'global_load_lds_dwordx4 v{vA}, {sp(sW1)}']
        if i < 7: r.append(f'v_add_u32 v{vA}, s{sStr}, v{vA}')
        return r
    wsrc('p', sTile)
    a(f's_lshl_b32 s{sM}, s{sW}, 13')
    for i in range(8):
        for x in dma(i): a(x)
    a(f'''
    s_lshl_b32 s{sA}, s{sBlk}, 18
    s_lshl_b32 s{sB}, s{sW}, 16
    s_add_u32 s{sA}, s{sA}, s{sB}
    s_add_u32 s{sXb}, s{sX}, s{sA}
    s_addc_u32 s{sXb+1}, s{sX+1}, 0
    s_mul_i32 s{sD}, s{sW}, {XR*1040}
    s_add_u32 s{sD}, s{sD}, 65536
    v_mov_b32 v{vXo}, v{vLin}
    v_mul_u32_u24 v{vXr}, 1040, v{vN}
    v_lshl_add_u32 v{vXr}, v{vG}, 4, v{vXr}
    v_add_u32 v{vXr}, s{sD}, v{vXr}
    ''')
    xt = {}
    def xdma(r):
        a(f's_add_u32 m0, s{sD}, {(r%XR)*1040 - (r%4)*1024}')
        xt[r] = a(f'global_load_lds_dwordx4 v{vXo}, {sp(sXb)} offset:{(r%4)*1024}')
        if r % 4 == 3: a(f'v_add_u32 v{vXo}, 4096, v{vXo}')
    for r in range(XR): xdma(r)
    verify(a, 'w', 16 + XR)
    nx = XR
    for T in range(4):
        b = (16*T) % XR
        a(f'v_add_u32 v1, {b*1040}, v{vXr}')
        if b + 16 > XR: a(f'v_cmp_le_u32 vcc, {XR-b}, v{vN}\nv_subrev_u32 v2, {XR*1040}, v1\nv_cndmask_b32 v1, v1, v2, vcc')
        a.wvm(xt[16*T+15])
        for ks in range(16): a(f'ds_read_b128 {vr(64*T+4*ks,4,"a")}, v1 offset:{ks*64}')
        if nx < 64:
            a('s_waitcnt lgkmcnt(0)')
            for r in range(nx, min(nx+16, 64)): xdma(r)
            nx = min(nx+16, 64)
    a(f'''
    v_lshlrev_b32 v{vTr}, 9, v{vG}
    v_and_b32 v1, 12, v{vLane}
    v_lshl_add_u32 v{vTr}, v1, 4, v{vTr}
    v_and_b32 v1, 3, v{vLane}
    v_lshl_add_u32 v{vTr}, v1, 3, v{vTr}
    v_and_b32 v1, 1, v{vG}
    v_lshl_add_u32 v{vTr}, v1, 5, v{vTr}
    v_xor_b32 v{vTr+1}, 32, v{vTr}
    ''')
    a(f'''
    v_mov_b32 v{vFo}, {FL_G+1536}
    s_mov_b64 {sp(sFo)}, 0
    v_mov_b32 v{vRa}, 160
    v_mov_b32 v{vRd}, 0x01010101
    s_cmp_lg_u32 s{sW}, 0
    s_cbranch_scc1 Lt1_n0
    global_load_dword v{vRd}, v{vRa}, {sp(sDbg)} sc1
    Lt1_n0:
    s_waitcnt lgkmcnt(0)
    s_barrier
    ''')
    C.tl(a, 1, 1, f's{sGrp}')
    a.label('Lt1_tile')
    if X.get('wpf', 1):
        a(f's_lshl_b32 s{sD}, s{sStep}, 1\ns_add_u32 s{sD}, s{sD}, s{sTile}')
        wsrc('f', sD)
        a(f'''
        s_lshr_b32 s{sStr}, s{sStr}, 4
        v_mul_u32_u24 v1, s{sStr}, v{vPr}
        global_load_dword v{vPf}, v1, {sp(sW0)}
        global_load_dword v{vPf}, v1, {sp(sW1)}
        ''')
    a(f's_add_u32 s{sD}, s{sTile}, s{sStep}')
    wsrc('n', sD)
    a(f's_xor_b32 s{sM}, s{sM}, 65536')
    a(f'''
    s_lshr_b32 s{sA}, s{sTile}, 6
    s_cmp_eq_u32 s{sA}, 1
    s_cbranch_scc1 Lt1_mv
    ''')
    def frags(ks):
        return [f'ds_read_b64_tr_b16 {vr(WF+16*(ks%2)+8*hf+4*v+2*q,2)}, v{vTr+v} offset:{hf*32768+ks*2048+q*256}'
                for hf in range(2) for v in range(2) for q in range(2)]
    def flag(n):
        a(f's_waitcnt vmcnt({n})\ns_mov_b64 exec, {sp(sFo)}\nglobal_store_byte v{vFo}, v{vOne}, {sp(sFb)} sc1\ns_mov_b64 exec, -1')
    def mainloop(swap):
        a.nds = 0
        tg = None
        for x in frags(0): tg = a(x)
        for ks in range(16):
            fill = (frags(ks+1) if ks < 15 else [])
            d = (dma(2*ks) + dma(2*ks+1)) if ks < 4 and not X.get('nodma') else []
            a.wds(tg)
            if ks == X.get('fks', 8): flag(16 + 2*X.get('wpf', 1))
            n = 0
            for hf in range(2):
                for v in range(2):
                    for T in range(4):
                        w_ = vr(WF+16*(ks%2)+8*hf+4*v,4); x_ = vr(64*T+4*ks,4,'a'); c = vr(acc(T,hf,v),4)
                        p, q = (w_, x_) if swap else (x_, w_)
                        a(f'{MF} {c}, {p}, {q}, {c if ks else 0}')
                        if fill and n < 8: tg = a(fill.pop(0))
                        elif d:
                            a(d.pop(0))
                            if d and d[0].startswith('global'): a(d.pop(0))
                        n += 1
            assert not fill and not d
        a(f'''
        v_xor_b32 v{vTr}, 0x10000, v{vTr}
        v_xor_b32 v{vTr+1}, 0x10000, v{vTr+1}
        s_waitcnt vmcnt(0)
        v_cmp_ne_u32 vcc, 0x01010101, v{vRd}
        s_cbranch_vccz Lt1_rd{int(swap)}
        ''')
        poll(a, f'Lt1_r{int(swap)}', f'global_load_dword v{vRd}, v{vRa}, {sp(sDbg)} sc1', f'v_cmp_ne_u32 vcc, 0x01010101, v{vRd}', 8)
        a(f'Lt1_rd{int(swap)}:\ns_barrier')
    def kvbase(base):
        a(f'''
        s_lshl_b32 s{sA}, s{sBlk}, 22
        s_lshl_b32 s{sB}, s{sW}, 20
        s_add_u32 s{sA}, s{sA}, s{sB}
        s_and_b32 s{sB}, s{sTile}, 63
        s_lshl_b32 s{sB}, s{sB}, 13
        s_add_u32 s{sA}, s{sA}, s{sB}
        s_add_u32 s{sA}, s{sA}, {base}
        s_add_u32 s{sO0}, s{sWs}, s{sA}
        s_addc_u32 s{sO0+1}, s{sWs+1}, 0
        s_add_u32 s{sO1}, s{sO0}, 524288
        s_addc_u32 s{sO1+1}, s{sO0+1}, 0
        ''')
    def pack(d, c0, c1):
        a(f'v_cvt_pk_bf16_f32 v{d}, v{c0}, v{c0+1}\nv_cvt_pk_bf16_f32 v{d+1}, v{c0+2}, v{c0+3}')
        a(f'v_cvt_pk_bf16_f32 v{d+2}, v{c1}, v{c1+1}\nv_cvt_pk_bf16_f32 v{d+3}, v{c1+2}, v{c1+3}')
    mainloop(True)
    a(f'''
    s_cmp_ge_u32 s{sTile}, 192
    s_cbranch_scc1 Lt1_eg
    s_mov_b32 s{sC}, 4096
    s_cmp_lt_u32 s{sTile}, 64
    s_cbranch_scc1 Lt1_ek
    s_mov_b32 s{sC}, {QSCALE}
    ''')
    for r in range(64): a(f'v_mul_f32 v{ACC+r}, s{sC}, v{ACC+r}')
    a(f's_mov_b32 s{sC}, {WS_QX+4096}')
    a.label('Lt1_ek')
    kvbase(f's{sC}')
    i = 0
    for T in range(4):
        for hf in range(2):
            d = PK + 4*(i%4); i += 1
            pack(d, acc(T,hf,0), acc(T,hf,1))
            a(f'global_store_dwordx4 v{vLin}, {vr(d,4)}, {sp(sO1 if T//2 else sO0)} offset:{hf*4096-4096+(T%2)*1024} sc1')
    a('s_branch Lt1_next')
    a.label('Lt1_eg')
    a(f'''
    s_lshl_b32 s{sA}, s{sBlk}, 4
    s_lshl_b32 s{sB}, s{sW}, 2
    s_add_u32 s{sA}, s{sA}, s{sB}
    s_mul_i32 s{sA}, s{sA}, {ACT_T}
    s_sub_u32 s{sB}, s{sTile}, 64
    s_lshl_b32 s{sB}, s{sB}, 10
    s_add_u32 s{sA}, s{sA}, s{sB}
    s_add_u32 s{sA}, s{sA}, {WS_ACT}
    s_add_u32 s{sO0}, s{sWs}, s{sA}
    s_addc_u32 s{sO0+1}, s{sWs+1}, 0
    ''')
    for T in range(4):
        for r in range(8): a(f'v_mul_f32 v{acc(T,0,0)+r}, v{acc(T,0,0)+r}, v{acc(T,1,0)+r}')
        d = PK + 4*T
        pack(d, acc(T,0,0), acc(T,0,1))
        a(f'global_store_dwordx4 v{vLin}, {vr(d,4)}, {sp(sO0)} sc1')
        if T < 3: a(f's_add_u32 s{sO0}, s{sO0}, {ACT_T}\ns_addc_u32 s{sO0+1}, s{sO0+1}, 0')
    a('s_branch Lt1_next')
    a.label('Lt1_mv')
    mainloop(False)
    kvbase(4096)
    i = 0
    for s_ in range(2):
        for hf in range(2):
            for u in range(2):
                d = PK + 4*(i%4); i += 1
                pack(d, acc(2*s_,hf,u), acc(2*s_+1,hf,u))
                a(f'global_store_dwordx4 v{vLin}, {vr(d,4)}, {sp(sO1 if s_ else sO0)} offset:{hf*4096-4096+(2+u)*1024} sc1')
    a.label('Lt1_next')
    a(f'''
    s_lshl_b32 s{sA}, s{sBlk}, 2
    s_add_u32 s{sA}, s{sA}, s{sW}
    s_lshl_b32 s{sB}, s{sTile}, 5
    s_add_u32 s{sB}, s{sB}, s{sA}
    s_add_u32 s{sB}, s{sB}, {FL_G-192*32}
    s_lshl_b32 s{sA}, s{sA}, 3
    s_bfe_u32 s{sC}, s{sTile}, 0x50001
    s_lshl_b32 s{sC}, s{sC}, 8
    s_add_u32 s{sA}, s{sA}, s{sC}
    s_lshr_b32 s{sC}, s{sTile}, 6
    s_lshl_b32 s{sC}, s{sC}, 1
    s_add_u32 s{sA}, s{sA}, s{sC}
    s_and_b32 s{sC}, s{sTile}, 1
    s_add_u32 s{sA}, s{sA}, s{sC}
    s_add_u32 s{sA}, s{sA}, {FL_K}
    s_cmp_ge_u32 s{sTile}, 192
    s_cselect_b32 s{sA}, s{sB}, s{sA}
    v_mov_b32 v{vFo}, s{sA}
    s_mov_b64 {sp(sFo)}, 1
    ''')
    if C.TL:
        a(f's_cmp_ge_u32 s{sTile}, 128\ns_cbranch_scc1 Lt1_ntl')
        C.tl(a, 2, 1, f's{sGrp}')
        a.label('Lt1_ntl')
    a(f'''
    s_add_u32 s{sTile}, s{sTile}, s{sStep}
    s_cmp_lt_u32 s{sTile}, 235
    s_cbranch_scc1 Lt1_tile
    ''')
    flag(0)
    C.tl(a, 3, 1, f's{sGrp}')

def t2(a):
    sT, sHd, sK, sQ, sKM, sO, sFl, sMk, sF2 = 44, 45, 46, 48, 50, 52, 54, 56, 64
    vLane, vN, vG, vLin, vKw, vKr, vL2, vNeg = 3, 4, 5, 6, 7, 8, 9, 10
    Q, KX, VX, KM, KT, S, O, P = 16, 48, 80, 112, 128, 144, 176, 240
    DP = 'row_mask:0xf bank_mask:0xf'
    a(f'''
    s_sub_u32 s{sT}, s{sGrp}, 5
    s_lshl_b32 s{sT}, s{sT}, 2
    s_lshr_b32 s{sA}, s{sH}, 3
    s_add_u32 s{sT}, s{sT}, s{sA}
    s_and_b32 s{sHd}, s{sH}, 7
    s_lshl_b32 s{sHd}, s{sHd}, 2
    s_add_u32 s{sHd}, s{sHd}, s{sW}
    s_lshl_b32 s{sA}, s{sW}, 12
    v_lshlrev_b32 v{vKw}, 5, v{vN}
    v_lshl_add_u32 v{vKw}, v{vG}, 3, v{vKw}
    v_add_u32 v{vKw}, s{sA}, v{vKw}
    v_lshlrev_b32 v{vKr}, 3, v{vLane}
    v_add_u32 v{vKr}, s{sA}, v{vKr}
    v_add_u32 v{vL2}, 8192, v{vLin}
    v_mov_b32 v{vNeg}, 0xff800000
    v_lshlrev_b32 v1, 2, v{vG}
    s_lshl_b32 s{sA}, s{sHd}, 7
    s_add_u32 s{sA}, s{sA}, {WS_FL+FL_P}
    s_add_u32 s{sFl}, s{sWs}, s{sA}
    s_addc_u32 s{sFl+1}, s{sWs+1}, 0
    ''')
    for r in range(4):
        a(f'v_add_u32 v2, {r}, v1\nv_cmp_le_u32 {sp(sMk+2*r)}, v2, v{vN}')
    a(f'''
    s_lshl_b32 s{sA}, s{sHd}, 8
    s_add_u32 s{sA}, s{sA}, {WS_FL+FL_K}
    v_lshl_add_u32 v1, v{vLane}, 2, s{sA}
    v_and_b32 v{Q}, 1, v{vLane}
    v_mul_u32_u24 v{Q}, 0x0101, v{Q}
    v_lshlrev_b32 v{Q}, 16, v{Q}
    s_barrier
    ''')
    poll(a, 'Lt2_w', f'global_load_dword v2, v1, {sp(sWs)} sc1', f'v_or_b32 v2, v2, v{Q}\nv_cmp_ne_u32 vcc, 0x01010101, v2', 32)
    C.tl(a, 4, 1, f's{sGrp}')
    a.label('Lt2_seg')
    a(f'''
    s_lshl_b32 s{sA}, s{sT}, 5
    s_add_u32 s{sA}, s{sA}, s{sHd}
    s_lshl_b32 s{sB}, s{sA}, 14
    s_add_u32 s{sB}, s{sB}, 4096
    s_add_u32 s{sK}, s{sWs}, s{sB}
    s_addc_u32 s{sK+1}, s{sWs+1}, 0
    s_add_u32 s{sQ}, s{sK}, {WS_QX}
    s_addc_u32 s{sQ+1}, s{sK+1}, 0
    s_lshl_b32 s{sB}, s{sA}, 12
    s_add_u32 s{sB}, s{sB}, {WS_KVM}
    s_add_u32 s{sKM}, s{sWs}, s{sB}
    s_addc_u32 s{sKM+1}, s{sWs+1}, 0
    s_lshl_b32 s{sB}, s{sA}, 2
    s_add_u32 s{sB}, s{sB}, {WS_F2}
    s_add_u32 s{sF2}, s{sWs}, s{sB}
    s_addc_u32 s{sF2+1}, s{sWs+1}, 0
    s_mul_i32 s{sB}, s{sT}, {2*ACT_T}
    s_lshl_b32 s{sC}, s{sHd}, 12
    s_add_u32 s{sB}, s{sB}, s{sC}
    s_add_u32 s{sB}, s{sB}, {WS_ACT}
    s_add_u32 s{sO}, s{sWs}, s{sB}
    s_addc_u32 s{sO+1}, s{sWs+1}, 0
    ''')
    a.nvm = 0; tq = {}
    for w in range(4):
        for T in range(2):
            va = vL2 if w >= 2 else vLin; off = (w%2)*4096 - 4096
            a(f'global_load_dwordx4 {vr(Q+8*w+4*T,4)}, v{va}, {sp(sQ)} offset:{off+T*1024} sc1')
            tq[w] = a(f'global_load_dwordx4 {vr(KX+8*w+4*T,4)}, v{va}, {sp(sK)} offset:{off+T*1024} sc1')
    for w in range(4):
        for u in range(2):
            va = vL2 if w >= 2 else vLin; off = (w%2)*4096 - 4096
            a(f'global_load_dwordx4 {vr(VX+8*w+4*u,4)}, v{va}, {sp(sK)} offset:{off+2048+u*1024} sc1')
    S00, S01, S11, M0, M1 = S, S+4, S+8, S+12, S+16
    for w in range(4):
        a.wvm(tq[w])
        for (d, tk, tq_) in ((S00,0,0),(S01,0,1),(S11,1,1)):
            a(f'{MF} {vr(d,4)}, {vr(KX+8*w+4*tk,4)}, {vr(Q+8*w+4*tq_,4)}, {vr(d,4) if w else 0}')
    for r in range(4):
        a(f'v_cndmask_b32 v{S00+r}, v{vNeg}, v{S00+r}, {sp(sMk+2*r)}')
        a(f'v_cndmask_b32 v{S11+r}, v{vNeg}, v{S11+r}, {sp(sMk+2*r)}')
    mx0, mx1, t0, t1_ = S+20, S+21, S+22, S+23
    a(f'''
    v_max3_f32 v{mx0}, v{S00}, v{S00+1}, v{S00+2}
    v_max_f32 v{mx0}, v{mx0}, v{S00+3}
    v_max3_f32 v{mx1}, v{S01}, v{S01+1}, v{S01+2}
    v_max3_f32 v{mx1}, v{mx1}, v{S01+3}, v{S11}
    v_max3_f32 v{mx1}, v{mx1}, v{S11+1}, v{S11+2}
    v_max_f32 v{mx1}, v{mx1}, v{S11+3}
    s_add_u32 s{sA}, s{sT}, 2
    v_mov_b32 v1, 0
    s_mov_b32 s{sSpin}, 0
    Lt2_p:
    global_load_dword v2, v1, {sp(sFl)} sc1
    s_add_u32 s{sSpin}, s{sSpin}, 1
    s_cmp_gt_u32 s{sSpin}, {WSPIN}
    s_cbranch_scc1 Lt2_go
    s_waitcnt vmcnt(0)
    v_cmp_le_u32 vcc, s{sA}, v2
    s_cbranch_vccnz Lt2_go
    s_sleep 4
    s_branch Lt2_p
    Lt2_go:
    ''')
    for w in range(4): a(f'global_load_dwordx4 {vr(KM+4*w,4)}, v{vLin}, {sp(sKM)} offset:{w*1024} sc1')
    a('s_waitcnt vmcnt(0)')
    for w in range(4):
        for u in range(2): a(f'ds_write_b32 v{vKw}, v{KM+4*w+u} offset:{w*1024+u*512}')
    a('s_waitcnt lgkmcnt(0)')
    for w in range(4):
        for v in range(2): a(f'ds_read_b64_tr_b16 {vr(KT+4*w+2*v,2)}, v{vKr} offset:{w*1024+v*512}')
    a('s_waitcnt lgkmcnt(0)')
    for w in range(4):
        for T, d in ((0,M0),(1,M1)):
            a(f'{MF} {vr(d,4)}, {vr(KT+4*w,4)}, {vr(Q+8*w+4*T,4)}, {vr(d,4) if w else 0}')
    def xred(op, x, y):
        a(f'''
        v_mov_b32 v{t0}, v{x}
        v_mov_b32 v{t1_}, v{y}
        v_permlane16_swap_b32 v{x}, v{t0}
        v_permlane16_swap_b32 v{y}, v{t1_}
        {op} v{x}, v{x}, v{t0}
        {op} v{y}, v{y}, v{t1_}
        v_mov_b32 v{t0}, v{x}
        v_mov_b32 v{t1_}, v{y}
        v_permlane32_swap_b32 v{x}, v{t0}
        v_permlane32_swap_b32 v{y}, v{t1_}
        {op} v{x}, v{x}, v{t0}
        {op} v{y}, v{y}, v{t1_}
        ''')
    a(f'v_max3_f32 v{mx0}, v{mx0}, v{M0}, v{M0+1}\nv_max3_f32 v{mx1}, v{mx1}, v{M1}, v{M1+1}')
    xred('v_max_f32', mx0, mx1)
    e0 = [S00+r for r in range(4)] + [M0, M0+1]; e1 = [S01+r for r in range(8)] + [M1, M1+1]
    for r in e0: a(f'v_sub_f32 v{r}, v{r}, v{mx0}')
    for r in e1: a(f'v_sub_f32 v{r}, v{r}, v{mx1}')
    for r in e0 + e1: a(f'v_exp_f32 v{r}, v{r}')
    P0, P1, Z0, Z1 = P, P+4, P+8, P+12
    a(f'''
    v_cvt_pk_bf16_f32 v{P0}, v{S00}, v{S00+1}
    v_cvt_pk_bf16_f32 v{P0+1}, v{S00+2}, v{S00+3}
    v_mov_b64 {vr(P0+2,2)}, 0
    v_cvt_pk_bf16_f32 v{P1}, v{S01}, v{S01+1}
    v_cvt_pk_bf16_f32 v{P1+1}, v{S01+2}, v{S01+3}
    v_cvt_pk_bf16_f32 v{P1+2}, v{S11}, v{S11+1}
    v_cvt_pk_bf16_f32 v{P1+3}, v{S11+2}, v{S11+3}
    v_cvt_pk_bf16_f32 v{Z0}, v{M0}, v{M0+1}
    v_mov_b32 v{Z0+1}, 0
    v_mov_b32 v{Z0+2}, 0
    v_mov_b32 v{Z0+3}, v{Z0}
    v_cvt_pk_bf16_f32 v{Z1}, v{M1}, v{M1+1}
    v_mov_b32 v{Z1+1}, 0
    v_mov_b32 v{Z1+2}, 0
    v_mov_b32 v{Z1+3}, v{Z1}
    ''')
    oa = lambda T, w, u: O + 32*T + 8*w + 4*u
    for T in range(2):
        for w in range(4):
            for u in range(2):
                a(f'{MF} {vr(oa(T,w,u),4)}, {vr(VX+8*w+4*u,4)}, {vr(P+4*T,4)}, 0')
    for T in range(2):
        for w in range(4):
            for u in range(2):
                a(f'v_mfma_f32_16x16x16_bf16 {vr(oa(T,w,u),4)}, {vr(KM+4*w+2,2)}, {vr(Z0+4*T+2*u,2)}, {vr(oa(T,w,u),4)}')
    for e in (e0, e1):
        for r in e[1:]: a(f'v_add_f32 v{e[0]}, v{e[0]}, v{r}')
    xred('v_add_f32', e0[0], e1[0])
    a(f'v_rcp_f32 v{e0[0]}, v{e0[0]}\nv_rcp_f32 v{e1[0]}, v{e1[0]}')
    for T in range(2):
        l = (e0, e1)[T][0]
        for w in range(4):
            b = oa(T,w,0)
            for r in range(8): a(f'v_mul_f32 v{b+r}, v{b+r}, v{l}')
            for r in range(4): a(f'v_cvt_pk_bf16_f32 v{b+r}, v{b+2*r}, v{b+2*r+1}')
            a(f'global_store_dwordx4 v{vLin}, {vr(b,4)}, {sp(sO)} offset:{w*1024} sc1')
        if T == 0: a(f's_add_u32 s{sO}, s{sO}, {ACT_T}\ns_addc_u32 s{sO+1}, s{sO+1}, 0')
    a(f'''
    v_mov_b32 v2, 1
    s_waitcnt vmcnt(0)
    s_mov_b64 exec, 1
    global_store_dword v1, v2, {sp(sF2)} sc1
    s_mov_b64 exec, -1
    s_add_u32 s{sT}, s{sT}, 12
    s_cmp_lt_u32 s{sT}, 64
    s_cbranch_scc1 Lt2_seg
    ''')

def t3(a):
    sTau, sAo, sAh, sXa, sF2, sOo, sLb, sTm, sRb = 44, 46, 48, 50, 52, 54, 56, 58, 60
    vLane, vN, vG, vLin, vD, vTr, vXo, vFl, vRs, vOo = 3, 4, 5, 6, 7, 8, 9, 10, 11, 12
    AC = 16; GW = 32; XB = 48; HB = 64; OB = 128; R = 108
    a(f'''
    s_lshl_b32 s{sLb}, s{sW}, 15
    ; DMA lane: row = l/2, chunk = l%2 ; row stride 1024
    v_lshrrev_b32 v{vD}, 1, v{vLane}
    v_lshlrev_b32 v{vD}, 10, v{vD}
    v_and_b32 v1, 1, v{vLane}
    v_lshl_add_u32 v{vD}, v1, 4, v{vD}
    s_lshl_b32 s{sA}, s{sH}, 5
    v_add_u32 v{vD}, s{sA}, v{vD}
    v_lshlrev_b32 v{vTr}, 3, v{vLane}
    v_add_u32 v{vTr}, s{sLb}, v{vTr}
    s_lshl_b32 s{sA}, s{sW}, 20
    s_add_u32 s{sTm}, s{sWo}, s{sA}
    s_addc_u32 s{sTm+1}, s{sWo+1}, 0
    s_barrier
    ''')
    for b in range(32):
        a(f's_add_u32 m0, s{sLb}, {b*1024}\nglobal_load_lds_dwordx4 v{vD}, {sp(sTm)}')
        a(f's_add_u32 s{sTm}, s{sTm}, 32768\ns_addc_u32 s{sTm+1}, s{sTm+1}, 0')
    a(f'''
    v_lshlrev_b32 v1, 4, v{vG}
    s_lshl_b32 s{sA}, s{sW}, 8
    v_add_u32 v1, s{sA}, v1
    v_lshl_add_u32 v{vXo}, v{vN}, 10, v1
    ''')
    for k in range(4): a(f'global_load_dwordx4 {vr(GW+4*k,4)}, v1, {sp(sGw)} offset:{64*k}')
    a('s_waitcnt vmcnt(0)')
    for b in range(32):
        for v in range(2): a(f'ds_read_b64_tr_b16 {vr(4*b+2*v,2,"a")}, v{vTr} offset:{b*1024+v*512}')
    a(f'''
    s_mul_i32 s{sRb}, s{sW}, 11
    s_cmp_eq_u32 s{sW}, 3
    s_subb_u32 s{sRb}, s{sRb}, 0
    s_lshl_b32 s{sA}, s{sRb}, 15
    s_add_u32 s{sTm}, s{sWd}, s{sA}
    s_addc_u32 s{sTm+1}, s{sWd+1}, 0
    s_waitcnt lgkmcnt(0)
    ''')
    for b in range(11):
        a(f's_add_u32 m0, s{sLb}, {b*1024}\nglobal_load_lds_dwordx4 v{vD}, {sp(sTm)}')
        if b < 10: a(f's_add_u32 s{sTm}, s{sTm}, 32768\ns_addc_u32 s{sTm+1}, s{sTm+1}, 0')
    a('s_waitcnt vmcnt(0)')
    for b in range(11):
        for v in range(2): a(f'ds_read_b64_tr_b16 {vr(128+4*b+2*v,2,"a")}, v{vTr} offset:{b*1024+v*512}')
    a(f'''
    s_waitcnt lgkmcnt(0)
    s_cmp_lg_u32 s{sW}, 3
    s_cbranch_scc1 Lt3_nz
    ''')
    for r in range(4): a(f'v_accvgpr_write_b32 a{128+r}, 0')
    a(f'''
    Lt3_nz:
    s_sub_u32 s{sTau}, s{sGrp}, 1
    v_and_b32 v{vFl}, 7, v{vLane}
    v_lshlrev_b32 v{vFl}, 2, v{vFl}
    s_lshl_b32 s{sA}, s{sW}, 5
    v_add_u32 v{vFl}, s{sA}, v{vFl}
    s_mul_i32 s{sA}, s{sW}, 3072
    v_add_u32 v{vRs}, s{sA}, v{vLin}
    v_lshlrev_b32 v{vOo}, 10, v{vN}
    v_lshl_add_u32 v{vOo}, v{vG}, 3, v{vOo}
    s_lshl_b32 s{sA}, s{sH}, 5
    v_add_u32 v{vOo}, s{sA}, v{vOo}
    ''')
    a(f'v_add_u32 v1, {WS_FL+FL_G}, v{vLin}\ns_cmp_lg_u32 s{sW}, 0\ns_cbranch_scc1 Lt3_w_b')
    poll(a, 'Lt3_w', f'global_load_dwordx4 {vr(HB,4)}, v1, {sp(sWs)} sc1\nglobal_load_dwordx4 {vr(HB+4,4)}, v1, {sp(sWs)} offset:352 sc1',
         '\n'.join([f'v_and_b32 v{HB}, v{HB}, v{HB+i}' for i in range(1,8)]) + f'\nv_cmp_ne_u32 vcc, 0x01010101, v{HB}', 64)
    a('s_barrier')
    C.tl(a, 4, 1, f's{sGrp}')
    a.label('Lt3_tile')
    a(f'''
    s_mul_i32 s{sA}, s{sTau}, {ACT_T}
    s_add_u32 s{sA}, s{sA}, {WS_ACT+4096}
    s_lshl_b32 s{sB}, s{sW}, 15
    s_add_u32 s{sB}, s{sB}, s{sA}
    s_add_u32 s{sAo}, s{sWs}, s{sB}
    s_addc_u32 s{sAo+1}, s{sWs+1}, 0
    s_lshl_b32 s{sB}, s{sRb}, 10
    s_add_u32 s{sB}, s{sB}, s{sA}
    s_add_u32 s{sB}, s{sB}, {128*1024}
    s_add_u32 s{sAh}, s{sWs}, s{sB}
    s_addc_u32 s{sAh+1}, s{sWs+1}, 0
    s_lshl_b32 s{sA}, s{sTau}, 14
    s_add_u32 s{sXa}, s{sX}, s{sA}
    s_addc_u32 s{sXa+1}, s{sX+1}, 0
    s_add_u32 s{sOo}, s{sOut}, s{sA}
    s_addc_u32 s{sOo+1}, s{sOut+1}, 0
    s_lshr_b32 s{sA}, s{sTau}, 1
    s_lshl_b32 s{sA}, s{sA}, 7
    s_add_u32 s{sA}, s{sA}, {WS_F2}
    s_add_u32 s{sF2}, s{sWs}, s{sA}
    s_addc_u32 s{sF2+1}, s{sWs+1}, 0
    ''')
    for k in range(4): a(f'global_load_dwordx4 {vr(XB+4*k,4)}, v{vXo}, {sp(sXa)} offset:{64*k}')
    for b in range(11):
        if b == 8: a(f's_add_u32 s{sAh}, s{sAh}, 8192\ns_addc_u32 s{sAh+1}, s{sAh+1}, 0')
        a(f'global_load_dwordx4 {vr(HB+4*b,4)}, v{vLin}, {sp(sAh)} offset:{(b%8)*1024-4096} sc1')
    a(f'''
    s_mov_b32 s{sSpin}, 0
    Lt3_p:
    global_load_dword v2, v{vFl}, {sp(sF2)} sc1
    s_add_u32 s{sSpin}, s{sSpin}, 1
    s_cmp_gt_u32 s{sSpin}, {WSPIN}
    s_cbranch_scc1 Lt3_go
    s_waitcnt vmcnt(0)
    v_cmp_ne_u32 vcc, 1, v2
    s_cbranch_vccz Lt3_go
    s_sleep 4
    s_branch Lt3_p
    Lt3_go:
    s_waitcnt vmcnt(0)
    ''')
    a.nvm = 0; tg = []
    for b in range(32):
        if b and b % 8 == 0: a(f's_add_u32 s{sAo}, s{sAo}, 8192\ns_addc_u32 s{sAo+1}, s{sAo+1}, 0')
        tg.append(a(f'global_load_dwordx4 {vr(OB+4*b,4)}, v{vLin}, {sp(sAo)} offset:{(b%8)*1024-4096} sc1'))
    for k in range(4): a(f'{MF} {vr(AC+8,4)}, {vr(GW+4*k,4)}, {vr(XB+4*k,4)}, {vr(AC+8,4) if k else 0}')
    for b in range(11): a(f'{MF} {vr(AC+4,4)}, {vr(128+4*b,4,"a")}, {vr(HB+4*b,4)}, {vr(AC+4,4) if b else 0}')
    for b in range(32):
        a.wvm(tg[b])
        a(f'{MF} {vr(AC,4)}, {vr(4*b,4,"a")}, {vr(OB+4*b,4)}, {vr(AC,4) if b else 0}')
    a(f'''
    ds_write_b128 v{vRs}, {vr(AC+4,4)} offset:1024
    ds_write_b128 v{vRs}, {vr(AC+8,4)} offset:2048
    ds_write_b128 v{vRs}, {vr(AC,4)}
    s_waitcnt lgkmcnt(0)
    s_barrier
    s_cmp_lg_u32 s{sW}, 0
    s_cbranch_scc1 Lt3_nx
    ''')
    for w in range(1,4):
        for j in range(3): a(f'ds_read_b128 {vr(HB+12*w+4*j,4)}, v{vRs} offset:{3072*w+1024*j}')
    a('s_waitcnt lgkmcnt(0)')
    for w in range(1,4):
        for r in range(9): a(f'v_add_f32 v{AC+r}, v{AC+r}, v{HB+12*w+r}')
    g = AC+8
    a(f'''
    v_mul_f32 v{g}, {f32(-math.log2(math.e))}, v{g}
    v_exp_f32 v{g}, v{g}
    v_add_f32 v{g}, 1.0, v{g}
    v_rcp_f32 v{g}, v{g}
    v_sub_f32 v{g+1}, 1.0, v{g}
    ''')
    for r in range(4): a(f'v_mul_f32 v{AC+r}, v{AC+r}, v{g}\nv_fmac_f32 v{AC+r}, v{AC+4+r}, v{g+1}')
    a(f'''
    v_cvt_pk_bf16_f32 v{AC}, v{AC}, v{AC+1}
    v_cvt_pk_bf16_f32 v{AC+1}, v{AC+2}, v{AC+3}
    global_store_dwordx2 v{vOo}, {vr(AC,2)}, {sp(sOo)}
    Lt3_nx:
    v_xor_b32 v{vRs}, 0x4000, v{vRs}
    s_add_u32 s{sTau}, s{sTau}, 4
    s_cmp_lt_u32 s{sTau}, 128
    s_cbranch_scc1 Lt3_tile
    ''')

def build(name=NAME, **kw):
    a = Asm()
    a.raw(khead(name))
    a(f'''
    s_cmp_ge_u32 s2, 256
    s_cbranch_scc1 L_done
    s_load_dwordx2 {sp(sDbg)}, s[0:1], 104
    s_load_dwordx2 {sp(sMem)}, s[0:1], 8
    s_load_dwordx4 s[8:11], s[0:1], 24
    s_load_dwordx2 {sp(sWq)}, s[0:1], 16
    s_load_dwordx2 {sp(sWo)}, s[0:1], 40
    s_load_dwordx2 {sp(sWs)}, s[0:1], 112
    s_load_dwordx2 {sp(sX)}, s[0:1], 0
    s_load_dwordx8 s[32:39], s[0:1], 64
    s_load_dwordx2 {sp(sOut)}, s[0:1], 96
    s_getreg_b32 s{sXcc}, hwreg(HW_REG_XCC_ID)
    s_and_b32 s{sXcc}, s{sXcc}, 7
    v_lshrrev_b32 v4, 6, v0
    v_mov_b32 v5, 0
    v_readfirstlane_b32 s{sW}, v4
    s_mov_b32 s{sGrp}, s{sXcc}
    s_lshr_b32 s{sH}, s2, 3
    s_mov_b32 s{sVer}, 0
    s_lshl_b32 s{sA}, s{sGrp}, 2
    s_lshl_b32 s{sB}, 1, s{sH}
    v_mov_b32 v{vCl+2}, s{sA}
    v_mov_b32 v{vCl+3}, s{sB}
    s_waitcnt lgkmcnt(0)
    s_cmp_lg_u32 s{sW}, 0
    s_cbranch_scc1 L_role
    s_mov_b64 exec, 1
    global_atomic_or v{vCl}, v{vCl+2}, v{vCl+3}, {sp(sDbg)} sc0 sc1
    s_mov_b64 exec, -1
    L_role:
    s_cmp_gt_u32 s{sGrp}, 7
    s_cbranch_scc1 L_done
    ''')
    C.tl(a, 0, 1, f's{sGrp}')
    a(f's_cmp_lg_u32 s{sGrp}, 0\ns_cbranch_scc1 L_work')
    C.chain(a, 'c', mega=True, **kw)
    a('s_endpgm')
    a.label('L_work')
    t1(a)
    a(f's_cmp_lt_u32 s{sGrp}, 5\ns_cbranch_scc1 L_t3')
    t2(a)
    C.tl(a, 5, 1, f's{sGrp}')
    a('s_endpgm')
    a.label('L_t3')
    t3(a)
    C.tl(a, 5, 1, f's{sGrp}')
    a.label('L_done')
    a('s_endpgm')
    assert a.check_branches() == 0
    return a

if __name__ == '__main__':
    import sys
    kw = eval(sys.argv[2]) if len(sys.argv) > 2 else {}
    C.TL = kw.pop('tl', False)
    X.update(kw.pop('x', {}))
    ref = open('gated_mix__memory_aug_recurrent_mem_tr__glu_gated_bilinear__prompt.s.ref').read().split('\n')
    head = [l for l in ref if l.startswith(';') and '@launch' not in l]
    out = '\n'.join(head) + '\n; @launch grid=(256,1,1) block=(256,1,1) lds=163840\n'
    out += '.amdgcn_target "amdgcn-amd-amdhsa--gfx950"\n.text\n' + build(**kw).text()
    out += '.section .rodata,"a"\n' + kdesc(NAME)
    open(sys.argv[1], 'w').write(out)
```

```python
from asmlib import *
import struct, math
WS_KV = 0; WS_QX = 32<<20; WS_KVM = 48<<20; WS_RA = 60<<20; WS_RM = 61<<20; WS_PROF = 62<<20
RA_SLOT = 128*2048; RM_SLOT = 8192
SLAB = 131072
def f32(x): return struct.unpack('<I', struct.pack('<f', x))[0]
QSCALE = f32(128**-0.5 * math.log2(math.e))

M=0; QV=32; KA=40; KX=48; XO=40; VX=56; S=64; T=96
vIdx,vLin,vSo,vS,vXw,vXr,vPst,vMst,vLw,vOw,vM0,vM1,HK,_,HV,_2 = range(112,128)
sMem,sWq,sWk,sWv,sWo,sDbg,sWs = 4,6,8,10,12,14,16
sH,sW,sT,sSpin = 18,19,20,21
sTmp=22; sLb=24; sA=25; sB=26; sC=27
sKV=30; sKVM=32; sSt0=34; sSt1=36; sAld=38; sArs=40; sMld=42; sMst=44
sRA=46; sRAo=48; sRMl=50; sRMs=52
sB1=54; sSel=56; sPm=64; sPub=66; sM0kv=68; sQc=69
sFl=28; sXcc=3; sFm=100; sRdy=86; sVer=87; sFK=84; sGot=88; sNx=89
WS_FL = 63<<20; FL_K = 8192; FL_G = 16384; FL_P = 20480
ROLE_LDS = 163832
VERIFY = None
sP=70
SPIN=200000
def sp(x): return f's[{x}:{x+1}]'

LDS_BLK = [('q',0),('q',1),('k',0),('q',7),('k',2),('k',7),('o',6),('o',7)]
KVS = 5120
L_KV = SLAB+8192; L_MQ = SLAB; L_X = SLAB+28672; L_O = L_MQ
REG_BLK = [(m,i) for m in 'qkvo' for i in range(8) if (m,i) not in LDS_BLK]
def dest(b):
    i = REG_BLK.index(b)
    return ('a', 16*i) if i < 16 else ('v', 128 + 16*(i-16))

WS_TL = (62<<20) + 65536
TL = False
def tl(a, i, v1, role_hi):
    if not TL: return
    a(f"""
    s_memrealtime s[98:99]
    s_memtime s[90:91]
    s_lshl_b32 s97, {role_hi}, 5
    s_add_u32 s97, s97, s{sH}
    s_lshl_b32 s97, s97, 2
    s_add_u32 s97, s97, s{sW}
    s_lshl_b32 s97, s97, 6
    s_add_u32 s97, s97, {WS_TL+4*i}
    v_mov_b32 v{v1}, s97
    s_waitcnt lgkmcnt(0)
    v_mov_b32 v{v1+1}, s98
    s_mov_b64 exec, 1
    global_store_dword v{v1}, v{v1+1}, {sp(sWs)}
    s_nop 1
    v_mov_b32 v{v1+1}, s90
    global_store_dword v{v1}, v{v1+1}, {sp(sWs)} offset:32
    s_mov_b64 exec, -1
    """)

def chain(a, tag, sc='', mega=False, prof=False, nsteps=64, preA=56, preB=44, gapA=48, gapB=48, nV1=5, posD=12, stamps=(), wnt=' nt', opt=(), tsc=' sc1', tdist=1, vp='d0@P0 d1@P0 d2@A3 d3@Q0 rm@Q2 tc@Q3 r0@Q4 r1@Q8 kv@K2 fl@Q5'):
    L = lambda x: f'L{tag}_{x}'
    DIR = True
    stc = (' ' + sc) if sc else ''
    LE = L('end')
    staged = {}
    def B(m, i, u):
        if (m,i) in staged: return vr(staged[(m,i)] + 8*u, 8)
        k, b = dest((m,i)); return vr(b + 8*u, 8, k)
    def SM(acc, A, m, i, u): a(f'v_smfmac_f32_16x16x64_bf16 {vr(acc,4)}, {vr(A,4)}, {B(m,i,u)}, v{vIdx}')
    def stg(blk, r):
        slot = LDS_BLK.index(blk); staged[blk] = r
        return [f'ds_read_b128 {vr(r+4*i,4)}, v{vLw} offset:{slot*4096+i*1024}' for i in range(4)]
    def stamp(i):
        if prof and i in stamps: a(f's_memtime {sp(sP+2*stamps.index(i))}')

    lane,n_,g_,t1,t2,t3 = T,T+1,T+2,T+3,T+4,T+5
    vWa, vOa = T+8, T+9
    vTr = T+10
    vL4, vFd, vFk = T+6, T+7, KX
    vTo = KX+2
    a(f'''
    v_and_b32 v{lane}, 63, v0
    v_and_b32 v{n_}, 15, v0
    v_lshrrev_b32 v{g_}, 4, v{lane}
    v_lshlrev_b32 v{vLin}, 4, v{lane}
    s_lshl_b32 s{sLb}, s{sW}, 15
    s_mul_i32 s{sA}, s{sW}, {KVS}
    s_add_u32 s{sM0kv}, s{sA}, {L_KV}
    v_add_u32 v{vLw}, s{sLb}, v{vLin}
    v_add_u32 v{vSo}, s{sM0kv}, v{vLin}
    v_add_u32 v{vS}, {L_KV+4096}, v{vLin}
    ; DMA lane offsets: r=(l/4)%4, gb=l/16, cc=(l%4)^(2*gb0)
    v_and_b32 v{t1}, 1, v{g_}
    v_lshlrev_b32 v{t2}, 1, v{t1}
    v_xor_b32 v{t2}, v{t2}, v{lane}
    v_and_b32 v{t2}, 3, v{t2}
    v_lshlrev_b32 v{t2}, 4, v{t2}          ; cc*16
    v_lshrrev_b32 v{t3}, 1, v{g_}          ; gb1
    ; qkv rows: 16*(r&1)+2*(r>>1)+4*gb1+gb0
    v_lshl_add_u32 v{vWa}, v{t3}, 2, v{t1}
    v_and_b32 v{vTr}, 4, v{lane}
    v_lshl_add_u32 v{vWa}, v{vTr}, 2, v{vWa}
    v_and_b32 v{vTr}, 8, v{lane}
    v_lshrrev_b32 v{vTr}, 2, v{vTr}
    v_add_u32 v{vWa}, v{vWa}, v{vTr}
    v_lshl_add_u32 v{vWa}, v{vWa}, 13, v{t2}
    ; wo rows: 16*gb0+4*gb1+bit3 ; chunk = (l%8)^(4*gb0)
    v_lshlrev_b32 v{vOa}, 4, v{t1}
    v_lshl_add_u32 v{vOa}, v{t3}, 2, v{vOa}
    v_bfe_u32 v{vTr}, v{lane}, 3, 1
    v_add_u32 v{vOa}, v{vOa}, v{vTr}
    v_lshlrev_b32 v{vTr}, 2, v{t1}
    v_xor_b32 v{vTr}, v{vTr}, v{lane}
    v_and_b32 v{vTr}, 7, v{vTr}
    v_lshlrev_b32 v{vTr}, 4, v{vTr}
    v_lshl_add_u32 v{vOa}, v{vOa}, 10, v{vTr}
    s_lshl_b32 s{sA}, s{sH}, 8
    s_lshl_b32 s{sB}, s{sW}, 6
    s_add_u32 s{sA}, s{sA}, s{sB}
    v_add_u32 v{vWa}, s{sA}, v{vWa}
    s_lshl_b32 s{sA}, s{sH}, 17
    s_lshl_b32 s{sB}, s{sW}, 8
    s_add_u32 s{sA}, s{sA}, s{sB}
    v_add_u32 v{vOa}, s{sA}, v{vOa}
    ''')
    order = REG_BLK + LDS_BLK
    def dma(bi):
        m, i = order[bi]; slot = bi % 8; tg = None
        if m != 'o':
            base = {'q': sWq, 'k': sWk, 'v': sWv}[m]
            a(f's_xor_b32 s{sA}, s{sW}, {i//2}\ns_lshl_b32 s{sA}, s{sA}, 20')
        else:
            a(f's_add_u32 s{sA}, s{sW}, {i//2}\ns_and_b32 s{sA}, s{sA}, 3\ns_lshl_b32 s{sA}, s{sA}, 15')
        for J in range(4):
            if m != 'o':
                off = (64*(i%2) + 32*(J&1) + 8*(J>>1))*8192
                a(f's_add_u32 s{sB}, s{sA}, {off}\ns_add_u32 s{sTmp}, s{base}, s{sB}\ns_addc_u32 s{sTmp+1}, s{base+1}, 0')
                va = vWa
            else:
                off = (i%2)*128 + (8*(J>>1) + 2*(J&1))*1024
                a(f's_add_u32 s{sB}, s{sA}, {off}\ns_add_u32 s{sTmp}, s{sWo}, s{sB}\ns_addc_u32 s{sTmp+1}, s{sWo+1}, 0')
                va = vOa
            a(f's_add_u32 m0, s{sLb}, {slot*4096+J*1024}')
            tg = a(f'global_load_lds_dwordx4 v{va}, {sp(sTmp)}{wnt}')
        return tg
    dtag = {}
    arr = 9
    def fkeval(v):
        a(f"""
        v_cmp_eq_u32 vcc, 0x01010101, v{v}
        s_or_b32 s{sTmp}, vcc_lo, 0xaaaaaaaa
        s_or_b32 s{sTmp+1}, vcc_hi, 0xaaaaaaaa
        s_ff0_i32_b64 s{sRdy}, {sp(sTmp)}
        s_min_u32 s{sRdy}, s{sRdy}, 100
        """)
    for bi in range(8): dtag[bi] = dma(bi)
    if mega: VERIFY(a, 'c', 32)
    a(f'''
    ; tr-read lane address: gb*256 + r'*64 + gb0*32 + c4*8  (u flips bit 5)
    v_lshlrev_b32 v{vTr}, 8, v{g_}
    v_lshrrev_b32 v{t2}, 2, v{n_}
    v_lshl_add_u32 v{vTr}, v{t2}, 6, v{vTr}
    v_lshl_add_u32 v{vTr}, v{t1}, 5, v{vTr}
    v_and_b32 v{t3}, 3, v{lane}
    v_lshl_add_u32 v{vTr}, v{t3}, 3, v{vTr}
    v_add_u32 v{vTr}, s{sLb}, v{vTr}
    v_xor_b32 v{vTr+1}, 32, v{vTr}
    ; wo tr-read: gb*256 + bit2*128 + gb0*64 + bit3*32 + c4*8 (u flips bit 6)
    v_lshlrev_b32 v{vTo}, 8, v{g_}
    v_lshl_add_u32 v{vTo}, v{t1}, 6, v{vTo}
    v_lshl_add_u32 v{vTo}, v{t3}, 3, v{vTo}
    v_and_b32 v{vTo+1}, 4, v{lane}
    v_lshl_add_u32 v{vTo}, v{vTo+1}, 5, v{vTo}
    v_and_b32 v{vTo+1}, 8, v{lane}
    v_lshl_add_u32 v{vTo}, v{vTo+1}, 2, v{vTo}
    v_add_u32 v{vTo}, s{sLb}, v{vTo}
    v_xor_b32 v{vTo+1}, 64, v{vTo}
    v_xor_b32 v{vXw}, v{g_}, v{t2}
    v_lshlrev_b32 v{vXw}, 3, v{vXw}
    v_lshl_add_u32 v{vXw}, v{n_}, 5, v{vXw}
    s_lshl_b32 s{sA}, s{sW}, 10
    s_add_u32 s{sA}, s{sA}, {L_X}
    v_add_u32 v{vXw}, s{sA}, v{vXw}
    v_xor_b32 v{vXr}, v{t3}, v{g_}
    v_lshlrev_b32 v{vXr}, 3, v{vXr}
    v_lshl_add_u32 v{vXr}, v{t2}, 5, v{vXr}
    v_lshl_add_u32 v{vXr}, v{g_}, 7, v{vXr}
    v_add_u32 v{vXr}, {L_X}, v{vXr}
    v_lshl_add_u32 v{vPst}, v{t2}, 2, v{g_}
    v_lshlrev_b32 v{vPst}, 11, v{vPst}
    v_lshl_add_u32 v{vPst}, v{t3}, 4, v{vPst}
    s_lshl_b32 s{sA}, s{sW}, 16
    s_lshl_b32 s{sB}, s{sH}, 6
    s_add_u32 s{sA}, s{sA}, s{sB}
    v_add_u32 v{vPst}, s{sA}, v{vPst}
    ; publish: (c/2)*32 + p*16 + (c%2)*8 + (i/2)*4 ; c=g, p=bit2, i=lane%4
    v_lshrrev_b32 v{vMst}, 1, v{g_}
    v_lshlrev_b32 v{vMst}, 5, v{vMst}
    v_lshl_add_u32 v{vMst}, v{t1}, 3, v{vMst}
    v_and_b32 v{t2}, 4, v{lane}
    v_lshl_add_u32 v{vMst}, v{t2}, 2, v{vMst}
    v_and_b32 v{t2}, 2, v{lane}
    v_lshl_add_u32 v{vMst}, v{t2}, 1, v{vMst}
    ; O write: L_O + w*512 + (g*8+t)*16 + half*8 ; t = 2*(n/4)+n%2
    v_lshlrev_b32 v{vOw}, 7, v{g_}
    v_and_b32 v{t2}, 12, v{lane}
    v_lshl_add_u32 v{vOw}, v{t2}, 3, v{vOw}
    v_and_b32 v{t2}, 1, v{lane}
    v_lshl_add_u32 v{vOw}, v{t2}, 4, v{vOw}
    v_and_b32 v{t2}, 2, v{lane}
    v_lshl_add_u32 v{vOw}, v{t2}, 2, v{vOw}
    s_lshl_b32 s{sA}, s{sW}, 9
    s_add_u32 s{sA}, s{sA}, {L_O}
    v_add_u32 v{vOw}, s{sA}, v{vOw}
    s_mov_b32 s{sB1}, 0xcccccccc
    s_mov_b32 s{sB1+1}, 0xcccccccc
    s_mov_b32 s{sPm}, 0xf0f0f0f0
    s_mov_b32 s{sPm+1}, 0xf0f0f0f0
    s_mov_b32 s{sPub}, 0x00550055
    s_mov_b32 s{sPub+1}, 0x00550055
    s_mov_b32 s{sQc}, {QSCALE}
    v_mov_b32 v{t2}, 0x4444
    v_mov_b32 v{t3}, 0xeeee
    v_cndmask_b32 v{vIdx}, v{t2}, v{t3}, {sp(sB1)}
    v_cndmask_b32 v{vM0}, -1, 0, {sp(sB1)}
    v_cndmask_b32 v{vM1}, 0, -1, {sp(sB1)}
    ''')
    for i in range(4):
        a(f's_mov_b32 s{sSel+2*i}, {0x00110011 << i}\ns_mov_b32 s{sSel+2*i+1}, {0x00110011 << i}')
    a(f'''
    s_lshl_b32 s{sA}, s{sH}, 2
    s_add_u32 s{sA}, s{sA}, s{sW}
    s_add_u32 s{sRA}, s{sWs}, {WS_RA}
    s_addc_u32 s{sRA+1}, s{sWs+1}, 0
    s_lshl_b32 s{sB}, s{sA}, 11
    s_add_u32 s{sRAo}, s{sRA}, s{sB}
    s_addc_u32 s{sRAo+1}, s{sRA+1}, 0
    s_lshl_b32 s{sB}, s{sA}, 6
    s_add_u32 s{sB}, s{sB}, {WS_RM}
    s_add_u32 s{sRMs}, s{sWs}, s{sB}
    s_addc_u32 s{sRMs+1}, s{sWs+1}, 0
    s_lshl_b32 s{sB}, s{sW}, 11
    s_add_u32 s{sB}, s{sB}, {WS_RM}
    s_add_u32 s{sRMl}, s{sWs}, s{sB}
    s_addc_u32 s{sRMl+1}, s{sWs+1}, 0
    s_lshl_b32 s{sB}, s{sA}, 12
    s_add_u32 s{sKV}, s{sWs}, s{sB}
    s_addc_u32 s{sKV+1}, s{sWs+1}, 0
    s_sub_u32 s{sKV}, s{sKV}, {32*16384 if DIR else 0}
    s_subb_u32 s{sKV+1}, s{sKV+1}, 0
    s_lshl_b32 s{sB}, s{sA}, 10
    s_add_u32 s{sB}, s{sB}, {WS_KVM-64*4096}
    s_add_u32 s{sKVM}, s{sWs}, s{sB}
    s_addc_u32 s{sKVM+1}, s{sWs+1}, 0
    s_lshl_b32 s{sB}, s{sH}, 7
    s_add_u32 s{sB}, s{sB}, {WS_FL+FL_P}
    s_add_u32 s{sFl}, s{sWs}, s{sB}
    s_addc_u32 s{sFl+1}, s{sWs+1}, 0
    s_lshl_b32 s{sB}, s{sH}, 8
    s_add_u32 s{sB}, s{sB}, {WS_FL+FL_K}
    s_add_u32 s{sFK}, s{sWs}, s{sB}
    s_addc_u32 s{sFK+1}, s{sWs+1}, 0
    s_mov_b32 s{sRdy}, {0 if mega else 100}
    s_mov_b32 s{sNx}, {32*16384*tdist}
    v_lshlrev_b32 v{vL4}, 2, v{lane}
    s_cmp_eq_u32 s{sW}, 0
    s_cselect_b32 s{sFm}, 1, 0
    s_mov_b32 s{sFm+1}, 0
    v_mov_b64 {vr(HK,2)}, 0
    v_mov_b64 {vr(HV,2)}, 0
    ; ring init (both slots)
    v_mov_b32 v{T+12}, -1
    v_mov_b32 v{T+13}, -1
    v_mov_b32 v{T+14}, -1
    v_mov_b32 v{T+15}, -1
    global_store_dwordx4 v{vLin}, {vr(T+12,4)}, {sp(sRAo)} sc1
    global_store_dwordx4 v{vLin}, {vr(T+12,4)}, {sp(sRAo)} offset:1024 sc1
    ; M(0) gather: lane(row: b0=t%2,b1=half,b3:2=t/2 ; ga): byte = t*1024 + (128w + 64s + 16(ea%4) + 4ga + 2half + ea/4)*2
    v_lshrrev_b32 v{t2}, 2, v{n_}
    v_lshlrev_b32 v{t2}, 11, v{t2}
    v_and_b32 v{t3}, 1, v{lane}
    v_lshl_add_u32 v{t2}, v{t3}, 10, v{t2}
    v_lshl_add_u32 v{t2}, v{g_}, 3, v{t2}
    v_and_b32 v{t3}, 2, v{lane}
    v_lshl_add_u32 v{t2}, v{t3}, 1, v{t2}
    s_lshl_b32 s{sA}, s{sW}, 8
    v_add_u32 v{t2}, s{sA}, v{t2}
    ''')
    for s_ in range(2):
        for ea in range(8):
            off = (64*s_ + 16*(ea%4) + ea//4)*2
            a(f'global_load_ushort v{S+8*s_+ea}, v{t2}, {sp(sMem)} offset:{off}')
    for bi in range(32):
        m, i = order[bi]; slot = bi % 8
        a.wvm(dtag[bi])
        if bi == 8:
            a(f"""
            s_lshl_b32 s{sA}, s{sH}, 2
            s_add_u32 s{sA}, s{sA}, s{sW}
            s_add_u32 s{sA}, s{sA}, 32
            v_mov_b32 v{t1}, s{sA}
            s_cmp_eq_u32 s{sXcc}, 0
            s_cselect_b32 s{sA}, 1, 3
            v_mov_b32 v{t3}, s{sA}
            s_mov_b64 exec, 1
            global_store_byte v{t1}, v{t3}, {sp(sDbg)} sc1
            s_mov_b64 exec, -1
            """)
            for r in range(8): a(f'v_lshl_or_b32 v{M+r}, v{S+2*r+1}, 16, v{S+2*r}')
        if bi == arr: a(f'global_load_dword v{vFd}, v{vL4}, {sp(sDbg)} sc1')
        if bi == arr + 8:
            msk = ((1 << (41 if mega else 40)) - 1) ^ 0xff
            a(f"""
            s_mov_b32 s{sSpin}, 0
            {L('tb')}:
            v_and_b32 v{t1}, 0x01010101, v{vFd}
            v_cmp_ne_u32 vcc, 0x01010101, v{t1}
            s_and_b32 s{sA}, vcc_lo, {msk & 0xffffffff}
            s_and_b32 s{sB}, vcc_hi, {msk >> 32}
            s_or_b32 s{sA}, s{sA}, s{sB}
            s_cbranch_scc0 {L('tbo')}
            s_sleep 4
            global_load_dword v{vFd}, v{vL4}, {sp(sDbg)} sc1
            s_add_u32 s{sSpin}, s{sSpin}, 1
            s_cmp_gt_u32 s{sSpin}, {SPIN}
            s_cbranch_scc1 {L('end')}
            s_waitcnt vmcnt(0)
            s_branch {L('tb')}
            {L('tbo')}:
            v_and_b32 v{t1}, 0x02020202, v{vFd}
            v_cmp_ne_u32 vcc, 0, v{t1}
            s_and_b32 s{sA}, vcc_lo, 0xffffff00
            s_and_b32 s{sB}, vcc_hi, 0xff
            s_or_b32 s{sXcc}, s{sA}, s{sB}
            """)
            a.nvm -= 1
        if mega and bi == 27: a(f'global_load_dword v{vFk}, v{vL4}, {sp(sFK)} sc1')
        if bi < 24: k, b = dest((m,i))
        else: k, b = 'v', S
        for u in range(2):
            for J in range(4):
                a(f'ds_read_b64_tr_b16 {vr(b+8*u+2*J,2,k)}, v{(vTo if m == "o" else vTr)+u} offset:{slot*4096+J*1024}')
        a('s_waitcnt lgkmcnt(0)')
        if bi + 8 < 32: dtag[bi+8] = dma(bi+8)
        if bi == 23: tl(a, 1, t1, 0)
        if bi >= 24:
            for u in range(2):
                for hf in range(2):
                    a(f'ds_write_b128 v{vLw}, {vr(S+8*u+4*hf,4)} offset:{slot*4096+u*2048+hf*1024}')
            a('s_waitcnt lgkmcnt(0)')
    tl(a, 2, t1, 0)
    if mega:
        a(f"""
        s_mov_b32 s{sSpin}, 0
        {L('kw')}:
        s_waitcnt vmcnt(0)
        """)
        fkeval(vFk)
        a(f"""
        s_cmp_lg_u32 s{sRdy}, 0
        s_cbranch_scc1 {L("kwd")}
        s_sleep 2
        global_load_dword v{vFk}, v{vL4}, {sp(sFK)} sc1
        s_add_u32 s{sSpin}, s{sSpin}, 1
        s_cmp_gt_u32 s{sSpin}, {SPIN}
        s_cbranch_scc1 {L('end')}
        s_branch {L("kw")}
        """)
        a.label(L('kwd'))
    a(f"""
    s_waitcnt vmcnt(0)
    s_mov_b32 s{sT}, 0
    s_mov_b32 s{sSpin}, 0
    """)
    tl(a, 3, t1, 0)
    if prof:
        for i in range(8): a(f's_mov_b32 s{sP+20+i}, 0')
        a(f's_memtime {sp(sP+28)}')
    def tstamp(idx):
        if 'ts' not in opt: return
        a(f"""
        s_memrealtime s[96:97]
        s_lshl_b32 s{sA}, s{sH}, 2
        s_add_u32 s{sA}, s{sA}, s{sW}
        s_lshl_b32 s{sA}, s{sA}, 6
        s_add_u32 s{sA}, s{sA}, {idx}
        s_lshl_b32 s{sA}, s{sA}, 2
        s_add_u32 s{sA}, s{sA}, {WS_PROF+131072}
        v_mov_b32 v{T}, s{sA}
        s_waitcnt lgkmcnt(0)
        v_mov_b32 v{T+1}, s96
        s_mov_b64 exec, 1
        global_store_dword v{T}, v{T+1}, {sp(sWs)}
        s_mov_b64 exec, -1
        """)
    tstamp(63)
    DPPM = 'row_mask:0xf bank_mask:0xf'
    QA = T+8; VA = QV; P2 = VX; S0 = S; S1 = S+16; K0 = M+16
    NEG = T+4; Sel = T+4; Dr = T+8
    def pre1():
        n0 = len(a.items)
        a(f"""
        s_and_b32 s{sA}, s{sT}, 1
        s_lshl_b32 s{sC}, s{sA}, 13
        s_add_u32 s{sMld}, s{sRMl}, s{sC}
        s_addc_u32 s{sMld+1}, s{sRMl+1}, 0
        s_xor_b32 s{sB}, s{sA}, 1
        """)
        if not DIR: a(f'ds_read_b128 {vr(KX,4)}, v{vSo}\nds_read_b128 {vr(KX+4,4)}, v{vSo} offset:1024')
        for x_ in stg(('k',0), K0): a(x_)
        for i in range(0,16,2): a(f'v_mov_b64 {vr(VA+i,2)}, 0')
        for i in range(0,8,2): a(f'v_mov_b64 {vr(QA+i,2)}, 0')
        return len(a.items) - n0
    def pre2():
        n0 = len(a.items)
        a(f"""
        s_lshl_b32 s{sC}, s{sB}, 13
        s_add_u32 s{sMst}, s{sRMs}, s{sC}
        s_addc_u32 s{sMst+1}, s{sRMs+1}, 0
        s_lshl_b32 s{sC}, s{sB}, 18
        s_add_u32 s{sArs}, s{sRAo}, s{sC}
        s_addc_u32 s{sArs+1}, s{sRAo+1}, 0
        s_lshl_b32 s{sC}, s{sA}, 18
        s_add_u32 s{sSt0}, s{sRA}, s{sC}
        s_addc_u32 s{sSt0+1}, s{sRA+1}, 0
        s_add_u32 s{sSt1}, s{sSt0}, 32768
        s_addc_u32 s{sSt1+1}, s{sSt0+1}, 0
        s_add_u32 s{sAld}, s{sRAo}, s{sC}
        s_addc_u32 s{sAld+1}, s{sRAo+1}, 0
        s_add_u32 s{sKV}, s{sKV}, {32*16384}
        s_addc_u32 s{sKV+1}, s{sKV+1}, 0
        s_add_u32 s{sKVM}, s{sKVM}, {32*4096}
        s_addc_u32 s{sKVM+1}, s{sKVM+1}, 0
        s_mov_b32 m0, s{sM0kv}
        s_lshl_b32 s{sC}, s{sW}, 11
        s_add_u32 s{sC}, s{sC}, {L_MQ}
        v_add_u32 v{T+4}, s{sC}, v{vLin}
        s_lshl_b32 s{sC}, s{sW}, 10
        v_add_u32 v{T+3}, s{sC}, v{vXr}
        """)
        for i in range(1,4): a(f'v_xor_b32 v{T+i-1}, {i*2048}, v{T+4}')
        return len(a.items) - n0
    def ldM(r): a(f'global_load_dwordx4 {vr(r,4)}, v{vLin}, {sp(sMld)} sc1\nglobal_load_dwordx4 {vr(r+4,4)}, v{vLin}, {sp(sMld)} offset:1024 sc1')
    def ldA(r): a(f'global_load_dwordx4 {vr(r,4)}, v{vLin}, {sp(sAld)} sc1\nglobal_load_dwordx4 {vr(r+4,4)}, v{vLin}, {sp(sAld)} offset:1024 sc1')
    def spin(): a(f's_add_u32 s{sSpin}, s{sSpin}, 1\ns_cmp_gt_u32 s{sSpin}, {SPIN}\ns_cbranch_scc1 {LE}')
    acc = {'q': QA, 'k': KA, 'v': VA}
    def P_(m, sg, u): SM(acc[m]+4*u, M+4*sg, m, sg, u)
    for x_ in stg(('q',0), S0) + stg(('q',1), S1): a(x_)
    for r in (0,2,4,6): a(f'v_min_u32 v{M+r}, -2, v{M+r}')
    pre1(); pre2()
    a('s_waitcnt lgkmcnt(0)')
    if mega: a(f's_cmp_lg_u32 s{sXcc}, 0\ns_cbranch_scc1 {L("s_try")}')
    a(f's_branch {L("try")}')
    staged0 = dict(staged)
    def loop(L, stc):
        staged.clear(); staged.update(staged0)
        dm = [f'global_load_lds_dwordx4 v{vLin}, {sp(sKV)} offset:{j*1024} sc1' for j in range(4)]
        if DIR: dm = [f'global_load_dwordx4 {vr(KX+4*j,4)}, v{vLin}, {sp(sKV)} offset:{j*1024} sc1' for j in range(4)]
        a.label(L('retry'))
        spin()
        a('s_waitcnt vmcnt(0)')
        for i in range(0,8,2): a(f'v_mov_b64 {vr(M+i,2)}, {vr(P2+i,2)}')
        ldM(P2)
        for i in range(0,8,2): a(f'v_mov_b64 {vr(QA+i,2)}, 0')
        a(f's_branch {L("try")}')
        a.label(L('step'))
        n = pre1(); a.nops(preB - n - 5)
        ldM(M)
        n = pre2(); a.nops(gapB - n - 2)
        ldM(P2)
        a(f's_waitcnt vmcnt(2) lgkmcnt(0)')
        a.label(L('try'))
        a.nds = 0; a.nvm = 2; set2 = 2
        stamp('a0')
        ck = M+8
        a(f'ds_write_b128 v{T+4}, {vr(M,4)}\nds_write_b128 v{T+4}, {vr(M+4,4)} offset:1024')
        P_('q',0,0); a(f'v_max3_u32 v{ck}, v{M}, v{M+2}, v{M+4}')
        P_('q',0,1); a(f'v_max_u32 v{ck}, v{ck}, v{M+6}')
        P_('q',1,0); a(f'v_cmp_eq_u32 vcc, -1, v{ck}')
        P_('q',1,1); a(f's_cbranch_vccnz {L("retry")}')
        if 'rdw' in opt: rs = [f'global_store_dword v{vLin}, v{NEG}, {sp(sArs)} offset:{1024*i}{stc}' for i in range(2)]
        else: rs = [f'global_store_dwordx4 v{vLin}, {vr(NEG,4)}, {sp(sArs)} offset:{1024*i}{stc}' for i in range(2)]
        vops = dict(d0=dm[0], d1=dm[1], d2=dm[2], d3=dm[3], r0=rs[0], r1=rs[1],
                    kv=f'global_store_dwordx4 v{vLin}, {vr(HK,4)}, {sp(sKVM)} sc1',
                    fl=f's_mov_b64 exec, {sp(sFm)}\nglobal_store_dword v{vLin}, v{T}, {sp(sFl)} sc1\ns_mov_b64 exec, -1',
                    tc=f'global_load_lds_dword v{T+1}, {sp(sKV)}{tsc}',
                    rm=f'global_store_dword v{vMst}, v{NEG}, {sp(sMst)}{stc}')
        vt = {}; st_ = {}
        def VM(slot):
            for x_ in vp.split():
                o, s_ = x_.split('@')
                if s_ != slot: continue
                if o in ('d2','d3') and not DIR: a.wds(st_['vx'])
                if o[0] == 'r': assert slot[0] in 'AQ' and slot != 'A0'
                if o == 'fl': assert slot[0] == 'A' and slot >= 'A2' or slot[0] == 'Q' and int(slot[1:]) <= 5
                if o == 'tc': assert slot not in ('P0','A0','A1','A2')
                if o == 'kv': assert slot[0] != 'K' or int(slot[1:]) < 9
                vt[o] = a(vops[o])
        P_('k',0,0); VM('P0'); a(f'v_mov_b64 {vr(NEG,2)}, -1\ns_waitcnt lgkmcnt(0)\ns_barrier')
        stamp('a1')
        mt = {}
        def rdM(sg): mt[sg] = a(f'ds_read_b128 {vr(M+4*sg,4)}, v{T+sg//2-1} offset:{1024*(sg%2)}')
        vq = [(sg,u) for sg in range(8) for u in (0,1)]
        def V_():
            sg, u = vq.pop(0); P_('v', sg, u)
        g1 = stg(('q',7), S0)
        rdM(2); rdM(3)
        P_('k',0,1); rdM(4); rdM(5); VM('A0'); a(f'v_mov_b64 {vr(NEG+2,2)}, -1')
        P_('k',1,0); rdM(6); VM('A1'); a(f'v_mov_b32 v{T}, s{sT}')
        P_('k',1,1); rdM(7); VM('A2'); a(f'v_lshl_add_u32 v{T+1}, v{vLin}, 2, s{sNx}')
        for i in range(4): V_(); tq7 = a(g1[i]); VM(f'A{3+i}')
        stamp('a2')
        Y = T+4; D0 = T+8; D1 = T+12
        def qcvt(u):
            q = QA+4*u
            return [f'v_add_f32 v{q}, v{q}, v{q+2}', f'v_add_f32 v{q+1}, v{q+1}, v{q+3}',
                    f'v_mul_f32 v{q}, s{sQc}, v{q}', f'v_mul_f32 v{q+1}, s{sQc}, v{q+1}',
                    f'v_cvt_pk_bf16_f32 v{q+2}, v{q}, v{q+1}',
                    f'ds_write2_b32 v{vXw}, v{q+2}, v{q+2} offset0:{128*u} offset1:{128*u+1}',
                    f'ds_read_b64_tr_b16 {vr(Y+2*u,2)}, v{T+3} offset:{512*u}']
        f0 = qcvt(0); f1 = qcvt(1)
        a.wds(mt[2])
        g2 = stg(('k',2), S1); g3 = None
        qseq = [(s_,0) for s_ in range(2,8)] + [(7,1)] + [(s_,1) for s_ in range(2,7)]
        for i, (sg, u) in enumerate(qseq):
            P_('q', sg, u)
            if i == 0 and not DIR: a.wvm(set2); a(f'ds_read_b128 {vr(VX,4)}, v{vSo} offset:2048')
            if i == 1 and not DIR: st_['vx'] = a(f'ds_read_b128 {vr(VX+4,4)}, v{vSo} offset:3072')
            if 2 <= i <= 5: tk2 = a(g2[i-2])
            if i < 4: a.wds(mt[sg+1])
            if i == 4: a.wds(tq7)
            if i == 6: g3 = stg(('k',7), S0)
            if 7 <= i <= 10: tk7 = a(g3[i-7])
            VM(f'Q{i}')
            if i == 11: a.wds(tk2)
            if 1 <= i <= 4: a(f'v_mov_b64 {vr(M+2*(i-1),2)}, 0')
            if i == 6: a(f'v_and_b32 v{T}, -33, v{vSo}')
            if i >= 7: a(f0[i-7])
        stamp('b0')
        kseq = [(2,0),(2,1)] + [(s_,0) for s_ in range(3,8)] + [(7,1)] + [(s_,1) for s_ in range(3,7)]
        k0c = [f'v_add_f32 v{KA}, v{KA}, v{KA+2}', f'v_add_f32 v{KA+1}, v{KA+1}, v{KA+3}', f'v_cvt_pk_bf16_f32 v{HK}, v{KA}, v{KA+1}', f'ds_write_b32 v{vXw}, v{HK} offset:4']
        def DD():
            a.wds(yt)
            if DIR: a.wvm(max(vt['d0'], vt['d1']))
            a(f'v_mfma_f32_16x16x32_bf16 {vr(D0,4)}, {vr(KX,4)}, {vr(Y,4)}, 0')
            a(f'v_mfma_f32_16x16x32_bf16 {vr(D1,4)}, {vr(KX+4,4)}, {vr(Y,4)}, 0')
        dw = [f'ds_write_b128 v{T}, {vr(D0,4)} offset:4096', f'ds_write_b128 v{T}, {vr(D1,4)} offset:4128']
        g4 = g5 = None
        for i, (sg, u) in enumerate(kseq):
            P_('k', sg, u)
            VM(f'K{i}')
            if i == 0: a(f0[5]); a(f0[6])
            if i == 1: a(f1[0]); a(f1[1]); g4 = stg(('o',6), S1)
            if i == 2: a(g4[0]); a(f1[2]); a(f1[3]); a(f1[4])
            if i == 3: a(f1[5]); yt = a(f1[6])
            if 4 <= i <= 6: a(g4[i-3])
            if i == 5: a.wds(tk7)
            if i == 7: g5 = stg(('o',7), S0)
            if 7 <= i <= 10: a(g5[i-7])
            if 8 <= i <= 10: a(k0c[i-8])
            if i == 11: a(k0c[3])
            if i + 1 == posD: DD()
            if i == posD + 1: a(dw.pop(0)); a(dw.pop(0))
        stamp('b1')
        k1c = [f'v_add_f32 v{KA+4}, v{KA+4}, v{KA+6}', f'v_add_f32 v{KA+5}, v{KA+5}, v{KA+7}', f'v_cvt_pk_bf16_f32 v{HK+1}, v{KA+4}, v{KA+5}', f'ds_write_b32 v{vXw}, v{HK+1} offset:516']
        nv = nV1
        if posD < 12:
            V_(); nv -= 1
            if posD < 11: V_(); nv -= 1
        for x_ in k1c: a(x_)
        for x_ in dw: a(x_)
        for i in range(nv): V_()
        a('s_waitcnt lgkmcnt(0)\ns_barrier')
        stamp('c0')
        xr = [f'ds_read_b64_tr_b16 {vr(XO+4*i+2*v,2)}, v{vXr} offset:{i*1024+v*512}' for i in range(4) for v in range(2)]
        sr = [f'ds_read_b128 {vr(T+4*i,4)}, v{vS} offset:{i*KVS}' for i in range(4)]
        rd = xr[:4] + sr[:2] + xr[4:] + sr[2:]; tg = {}
        zq = [f'v_mov_b64 {vr(M+8+2*i,2)}, 0' for i in range(4)]
        rdiv = 2 if len(vq) > 6 else 3
        for i, x_ in enumerate(rd):
            tg[x_] = a(x_)
            if i % rdiv == rdiv-1 and vq: V_()
        while vq: V_()
        Dm = M+16; vOr = M+20
        vf = [f'v_add_f32 v{VA}, v{VA}, v{VA+2}', f'v_add_f32 v{VA+1}, v{VA+1}, v{VA+3}', f'v_add_f32 v{VA+4}, v{VA+4}, v{VA+6}', f'v_add_f32 v{VA+5}, v{VA+5}, v{VA+7}',
              f'v_cvt_pk_bf16_f32 v{HV}, v{VA}, v{VA+1}', f'v_cvt_pk_bf16_f32 v{HV+1}, v{VA+4}, v{VA+5}']
        ad = [f'v_add_f32 v{T+r}, v{T+r}, v{T+4+r}' for r in range(4)] + [f'v_add_f32 v{T+8+r}, v{T+8+r}, v{T+12+r}' for r in range(4)] + \
             [f'v_add_f32 v{T+r}, v{T+r}, v{T+8+r}' for r in range(4)]
        def SMM(i): a(f'v_mfma_f32_16x16x32_bf16 {vr(Dm,4)}, {vr(XO+4*i,4)}, {vr(XO+4*i,4)}, {vr(Dm,4) if i else 0}')
        a.wds(tg[xr[1]]); SMM(0); a.wds(tg[sr[1]])
        a(ad[0]); a(ad[1]); SMM(1); a.wds(tg[xr[5]]); a(ad[2]); a(ad[3])
        SMM(2); a.wds(tg[sr[3]]); a(ad[4]); a(ad[5])
        SMM(3); a(ad[6]); a(ad[7])
        for i in range(8,12): a(ad[i])
        stamp('c1')
        mx = T+4; tm = T+5; ma = T+6
        a(f'v_max3_f32 v{mx}, v{T}, v{T+1}, v{T+2}')
        a(f'v_max_f32 v{ma}, v{Dm+2}, v{Dm+3}')
        a(f'v_cndmask_b32 v{ma}, v{ma}, v{T+3}, {sp(sB1)}')
        a(f'v_max3_f32 v{mx}, v{mx}, v{T+3}, v{ma}')
        a(vf[0]); a(vf[1])
        a(f'v_max_f32_dpp v{tm}, v{mx}, v{mx} quad_perm:[2,3,0,1] {DPPM}')
        a(f'v_max_f32_dpp v{mx}, v{mx}, v{mx} quad_perm:[2,3,0,1] {DPPM}')
        a(vf[2]); a(vf[3])
        a(f'v_permlane16_swap_b32 v{mx}, v{tm}\nv_max_f32 v{ma}, v{mx}, v{tm}\nv_max_f32 v{mx}, v{mx}, v{tm}')
        a(vf[4]); a(vf[5])
        a(f'v_permlane32_swap_b32 v{mx}, v{ma}\nv_max_f32 v{mx}, v{mx}, v{ma}')
        for r in range(4): a(f'v_sub_f32 v{T+r}, v{T+r}, v{mx}')
        for r in range(4): a(f'v_exp_f32 v{T+r}, v{T+r}')
        stamp('c2')
        if DIR: a.wvm(max(vt['d2'], vt['d3']))
        a(f'v_sub_f32_dpp v{T+6}, v{Dm+2}, v{mx} quad_perm:[0,1,0,1] {DPPM}')
        P = T+8; Pm = T+10; Ba = XO; Bb = XO+4; Dd = XO+8; Po = T+12
        a(f"""
        v_cvt_pk_bf16_f32 v{P}, v{T}, v{T+1}
        v_cvt_pk_bf16_f32 v{P+1}, v{T+2}, v{T+3}
        v_sub_f32_dpp v{T+7}, v{Dm+3}, v{mx} quad_perm:[0,1,0,1] {DPPM}
        v_and_b32 v{Ba}, v{P}, v{vM0}
        v_and_b32 v{Ba+1}, v{P+1}, v{vM0}
        v_and_b32_dpp v{Ba+2}, v{P}, v{vM0} quad_perm:[2,3,0,1] {DPPM}
        v_and_b32_dpp v{Ba+3}, v{P+1}, v{vM0} quad_perm:[2,3,0,1] {DPPM}
        v_exp_f32 v{T+6}, v{T+6}
        v_mfma_f32_16x16x32_bf16 {vr(Po,4)}, {vr(VX,4)}, {vr(Ba,4)}, 0
        v_exp_f32 v{T+7}, v{T+7}
        v_and_b32_dpp v{Bb}, v{P}, v{vM1} quad_perm:[2,3,0,1] {DPPM}
        v_and_b32_dpp v{Bb+1}, v{P+1}, v{vM1} quad_perm:[2,3,0,1] {DPPM}
        v_and_b32 v{Bb+2}, v{P}, v{vM1}
        v_and_b32 v{Bb+3}, v{P+1}, v{vM1}
        v_cvt_pk_bf16_f32 v{Pm}, v{T+6}, v{T+7}
        v_add_f32 v{T}, v{T}, v{T+1}
        v_mfma_f32_16x16x32_bf16 {vr(Po,4)}, {vr(VX+4,4)}, {vr(Bb,4)}, {vr(Po,4)}
        s_cmp_eq_u32 s{sT}, {nsteps-1}
        v_and_b32 v{Dd}, v{Pm}, v{vM0}
        v_and_b32 v{Dd+1}, v{Pm}, v{vM1}
        v_add_f32 v{T+6}, v{T+6}, v{T+7}
        v_add_f32 v{T+2}, v{T+2}, v{T+3}
        v_mfma_f32_16x16x16_bf16 {vr(Po,4)}, {vr(HV,2)}, {vr(Dd,2)}, {vr(Po,4)}
        s_cbranch_scc1 {LE}
        v_add_f32 v{T}, v{T}, v{T+2}
        v_fmac_f32 v{T}, 0.5, v{T+6}
        """)
        fill = zq + [f'v_and_b32 v{vOr}, -9, v{vOw}']
        def F(n):
            for _ in range(n):
                if fill: a(fill.pop(0))
        F(2)
        a(f'v_add_f32_dpp v{T+1}, v{T}, v{T} quad_perm:[2,3,0,1] {DPPM}\nv_add_f32_dpp v{T}, v{T}, v{T} quad_perm:[2,3,0,1] {DPPM}')
        F(2)
        a(f'v_permlane16_swap_b32 v{T}, v{T+1}\nv_add_f32 v{T+2}, v{T}, v{T+1}\nv_add_f32 v{T}, v{T}, v{T+1}')
        F(2)
        a(f'v_permlane32_swap_b32 v{T}, v{T+2}\nv_add_f32 v{T}, v{T}, v{T+2}\nv_rcp_f32 v{T}, v{T}')
        F(9)
        O = XO
        a(f"""
        v_mul_f32 v{Po}, v{Po}, v{T}
        v_mul_f32 v{Po+1}, v{Po+1}, v{T}
        v_mul_f32 v{Po+2}, v{Po+2}, v{T}
        v_mul_f32 v{Po+3}, v{Po+3}, v{T}
        v_cvt_pk_bf16_f32 v{Po}, v{Po}, v{Po+1}
        v_cvt_pk_bf16_f32 v{Po+1}, v{Po+2}, v{Po+3}
        """)
        ow = a(f'ds_write2st64_b64 v{vOw}, {vr(Po,2)}, {vr(Po,2)} offset0:0 offset1:4')
        ot = [a(f'ds_read_b128 {vr(O,4)}, v{vOr}')]
        stamp('c3')
        a.wvm(vt['rm'])
        a.wds(ow); a('s_barrier')
        stamp('d0')
        for k_ in range(1,4): ot.append(a(f'ds_read_b128 {vr(O+4*k_,4)}, v{vOr} offset:{512*k_}'))
        PS = VA
        def W_(G, ki): SM(M+4*G, O+4*ki, 'o', 2*ki+G//2, G%2)
        def cv(G): return [f'v_cvt_pk_bf16_f32 v{PS+2*G+h_}, v{M+4*G+2*h_}, v{M+4*G+2*h_+1}' for h_ in range(2)]
        a.wds(ot[0])
        for G in range(4):
            W_(G, 0)
        a.wds(ot[1])
        stamp('d1')
        W_(0,1); W_(1,1); a.wds(ot[2]); W_(0,2); W_(1,2); a.wds(ot[3]); W_(0,3); W_(1,3)
        c0 = cv(0); c1 = cv(1); c2 = cv(2); c3 = cv(3)
        W_(2,1); a(c0[0])
        W_(2,2); a(c0[1]); a(c1[0])
        W_(2,3); a(c1[1]); a(f'v_min_u32 v{PS}, -2, v{PS}')
        W_(3,1); a(f'global_store_dwordx4 v{vPst}, {vr(PS,4)}, {sp(sSt0)}{stc}')
        W_(3,2); a(c2[0])
        W_(3,3); a(c2[1]); a(f'v_min_u32 v{PS+4}, -2, v{PS+4}')
        a(f'v_mov_b32 v{T+2}, 0x3f80\nv_mov_b32 v{T+3}, 0x3f800000')
        a(f'v_cndmask_b32 v{T+2}, v{T+2}, v{T+3}, {sp(sPm)}')
        a(c3[0]); a(c3[1])
        a(f'global_store_dwordx4 v{vPst}, {vr(PS+4,4)}, {sp(sSt1)}{stc}')
        stamp('h0')
        n0 = len(a.items)
        for x_ in stg(('q',0), S0) + stg(('q',1), S1): a(x_)
        for i in range(4): a(f'v_cndmask_b32 v{Sel+i}, 0, v{T+2}, {sp(sSel+2*i)}')
        a.nops(preA - (len(a.items) - n0))
        R1 = M+8; R2 = P2
        def redA(R):
            a(f"""
            s_waitcnt vmcnt(3)
            v_mfma_f32_16x16x32_bf16 {vr(Dr,4)}, {vr(R,4)}, {vr(Sel,4)}, 0
            s_waitcnt vmcnt(2)
            v_mfma_f32_16x16x32_bf16 {vr(Dr,4)}, {vr(R+4,4)}, {vr(Sel,4)}, {vr(Dr,4)}
            v_max_u32 v{T}, v{R}, v{R+4}
            v_cmp_eq_u32 vcc, -1, v{T}
            """)
        ldA(R1)
        a.nops(gapA - 2)
        a.label(L('pa'))
        ldA(R2)
        redA(R1)
        a(f's_cbranch_vccz {L("qa")}')
        ldA(R1); spin()
        redA(R2)
        a(f's_cbranch_vccnz {L("pa")}')
        a.label(L('qa'))
        stamp('h1')
        a(f"""
        v_permlane32_swap_b32 v{Dr}, v{Dr+2}
        v_permlane32_swap_b32 v{Dr+1}, v{Dr+3}
        v_add_f32 v{Dr}, v{Dr}, v{Dr+2}
        v_add_f32 v{Dr+1}, v{Dr+1}, v{Dr+3}
        v_permlane16_swap_b32 v{Dr}, v{Dr+1}
        v_add_f32 v{Dr}, v{Dr}, v{Dr+1}
        v_mov_b32_dpp v{Dr+1}, v{Dr} quad_perm:[1,0,3,2] {DPPM}
        v_cvt_pk_bf16_f32 v{Dr}, v{Dr}, v{Dr+1}
        s_mov_b64 exec, {sp(sPub)}
        v_min_u32 v{Dr}, -2, v{Dr}
        global_store_dword v{vMst}, v{Dr}, {sp(sMst)}{stc}
        """)
        stamp('h2')
        a(f"""
        s_mov_b64 exec, -1
        """)
        tstamp(f's{sT}')
        if prof and len(stamps) >= 2:
            a('s_waitcnt lgkmcnt(0)')
            for i in range(len(stamps)-1): a(f's_sub_u32 s{sA}, s{sP+2*i+2}, s{sP+2*i}\ns_add_u32 s{sP+21+i}, s{sP+21+i}, s{sA}')
        if prof:
            a(f's_cmp_lg_u32 s{sT}, 3\ns_cbranch_scc1 {L("pf1")}\ns_memtime {sp(sP+28)}\ns_mov_b32 s{sSpin}, 0')
            for i in range(6): a(f's_mov_b32 s{sP+21+i}, 0')
            a(f'{L("pf1")}:\ns_cmp_lg_u32 s{sT}, {nsteps-2}\ns_cbranch_scc1 {L("pf2")}\ns_memtime {sp(sP)}\ns_waitcnt lgkmcnt(0)\ns_sub_u32 s{sP+20}, s{sP}, s{sP+28}\n{L("pf2")}:')
        a(f's_add_u32 s{sT}, s{sT}, 1\ns_add_u32 s{sA}, s{sT}, 1\ns_cmp_lt_u32 s{sA}, s{sRdy}\ns_cbranch_scc1 {L("step")}')
        a(f'v_lshrrev_b32 v{T}, 2, v{vLin}')
        a.label(L('rp'))
        a(f'global_load_dword v{T+1}, v{T}, {sp(sFK)} sc1')
        spin()
        a('s_waitcnt vmcnt(0)')
        fkeval(T+1)
        a(f's_cmp_lt_u32 s{sA}, s{sRdy}\ns_cbranch_scc1 {L("step")}\ns_sleep 2\ns_branch {L("rp")}')
    loop(L, stc)
    if mega: loop(lambda x: L('s_' + x), ' sc1')
    a.label(L('end'))
    a('s_mov_b64 exec, -1\ns_nop 7')
    a(f'''
    s_add_u32 s{sKVM}, s{sKVM}, {32*4096}
    s_addc_u32 s{sKVM+1}, s{sKVM+1}, 0
    global_store_dwordx4 v{vLin}, {vr(HK,4)}, {sp(sKVM)} sc1
    v_mov_b32 v{T}, 0x41
    s_waitcnt vmcnt(0)
    s_barrier
    s_mov_b64 exec, {sp(sFm)}
    global_store_dword v{vLin}, v{T}, {sp(sFl)} sc1
    s_mov_b64 exec, -1
    ''')
    if prof:
        for i in range(7): a(f'v_mov_b32 v{T+i}, s{sP+20+i}')
        a(f'''
        v_mov_b32 v{T+7}, s{sSpin}
        s_lshl_b32 s{sA}, s{sH}, 2
        s_add_u32 s{sA}, s{sA}, s{sW}
        s_lshl_b32 s{sA}, s{sA}, 5
        s_add_u32 s{sA}, s{sA}, {WS_PROF}
        v_mov_b32 v{T+8}, s{sA}
        s_mov_b64 exec, 1
        global_store_dwordx4 v{T+8}, {vr(T,4)}, {sp(sWs)}
        global_store_dwordx4 v{T+8}, {vr(T+4,4)}, {sp(sWs)} offset:16
        s_mov_b64 exec, -1
        ''')
    tl(a, 4, T, 0)
    a('s_waitcnt vmcnt(0) lgkmcnt(0)')

def standalone(name='chain_kernel', **kw):
    a = Asm()
    a.raw(khead(name))
    a(f'''
    s_load_dwordx2 {sp(sMem)}, s[0:1], 8
    s_load_dwordx4 s[8:11], s[0:1], 24
    s_load_dwordx2 {sp(sWq)}, s[0:1], 16
    s_load_dwordx2 {sp(sWo)}, s[0:1], 40
    s_load_dwordx2 {sp(sDbg)}, s[0:1], 104
    s_load_dwordx2 {sp(sWs)}, s[0:1], 112
    s_getreg_b32 s{sA}, hwreg(HW_REG_XCC_ID)
    s_and_b32 s{sA}, s{sA}, 15
    s_mov_b32 s{sXcc}, s{sA}
    s_waitcnt lgkmcnt(0)
    s_cmp_lg_u32 s{sA}, 0
    s_cbranch_scc1 L_done_{name}
    v_mov_b32 v1, 0
    v_mov_b32 v2, 1
    v_lshrrev_b32 v4, 6, v0
    v_readfirstlane_b32 s{sW}, v4
    s_cmp_lg_u32 s{sW}, 0
    s_cbranch_scc1 L_t_{name}
    s_mov_b64 exec, 1
    global_atomic_add v3, v1, v2, {sp(sDbg)} sc0 sc1
    s_waitcnt vmcnt(0)
    ds_write_b32 v1, v3
    s_waitcnt lgkmcnt(0)
    s_mov_b64 exec, -1
    L_t_{name}:
    s_barrier
    ds_read_b32 v3, v1
    s_waitcnt lgkmcnt(0)
    v_readfirstlane_b32 s{sH}, v3
    s_barrier
    s_cmp_gt_u32 s{sH}, 31
    s_cbranch_scc1 L_done_{name}
    ''')
    chain(a, name, **kw)
    a.label(f'L_done_{name}')
    a('s_endpgm')
    bad = a.check_branches()
    assert bad == 0
    return a

if __name__ == '__main__':
    import sys
    variants = eval(sys.argv[1]) if len(sys.argv) > 1 else [dict()]
    out = ''.join(f'; @launch kernel=c{i}_kernel grid=(256,1,1) block=(256,1,1) lds=163840\n' for i in range(len(variants)))
    out += '.amdgcn_target "amdgcn-amd-amdhsa--gfx950"\n.text\n'
    for i, v in enumerate(variants):
        a = standalone(f'c{i}_kernel', prof=True, **v); out += a.text()
    out += '.section .rodata,"a"\n' + ''.join(kdesc(f'c{i}_kernel') for i in range(len(variants)))
    open('chain.s','w').write(out)
    open('chain.json','w').write(repr(variants))
```

```python
from asmlib import *
import struct, math
WS_KV = 0; WS_QX = 32<<20; WS_KVM = 48<<20; WS_RA = 60<<20; WS_RM = 61<<20; WS_PROF = 62<<20
RA_SLOT = 128*2048; RM_SLOT = 8192
SLAB = 131072
def f32(x): return struct.unpack('<I', struct.pack('<f', x))[0]
QSCALE = f32(128**-0.5 * math.log2(math.e))

M=0; QV=32; KA=40; KX=48; XO=40; VX=56; S=64; T=96
vIdx,vLin,vKr,vTc,vXw,vXr,vPst,vMst,vLw,vOw,vM0,vM1,HK,_,HV,_2 = range(112,128)
sMem,sWq,sWk,sWv,sWo,sDbg,sWs = 4,6,8,10,12,14,16
sH,sW,sT,sSpin = 18,19,20,21
sTmp=22; sLb=24; sA=25; sB=26; sC=27
sKV=30; sKVM=32; sSt0=34; sSt1=36; sAld=38; sArs=40; sMld=42; sMst=44
sRA=46; sRAo=48; sRMl=50; sRMs=52
sB1=54; sSel=56; sPm=64; sPub=66; sM0kv=68; sQc=69
sFl=28; sXcc=3; sFm=100; sRdy=86; sVer=87; sFK=84; sGot=88; sNx=89
WS_FL = 63<<20; FL_K = 8192; FL_G = 16384; FL_P = 20480
ROLE_LDS = 163832
VERIFY = None
sP=70
SPIN=200000
def sp(x): return f's[{x}:{x+1}]'

LDS_BLK = [('q',0),('q',1),('k',0),('k',6),('k',7),('o',5),('o',6),('o',7)]
NQ = 5
KVS = 2304
L_KV = SLAB+8192; L_MQ = SLAB; L_X = SLAB+28672; L_O = L_MQ
REG_BLK = [(m,i) for m in 'qkvo' for i in range(8) if (m,i) not in LDS_BLK]
def dest(b):
    i = REG_BLK.index(b)
    return ('a', 16*i) if i < 16 else ('v', 128 + 16*(i-16))

WS_TL = (62<<20) + 65536
TL = False
def tl(a, i, v1, role_hi):
    if not TL: return
    a(f"""
    s_memrealtime s[98:99]
    s_memtime s[90:91]
    s_lshl_b32 s97, {role_hi}, 5
    s_add_u32 s97, s97, s{sH}
    s_lshl_b32 s97, s97, 2
    s_add_u32 s97, s97, s{sW}
    s_lshl_b32 s97, s97, 6
    s_add_u32 s97, s97, {WS_TL+4*i}
    v_mov_b32 v{v1}, s97
    s_waitcnt lgkmcnt(0)
    v_mov_b32 v{v1+1}, s98
    s_mov_b64 exec, 1
    global_store_dword v{v1}, v{v1+1}, {sp(sWs)}
    s_nop 1
    v_mov_b32 v{v1+1}, s90
    global_store_dword v{v1}, v{v1+1}, {sp(sWs)} offset:32
    s_mov_b64 exec, -1
    """)

def chain(a, tag, sc='', mega=False, prof=False, nsteps=64, preA=56, preB=44, gapA=48, gapB=48, sgq=-3, pKx=12, pB2=5, ntr=2, rdw=1, wx=1, g7=32, stamps=(), wnt=' nt', ont=None, mord='qkv', warm=1, tls=(0,8,16), opt=(), tsc=' sc1', tdist=1, skip=(), vp='kv@P0 d2@A2 d3@A6 rm@Q2 d0@Q4 fl@Q6 d1@Q9 tc@Q12 r0@Q16 r1@Q20'):
    L = lambda x: f'L{tag}_{x}'
    DIR = True
    stc = (' ' + sc) if sc else ''
    LE = L('end')
    if ont is None: ont = wnt
    kvnow = any(x_[:2] == 'kv' and x_[3] in 'CW' for x_ in vp.split())
    staged = {}
    def B(m, i, u):
        if (m,i) in staged: return vr(staged[(m,i)] + 8*u, 8)
        k, b = dest((m,i)); return vr(b + 8*u, 8, k)
    def SM(acc, A, m, i, u): a(f'v_smfmac_f32_16x16x64_bf16 {vr(acc,4)}, {vr(A,4)}, {B(m,i,u)}, v{vIdx}')
    def stg(blk, r):
        slot = LDS_BLK.index(blk); staged[blk] = r
        return [f'ds_read_b128 {vr(r+4*i,4)}, v{vLw} offset:{slot*4096+i*1024}' for i in range(4)]
    def stamp(i):
        if prof and i in stamps: a(f's_memtime {sp(sP+2*stamps.index(i))}')

    lane,n_,g_,t1,t2,t3 = T,T+1,T+2,T+3,T+4,T+5
    vWa, vOa = KX+4, T+9
    vTr = VX
    vL4, vFd, vFk = T+6, T+7, KX
    vTo = KX+2
    a(f'''
    v_and_b32 v{lane}, 63, v0
    v_and_b32 v{n_}, 15, v0
    v_lshrrev_b32 v{g_}, 4, v{lane}
    v_lshlrev_b32 v{vLin}, 4, v{lane}
    s_lshl_b32 s{sLb}, s{sW}, 15
    s_mul_i32 s{sA}, s{sW}, {KVS}
    s_add_u32 s{sM0kv}, s{sA}, {L_KV}
    v_add_u32 v{vLw}, s{sLb}, v{vLin}
    v_lshlrev_b32 v{vTc}, 5, v{lane}
    ; cooperative qkv DMA: instr i=gb, r'=lane/16, p=lane%16 holds chunk p^(2r'+8gb0) of row 32(w&1)+8(w>>1)+4gb1+gb0+16(r'&1)+2(r'>>1)
    v_and_b32 v{t1}, 1, v{g_}
    v_lshrrev_b32 v{t3}, 1, v{g_}          ; gb1
    v_lshlrev_b32 v{t2}, 1, v{g_}
    v_xor_b32 v{t2}, v{t2}, v{n_}
    v_lshlrev_b32 v{t2}, 4, v{t2}
    v_lshl_add_u32 v{t2}, v{t1}, 17, v{t2}
    v_lshl_add_u32 v{t2}, v{t3}, 14, v{t2}
    s_and_b32 s{sA}, s{sW}, 1
    s_lshl_b32 s{sA}, s{sA}, 18
    s_lshr_b32 s{sB}, s{sW}, 1
    s_lshl_b32 s{sB}, s{sB}, 16
    s_add_u32 s{sA}, s{sA}, s{sB}
    s_lshl_b32 s{sB}, s{sH}, 8
    s_add_u32 s{sA}, s{sA}, s{sB}
    v_add_u32 v{vWa}, s{sA}, v{t2}
    v_xor_b32 v{t2}, 128, v{vWa}
    v_add_u32 v{vWa+1}, {8192-1024}, v{t2}
    v_add_u32 v{vWa+2}, {4*8192-2048}, v{vWa}
    v_add_u32 v{vWa+3}, {5*8192-3072}, v{t2}
    ; wo rows: 16*gb0+4*gb1+bit3 ; chunk = (l%8)^(4*gb0)
    v_lshlrev_b32 v{vOa}, 4, v{t1}
    v_lshl_add_u32 v{vOa}, v{t3}, 2, v{vOa}
    v_bfe_u32 v{vTr}, v{lane}, 3, 1
    v_add_u32 v{vOa}, v{vOa}, v{vTr}
    v_lshlrev_b32 v{vTr}, 2, v{t1}
    v_xor_b32 v{vTr}, v{vTr}, v{lane}
    v_and_b32 v{vTr}, 7, v{vTr}
    v_lshlrev_b32 v{vTr}, 4, v{vTr}
    v_lshl_add_u32 v{vOa}, v{vOa}, 10, v{vTr}
    s_lshl_b32 s{sA}, s{sH}, 17
    s_lshl_b32 s{sB}, s{sW}, 8
    s_add_u32 s{sA}, s{sA}, s{sB}
    v_add_u32 v{vOa}, s{sA}, v{vOa}
    ''')
    def dma(bi):
        slot = bi % 8; tg = None
        if bi < 24:
            base = {'q': sWq, 'k': sWk, 'v': sWv}[mord[bi//8]]
            a(f's_add_u32 s{sTmp}, s{base}, {slot<<19}\ns_addc_u32 s{sTmp+1}, s{base+1}, 0\ns_add_u32 m0, s{sLb}, {slot*4096}')
            for J in range(4): tg = a(f'global_load_lds_dwordx4 v{vWa+J}, {sp(sTmp)} offset:{J*1024}{wnt}')
            return tg
        i = slot
        a(f's_xor_b32 s{sA}, s{sW}, {i//2}\ns_lshl_b32 s{sA}, s{sA}, 15')
        for J in range(4):
            off = (i%2)*128 + (8*(J>>1) + 2*(J&1))*1024
            a(f's_add_u32 s{sB}, s{sA}, {off}\ns_add_u32 s{sTmp}, s{sWo}, s{sB}\ns_addc_u32 s{sTmp+1}, s{sWo+1}, 0')
            a(f's_add_u32 m0, s{sLb}, {slot*4096+J*1024}')
            tg = a(f'global_load_lds_dwordx4 v{vOa}, {sp(sTmp)}{ont}')
        return tg
    dtag = {}
    arr = 9
    def fkeval(v):
        a(f"""
        v_cmp_eq_u32 vcc, 0x01010101, v{v}
        s_or_b32 s{sTmp}, vcc_lo, 0xaaaaaaaa
        s_or_b32 s{sTmp+1}, vcc_hi, 0xaaaaaaaa
        s_ff0_i32_b64 s{sRdy}, {sp(sTmp)}
        s_min_u32 s{sRdy}, s{sRdy}, 100
        """)
    for bi in range(8): dtag[bi] = dma(bi)
    if 'a' in tls: tl(a, 5 + tls.index('a'), T+12, 0)
    if mega: VERIFY(a, 'c', 32 + 2*(TL and 'a' in tls))
    if 'b' in tls: tl(a, 5 + tls.index('b'), T+12, 0)
    a(f'''
    v_lshrrev_b32 v{t2}, 2, v{n_}
    v_and_b32 v{t3}, 3, v{lane}
    s_lshl_b32 s{sA}, s{sW}, 6
    v_lshl_add_u32 v{vTr}, v{t3}, 3, s{sA}
    v_lshlrev_b32 v{vTr+1}, 5, v{t2}
    v_lshl_add_u32 v{vTr+1}, v{t1}, 7, v{vTr+1}
    v_xor_b32 v{vTr}, v{vTr}, v{vTr+1}
    v_lshl_add_u32 v{vTr}, v{t2}, 8, v{vTr}
    v_lshl_add_u32 v{vTr}, v{g_}, 10, v{vTr}
    v_xor_b32 v{vTr+1}, 32, v{vTr}
    v_add_u32 v{vTr+2}, 0x10000, v{vTr}
    v_add_u32 v{vTr+3}, 0x10000, v{vTr+1}
    ; wo tr-read: gb*256 + bit2*128 + gb0*64 + bit3*32 + c4*8 (u flips bit 6)
    v_lshlrev_b32 v{vTo}, 8, v{g_}
    v_lshl_add_u32 v{vTo}, v{t1}, 6, v{vTo}
    v_lshl_add_u32 v{vTo}, v{t3}, 3, v{vTo}
    v_and_b32 v{vTo+1}, 4, v{lane}
    v_lshl_add_u32 v{vTo}, v{vTo+1}, 5, v{vTo}
    v_and_b32 v{vTo+1}, 8, v{lane}
    v_lshl_add_u32 v{vTo}, v{vTo+1}, 2, v{vTo}
    v_add_u32 v{vTo}, s{sLb}, v{vTo}
    v_xor_b32 v{vTo+1}, 64, v{vTo}
    v_xor_b32 v{vXw}, v{g_}, v{t2}
    v_lshlrev_b32 v{vXw}, 3, v{vXw}
    v_lshl_add_u32 v{vXw}, v{n_}, 5, v{vXw}
    s_lshl_b32 s{sA}, s{sW}, 10
    s_add_u32 s{sA}, s{sA}, {L_X}
    v_add_u32 v{vXw}, s{sA}, v{vXw}
    v_xor_b32 v{vXr}, v{t3}, v{g_}
    v_lshlrev_b32 v{vXr}, 3, v{vXr}
    v_lshl_add_u32 v{vXr}, v{t2}, 5, v{vXr}
    v_lshl_add_u32 v{vXr}, v{g_}, 7, v{vXr}
    v_add_u32 v{vXr}, {L_X}, v{vXr}
    v_lshl_add_u32 v{vPst}, v{t2}, 2, v{g_}
    v_lshlrev_b32 v{vPst}, 11, v{vPst}
    v_lshl_add_u32 v{vPst}, v{t3}, 4, v{vPst}
    s_lshl_b32 s{sA}, s{sW}, 16
    s_lshl_b32 s{sB}, s{sH}, 6
    s_add_u32 s{sA}, s{sA}, s{sB}
    v_add_u32 v{vPst}, s{sA}, v{vPst}
    ; publish: (c/2)*32 + p*16 + (c%2)*8 + (i/2)*4 ; c=g, p=bit2, i=lane%4
    v_lshrrev_b32 v{vMst}, 1, v{g_}
    v_lshlrev_b32 v{vMst}, 5, v{vMst}
    v_lshl_add_u32 v{vMst}, v{t1}, 3, v{vMst}
    v_and_b32 v{t2}, 4, v{lane}
    v_lshl_add_u32 v{vMst}, v{t2}, 2, v{vMst}
    v_and_b32 v{t2}, 2, v{lane}
    v_lshl_add_u32 v{vMst}, v{t2}, 1, v{vMst}
    ; O write: L_O + w*512 + (g*8+t)*16 + half*8 ; t = 2*(n/4)+n%2
    v_lshlrev_b32 v{vOw}, 7, v{g_}
    v_and_b32 v{t2}, 12, v{lane}
    v_lshl_add_u32 v{vOw}, v{t2}, 3, v{vOw}
    v_and_b32 v{t2}, 1, v{lane}
    v_lshl_add_u32 v{vOw}, v{t2}, 4, v{vOw}
    v_and_b32 v{t2}, 2, v{lane}
    v_lshl_add_u32 v{vOw}, v{t2}, 2, v{vOw}
    s_lshl_b32 s{sA}, s{sW}, 9
    s_add_u32 s{sA}, s{sA}, {L_O}
    v_add_u32 v{vOw}, s{sA}, v{vOw}
    s_mov_b32 s{sB1}, 0xcccccccc
    s_mov_b32 s{sB1+1}, 0xcccccccc
    s_mov_b32 s{sPm}, 0xf0f0f0f0
    s_mov_b32 s{sPm+1}, 0xf0f0f0f0
    s_mov_b32 s{sPub}, 0x00550055
    s_mov_b32 s{sPub+1}, 0x00550055
    s_mov_b32 s{sQc}, {QSCALE}
    v_mov_b32 v{t2}, 0x4444
    v_mov_b32 v{t3}, 0xeeee
    v_cndmask_b32 v{vIdx}, v{t2}, v{t3}, {sp(sB1)}
    v_cndmask_b32 v{vM0}, -1, 0, {sp(sB1)}
    v_cndmask_b32 v{vM1}, 0, -1, {sp(sB1)}
    ''')
    for i in range(4):
        a(f's_mov_b32 s{sSel+2*i}, {0x00110011 << i}\ns_mov_b32 s{sSel+2*i+1}, {0x00110011 << i}')
    a(f'''
    s_lshl_b32 s{sA}, s{sH}, 2
    s_add_u32 s{sA}, s{sA}, s{sW}
    s_add_u32 s{sRA}, s{sWs}, {WS_RA}
    s_addc_u32 s{sRA+1}, s{sWs+1}, 0
    s_lshl_b32 s{sB}, s{sA}, 11
    s_add_u32 s{sRAo}, s{sRA}, s{sB}
    s_addc_u32 s{sRAo+1}, s{sRA+1}, 0
    s_lshl_b32 s{sB}, s{sA}, 6
    s_add_u32 s{sB}, s{sB}, {WS_RM}
    s_add_u32 s{sRMs}, s{sWs}, s{sB}
    s_addc_u32 s{sRMs+1}, s{sWs+1}, 0
    s_lshl_b32 s{sB}, s{sW}, 11
    s_add_u32 s{sB}, s{sB}, {WS_RM}
    s_add_u32 s{sRMl}, s{sWs}, s{sB}
    s_addc_u32 s{sRMl+1}, s{sWs+1}, 0
    s_lshl_b32 s{sB}, s{sA}, 12
    s_add_u32 s{sKV}, s{sWs}, s{sB}
    s_addc_u32 s{sKV+1}, s{sWs+1}, 0
    s_lshl_b32 s{sB}, s{sA}, 10
    s_add_u32 s{sB}, s{sB}, {WS_KVM-(32 if kvnow else 64)*4096}
    s_add_u32 s{sKVM}, s{sWs}, s{sB}
    s_addc_u32 s{sKVM+1}, s{sWs+1}, 0
    s_lshl_b32 s{sB}, s{sH}, 7
    s_add_u32 s{sB}, s{sB}, {WS_FL+FL_P}
    s_add_u32 s{sFl}, s{sWs}, s{sB}
    s_addc_u32 s{sFl+1}, s{sWs+1}, 0
    s_lshl_b32 s{sB}, s{sH}, 8
    s_add_u32 s{sB}, s{sB}, {WS_FL+FL_K}
    s_add_u32 s{sFK}, s{sWs}, s{sB}
    s_addc_u32 s{sFK+1}, s{sWs+1}, 0
    s_mov_b32 s{sRdy}, {0 if mega else 100}
    v_lshlrev_b32 v{vL4}, 2, v{lane}
    s_cmp_eq_u32 s{sW}, 0
    s_cselect_b32 s{sFm}, 1, 0
    s_mov_b32 s{sFm+1}, 0
    v_mov_b64 {vr(HK,2)}, 0
    v_mov_b64 {vr(HV,2)}, 0
    ; ring init (both slots)
    v_mov_b32 v{T+12}, -1
    v_mov_b32 v{T+13}, -1
    v_mov_b32 v{T+14}, -1
    v_mov_b32 v{T+15}, -1
    global_store_dwordx4 v{vLin}, {vr(T+12,4)}, {sp(sRAo)} sc1
    global_store_dwordx4 v{vLin}, {vr(T+12,4)}, {sp(sRAo)} offset:1024 sc1
    ; M(0) gather: lane(row: b0=t%2,b1=half,b3:2=t/2 ; ga): byte = t*1024 + (128w + 64s + 16(ea%4) + 4ga + 2half + ea/4)*2
    v_lshrrev_b32 v{t2}, 2, v{n_}
    v_lshlrev_b32 v{t2}, 11, v{t2}
    v_and_b32 v{t3}, 1, v{lane}
    v_lshl_add_u32 v{t2}, v{t3}, 10, v{t2}
    v_lshl_add_u32 v{t2}, v{g_}, 3, v{t2}
    v_and_b32 v{t3}, 2, v{lane}
    v_lshl_add_u32 v{t2}, v{t3}, 1, v{t2}
    s_lshl_b32 s{sA}, s{sW}, 8
    v_add_u32 v{t2}, s{sA}, v{t2}
    ''')
    for s_ in range(2):
        for ea in range(8):
            off = (64*s_ + 16*(ea%4) + ea//4)*2
            a(f'global_load_ushort v{S+8*s_+ea}, v{t2}, {sp(sMem)} offset:{off}')
    if 'c' in tls: tl(a, 5 + tls.index('c'), T+12, 0)
    def park(pj): return dest(('o', pj+1)) if pj < NQ-1 else ('v', S+16)
    for w in range(1,4): a(f's_cmp_eq_u32 s{sW}, {w}\ns_cbranch_scc1 {L(f"pw{w}")}')
    nvm0, nds0 = a.nvm, a.nds
    for w in range(4):
        a.label(L(f'pw{w}'))
        a.nvm, a.nds = nvm0, nds0
        for bi in range(24):
            m, i = mord[bi//8], (bi%8) ^ (2*w); slot = bi % 8
            a.wvm(dtag[bi]); a('s_barrier')
            if bi in tls: tl(a, 5 + tls.index(bi), t1, 0)
            if bi: dtag[bi+7] = dma(bi+7)
            k, b = park(LDS_BLK.index((m,i))) if (m,i) in LDS_BLK else dest((m,i))
            for u in range(2):
                for J in range(4):
                    a(f'ds_read_b64_tr_b16 {vr(b+8*u+2*J,2,k)}, v{vTr+u+2*(J//2)} offset:{slot*4096+(J%2)*32768}')
            if bi == 8:
                a(f"""
                s_lshl_b32 s{sA}, s{sH}, 2
                s_add_u32 s{sA}, s{sA}, {32+w}
                v_mov_b32 v{t1}, s{sA}
                s_cmp_eq_u32 s{sXcc}, 0
                s_cselect_b32 s{sA}, 1, 3
                v_mov_b32 v{t3}, s{sA}
                s_mov_b64 exec, 1
                global_store_byte v{t1}, v{t3}, {sp(sDbg)} sc1
                s_mov_b64 exec, -1
                """)
                for r in range(8): a(f'v_lshl_or_b32 v{M+r}, v{S+2*r+1}, 16, v{S+2*r}')
            if bi == arr: a(f'global_load_dword v{vFd}, v{vL4}, {sp(sDbg)} sc1')
            if bi == arr + 8:
                msk = ((1 << (41 if mega else 40)) - 1) ^ 0xff
                a(f"""
                s_mov_b32 s{sSpin}, 0
                {L(f'tb{w}')}:
                v_and_b32 v{t1}, 0x01010101, v{vFd}
                v_cmp_ne_u32 vcc, 0x01010101, v{t1}
                s_and_b32 s{sA}, vcc_lo, {msk & 0xffffffff}
                s_and_b32 s{sB}, vcc_hi, {msk >> 32}
                s_or_b32 s{sA}, s{sA}, s{sB}
                s_cbranch_scc0 {L(f'tbo{w}')}
                s_sleep 4
                global_load_dword v{vFd}, v{vL4}, {sp(sDbg)} sc1
                s_add_u32 s{sSpin}, s{sSpin}, 1
                s_cmp_gt_u32 s{sSpin}, {SPIN}
                s_cbranch_scc1 {L('end')}
                s_waitcnt vmcnt(0)
                s_branch {L(f'tb{w}')}
                {L(f'tbo{w}')}:
                v_and_b32 v{t1}, 0x02020202, v{vFd}
                v_cmp_ne_u32 vcc, 0, v{t1}
                s_and_b32 s{sA}, vcc_lo, 0xffffff00
                s_and_b32 s{sB}, vcc_hi, 0xff
                s_or_b32 s{sXcc}, s{sA}, s{sB}
                """)
                a.nvm -= 1
                if warm:
                    a(f"""
                    v_lshlrev_b32 v{t1}, 7, v{n_}
                    s_lshl_b32 s{sA}, s{sH}, 13
                    s_add_u32 s{sA}, s{sA}, {WS_RA+w*2048}
                    v_mov_b32 v{t2}, s{sA}
                    v_mov_b32 v{t3}, {WS_RM+w*2048}
                    v_cmp_gt_u32 vcc, 2, v{g_}
                    v_cndmask_b32 v{t2}, v{t3}, v{t2}, vcc
                    v_add_u32 v{t1}, v{t1}, v{t2}
                    v_mov_b32 v{t2}, 13
                    v_cndmask_b32 v{t2}, v{t2}, 18, vcc
                    v_and_b32 v{t3}, 1, v{g_}
                    v_lshlrev_b32 v{t3}, v{t2}, v{t3}
                    v_add_u32 v{t1}, v{t1}, v{t3}
                    global_load_dword v{vFd}, v{t1}, {sp(sWs)} sc1
                    """)
            a('s_waitcnt lgkmcnt(0)')
        if w < 3: a(f's_branch {L("pwe")}')
    a.label(L('pwe'))
    tl(a, 1, t1, 0)
    for bi in range(24, 32):
        slot = bi % 8
        a.wvm(dtag[bi])
        if bi == 24: a('s_barrier'); dtag[31] = dma(31)
        if mega and bi == 27: a(f'global_load_dword v{vFk}, v{vL4}, {sp(sFK)} sc1')
        k, b = dest(('o', slot)) if slot < NQ else ('v', S)
        for u in range(2):
            for J in range(4):
                a(f'ds_read_b64_tr_b16 {vr(b+8*u+2*J,2,k)}, v{vTo+u} offset:{slot*4096+J*1024}')
        a('s_waitcnt lgkmcnt(0)')
        k, b = park(slot) if slot < NQ else ('v', S)
        for u in range(2):
            for hf in range(2):
                a(f'ds_write_b128 v{vLw}, {vr(b+8*u+4*hf,4,k)} offset:{slot*4096+u*2048+hf*1024}')
        a('s_waitcnt lgkmcnt(0)')
    tl(a, 2, t1, 0)
    if 'ponly' in opt: a(f's_branch {LE}')
    if mega:
        a(f"""
        s_mov_b32 s{sSpin}, 0
        {L('kw')}:
        s_waitcnt vmcnt(0)
        """)
        fkeval(vFk)
        a(f"""
        s_cmp_lg_u32 s{sRdy}, 0
        s_cbranch_scc1 {L("kwd")}
        s_sleep 2
        global_load_dword v{vFk}, v{vL4}, {sp(sFK)} sc1
        s_add_u32 s{sSpin}, s{sSpin}, 1
        s_cmp_gt_u32 s{sSpin}, {SPIN}
        s_cbranch_scc1 {L('end')}
        s_branch {L("kw")}
        """)
        a.label(L('kwd'))
    sKN = sWo
    a(f"""
    s_mov_b32 m0, s{sM0kv}
    s_mov_b64 {sp(sKN)}, {sp(sKV)}
    global_load_lds_dwordx4 v{vLin}, {sp(sKV)} sc1
    global_load_lds_dwordx4 v{vLin}, {sp(sKV)} offset:1024 sc1
    global_load_lds_dword v{vTc}, {sp(sKV)} offset:2048 sc1
    s_mov_b32 s{sT}, 0
    s_mov_b32 s{sSpin}, 0
    """)
    tl(a, 3, t1, 0)
    if prof:
        for i in range(8): a(f's_mov_b32 s{sP+20+i}, 0')
        a(f's_memtime {sp(sP+28)}')
    def tstamp(idx):
        if 'ts' not in opt: return
        a(f"""
        s_memrealtime s[96:97]
        s_lshl_b32 s{sA}, s{sH}, 2
        s_add_u32 s{sA}, s{sA}, s{sW}
        s_lshl_b32 s{sA}, s{sA}, 6
        s_add_u32 s{sA}, s{sA}, {idx}
        s_lshl_b32 s{sA}, s{sA}, 2
        s_add_u32 s{sA}, s{sA}, {WS_PROF+131072}
        v_mov_b32 v{T}, s{sA}
        s_waitcnt lgkmcnt(0)
        v_mov_b32 v{T+1}, s96
        s_mov_b64 exec, 1
        global_store_dword v{T}, v{T+1}, {sp(sWs)}
        s_mov_b64 exec, -1
        """)
    tstamp(63)
    DPPM = 'row_mask:0xf bank_mask:0xf'
    QA = T+8; VA = QV; P2 = VX; S0 = S; S1 = S+16; K0 = M+16
    NEG = M+4; Sel = T+4; Dr = T+8
    sB0, sOne, sHalf = 4, 8, 10
    a(f'''
    s_not_b64 {sp(sB0)}, {sp(sB1)}
    s_mov_b32 s{sOne}, 0x3f803f80
    s_mov_b32 s{sOne+1}, 0x3f803f80
    s_mov_b32 s{sHalf}, 0x3f003f00
    s_mov_b32 s{sHalf+1}, 0x3f003f00
    ''')
    def pre1():
        n0 = len(a.items)
        a(f"""
        s_and_b32 s{sA}, s{sT}, 1
        s_lshl_b32 s{sC}, s{sA}, 13
        s_add_u32 s{sMld}, s{sRMl}, s{sC}
        s_addc_u32 s{sMld+1}, s{sRMl+1}, 0
        s_xor_b32 s{sB}, s{sA}, 1
        """)
        for x_ in stg(('k',0), K0): a(x_)
        for i in range(0,16,2): a(f'v_mov_b64 {vr(VA+i,2)}, 0')
        for i in range(0,8,2): a(f'v_mov_b64 {vr(QA+i,2)}, 0')
        return len(a.items) - n0
    def pre2():
        n0 = len(a.items)
        a(f"""
        s_lshl_b32 s{sC}, s{sB}, 13
        s_add_u32 s{sMst}, s{sRMs}, s{sC}
        s_addc_u32 s{sMst+1}, s{sRMs+1}, 0
        s_lshl_b32 s{sC}, s{sB}, 18
        s_add_u32 s{sArs}, s{sRAo}, s{sC}
        s_addc_u32 s{sArs+1}, s{sRAo+1}, 0
        s_lshl_b32 s{sC}, s{sA}, 18
        s_add_u32 s{sSt0}, s{sRA}, s{sC}
        s_addc_u32 s{sSt0+1}, s{sRA+1}, 0
        s_add_u32 s{sSt1}, s{sSt0}, 32768
        s_addc_u32 s{sSt1+1}, s{sSt0+1}, 0
        s_add_u32 s{sAld}, s{sRAo}, s{sC}
        s_addc_u32 s{sAld+1}, s{sRAo+1}, 0
        s_mov_b64 {sp(sKV)}, {sp(sKN)}
        s_add_u32 s{sKN}, s{sKN}, {32*16384}
        s_addc_u32 s{sKN+1}, s{sKN+1}, 0
        s_add_u32 s{sKVM}, s{sKVM}, {32*4096}
        s_addc_u32 s{sKVM+1}, s{sKVM+1}, 0
        s_mul_i32 s{sC}, s{sB}, {4*KVS}
        s_add_u32 m0, s{sC}, s{sM0kv}
        s_mul_i32 s{sC}, s{sA}, {4*KVS}
        s_add_u32 s{sC}, s{sC}, {L_KV}
        v_add_u32 v{vKr}, s{sC}, v{vLin}
        s_lshl_b32 s{sC}, s{sW}, 11
        s_add_u32 s{sC}, s{sC}, {L_MQ}
        v_add_u32 v{T+3}, s{sC}, v{vLin}
        s_add_u32 s{sC}, s{sT}, {int(kvnow)}
        v_mov_b32 v{T+4}, s{sC}
        """)
        for i in range(1,4): a(f'v_xor_b32 v{T+i-1}, {i*2048}, v{T+3}')
        return len(a.items) - n0
    def ldM(r): a(f'global_load_dwordx4 {vr(r,4)}, v{vLin}, {sp(sMld)} sc1\nglobal_load_dwordx4 {vr(r+4,4)}, v{vLin}, {sp(sMld)} offset:1024 sc1')
    def ldA(r): a(f'global_load_dwordx4 {vr(r,4)}, v{vLin}, {sp(sAld)} sc1\nglobal_load_dwordx4 {vr(r+4,4)}, v{vLin}, {sp(sAld)} offset:1024 sc1')
    def spin(): a(f's_add_u32 s{sSpin}, s{sSpin}, 1\ns_cmp_gt_u32 s{sSpin}, {SPIN}\ns_cbranch_scc1 {LE}')
    acc = {'q': QA, 'k': KA, 'v': VA}
    def P_(m, sg, u): SM(acc[m]+4*u, M+4*sg, m, sg, u)
    for x_ in stg(('q',0), S0) + stg(('q',1), S1): a(x_)
    for r in (0,2,4,6): a(f'v_min_u32 v{M+r}, -2, v{M+r}')
    pre1(); pre2()
    a('s_waitcnt vmcnt(0) lgkmcnt(0)')
    if mega: a(f's_cmp_lg_u32 s{sXcc}, 0\ns_cbranch_scc1 {L("s_try")}')
    a(f's_branch {L("try")}')
    staged0 = dict(staged)
    def loop(L, stc):
        staged.clear(); staged.update(staged0)
        dm = [f'global_load_lds_dwordx4 v{vLin}, {sp(sKN)} offset:{j*1024} sc1' for j in range(2)] + \
             [f'global_load_dwordx4 {vr(KX+4*j,4)}, v{vLin}, {sp(sKV)} offset:{j*1024} sc1' for j in (2,3)]
        a.label(L('retry'))
        spin()
        a('s_waitcnt vmcnt(0)')
        for i in range(0,8,2): a(f'v_mov_b64 {vr(M+i,2)}, {vr(P2+i,2)}')
        ldM(P2)
        for i in range(0,8,2): a(f'v_mov_b64 {vr(QA+i,2)}, 0')
        a(f's_branch {L("try")}')
        a.label(L('step'))
        n = pre1(); a.nops(preB - n - 5)
        ldM(M)
        n = pre2(); a.nops(gapB - n - 2)
        ldM(P2)
        a(f's_waitcnt vmcnt(2) lgkmcnt(0)')
        a.label(L('try'))
        a.nds = 0; a.nvm = 2; set2 = 2
        stamp('a0')
        ck = M+8
        a(f'ds_write_b128 v{T+3}, {vr(M,4)}\nds_write_b128 v{T+3}, {vr(M+4,4)} offset:1024')
        P_('q',0,0); a(f'v_max3_u32 v{ck}, v{M}, v{M+2}, v{M+4}')
        P_('q',0,1); a(f'v_max_u32 v{ck}, v{ck}, v{M+6}')
        P_('q',1,0); a(f'v_cmp_eq_u32 vcc, -1, v{ck}')
        P_('q',1,1); a(f's_cbranch_vccnz {L("retry")}')
        rlate = any(x_[0] == 'r' and x_[1] != 'm' and x_[3] in 'CW' for x_ in vp.split())
        NG2 = T if rlate else NEG
        rs = [f'global_store_dwordx4 v{vLin}, {vr(NG2,4)}, {sp(sArs)} offset:{1024*i}{stc}' for i in range(2)]
        if rdw: rs = [f'global_store_dword v{vLin}, v{NG2}, {sp(sArs)} offset:{1024*i}{stc}' for i in range(2)]
        vops = dict(d0=dm[0], d1=dm[1], d2=dm[2], d3=dm[3], r0=rs[0], r1=rs[1],
                    kv=f'global_store_dwordx4 v{vLin}, {vr(HK,4)}, {sp(sKVM)} sc1',
                    fl=f's_mov_b64 exec, {sp(sFm)}\nglobal_store_dword v{vLin}, v{T+4}, {sp(sFl)} sc1\ns_mov_b64 exec, -1',
                    tc=f'global_load_lds_dword v{vTc}, {sp(sKN)} offset:2048{tsc}',
                    rm=f'global_store_dword v{vMst}, v{NEG}, {sp(sMst)}{stc}')
        vt = {}
        def VM(slot):
            for x_ in vp.split():
                o, s_ = x_.split('@')
                if s_ != slot: continue
                k_ = slot[0]; n_ = int(slot[1:])
                if o[0] == 'r': assert k_ == 'Q' and (1 if o == 'rm' or rdw else 4) <= n_ or k_ == 'V' or k_ in 'CW' and o != 'rm'
                if o == 'fl': assert k_ in 'AQV'
                if o == 'kv': assert k_ in 'PACW' or k_ == 'Q' and n_ < 21
                if o in ('d0', 'd1', 'tc'): assert 'd2' in vt and 'd3' in vt and 'rm' in vt
                if o in skip: vt[o] = a.nvm; continue
                vt[o] = a(vops[o])
            stamp(slot)
        P_('k',0,0); VM('P0'); a(f's_waitcnt lgkmcnt(0)\ns_barrier')
        stamp('a1')
        mt = {}
        def rdM(sg): mt[sg] = a(f'ds_read_b128 {vr(M+4*sg,4)}, v{T+sg//2-1} offset:{1024*(sg%2)}')
        vq = [(sg,u) for sg in (0,1,4,5,6,7,2,3) for u in (0,1)]
        def V_():
            sg, u = vq.pop(0); P_('v', sg, u)
        g1 = stg(('k',6), S0) + stg(('k',7), S1); tg1 = []
        def G1(i):
            if sgq <= i < sgq + 8: tg1.append(a(g1[i-sgq]))
        rdM(2); rdM(3)
        P_('k',0,1); rdM(4); VM('A0')
        P_('k',1,0); rdM(5); VM('A1')
        P_('k',1,1); rdM(6); VM('A2')
        V_(); rdM(7); VM('A3')
        for i in range(1,4): V_(); G1(i-4); VM(f'A{3+i}')
        stamp('a2')
        QP = T+6; D0 = T; D1 = T+8; Dm = VA; X = XO
        def half(r, d): return [f'v_add_f32 v{r}, v{r}, v{r+2}', f'v_add_f32 v{r+1}, v{r+1}, v{r+3}', f'v_cvt_pk_bf16_f32 v{d}, v{r}, v{r+1}']
        a.wds(mt[2])
        seq = [('q',s_,0) for s_ in range(2,8)] + [('q',2,1),('q',3,1),('k',6,0),('k',6,1),('k',7,0),('k',7,1)] + \
              [('q',s_,1) for s_ in range(4,8)] + [('k',s_,0) for s_ in range(2,6)] + [('k',s_,1) for s_ in range(2,6)]
        z0 = [f'v_mov_b64 {vr(M+2*i,2)}, 0' for i in range(4,8)]
        kx = [f'ds_read_b128 {vr(S+4*i,4)}, v{vKr} offset:{(i//2)*KVS+(i%2)*1024}' for i in range(8)]
        va = {i: f'v_mov_b32 v{NEG+i}, -1' for i in range(1 if rlate or rdw else 4)}
        for i, p_ in enumerate((4,5)): va[p_] = f'v_mov_b64 {vr(M+2*i,2)}, 0'
        wr = {}
        for p_, (r, d, off) in ((7, (QA, QP, 0)), (17, (QA+4, QP+1, 512)), (21, (KA, HK, 4))):
            for j, x_ in enumerate(half(r, d)): va[p_+j] = x_
            wr[p_+3] = f'ds_write_b32 v{vXw}, v{d} offset:{off}'
        xr = [f'ds_read_b64_tr_b16 {vr(X+2*i,2)}, v{vXr} offset:{i*512}' for i in range(8)]
        tx = []
        On = T+12; Cq = T+7
        rV = max([int(x_[4:]) for x_ in vp.split() if x_[0] == 'r' and x_[3] == 'V'] + [-1])
        fv = [f'v_mov_b64 {vr(On,2)}, {sp(sOne)}', f'v_mov_b64 {vr(On+2,2)}, {sp(sHalf)}', f'v_mov_b32 v{Cq}, s{sQc}', f'v_mov_b64 {vr(NEG+2,2)}, 0', f'v_mov_b64 {vr(NEG,2)}, 0']
        g2 = stg(('o',7), M+16)
        for i in range(36):
            if i < 24: P_(*seq[i])
            else: V_()
            if i < 5: a.wds(mt[i+3])
            if 7 <= i <= 10: a.wds(tg1[2*(i-7)+1])
            G1(i)
            if i in wr: a(wr[i])
            if pKx <= i < pKx + 8: tkx = a(kx[i-pKx])
            VM(f'Q{i}' if i < 24 else f'V{i-24}')
            if i in va: a(va[i])
            if i == 23: stamp('b0')
            if i == 25:
                for x_ in half(KA+4, HK+1): a(x_)
                wk = a(f'ds_write_b32 v{vXw}, v{HK+1} offset:516')
            if i == 24 + pB2: a.wds(wk); a('s_barrier'); stamp('b1')
            if i >= 24 + pB2:
                for _ in range(ntr):
                    if len(tx) < 8: tx.append(a(xr[len(tx)])); busy = i
            if i >= max(g7, 34 - 2*len(g2)) and g2 and not (tx and busy == i): a(g2.pop(0))
            if i == 26: a(f's_mov_b64 vcc, {sp(sB0)}\ns_cmp_eq_u32 s{sT}, {nsteps-1}')
            if i == 35: a(f's_cbranch_scc1 {L("last")}')
            if 26 <= i < 35 and i != 24 + pB2 and not (tx and busy == i and ntr > 2) and fv and (len(fv) > 2 or i - 24 > rV): a(fv.pop(0))
        while len(tx) < 8: tx.append(a(xr[len(tx)]))
        stamp('c0')
        vf = half(VA, HV) + half(VA+4, HV+1)
        mx = T+4; tm = T+5; ma = T+6; vOr = T+4
        g5 = stg(('o',5), S0); g6 = stg(('o',6), S1)
        P = T+8; Dd = T+10; Ba = XO; Bb = XO+4; Po = XO+8; Ls = XO+12
        MF = 'v_mfma_f32_16x16x32_bf16'
        lastc = list(vf)
        mg = [f'v_cndmask_b32_dpp v{D0+r}, v{D1+r}, v{D0+r}, vcc quad_perm:[0,1,0,1] {DPPM}' for r in range(4)] + \
             [f'v_max3_f32 v{mx}, v{D0}, v{D0+1}, v{D0+2}', f'v_max_f32 v{mx}, v{mx}, v{D0+3}']
        rest = g2 + fv
        a.wds(tx[{0: 7, 1: 3, 2: 1}[wx]])
        for i in range(12):
            if i < 8:
                w_ = i//2; d = (D0, D1)[i%2]
                a(f'{MF} {vr(d,4)}, {vr(S+4*i,4)}, {vr(X+4*w_,4)}, {vr(d,4) if w_ else 0}')
            else:
                r = X+4*(i-8); a(f'{MF} {vr(Dm,4)}, {vr(r,4)}, {vr(r,4)}, {vr(Dm,4) if i > 8 else 0}')
            stamp(f'M{i}')
            if i == 0:
                for _ in range(2):
                    if rest: a(rest.pop(0))
            elif i == 1 and wx == 2: a.wds(tx[3]); a(vf.pop(0))
            elif i == 3 and wx: a.wds(tx[7]); a(vf.pop(0))
            elif i < 4: a(vf.pop(0)); a(vf.pop(0))
            elif i < 8:
                a(g5.pop(0))
                if vf: a(vf.pop(0))
                elif rest: a(rest.pop(0))
                elif i >= 6: a(g6.pop(0))
            elif i == 8: a(g6.pop(0)); a(g6.pop(0))
            else: a(mg.pop(0)); a(mg.pop(0))
        assert not rest
        for x_ in g6: a(x_)
        stamp('c1')
        a(f'v_max_f32_dpp v{mx}, v{mx}, v{mx} quad_perm:[2,3,0,1] {DPPM}')
        a(f'v_mul_f32 v{mx}, v{mx}, v{Cq}')
        a(f'v_mul_f32_dpp v{Dm}, v{Dm+2}, v{Cq} quad_perm:[0,1,0,1] {DPPM}')
        a(f'v_mul_f32_dpp v{Dm+1}, v{Dm+3}, v{Cq} quad_perm:[0,1,0,1] {DPPM}')
        a(f'v_max3_f32 v{tm}, v{mx}, v{Dm}, v{Dm+1}')
        a(f'v_max3_f32 v{mx}, v{mx}, v{Dm}, v{Dm+1}')
        a(z0.pop()); a(z0.pop())
        a(f'v_permlane16_swap_b32 v{mx}, v{tm}\nv_max_f32 v{ma}, v{mx}, v{tm}\nv_max_f32 v{mx}, v{mx}, v{tm}')
        a(z0.pop()); a(z0.pop())
        a(f'v_permlane32_swap_b32 v{mx}, v{ma}\nv_max_f32 v{mx}, v{mx}, v{ma}')
        ex = [Dm, Dm+1, T, T+1, T+2, T+3]
        for r in ex[:2]: a(f'v_sub_f32 v{r}, v{r}, v{mx}')
        for r in ex[2:]: a(f'v_fma_f32 v{r}, v{r}, v{Cq}, -v{mx}')
        for r in ex[:4]: a(f'v_exp_f32 v{r}, v{r}')
        a(f'v_cvt_pk_bf16_f32 v{Dm}, v{Dm}, v{Dm+1}')
        for r in ex[4:]: a(f'v_exp_f32 v{r}, v{r}')
        stamp('c2')
        a.wvm(max(vt['d2'], vt['d3'], vt['rm']))
        a(f"""
        v_cvt_pk_bf16_f32 v{P}, v{T}, v{T+1}
        v_and_b32 v{Dd}, v{Dm}, v{vM0}
        v_and_b32 v{Dd+1}, v{Dm}, v{vM1}
        v_cvt_pk_bf16_f32 v{P+1}, v{T+2}, v{T+3}
        v_and_b32 v{Ba}, v{P}, v{vM0}
        v_mfma_f32_16x16x16_bf16 {vr(Po,4)}, {vr(HV,2)}, {vr(Dd,2)}, 0
        v_and_b32_dpp v{Ba+2}, v{P}, v{vM0} quad_perm:[2,3,0,1] {DPPM}
        v_and_b32 v{Ba+1}, v{P+1}, v{vM0}
        v_mfma_f32_16x16x32_bf16 {vr(Ls,4)}, {vr(On,4)}, {vr(P,4)}, 0
        v_and_b32_dpp v{Ba+3}, v{P+1}, v{vM0} quad_perm:[2,3,0,1] {DPPM}
        v_and_b32_dpp v{Bb}, v{P}, v{vM1} quad_perm:[2,3,0,1] {DPPM}
        v_and_b32_dpp v{Bb+1}, v{P+1}, v{vM1} quad_perm:[2,3,0,1] {DPPM}
        v_mfma_f32_16x16x32_bf16 {vr(Po,4)}, {vr(VX,4)}, {vr(Ba,4)}, {vr(Po,4)}
        v_and_b32 v{Bb+2}, v{P}, v{vM1}
        v_and_b32 v{Bb+3}, v{P+1}, v{vM1}
        v_and_b32 v{vOr}, -9, v{vOw}
        v_xor_b32 v{vOr+1}, 512, v{vOr}
        v_mfma_f32_16x16x32_bf16 {vr(Po,4)}, {vr(VX+4,4)}, {vr(Bb,4)}, {vr(Po,4)}
        v_add_f32_dpp v{Ls}, v{Ls}, v{Ls} quad_perm:[2,3,0,1] {DPPM}
        v_rcp_f32 v{Ls}, v{Ls}
        v_xor_b32 v{vOr+2}, 1024, v{vOr}
        v_xor_b32 v{vOr+3}, 1536, v{vOr}
        """)
        assert not z0
        if rlate: a(f'v_mov_b64 {vr(T,2)}, -1' + ('' if rdw else f'\nv_mov_b64 {vr(T+2,2)}, -1'))
        a(f"""
        v_mul_f32 v{Po}, v{Po}, v{Ls}
        v_mul_f32 v{Po+1}, v{Po+1}, v{Ls}
        v_mul_f32 v{Po+2}, v{Po+2}, v{Ls}
        v_mul_f32 v{Po+3}, v{Po+3}, v{Ls}
        v_cvt_pk_bf16_f32 v{Po}, v{Po}, v{Po+1}
        v_cvt_pk_bf16_f32 v{Po+1}, v{Po+2}, v{Po+3}
        """)
        O = XO
        ow = a(f'ds_write_b64 v{vOw}, {vr(Po,2)}')
        ot = [a(f'ds_read_b128 {vr(O,4)}, v{vOr}')]
        stamp('c3')
        VM('C0')
        a.wds(ow); a('s_barrier')
        stamp('d0')
        for k_ in range(1,4): ot.append(a(f'ds_read_b128 {vr(O+4*k_,4)}, v{vOr+k_}'))
        VM('C1')
        PS = VA
        def W_(G, ki): SM(M+4*G, O+4*ki, 'o', 2*ki+G//2, G%2)
        def cv(G): return [f'v_cvt_pk_bf16_f32 v{PS+2*G+h_}, v{M+4*G+2*h_}, v{M+4*G+2*h_+1}' for h_ in range(2)]
        a.wds(ot[0])
        for G in range(4):
            W_(G, 0); VM(f'W{G}')
        a.wds(ot[1])
        stamp('d1')
        W_(0,1); VM('W4'); W_(1,1); a.wds(ot[2]); VM('W5'); W_(0,2); VM('W6'); W_(1,2); a.wds(ot[3]); VM('W7'); W_(0,3); VM('W8'); W_(1,3)
        c0 = cv(0); c1 = cv(1); c2 = cv(2); c3 = cv(3)
        W_(2,1); a(c0[0])
        W_(2,2); a(c0[1]); a(c1[0])
        W_(2,3); a(c1[1]); a(f'v_min_u32 v{PS}, -2, v{PS}')
        W_(3,1); a(f'global_store_dwordx4 v{vPst}, {vr(PS,4)}, {sp(sSt0)}{stc}')
        W_(3,2); a(c2[0])
        W_(3,3); a(c2[1]); a(f'v_min_u32 v{PS+4}, -2, v{PS+4}')
        a(f'v_mov_b32 v{T+2}, 0x3f80\nv_mov_b32 v{T+3}, 0x3f800000')
        a(f'v_cndmask_b32 v{T+2}, v{T+2}, v{T+3}, {sp(sPm)}')
        a(c3[0]); a(c3[1])
        a(f'global_store_dwordx4 v{vPst}, {vr(PS+4,4)}, {sp(sSt1)}{stc}')
        stamp('h0')
        n0 = len(a.items)
        for x_ in stg(('q',0), S0) + stg(('q',1), S1): a(x_)
        for i in range(4): a(f'v_cndmask_b32 v{Sel+i}, 0, v{T+2}, {sp(sSel+2*i)}')
        a.nops(preA - (len(a.items) - n0))
        R1 = M+8; R2 = P2
        def redA(R):
            a(f"""
            s_waitcnt vmcnt(3)
            v_mfma_f32_16x16x32_bf16 {vr(Dr,4)}, {vr(R,4)}, {vr(Sel,4)}, 0
            s_waitcnt vmcnt(2)
            v_mfma_f32_16x16x32_bf16 {vr(Dr,4)}, {vr(R+4,4)}, {vr(Sel,4)}, {vr(Dr,4)}
            v_max_u32 v{T}, v{R}, v{R+4}
            v_cmp_eq_u32 vcc, -1, v{T}
            """)
        ldA(R1)
        a.nops(gapA - 2)
        a.label(L('pa'))
        ldA(R2)
        redA(R1)
        a(f's_cbranch_vccz {L("qa")}')
        ldA(R1); spin()
        redA(R2)
        a(f's_cbranch_vccnz {L("pa")}')
        a.label(L('qa'))
        stamp('h1')
        a(f"""
        v_permlane32_swap_b32 v{Dr}, v{Dr+2}
        v_permlane32_swap_b32 v{Dr+1}, v{Dr+3}
        v_add_f32 v{Dr}, v{Dr}, v{Dr+2}
        v_add_f32 v{Dr+1}, v{Dr+1}, v{Dr+3}
        v_permlane16_swap_b32 v{Dr}, v{Dr+1}
        v_add_f32 v{Dr}, v{Dr}, v{Dr+1}
        v_mov_b32_dpp v{Dr+1}, v{Dr} quad_perm:[1,0,3,2] {DPPM}
        v_cvt_pk_bf16_f32 v{Dr}, v{Dr}, v{Dr+1}
        s_mov_b64 exec, {sp(sPub)}
        v_min_u32 v{Dr}, -2, v{Dr}
        global_store_dword v{vMst}, v{Dr}, {sp(sMst)}{stc}
        """)
        stamp('h2')
        a(f"""
        s_mov_b64 exec, -1
        """)
        tstamp(f's{sT}')
        if prof and len(stamps) >= 2:
            a('s_waitcnt lgkmcnt(0)')
            for i in range(len(stamps)-1): a(f's_sub_u32 s{sA}, s{sP+2*i+2}, s{sP+2*i}\ns_add_u32 s{sP+21+i}, s{sP+21+i}, s{sA}')
        if prof:
            a(f's_cmp_lg_u32 s{sT}, 3\ns_cbranch_scc1 {L("pf1")}\ns_memtime {sp(sP+28)}\ns_mov_b32 s{sSpin}, 0')
            for i in range(6): a(f's_mov_b32 s{sP+21+i}, 0')
            a(f'{L("pf1")}:\ns_cmp_lg_u32 s{sT}, {nsteps-2}\ns_cbranch_scc1 {L("pf2")}\ns_memtime {sp(sP)}\ns_waitcnt lgkmcnt(0)\ns_sub_u32 s{sP+20}, s{sP}, s{sP+28}\n{L("pf2")}:')
        a(f's_add_u32 s{sT}, s{sT}, 1\ns_add_u32 s{sA}, s{sT}, 1\ns_cmp_lt_u32 s{sA}, s{sRdy}\ns_cbranch_scc1 {L("step")}')
        a(f'v_lshrrev_b32 v{T}, 2, v{vLin}')
        a.label(L('rp'))
        a(f'global_load_dword v{T+1}, v{T}, {sp(sFK)} sc1')
        spin()
        a('s_waitcnt vmcnt(0)')
        fkeval(T+1)
        a(f's_cmp_lt_u32 s{sA}, s{sRdy}\ns_cbranch_scc1 {L("step")}\ns_sleep 2\ns_branch {L("rp")}')
        a.label(L('last'))
        a('s_nop 7')
        for x_ in lastc: a(x_)
        a(f's_branch {LE}')
    loop(L, stc)
    if mega: loop(lambda x: L('s_' + x), ' sc1')
    a.label(L('end'))
    a('s_mov_b64 exec, -1\ns_nop 7')
    a(f'''
    s_add_u32 s{sKVM}, s{sKVM}, {0 if kvnow else 32*4096}
    s_addc_u32 s{sKVM+1}, s{sKVM+1}, 0
    global_store_dwordx4 v{vLin}, {vr(HK,4)}, {sp(sKVM)} sc1
    v_mov_b32 v{T}, 0x41
    s_waitcnt vmcnt(0)
    s_barrier
    s_mov_b64 exec, {sp(sFm)}
    global_store_dword v{vLin}, v{T}, {sp(sFl)} sc1
    s_mov_b64 exec, -1
    ''')
    if prof:
        for i in range(7): a(f'v_mov_b32 v{T+i}, s{sP+20+i}')
        a(f'''
        v_mov_b32 v{T+7}, s{sSpin}
        s_lshl_b32 s{sA}, s{sH}, 2
        s_add_u32 s{sA}, s{sA}, s{sW}
        s_lshl_b32 s{sA}, s{sA}, 5
        s_add_u32 s{sA}, s{sA}, {WS_PROF}
        v_mov_b32 v{T+8}, s{sA}
        s_mov_b64 exec, 1
        global_store_dwordx4 v{T+8}, {vr(T,4)}, {sp(sWs)}
        global_store_dwordx4 v{T+8}, {vr(T+4,4)}, {sp(sWs)} offset:16
        s_mov_b64 exec, -1
        ''')
    tl(a, 4, T, 0)
    a('s_waitcnt vmcnt(0) lgkmcnt(0)')

def standalone(name='chain_kernel', **kw):
    a = Asm()
    a.raw(khead(name))
    a(f'''
    s_load_dwordx2 {sp(sMem)}, s[0:1], 8
    s_load_dwordx4 s[8:11], s[0:1], 24
    s_load_dwordx2 {sp(sWq)}, s[0:1], 16
    s_load_dwordx2 {sp(sWo)}, s[0:1], 40
    s_load_dwordx2 {sp(sDbg)}, s[0:1], 104
    s_load_dwordx2 {sp(sWs)}, s[0:1], 112
    s_getreg_b32 s{sA}, hwreg(HW_REG_XCC_ID)
    s_and_b32 s{sA}, s{sA}, 15
    s_mov_b32 s{sXcc}, s{sA}
    s_waitcnt lgkmcnt(0)
    s_cmp_lg_u32 s{sA}, 0
    s_cbranch_scc1 L_done_{name}
    v_mov_b32 v1, 0
    v_mov_b32 v2, 1
    v_lshrrev_b32 v4, 6, v0
    v_readfirstlane_b32 s{sW}, v4
    s_cmp_lg_u32 s{sW}, 0
    s_cbranch_scc1 L_t_{name}
    s_mov_b64 exec, 1
    global_atomic_add v3, v1, v2, {sp(sDbg)} sc0 sc1
    s_waitcnt vmcnt(0)
    ds_write_b32 v1, v3
    s_waitcnt lgkmcnt(0)
    s_mov_b64 exec, -1
    L_t_{name}:
    s_barrier
    ds_read_b32 v3, v1
    s_waitcnt lgkmcnt(0)
    v_readfirstlane_b32 s{sH}, v3
    s_barrier
    s_cmp_gt_u32 s{sH}, 31
    s_cbranch_scc1 L_done_{name}
    ''')
    chain(a, name, **kw)
    a.label(f'L_done_{name}')
    a('s_endpgm')
    bad = a.check_branches()
    assert bad == 0
    return a

if __name__ == '__main__':
    import sys
    variants = eval(sys.argv[1]) if len(sys.argv) > 1 else [dict()]
    out = ''.join(f'; @launch kernel=c{i}_kernel grid=(256,1,1) block=(256,1,1) lds=163840\n' for i in range(len(variants)))
    out += '.amdgcn_target "amdgcn-amd-amdhsa--gfx950"\n.text\n'
    for i, v in enumerate(variants):
        a = standalone(f'c{i}_kernel', prof=True, **v); out += a.text()
    out += '.section .rodata,"a"\n' + ''.join(kdesc(f'c{i}_kernel') for i in range(len(variants)))
    open('chain.s','w').write(out)
    open('chain.json','w').write(repr(variants))
```

```python
from asmlib import *
import gen_chain as C
from gen_chain import sp, sMem,sWq,sWk,sWv,sWo,sDbg,sWs,sH,sW,sXcc,QSCALE,WS_KVM,f32,sVer,WS_FL,FL_K,FL_G,FL_P,ROLE_LDS
import math
NAME = 'gated_mix__memory_aug_recurrent_mem_tr__glu_gated_bilinear__prompt_kernel'
WS_QX = 64<<20; WS_ACT = 128<<20; ACT_T = 180224; WS_F2 = 63<<20
WSPIN = 60000
sGrp = 20; sSpin = 21; sA, sB, sC, sD = 22, 23, 24, 25
sX, sWg, sWu, sWd, sGw, sOut = 30, 32, 34, 36, 38, 40
MF = 'v_mfma_f32_16x16x32_bf16'
X = {}

def add64(a, d, s, off):
    o = f's{off}' if isinstance(off, str) is False and False else off
    a(f's_add_u32 s{d}, s{s}, {off}\ns_addc_u32 s{d+1}, s{s+1}, 0')

vCl = 250
def verify(a, tag, n):
    sA, sB, sC, sD = 70, 71, 72, 73
    a(f"""
    s_cmp_lg_u32 s{sVer}, 0
    s_cbranch_scc1 Lv{tag}_ok
    s_lshl_b32 s{sD}, s{sGrp}, 5
    s_add_u32 s{sD}, s{sD}, s{sH}
    v_mov_b32 v{vCl+1}, {ROLE_LDS}
    s_cmp_lg_u32 s{sW}, 0
    s_cbranch_scc1 Lv{tag}_b
    s_mov_b64 exec, 1
    s_mov_b32 s{sSpin}, 0
    s_waitcnt vmcnt({min(n,63)})
    Lv{tag}_c:
    s_lshl_b32 s{sB}, 1, s{sH}
    v_readfirstlane_b32 s{sC}, v{vCl}
    s_and_b32 s{sA}, s{sC}, s{sB}
    s_cbranch_scc0 Lv{tag}_w
    s_add_u32 s{sSpin}, s{sSpin}, 1
    s_cmp_gt_u32 s{sSpin}, 400
    s_cbranch_scc1 Lv{tag}_f
    s_ff0_i32_b32 s{sH}, s{sC}
    s_cmp_lg_i32 s{sH}, -1
    s_cbranch_scc1 Lv{tag}_r
    s_add_u32 s{sGrp}, s{sGrp}, 1
    s_and_b32 s{sGrp}, s{sGrp}, 7
    s_mov_b32 s{sH}, 0
    s_cmp_eq_u32 s{sGrp}, s{sXcc}
    s_cbranch_scc1 Lv{tag}_f
    Lv{tag}_r:
    s_lshl_b32 s{sA}, s{sGrp}, 2
    s_lshl_b32 s{sB}, 1, s{sH}
    v_mov_b32 v{vCl+2}, s{sA}
    v_mov_b32 v{vCl+3}, s{sB}
    global_atomic_or v{vCl}, v{vCl+2}, v{vCl+3}, {sp(sDbg)} sc0 sc1
    s_waitcnt vmcnt(0)
    s_branch Lv{tag}_c
    Lv{tag}_f:
    s_mov_b32 s{sGrp}, 8
    s_mov_b32 s{sH}, 0
    Lv{tag}_w:
    s_lshl_b32 s{sA}, s{sGrp}, 5
    s_add_u32 s{sA}, s{sA}, s{sH}
    v_mov_b32 v{vCl}, s{sA}
    ds_write_b32 v{vCl+1}, v{vCl}
    s_waitcnt lgkmcnt(0)
    s_mov_b64 exec, -1
    Lv{tag}_b:
    s_barrier
    ds_read_b32 v{vCl}, v{vCl+1}
    s_mov_b32 s{sVer}, 1
    s_waitcnt lgkmcnt(0)
    v_readfirstlane_b32 s{sA}, v{vCl}
    s_cmp_eq_u32 s{sA}, s{sD}
    s_cbranch_scc1 Lv{tag}_ok
    s_and_b32 s{sH}, s{sA}, 31
    s_lshr_b32 s{sGrp}, s{sA}, 5
    s_waitcnt vmcnt(0)
    s_barrier
    s_branch L_role
    Lv{tag}_ok:
    """)
    a.nvm -= 1; a.nds -= 1
C.VERIFY = verify

def poll(a, lab, loads, check, sl=8):
    a(f"""
    s_mov_b32 s{sSpin}, 0
    {lab}_p:
    {loads}
    s_add_u32 s{sSpin}, s{sSpin}, 1
    s_cmp_gt_u32 s{sSpin}, {WSPIN}
    s_cbranch_scc1 {lab}_b
    s_waitcnt vmcnt(0)
    {check}
    s_cbranch_vccz {lab}_b
    s_sleep {sl}
    s_branch {lab}_p
    {lab}_b:
    s_waitcnt vmcnt(0)
    """)

class Filt:
    def __init__(s, a): s.__dict__['a'] = a
    def __getattr__(s, k): return getattr(s.a, k)
    def __setattr__(s, k, v): setattr(s.a, k, v)
    def __call__(s, t):
        if t.startswith('global_store_dwordx4 v6'):
            if X.get('nost'): return None
            if X.get('plain'): t = t.replace(' sc1', '')
            if X.get('nt'): t = t.replace(' sc1', ' sc1 nt')
        return s.a(t)
def t1(a):
    a = Filt(a)
    sTile, sBuf, sStr, sW0, sW1, sO0, sO1, sBlk, sM, sXb = 44, 45, 46, 48, 50, 52, 54, 56, 57, 58
    sStep, sFo, sFb = 47, 60, 62
    vOne, vFo, vPf, vPr, vRa, vRd, vXr = 14, 15, 7, 128, 129, 130, 131
    XR = 23
    ACC = 16; WF = 80; PK = 112
    vLane, vN, vG, vLin, vTr, vRow, vCh, vA, vXo = 3, 4, 5, 6, 8, 10, 11, 12, 13
    acc = lambda T, hf, v: ACC + 16*T + 8*hf + 4*v
    def prefetch():
        a(f'''
        s_sub_u32 s{sA}, s{sGrp}, 1
        s_lshl_b32 s{sB}, s{sH}, 2
        s_add_u32 s{sB}, s{sB}, s{sW}
        s_mul_i32 s{sB}, s{sB}, 7
        s_add_u32 s{sA}, s{sA}, s{sB}
        v_and_b32 v1, 63, v0
        v_lshlrev_b32 v1, 7, v1
        ''')
        for k in range(3):
            a(f'''
            s_min_u32 s{sA}, s{sA}, 2047
            s_bitcmp1_b32 s{sA}, 9
            s_cselect_b64 {sp(sO0)}, {sp(sWk)}, {sp(sWq)}
            s_cselect_b64 {sp(sO1)}, {sp(sWo)}, {sp(sWv)}
            s_bitcmp1_b32 s{sA}, 10
            s_cselect_b64 {sp(sO0)}, {sp(sO1)}, {sp(sO0)}
            s_and_b32 s{sB}, s{sA}, 511
            s_lshl_b32 s{sB}, s{sB}, 13
            s_add_u32 s{sO0}, s{sO0}, s{sB}
            s_addc_u32 s{sO0+1}, s{sO0+1}, 0
            global_load_dword v{vPf}, v1, {sp(sO0)}{X.get('pfc', '')}
            s_add_u32 s{sA}, s{sA}, 896
            ''')
    if X.get('pf') == 1: prefetch()
    a(f'''
    s_add_u32 s{sFb}, s{sWs}, {WS_FL}
    s_addc_u32 s{sFb+1}, s{sWs+1}, 0
    v_mov_b32 v{vOne}, 1
    s_cmp_lg_u32 s{sGrp}, 7
    s_cbranch_scc1 Lt1_nz
    s_cmp_lg_u32 s{sH}, 31
    s_cbranch_scc1 Lt1_nz
    ''')
    verify(a, 'z', 0)
    a(f'''
    v_mov_b64 {vr(PK,2)}, 0
    v_mov_b64 {vr(PK+2,2)}, 0
    v_lshlrev_b32 v1, 4, v0
    ''')
    for i in range(6):
        a(f'global_store_dwordx4 v1, {vr(PK,4)}, {sp(sFb)} sc1')
        if i < 5: a('v_add_u32 v1, 4096, v1')
    a(f'''
    s_add_u32 s{sA}, s{sW}, 160
    v_mov_b32 v1, s{sA}
    s_waitcnt vmcnt(0)
    s_mov_b64 exec, 1
    global_store_byte v1, v{vOne}, {sp(sDbg)} sc1
    s_mov_b64 exec, -1
    Lt1_nz:
    ''')
    if X.get('nowork'): a('s_waitcnt vmcnt(0)\ns_endpgm')
    a(f'''
    v_and_b32 v{vLane}, 63, v0
    v_and_b32 v{vN}, 15, v0
    v_lshrrev_b32 v{vG}, 4, v{vLane}
    v_lshlrev_b32 v{vLin}, 4, v{vLane}
    s_sub_u32 s{sB}, s{sGrp}, 1
    s_mul_i32 s{sA}, s{sH}, 37
    s_lshr_b32 s{sA}, s{sA}, 8
    s_mul_i32 s{sBlk}, s{sA}, 7
    s_sub_u32 s{sBlk}, s{sH}, s{sBlk}
    s_add_u32 s{sBlk}, s{sBlk}, 1
    s_mul_i32 s{sTile}, s{sB}, 3
    s_add_u32 s{sTile}, s{sTile}, s{sA}
    s_mul_i32 s{sB}, s{sB}, 11
    s_add_u32 s{sB}, s{sB}, s{sH}
    s_sub_u32 s{sB}, s{sB}, 21
    s_cmp_lt_u32 s{sH}, 21
    s_cselect_b32 s{sBlk}, s{sBlk}, 0
    s_cselect_b32 s{sTile}, s{sTile}, s{sB}
    s_cselect_b32 s{sStep}, 21, 77
    ; W prefetch rows: 32*((4*(blk-1)+w)&15) + lane%32
    s_lshl_b32 s{sA}, s{sBlk}, 2
    s_add_u32 s{sA}, s{sA}, s{sW}
    s_and_b32 s{sA}, s{sA}, 7
    s_lshl_b32 s{sA}, s{sA}, 6
    v_add_u32 v{vPr}, s{sA}, v{vLane}
    ; DMA lane: row = l/4 + 128w ; chunk = (l%4) ^ (2*bit5)
    v_lshrrev_b32 v{vRow}, 2, v{vLane}
    s_lshl_b32 s{sA}, s{sW}, 7
    v_add_u32 v{vRow}, s{sA}, v{vRow}
    v_lshrrev_b32 v{vCh}, 4, v{vLane}
    v_and_b32 v{vCh}, 2, v{vCh}
    v_xor_b32 v{vCh}, v{vCh}, v{vLane}
    v_and_b32 v{vCh}, 3, v{vCh}
    v_lshlrev_b32 v{vCh}, 4, v{vCh}
    s_mov_b32 s{sBuf}, 0
    ''')
    def wsrc(tag, tile):
        a(f'''
        s_cmp_ge_u32 s{tile}, 192
        s_cbranch_scc1 Lt1_{tag}_gu
        s_lshr_b32 s{sA}, s{tile}, 6
        s_cmp_eq_u32 s{sA}, 0
        s_cselect_b64 {sp(sW0)}, {sp(sWk)}, {sp(sWv)}
        s_cmp_eq_u32 s{sA}, 2
        s_cselect_b64 {sp(sW0)}, {sp(sWq)}, {sp(sW0)}
        s_and_b32 s{sA}, s{tile}, 63
        s_lshl_b32 s{sA}, s{sA}, 7
        s_add_u32 s{sW0}, s{sW0}, s{sA}
        s_addc_u32 s{sW0+1}, s{sW0+1}, 0
        s_add_u32 s{sW1}, s{sW0}, 64
        s_addc_u32 s{sW1+1}, s{sW0+1}, 0
        s_mov_b32 s{sStr}, 8192
        s_branch Lt1_{tag}_e
        Lt1_{tag}_gu:
        s_min_u32 s{sA}, s{tile}, 234
        s_sub_u32 s{sA}, s{sA}, 192
        s_lshl_b32 s{sA}, s{sA}, 6
        s_add_u32 s{sW0}, s{sWg}, s{sA}
        s_addc_u32 s{sW0+1}, s{sWg+1}, 0
        s_add_u32 s{sW1}, s{sWu}, s{sA}
        s_addc_u32 s{sW1+1}, s{sWu+1}, 0
        s_mov_b32 s{sStr}, 2752
        Lt1_{tag}_e:
        v_mad_u32_u24 v{vA}, v{vRow}, s{sStr}, v{vCh}
        s_lshl_b32 s{sStr}, s{sStr}, 4
        ''')
    def dma(i):
        r = [f's_add_u32 m0, s{sM}, {i*1024}', f'global_load_lds_dwordx4 v{vA}, {sp(sW0)}',
             f's_add_u32 m0, s{sM}, {32768+i*1024}', f'global_load_lds_dwordx4 v{vA}, {sp(sW1)}']
        if i < 7: r.append(f'v_add_u32 v{vA}, s{sStr}, v{vA}')
        return r
    wsrc('p', sTile)
    a(f's_lshl_b32 s{sM}, s{sW}, 13')
    for i in range(8):
        for x in dma(i): a(x)
    a(f'''
    s_lshl_b32 s{sA}, s{sBlk}, 18
    s_lshl_b32 s{sB}, s{sW}, 16
    s_add_u32 s{sA}, s{sA}, s{sB}
    s_add_u32 s{sXb}, s{sX}, s{sA}
    s_addc_u32 s{sXb+1}, s{sX+1}, 0
    s_mul_i32 s{sD}, s{sW}, {XR*1040}
    s_add_u32 s{sD}, s{sD}, 65536
    v_mov_b32 v{vXo}, v{vLin}
    v_mul_u32_u24 v{vXr}, 1040, v{vN}
    v_lshl_add_u32 v{vXr}, v{vG}, 4, v{vXr}
    v_add_u32 v{vXr}, s{sD}, v{vXr}
    ''')
    xt = {}
    def xdma(r):
        a(f's_add_u32 m0, s{sD}, {(r%XR)*1040 - (r%4)*1024}')
        xt[r] = a(f'global_load_lds_dwordx4 v{vXo}, {sp(sXb)} offset:{(r%4)*1024}')
        if r % 4 == 3: a(f'v_add_u32 v{vXo}, 4096, v{vXo}')
    for r in range(XR): xdma(r)
    if X.get('pf') == 2: prefetch()
    verify(a, 'w', 16 + XR + 3*(X.get('pf', 0) > 0))
    nx = XR
    for T in range(4):
        b = (16*T) % XR
        a(f'v_add_u32 v1, {b*1040}, v{vXr}')
        if b + 16 > XR: a(f'v_cmp_le_u32 vcc, {XR-b}, v{vN}\nv_subrev_u32 v2, {XR*1040}, v1\nv_cndmask_b32 v1, v1, v2, vcc')
        a.wvm(xt[16*T+15])
        for ks in range(16): a(f'ds_read_b128 {vr(64*T+4*ks,4,"a")}, v1 offset:{ks*64}')
        if nx < 64:
            a('s_waitcnt lgkmcnt(0)')
            for r in range(nx, min(nx+16, 64)): xdma(r)
            nx = min(nx+16, 64)
    a(f'''
    v_lshlrev_b32 v{vTr}, 9, v{vG}
    v_and_b32 v1, 12, v{vLane}
    v_lshl_add_u32 v{vTr}, v1, 4, v{vTr}
    v_and_b32 v1, 3, v{vLane}
    v_lshl_add_u32 v{vTr}, v1, 3, v{vTr}
    v_and_b32 v1, 1, v{vG}
    v_lshl_add_u32 v{vTr}, v1, 5, v{vTr}
    v_xor_b32 v{vTr+1}, 32, v{vTr}
    ''')
    a(f'''
    v_mov_b32 v{vFo}, {FL_G+1536}
    s_mov_b64 {sp(sFo)}, 0
    v_mov_b32 v{vRa}, 160
    v_mov_b32 v{vRd}, 0x01010101
    s_cmp_lg_u32 s{sW}, 0
    s_cbranch_scc1 Lt1_n0
    global_load_dword v{vRd}, v{vRa}, {sp(sDbg)} sc1
    Lt1_n0:
    s_waitcnt lgkmcnt(0)
    s_barrier
    ''')
    C.tl(a, 1, 1, f's{sGrp}')
    a.label('Lt1_tile')
    if X.get('wpf', 1):
        a(f's_lshl_b32 s{sD}, s{sStep}, 1\ns_add_u32 s{sD}, s{sD}, s{sTile}')
        wsrc('f', sD)
        a(f'''
        s_lshr_b32 s{sStr}, s{sStr}, 4
        v_mul_u32_u24 v1, s{sStr}, v{vPr}
        global_load_dword v{vPf}, v1, {sp(sW0)}
        global_load_dword v{vPf}, v1, {sp(sW1)}
        ''')
    a(f's_add_u32 s{sD}, s{sTile}, s{sStep}')
    wsrc('n', sD)
    a(f's_xor_b32 s{sM}, s{sM}, 65536')
    a(f'''
    s_lshr_b32 s{sA}, s{sTile}, 6
    s_cmp_eq_u32 s{sA}, 1
    s_cbranch_scc1 Lt1_mv
    ''')
    def frags(ks):
        return [f'ds_read_b64_tr_b16 {vr(WF+16*(ks%2)+8*hf+4*v+2*q,2)}, v{vTr+v} offset:{hf*32768+ks*2048+q*256}'
                for hf in range(2) for v in range(2) for q in range(2)]
    def flag(n):
        a(f's_waitcnt vmcnt({n})\ns_mov_b64 exec, {sp(sFo)}\nglobal_store_byte v{vFo}, v{vOne}, {sp(sFb)} sc1\ns_mov_b64 exec, -1')
    def mainloop(swap):
        a.nds = 0
        tg = None
        for x in frags(0): tg = a(x)
        for ks in range(16):
            fill = (frags(ks+1) if ks < 15 else [])
            d = (dma(2*ks) + dma(2*ks+1)) if ks < 4 and not X.get('nodma') else []
            a.wds(tg)
            if ks == X.get('fks', 8): flag(16 + 2*X.get('wpf', 1))
            n = 0
            for hf in range(2):
                for v in range(2):
                    for T in range(4):
                        w_ = vr(WF+16*(ks%2)+8*hf+4*v,4); x_ = vr(64*T+4*ks,4,'a'); c = vr(acc(T,hf,v),4)
                        p, q = (w_, x_) if swap else (x_, w_)
                        a(f'{MF} {c}, {p}, {q}, {c if ks else 0}')
                        if fill and n < 8: tg = a(fill.pop(0))
                        elif d:
                            a(d.pop(0))
                            if d and d[0].startswith('global'): a(d.pop(0))
                        n += 1
            assert not fill and not d
        a(f'''
        v_xor_b32 v{vTr}, 0x10000, v{vTr}
        v_xor_b32 v{vTr+1}, 0x10000, v{vTr+1}
        s_waitcnt vmcnt(0)
        v_cmp_ne_u32 vcc, 0x01010101, v{vRd}
        s_cbranch_vccz Lt1_rd{int(swap)}
        ''')
        poll(a, f'Lt1_r{int(swap)}', f'global_load_dword v{vRd}, v{vRa}, {sp(sDbg)} sc1', f'v_cmp_ne_u32 vcc, 0x01010101, v{vRd}', 8)
        a(f'Lt1_rd{int(swap)}:\ns_barrier')
    def kvbase(base):
        a(f'''
        s_lshl_b32 s{sA}, s{sBlk}, 22
        s_lshl_b32 s{sB}, s{sW}, 20
        s_add_u32 s{sA}, s{sA}, s{sB}
        s_and_b32 s{sB}, s{sTile}, 63
        s_lshl_b32 s{sB}, s{sB}, 13
        s_add_u32 s{sA}, s{sA}, s{sB}
        s_add_u32 s{sA}, s{sA}, {base}
        s_add_u32 s{sO0}, s{sWs}, s{sA}
        s_addc_u32 s{sO0+1}, s{sWs+1}, 0
        s_add_u32 s{sO1}, s{sO0}, 524288
        s_addc_u32 s{sO1+1}, s{sO0+1}, 0
        ''')
    def pack(d, c0, c1):
        a(f'v_cvt_pk_bf16_f32 v{d}, v{c0}, v{c0+1}\nv_cvt_pk_bf16_f32 v{d+1}, v{c0+2}, v{c0+3}')
        a(f'v_cvt_pk_bf16_f32 v{d+2}, v{c1}, v{c1+1}\nv_cvt_pk_bf16_f32 v{d+3}, v{c1+2}, v{c1+3}')
    mainloop(True)
    a(f'''
    s_cmp_ge_u32 s{sTile}, 192
    s_cbranch_scc1 Lt1_eg
    s_mov_b32 s{sC}, 4096
    s_cmp_lt_u32 s{sTile}, 64
    s_cbranch_scc1 Lt1_ek
    s_mov_b32 s{sC}, {QSCALE}
    ''')
    for r in range(64): a(f'v_mul_f32 v{ACC+r}, s{sC}, v{ACC+r}')
    a(f's_mov_b32 s{sC}, {WS_QX+4096}')
    a.label('Lt1_ek')
    kvbase(f's{sC}')
    i = 0
    for T in range(4):
        for hf in range(2):
            d = PK + 4*(i%4); i += 1
            pack(d, acc(T,hf,0), acc(T,hf,1))
            a(f'global_store_dwordx4 v{vLin}, {vr(d,4)}, {sp(sO1 if T//2 else sO0)} offset:{hf*4096-4096+(T%2)*1024} sc1')
    a('s_branch Lt1_next')
    a.label('Lt1_eg')
    a(f'''
    s_lshl_b32 s{sA}, s{sBlk}, 4
    s_lshl_b32 s{sB}, s{sW}, 2
    s_add_u32 s{sA}, s{sA}, s{sB}
    s_mul_i32 s{sA}, s{sA}, {ACT_T}
    s_sub_u32 s{sB}, s{sTile}, 64
    s_lshl_b32 s{sB}, s{sB}, 10
    s_add_u32 s{sA}, s{sA}, s{sB}
    s_add_u32 s{sA}, s{sA}, {WS_ACT}
    s_add_u32 s{sO0}, s{sWs}, s{sA}
    s_addc_u32 s{sO0+1}, s{sWs+1}, 0
    ''')
    for T in range(4):
        for r in range(8): a(f'v_mul_f32 v{acc(T,0,0)+r}, v{acc(T,0,0)+r}, v{acc(T,1,0)+r}')
        d = PK + 4*T
        pack(d, acc(T,0,0), acc(T,0,1))
        a(f'global_store_dwordx4 v{vLin}, {vr(d,4)}, {sp(sO0)} sc1')
        if T < 3: a(f's_add_u32 s{sO0}, s{sO0}, {ACT_T}\ns_addc_u32 s{sO0+1}, s{sO0+1}, 0')
    a('s_branch Lt1_next')
    a.label('Lt1_mv')
    mainloop(False)
    kvbase(4096)
    i = 0
    for s_ in range(2):
        for hf in range(2):
            for u in range(2):
                d = PK + 4*(i%4); i += 1
                pack(d, acc(2*s_,hf,u), acc(2*s_+1,hf,u))
                a(f'global_store_dwordx4 v{vLin}, {vr(d,4)}, {sp(sO1 if s_ else sO0)} offset:{hf*4096-4096+(2+u)*1024} sc1')
    a.label('Lt1_next')
    a(f'''
    s_lshl_b32 s{sA}, s{sBlk}, 2
    s_add_u32 s{sA}, s{sA}, s{sW}
    s_lshl_b32 s{sB}, s{sTile}, 5
    s_add_u32 s{sB}, s{sB}, s{sA}
    s_add_u32 s{sB}, s{sB}, {FL_G-192*32}
    s_lshl_b32 s{sA}, s{sA}, 3
    s_bfe_u32 s{sC}, s{sTile}, 0x50001
    s_lshl_b32 s{sC}, s{sC}, 8
    s_add_u32 s{sA}, s{sA}, s{sC}
    s_lshr_b32 s{sC}, s{sTile}, 6
    s_lshl_b32 s{sC}, s{sC}, 1
    s_add_u32 s{sA}, s{sA}, s{sC}
    s_and_b32 s{sC}, s{sTile}, 1
    s_add_u32 s{sA}, s{sA}, s{sC}
    s_add_u32 s{sA}, s{sA}, {FL_K}
    s_cmp_ge_u32 s{sTile}, 192
    s_cselect_b32 s{sA}, s{sB}, s{sA}
    v_mov_b32 v{vFo}, s{sA}
    s_mov_b64 {sp(sFo)}, 1
    ''')
    if C.TL:
        a(f's_cmp_ge_u32 s{sTile}, 128\ns_cbranch_scc1 Lt1_ntl')
        C.tl(a, 2, 1, f's{sGrp}')
        a.label('Lt1_ntl')
    a(f'''
    s_add_u32 s{sTile}, s{sTile}, s{sStep}
    s_cmp_lt_u32 s{sTile}, 235
    s_cbranch_scc1 Lt1_tile
    ''')
    flag(0)
    C.tl(a, 3, 1, f's{sGrp}')

def t2(a):
    sT, sHd, sK, sQ, sKM, sO, sFl, sMk, sF2 = 44, 45, 46, 48, 50, 52, 54, 56, 64
    vLane, vN, vG, vLin, vKw, vKr, vL2, vNeg = 3, 4, 5, 6, 7, 8, 9, 10
    Q, KX, VX, KM, KT, S, O, P = 16, 48, 80, 112, 128, 144, 176, 240
    DP = 'row_mask:0xf bank_mask:0xf'
    a(f'''
    s_sub_u32 s{sT}, s{sGrp}, 5
    s_lshl_b32 s{sT}, s{sT}, 2
    s_lshr_b32 s{sA}, s{sH}, 3
    s_add_u32 s{sT}, s{sT}, s{sA}
    s_and_b32 s{sHd}, s{sH}, 7
    s_lshl_b32 s{sHd}, s{sHd}, 2
    s_add_u32 s{sHd}, s{sHd}, s{sW}
    s_lshl_b32 s{sA}, s{sW}, 12
    v_lshlrev_b32 v{vKw}, 5, v{vN}
    v_lshl_add_u32 v{vKw}, v{vG}, 3, v{vKw}
    v_add_u32 v{vKw}, s{sA}, v{vKw}
    v_lshlrev_b32 v{vKr}, 3, v{vLane}
    v_add_u32 v{vKr}, s{sA}, v{vKr}
    v_add_u32 v{vL2}, 8192, v{vLin}
    v_mov_b32 v{vNeg}, 0xff800000
    v_lshlrev_b32 v1, 2, v{vG}
    s_lshl_b32 s{sA}, s{sHd}, 7
    s_add_u32 s{sA}, s{sA}, {WS_FL+FL_P}
    s_add_u32 s{sFl}, s{sWs}, s{sA}
    s_addc_u32 s{sFl+1}, s{sWs+1}, 0
    ''')
    for r in range(4):
        a(f'v_add_u32 v2, {r}, v1\nv_cmp_le_u32 {sp(sMk+2*r)}, v2, v{vN}')
    a(f'''
    s_lshl_b32 s{sA}, s{sHd}, 8
    s_add_u32 s{sA}, s{sA}, {WS_FL+FL_K}
    v_lshl_add_u32 v1, v{vLane}, 2, s{sA}
    v_and_b32 v{Q}, 1, v{vLane}
    v_mul_u32_u24 v{Q}, 0x0101, v{Q}
    v_lshlrev_b32 v{Q}, 16, v{Q}
    s_barrier
    ''')
    poll(a, 'Lt2_w', f'global_load_dword v2, v1, {sp(sWs)} sc1', f'v_or_b32 v2, v2, v{Q}\nv_cmp_ne_u32 vcc, 0x01010101, v2', 32)
    C.tl(a, 4, 1, f's{sGrp}')
    a.label('Lt2_seg')
    a(f'''
    s_lshl_b32 s{sA}, s{sT}, 5
    s_add_u32 s{sA}, s{sA}, s{sHd}
    s_lshl_b32 s{sB}, s{sA}, 14
    s_add_u32 s{sB}, s{sB}, 4096
    s_add_u32 s{sK}, s{sWs}, s{sB}
    s_addc_u32 s{sK+1}, s{sWs+1}, 0
    s_add_u32 s{sQ}, s{sK}, {WS_QX}
    s_addc_u32 s{sQ+1}, s{sK+1}, 0
    s_lshl_b32 s{sB}, s{sA}, 12
    s_add_u32 s{sB}, s{sB}, {WS_KVM}
    s_add_u32 s{sKM}, s{sWs}, s{sB}
    s_addc_u32 s{sKM+1}, s{sWs+1}, 0
    s_lshl_b32 s{sB}, s{sA}, 2
    s_add_u32 s{sB}, s{sB}, {WS_F2}
    s_add_u32 s{sF2}, s{sWs}, s{sB}
    s_addc_u32 s{sF2+1}, s{sWs+1}, 0
    s_mul_i32 s{sB}, s{sT}, {2*ACT_T}
    s_lshl_b32 s{sC}, s{sHd}, 12
    s_add_u32 s{sB}, s{sB}, s{sC}
    s_add_u32 s{sB}, s{sB}, {WS_ACT}
    s_add_u32 s{sO}, s{sWs}, s{sB}
    s_addc_u32 s{sO+1}, s{sWs+1}, 0
    ''')
    a.nvm = 0; tq = {}
    for w in range(4):
        for T in range(2):
            va = vL2 if w >= 2 else vLin; off = (w%2)*4096 - 4096
            a(f'global_load_dwordx4 {vr(Q+8*w+4*T,4)}, v{va}, {sp(sQ)} offset:{off+T*1024} sc1')
            tq[w] = a(f'global_load_dwordx4 {vr(KX+8*w+4*T,4)}, v{va}, {sp(sK)} offset:{off+T*1024} sc1')
    for w in range(4):
        for u in range(2):
            va = vL2 if w >= 2 else vLin; off = (w%2)*4096 - 4096
            a(f'global_load_dwordx4 {vr(VX+8*w+4*u,4)}, v{va}, {sp(sK)} offset:{off+2048+u*1024} sc1')
    S00, S01, S11, M0, M1 = S, S+4, S+8, S+12, S+16
    for w in range(4):
        a.wvm(tq[w])
        for (d, tk, tq_) in ((S00,0,0),(S01,0,1),(S11,1,1)):
            a(f'{MF} {vr(d,4)}, {vr(KX+8*w+4*tk,4)}, {vr(Q+8*w+4*tq_,4)}, {vr(d,4) if w else 0}')
    for r in range(4):
        a(f'v_cndmask_b32 v{S00+r}, v{vNeg}, v{S00+r}, {sp(sMk+2*r)}')
        a(f'v_cndmask_b32 v{S11+r}, v{vNeg}, v{S11+r}, {sp(sMk+2*r)}')
    mx0, mx1, t0, t1_ = S+20, S+21, S+22, S+23
    a(f'''
    v_max3_f32 v{mx0}, v{S00}, v{S00+1}, v{S00+2}
    v_max_f32 v{mx0}, v{mx0}, v{S00+3}
    v_max3_f32 v{mx1}, v{S01}, v{S01+1}, v{S01+2}
    v_max3_f32 v{mx1}, v{mx1}, v{S01+3}, v{S11}
    v_max3_f32 v{mx1}, v{mx1}, v{S11+1}, v{S11+2}
    v_max_f32 v{mx1}, v{mx1}, v{S11+3}
    s_add_u32 s{sA}, s{sT}, 2
    v_mov_b32 v1, 0
    s_mov_b32 s{sSpin}, 0
    Lt2_p:
    global_load_dword v2, v1, {sp(sFl)} sc1
    s_add_u32 s{sSpin}, s{sSpin}, 1
    s_cmp_gt_u32 s{sSpin}, {WSPIN}
    s_cbranch_scc1 Lt2_go
    s_waitcnt vmcnt(0)
    v_cmp_le_u32 vcc, s{sA}, v2
    s_cbranch_vccnz Lt2_go
    s_sleep 4
    s_branch Lt2_p
    Lt2_go:
    ''')
    for w in range(4): a(f'global_load_dwordx4 {vr(KM+4*w,4)}, v{vLin}, {sp(sKM)} offset:{w*1024} sc1')
    a('s_waitcnt vmcnt(0)')
    for w in range(4):
        for u in range(2): a(f'ds_write_b32 v{vKw}, v{KM+4*w+u} offset:{w*1024+u*512}')
    a('s_waitcnt lgkmcnt(0)')
    for w in range(4):
        for v in range(2): a(f'ds_read_b64_tr_b16 {vr(KT+4*w+2*v,2)}, v{vKr} offset:{w*1024+v*512}')
    a('s_waitcnt lgkmcnt(0)')
    for w in range(4):
        for T, d in ((0,M0),(1,M1)):
            a(f'{MF} {vr(d,4)}, {vr(KT+4*w,4)}, {vr(Q+8*w+4*T,4)}, {vr(d,4) if w else 0}')
    def xred(op, x, y):
        a(f'''
        v_mov_b32 v{t0}, v{x}
        v_mov_b32 v{t1_}, v{y}
        v_permlane16_swap_b32 v{x}, v{t0}
        v_permlane16_swap_b32 v{y}, v{t1_}
        {op} v{x}, v{x}, v{t0}
        {op} v{y}, v{y}, v{t1_}
        v_mov_b32 v{t0}, v{x}
        v_mov_b32 v{t1_}, v{y}
        v_permlane32_swap_b32 v{x}, v{t0}
        v_permlane32_swap_b32 v{y}, v{t1_}
        {op} v{x}, v{x}, v{t0}
        {op} v{y}, v{y}, v{t1_}
        ''')
    a(f'v_max3_f32 v{mx0}, v{mx0}, v{M0}, v{M0+1}\nv_max3_f32 v{mx1}, v{mx1}, v{M1}, v{M1+1}')
    xred('v_max_f32', mx0, mx1)
    e0 = [S00+r for r in range(4)] + [M0, M0+1]; e1 = [S01+r for r in range(8)] + [M1, M1+1]
    for r in e0: a(f'v_sub_f32 v{r}, v{r}, v{mx0}')
    for r in e1: a(f'v_sub_f32 v{r}, v{r}, v{mx1}')
    for r in e0 + e1: a(f'v_exp_f32 v{r}, v{r}')
    P0, P1, Z0, Z1 = P, P+4, P+8, P+12
    a(f'''
    v_cvt_pk_bf16_f32 v{P0}, v{S00}, v{S00+1}
    v_cvt_pk_bf16_f32 v{P0+1}, v{S00+2}, v{S00+3}
    v_mov_b64 {vr(P0+2,2)}, 0
    v_cvt_pk_bf16_f32 v{P1}, v{S01}, v{S01+1}
    v_cvt_pk_bf16_f32 v{P1+1}, v{S01+2}, v{S01+3}
    v_cvt_pk_bf16_f32 v{P1+2}, v{S11}, v{S11+1}
    v_cvt_pk_bf16_f32 v{P1+3}, v{S11+2}, v{S11+3}
    v_cvt_pk_bf16_f32 v{Z0}, v{M0}, v{M0+1}
    v_mov_b32 v{Z0+1}, 0
    v_mov_b32 v{Z0+2}, 0
    v_mov_b32 v{Z0+3}, v{Z0}
    v_cvt_pk_bf16_f32 v{Z1}, v{M1}, v{M1+1}
    v_mov_b32 v{Z1+1}, 0
    v_mov_b32 v{Z1+2}, 0
    v_mov_b32 v{Z1+3}, v{Z1}
    ''')
    oa = lambda T, w, u: O + 32*T + 8*w + 4*u
    for T in range(2):
        for w in range(4):
            for u in range(2):
                a(f'{MF} {vr(oa(T,w,u),4)}, {vr(VX+8*w+4*u,4)}, {vr(P+4*T,4)}, 0')
    for T in range(2):
        for w in range(4):
            for u in range(2):
                a(f'v_mfma_f32_16x16x16_bf16 {vr(oa(T,w,u),4)}, {vr(KM+4*w+2,2)}, {vr(Z0+4*T+2*u,2)}, {vr(oa(T,w,u),4)}')
    for e in (e0, e1):
        for r in e[1:]: a(f'v_add_f32 v{e[0]}, v{e[0]}, v{r}')
    xred('v_add_f32', e0[0], e1[0])
    a(f'v_rcp_f32 v{e0[0]}, v{e0[0]}\nv_rcp_f32 v{e1[0]}, v{e1[0]}')
    for T in range(2):
        l = (e0, e1)[T][0]
        for w in range(4):
            b = oa(T,w,0)
            for r in range(8): a(f'v_mul_f32 v{b+r}, v{b+r}, v{l}')
            for r in range(4): a(f'v_cvt_pk_bf16_f32 v{b+r}, v{b+2*r}, v{b+2*r+1}')
            a(f'global_store_dwordx4 v{vLin}, {vr(b,4)}, {sp(sO)} offset:{w*1024} sc1')
        if T == 0: a(f's_add_u32 s{sO}, s{sO}, {ACT_T}\ns_addc_u32 s{sO+1}, s{sO+1}, 0')
    a(f'''
    v_mov_b32 v2, 1
    s_waitcnt vmcnt(0)
    s_mov_b64 exec, 1
    global_store_dword v1, v2, {sp(sF2)} sc1
    s_mov_b64 exec, -1
    s_add_u32 s{sT}, s{sT}, 12
    s_cmp_lt_u32 s{sT}, 64
    s_cbranch_scc1 Lt2_seg
    ''')

def t3(a):
    sTau, sAo, sAh, sXa, sF2, sOo, sLb, sTm, sRb = 44, 46, 48, 50, 52, 54, 56, 58, 60
    vLane, vN, vG, vLin, vD, vTr, vXo, vFl, vRs, vOo = 3, 4, 5, 6, 7, 8, 9, 10, 11, 12
    AC = 16; GW = 32; XB = 48; HB = 64; OB = 128; R = 108
    a(f'''
    s_lshl_b32 s{sLb}, s{sW}, 15
    ; DMA lane: row = l/2, chunk = l%2 ; row stride 1024
    v_lshrrev_b32 v{vD}, 1, v{vLane}
    v_lshlrev_b32 v{vD}, 10, v{vD}
    v_and_b32 v1, 1, v{vLane}
    v_lshl_add_u32 v{vD}, v1, 4, v{vD}
    s_lshl_b32 s{sA}, s{sH}, 5
    v_add_u32 v{vD}, s{sA}, v{vD}
    v_lshlrev_b32 v{vTr}, 3, v{vLane}
    v_add_u32 v{vTr}, s{sLb}, v{vTr}
    s_lshl_b32 s{sA}, s{sW}, 20
    s_add_u32 s{sTm}, s{sWo}, s{sA}
    s_addc_u32 s{sTm+1}, s{sWo+1}, 0
    s_barrier
    ''')
    for b in range(32):
        a(f's_add_u32 m0, s{sLb}, {b*1024}\nglobal_load_lds_dwordx4 v{vD}, {sp(sTm)}')
        a(f's_add_u32 s{sTm}, s{sTm}, 32768\ns_addc_u32 s{sTm+1}, s{sTm+1}, 0')
    a(f'''
    v_lshlrev_b32 v1, 4, v{vG}
    s_lshl_b32 s{sA}, s{sW}, 8
    v_add_u32 v1, s{sA}, v1
    v_lshl_add_u32 v{vXo}, v{vN}, 10, v1
    ''')
    for k in range(4): a(f'global_load_dwordx4 {vr(GW+4*k,4)}, v1, {sp(sGw)} offset:{64*k}')
    a('s_waitcnt vmcnt(0)')
    for b in range(32):
        for v in range(2): a(f'ds_read_b64_tr_b16 {vr(4*b+2*v,2,"a")}, v{vTr} offset:{b*1024+v*512}')
    a(f'''
    s_mul_i32 s{sRb}, s{sW}, 11
    s_cmp_eq_u32 s{sW}, 3
    s_subb_u32 s{sRb}, s{sRb}, 0
    s_lshl_b32 s{sA}, s{sRb}, 15
    s_add_u32 s{sTm}, s{sWd}, s{sA}
    s_addc_u32 s{sTm+1}, s{sWd+1}, 0
    s_waitcnt lgkmcnt(0)
    ''')
    for b in range(11):
        a(f's_add_u32 m0, s{sLb}, {b*1024}\nglobal_load_lds_dwordx4 v{vD}, {sp(sTm)}')
        if b < 10: a(f's_add_u32 s{sTm}, s{sTm}, 32768\ns_addc_u32 s{sTm+1}, s{sTm+1}, 0')
    a('s_waitcnt vmcnt(0)')
    for b in range(11):
        for v in range(2): a(f'ds_read_b64_tr_b16 {vr(128+4*b+2*v,2,"a")}, v{vTr} offset:{b*1024+v*512}')
    a(f'''
    s_waitcnt lgkmcnt(0)
    s_cmp_lg_u32 s{sW}, 3
    s_cbranch_scc1 Lt3_nz
    ''')
    for r in range(4): a(f'v_accvgpr_write_b32 a{128+r}, 0')
    a(f'''
    Lt3_nz:
    s_sub_u32 s{sTau}, s{sGrp}, 1
    v_and_b32 v{vFl}, 7, v{vLane}
    v_lshlrev_b32 v{vFl}, 2, v{vFl}
    s_lshl_b32 s{sA}, s{sW}, 5
    v_add_u32 v{vFl}, s{sA}, v{vFl}
    s_mul_i32 s{sA}, s{sW}, 3072
    v_add_u32 v{vRs}, s{sA}, v{vLin}
    v_lshlrev_b32 v{vOo}, 10, v{vN}
    v_lshl_add_u32 v{vOo}, v{vG}, 3, v{vOo}
    s_lshl_b32 s{sA}, s{sH}, 5
    v_add_u32 v{vOo}, s{sA}, v{vOo}
    ''')
    a(f'v_add_u32 v1, {WS_FL+FL_G}, v{vLin}\ns_cmp_lg_u32 s{sW}, 0\ns_cbranch_scc1 Lt3_w_b')
    poll(a, 'Lt3_w', f'global_load_dwordx4 {vr(HB,4)}, v1, {sp(sWs)} sc1\nglobal_load_dwordx4 {vr(HB+4,4)}, v1, {sp(sWs)} offset:352 sc1',
         '\n'.join([f'v_and_b32 v{HB}, v{HB}, v{HB+i}' for i in range(1,8)]) + f'\nv_cmp_ne_u32 vcc, 0x01010101, v{HB}', 64)
    a('s_barrier')
    C.tl(a, 4, 1, f's{sGrp}')
    a.label('Lt3_tile')
    a(f'''
    s_mul_i32 s{sA}, s{sTau}, {ACT_T}
    s_add_u32 s{sA}, s{sA}, {WS_ACT+4096}
    s_lshl_b32 s{sB}, s{sW}, 15
    s_add_u32 s{sB}, s{sB}, s{sA}
    s_add_u32 s{sAo}, s{sWs}, s{sB}
    s_addc_u32 s{sAo+1}, s{sWs+1}, 0
    s_lshl_b32 s{sB}, s{sRb}, 10
    s_add_u32 s{sB}, s{sB}, s{sA}
    s_add_u32 s{sB}, s{sB}, {128*1024}
    s_add_u32 s{sAh}, s{sWs}, s{sB}
    s_addc_u32 s{sAh+1}, s{sWs+1}, 0
    s_lshl_b32 s{sA}, s{sTau}, 14
    s_add_u32 s{sXa}, s{sX}, s{sA}
    s_addc_u32 s{sXa+1}, s{sX+1}, 0
    s_add_u32 s{sOo}, s{sOut}, s{sA}
    s_addc_u32 s{sOo+1}, s{sOut+1}, 0
    s_lshr_b32 s{sA}, s{sTau}, 1
    s_lshl_b32 s{sA}, s{sA}, 7
    s_add_u32 s{sA}, s{sA}, {WS_F2}
    s_add_u32 s{sF2}, s{sWs}, s{sA}
    s_addc_u32 s{sF2+1}, s{sWs+1}, 0
    ''')
    for k in range(4): a(f'global_load_dwordx4 {vr(XB+4*k,4)}, v{vXo}, {sp(sXa)} offset:{64*k}')
    for b in range(11):
        if b == 8: a(f's_add_u32 s{sAh}, s{sAh}, 8192\ns_addc_u32 s{sAh+1}, s{sAh+1}, 0')
        a(f'global_load_dwordx4 {vr(HB+4*b,4)}, v{vLin}, {sp(sAh)} offset:{(b%8)*1024-4096} sc1')
    a(f'''
    s_mov_b32 s{sSpin}, 0
    Lt3_p:
    global_load_dword v2, v{vFl}, {sp(sF2)} sc1
    s_add_u32 s{sSpin}, s{sSpin}, 1
    s_cmp_gt_u32 s{sSpin}, {WSPIN}
    s_cbranch_scc1 Lt3_go
    s_waitcnt vmcnt(0)
    v_cmp_ne_u32 vcc, 1, v2
    s_cbranch_vccz Lt3_go
    s_sleep 4
    s_branch Lt3_p
    Lt3_go:
    s_waitcnt vmcnt(0)
    ''')
    a.nvm = 0; tg = []
    for b in range(32):
        if b and b % 8 == 0: a(f's_add_u32 s{sAo}, s{sAo}, 8192\ns_addc_u32 s{sAo+1}, s{sAo+1}, 0')
        tg.append(a(f'global_load_dwordx4 {vr(OB+4*b,4)}, v{vLin}, {sp(sAo)} offset:{(b%8)*1024-4096} sc1'))
    for k in range(4): a(f'{MF} {vr(AC+8,4)}, {vr(GW+4*k,4)}, {vr(XB+4*k,4)}, {vr(AC+8,4) if k else 0}')
    for b in range(11): a(f'{MF} {vr(AC+4,4)}, {vr(128+4*b,4,"a")}, {vr(HB+4*b,4)}, {vr(AC+4,4) if b else 0}')
    for b in range(32):
        a.wvm(tg[b])
        a(f'{MF} {vr(AC,4)}, {vr(4*b,4,"a")}, {vr(OB+4*b,4)}, {vr(AC,4) if b else 0}')
    a(f'''
    ds_write_b128 v{vRs}, {vr(AC+4,4)} offset:1024
    ds_write_b128 v{vRs}, {vr(AC+8,4)} offset:2048
    ds_write_b128 v{vRs}, {vr(AC,4)}
    s_waitcnt lgkmcnt(0)
    s_barrier
    s_cmp_lg_u32 s{sW}, 0
    s_cbranch_scc1 Lt3_nx
    ''')
    for w in range(1,4):
        for j in range(3): a(f'ds_read_b128 {vr(HB+12*w+4*j,4)}, v{vRs} offset:{3072*w+1024*j}')
    a('s_waitcnt lgkmcnt(0)')
    for w in range(1,4):
        for r in range(9): a(f'v_add_f32 v{AC+r}, v{AC+r}, v{HB+12*w+r}')
    g = AC+8
    a(f'''
    v_mul_f32 v{g}, {f32(-math.log2(math.e))}, v{g}
    v_exp_f32 v{g}, v{g}
    v_add_f32 v{g}, 1.0, v{g}
    v_rcp_f32 v{g}, v{g}
    v_sub_f32 v{g+1}, 1.0, v{g}
    ''')
    for r in range(4): a(f'v_mul_f32 v{AC+r}, v{AC+r}, v{g}\nv_fmac_f32 v{AC+r}, v{AC+4+r}, v{g+1}')
    a(f'''
    v_cvt_pk_bf16_f32 v{AC}, v{AC}, v{AC+1}
    v_cvt_pk_bf16_f32 v{AC+1}, v{AC+2}, v{AC+3}
    global_store_dwordx2 v{vOo}, {vr(AC,2)}, {sp(sOo)}
    Lt3_nx:
    v_xor_b32 v{vRs}, 0x4000, v{vRs}
    s_add_u32 s{sTau}, s{sTau}, 4
    s_cmp_lt_u32 s{sTau}, 128
    s_cbranch_scc1 Lt3_tile
    ''')

def build(name=NAME, **kw):
    a = Asm()
    a.raw(khead(name))
    a(f'''
    s_cmp_ge_u32 s2, 256
    s_cbranch_scc1 L_done
    s_load_dwordx2 {sp(sDbg)}, s[0:1], 104
    s_load_dwordx2 {sp(sMem)}, s[0:1], 8
    s_load_dwordx4 s[8:11], s[0:1], 24
    s_load_dwordx2 {sp(sWq)}, s[0:1], 16
    s_load_dwordx2 {sp(sWo)}, s[0:1], 40
    s_load_dwordx2 {sp(sWs)}, s[0:1], 112
    s_load_dwordx2 {sp(sX)}, s[0:1], 0
    s_load_dwordx8 s[32:39], s[0:1], 64
    s_load_dwordx2 {sp(sOut)}, s[0:1], 96
    s_getreg_b32 s{sXcc}, hwreg(HW_REG_XCC_ID)
    s_and_b32 s{sXcc}, s{sXcc}, 7
    v_lshrrev_b32 v4, 6, v0
    v_mov_b32 v5, 0
    v_readfirstlane_b32 s{sW}, v4
    s_mov_b32 s{sGrp}, s{sXcc}
    s_lshr_b32 s{sH}, s2, 3
    s_mov_b32 s{sVer}, 0
    s_lshl_b32 s{sA}, s{sGrp}, 2
    s_lshl_b32 s{sB}, 1, s{sH}
    v_mov_b32 v{vCl+2}, s{sA}
    v_mov_b32 v{vCl+3}, s{sB}
    s_waitcnt lgkmcnt(0)
    s_cmp_lg_u32 s{sW}, 0
    s_cbranch_scc1 L_role
    s_mov_b64 exec, 1
    global_atomic_or v{vCl}, v{vCl+2}, v{vCl+3}, {sp(sDbg)} sc0 sc1
    s_mov_b64 exec, -1
    L_role:
    s_cmp_gt_u32 s{sGrp}, 7
    s_cbranch_scc1 L_done
    ''')
    C.tl(a, 0, 1, f's{sGrp}')
    a(f's_cmp_lg_u32 s{sGrp}, 0\ns_cbranch_scc1 L_work')
    C.chain(a, 'c', mega=True, **kw)
    a('s_endpgm')
    a.label('L_work')
    t1(a)
    a(f's_cmp_lt_u32 s{sGrp}, 5\ns_cbranch_scc1 L_t3')
    t2(a)
    C.tl(a, 5, 2, f's{sGrp}')
    a('s_endpgm')
    a.label('L_t3')
    t3(a)
    C.tl(a, 5, 2, f's{sGrp}')
    a.label('L_done')
    a('s_endpgm')
    assert a.check_branches() == 0
    return a

if __name__ == '__main__':
    import sys
    kw = eval(sys.argv[2]) if len(sys.argv) > 2 else {}
    C.TL = kw.pop('tl', False)
    X.update(kw.pop('x', {}))
    ref = open('gated_mix__memory_aug_recurrent_mem_tr__glu_gated_bilinear__prompt.s.ref').read().split('\n')
    head = [l for l in ref if l.startswith(';') and '@launch' not in l]
    out = '\n'.join(head) + '\n; @launch grid=(256,1,1) block=(256,1,1) lds=163840\n'
    out += '.amdgcn_target "amdgcn-amd-amdhsa--gfx950"\n.text\n' + build(**kw).text()
    out += '.section .rodata,"a"\n' + kdesc(NAME)
    open(sys.argv[1], 'w').write(out)
```

```python
from asmlib import *
import struct, math
WS_KV = 0; WS_QX = 32<<20; WS_KVM = 48<<20; WS_RA = 60<<20; WS_RM = 61<<20; WS_PROF = 62<<20
RA_SLOT = 128*2048; RM_SLOT = 8192
SLAB = 131072
def f32(x): return struct.unpack('<I', struct.pack('<f', x))[0]
QSCALE = f32(128**-0.5 * math.log2(math.e))

M=0; QV=32; KA=40; KX=48; XO=40; VX=56; S=64; T=96
vIdx,vLin,vKr,vTc,vXw,vXr,vPst,vMst,vLw,vOw,vM0,vM1,HK,_,HV,_2 = range(112,128)
sMem,sWq,sWk,sWv,sWo,sDbg,sWs = 4,6,8,10,12,14,16
sH,sW,sT,sSpin = 18,19,20,21
sTmp=22; sLb=24; sA=25; sB=26; sC=27
sKV=30; sKVM=32; sSt0=34; sSt1=36; sAld=38; sArs=40; sMld=42; sMst=44
sRA=46; sRAo=48; sRMl=50; sRMs=52
sB1=54; sSel=56; sPm=64; sPub=66; sM0kv=68; sQc=69
sFl=28; sXcc=3; sFm=100; sRdy=86; sVer=87; sFK=84; sGot=88; sNx=89
WS_FL = 63<<20; FL_K = 8192; FL_G = 16384; FL_P = 20480
ROLE_LDS = 163832
VERIFY = None
sP=70
SPIN=200000
def sp(x): return f's[{x}:{x+1}]'

LDS_BLK = [('q',0),('q',1),('k',0),('k',6),('k',7),('o',5),('o',6),('o',7)]
NQ = 5
KVS = 2304
L_KV = SLAB+8192; L_MQ = SLAB; L_X = SLAB+28672; L_O = L_MQ
REG_BLK = [(m,i) for m in 'qkvo' for i in range(8) if (m,i) not in LDS_BLK]
def dest(b):
    i = REG_BLK.index(b)
    return ('a', 16*i) if i < 16 else ('v', 128 + 16*(i-16))

WS_TL = (62<<20) + 65536
TL = False
TLN = 0
def tl(a, i, v1, role_hi):
    if not TL: return
    if TL == 2:
        ch = (role_hi == 0)
        if i > 5: return
        a(f"""
        s_memrealtime s[90:91]
        s_waitcnt lgkmcnt(0)
        s_mov_b32 s{74+i}, s90
        """)
        if (ch and i == 4) or (not ch and i == 5):
            global TLN
            TLN += 1
            idx = [0,2,3,4] if ch else [0,3,4,5]
            a(f"""
            s_lshl_b32 s97, s{sH}, 2
            s_add_u32 s97, s97, s{sW}
            """)
            if not ch: a(f's_xor_b32 s96, {role_hi}, 4\ns_or_b32 s97, s97, s96')
            a(f's_cmp_lg_u32 s97, 0\ns_cbranch_scc1 Ltl2_{TLN}')
            for k_, j in enumerate(idx): a(f'v_mov_b32 v{v1+4+k_}, s{74+j}')
            a(f"""
            v_mov_b32 v{v1}, {32 if ch else 48}
            s_mov_b64 exec, 1
            global_store_dwordx4 v{v1}, v[{v1+4}:{v1+7}], {sp(sDbg)} sc1
            s_mov_b64 exec, -1
            Ltl2_{TLN}:
            """)
        return
    a(f"""
    s_memrealtime s[98:99]
    s_memtime s[90:91]
    s_lshl_b32 s97, {role_hi}, 5
    s_add_u32 s97, s97, s{sH}
    s_lshl_b32 s97, s97, 2
    s_add_u32 s97, s97, s{sW}
    s_lshl_b32 s97, s97, 6
    s_add_u32 s97, s97, {WS_TL+4*i}
    v_mov_b32 v{v1}, s97
    s_waitcnt lgkmcnt(0)
    v_mov_b32 v{v1+1}, s98
    s_mov_b64 exec, 1
    global_store_dword v{v1}, v{v1+1}, {sp(sWs)}
    s_nop 1
    v_mov_b32 v{v1+1}, s90
    global_store_dword v{v1}, v{v1+1}, {sp(sWs)} offset:32
    s_mov_b64 exec, -1
    """)

def chain(a, tag, sc='', mega=False, prof=False, nsteps=64, preA=56, preB=44, gapA=48, gapB=48, sgq=-3, pKx=12, pB2=5, ntr=2, rdw=1, wx=1, g7=32, stamps=(), wnt=' nt', ont=None, mord='qkv', warm=1, tls=(0,8,16), opt=(), tsc=' sc1', tdist=1, skip=(), vp='kv@P0 d2@A2 d3@A6 rm@Q2 d0@Q4 fl@Q6 d1@Q9 tc@Q12 r0@Q16 r1@Q20'):
    L = lambda x: f'L{tag}_{x}'
    DIR = True
    stc = (' ' + sc) if sc else ''
    LE = L('end')
    if ont is None: ont = wnt
    kvnow = any(x_[:2] == 'kv' and x_[3] in 'CW' for x_ in vp.split())
    staged = {}
    def B(m, i, u):
        if (m,i) in staged: return vr(staged[(m,i)] + 8*u, 8)
        k, b = dest((m,i)); return vr(b + 8*u, 8, k)
    def SM(acc, A, m, i, u): a(f'v_smfmac_f32_16x16x64_bf16 {vr(acc,4)}, {vr(A,4)}, {B(m,i,u)}, v{vIdx}')
    def stg(blk, r):
        slot = LDS_BLK.index(blk); staged[blk] = r
        return [f'ds_read_b128 {vr(r+4*i,4)}, v{vLw} offset:{slot*4096+i*1024}' for i in range(4)]
    def stamp(i):
        if prof and i in stamps: a(f's_memtime {sp(sP+2*stamps.index(i))}')

    lane,n_,g_,t1,t2,t3 = T,T+1,T+2,T+3,T+4,T+5
    vWa, vOa = KX+4, T+9
    vTr = VX
    vL4, vFd, vFk = T+6, T+7, KX
    vTo = KX+2
    a(f'''
    v_and_b32 v{lane}, 63, v0
    v_and_b32 v{n_}, 15, v0
    v_lshrrev_b32 v{g_}, 4, v{lane}
    v_lshlrev_b32 v{vLin}, 4, v{lane}
    s_lshl_b32 s{sLb}, s{sW}, 15
    s_mul_i32 s{sA}, s{sW}, {KVS}
    s_add_u32 s{sM0kv}, s{sA}, {L_KV}
    v_add_u32 v{vLw}, s{sLb}, v{vLin}
    v_lshlrev_b32 v{vTc}, 5, v{lane}
    ; cooperative qkv DMA: instr i=gb, r'=lane/16, p=lane%16 holds chunk p^(2r'+8gb0) of row 32(w&1)+8(w>>1)+4gb1+gb0+16(r'&1)+2(r'>>1)
    v_and_b32 v{t1}, 1, v{g_}
    v_lshrrev_b32 v{t3}, 1, v{g_}          ; gb1
    v_lshlrev_b32 v{t2}, 1, v{g_}
    v_xor_b32 v{t2}, v{t2}, v{n_}
    v_lshlrev_b32 v{t2}, 4, v{t2}
    v_lshl_add_u32 v{t2}, v{t1}, 17, v{t2}
    v_lshl_add_u32 v{t2}, v{t3}, 14, v{t2}
    s_and_b32 s{sA}, s{sW}, 1
    s_lshl_b32 s{sA}, s{sA}, 18
    s_lshr_b32 s{sB}, s{sW}, 1
    s_lshl_b32 s{sB}, s{sB}, 16
    s_add_u32 s{sA}, s{sA}, s{sB}
    s_lshl_b32 s{sB}, s{sH}, 8
    s_add_u32 s{sA}, s{sA}, s{sB}
    v_add_u32 v{vWa}, s{sA}, v{t2}
    v_xor_b32 v{t2}, 128, v{vWa}
    v_add_u32 v{vWa+1}, {8192-1024}, v{t2}
    v_add_u32 v{vWa+2}, {4*8192-2048}, v{vWa}
    v_add_u32 v{vWa+3}, {5*8192-3072}, v{t2}
    ; wo rows: 16*gb0+4*gb1+bit3 ; chunk = (l%8)^(4*gb0)
    v_lshlrev_b32 v{vOa}, 4, v{t1}
    v_lshl_add_u32 v{vOa}, v{t3}, 2, v{vOa}
    v_bfe_u32 v{vTr}, v{lane}, 3, 1
    v_add_u32 v{vOa}, v{vOa}, v{vTr}
    v_lshlrev_b32 v{vTr}, 2, v{t1}
    v_xor_b32 v{vTr}, v{vTr}, v{lane}
    v_and_b32 v{vTr}, 7, v{vTr}
    v_lshlrev_b32 v{vTr}, 4, v{vTr}
    v_lshl_add_u32 v{vOa}, v{vOa}, 10, v{vTr}
    s_lshl_b32 s{sA}, s{sH}, 17
    s_lshl_b32 s{sB}, s{sW}, 8
    s_add_u32 s{sA}, s{sA}, s{sB}
    v_add_u32 v{vOa}, s{sA}, v{vOa}
    ''')
    def dma(bi):
        slot = bi % 8; tg = None
        if bi < 24:
            base = {'q': sWq, 'k': sWk, 'v': sWv}[mord[bi//8]]
            a(f's_add_u32 s{sTmp}, s{base}, {slot<<19}\ns_addc_u32 s{sTmp+1}, s{base+1}, 0\ns_add_u32 m0, s{sLb}, {slot*4096}')
            for J in range(4): tg = a(f'global_load_lds_dwordx4 v{vWa+J}, {sp(sTmp)} offset:{J*1024}{wnt}')
            return tg
        i = slot
        a(f's_xor_b32 s{sA}, s{sW}, {i//2}\ns_lshl_b32 s{sA}, s{sA}, 15')
        for J in range(4):
            off = (i%2)*128 + (8*(J>>1) + 2*(J&1))*1024
            a(f's_add_u32 s{sB}, s{sA}, {off}\ns_add_u32 s{sTmp}, s{sWo}, s{sB}\ns_addc_u32 s{sTmp+1}, s{sWo+1}, 0')
            a(f's_add_u32 m0, s{sLb}, {slot*4096+J*1024}')
            tg = a(f'global_load_lds_dwordx4 v{vOa}, {sp(sTmp)}{ont}')
        return tg
    dtag = {}
    arr = 9
    def fkeval(v):
        a(f"""
        v_cmp_eq_u32 vcc, 0x01010101, v{v}
        s_or_b32 s{sTmp}, vcc_lo, 0xaaaaaaaa
        s_or_b32 s{sTmp+1}, vcc_hi, 0xaaaaaaaa
        s_ff0_i32_b64 s{sRdy}, {sp(sTmp)}
        s_min_u32 s{sRdy}, s{sRdy}, 100
        """)
    for bi in range(8): dtag[bi] = dma(bi)
    if 'a' in tls: tl(a, 5 + tls.index('a'), T+12, 0)
    if mega: VERIFY(a, 'c', 32 + 2*(TL and 'a' in tls))
    if 'b' in tls: tl(a, 5 + tls.index('b'), T+12, 0)
    a(f'''
    v_lshrrev_b32 v{t2}, 2, v{n_}
    v_and_b32 v{t3}, 3, v{lane}
    s_lshl_b32 s{sA}, s{sW}, 6
    v_lshl_add_u32 v{vTr}, v{t3}, 3, s{sA}
    v_lshlrev_b32 v{vTr+1}, 5, v{t2}
    v_lshl_add_u32 v{vTr+1}, v{t1}, 7, v{vTr+1}
    v_xor_b32 v{vTr}, v{vTr}, v{vTr+1}
    v_lshl_add_u32 v{vTr}, v{t2}, 8, v{vTr}
    v_lshl_add_u32 v{vTr}, v{g_}, 10, v{vTr}
    v_xor_b32 v{vTr+1}, 32, v{vTr}
    v_add_u32 v{vTr+2}, 0x10000, v{vTr}
    v_add_u32 v{vTr+3}, 0x10000, v{vTr+1}
    ; wo tr-read: gb*256 + bit2*128 + gb0*64 + bit3*32 + c4*8 (u flips bit 6)
    v_lshlrev_b32 v{vTo}, 8, v{g_}
    v_lshl_add_u32 v{vTo}, v{t1}, 6, v{vTo}
    v_lshl_add_u32 v{vTo}, v{t3}, 3, v{vTo}
    v_and_b32 v{vTo+1}, 4, v{lane}
    v_lshl_add_u32 v{vTo}, v{vTo+1}, 5, v{vTo}
    v_and_b32 v{vTo+1}, 8, v{lane}
    v_lshl_add_u32 v{vTo}, v{vTo+1}, 2, v{vTo}
    v_add_u32 v{vTo}, s{sLb}, v{vTo}
    v_xor_b32 v{vTo+1}, 64, v{vTo}
    v_xor_b32 v{vXw}, v{g_}, v{t2}
    v_lshlrev_b32 v{vXw}, 3, v{vXw}
    v_lshl_add_u32 v{vXw}, v{n_}, 5, v{vXw}
    s_lshl_b32 s{sA}, s{sW}, 10
    s_add_u32 s{sA}, s{sA}, {L_X}
    v_add_u32 v{vXw}, s{sA}, v{vXw}
    v_xor_b32 v{vXr}, v{t3}, v{g_}
    v_lshlrev_b32 v{vXr}, 3, v{vXr}
    v_lshl_add_u32 v{vXr}, v{t2}, 5, v{vXr}
    v_lshl_add_u32 v{vXr}, v{g_}, 7, v{vXr}
    v_add_u32 v{vXr}, {L_X}, v{vXr}
    v_lshl_add_u32 v{vPst}, v{t2}, 2, v{g_}
    v_lshlrev_b32 v{vPst}, 11, v{vPst}
    v_lshl_add_u32 v{vPst}, v{t3}, 4, v{vPst}
    s_lshl_b32 s{sA}, s{sW}, 16
    s_lshl_b32 s{sB}, s{sH}, 6
    s_add_u32 s{sA}, s{sA}, s{sB}
    v_add_u32 v{vPst}, s{sA}, v{vPst}
    ; publish: (c/2)*32 + p*16 + (c%2)*8 + (i/2)*4 ; c=g, p=bit2, i=lane%4
    v_lshrrev_b32 v{vMst}, 1, v{g_}
    v_lshlrev_b32 v{vMst}, 5, v{vMst}
    v_lshl_add_u32 v{vMst}, v{t1}, 3, v{vMst}
    v_and_b32 v{t2}, 4, v{lane}
    v_lshl_add_u32 v{vMst}, v{t2}, 2, v{vMst}
    v_and_b32 v{t2}, 2, v{lane}
    v_lshl_add_u32 v{vMst}, v{t2}, 1, v{vMst}
    ; O write: L_O + w*512 + (g*8+t)*16 + half*8 ; t = 2*(n/4)+n%2
    v_lshlrev_b32 v{vOw}, 7, v{g_}
    v_and_b32 v{t2}, 12, v{lane}
    v_lshl_add_u32 v{vOw}, v{t2}, 3, v{vOw}
    v_and_b32 v{t2}, 1, v{lane}
    v_lshl_add_u32 v{vOw}, v{t2}, 4, v{vOw}
    v_and_b32 v{t2}, 2, v{lane}
    v_lshl_add_u32 v{vOw}, v{t2}, 2, v{vOw}
    s_lshl_b32 s{sA}, s{sW}, 9
    s_add_u32 s{sA}, s{sA}, {L_O}
    v_add_u32 v{vOw}, s{sA}, v{vOw}
    s_mov_b32 s{sB1}, 0xcccccccc
    s_mov_b32 s{sB1+1}, 0xcccccccc
    s_mov_b32 s{sPm}, 0xf0f0f0f0
    s_mov_b32 s{sPm+1}, 0xf0f0f0f0
    s_mov_b32 s{sPub}, 0x00550055
    s_mov_b32 s{sPub+1}, 0x00550055
    s_mov_b32 s{sQc}, {QSCALE}
    v_mov_b32 v{t2}, 0x4444
    v_mov_b32 v{t3}, 0xeeee
    v_cndmask_b32 v{vIdx}, v{t2}, v{t3}, {sp(sB1)}
    v_cndmask_b32 v{vM0}, -1, 0, {sp(sB1)}
    v_cndmask_b32 v{vM1}, 0, -1, {sp(sB1)}
    ''')
    for i in range(4):
        a(f's_mov_b32 s{sSel+2*i}, {0x00110011 << i}\ns_mov_b32 s{sSel+2*i+1}, {0x00110011 << i}')
    a(f'''
    s_lshl_b32 s{sA}, s{sH}, 2
    s_add_u32 s{sA}, s{sA}, s{sW}
    s_add_u32 s{sRA}, s{sWs}, {WS_RA}
    s_addc_u32 s{sRA+1}, s{sWs+1}, 0
    s_lshl_b32 s{sB}, s{sA}, 11
    s_add_u32 s{sRAo}, s{sRA}, s{sB}
    s_addc_u32 s{sRAo+1}, s{sRA+1}, 0
    s_lshl_b32 s{sB}, s{sA}, 6
    s_add_u32 s{sB}, s{sB}, {WS_RM}
    s_add_u32 s{sRMs}, s{sWs}, s{sB}
    s_addc_u32 s{sRMs+1}, s{sWs+1}, 0
    s_lshl_b32 s{sB}, s{sW}, 11
    s_add_u32 s{sB}, s{sB}, {WS_RM}
    s_add_u32 s{sRMl}, s{sWs}, s{sB}
    s_addc_u32 s{sRMl+1}, s{sWs+1}, 0
    s_lshl_b32 s{sB}, s{sA}, 12
    s_add_u32 s{sKV}, s{sWs}, s{sB}
    s_addc_u32 s{sKV+1}, s{sWs+1}, 0
    s_lshl_b32 s{sB}, s{sA}, 10
    s_add_u32 s{sB}, s{sB}, {WS_KVM-(32 if kvnow else 64)*4096}
    s_add_u32 s{sKVM}, s{sWs}, s{sB}
    s_addc_u32 s{sKVM+1}, s{sWs+1}, 0
    s_lshl_b32 s{sB}, s{sH}, 7
    s_add_u32 s{sB}, s{sB}, {WS_FL+FL_P}
    s_add_u32 s{sFl}, s{sWs}, s{sB}
    s_addc_u32 s{sFl+1}, s{sWs+1}, 0
    s_lshl_b32 s{sB}, s{sH}, 8
    s_add_u32 s{sB}, s{sB}, {WS_FL+FL_K}
    s_add_u32 s{sFK}, s{sWs}, s{sB}
    s_addc_u32 s{sFK+1}, s{sWs+1}, 0
    s_mov_b32 s{sRdy}, {0 if mega else 100}
    v_lshlrev_b32 v{vL4}, 2, v{lane}
    s_cmp_eq_u32 s{sW}, 0
    s_cselect_b32 s{sFm}, 1, 0
    s_mov_b32 s{sFm+1}, 0
    v_mov_b64 {vr(HK,2)}, 0
    v_mov_b64 {vr(HV,2)}, 0
    ; ring init (both slots)
    v_mov_b32 v{T+12}, -1
    v_mov_b32 v{T+13}, -1
    v_mov_b32 v{T+14}, -1
    v_mov_b32 v{T+15}, -1
    global_store_dwordx4 v{vLin}, {vr(T+12,4)}, {sp(sRAo)} sc1
    global_store_dwordx4 v{vLin}, {vr(T+12,4)}, {sp(sRAo)} offset:1024 sc1
    ; M(0) gather: lane(row: b0=t%2,b1=half,b3:2=t/2 ; ga): byte = t*1024 + (128w + 64s + 16(ea%4) + 4ga + 2half + ea/4)*2
    v_lshrrev_b32 v{t2}, 2, v{n_}
    v_lshlrev_b32 v{t2}, 11, v{t2}
    v_and_b32 v{t3}, 1, v{lane}
    v_lshl_add_u32 v{t2}, v{t3}, 10, v{t2}
    v_lshl_add_u32 v{t2}, v{g_}, 3, v{t2}
    v_and_b32 v{t3}, 2, v{lane}
    v_lshl_add_u32 v{t2}, v{t3}, 1, v{t2}
    s_lshl_b32 s{sA}, s{sW}, 8
    v_add_u32 v{t2}, s{sA}, v{t2}
    ''')
    for s_ in range(2):
        for ea in range(8):
            off = (64*s_ + 16*(ea%4) + ea//4)*2
            a(f'global_load_ushort v{S+8*s_+ea}, v{t2}, {sp(sMem)} offset:{off}')
    if 'c' in tls: tl(a, 5 + tls.index('c'), T+12, 0)
    def park(pj): return dest(('o', pj+1)) if pj < NQ-1 else ('v', S+16)
    for w in range(1,4): a(f's_cmp_eq_u32 s{sW}, {w}\ns_cbranch_scc1 {L(f"pw{w}")}')
    nvm0, nds0 = a.nvm, a.nds
    for w in range(4):
        a.label(L(f'pw{w}'))
        a.nvm, a.nds = nvm0, nds0
        for bi in range(24):
            m, i = mord[bi//8], (bi%8) ^ (2*w); slot = bi % 8
            a.wvm(dtag[bi]); a('s_barrier')
            if bi in tls: tl(a, 5 + tls.index(bi), t1, 0)
            if bi: dtag[bi+7] = dma(bi+7)
            k, b = park(LDS_BLK.index((m,i))) if (m,i) in LDS_BLK else dest((m,i))
            for u in range(2):
                for J in range(4):
                    a(f'ds_read_b64_tr_b16 {vr(b+8*u+2*J,2,k)}, v{vTr+u+2*(J//2)} offset:{slot*4096+(J%2)*32768}')
            if bi == 8:
                a(f"""
                s_lshl_b32 s{sA}, s{sH}, 2
                s_add_u32 s{sA}, s{sA}, {32+w}
                v_mov_b32 v{t1}, s{sA}
                s_cmp_eq_u32 s{sXcc}, 0
                s_cselect_b32 s{sA}, 1, 3
                v_mov_b32 v{t3}, s{sA}
                s_mov_b64 exec, 1
                global_store_byte v{t1}, v{t3}, {sp(sDbg)} sc1
                s_mov_b64 exec, -1
                """)
                for r in range(8): a(f'v_lshl_or_b32 v{M+r}, v{S+2*r+1}, 16, v{S+2*r}')
            if bi == arr: a(f'global_load_dword v{vFd}, v{vL4}, {sp(sDbg)} sc1')
            if bi == arr + 8:
                msk = ((1 << (41 if mega else 40)) - 1) ^ 0xff
                a(f"""
                s_mov_b32 s{sSpin}, 0
                {L(f'tb{w}')}:
                v_and_b32 v{t1}, 0x01010101, v{vFd}
                v_cmp_ne_u32 vcc, 0x01010101, v{t1}
                s_and_b32 s{sA}, vcc_lo, {msk & 0xffffffff}
                s_and_b32 s{sB}, vcc_hi, {msk >> 32}
                s_or_b32 s{sA}, s{sA}, s{sB}
                s_cbranch_scc0 {L(f'tbo{w}')}
                s_sleep 4
                global_load_dword v{vFd}, v{vL4}, {sp(sDbg)} sc1
                s_add_u32 s{sSpin}, s{sSpin}, 1
                s_cmp_gt_u32 s{sSpin}, {SPIN}
                s_cbranch_scc1 {L('end')}
                s_waitcnt vmcnt(0)
                s_branch {L(f'tb{w}')}
                {L(f'tbo{w}')}:
                v_and_b32 v{t1}, 0x02020202, v{vFd}
                v_cmp_ne_u32 vcc, 0, v{t1}
                s_and_b32 s{sA}, vcc_lo, 0xffffff00
                s_and_b32 s{sB}, vcc_hi, 0xff
                s_or_b32 s{sXcc}, s{sA}, s{sB}
                """)
                a.nvm -= 1
                if warm:
                    a(f"""
                    v_lshlrev_b32 v{t1}, 7, v{n_}
                    s_lshl_b32 s{sA}, s{sH}, 13
                    s_add_u32 s{sA}, s{sA}, {WS_RA+w*2048}
                    v_mov_b32 v{t2}, s{sA}
                    v_mov_b32 v{t3}, {WS_RM+w*2048}
                    v_cmp_gt_u32 vcc, 2, v{g_}
                    v_cndmask_b32 v{t2}, v{t3}, v{t2}, vcc
                    v_add_u32 v{t1}, v{t1}, v{t2}
                    v_mov_b32 v{t2}, 13
                    v_cndmask_b32 v{t2}, v{t2}, 18, vcc
                    v_and_b32 v{t3}, 1, v{g_}
                    v_lshlrev_b32 v{t3}, v{t2}, v{t3}
                    v_add_u32 v{t1}, v{t1}, v{t3}
                    global_load_dword v{vFd}, v{t1}, {sp(sWs)} sc1
                    """)
            a('s_waitcnt lgkmcnt(0)')
        if w < 3: a(f's_branch {L("pwe")}')
    a.label(L('pwe'))
    tl(a, 1, t1, 0)
    for bi in range(24, 32):
        slot = bi % 8
        a.wvm(dtag[bi])
        if bi == 24: a('s_barrier'); dtag[31] = dma(31)
        if mega and bi == 27: a(f'global_load_dword v{vFk}, v{vL4}, {sp(sFK)} sc1')
        k, b = dest(('o', slot)) if slot < NQ else ('v', S)
        for u in range(2):
            for J in range(4):
                a(f'ds_read_b64_tr_b16 {vr(b+8*u+2*J,2,k)}, v{vTo+u} offset:{slot*4096+J*1024}')
        a('s_waitcnt lgkmcnt(0)')
        k, b = park(slot) if slot < NQ else ('v', S)
        for u in range(2):
            for hf in range(2):
                a(f'ds_write_b128 v{vLw}, {vr(b+8*u+4*hf,4,k)} offset:{slot*4096+u*2048+hf*1024}')
        a('s_waitcnt lgkmcnt(0)')
    tl(a, 2, t1, 0)
    if 'ponly' in opt: a(f's_branch {LE}')
    if mega:
        a(f"""
        s_mov_b32 s{sSpin}, 0
        {L('kw')}:
        s_waitcnt vmcnt(0)
        """)
        fkeval(vFk)
        a(f"""
        s_cmp_lg_u32 s{sRdy}, 0
        s_cbranch_scc1 {L("kwd")}
        s_sleep 2
        global_load_dword v{vFk}, v{vL4}, {sp(sFK)} sc1
        s_add_u32 s{sSpin}, s{sSpin}, 1
        s_cmp_gt_u32 s{sSpin}, {SPIN}
        s_cbranch_scc1 {L('end')}
        s_branch {L("kw")}
        """)
        a.label(L('kwd'))
    sKN = sWo
    a(f"""
    s_mov_b32 m0, s{sM0kv}
    s_mov_b64 {sp(sKN)}, {sp(sKV)}
    global_load_lds_dwordx4 v{vLin}, {sp(sKV)} sc1
    global_load_lds_dwordx4 v{vLin}, {sp(sKV)} offset:1024 sc1
    global_load_lds_dword v{vTc}, {sp(sKV)} offset:2048 sc1
    s_mov_b32 s{sT}, 0
    s_mov_b32 s{sSpin}, 0
    """)
    tl(a, 3, t1, 0)
    if prof:
        for i in range(8): a(f's_mov_b32 s{sP+20+i}, 0')
        a(f's_memtime {sp(sP+28)}')
    def tstamp(idx):
        if 'ts' not in opt: return
        a(f"""
        s_memrealtime s[96:97]
        s_lshl_b32 s{sA}, s{sH}, 2
        s_add_u32 s{sA}, s{sA}, s{sW}
        s_lshl_b32 s{sA}, s{sA}, 6
        s_add_u32 s{sA}, s{sA}, {idx}
        s_lshl_b32 s{sA}, s{sA}, 2
        s_add_u32 s{sA}, s{sA}, {WS_PROF+131072}
        v_mov_b32 v{T}, s{sA}
        s_waitcnt lgkmcnt(0)
        v_mov_b32 v{T+1}, s96
        s_mov_b64 exec, 1
        global_store_dword v{T}, v{T+1}, {sp(sWs)}
        s_mov_b64 exec, -1
        """)
    tstamp(63)
    DPPM = 'row_mask:0xf bank_mask:0xf'
    QA = T+8; VA = QV; P2 = VX; S0 = S; S1 = S+16; K0 = M+16
    NEG = M+4; Sel = T+4; Dr = T+8
    sB0, sOne, sHalf = 4, 8, 10
    a(f'''
    s_not_b64 {sp(sB0)}, {sp(sB1)}
    s_mov_b32 s{sOne}, 0x3f803f80
    s_mov_b32 s{sOne+1}, 0x3f803f80
    s_mov_b32 s{sHalf}, 0x3f003f00
    s_mov_b32 s{sHalf+1}, 0x3f003f00
    ''')
    def pre1():
        n0 = len(a.items)
        a(f"""
        s_and_b32 s{sA}, s{sT}, 1
        s_lshl_b32 s{sC}, s{sA}, 13
        s_add_u32 s{sMld}, s{sRMl}, s{sC}
        s_addc_u32 s{sMld+1}, s{sRMl+1}, 0
        s_xor_b32 s{sB}, s{sA}, 1
        """)
        for x_ in stg(('k',0), K0): a(x_)
        for i in range(0,16,2): a(f'v_mov_b64 {vr(VA+i,2)}, 0')
        for i in range(0,8,2): a(f'v_mov_b64 {vr(QA+i,2)}, 0')
        return len(a.items) - n0
    def pre2():
        n0 = len(a.items)
        a(f"""
        s_lshl_b32 s{sC}, s{sB}, 13
        s_add_u32 s{sMst}, s{sRMs}, s{sC}
        s_addc_u32 s{sMst+1}, s{sRMs+1}, 0
        s_lshl_b32 s{sC}, s{sB}, 18
        s_add_u32 s{sArs}, s{sRAo}, s{sC}
        s_addc_u32 s{sArs+1}, s{sRAo+1}, 0
        s_lshl_b32 s{sC}, s{sA}, 18
        s_add_u32 s{sSt0}, s{sRA}, s{sC}
        s_addc_u32 s{sSt0+1}, s{sRA+1}, 0
        s_add_u32 s{sSt1}, s{sSt0}, 32768
        s_addc_u32 s{sSt1+1}, s{sSt0+1}, 0
        s_add_u32 s{sAld}, s{sRAo}, s{sC}
        s_addc_u32 s{sAld+1}, s{sRAo+1}, 0
        s_mov_b64 {sp(sKV)}, {sp(sKN)}
        s_add_u32 s{sKN}, s{sKN}, {32*16384}
        s_addc_u32 s{sKN+1}, s{sKN+1}, 0
        s_add_u32 s{sKVM}, s{sKVM}, {32*4096}
        s_addc_u32 s{sKVM+1}, s{sKVM+1}, 0
        s_mul_i32 s{sC}, s{sB}, {4*KVS}
        s_add_u32 m0, s{sC}, s{sM0kv}
        s_mul_i32 s{sC}, s{sA}, {4*KVS}
        s_add_u32 s{sC}, s{sC}, {L_KV}
        v_add_u32 v{vKr}, s{sC}, v{vLin}
        s_lshl_b32 s{sC}, s{sW}, 11
        s_add_u32 s{sC}, s{sC}, {L_MQ}
        v_add_u32 v{T+3}, s{sC}, v{vLin}
        s_add_u32 s{sC}, s{sT}, {int(kvnow)}
        v_mov_b32 v{T+4}, s{sC}
        """)
        for i in range(1,4): a(f'v_xor_b32 v{T+i-1}, {i*2048}, v{T+3}')
        return len(a.items) - n0
    def ldM(r): a(f'global_load_dwordx4 {vr(r,4)}, v{vLin}, {sp(sMld)} sc1\nglobal_load_dwordx4 {vr(r+4,4)}, v{vLin}, {sp(sMld)} offset:1024 sc1')
    def ldA(r): a(f'global_load_dwordx4 {vr(r,4)}, v{vLin}, {sp(sAld)} sc1\nglobal_load_dwordx4 {vr(r+4,4)}, v{vLin}, {sp(sAld)} offset:1024 sc1')
    def spin(): a(f's_add_u32 s{sSpin}, s{sSpin}, 1\ns_cmp_gt_u32 s{sSpin}, {SPIN}\ns_cbranch_scc1 {LE}')
    acc = {'q': QA, 'k': KA, 'v': VA}
    def P_(m, sg, u): SM(acc[m]+4*u, M+4*sg, m, sg, u)
    for x_ in stg(('q',0), S0) + stg(('q',1), S1): a(x_)
    for r in (0,2,4,6): a(f'v_min_u32 v{M+r}, -2, v{M+r}')
    pre1(); pre2()
    a('s_waitcnt vmcnt(0) lgkmcnt(0)')
    if mega: a(f's_cmp_lg_u32 s{sXcc}, 0\ns_cbranch_scc1 {L("s_try")}')
    a(f's_branch {L("try")}')
    staged0 = dict(staged)
    def loop(L, stc):
        staged.clear(); staged.update(staged0)
        dm = [f'global_load_lds_dwordx4 v{vLin}, {sp(sKN)} offset:{j*1024} sc1' for j in range(2)] + \
             [f'global_load_dwordx4 {vr(KX+4*j,4)}, v{vLin}, {sp(sKV)} offset:{j*1024} sc1' for j in (2,3)]
        a.label(L('retry'))
        spin()
        a('s_waitcnt vmcnt(0)')
        for i in range(0,8,2): a(f'v_mov_b64 {vr(M+i,2)}, {vr(P2+i,2)}')
        ldM(P2)
        for i in range(0,8,2): a(f'v_mov_b64 {vr(QA+i,2)}, 0')
        a(f's_branch {L("try")}')
        a.label(L('step'))
        n = pre1(); a.nops(preB - n - 5)
        ldM(M)
        n = pre2(); a.nops(gapB - n - 2)
        ldM(P2)
        a(f's_waitcnt vmcnt(2) lgkmcnt(0)')
        a.label(L('try'))
        a.nds = 0; a.nvm = 2; set2 = 2
        stamp('a0')
        ck = M+8
        a(f'ds_write_b128 v{T+3}, {vr(M,4)}\nds_write_b128 v{T+3}, {vr(M+4,4)} offset:1024')
        P_('q',0,0); a(f'v_max3_u32 v{ck}, v{M}, v{M+2}, v{M+4}')
        P_('q',0,1); a(f'v_max_u32 v{ck}, v{ck}, v{M+6}')
        P_('q',1,0); a(f'v_cmp_eq_u32 vcc, -1, v{ck}')
        P_('q',1,1); a(f's_cbranch_vccnz {L("retry")}')
        rlate = any(x_[0] == 'r' and x_[1] != 'm' and x_[3] in 'CW' for x_ in vp.split())
        NG2 = T if rlate else NEG
        rs = [f'global_store_dwordx4 v{vLin}, {vr(NG2,4)}, {sp(sArs)} offset:{1024*i}{stc}' for i in range(2)]
        if rdw: rs = [f'global_store_dword v{vLin}, v{NG2}, {sp(sArs)} offset:{1024*i}{stc}' for i in range(2)]
        vops = dict(d0=dm[0], d1=dm[1], d2=dm[2], d3=dm[3], r0=rs[0], r1=rs[1],
                    kv=f'global_store_dwordx4 v{vLin}, {vr(HK,4)}, {sp(sKVM)} sc1',
                    fl=f's_mov_b64 exec, {sp(sFm)}\nglobal_store_dword v{vLin}, v{T+4}, {sp(sFl)} sc1\ns_mov_b64 exec, -1',
                    tc=f'global_load_lds_dword v{vTc}, {sp(sKN)} offset:2048{tsc}',
                    rm=f'global_store_dword v{vMst}, v{NEG}, {sp(sMst)}{stc}')
        vt = {}
        def VM(slot):
            for x_ in vp.split():
                o, s_ = x_.split('@')
                if s_ != slot: continue
                k_ = slot[0]; n_ = int(slot[1:])
                if o[0] == 'r': assert k_ == 'Q' and (1 if o == 'rm' or rdw else 4) <= n_ or k_ == 'V' or k_ in 'CW' and o != 'rm'
                if o == 'fl': assert k_ in 'AQV'
                if o == 'kv': assert k_ in 'PACW' or k_ == 'Q' and n_ < 21
                if o in ('d0', 'd1', 'tc'): assert 'd2' in vt and 'd3' in vt and 'rm' in vt
                if o in skip: vt[o] = a.nvm; continue
                vt[o] = a(vops[o])
            stamp(slot)
        P_('k',0,0); VM('P0'); a(f's_waitcnt lgkmcnt(0)\ns_barrier')
        stamp('a1')
        mt = {}
        def rdM(sg): mt[sg] = a(f'ds_read_b128 {vr(M+4*sg,4)}, v{T+sg//2-1} offset:{1024*(sg%2)}')
        vq = [(sg,u) for sg in (0,1,4,5,6,7,2,3) for u in (0,1)]
        def V_():
            sg, u = vq.pop(0); P_('v', sg, u)
        g1 = stg(('k',6), S0) + stg(('k',7), S1); tg1 = []
        def G1(i):
            if sgq <= i < sgq + 8: tg1.append(a(g1[i-sgq]))
        rdM(2); rdM(3)
        P_('k',0,1); rdM(4); VM('A0')
        P_('k',1,0); rdM(5); VM('A1')
        P_('k',1,1); rdM(6); VM('A2')
        V_(); rdM(7); VM('A3')
        for i in range(1,4): V_(); G1(i-4); VM(f'A{3+i}')
        stamp('a2')
        QP = T+6; D0 = T; D1 = T+8; Dm = VA; X = XO
        def half(r, d): return [f'v_add_f32 v{r}, v{r}, v{r+2}', f'v_add_f32 v{r+1}, v{r+1}, v{r+3}', f'v_cvt_pk_bf16_f32 v{d}, v{r}, v{r+1}']
        a.wds(mt[2])
        seq = [('q',s_,0) for s_ in range(2,8)] + [('q',2,1),('q',3,1),('k',6,0),('k',6,1),('k',7,0),('k',7,1)] + \
              [('q',s_,1) for s_ in range(4,8)] + [('k',s_,0) for s_ in range(2,6)] + [('k',s_,1) for s_ in range(2,6)]
        z0 = [f'v_mov_b64 {vr(M+2*i,2)}, 0' for i in range(4,8)]
        kx = [f'ds_read_b128 {vr(S+4*i,4)}, v{vKr} offset:{(i//2)*KVS+(i%2)*1024}' for i in range(8)]
        va = {i: f'v_mov_b32 v{NEG+i}, -1' for i in range(1 if rlate or rdw else 4)}
        for i, p_ in enumerate((4,5)): va[p_] = f'v_mov_b64 {vr(M+2*i,2)}, 0'
        wr = {}
        for p_, (r, d, off) in ((7, (QA, QP, 0)), (17, (QA+4, QP+1, 512)), (21, (KA, HK, 4))):
            for j, x_ in enumerate(half(r, d)): va[p_+j] = x_
            wr[p_+3] = f'ds_write_b32 v{vXw}, v{d} offset:{off}'
        xr = [f'ds_read_b64_tr_b16 {vr(X+2*i,2)}, v{vXr} offset:{i*512}' for i in range(8)]
        tx = []
        On = T+12; Cq = T+7
        rV = max([int(x_[4:]) for x_ in vp.split() if x_[0] == 'r' and x_[3] == 'V'] + [-1])
        fv = [f'v_mov_b64 {vr(On,2)}, {sp(sOne)}', f'v_mov_b64 {vr(On+2,2)}, {sp(sHalf)}', f'v_mov_b32 v{Cq}, s{sQc}', f'v_mov_b64 {vr(NEG+2,2)}, 0', f'v_mov_b64 {vr(NEG,2)}, 0']
        g2 = stg(('o',7), M+16)
        for i in range(36):
            if i < 24: P_(*seq[i])
            else: V_()
            if i < 5: a.wds(mt[i+3])
            if 7 <= i <= 10: a.wds(tg1[2*(i-7)+1])
            G1(i)
            if i in wr: a(wr[i])
            if pKx <= i < pKx + 8: tkx = a(kx[i-pKx])
            VM(f'Q{i}' if i < 24 else f'V{i-24}')
            if i in va: a(va[i])
            if i == 23: stamp('b0')
            if i == 25:
                for x_ in half(KA+4, HK+1): a(x_)
                wk = a(f'ds_write_b32 v{vXw}, v{HK+1} offset:516')
            if i == 24 + pB2: a.wds(wk); a('s_barrier'); stamp('b1')
            if i >= 24 + pB2:
                for _ in range(ntr):
                    if len(tx) < 8: tx.append(a(xr[len(tx)])); busy = i
            if i >= max(g7, 34 - 2*len(g2)) and g2 and not (tx and busy == i): a(g2.pop(0))
            if i == 26: a(f's_mov_b64 vcc, {sp(sB0)}\ns_cmp_eq_u32 s{sT}, {nsteps-1}')
            if i == 35: a(f's_cbranch_scc1 {L("last")}')
            if 26 <= i < 35 and i != 24 + pB2 and not (tx and busy == i and ntr > 2) and fv and (len(fv) > 2 or i - 24 > rV): a(fv.pop(0))
        while len(tx) < 8: tx.append(a(xr[len(tx)]))
        stamp('c0')
        vf = half(VA, HV) + half(VA+4, HV+1)
        mx = T+4; tm = T+5; ma = T+6; vOr = T+4
        g5 = stg(('o',5), S0); g6 = stg(('o',6), S1)
        P = T+8; Dd = T+10; Ba = XO; Bb = XO+4; Po = XO+8; Ls = XO+12
        MF = 'v_mfma_f32_16x16x32_bf16'
        lastc = list(vf)
        mg = [f'v_cndmask_b32_dpp v{D0+r}, v{D1+r}, v{D0+r}, vcc quad_perm:[0,1,0,1] {DPPM}' for r in range(4)] + \
             [f'v_max3_f32 v{mx}, v{D0}, v{D0+1}, v{D0+2}', f'v_max_f32 v{mx}, v{mx}, v{D0+3}']
        rest = g2 + fv
        a.wds(tx[{0: 7, 1: 3, 2: 1}[wx]])
        for i in range(12):
            if i < 8:
                w_ = i//2; d = (D0, D1)[i%2]
                a(f'{MF} {vr(d,4)}, {vr(S+4*i,4)}, {vr(X+4*w_,4)}, {vr(d,4) if w_ else 0}')
            else:
                r = X+4*(i-8); a(f'{MF} {vr(Dm,4)}, {vr(r,4)}, {vr(r,4)}, {vr(Dm,4) if i > 8 else 0}')
            stamp(f'M{i}')
            if i == 0:
                for _ in range(2):
                    if rest: a(rest.pop(0))
            elif i == 1 and wx == 2: a.wds(tx[3]); a(vf.pop(0))
            elif i == 3 and wx: a.wds(tx[7]); a(vf.pop(0))
            elif i < 4: a(vf.pop(0)); a(vf.pop(0))
            elif i < 8:
                a(g5.pop(0))
                if vf: a(vf.pop(0))
                elif rest: a(rest.pop(0))
                elif i >= 6: a(g6.pop(0))
            elif i == 8: a(g6.pop(0)); a(g6.pop(0))
            else: a(mg.pop(0)); a(mg.pop(0))
        assert not rest
        for x_ in g6: a(x_)
        stamp('c1')
        a(f'v_max_f32_dpp v{mx}, v{mx}, v{mx} quad_perm:[2,3,0,1] {DPPM}')
        a(f'v_mul_f32 v{mx}, v{mx}, v{Cq}')
        a(f'v_mul_f32_dpp v{Dm}, v{Dm+2}, v{Cq} quad_perm:[0,1,0,1] {DPPM}')
        a(f'v_mul_f32_dpp v{Dm+1}, v{Dm+3}, v{Cq} quad_perm:[0,1,0,1] {DPPM}')
        a(f'v_max3_f32 v{tm}, v{mx}, v{Dm}, v{Dm+1}')
        a(f'v_max3_f32 v{mx}, v{mx}, v{Dm}, v{Dm+1}')
        a(z0.pop()); a(z0.pop())
        a(f'v_permlane16_swap_b32 v{mx}, v{tm}\nv_max_f32 v{ma}, v{mx}, v{tm}\nv_max_f32 v{mx}, v{mx}, v{tm}')
        a(z0.pop()); a(z0.pop())
        a(f'v_permlane32_swap_b32 v{mx}, v{ma}\nv_max_f32 v{mx}, v{mx}, v{ma}')
        ex = [Dm, Dm+1, T, T+1, T+2, T+3]
        for r in ex[:2]: a(f'v_sub_f32 v{r}, v{r}, v{mx}')
        for r in ex[2:]: a(f'v_fma_f32 v{r}, v{r}, v{Cq}, -v{mx}')
        for r in ex[:4]: a(f'v_exp_f32 v{r}, v{r}')
        a(f'v_cvt_pk_bf16_f32 v{Dm}, v{Dm}, v{Dm+1}')
        for r in ex[4:]: a(f'v_exp_f32 v{r}, v{r}')
        stamp('c2')
        a.wvm(max(vt['d2'], vt['d3'], vt['rm']))
        a(f"""
        v_cvt_pk_bf16_f32 v{P}, v{T}, v{T+1}
        v_and_b32 v{Dd}, v{Dm}, v{vM0}
        v_and_b32 v{Dd+1}, v{Dm}, v{vM1}
        v_cvt_pk_bf16_f32 v{P+1}, v{T+2}, v{T+3}
        v_and_b32 v{Ba}, v{P}, v{vM0}
        v_mfma_f32_16x16x16_bf16 {vr(Po,4)}, {vr(HV,2)}, {vr(Dd,2)}, 0
        v_and_b32_dpp v{Ba+2}, v{P}, v{vM0} quad_perm:[2,3,0,1] {DPPM}
        v_and_b32 v{Ba+1}, v{P+1}, v{vM0}
        v_mfma_f32_16x16x32_bf16 {vr(Ls,4)}, {vr(On,4)}, {vr(P,4)}, 0
        v_and_b32_dpp v{Ba+3}, v{P+1}, v{vM0} quad_perm:[2,3,0,1] {DPPM}
        v_and_b32_dpp v{Bb}, v{P}, v{vM1} quad_perm:[2,3,0,1] {DPPM}
        v_and_b32_dpp v{Bb+1}, v{P+1}, v{vM1} quad_perm:[2,3,0,1] {DPPM}
        v_mfma_f32_16x16x32_bf16 {vr(Po,4)}, {vr(VX,4)}, {vr(Ba,4)}, {vr(Po,4)}
        v_and_b32 v{Bb+2}, v{P}, v{vM1}
        v_and_b32 v{Bb+3}, v{P+1}, v{vM1}
        v_and_b32 v{vOr}, -9, v{vOw}
        v_xor_b32 v{vOr+1}, 512, v{vOr}
        v_mfma_f32_16x16x32_bf16 {vr(Po,4)}, {vr(VX+4,4)}, {vr(Bb,4)}, {vr(Po,4)}
        v_add_f32_dpp v{Ls}, v{Ls}, v{Ls} quad_perm:[2,3,0,1] {DPPM}
        v_rcp_f32 v{Ls}, v{Ls}
        v_xor_b32 v{vOr+2}, 1024, v{vOr}
        v_xor_b32 v{vOr+3}, 1536, v{vOr}
        """)
        assert not z0
        if rlate: a(f'v_mov_b64 {vr(T,2)}, -1' + ('' if rdw else f'\nv_mov_b64 {vr(T+2,2)}, -1'))
        a(f"""
        v_mul_f32 v{Po}, v{Po}, v{Ls}
        v_mul_f32 v{Po+1}, v{Po+1}, v{Ls}
        v_mul_f32 v{Po+2}, v{Po+2}, v{Ls}
        v_mul_f32 v{Po+3}, v{Po+3}, v{Ls}
        v_cvt_pk_bf16_f32 v{Po}, v{Po}, v{Po+1}
        v_cvt_pk_bf16_f32 v{Po+1}, v{Po+2}, v{Po+3}
        """)
        O = XO
        ow = a(f'ds_write_b64 v{vOw}, {vr(Po,2)}')
        ot = [a(f'ds_read_b128 {vr(O,4)}, v{vOr}')]
        stamp('c3')
        VM('C0')
        a.wds(ow); a('s_barrier')
        stamp('d0')
        for k_ in range(1,4): ot.append(a(f'ds_read_b128 {vr(O+4*k_,4)}, v{vOr+k_}'))
        VM('C1')
        PS = VA
        def W_(G, ki): SM(M+4*G, O+4*ki, 'o', 2*ki+G//2, G%2)
        def cv(G): return [f'v_cvt_pk_bf16_f32 v{PS+2*G+h_}, v{M+4*G+2*h_}, v{M+4*G+2*h_+1}' for h_ in range(2)]
        a.wds(ot[0])
        for G in range(4):
            W_(G, 0); VM(f'W{G}')
        a.wds(ot[1])
        stamp('d1')
        W_(0,1); VM('W4'); W_(1,1); a.wds(ot[2]); VM('W5'); W_(0,2); VM('W6'); W_(1,2); a.wds(ot[3]); VM('W7'); W_(0,3); VM('W8'); W_(1,3)
        c0 = cv(0); c1 = cv(1); c2 = cv(2); c3 = cv(3)
        W_(2,1); a(c0[0])
        W_(2,2); a(c0[1]); a(c1[0])
        W_(2,3); a(c1[1]); a(f'v_min_u32 v{PS}, -2, v{PS}')
        W_(3,1); a(f'global_store_dwordx4 v{vPst}, {vr(PS,4)}, {sp(sSt0)}{stc}')
        W_(3,2); a(c2[0])
        W_(3,3); a(c2[1]); a(f'v_min_u32 v{PS+4}, -2, v{PS+4}')
        a(f'v_mov_b32 v{T+2}, 0x3f80\nv_mov_b32 v{T+3}, 0x3f800000')
        a(f'v_cndmask_b32 v{T+2}, v{T+2}, v{T+3}, {sp(sPm)}')
        a(c3[0]); a(c3[1])
        a(f'global_store_dwordx4 v{vPst}, {vr(PS+4,4)}, {sp(sSt1)}{stc}')
        stamp('h0')
        n0 = len(a.items)
        for x_ in stg(('q',0), S0) + stg(('q',1), S1): a(x_)
        for i in range(4): a(f'v_cndmask_b32 v{Sel+i}, 0, v{T+2}, {sp(sSel+2*i)}')
        a.nops(preA - (len(a.items) - n0))
        R1 = M+8; R2 = P2
        def redA(R):
            a(f"""
            s_waitcnt vmcnt(3)
            v_mfma_f32_16x16x32_bf16 {vr(Dr,4)}, {vr(R,4)}, {vr(Sel,4)}, 0
            s_waitcnt vmcnt(2)
            v_mfma_f32_16x16x32_bf16 {vr(Dr,4)}, {vr(R+4,4)}, {vr(Sel,4)}, {vr(Dr,4)}
            v_max_u32 v{T}, v{R}, v{R+4}
            v_cmp_eq_u32 vcc, -1, v{T}
            """)
        ldA(R1)
        a.nops(gapA - 2)
        a.label(L('pa'))
        ldA(R2)
        redA(R1)
        a(f's_cbranch_vccz {L("qa")}')
        ldA(R1); spin()
        redA(R2)
        a(f's_cbranch_vccnz {L("pa")}')
        a.label(L('qa'))
        stamp('h1')
        a(f"""
        v_permlane32_swap_b32 v{Dr}, v{Dr+2}
        v_permlane32_swap_b32 v{Dr+1}, v{Dr+3}
        v_add_f32 v{Dr}, v{Dr}, v{Dr+2}
        v_add_f32 v{Dr+1}, v{Dr+1}, v{Dr+3}
        v_permlane16_swap_b32 v{Dr}, v{Dr+1}
        v_add_f32 v{Dr}, v{Dr}, v{Dr+1}
        v_mov_b32_dpp v{Dr+1}, v{Dr} quad_perm:[1,0,3,2] {DPPM}
        v_cvt_pk_bf16_f32 v{Dr}, v{Dr}, v{Dr+1}
        s_mov_b64 exec, {sp(sPub)}
        v_min_u32 v{Dr}, -2, v{Dr}
        global_store_dword v{vMst}, v{Dr}, {sp(sMst)}{stc}
        """)
        stamp('h2')
        a(f"""
        s_mov_b64 exec, -1
        """)
        tstamp(f's{sT}')
        if prof and len(stamps) >= 2:
            a('s_waitcnt lgkmcnt(0)')
            for i in range(len(stamps)-1): a(f's_sub_u32 s{sA}, s{sP+2*i+2}, s{sP+2*i}\ns_add_u32 s{sP+21+i}, s{sP+21+i}, s{sA}')
        if prof:
            a(f's_cmp_lg_u32 s{sT}, 3\ns_cbranch_scc1 {L("pf1")}\ns_memtime {sp(sP+28)}\ns_mov_b32 s{sSpin}, 0')
            for i in range(6): a(f's_mov_b32 s{sP+21+i}, 0')
            a(f'{L("pf1")}:\ns_cmp_lg_u32 s{sT}, {nsteps-2}\ns_cbranch_scc1 {L("pf2")}\ns_memtime {sp(sP)}\ns_waitcnt lgkmcnt(0)\ns_sub_u32 s{sP+20}, s{sP}, s{sP+28}\n{L("pf2")}:')
        a(f's_add_u32 s{sT}, s{sT}, 1\ns_add_u32 s{sA}, s{sT}, 1\ns_cmp_lt_u32 s{sA}, s{sRdy}\ns_cbranch_scc1 {L("step")}')
        a(f'v_lshrrev_b32 v{T}, 2, v{vLin}')
        a.label(L('rp'))
        a(f'global_load_dword v{T+1}, v{T}, {sp(sFK)} sc1')
        spin()
        a('s_waitcnt vmcnt(0)')
        fkeval(T+1)
        a(f's_cmp_lt_u32 s{sA}, s{sRdy}\ns_cbranch_scc1 {L("step")}\ns_sleep 2\ns_branch {L("rp")}')
        a.label(L('last'))
        a('s_nop 7')
        for x_ in lastc: a(x_)
        a(f's_branch {LE}')
    loop(L, stc)
    if mega: loop(lambda x: L('s_' + x), ' sc1')
    a.label(L('end'))
    a('s_mov_b64 exec, -1\ns_nop 7')
    a(f'''
    s_add_u32 s{sKVM}, s{sKVM}, {0 if kvnow else 32*4096}
    s_addc_u32 s{sKVM+1}, s{sKVM+1}, 0
    global_store_dwordx4 v{vLin}, {vr(HK,4)}, {sp(sKVM)} sc1
    v_mov_b32 v{T}, 0x41
    s_waitcnt vmcnt(0)
    s_barrier
    s_mov_b64 exec, {sp(sFm)}
    global_store_dword v{vLin}, v{T}, {sp(sFl)} sc1
    s_mov_b64 exec, -1
    ''')
    if prof:
        for i in range(7): a(f'v_mov_b32 v{T+i}, s{sP+20+i}')
        a(f'''
        v_mov_b32 v{T+7}, s{sSpin}
        s_lshl_b32 s{sA}, s{sH}, 2
        s_add_u32 s{sA}, s{sA}, s{sW}
        s_lshl_b32 s{sA}, s{sA}, 5
        s_add_u32 s{sA}, s{sA}, {WS_PROF}
        v_mov_b32 v{T+8}, s{sA}
        s_mov_b64 exec, 1
        global_store_dwordx4 v{T+8}, {vr(T,4)}, {sp(sWs)}
        global_store_dwordx4 v{T+8}, {vr(T+4,4)}, {sp(sWs)} offset:16
        s_mov_b64 exec, -1
        ''')
    tl(a, 4, T, 0)
    a('s_waitcnt vmcnt(0) lgkmcnt(0)')

def standalone(name='chain_kernel', **kw):
    a = Asm()
    a.raw(khead(name))
    a(f'''
    s_load_dwordx2 {sp(sMem)}, s[0:1], 8
    s_load_dwordx4 s[8:11], s[0:1], 24
    s_load_dwordx2 {sp(sWq)}, s[0:1], 16
    s_load_dwordx2 {sp(sWo)}, s[0:1], 40
    s_load_dwordx2 {sp(sDbg)}, s[0:1], 104
    s_load_dwordx2 {sp(sWs)}, s[0:1], 112
    s_getreg_b32 s{sA}, hwreg(HW_REG_XCC_ID)
    s_and_b32 s{sA}, s{sA}, 15
    s_mov_b32 s{sXcc}, s{sA}
    s_waitcnt lgkmcnt(0)
    s_cmp_lg_u32 s{sA}, 0
    s_cbranch_scc1 L_done_{name}
    v_mov_b32 v1, 0
    v_mov_b32 v2, 1
    v_lshrrev_b32 v4, 6, v0
    v_readfirstlane_b32 s{sW}, v4
    s_cmp_lg_u32 s{sW}, 0
    s_cbranch_scc1 L_t_{name}
    s_mov_b64 exec, 1
    global_atomic_add v3, v1, v2, {sp(sDbg)} sc0 sc1
    s_waitcnt vmcnt(0)
    ds_write_b32 v1, v3
    s_waitcnt lgkmcnt(0)
    s_mov_b64 exec, -1
    L_t_{name}:
    s_barrier
    ds_read_b32 v3, v1
    s_waitcnt lgkmcnt(0)
    v_readfirstlane_b32 s{sH}, v3
    s_barrier
    s_cmp_gt_u32 s{sH}, 31
    s_cbranch_scc1 L_done_{name}
    ''')
    chain(a, name, **kw)
    a.label(f'L_done_{name}')
    a('s_endpgm')
    bad = a.check_branches()
    assert bad == 0
    return a

if __name__ == '__main__':
    import sys
    variants = eval(sys.argv[1]) if len(sys.argv) > 1 else [dict()]
    out = ''.join(f'; @launch kernel=c{i}_kernel grid=(256,1,1) block=(256,1,1) lds=163840\n' for i in range(len(variants)))
    out += '.amdgcn_target "amdgcn-amd-amdhsa--gfx950"\n.text\n'
    for i, v in enumerate(variants):
        a = standalone(f'c{i}_kernel', prof=True, **v); out += a.text()
    out += '.section .rodata,"a"\n' + ''.join(kdesc(f'c{i}_kernel') for i in range(len(variants)))
    open('chain.s','w').write(out)
    open('chain.json','w').write(repr(variants))
```

```python
from asmlib import *
import struct, math
WS_KV = 0; WS_QX = 32<<20; WS_KVM = 48<<20; WS_RA = 60<<20; WS_RM = 61<<20; WS_PROF = 62<<20
RA_SLOT = 128*2048; RM_SLOT = 8192
SLAB = 131072
def f32(x): return struct.unpack('<I', struct.pack('<f', x))[0]
QSCALE = f32(128**-0.5 * math.log2(math.e))

M=0; QV=32; KA=40; KX=48; XO=40; VX=56; S=64; T=96
vIdx,vLin,vSo,vS,vXw,vXr,vPst,vMst,vLw,vOw,vM0,vM1,HK,_,HV,_2 = range(112,128)
sMem,sWq,sWk,sWv,sWo,sDbg,sWs = 4,6,8,10,12,14,16
sH,sW,sT,sSpin = 18,19,20,21
sTmp=22; sLb=24; sA=25; sB=26; sC=27
sKV=30; sKVM=32; sSt0=34; sSt1=36; sAld=38; sArs=40; sMld=42; sMst=44
sRA=46; sRAo=48; sRMl=50; sRMs=52
sB1=54; sSel=56; sPm=64; sPub=66; sM0kv=68; sQc=69
sFl=28; sXcc=3; sFm=100; sRdy=86; sVer=87; sFK=84; sGot=88; sNx=89
WS_FL = 63<<20; FL_K = 8192; FL_G = 16384; FL_P = 20480
ROLE_LDS = 163832
VERIFY = None
sP=70
SPIN=200000
def sp(x): return f's[{x}:{x+1}]'

LDS_BLK = [('q',0),('q',1),('k',0),('q',7),('k',2),('k',7),('o',6),('o',7)]
KVS = 5120
L_KV = SLAB+8192; L_MQ = SLAB; L_X = SLAB+28672; L_O = L_MQ
REG_BLK = [(m,i) for m in 'qkvo' for i in range(8) if (m,i) not in LDS_BLK]
def dest(b):
    i = REG_BLK.index(b)
    return ('a', 16*i) if i < 16 else ('v', 128 + 16*(i-16))

WS_TL = (62<<20) + 65536
TL = False
def tl(a, i, v1, role_hi):
    if not TL: return
    a(f"""
    s_memrealtime s[98:99]
    s_memtime s[90:91]
    s_lshl_b32 s97, {role_hi}, 5
    s_add_u32 s97, s97, s{sH}
    s_lshl_b32 s97, s97, 2
    s_add_u32 s97, s97, s{sW}
    s_lshl_b32 s97, s97, 6
    s_add_u32 s97, s97, {WS_TL+4*i}
    v_mov_b32 v{v1}, s97
    s_waitcnt lgkmcnt(0)
    v_mov_b32 v{v1+1}, s98
    s_mov_b64 exec, 1
    global_store_dword v{v1}, v{v1+1}, {sp(sWs)}
    s_nop 1
    v_mov_b32 v{v1+1}, s90
    global_store_dword v{v1}, v{v1+1}, {sp(sWs)} offset:32
    s_mov_b64 exec, -1
    """)

def chain(a, tag, sc='', mega=False, prof=False, nsteps=64, preA=56, preB=44, gapA=48, gapB=48, nV1=5, posD=12, stamps=(), wnt=' nt', ont=None, mord='qkv', warm=1, tls=(0,8,16), opt=(), tsc=' sc1', tdist=1, vp='d0@P0 d1@P0 d2@A3 d3@Q0 rm@Q2 tc@Q3 r0@Q4 r1@Q8 kv@K2 fl@Q5'):
    L = lambda x: f'L{tag}_{x}'
    DIR = True
    stc = (' ' + sc) if sc else ''
    LE = L('end')
    if ont is None: ont = wnt
    staged = {}
    def B(m, i, u):
        if (m,i) in staged: return vr(staged[(m,i)] + 8*u, 8)
        k, b = dest((m,i)); return vr(b + 8*u, 8, k)
    def SM(acc, A, m, i, u): a(f'v_smfmac_f32_16x16x64_bf16 {vr(acc,4)}, {vr(A,4)}, {B(m,i,u)}, v{vIdx}')
    def stg(blk, r):
        slot = LDS_BLK.index(blk); staged[blk] = r
        return [f'ds_read_b128 {vr(r+4*i,4)}, v{vLw} offset:{slot*4096+i*1024}' for i in range(4)]
    def stamp(i):
        if prof and i in stamps: a(f's_memtime {sp(sP+2*stamps.index(i))}')

    lane,n_,g_,t1,t2,t3 = T,T+1,T+2,T+3,T+4,T+5
    vWa, vOa = KX+4, T+9
    vTr = VX
    vL4, vFd, vFk = T+6, T+7, KX
    vTo = KX+2
    a(f'''
    v_and_b32 v{lane}, 63, v0
    v_and_b32 v{n_}, 15, v0
    v_lshrrev_b32 v{g_}, 4, v{lane}
    v_lshlrev_b32 v{vLin}, 4, v{lane}
    s_lshl_b32 s{sLb}, s{sW}, 15
    s_mul_i32 s{sA}, s{sW}, {KVS}
    s_add_u32 s{sM0kv}, s{sA}, {L_KV}
    v_add_u32 v{vLw}, s{sLb}, v{vLin}
    v_add_u32 v{vSo}, s{sM0kv}, v{vLin}
    v_add_u32 v{vS}, {L_KV+4096}, v{vLin}
    ; cooperative qkv DMA: instr i=gb, r'=lane/16, p=lane%16 holds chunk p^(2r'+8gb0) of row 32(w&1)+8(w>>1)+4gb1+gb0+16(r'&1)+2(r'>>1)
    v_and_b32 v{t1}, 1, v{g_}
    v_lshrrev_b32 v{t3}, 1, v{g_}          ; gb1
    v_lshlrev_b32 v{t2}, 1, v{g_}
    v_xor_b32 v{t2}, v{t2}, v{n_}
    v_lshlrev_b32 v{t2}, 4, v{t2}
    v_lshl_add_u32 v{t2}, v{t1}, 17, v{t2}
    v_lshl_add_u32 v{t2}, v{t3}, 14, v{t2}
    s_and_b32 s{sA}, s{sW}, 1
    s_lshl_b32 s{sA}, s{sA}, 18
    s_lshr_b32 s{sB}, s{sW}, 1
    s_lshl_b32 s{sB}, s{sB}, 16
    s_add_u32 s{sA}, s{sA}, s{sB}
    s_lshl_b32 s{sB}, s{sH}, 8
    s_add_u32 s{sA}, s{sA}, s{sB}
    v_add_u32 v{vWa}, s{sA}, v{t2}
    v_xor_b32 v{t2}, 128, v{vWa}
    v_add_u32 v{vWa+1}, {8192-1024}, v{t2}
    v_add_u32 v{vWa+2}, {4*8192-2048}, v{vWa}
    v_add_u32 v{vWa+3}, {5*8192-3072}, v{t2}
    ; wo rows: 16*gb0+4*gb1+bit3 ; chunk = (l%8)^(4*gb0)
    v_lshlrev_b32 v{vOa}, 4, v{t1}
    v_lshl_add_u32 v{vOa}, v{t3}, 2, v{vOa}
    v_bfe_u32 v{vTr}, v{lane}, 3, 1
    v_add_u32 v{vOa}, v{vOa}, v{vTr}
    v_lshlrev_b32 v{vTr}, 2, v{t1}
    v_xor_b32 v{vTr}, v{vTr}, v{lane}
    v_and_b32 v{vTr}, 7, v{vTr}
    v_lshlrev_b32 v{vTr}, 4, v{vTr}
    v_lshl_add_u32 v{vOa}, v{vOa}, 10, v{vTr}
    s_lshl_b32 s{sA}, s{sH}, 17
    s_lshl_b32 s{sB}, s{sW}, 8
    s_add_u32 s{sA}, s{sA}, s{sB}
    v_add_u32 v{vOa}, s{sA}, v{vOa}
    ''')
    def dma(bi):
        slot = bi % 8; tg = None
        if bi < 24:
            base = {'q': sWq, 'k': sWk, 'v': sWv}[mord[bi//8]]
            a(f's_add_u32 s{sTmp}, s{base}, {slot<<19}\ns_addc_u32 s{sTmp+1}, s{base+1}, 0\ns_add_u32 m0, s{sLb}, {slot*4096}')
            for J in range(4): tg = a(f'global_load_lds_dwordx4 v{vWa+J}, {sp(sTmp)} offset:{J*1024}{wnt}')
            return tg
        i = slot
        a(f's_add_u32 s{sA}, s{sW}, {i//2}\ns_and_b32 s{sA}, s{sA}, 3\ns_lshl_b32 s{sA}, s{sA}, 15')
        for J in range(4):
            off = (i%2)*128 + (8*(J>>1) + 2*(J&1))*1024
            a(f's_add_u32 s{sB}, s{sA}, {off}\ns_add_u32 s{sTmp}, s{sWo}, s{sB}\ns_addc_u32 s{sTmp+1}, s{sWo+1}, 0')
            a(f's_add_u32 m0, s{sLb}, {slot*4096+J*1024}')
            tg = a(f'global_load_lds_dwordx4 v{vOa}, {sp(sTmp)}{ont}')
        return tg
    dtag = {}
    arr = 9
    def fkeval(v):
        a(f"""
        v_cmp_eq_u32 vcc, 0x01010101, v{v}
        s_or_b32 s{sTmp}, vcc_lo, 0xaaaaaaaa
        s_or_b32 s{sTmp+1}, vcc_hi, 0xaaaaaaaa
        s_ff0_i32_b64 s{sRdy}, {sp(sTmp)}
        s_min_u32 s{sRdy}, s{sRdy}, 100
        """)
    for bi in range(8): dtag[bi] = dma(bi)
    if 'a' in tls: tl(a, 5 + tls.index('a'), T+12, 0)
    if mega: VERIFY(a, 'c', 32 + 2*(TL and 'a' in tls))
    if 'b' in tls: tl(a, 5 + tls.index('b'), T+12, 0)
    a(f'''
    v_lshrrev_b32 v{t2}, 2, v{n_}
    v_and_b32 v{t3}, 3, v{lane}
    s_lshl_b32 s{sA}, s{sW}, 6
    v_lshl_add_u32 v{vTr}, v{t3}, 3, s{sA}
    v_lshlrev_b32 v{vTr+1}, 5, v{t2}
    v_lshl_add_u32 v{vTr+1}, v{t1}, 7, v{vTr+1}
    v_xor_b32 v{vTr}, v{vTr}, v{vTr+1}
    v_lshl_add_u32 v{vTr}, v{t2}, 8, v{vTr}
    v_lshl_add_u32 v{vTr}, v{g_}, 10, v{vTr}
    v_xor_b32 v{vTr+1}, 32, v{vTr}
    v_add_u32 v{vTr+2}, 0x10000, v{vTr}
    v_add_u32 v{vTr+3}, 0x10000, v{vTr+1}
    ; wo tr-read: gb*256 + bit2*128 + gb0*64 + bit3*32 + c4*8 (u flips bit 6)
    v_lshlrev_b32 v{vTo}, 8, v{g_}
    v_lshl_add_u32 v{vTo}, v{t1}, 6, v{vTo}
    v_lshl_add_u32 v{vTo}, v{t3}, 3, v{vTo}
    v_and_b32 v{vTo+1}, 4, v{lane}
    v_lshl_add_u32 v{vTo}, v{vTo+1}, 5, v{vTo}
    v_and_b32 v{vTo+1}, 8, v{lane}
    v_lshl_add_u32 v{vTo}, v{vTo+1}, 2, v{vTo}
    v_add_u32 v{vTo}, s{sLb}, v{vTo}
    v_xor_b32 v{vTo+1}, 64, v{vTo}
    v_xor_b32 v{vXw}, v{g_}, v{t2}
    v_lshlrev_b32 v{vXw}, 3, v{vXw}
    v_lshl_add_u32 v{vXw}, v{n_}, 5, v{vXw}
    s_lshl_b32 s{sA}, s{sW}, 10
    s_add_u32 s{sA}, s{sA}, {L_X}
    v_add_u32 v{vXw}, s{sA}, v{vXw}
    v_xor_b32 v{vXr}, v{t3}, v{g_}
    v_lshlrev_b32 v{vXr}, 3, v{vXr}
    v_lshl_add_u32 v{vXr}, v{t2}, 5, v{vXr}
    v_lshl_add_u32 v{vXr}, v{g_}, 7, v{vXr}
    v_add_u32 v{vXr}, {L_X}, v{vXr}
    v_lshl_add_u32 v{vPst}, v{t2}, 2, v{g_}
    v_lshlrev_b32 v{vPst}, 11, v{vPst}
    v_lshl_add_u32 v{vPst}, v{t3}, 4, v{vPst}
    s_lshl_b32 s{sA}, s{sW}, 16
    s_lshl_b32 s{sB}, s{sH}, 6
    s_add_u32 s{sA}, s{sA}, s{sB}
    v_add_u32 v{vPst}, s{sA}, v{vPst}
    ; publish: (c/2)*32 + p*16 + (c%2)*8 + (i/2)*4 ; c=g, p=bit2, i=lane%4
    v_lshrrev_b32 v{vMst}, 1, v{g_}
    v_lshlrev_b32 v{vMst}, 5, v{vMst}
    v_lshl_add_u32 v{vMst}, v{t1}, 3, v{vMst}
    v_and_b32 v{t2}, 4, v{lane}
    v_lshl_add_u32 v{vMst}, v{t2}, 2, v{vMst}
    v_and_b32 v{t2}, 2, v{lane}
    v_lshl_add_u32 v{vMst}, v{t2}, 1, v{vMst}
    ; O write: L_O + w*512 + (g*8+t)*16 + half*8 ; t = 2*(n/4)+n%2
    v_lshlrev_b32 v{vOw}, 7, v{g_}
    v_and_b32 v{t2}, 12, v{lane}
    v_lshl_add_u32 v{vOw}, v{t2}, 3, v{vOw}
    v_and_b32 v{t2}, 1, v{lane}
    v_lshl_add_u32 v{vOw}, v{t2}, 4, v{vOw}
    v_and_b32 v{t2}, 2, v{lane}
    v_lshl_add_u32 v{vOw}, v{t2}, 2, v{vOw}
    s_lshl_b32 s{sA}, s{sW}, 9
    s_add_u32 s{sA}, s{sA}, {L_O}
    v_add_u32 v{vOw}, s{sA}, v{vOw}
    s_mov_b32 s{sB1}, 0xcccccccc
    s_mov_b32 s{sB1+1}, 0xcccccccc
    s_mov_b32 s{sPm}, 0xf0f0f0f0
    s_mov_b32 s{sPm+1}, 0xf0f0f0f0
    s_mov_b32 s{sPub}, 0x00550055
    s_mov_b32 s{sPub+1}, 0x00550055
    s_mov_b32 s{sQc}, {QSCALE}
    v_mov_b32 v{t2}, 0x4444
    v_mov_b32 v{t3}, 0xeeee
    v_cndmask_b32 v{vIdx}, v{t2}, v{t3}, {sp(sB1)}
    v_cndmask_b32 v{vM0}, -1, 0, {sp(sB1)}
    v_cndmask_b32 v{vM1}, 0, -1, {sp(sB1)}
    ''')
    for i in range(4):
        a(f's_mov_b32 s{sSel+2*i}, {0x00110011 << i}\ns_mov_b32 s{sSel+2*i+1}, {0x00110011 << i}')
    a(f'''
    s_lshl_b32 s{sA}, s{sH}, 2
    s_add_u32 s{sA}, s{sA}, s{sW}
    s_add_u32 s{sRA}, s{sWs}, {WS_RA}
    s_addc_u32 s{sRA+1}, s{sWs+1}, 0
    s_lshl_b32 s{sB}, s{sA}, 11
    s_add_u32 s{sRAo}, s{sRA}, s{sB}
    s_addc_u32 s{sRAo+1}, s{sRA+1}, 0
    s_lshl_b32 s{sB}, s{sA}, 6
    s_add_u32 s{sB}, s{sB}, {WS_RM}
    s_add_u32 s{sRMs}, s{sWs}, s{sB}
    s_addc_u32 s{sRMs+1}, s{sWs+1}, 0
    s_lshl_b32 s{sB}, s{sW}, 11
    s_add_u32 s{sB}, s{sB}, {WS_RM}
    s_add_u32 s{sRMl}, s{sWs}, s{sB}
    s_addc_u32 s{sRMl+1}, s{sWs+1}, 0
    s_lshl_b32 s{sB}, s{sA}, 12
    s_add_u32 s{sKV}, s{sWs}, s{sB}
    s_addc_u32 s{sKV+1}, s{sWs+1}, 0
    s_sub_u32 s{sKV}, s{sKV}, {32*16384 if DIR else 0}
    s_subb_u32 s{sKV+1}, s{sKV+1}, 0
    s_lshl_b32 s{sB}, s{sA}, 10
    s_add_u32 s{sB}, s{sB}, {WS_KVM-64*4096}
    s_add_u32 s{sKVM}, s{sWs}, s{sB}
    s_addc_u32 s{sKVM+1}, s{sWs+1}, 0
    s_lshl_b32 s{sB}, s{sH}, 7
    s_add_u32 s{sB}, s{sB}, {WS_FL+FL_P}
    s_add_u32 s{sFl}, s{sWs}, s{sB}
    s_addc_u32 s{sFl+1}, s{sWs+1}, 0
    s_lshl_b32 s{sB}, s{sH}, 8
    s_add_u32 s{sB}, s{sB}, {WS_FL+FL_K}
    s_add_u32 s{sFK}, s{sWs}, s{sB}
    s_addc_u32 s{sFK+1}, s{sWs+1}, 0
    s_mov_b32 s{sRdy}, {0 if mega else 100}
    s_mov_b32 s{sNx}, {32*16384*tdist}
    v_lshlrev_b32 v{vL4}, 2, v{lane}
    s_cmp_eq_u32 s{sW}, 0
    s_cselect_b32 s{sFm}, 1, 0
    s_mov_b32 s{sFm+1}, 0
    v_mov_b64 {vr(HK,2)}, 0
    v_mov_b64 {vr(HV,2)}, 0
    ; ring init (both slots)
    v_mov_b32 v{T+12}, -1
    v_mov_b32 v{T+13}, -1
    v_mov_b32 v{T+14}, -1
    v_mov_b32 v{T+15}, -1
    global_store_dwordx4 v{vLin}, {vr(T+12,4)}, {sp(sRAo)} sc1
    global_store_dwordx4 v{vLin}, {vr(T+12,4)}, {sp(sRAo)} offset:1024 sc1
    ; M(0) gather: lane(row: b0=t%2,b1=half,b3:2=t/2 ; ga): byte = t*1024 + (128w + 64s + 16(ea%4) + 4ga + 2half + ea/4)*2
    v_lshrrev_b32 v{t2}, 2, v{n_}
    v_lshlrev_b32 v{t2}, 11, v{t2}
    v_and_b32 v{t3}, 1, v{lane}
    v_lshl_add_u32 v{t2}, v{t3}, 10, v{t2}
    v_lshl_add_u32 v{t2}, v{g_}, 3, v{t2}
    v_and_b32 v{t3}, 2, v{lane}
    v_lshl_add_u32 v{t2}, v{t3}, 1, v{t2}
    s_lshl_b32 s{sA}, s{sW}, 8
    v_add_u32 v{t2}, s{sA}, v{t2}
    ''')
    for s_ in range(2):
        for ea in range(8):
            off = (64*s_ + 16*(ea%4) + ea//4)*2
            a(f'global_load_ushort v{S+8*s_+ea}, v{t2}, {sp(sMem)} offset:{off}')
    if 'c' in tls: tl(a, 5 + tls.index('c'), T+12, 0)
    def park(pj): return dest(('o', pj+1)) if pj < 5 else ('v', S+16)
    for w in range(1,4): a(f's_cmp_eq_u32 s{sW}, {w}\ns_cbranch_scc1 {L(f"pw{w}")}')
    nvm0, nds0 = a.nvm, a.nds
    for w in range(4):
        a.label(L(f'pw{w}'))
        a.nvm, a.nds = nvm0, nds0
        for bi in range(24):
            m, i = mord[bi//8], (bi%8) ^ (2*w); slot = bi % 8
            a.wvm(dtag[bi]); a('s_barrier')
            if bi in tls: tl(a, 5 + tls.index(bi), t1, 0)
            if bi: dtag[bi+7] = dma(bi+7)
            k, b = park(LDS_BLK.index((m,i))) if (m,i) in LDS_BLK else dest((m,i))
            for u in range(2):
                for J in range(4):
                    a(f'ds_read_b64_tr_b16 {vr(b+8*u+2*J,2,k)}, v{vTr+u+2*(J//2)} offset:{slot*4096+(J%2)*32768}')
            if bi == 8:
                a(f"""
                s_lshl_b32 s{sA}, s{sH}, 2
                s_add_u32 s{sA}, s{sA}, {32+w}
                v_mov_b32 v{t1}, s{sA}
                s_cmp_eq_u32 s{sXcc}, 0
                s_cselect_b32 s{sA}, 1, 3
                v_mov_b32 v{t3}, s{sA}
                s_mov_b64 exec, 1
                global_store_byte v{t1}, v{t3}, {sp(sDbg)} sc1
                s_mov_b64 exec, -1
                """)
                for r in range(8): a(f'v_lshl_or_b32 v{M+r}, v{S+2*r+1}, 16, v{S+2*r}')
            if bi == arr: a(f'global_load_dword v{vFd}, v{vL4}, {sp(sDbg)} sc1')
            if bi == arr + 8:
                msk = ((1 << (41 if mega else 40)) - 1) ^ 0xff
                a(f"""
                s_mov_b32 s{sSpin}, 0
                {L(f'tb{w}')}:
                v_and_b32 v{t1}, 0x01010101, v{vFd}
                v_cmp_ne_u32 vcc, 0x01010101, v{t1}
                s_and_b32 s{sA}, vcc_lo, {msk & 0xffffffff}
                s_and_b32 s{sB}, vcc_hi, {msk >> 32}
                s_or_b32 s{sA}, s{sA}, s{sB}
                s_cbranch_scc0 {L(f'tbo{w}')}
                s_sleep 4
                global_load_dword v{vFd}, v{vL4}, {sp(sDbg)} sc1
                s_add_u32 s{sSpin}, s{sSpin}, 1
                s_cmp_gt_u32 s{sSpin}, {SPIN}
                s_cbranch_scc1 {L('end')}
                s_waitcnt vmcnt(0)
                s_branch {L(f'tb{w}')}
                {L(f'tbo{w}')}:
                v_and_b32 v{t1}, 0x02020202, v{vFd}
                v_cmp_ne_u32 vcc, 0, v{t1}
                s_and_b32 s{sA}, vcc_lo, 0xffffff00
                s_and_b32 s{sB}, vcc_hi, 0xff
                s_or_b32 s{sXcc}, s{sA}, s{sB}
                """)
                a.nvm -= 1
                if warm:
                    a(f"""
                    v_lshlrev_b32 v{t1}, 7, v{n_}
                    s_lshl_b32 s{sA}, s{sH}, 13
                    s_add_u32 s{sA}, s{sA}, {WS_RA+w*2048}
                    v_mov_b32 v{t2}, s{sA}
                    v_mov_b32 v{t3}, {WS_RM+w*2048}
                    v_cmp_gt_u32 vcc, 2, v{g_}
                    v_cndmask_b32 v{t2}, v{t3}, v{t2}, vcc
                    v_add_u32 v{t1}, v{t1}, v{t2}
                    v_mov_b32 v{t2}, 13
                    v_cndmask_b32 v{t2}, v{t2}, 18, vcc
                    v_and_b32 v{t3}, 1, v{g_}
                    v_lshlrev_b32 v{t3}, v{t2}, v{t3}
                    v_add_u32 v{t1}, v{t1}, v{t3}
                    global_load_dword v{vFd}, v{t1}, {sp(sWs)} sc1
                    """)
            a('s_waitcnt lgkmcnt(0)')
        if w < 3: a(f's_branch {L("pwe")}')
    a.label(L('pwe'))
    tl(a, 1, t1, 0)
    for bi in range(24, 32):
        slot = bi % 8
        a.wvm(dtag[bi])
        if bi == 24: a('s_barrier'); dtag[31] = dma(31)
        if mega and bi == 27: a(f'global_load_dword v{vFk}, v{vL4}, {sp(sFK)} sc1')
        k, b = dest(('o', slot)) if slot < 6 else ('v', S)
        for u in range(2):
            for J in range(4):
                a(f'ds_read_b64_tr_b16 {vr(b+8*u+2*J,2,k)}, v{vTo+u} offset:{slot*4096+J*1024}')
        a('s_waitcnt lgkmcnt(0)')
        k, b = park(slot) if slot < 6 else ('v', S)
        for u in range(2):
            for hf in range(2):
                a(f'ds_write_b128 v{vLw}, {vr(b+8*u+4*hf,4,k)} offset:{slot*4096+u*2048+hf*1024}')
        a('s_waitcnt lgkmcnt(0)')
    tl(a, 2, t1, 0)
    if 'ponly' in opt: a(f's_branch {LE}')
    if mega:
        a(f"""
        s_mov_b32 s{sSpin}, 0
        {L('kw')}:
        s_waitcnt vmcnt(0)
        """)
        fkeval(vFk)
        a(f"""
        s_cmp_lg_u32 s{sRdy}, 0
        s_cbranch_scc1 {L("kwd")}
        s_sleep 2
        global_load_dword v{vFk}, v{vL4}, {sp(sFK)} sc1
        s_add_u32 s{sSpin}, s{sSpin}, 1
        s_cmp_gt_u32 s{sSpin}, {SPIN}
        s_cbranch_scc1 {L('end')}
        s_branch {L("kw")}
        """)
        a.label(L('kwd'))
    a(f"""
    s_waitcnt vmcnt(0)
    s_mov_b32 s{sT}, 0
    s_mov_b32 s{sSpin}, 0
    """)
    tl(a, 3, t1, 0)
    if prof:
        for i in range(8): a(f's_mov_b32 s{sP+20+i}, 0')
        a(f's_memtime {sp(sP+28)}')
    def tstamp(idx):
        if 'ts' not in opt: return
        a(f"""
        s_memrealtime s[96:97]
        s_lshl_b32 s{sA}, s{sH}, 2
        s_add_u32 s{sA}, s{sA}, s{sW}
        s_lshl_b32 s{sA}, s{sA}, 6
        s_add_u32 s{sA}, s{sA}, {idx}
        s_lshl_b32 s{sA}, s{sA}, 2
        s_add_u32 s{sA}, s{sA}, {WS_PROF+131072}
        v_mov_b32 v{T}, s{sA}
        s_waitcnt lgkmcnt(0)
        v_mov_b32 v{T+1}, s96
        s_mov_b64 exec, 1
        global_store_dword v{T}, v{T+1}, {sp(sWs)}
        s_mov_b64 exec, -1
        """)
    tstamp(63)
    DPPM = 'row_mask:0xf bank_mask:0xf'
    QA = T+8; VA = QV; P2 = VX; S0 = S; S1 = S+16; K0 = M+16
    NEG = T+4; Sel = T+4; Dr = T+8
    def pre1():
        n0 = len(a.items)
        a(f"""
        s_and_b32 s{sA}, s{sT}, 1
        s_lshl_b32 s{sC}, s{sA}, 13
        s_add_u32 s{sMld}, s{sRMl}, s{sC}
        s_addc_u32 s{sMld+1}, s{sRMl+1}, 0
        s_xor_b32 s{sB}, s{sA}, 1
        """)
        if not DIR: a(f'ds_read_b128 {vr(KX,4)}, v{vSo}\nds_read_b128 {vr(KX+4,4)}, v{vSo} offset:1024')
        for x_ in stg(('k',0), K0): a(x_)
        for i in range(0,16,2): a(f'v_mov_b64 {vr(VA+i,2)}, 0')
        for i in range(0,8,2): a(f'v_mov_b64 {vr(QA+i,2)}, 0')
        return len(a.items) - n0
    def pre2():
        n0 = len(a.items)
        a(f"""
        s_lshl_b32 s{sC}, s{sB}, 13
        s_add_u32 s{sMst}, s{sRMs}, s{sC}
        s_addc_u32 s{sMst+1}, s{sRMs+1}, 0
        s_lshl_b32 s{sC}, s{sB}, 18
        s_add_u32 s{sArs}, s{sRAo}, s{sC}
        s_addc_u32 s{sArs+1}, s{sRAo+1}, 0
        s_lshl_b32 s{sC}, s{sA}, 18
        s_add_u32 s{sSt0}, s{sRA}, s{sC}
        s_addc_u32 s{sSt0+1}, s{sRA+1}, 0
        s_add_u32 s{sSt1}, s{sSt0}, 32768
        s_addc_u32 s{sSt1+1}, s{sSt0+1}, 0
        s_add_u32 s{sAld}, s{sRAo}, s{sC}
        s_addc_u32 s{sAld+1}, s{sRAo+1}, 0
        s_add_u32 s{sKV}, s{sKV}, {32*16384}
        s_addc_u32 s{sKV+1}, s{sKV+1}, 0
        s_add_u32 s{sKVM}, s{sKVM}, {32*4096}
        s_addc_u32 s{sKVM+1}, s{sKVM+1}, 0
        s_mov_b32 m0, s{sM0kv}
        s_lshl_b32 s{sC}, s{sW}, 11
        s_add_u32 s{sC}, s{sC}, {L_MQ}
        v_add_u32 v{T+4}, s{sC}, v{vLin}
        s_lshl_b32 s{sC}, s{sW}, 10
        v_add_u32 v{T+3}, s{sC}, v{vXr}
        """)
        for i in range(1,4): a(f'v_xor_b32 v{T+i-1}, {i*2048}, v{T+4}')
        return len(a.items) - n0
    def ldM(r): a(f'global_load_dwordx4 {vr(r,4)}, v{vLin}, {sp(sMld)} sc1\nglobal_load_dwordx4 {vr(r+4,4)}, v{vLin}, {sp(sMld)} offset:1024 sc1')
    def ldA(r): a(f'global_load_dwordx4 {vr(r,4)}, v{vLin}, {sp(sAld)} sc1\nglobal_load_dwordx4 {vr(r+4,4)}, v{vLin}, {sp(sAld)} offset:1024 sc1')
    def spin(): a(f's_add_u32 s{sSpin}, s{sSpin}, 1\ns_cmp_gt_u32 s{sSpin}, {SPIN}\ns_cbranch_scc1 {LE}')
    acc = {'q': QA, 'k': KA, 'v': VA}
    def P_(m, sg, u): SM(acc[m]+4*u, M+4*sg, m, sg, u)
    for x_ in stg(('q',0), S0) + stg(('q',1), S1): a(x_)
    for r in (0,2,4,6): a(f'v_min_u32 v{M+r}, -2, v{M+r}')
    pre1(); pre2()
    a('s_waitcnt lgkmcnt(0)')
    if mega: a(f's_cmp_lg_u32 s{sXcc}, 0\ns_cbranch_scc1 {L("s_try")}')
    a(f's_branch {L("try")}')
    staged0 = dict(staged)
    def loop(L, stc):
        staged.clear(); staged.update(staged0)
        dm = [f'global_load_lds_dwordx4 v{vLin}, {sp(sKV)} offset:{j*1024} sc1' for j in range(4)]
        if DIR: dm = [f'global_load_dwordx4 {vr(KX+4*j,4)}, v{vLin}, {sp(sKV)} offset:{j*1024} sc1' for j in range(4)]
        a.label(L('retry'))
        spin()
        a('s_waitcnt vmcnt(0)')
        for i in range(0,8,2): a(f'v_mov_b64 {vr(M+i,2)}, {vr(P2+i,2)}')
        ldM(P2)
        for i in range(0,8,2): a(f'v_mov_b64 {vr(QA+i,2)}, 0')
        a(f's_branch {L("try")}')
        a.label(L('step'))
        n = pre1(); a.nops(preB - n - 5)
        ldM(M)
        n = pre2(); a.nops(gapB - n - 2)
        ldM(P2)
        a(f's_waitcnt vmcnt(2) lgkmcnt(0)')
        a.label(L('try'))
        a.nds = 0; a.nvm = 2; set2 = 2
        stamp('a0')
        ck = M+8
        a(f'ds_write_b128 v{T+4}, {vr(M,4)}\nds_write_b128 v{T+4}, {vr(M+4,4)} offset:1024')
        P_('q',0,0); a(f'v_max3_u32 v{ck}, v{M}, v{M+2}, v{M+4}')
        P_('q',0,1); a(f'v_max_u32 v{ck}, v{ck}, v{M+6}')
        P_('q',1,0); a(f'v_cmp_eq_u32 vcc, -1, v{ck}')
        P_('q',1,1); a(f's_cbranch_vccnz {L("retry")}')
        if 'rdw' in opt: rs = [f'global_store_dword v{vLin}, v{NEG}, {sp(sArs)} offset:{1024*i}{stc}' for i in range(2)]
        else: rs = [f'global_store_dwordx4 v{vLin}, {vr(NEG,4)}, {sp(sArs)} offset:{1024*i}{stc}' for i in range(2)]
        vops = dict(d0=dm[0], d1=dm[1], d2=dm[2], d3=dm[3], r0=rs[0], r1=rs[1],
                    kv=f'global_store_dwordx4 v{vLin}, {vr(HK,4)}, {sp(sKVM)} sc1',
                    fl=f's_mov_b64 exec, {sp(sFm)}\nglobal_store_dword v{vLin}, v{T}, {sp(sFl)} sc1\ns_mov_b64 exec, -1',
                    tc=f'global_load_lds_dword v{T+1}, {sp(sKV)}{tsc}',
                    rm=f'global_store_dword v{vMst}, v{NEG}, {sp(sMst)}{stc}')
        vt = {}; st_ = {}
        def VM(slot):
            for x_ in vp.split():
                o, s_ = x_.split('@')
                if s_ != slot: continue
                if o in ('d2','d3') and not DIR: a.wds(st_['vx'])
                if o[0] == 'r': assert slot[0] in 'AQ' and slot != 'A0'
                if o == 'fl': assert slot[0] == 'A' and slot >= 'A2' or slot[0] == 'Q' and int(slot[1:]) <= 5
                if o == 'tc': assert slot not in ('P0','A0','A1','A2')
                if o == 'kv': assert slot[0] != 'K' or int(slot[1:]) < 9
                vt[o] = a(vops[o])
        P_('k',0,0); VM('P0'); a(f'v_mov_b64 {vr(NEG,2)}, -1\ns_waitcnt lgkmcnt(0)\ns_barrier')
        stamp('a1')
        mt = {}
        def rdM(sg): mt[sg] = a(f'ds_read_b128 {vr(M+4*sg,4)}, v{T+sg//2-1} offset:{1024*(sg%2)}')
        vq = [(sg,u) for sg in range(8) for u in (0,1)]
        def V_():
            sg, u = vq.pop(0); P_('v', sg, u)
        g1 = stg(('q',7), S0)
        rdM(2); rdM(3)
        P_('k',0,1); rdM(4); rdM(5); VM('A0'); a(f'v_mov_b64 {vr(NEG+2,2)}, -1')
        P_('k',1,0); rdM(6); VM('A1'); a(f'v_mov_b32 v{T}, s{sT}')
        P_('k',1,1); rdM(7); VM('A2'); a(f'v_lshl_add_u32 v{T+1}, v{vLin}, 2, s{sNx}')
        for i in range(4): V_(); tq7 = a(g1[i]); VM(f'A{3+i}')
        stamp('a2')
        Y = T+4; D0 = T+8; D1 = T+12
        def qcvt(u):
            q = QA+4*u
            return [f'v_add_f32 v{q}, v{q}, v{q+2}', f'v_add_f32 v{q+1}, v{q+1}, v{q+3}',
                    f'v_mul_f32 v{q}, s{sQc}, v{q}', f'v_mul_f32 v{q+1}, s{sQc}, v{q+1}',
                    f'v_cvt_pk_bf16_f32 v{q+2}, v{q}, v{q+1}',
                    f'ds_write2_b32 v{vXw}, v{q+2}, v{q+2} offset0:{128*u} offset1:{128*u+1}',
                    f'ds_read_b64_tr_b16 {vr(Y+2*u,2)}, v{T+3} offset:{512*u}']
        f0 = qcvt(0); f1 = qcvt(1)
        a.wds(mt[2])
        g2 = stg(('k',2), S1); g3 = None
        qseq = [(s_,0) for s_ in range(2,8)] + [(7,1)] + [(s_,1) for s_ in range(2,7)]
        for i, (sg, u) in enumerate(qseq):
            P_('q', sg, u)
            if i == 0 and not DIR: a.wvm(set2); a(f'ds_read_b128 {vr(VX,4)}, v{vSo} offset:2048')
            if i == 1 and not DIR: st_['vx'] = a(f'ds_read_b128 {vr(VX+4,4)}, v{vSo} offset:3072')
            if 2 <= i <= 5: tk2 = a(g2[i-2])
            if i < 4: a.wds(mt[sg+1])
            if i == 4: a.wds(tq7)
            if i == 6: g3 = stg(('k',7), S0)
            if 7 <= i <= 10: tk7 = a(g3[i-7])
            VM(f'Q{i}')
            if i == 11: a.wds(tk2)
            if 1 <= i <= 4: a(f'v_mov_b64 {vr(M+2*(i-1),2)}, 0')
            if i == 6: a(f'v_and_b32 v{T}, -33, v{vSo}')
            if i >= 7: a(f0[i-7])
        stamp('b0')
        kseq = [(2,0),(2,1)] + [(s_,0) for s_ in range(3,8)] + [(7,1)] + [(s_,1) for s_ in range(3,7)]
        k0c = [f'v_add_f32 v{KA}, v{KA}, v{KA+2}', f'v_add_f32 v{KA+1}, v{KA+1}, v{KA+3}', f'v_cvt_pk_bf16_f32 v{HK}, v{KA}, v{KA+1}', f'ds_write_b32 v{vXw}, v{HK} offset:4']
        def DD():
            a.wds(yt)
            if DIR: a.wvm(max(vt['d0'], vt['d1']))
            a(f'v_mfma_f32_16x16x32_bf16 {vr(D0,4)}, {vr(KX,4)}, {vr(Y,4)}, 0')
            a(f'v_mfma_f32_16x16x32_bf16 {vr(D1,4)}, {vr(KX+4,4)}, {vr(Y,4)}, 0')
        dw = [f'ds_write_b128 v{T}, {vr(D0,4)} offset:4096', f'ds_write_b128 v{T}, {vr(D1,4)} offset:4128']
        g4 = g5 = None
        for i, (sg, u) in enumerate(kseq):
            P_('k', sg, u)
            VM(f'K{i}')
            if i == 0: a(f0[5]); a(f0[6])
            if i == 1: a(f1[0]); a(f1[1]); g4 = stg(('o',6), S1)
            if i == 2: a(g4[0]); a(f1[2]); a(f1[3]); a(f1[4])
            if i == 3: a(f1[5]); yt = a(f1[6])
            if 4 <= i <= 6: a(g4[i-3])
            if i == 5: a.wds(tk7)
            if i == 7: g5 = stg(('o',7), S0)
            if 7 <= i <= 10: a(g5[i-7])
            if 8 <= i <= 10: a(k0c[i-8])
            if i == 11: a(k0c[3])
            if i + 1 == posD: DD()
            if i == posD + 1: a(dw.pop(0)); a(dw.pop(0))
        stamp('b1')
        k1c = [f'v_add_f32 v{KA+4}, v{KA+4}, v{KA+6}', f'v_add_f32 v{KA+5}, v{KA+5}, v{KA+7}', f'v_cvt_pk_bf16_f32 v{HK+1}, v{KA+4}, v{KA+5}', f'ds_write_b32 v{vXw}, v{HK+1} offset:516']
        nv = nV1
        if posD < 12:
            V_(); nv -= 1
            if posD < 11: V_(); nv -= 1
        for x_ in k1c: a(x_)
        for x_ in dw: a(x_)
        for i in range(nv): V_()
        a('s_waitcnt lgkmcnt(0)\ns_barrier')
        stamp('c0')
        xr = [f'ds_read_b64_tr_b16 {vr(XO+4*i+2*v,2)}, v{vXr} offset:{i*1024+v*512}' for i in range(4) for v in range(2)]
        sr = [f'ds_read_b128 {vr(T+4*i,4)}, v{vS} offset:{i*KVS}' for i in range(4)]
        rd = xr[:4] + sr[:2] + xr[4:] + sr[2:]; tg = {}
        zq = [f'v_mov_b64 {vr(M+8+2*i,2)}, 0' for i in range(4)]
        rdiv = 2 if len(vq) > 6 else 3
        for i, x_ in enumerate(rd):
            tg[x_] = a(x_)
            if i % rdiv == rdiv-1 and vq: V_()
        while vq: V_()
        Dm = M+16; vOr = M+20
        vf = [f'v_add_f32 v{VA}, v{VA}, v{VA+2}', f'v_add_f32 v{VA+1}, v{VA+1}, v{VA+3}', f'v_add_f32 v{VA+4}, v{VA+4}, v{VA+6}', f'v_add_f32 v{VA+5}, v{VA+5}, v{VA+7}',
              f'v_cvt_pk_bf16_f32 v{HV}, v{VA}, v{VA+1}', f'v_cvt_pk_bf16_f32 v{HV+1}, v{VA+4}, v{VA+5}']
        ad = [f'v_add_f32 v{T+r}, v{T+r}, v{T+4+r}' for r in range(4)] + [f'v_add_f32 v{T+8+r}, v{T+8+r}, v{T+12+r}' for r in range(4)] + \
             [f'v_add_f32 v{T+r}, v{T+r}, v{T+8+r}' for r in range(4)]
        def SMM(i): a(f'v_mfma_f32_16x16x32_bf16 {vr(Dm,4)}, {vr(XO+4*i,4)}, {vr(XO+4*i,4)}, {vr(Dm,4) if i else 0}')
        a.wds(tg[xr[1]]); SMM(0); a.wds(tg[sr[1]])
        a(ad[0]); a(ad[1]); SMM(1); a.wds(tg[xr[5]]); a(ad[2]); a(ad[3])
        SMM(2); a.wds(tg[sr[3]]); a(ad[4]); a(ad[5])
        SMM(3); a(ad[6]); a(ad[7])
        for i in range(8,12): a(ad[i])
        stamp('c1')
        mx = T+4; tm = T+5; ma = T+6
        a(f'v_max3_f32 v{mx}, v{T}, v{T+1}, v{T+2}')
        a(f'v_max_f32 v{ma}, v{Dm+2}, v{Dm+3}')
        a(f'v_cndmask_b32 v{ma}, v{ma}, v{T+3}, {sp(sB1)}')
        a(f'v_max3_f32 v{mx}, v{mx}, v{T+3}, v{ma}')
        a(vf[0]); a(vf[1])
        a(f'v_max_f32_dpp v{tm}, v{mx}, v{mx} quad_perm:[2,3,0,1] {DPPM}')
        a(f'v_max_f32_dpp v{mx}, v{mx}, v{mx} quad_perm:[2,3,0,1] {DPPM}')
        a(vf[2]); a(vf[3])
        a(f'v_permlane16_swap_b32 v{mx}, v{tm}\nv_max_f32 v{ma}, v{mx}, v{tm}\nv_max_f32 v{mx}, v{mx}, v{tm}')
        a(vf[4]); a(vf[5])
        a(f'v_permlane32_swap_b32 v{mx}, v{ma}\nv_max_f32 v{mx}, v{mx}, v{ma}')
        for r in range(4): a(f'v_sub_f32 v{T+r}, v{T+r}, v{mx}')
        for r in range(4): a(f'v_exp_f32 v{T+r}, v{T+r}')
        stamp('c2')
        if DIR: a.wvm(max(vt['d2'], vt['d3']))
        a(f'v_sub_f32_dpp v{T+6}, v{Dm+2}, v{mx} quad_perm:[0,1,0,1] {DPPM}')
        P = T+8; Pm = T+10; Ba = XO; Bb = XO+4; Dd = XO+8; Po = T+12
        a(f"""
        v_cvt_pk_bf16_f32 v{P}, v{T}, v{T+1}
        v_cvt_pk_bf16_f32 v{P+1}, v{T+2}, v{T+3}
        v_sub_f32_dpp v{T+7}, v{Dm+3}, v{mx} quad_perm:[0,1,0,1] {DPPM}
        v_and_b32 v{Ba}, v{P}, v{vM0}
        v_and_b32 v{Ba+1}, v{P+1}, v{vM0}
        v_and_b32_dpp v{Ba+2}, v{P}, v{vM0} quad_perm:[2,3,0,1] {DPPM}
        v_and_b32_dpp v{Ba+3}, v{P+1}, v{vM0} quad_perm:[2,3,0,1] {DPPM}
        v_exp_f32 v{T+6}, v{T+6}
        v_mfma_f32_16x16x32_bf16 {vr(Po,4)}, {vr(VX,4)}, {vr(Ba,4)}, 0
        v_exp_f32 v{T+7}, v{T+7}
        v_and_b32_dpp v{Bb}, v{P}, v{vM1} quad_perm:[2,3,0,1] {DPPM}
        v_and_b32_dpp v{Bb+1}, v{P+1}, v{vM1} quad_perm:[2,3,0,1] {DPPM}
        v_and_b32 v{Bb+2}, v{P}, v{vM1}
        v_and_b32 v{Bb+3}, v{P+1}, v{vM1}
        v_cvt_pk_bf16_f32 v{Pm}, v{T+6}, v{T+7}
        v_add_f32 v{T}, v{T}, v{T+1}
        v_mfma_f32_16x16x32_bf16 {vr(Po,4)}, {vr(VX+4,4)}, {vr(Bb,4)}, {vr(Po,4)}
        s_cmp_eq_u32 s{sT}, {nsteps-1}
        v_and_b32 v{Dd}, v{Pm}, v{vM0}
        v_and_b32 v{Dd+1}, v{Pm}, v{vM1}
        v_add_f32 v{T+6}, v{T+6}, v{T+7}
        v_add_f32 v{T+2}, v{T+2}, v{T+3}
        v_mfma_f32_16x16x16_bf16 {vr(Po,4)}, {vr(HV,2)}, {vr(Dd,2)}, {vr(Po,4)}
        s_cbranch_scc1 {LE}
        v_add_f32 v{T}, v{T}, v{T+2}
        v_fmac_f32 v{T}, 0.5, v{T+6}
        """)
        fill = zq + [f'v_and_b32 v{vOr}, -9, v{vOw}']
        def F(n):
            for _ in range(n):
                if fill: a(fill.pop(0))
        F(2)
        a(f'v_add_f32_dpp v{T+1}, v{T}, v{T} quad_perm:[2,3,0,1] {DPPM}\nv_add_f32_dpp v{T}, v{T}, v{T} quad_perm:[2,3,0,1] {DPPM}')
        F(2)
        a(f'v_permlane16_swap_b32 v{T}, v{T+1}\nv_add_f32 v{T+2}, v{T}, v{T+1}\nv_add_f32 v{T}, v{T}, v{T+1}')
        F(2)
        a(f'v_permlane32_swap_b32 v{T}, v{T+2}\nv_add_f32 v{T}, v{T}, v{T+2}\nv_rcp_f32 v{T}, v{T}')
        F(9)
        O = XO
        a(f"""
        v_mul_f32 v{Po}, v{Po}, v{T}
        v_mul_f32 v{Po+1}, v{Po+1}, v{T}
        v_mul_f32 v{Po+2}, v{Po+2}, v{T}
        v_mul_f32 v{Po+3}, v{Po+3}, v{T}
        v_cvt_pk_bf16_f32 v{Po}, v{Po}, v{Po+1}
        v_cvt_pk_bf16_f32 v{Po+1}, v{Po+2}, v{Po+3}
        """)
        ow = a(f'ds_write2st64_b64 v{vOw}, {vr(Po,2)}, {vr(Po,2)} offset0:0 offset1:4')
        ot = [a(f'ds_read_b128 {vr(O,4)}, v{vOr}')]
        stamp('c3')
        a.wvm(vt['rm'])
        a.wds(ow); a('s_barrier')
        stamp('d0')
        for k_ in range(1,4): ot.append(a(f'ds_read_b128 {vr(O+4*k_,4)}, v{vOr} offset:{512*k_}'))
        PS = VA
        def W_(G, ki): SM(M+4*G, O+4*ki, 'o', 2*ki+G//2, G%2)
        def cv(G): return [f'v_cvt_pk_bf16_f32 v{PS+2*G+h_}, v{M+4*G+2*h_}, v{M+4*G+2*h_+1}' for h_ in range(2)]
        a.wds(ot[0])
        for G in range(4):
            W_(G, 0)
        a.wds(ot[1])
        stamp('d1')
        W_(0,1); W_(1,1); a.wds(ot[2]); W_(0,2); W_(1,2); a.wds(ot[3]); W_(0,3); W_(1,3)
        c0 = cv(0); c1 = cv(1); c2 = cv(2); c3 = cv(3)
        W_(2,1); a(c0[0])
        W_(2,2); a(c0[1]); a(c1[0])
        W_(2,3); a(c1[1]); a(f'v_min_u32 v{PS}, -2, v{PS}')
        W_(3,1); a(f'global_store_dwordx4 v{vPst}, {vr(PS,4)}, {sp(sSt0)}{stc}')
        W_(3,2); a(c2[0])
        W_(3,3); a(c2[1]); a(f'v_min_u32 v{PS+4}, -2, v{PS+4}')
        a(f'v_mov_b32 v{T+2}, 0x3f80\nv_mov_b32 v{T+3}, 0x3f800000')
        a(f'v_cndmask_b32 v{T+2}, v{T+2}, v{T+3}, {sp(sPm)}')
        a(c3[0]); a(c3[1])
        a(f'global_store_dwordx4 v{vPst}, {vr(PS+4,4)}, {sp(sSt1)}{stc}')
        stamp('h0')
        n0 = len(a.items)
        for x_ in stg(('q',0), S0) + stg(('q',1), S1): a(x_)
        for i in range(4): a(f'v_cndmask_b32 v{Sel+i}, 0, v{T+2}, {sp(sSel+2*i)}')
        a.nops(preA - (len(a.items) - n0))
        R1 = M+8; R2 = P2
        def redA(R):
            a(f"""
            s_waitcnt vmcnt(3)
            v_mfma_f32_16x16x32_bf16 {vr(Dr,4)}, {vr(R,4)}, {vr(Sel,4)}, 0
            s_waitcnt vmcnt(2)
            v_mfma_f32_16x16x32_bf16 {vr(Dr,4)}, {vr(R+4,4)}, {vr(Sel,4)}, {vr(Dr,4)}
            v_max_u32 v{T}, v{R}, v{R+4}
            v_cmp_eq_u32 vcc, -1, v{T}
            """)
        ldA(R1)
        a.nops(gapA - 2)
        a.label(L('pa'))
        ldA(R2)
        redA(R1)
        a(f's_cbranch_vccz {L("qa")}')
        ldA(R1); spin()
        redA(R2)
        a(f's_cbranch_vccnz {L("pa")}')
        a.label(L('qa'))
        stamp('h1')
        a(f"""
        v_permlane32_swap_b32 v{Dr}, v{Dr+2}
        v_permlane32_swap_b32 v{Dr+1}, v{Dr+3}
        v_add_f32 v{Dr}, v{Dr}, v{Dr+2}
        v_add_f32 v{Dr+1}, v{Dr+1}, v{Dr+3}
        v_permlane16_swap_b32 v{Dr}, v{Dr+1}
        v_add_f32 v{Dr}, v{Dr}, v{Dr+1}
        v_mov_b32_dpp v{Dr+1}, v{Dr} quad_perm:[1,0,3,2] {DPPM}
        v_cvt_pk_bf16_f32 v{Dr}, v{Dr}, v{Dr+1}
        s_mov_b64 exec, {sp(sPub)}
        v_min_u32 v{Dr}, -2, v{Dr}
        global_store_dword v{vMst}, v{Dr}, {sp(sMst)}{stc}
        """)
        stamp('h2')
        a(f"""
        s_mov_b64 exec, -1
        """)
        tstamp(f's{sT}')
        if prof and len(stamps) >= 2:
            a('s_waitcnt lgkmcnt(0)')
            for i in range(len(stamps)-1): a(f's_sub_u32 s{sA}, s{sP+2*i+2}, s{sP+2*i}\ns_add_u32 s{sP+21+i}, s{sP+21+i}, s{sA}')
        if prof:
            a(f's_cmp_lg_u32 s{sT}, 3\ns_cbranch_scc1 {L("pf1")}\ns_memtime {sp(sP+28)}\ns_mov_b32 s{sSpin}, 0')
            for i in range(6): a(f's_mov_b32 s{sP+21+i}, 0')
            a(f'{L("pf1")}:\ns_cmp_lg_u32 s{sT}, {nsteps-2}\ns_cbranch_scc1 {L("pf2")}\ns_memtime {sp(sP)}\ns_waitcnt lgkmcnt(0)\ns_sub_u32 s{sP+20}, s{sP}, s{sP+28}\n{L("pf2")}:')
        a(f's_add_u32 s{sT}, s{sT}, 1\ns_add_u32 s{sA}, s{sT}, 1\ns_cmp_lt_u32 s{sA}, s{sRdy}\ns_cbranch_scc1 {L("step")}')
        a(f'v_lshrrev_b32 v{T}, 2, v{vLin}')
        a.label(L('rp'))
        a(f'global_load_dword v{T+1}, v{T}, {sp(sFK)} sc1')
        spin()
        a('s_waitcnt vmcnt(0)')
        fkeval(T+1)
        a(f's_cmp_lt_u32 s{sA}, s{sRdy}\ns_cbranch_scc1 {L("step")}\ns_sleep 2\ns_branch {L("rp")}')
    loop(L, stc)
    if mega: loop(lambda x: L('s_' + x), ' sc1')
    a.label(L('end'))
    a('s_mov_b64 exec, -1\ns_nop 7')
    a(f'''
    s_add_u32 s{sKVM}, s{sKVM}, {32*4096}
    s_addc_u32 s{sKVM+1}, s{sKVM+1}, 0
    global_store_dwordx4 v{vLin}, {vr(HK,4)}, {sp(sKVM)} sc1
    v_mov_b32 v{T}, 0x41
    s_waitcnt vmcnt(0)
    s_barrier
    s_mov_b64 exec, {sp(sFm)}
    global_store_dword v{vLin}, v{T}, {sp(sFl)} sc1
    s_mov_b64 exec, -1
    ''')
    if prof:
        for i in range(7): a(f'v_mov_b32 v{T+i}, s{sP+20+i}')
        a(f'''
        v_mov_b32 v{T+7}, s{sSpin}
        s_lshl_b32 s{sA}, s{sH}, 2
        s_add_u32 s{sA}, s{sA}, s{sW}
        s_lshl_b32 s{sA}, s{sA}, 5
        s_add_u32 s{sA}, s{sA}, {WS_PROF}
        v_mov_b32 v{T+8}, s{sA}
        s_mov_b64 exec, 1
        global_store_dwordx4 v{T+8}, {vr(T,4)}, {sp(sWs)}
        global_store_dwordx4 v{T+8}, {vr(T+4,4)}, {sp(sWs)} offset:16
        s_mov_b64 exec, -1
        ''')
    tl(a, 4, T, 0)
    a('s_waitcnt vmcnt(0) lgkmcnt(0)')

def standalone(name='chain_kernel', **kw):
    a = Asm()
    a.raw(khead(name))
    a(f'''
    s_load_dwordx2 {sp(sMem)}, s[0:1], 8
    s_load_dwordx4 s[8:11], s[0:1], 24
    s_load_dwordx2 {sp(sWq)}, s[0:1], 16
    s_load_dwordx2 {sp(sWo)}, s[0:1], 40
    s_load_dwordx2 {sp(sDbg)}, s[0:1], 104
    s_load_dwordx2 {sp(sWs)}, s[0:1], 112
    s_getreg_b32 s{sA}, hwreg(HW_REG_XCC_ID)
    s_and_b32 s{sA}, s{sA}, 15
    s_mov_b32 s{sXcc}, s{sA}
    s_waitcnt lgkmcnt(0)
    s_cmp_lg_u32 s{sA}, 0
    s_cbranch_scc1 L_done_{name}
    v_mov_b32 v1, 0
    v_mov_b32 v2, 1
    v_lshrrev_b32 v4, 6, v0
    v_readfirstlane_b32 s{sW}, v4
    s_cmp_lg_u32 s{sW}, 0
    s_cbranch_scc1 L_t_{name}
    s_mov_b64 exec, 1
    global_atomic_add v3, v1, v2, {sp(sDbg)} sc0 sc1
    s_waitcnt vmcnt(0)
    ds_write_b32 v1, v3
    s_waitcnt lgkmcnt(0)
    s_mov_b64 exec, -1
    L_t_{name}:
    s_barrier
    ds_read_b32 v3, v1
    s_waitcnt lgkmcnt(0)
    v_readfirstlane_b32 s{sH}, v3
    s_barrier
    s_cmp_gt_u32 s{sH}, 31
    s_cbranch_scc1 L_done_{name}
    ''')
    chain(a, name, **kw)
    a.label(f'L_done_{name}')
    a('s_endpgm')
    bad = a.check_branches()
    assert bad == 0
    return a

if __name__ == '__main__':
    import sys
    variants = eval(sys.argv[1]) if len(sys.argv) > 1 else [dict()]
    out = ''.join(f'; @launch kernel=c{i}_kernel grid=(256,1,1) block=(256,1,1) lds=163840\n' for i in range(len(variants)))
    out += '.amdgcn_target "amdgcn-amd-amdhsa--gfx950"\n.text\n'
    for i, v in enumerate(variants):
        a = standalone(f'c{i}_kernel', prof=True, **v); out += a.text()
    out += '.section .rodata,"a"\n' + ''.join(kdesc(f'c{i}_kernel') for i in range(len(variants)))
    open('chain.s','w').write(out)
    open('chain.json','w').write(repr(variants))
```

```python
from asmlib import *
import struct, math
WS_KV = 0; WS_QX = 32<<20; WS_KVM = 48<<20; WS_RA = 60<<20; WS_RM = 61<<20; WS_PROF = 62<<20
RA_SLOT = 128*2048; RM_SLOT = 8192
SLAB = 131072
def f32(x): return struct.unpack('<I', struct.pack('<f', x))[0]
QSCALE = f32(128**-0.5 * math.log2(math.e))

M=0; QV=32; KA=40; KX=48; XO=40; VX=56; S=64; T=96
vIdx,vLin,vKr,vTc,vXw,vXr,vPst,vMst,vLw,vOw,vM0,vM1,HK,_,HV,_2 = range(112,128)
sMem,sWq,sWk,sWv,sWo,sDbg,sWs = 4,6,8,10,12,14,16
sH,sW,sT,sSpin = 18,19,20,21
sTmp=22; sLb=24; sA=25; sB=26; sC=27
sKV=30; sKVM=32; sSt0=34; sSt1=36; sAld=38; sArs=40; sMld=42; sMst=44
sRA=46; sRAo=48; sRMl=50; sRMs=52
sB1=54; sSel=56; sPm=64; sPub=66; sM0kv=68; sQc=69
sFl=28; sXcc=3; sFm=100; sRdy=86; sVer=87; sFK=84; sGot=88; sNx=89
WS_FL = 63<<20; FL_K = 8192; FL_G = 16384; FL_P = 20480
ROLE_LDS = 163832
VERIFY = None
sP=70
SPIN=200000
def sp(x): return f's[{x}:{x+1}]'

LDS_BLK = [('q',0),('q',1),('k',0),('k',6),('k',7),('o',5),('o',6),('o',7)]
NQ = 5
KVS = 2304
L_KV = SLAB+8192; L_MQ = SLAB; L_X = SLAB+28672; L_O = L_MQ
REG_BLK = [(m,i) for m in 'qkvo' for i in range(8) if (m,i) not in LDS_BLK]
def dest(b):
    i = REG_BLK.index(b)
    return ('a', 16*i) if i < 16 else ('v', 128 + 16*(i-16))

WS_TL = (62<<20) + 65536
TL = False
TLN = 0
def tl(a, i, v1, role_hi):
    if not TL: return
    if TL == 2:
        ch = (role_hi == 0)
        if i > 5: return
        a(f"""
        s_memrealtime s[90:91]
        s_waitcnt lgkmcnt(0)
        s_mov_b32 s{74+i}, s90
        """)
        if (ch and i == 4) or (not ch and i == 5):
            global TLN
            TLN += 1
            idx = [0,2,3,4] if ch else [0,3,4,5]
            a(f"""
            s_lshl_b32 s97, s{sH}, 2
            s_add_u32 s97, s97, s{sW}
            """)
            if not ch: a(f's_xor_b32 s96, {role_hi}, 4\ns_or_b32 s97, s97, s96')
            a(f's_cmp_lg_u32 s97, 0\ns_cbranch_scc1 Ltl2_{TLN}')
            for k_, j in enumerate(idx): a(f'v_mov_b32 v{v1+4+k_}, s{74+j}')
            a(f"""
            v_mov_b32 v{v1}, {32 if ch else 48}
            s_mov_b64 exec, 1
            global_store_dwordx4 v{v1}, v[{v1+4}:{v1+7}], {sp(sDbg)} sc1
            s_mov_b64 exec, -1
            Ltl2_{TLN}:
            """)
        return
    ch = (role_hi == 0)
    a(f"""
    s_memrealtime s[98:99]
    s_memtime s[90:91]
    s_waitcnt lgkmcnt(0)
    s_mov_b32 s{70+i}, s98
    """)
    if i < 6: a(f's_mov_b32 s{78+i}, s90')
    if (ch and i == 4) or (not ch and i == 5):
        a(f"""
        s_lshl_b32 s97, {role_hi}, 5
        s_add_u32 s97, s97, s{sH}
        s_lshl_b32 s97, s97, 2
        s_add_u32 s97, s97, s{sW}
        s_lshl_b32 s97, s97, 6
        s_add_u32 s97, s97, {WS_TL}
        v_mov_b32 v{v1}, s97
        s_mov_b64 exec, 1
        """)
        for j in range(14): a(f'v_mov_b32 v{v1+1}, s{70+j}\nglobal_store_dword v{v1}, v{v1+1}, {sp(sWs)} offset:{4*j}\ns_nop 1')
        a('s_mov_b64 exec, -1')

def chain(a, tag, sc='', mega=False, prof=False, nsteps=64, preA=56, preB=44, gapA=48, gapB=48, sgq=-3, pKx=12, pB2=5, ntr=2, rdw=1, wx=1, g7=32, stamps=(), wnt=' nt', ont=None, mord='qkv', warm=22, fkb=22, fke=28, arr=10, fst=0, opipe=1, tls=(0,8,16), opt=(), tsc=' sc1', tdist=1, skip=(), vp='kv@P0 d2@A2 d3@A6 rm@Q2 d0@Q4 fl@Q6 d1@Q9 tc@Q12 r0@Q16 r1@Q20'):
    L = lambda x: f'L{tag}_{x}'
    DIR = True
    stc = (' ' + sc) if sc else ''
    LE = L('end')
    if ont is None: ont = wnt
    kvnow = any(x_[:2] == 'kv' and x_[3] in 'CW' for x_ in vp.split())
    staged = {}
    def B(m, i, u):
        if (m,i) in staged: return vr(staged[(m,i)] + 8*u, 8)
        k, b = dest((m,i)); return vr(b + 8*u, 8, k)
    def SM(acc, A, m, i, u): a(f'v_smfmac_f32_16x16x64_bf16 {vr(acc,4)}, {vr(A,4)}, {B(m,i,u)}, v{vIdx}')
    def stg(blk, r):
        slot = LDS_BLK.index(blk); staged[blk] = r
        return [f'ds_read_b128 {vr(r+4*i,4)}, v{vLw} offset:{slot*4096+i*1024}' for i in range(4)]
    def stamp(i):
        if prof and i in stamps: a(f's_memtime {sp(sP+2*stamps.index(i))}')

    lane,n_,g_,t1,t2,t3 = T,T+1,T+2,T+3,T+4,T+5
    vWa, vOa = KX+4, T+9
    vTr = VX
    vL4, vFd, vFk = T+6, T+7, KX
    vTo = KX+2
    a(f'''
    v_and_b32 v{lane}, 63, v0
    v_and_b32 v{n_}, 15, v0
    v_lshrrev_b32 v{g_}, 4, v{lane}
    v_lshlrev_b32 v{vLin}, 4, v{lane}
    s_lshl_b32 s{sLb}, s{sW}, 15
    s_mul_i32 s{sA}, s{sW}, {KVS}
    s_add_u32 s{sM0kv}, s{sA}, {L_KV}
    v_add_u32 v{vLw}, s{sLb}, v{vLin}
    ; cooperative qkv DMA: instr i=gb, r'=lane/16, p=lane%16 holds chunk p^(2r'+8gb0) of row 32(w&1)+8(w>>1)+4gb1+gb0+16(r'&1)+2(r'>>1)
    v_and_b32 v{t1}, 1, v{g_}
    v_lshrrev_b32 v{t3}, 1, v{g_}          ; gb1
    v_lshlrev_b32 v{t2}, 1, v{g_}
    v_xor_b32 v{t2}, v{t2}, v{n_}
    v_lshlrev_b32 v{t2}, 4, v{t2}
    v_lshl_add_u32 v{t2}, v{t1}, 17, v{t2}
    v_lshl_add_u32 v{t2}, v{t3}, 14, v{t2}
    s_and_b32 s{sA}, s{sW}, 1
    s_lshl_b32 s{sA}, s{sA}, 18
    s_lshr_b32 s{sB}, s{sW}, 1
    s_lshl_b32 s{sB}, s{sB}, 16
    s_add_u32 s{sA}, s{sA}, s{sB}
    s_lshl_b32 s{sB}, s{sH}, 8
    s_add_u32 s{sA}, s{sA}, s{sB}
    v_add_u32 v{vWa}, s{sA}, v{t2}
    v_xor_b32 v{t2}, 128, v{vWa}
    v_add_u32 v{vWa+1}, {8192-1024}, v{t2}
    v_add_u32 v{vWa+2}, {4*8192-2048}, v{vWa}
    v_add_u32 v{vWa+3}, {5*8192-3072}, v{t2}
    ; wo rows: 16*gb0+4*gb1+bit3 ; chunk = (l%8)^(4*gb0)
    v_lshlrev_b32 v{vOa}, 4, v{t1}
    v_lshl_add_u32 v{vOa}, v{t3}, 2, v{vOa}
    v_bfe_u32 v{vTr}, v{lane}, 3, 1
    v_add_u32 v{vOa}, v{vOa}, v{vTr}
    v_lshlrev_b32 v{vTr}, 2, v{t1}
    v_xor_b32 v{vTr}, v{vTr}, v{lane}
    v_and_b32 v{vTr}, 7, v{vTr}
    v_lshlrev_b32 v{vTr}, 4, v{vTr}
    v_lshl_add_u32 v{vOa}, v{vOa}, 10, v{vTr}
    s_lshl_b32 s{sA}, s{sH}, 17
    s_lshl_b32 s{sB}, s{sW}, 8
    s_add_u32 s{sA}, s{sA}, s{sB}
    v_add_u32 v{vOa}, s{sA}, v{vOa}
    ''')
    def dma(bi):
        slot = bi % 8; tg = None
        if bi < 24:
            base = {'q': sWq, 'k': sWk, 'v': sWv}[mord[bi//8]]
            a(f's_add_u32 s{sTmp}, s{base}, {slot<<19}\ns_addc_u32 s{sTmp+1}, s{base+1}, 0\ns_add_u32 m0, s{sLb}, {slot*4096}')
            for J in range(4): tg = a(f'global_load_lds_dwordx4 v{vWa+J}, {sp(sTmp)} offset:{J*1024}{wnt}')
            return tg
        i = slot
        a(f's_xor_b32 s{sA}, s{sW}, {i//2}\ns_lshl_b32 s{sA}, s{sA}, 15')
        for J in range(4):
            off = (i%2)*128 + (8*(J>>1) + 2*(J&1))*1024
            a(f's_add_u32 s{sB}, s{sA}, {off}\ns_add_u32 s{sTmp}, s{sWo}, s{sB}\ns_addc_u32 s{sTmp+1}, s{sWo+1}, 0')
            a(f's_add_u32 m0, s{sLb}, {slot*4096+J*1024}')
            tg = a(f'global_load_lds_dwordx4 v{vOa}, {sp(sTmp)}{ont}')
        return tg
    dtag = {}
    def fkeval(v):
        a(f"""
        v_cmp_eq_u32 vcc, 0x01010101, v{v}
        s_or_b32 s{sTmp}, vcc_lo, 0xaaaaaaaa
        s_or_b32 s{sTmp+1}, vcc_hi, 0xaaaaaaaa
        s_ff0_i32_b64 s{sRdy}, {sp(sTmp)}
        s_min_u32 s{sRdy}, s{sRdy}, 100
        """)
    def first():
        a(f'''
        s_lshl_b32 s{sA}, s{sXcc}, 1
        s_add_u32 s{sA}, s{sA}, 1
        s_mul_i32 s{sXcc}, s{sA}, 0x01010101
        v_mov_b32 v{S}, s{sH}
        v_mov_b32 v{S+1}, s{sA}
        s_cmp_eq_u32 s{sW}, 0
        s_cselect_b32 s{sFm}, 1, 0
        s_mov_b32 s{sFm+1}, 0
        s_mov_b64 exec, {sp(sFm)}
        global_store_byte v{S}, v{S+1}, {sp(sDbg)} sc1
        s_mov_b64 exec, -1
        v_lshlrev_b32 v{S+2}, 4, v{n_}
        v_lshl_add_u32 v{S+2}, v{g_}, 10, v{S+2}
        s_lshl_b32 s{sA}, s{sW}, 8
        v_add_u32 v{S+2}, s{sA}, v{S+2}
        v_add_u32 v{S+3}, 3072, v{S+2}
        s_lshl_b32 s{sA}, s{sW}, 11
        s_add_u32 m0, s{sA}, {L_MQ}
        global_load_lds_dwordx4 v{S+2}, {sp(sMem)}
        global_load_lds_dwordx4 v{S+3}, {sp(sMem)} offset:1024
        ''')
    for bi in range(8):
        if bi == fst: first()
        dtag[bi] = dma(bi)
    if 'a' in tls: tl(a, 5 + tls.index('a'), T+12, 0)
    if 'b' in tls: tl(a, 5 + tls.index('b'), T+12, 0)
    a(f'''
    v_lshrrev_b32 v{t2}, 2, v{n_}
    v_and_b32 v{t3}, 3, v{lane}
    s_lshl_b32 s{sA}, s{sW}, 6
    v_lshl_add_u32 v{vTr}, v{t3}, 3, s{sA}
    v_lshlrev_b32 v{vTr+1}, 5, v{t2}
    v_lshl_add_u32 v{vTr+1}, v{t1}, 7, v{vTr+1}
    v_xor_b32 v{vTr}, v{vTr}, v{vTr+1}
    v_lshl_add_u32 v{vTr}, v{t2}, 8, v{vTr}
    v_lshl_add_u32 v{vTr}, v{g_}, 10, v{vTr}
    v_xor_b32 v{vTr+1}, 32, v{vTr}
    v_add_u32 v{vTr+2}, 0x10000, v{vTr}
    v_add_u32 v{vTr+3}, 0x10000, v{vTr+1}
    ; wo tr-read: gb*256 + bit2*128 + gb0*64 + bit3*32 + c4*8 (u flips bit 6)
    v_lshlrev_b32 v{vTo}, 8, v{g_}
    v_lshl_add_u32 v{vTo}, v{t1}, 6, v{vTo}
    v_lshl_add_u32 v{vTo}, v{t3}, 3, v{vTo}
    v_and_b32 v{vTo+1}, 4, v{lane}
    v_lshl_add_u32 v{vTo}, v{vTo+1}, 5, v{vTo}
    v_and_b32 v{vTo+1}, 8, v{lane}
    v_lshl_add_u32 v{vTo}, v{vTo+1}, 2, v{vTo}
    v_add_u32 v{vTo}, s{sLb}, v{vTo}
    v_xor_b32 v{vTo+1}, 64, v{vTo}
    v_xor_b32 v{vXw}, v{g_}, v{t2}
    v_lshlrev_b32 v{vXw}, 3, v{vXw}
    v_lshl_add_u32 v{vXw}, v{n_}, 5, v{vXw}
    s_lshl_b32 s{sA}, s{sW}, 10
    s_add_u32 s{sA}, s{sA}, {L_X}
    v_add_u32 v{vXw}, s{sA}, v{vXw}
    v_xor_b32 v{vXr}, v{t3}, v{g_}
    v_lshlrev_b32 v{vXr}, 3, v{vXr}
    v_lshl_add_u32 v{vXr}, v{t2}, 5, v{vXr}
    v_lshl_add_u32 v{vXr}, v{g_}, 7, v{vXr}
    v_add_u32 v{vXr}, {L_X}, v{vXr}
    v_lshl_add_u32 v{vPst}, v{t2}, 2, v{g_}
    v_lshlrev_b32 v{vPst}, 11, v{vPst}
    v_lshl_add_u32 v{vPst}, v{t3}, 4, v{vPst}
    s_lshl_b32 s{sA}, s{sW}, 16
    s_lshl_b32 s{sB}, s{sH}, 6
    s_add_u32 s{sA}, s{sA}, s{sB}
    v_add_u32 v{vPst}, s{sA}, v{vPst}
    ; publish: (c/2)*32 + p*16 + (c%2)*8 + (i/2)*4 ; c=g, p=bit2, i=lane%4
    v_lshrrev_b32 v{vMst}, 1, v{g_}
    v_lshlrev_b32 v{vMst}, 5, v{vMst}
    v_lshl_add_u32 v{vMst}, v{t1}, 3, v{vMst}
    v_and_b32 v{t2}, 4, v{lane}
    v_lshl_add_u32 v{vMst}, v{t2}, 2, v{vMst}
    v_and_b32 v{t2}, 2, v{lane}
    v_lshl_add_u32 v{vMst}, v{t2}, 1, v{vMst}
    ; O write: L_O + w*512 + (g*8+t)*16 + half*8 ; t = 2*(n/4)+n%2
    v_lshlrev_b32 v{vOw}, 7, v{g_}
    v_and_b32 v{t2}, 12, v{lane}
    v_lshl_add_u32 v{vOw}, v{t2}, 3, v{vOw}
    v_and_b32 v{t2}, 1, v{lane}
    v_lshl_add_u32 v{vOw}, v{t2}, 4, v{vOw}
    v_and_b32 v{t2}, 2, v{lane}
    v_lshl_add_u32 v{vOw}, v{t2}, 2, v{vOw}
    s_lshl_b32 s{sA}, s{sW}, 9
    s_add_u32 s{sA}, s{sA}, {L_O}
    v_add_u32 v{vOw}, s{sA}, v{vOw}
    s_mov_b32 s{sB1}, 0xcccccccc
    s_mov_b32 s{sB1+1}, 0xcccccccc
    s_mov_b32 s{sPm}, 0xf0f0f0f0
    s_mov_b32 s{sPm+1}, 0xf0f0f0f0
    s_mov_b32 s{sPub}, 0x00550055
    s_mov_b32 s{sPub+1}, 0x00550055
    s_mov_b32 s{sQc}, {QSCALE}
    v_mov_b32 v{t2}, 0x4444
    v_mov_b32 v{t3}, 0xeeee
    v_cndmask_b32 v{vIdx}, v{t2}, v{t3}, {sp(sB1)}
    v_cndmask_b32 v{vM0}, -1, 0, {sp(sB1)}
    v_cndmask_b32 v{vM1}, 0, -1, {sp(sB1)}
    ''')
    for i in range(4):
        a(f's_mov_b32 s{sSel+2*i}, {0x00110011 << i}\ns_mov_b32 s{sSel+2*i+1}, {0x00110011 << i}')
    a(f'''
    s_lshl_b32 s{sA}, s{sH}, 2
    s_add_u32 s{sA}, s{sA}, s{sW}
    s_add_u32 s{sRA}, s{sWs}, {WS_RA}
    s_addc_u32 s{sRA+1}, s{sWs+1}, 0
    s_lshl_b32 s{sB}, s{sA}, 11
    s_add_u32 s{sRAo}, s{sRA}, s{sB}
    s_addc_u32 s{sRAo+1}, s{sRA+1}, 0
    s_lshl_b32 s{sB}, s{sA}, 6
    s_add_u32 s{sB}, s{sB}, {WS_RM}
    s_add_u32 s{sRMs}, s{sWs}, s{sB}
    s_addc_u32 s{sRMs+1}, s{sWs+1}, 0
    s_lshl_b32 s{sB}, s{sW}, 11
    s_add_u32 s{sB}, s{sB}, {WS_RM}
    s_add_u32 s{sRMl}, s{sWs}, s{sB}
    s_addc_u32 s{sRMl+1}, s{sWs+1}, 0
    s_lshl_b32 s{sB}, s{sA}, 12
    s_add_u32 s{sKV}, s{sWs}, s{sB}
    s_addc_u32 s{sKV+1}, s{sWs+1}, 0
    s_lshl_b32 s{sB}, s{sA}, 10
    s_add_u32 s{sB}, s{sB}, {WS_KVM-(32 if kvnow else 64)*4096}
    s_add_u32 s{sKVM}, s{sWs}, s{sB}
    s_addc_u32 s{sKVM+1}, s{sWs+1}, 0
    s_lshl_b32 s{sB}, s{sH}, 7
    s_add_u32 s{sB}, s{sB}, {WS_FL+FL_P}
    s_add_u32 s{sFl}, s{sWs}, s{sB}
    s_addc_u32 s{sFl+1}, s{sWs+1}, 0
    s_lshl_b32 s{sB}, s{sH}, 8
    s_add_u32 s{sB}, s{sB}, {WS_FL+FL_K}
    s_add_u32 s{sFK}, s{sWs}, s{sB}
    s_addc_u32 s{sFK+1}, s{sWs+1}, 0
    ; touch/flag lanes: 0-31 V half of the own K/V record (advances per step), 32-63 ready flags of this head
    s_sub_u32 s{sB}, s{sB}, {2048+256}
    v_lshl_add_u32 v{vTc}, v{lane}, 3, s{sB}
    s_lshl_b32 s{sB}, s{sA}, 12
    v_lshl_add_u32 v{t2}, v{lane}, 6, s{sB}
    v_cmp_gt_u32 vcc, 32, v{lane}
    v_cndmask_b32 v{vTc}, v{vTc}, v{t2}, vcc
    s_mov_b32 s{sRdy}, {0 if mega else 100}
    v_lshlrev_b32 v{vL4}, 2, v{lane}
    v_mov_b64 {vr(HK,2)}, 0
    v_mov_b64 {vr(HV,2)}, 0
    ; M(0) gather: lane(row: b0=t%2,b1=half,b3:2=t/2 ; ga): byte = t*256 + (64s + 16(ea%4) + 4ga + 2half + ea/4)*2
    v_lshrrev_b32 v{t2}, 2, v{n_}
    v_lshlrev_b32 v{t2}, 9, v{t2}
    v_and_b32 v{t3}, 1, v{lane}
    v_lshl_add_u32 v{t2}, v{t3}, 8, v{t2}
    v_lshl_add_u32 v{t2}, v{g_}, 3, v{t2}
    v_and_b32 v{t3}, 2, v{lane}
    v_lshl_add_u32 v{t2}, v{t3}, 1, v{t2}
    s_lshl_b32 s{sA}, s{sW}, 11
    s_add_u32 s{sA}, s{sA}, {L_MQ}
    v_add_u32 v{t2}, s{sA}, v{t2}
    ''')
    if 'c' in tls: tl(a, 5 + tls.index('c'), T+12, 0)
    def warmup():
        a(f"""
        v_lshlrev_b32 v{t1}, 7, v{n_}
        v_and_b32 v{t3}, 1, v{g_}
        v_lshl_add_u32 v{t2}, v{t3}, 18, v{t1}
        global_load_dword v{vFd}, v{t2}, {sp(sRAo)} sc1
        v_lshl_add_u32 v{t1}, v{t3}, 13, v{t1}
        global_load_dword v{vFd}, v{t1}, {sp(sRMl)} sc1
        """)
    def park(pj): return dest(('o', pj+1)) if pj < NQ-1 else ('v', S+16)
    for w in range(1,4): a(f's_cmp_eq_u32 s{sW}, {w}\ns_cbranch_scc1 {L(f"pw{w}")}')
    nvm0, nds0 = a.nvm, a.nds
    for w in range(4):
        a.label(L(f'pw{w}'))
        a.nvm, a.nds = nvm0, nds0
        for bi in range(24):
            m, i = mord[bi//8], (bi%8) ^ (2*w); slot = bi % 8
            a.wvm(dtag[bi]); a('s_barrier')
            if bi in tls: tl(a, 5 + tls.index(bi), t1, 0)
            if bi: dtag[bi+7] = dma(bi+7)
            k, b = park(LDS_BLK.index((m,i))) if (m,i) in LDS_BLK else dest((m,i))
            for u in range(2):
                for J in range(4):
                    a(f'ds_read_b64_tr_b16 {vr(b+8*u+2*J,2,k)}, v{vTr+u+2*(J//2)} offset:{slot*4096+(J%2)*32768}')
            if bi == fst:
                for s_ in range(2):
                    for ea in range(8): a(f'ds_read_u16 v{S+8*s_+ea}, v{t2} offset:{(64*s_ + 16*(ea%4) + ea//4)*2}')
            if bi == fst + 1:
                for r in range(8): a(f'v_lshl_or_b32 v{M+r}, v{S+2*r+1}, 16, v{S+2*r}')
            if bi == arr and 'p3' not in opt: a(f'global_load_dword v{vFd}, v{vL4}, {sp(sDbg)} sc1')
            if bi == arr + 8 and 'p3' not in opt:
                msk = ((1 << 24) - 1) | (1 << 40) if mega else 0xff
                a(f"""
                s_mov_b32 s{sSpin}, 0
                {L(f'tb{w}')}:
                v_and_b32 v{t1}, 0x01010101, v{vFd}
                v_cmp_ne_u32 vcc, 0x01010101, v{t1}
                s_and_b32 s{sA}, vcc_lo, {msk & 0xffffffff}
                s_and_b32 s{sB}, vcc_hi, {msk >> 32}
                s_or_b32 s{sA}, s{sA}, s{sB}
                s_cbranch_scc0 {L(f'tbo{w}')}
                s_sleep 4
                global_load_dword v{vFd}, v{vL4}, {sp(sDbg)} sc1
                s_add_u32 s{sSpin}, s{sSpin}, 1
                s_cmp_gt_u32 s{sSpin}, {SPIN}
                s_cbranch_scc1 {L('end')}
                s_waitcnt vmcnt(0)
                s_branch {L(f'tb{w}')}
                {L(f'tbo{w}')}:
                v_cmp_ne_u32 vcc, s{sXcc}, v{vFd}
                s_and_b32 s{sXcc}, vcc_lo, 0xff
                """)
                a.nvm -= 1
            if bi == warm: warmup()
            if mega and bi == fkb: ftag = a(f'global_load_dword v{vFk}, v{vL4}, {sp(sFK)} sc1')
            a('s_waitcnt lgkmcnt(0)')
        if w < 3: a(f's_branch {L("pwe")}')
    a.label(L('pwe'))
    tl(a, 1, t1, 0)
    def k0():
        a(f"""
        s_mov_b32 m0, s{sM0kv}
        s_nop 0
        global_load_lds_dwordx4 v{vLin}, {sp(sKV)} sc1
        global_load_lds_dwordx4 v{vLin}, {sp(sKV)} offset:1024 sc1
        global_load_lds_dword v{vTc}, {sp(sWs)} offset:2048 sc1
        """)
    for bi in range(24, 32):
        slot = bi % 8
        a.wvm(dtag[bi])
        if bi == 24: a('s_barrier'); dtag[31] = dma(31)
        if bi == warm: warmup()
        if mega and bi == fkb: ftag = a(f'global_load_dword v{vFk}, v{vL4}, {sp(sFK)} sc1')
        if bi == fke:
            if mega:
                a.wvm(ftag)
                fkeval(vFk)
                a(f's_cmp_lg_u32 s{sRdy}, 0\ns_cbranch_scc1 {L("k1")}')
                for _ in range(3): a(f'global_load_dword v{vFk}, v{vL4}, {sp(sFK)} sc1')
                a(f's_branch {L("k2")}')
                a.nvm -= 3
                a.label(L('k1'))
            k0()
            a.label(L('k2'))
        tmp = S + 16*(slot%2)
        k, b = dest(('o', slot)) if slot < NQ else ('v', tmp)
        for u in range(2):
            for J in range(4):
                a(f'ds_read_b64_tr_b16 {vr(b+8*u+2*J,2,k)}, v{vTo+u} offset:{slot*4096+J*1024}')
        if slot >= NQ or not opipe: a('s_waitcnt lgkmcnt(0)')
        k, b = park(slot) if slot < NQ else ('v', tmp)
        for u in range(2):
            for hf in range(2):
                a(f'ds_write_b128 v{vLw}, {vr(b+8*u+4*hf,4,k)} offset:{slot*4096+u*2048+hf*1024}')
        if not opipe: a('s_waitcnt lgkmcnt(0)')
    tl(a, 2, t1, 0)
    if 'ponly' in opt: a(f's_branch {LE}')
    if mega:
        a(f"""
        s_cmp_lg_u32 s{sRdy}, 0
        s_cbranch_scc1 {L("kwe")}
        s_mov_b32 s{sSpin}, 0
        {L('kw')}:
        s_waitcnt vmcnt(0)
        """)
        fkeval(vFk)
        a(f"""
        s_cmp_lg_u32 s{sRdy}, 0
        s_cbranch_scc1 {L("kwd")}
        s_sleep 2
        global_load_dword v{vFk}, v{vL4}, {sp(sFK)} sc1
        s_add_u32 s{sSpin}, s{sSpin}, 1
        s_cmp_gt_u32 s{sSpin}, {SPIN}
        s_cbranch_scc1 {L('end')}
        s_branch {L("kw")}
        """)
        a.label(L('kwd'))
        k0()
        a.label(L('kwe'))
    sKN = sWo
    a(f"""
    s_mov_b64 {sp(sKN)}, {sp(sKV)}
    s_mov_b32 s{sT}, 0
    s_mov_b32 s{sSpin}, 0
    """)
    tl(a, 3, t1, 0)
    if prof:
        for i in range(8): a(f's_mov_b32 s{sP+20+i}, 0')
        a(f's_memtime {sp(sP+28)}')
    def tstamp(idx):
        if 'ts' not in opt: return
        a(f"""
        s_memrealtime s[96:97]
        s_lshl_b32 s{sA}, s{sH}, 2
        s_add_u32 s{sA}, s{sA}, s{sW}
        s_lshl_b32 s{sA}, s{sA}, 6
        s_add_u32 s{sA}, s{sA}, {idx}
        s_lshl_b32 s{sA}, s{sA}, 2
        s_add_u32 s{sA}, s{sA}, {WS_PROF+131072}
        v_mov_b32 v{T}, s{sA}
        s_waitcnt lgkmcnt(0)
        v_mov_b32 v{T+1}, s96
        s_mov_b64 exec, 1
        global_store_dword v{T}, v{T+1}, {sp(sWs)}
        s_mov_b64 exec, -1
        """)
    tstamp(63)
    DPPM = 'row_mask:0xf bank_mask:0xf'
    QA = T+8; VA = QV; P2 = VX; S0 = S; S1 = S+16; K0 = M+16
    NEG = M+4; Sel = T+4; Dr = T+8
    sB0, sOne, sHalf = 4, 8, 10
    a(f'''
    s_not_b64 {sp(sB0)}, {sp(sB1)}
    s_mov_b32 s{sOne}, 0x3f803f80
    s_mov_b32 s{sOne+1}, 0x3f803f80
    s_mov_b32 s{sHalf}, 0x3f003f00
    s_mov_b32 s{sHalf+1}, 0x3f003f00
    ''')
    def pre1(L=None):
        n0 = len(a.items)
        if L and mega: a(f'v_lshrrev_b32 v{T+5}, 2, v{vLin}\nv_add_u32 v{T+6}, m0, v{T+5}\nds_read_b32 v{T+6}, v{T+6} offset:2048')
        a(f"""
        s_and_b32 s{sA}, s{sT}, 1
        s_lshl_b32 s{sC}, s{sA}, 13
        s_add_u32 s{sMld}, s{sRMl}, s{sC}
        s_addc_u32 s{sMld+1}, s{sRMl+1}, 0
        s_xor_b32 s{sB}, s{sA}, 1
        """)
        for x_ in stg(('k',0), K0): a(x_)
        for i in range(0,16,2): a(f'v_mov_b64 {vr(VA+i,2)}, 0')
        for i in range(0,8,2): a(f'v_mov_b64 {vr(QA+i,2)}, 0')
        return len(a.items) - n0
    def pre2(L=None):
        n0 = len(a.items)
        a(f's_mov_b32 exec_hi, 0\nv_add_u32 v{vTc}, {32*16384}, v{vTc}\ns_mov_b32 exec_hi, -1')
        a(f"""
        s_lshl_b32 s{sC}, s{sB}, 13
        s_add_u32 s{sMst}, s{sRMs}, s{sC}
        s_addc_u32 s{sMst+1}, s{sRMs+1}, 0
        s_lshl_b32 s{sC}, s{sB}, 18
        s_add_u32 s{sArs}, s{sRAo}, s{sC}
        s_addc_u32 s{sArs+1}, s{sRAo+1}, 0
        s_lshl_b32 s{sC}, s{sA}, 18
        s_add_u32 s{sSt0}, s{sRA}, s{sC}
        s_addc_u32 s{sSt0+1}, s{sRA+1}, 0
        s_add_u32 s{sSt1}, s{sSt0}, 32768
        s_addc_u32 s{sSt1+1}, s{sSt0+1}, 0
        s_add_u32 s{sAld}, s{sRAo}, s{sC}
        s_addc_u32 s{sAld+1}, s{sRAo+1}, 0
        s_mov_b64 {sp(sKV)}, {sp(sKN)}
        s_add_u32 s{sKN}, s{sKN}, {32*16384}
        s_addc_u32 s{sKN+1}, s{sKN+1}, 0
        s_add_u32 s{sKVM}, s{sKVM}, {32*4096}
        s_addc_u32 s{sKVM+1}, s{sKVM+1}, 0
        s_mul_i32 s{sC}, s{sB}, {4*KVS}
        s_add_u32 m0, s{sC}, s{sM0kv}
        s_mul_i32 s{sC}, s{sA}, {4*KVS}
        s_add_u32 s{sC}, s{sC}, {L_KV}
        v_add_u32 v{vKr}, s{sC}, v{vLin}
        s_lshl_b32 s{sC}, s{sW}, 11
        s_add_u32 s{sC}, s{sC}, {L_MQ}
        v_add_u32 v{T+3}, s{sC}, v{vLin}
        s_add_u32 s{sC}, s{sT}, {int(kvnow)}
        v_mov_b32 v{T+4}, s{sC}
        """)
        for i in range(1,4): a(f'v_xor_b32 v{T+i-1}, {i*2048}, v{T+3}')
        if L and mega:
            a(f'''
            s_waitcnt lgkmcnt(0)
            v_cmp_eq_u32 vcc, 0x01010101, v{T+6}
            s_add_u32 s{sA}, s{sT}, 1
            s_ff0_i32_b32 s{sRdy}, vcc_hi
            s_lshl_b32 s{sRdy}, s{sRdy}, 1
            s_cmp_lt_u32 s{sA}, s{sRdy}
            s_cbranch_scc0 {L('rp')}
            ''')
        return len(a.items) - n0
    def ldM(r): a(f'global_load_dwordx4 {vr(r,4)}, v{vLin}, {sp(sMld)} sc1\nglobal_load_dwordx4 {vr(r+4,4)}, v{vLin}, {sp(sMld)} offset:1024 sc1')
    def ldA(r): a(f'global_load_dwordx4 {vr(r,4)}, v{vLin}, {sp(sAld)} sc1\nglobal_load_dwordx4 {vr(r+4,4)}, v{vLin}, {sp(sAld)} offset:1024 sc1')
    def spin(): a(f's_add_u32 s{sSpin}, s{sSpin}, 1\ns_cmp_gt_u32 s{sSpin}, {SPIN}\ns_cbranch_scc1 {LE}')
    acc = {'q': QA, 'k': KA, 'v': VA}
    def P_(m, sg, u): SM(acc[m]+4*u, M+4*sg, m, sg, u)
    for x_ in stg(('q',0), S0) + stg(('q',1), S1): a(x_)
    for r in (0,2,4,6): a(f'v_min_u32 v{M+r}, -2, v{M+r}')
    pre1(); pre2()
    a('s_waitcnt vmcnt(0) lgkmcnt(0)')
    if mega: a(f's_cmp_lg_u32 s{sXcc}, 0\ns_cbranch_scc1 {L("s_try")}')
    a(f's_branch {L("try")}')
    staged0 = dict(staged)
    def loop(L, stc):
        staged.clear(); staged.update(staged0)
        dm = [f'global_load_lds_dwordx4 v{vLin}, {sp(sKN)} offset:{j*1024} sc1' for j in range(2)] + \
             [f'global_load_dwordx4 {vr(KX+4*j,4)}, v{vLin}, {sp(sKV)} offset:{j*1024} sc1' for j in (2,3)]
        a.label(L('retry'))
        spin()
        a('s_waitcnt vmcnt(0)')
        for i in range(0,8,2): a(f'v_mov_b64 {vr(M+i,2)}, {vr(P2+i,2)}')
        ldM(P2)
        for i in range(0,8,2): a(f'v_mov_b64 {vr(QA+i,2)}, 0')
        a(f's_branch {L("try")}')
        a.label(L('step'))
        n = pre1(L); a.nops(preB - n - 3)
        ldM(M)
        n = pre2(L); a.nops(gapB - n - 2)
        a.label(L('rk'))
        ldM(P2)
        a(f's_waitcnt vmcnt(2) lgkmcnt(0)')
        a.label(L('try'))
        a.nds = 0; a.nvm = 2; set2 = 2
        stamp('a0')
        ck = M+8
        a(f'ds_write_b128 v{T+3}, {vr(M,4)}\nds_write_b128 v{T+3}, {vr(M+4,4)} offset:1024')
        P_('q',0,0); a(f'v_max3_u32 v{ck}, v{M}, v{M+2}, v{M+4}')
        P_('q',0,1); a(f'v_max_u32 v{ck}, v{ck}, v{M+6}')
        P_('q',1,0); a(f'v_cmp_eq_u32 vcc, -1, v{ck}')
        P_('q',1,1); a(f's_cbranch_vccnz {L("retry")}')
        rlate = any(x_[0] == 'r' and x_[1] != 'm' and x_[3] in 'CW' for x_ in vp.split())
        NG2 = T if rlate else NEG
        rs = [f'global_store_dwordx4 v{vLin}, {vr(NG2,4)}, {sp(sArs)} offset:{1024*i}{stc}' for i in range(2)]
        if rdw: rs = [f'global_store_dword v{vLin}, v{NG2}, {sp(sArs)} offset:{1024*i}{stc}' for i in range(2)]
        vops = dict(d0=dm[0], d1=dm[1], d2=dm[2], d3=dm[3], r0=rs[0], r1=rs[1],
                    kv=f'global_store_dwordx4 v{vLin}, {vr(HK,4)}, {sp(sKVM)} sc1',
                    fl=f's_mov_b64 exec, {sp(sFm)}\nglobal_store_dword v{vLin}, v{T+4}, {sp(sFl)} sc1\ns_mov_b64 exec, -1',
                    tc=f'global_load_lds_dword v{vTc}, {sp(sWs)} offset:2048{tsc}',
                    rm=f'global_store_dword v{vMst}, v{NEG}, {sp(sMst)}{stc}')
        vt = {}
        def VM(slot):
            for x_ in vp.split():
                o, s_ = x_.split('@')
                if s_ != slot: continue
                k_ = slot[0]; n_ = int(slot[1:])
                if o[0] == 'r': assert k_ == 'Q' and (1 if o == 'rm' or rdw else 4) <= n_ or k_ == 'V' or k_ in 'CW' and o != 'rm'
                if o == 'fl': assert k_ in 'AQV'
                if o == 'kv': assert k_ in 'PACW' or k_ == 'Q' and n_ < 21
                if o in ('d0', 'd1', 'tc'): assert 'd2' in vt and 'd3' in vt and 'rm' in vt
                if o in skip: vt[o] = a.nvm; continue
                vt[o] = a(vops[o])
            stamp(slot)
        P_('k',0,0); VM('P0'); a(f's_waitcnt lgkmcnt(0)\ns_barrier')
        stamp('a1')
        mt = {}
        def rdM(sg): mt[sg] = a(f'ds_read_b128 {vr(M+4*sg,4)}, v{T+sg//2-1} offset:{1024*(sg%2)}')
        vq = [(sg,u) for sg in (0,1,4,5,6,7,2,3) for u in (0,1)]
        def V_():
            sg, u = vq.pop(0); P_('v', sg, u)
        g1 = stg(('k',6), S0) + stg(('k',7), S1); tg1 = []
        def G1(i):
            if sgq <= i < sgq + 8: tg1.append(a(g1[i-sgq]))
        rdM(2); rdM(3)
        P_('k',0,1); rdM(4); VM('A0')
        P_('k',1,0); rdM(5); VM('A1')
        P_('k',1,1); rdM(6); VM('A2')
        V_(); rdM(7); VM('A3')
        for i in range(1,4): V_(); G1(i-4); VM(f'A{3+i}')
        stamp('a2')
        QP = T+6; D0 = T; D1 = T+8; Dm = VA; X = XO
        def half(r, d): return [f'v_add_f32 v{r}, v{r}, v{r+2}', f'v_add_f32 v{r+1}, v{r+1}, v{r+3}', f'v_cvt_pk_bf16_f32 v{d}, v{r}, v{r+1}']
        a.wds(mt[2])
        seq = [('q',s_,0) for s_ in range(2,8)] + [('q',2,1),('q',3,1),('k',6,0),('k',6,1),('k',7,0),('k',7,1)] + \
              [('q',s_,1) for s_ in range(4,8)] + [('k',s_,0) for s_ in range(2,6)] + [('k',s_,1) for s_ in range(2,6)]
        z0 = [f'v_mov_b64 {vr(M+2*i,2)}, 0' for i in range(4,8)]
        kx = [f'ds_read_b128 {vr(S+4*i,4)}, v{vKr} offset:{(i//2)*KVS+(i%2)*1024}' for i in range(8)]
        va = {i: f'v_mov_b32 v{NEG+i}, -1' for i in range(1 if rlate or rdw else 4)}
        for i, p_ in enumerate((4,5)): va[p_] = f'v_mov_b64 {vr(M+2*i,2)}, 0'
        wr = {}
        for p_, (r, d, off) in ((7, (QA, QP, 0)), (17, (QA+4, QP+1, 512)), (21, (KA, HK, 4))):
            for j, x_ in enumerate(half(r, d)): va[p_+j] = x_
            wr[p_+3] = f'ds_write_b32 v{vXw}, v{d} offset:{off}'
        xr = [f'ds_read_b64_tr_b16 {vr(X+2*i,2)}, v{vXr} offset:{i*512}' for i in range(8)]
        tx = []
        On = T+12; Cq = T+7
        rV = max([int(x_[4:]) for x_ in vp.split() if x_[0] == 'r' and x_[3] == 'V'] + [-1])
        fv = [f'v_mov_b64 {vr(On,2)}, {sp(sOne)}', f'v_mov_b64 {vr(On+2,2)}, {sp(sHalf)}', f'v_mov_b32 v{Cq}, s{sQc}', f'v_mov_b64 {vr(NEG+2,2)}, 0', f'v_mov_b64 {vr(NEG,2)}, 0']
        g2 = stg(('o',7), M+16)
        for i in range(36):
            if i < 24: P_(*seq[i])
            else: V_()
            if i < 5: a.wds(mt[i+3])
            if 7 <= i <= 10: a.wds(tg1[2*(i-7)+1])
            G1(i)
            if i in wr: a(wr[i])
            if pKx <= i < pKx + 8: tkx = a(kx[i-pKx])
            VM(f'Q{i}' if i < 24 else f'V{i-24}')
            if i in va: a(va[i])
            if i == 23: stamp('b0')
            if i == 25:
                for x_ in half(KA+4, HK+1): a(x_)
                wk = a(f'ds_write_b32 v{vXw}, v{HK+1} offset:516')
            if i == 24 + pB2: a.wds(wk); a('s_barrier'); stamp('b1')
            if i >= 24 + pB2:
                for _ in range(ntr):
                    if len(tx) < 8: tx.append(a(xr[len(tx)])); busy = i
            if i >= max(g7, 34 - 2*len(g2)) and g2 and not (tx and busy == i): a(g2.pop(0))
            if i == 26: a(f's_mov_b64 vcc, {sp(sB0)}\ns_cmp_eq_u32 s{sT}, {nsteps-1}')
            if i == 35: a(f's_cbranch_scc1 {L("last")}')
            if 26 <= i < 35 and i != 24 + pB2 and not (tx and busy == i and ntr > 2) and fv and (len(fv) > 2 or i - 24 > rV): a(fv.pop(0))
        while len(tx) < 8: tx.append(a(xr[len(tx)]))
        stamp('c0')
        vf = half(VA, HV) + half(VA+4, HV+1)
        mx = T+4; tm = T+5; ma = T+6; vOr = T+4
        g5 = stg(('o',5), S0); g6 = stg(('o',6), S1)
        P = T+8; Dd = T+10; Ba = XO; Bb = XO+4; Po = XO+8; Ls = XO+12
        MF = 'v_mfma_f32_16x16x32_bf16'
        lastc = list(vf)
        mg = [f'v_cndmask_b32_dpp v{D0+r}, v{D1+r}, v{D0+r}, vcc quad_perm:[0,1,0,1] {DPPM}' for r in range(4)] + \
             [f'v_max3_f32 v{mx}, v{D0}, v{D0+1}, v{D0+2}', f'v_max_f32 v{mx}, v{mx}, v{D0+3}']
        rest = g2 + fv
        a.wds(tx[{0: 7, 1: 3, 2: 1}[wx]])
        for i in range(12):
            if i < 8:
                w_ = i//2; d = (D0, D1)[i%2]
                a(f'{MF} {vr(d,4)}, {vr(S+4*i,4)}, {vr(X+4*w_,4)}, {vr(d,4) if w_ else 0}')
            else:
                r = X+4*(i-8); a(f'{MF} {vr(Dm,4)}, {vr(r,4)}, {vr(r,4)}, {vr(Dm,4) if i > 8 else 0}')
            stamp(f'M{i}')
            if i == 0:
                for _ in range(2):
                    if rest: a(rest.pop(0))
            elif i == 1 and wx == 2: a.wds(tx[3]); a(vf.pop(0))
            elif i == 3 and wx: a.wds(tx[7]); a(vf.pop(0))
            elif i < 4: a(vf.pop(0)); a(vf.pop(0))
            elif i < 8:
                a(g5.pop(0))
                if vf: a(vf.pop(0))
                elif rest: a(rest.pop(0))
                elif i >= 6: a(g6.pop(0))
            elif i == 8: a(g6.pop(0)); a(g6.pop(0))
            else: a(mg.pop(0)); a(mg.pop(0))
        assert not rest
        for x_ in g6: a(x_)
        stamp('c1')
        a(f'v_max_f32_dpp v{mx}, v{mx}, v{mx} quad_perm:[2,3,0,1] {DPPM}')
        a(f'v_mul_f32 v{mx}, v{mx}, v{Cq}')
        a(f'v_mul_f32_dpp v{Dm}, v{Dm+2}, v{Cq} quad_perm:[0,1,0,1] {DPPM}')
        a(f'v_mul_f32_dpp v{Dm+1}, v{Dm+3}, v{Cq} quad_perm:[0,1,0,1] {DPPM}')
        a(f'v_max3_f32 v{tm}, v{mx}, v{Dm}, v{Dm+1}')
        a(f'v_max3_f32 v{mx}, v{mx}, v{Dm}, v{Dm+1}')
        a(z0.pop()); a(z0.pop())
        a(f'v_permlane16_swap_b32 v{mx}, v{tm}\nv_max_f32 v{ma}, v{mx}, v{tm}\nv_max_f32 v{mx}, v{mx}, v{tm}')
        a(z0.pop()); a(z0.pop())
        a(f'v_permlane32_swap_b32 v{mx}, v{ma}\nv_max_f32 v{mx}, v{mx}, v{ma}')
        ex = [Dm, Dm+1, T, T+1, T+2, T+3]
        for r in ex[:2]: a(f'v_sub_f32 v{r}, v{r}, v{mx}')
        for r in ex[2:]: a(f'v_fma_f32 v{r}, v{r}, v{Cq}, -v{mx}')
        for r in ex[:4]: a(f'v_exp_f32 v{r}, v{r}')
        a(f'v_cvt_pk_bf16_f32 v{Dm}, v{Dm}, v{Dm+1}')
        for r in ex[4:]: a(f'v_exp_f32 v{r}, v{r}')
        stamp('c2')
        a.wvm(max(vt['d2'], vt['d3'], vt['rm']))
        a(f"""
        v_cvt_pk_bf16_f32 v{P}, v{T}, v{T+1}
        v_and_b32 v{Dd}, v{Dm}, v{vM0}
        v_and_b32 v{Dd+1}, v{Dm}, v{vM1}
        v_cvt_pk_bf16_f32 v{P+1}, v{T+2}, v{T+3}
        v_and_b32 v{Ba}, v{P}, v{vM0}
        v_mfma_f32_16x16x16_bf16 {vr(Po,4)}, {vr(HV,2)}, {vr(Dd,2)}, 0
        v_and_b32_dpp v{Ba+2}, v{P}, v{vM0} quad_perm:[2,3,0,1] {DPPM}
        v_and_b32 v{Ba+1}, v{P+1}, v{vM0}
        v_mfma_f32_16x16x32_bf16 {vr(Ls,4)}, {vr(On,4)}, {vr(P,4)}, 0
        v_and_b32_dpp v{Ba+3}, v{P+1}, v{vM0} quad_perm:[2,3,0,1] {DPPM}
        v_and_b32_dpp v{Bb}, v{P}, v{vM1} quad_perm:[2,3,0,1] {DPPM}
        v_and_b32_dpp v{Bb+1}, v{P+1}, v{vM1} quad_perm:[2,3,0,1] {DPPM}
        v_mfma_f32_16x16x32_bf16 {vr(Po,4)}, {vr(VX,4)}, {vr(Ba,4)}, {vr(Po,4)}
        v_and_b32 v{Bb+2}, v{P}, v{vM1}
        v_and_b32 v{Bb+3}, v{P+1}, v{vM1}
        v_and_b32 v{vOr}, -9, v{vOw}
        v_xor_b32 v{vOr+1}, 512, v{vOr}
        v_mfma_f32_16x16x32_bf16 {vr(Po,4)}, {vr(VX+4,4)}, {vr(Bb,4)}, {vr(Po,4)}
        v_add_f32_dpp v{Ls}, v{Ls}, v{Ls} quad_perm:[2,3,0,1] {DPPM}
        v_rcp_f32 v{Ls}, v{Ls}
        v_xor_b32 v{vOr+2}, 1024, v{vOr}
        v_xor_b32 v{vOr+3}, 1536, v{vOr}
        """)
        assert not z0
        if rlate: a(f'v_mov_b64 {vr(T,2)}, -1' + ('' if rdw else f'\nv_mov_b64 {vr(T+2,2)}, -1'))
        a(f"""
        v_mul_f32 v{Po}, v{Po}, v{Ls}
        v_mul_f32 v{Po+1}, v{Po+1}, v{Ls}
        v_mul_f32 v{Po+2}, v{Po+2}, v{Ls}
        v_mul_f32 v{Po+3}, v{Po+3}, v{Ls}
        v_cvt_pk_bf16_f32 v{Po}, v{Po}, v{Po+1}
        v_cvt_pk_bf16_f32 v{Po+1}, v{Po+2}, v{Po+3}
        """)
        O = XO
        ow = a(f'ds_write_b64 v{vOw}, {vr(Po,2)}')
        ot = [a(f'ds_read_b128 {vr(O,4)}, v{vOr}')]
        stamp('c3')
        VM('C0')
        a.wds(ow); a('s_barrier')
        stamp('d0')
        for k_ in range(1,4): ot.append(a(f'ds_read_b128 {vr(O+4*k_,4)}, v{vOr+k_}'))
        VM('C1')
        PS = VA
        def W_(G, ki): SM(M+4*G, O+4*ki, 'o', 2*ki+G//2, G%2)
        def cv(G): return [f'v_cvt_pk_bf16_f32 v{PS+2*G+h_}, v{M+4*G+2*h_}, v{M+4*G+2*h_+1}' for h_ in range(2)]
        a.wds(ot[0])
        for G in range(4):
            W_(G, 0); VM(f'W{G}')
        a.wds(ot[1])
        stamp('d1')
        W_(0,1); VM('W4'); W_(1,1); a.wds(ot[2]); VM('W5'); W_(0,2); VM('W6'); W_(1,2); a.wds(ot[3]); VM('W7'); W_(0,3); VM('W8'); W_(1,3)
        c0 = cv(0); c1 = cv(1); c2 = cv(2); c3 = cv(3)
        W_(2,1); a(c0[0])
        W_(2,2); a(c0[1]); a(c1[0])
        W_(2,3); a(c1[1]); a(f'v_min_u32 v{PS}, -2, v{PS}')
        W_(3,1); a(f'global_store_dwordx4 v{vPst}, {vr(PS,4)}, {sp(sSt0)}{stc}')
        W_(3,2); a(c2[0])
        W_(3,3); a(c2[1]); a(f'v_min_u32 v{PS+4}, -2, v{PS+4}')
        a(f'v_mov_b32 v{T+2}, 0x3f80\nv_mov_b32 v{T+3}, 0x3f800000')
        a(f'v_cndmask_b32 v{T+2}, v{T+2}, v{T+3}, {sp(sPm)}')
        a(c3[0]); a(c3[1])
        a(f'global_store_dwordx4 v{vPst}, {vr(PS+4,4)}, {sp(sSt1)}{stc}')
        stamp('h0')
        n0 = len(a.items)
        for x_ in stg(('q',0), S0) + stg(('q',1), S1): a(x_)
        for i in range(4): a(f'v_cndmask_b32 v{Sel+i}, 0, v{T+2}, {sp(sSel+2*i)}')
        a.nops(preA - (len(a.items) - n0))
        R1 = M+8; R2 = P2
        def redA(R):
            a(f"""
            s_waitcnt vmcnt(3)
            v_mfma_f32_16x16x32_bf16 {vr(Dr,4)}, {vr(R,4)}, {vr(Sel,4)}, 0
            s_waitcnt vmcnt(2)
            v_mfma_f32_16x16x32_bf16 {vr(Dr,4)}, {vr(R+4,4)}, {vr(Sel,4)}, {vr(Dr,4)}
            v_max_u32 v{T}, v{R}, v{R+4}
            v_cmp_eq_u32 vcc, -1, v{T}
            """)
        ldA(R1)
        a.nops(gapA - 2)
        a.label(L('pa'))
        ldA(R2)
        redA(R1)
        a(f's_cbranch_vccz {L("qa")}')
        ldA(R1); spin()
        redA(R2)
        a(f's_cbranch_vccnz {L("pa")}')
        a.label(L('qa'))
        stamp('h1')
        a(f"""
        v_permlane32_swap_b32 v{Dr}, v{Dr+2}
        v_permlane32_swap_b32 v{Dr+1}, v{Dr+3}
        v_add_f32 v{Dr}, v{Dr}, v{Dr+2}
        v_add_f32 v{Dr+1}, v{Dr+1}, v{Dr+3}
        v_permlane16_swap_b32 v{Dr}, v{Dr+1}
        v_add_f32 v{Dr}, v{Dr}, v{Dr+1}
        v_mov_b32_dpp v{Dr+1}, v{Dr} quad_perm:[1,0,3,2] {DPPM}
        v_cvt_pk_bf16_f32 v{Dr}, v{Dr}, v{Dr+1}
        s_mov_b64 exec, {sp(sPub)}
        v_min_u32 v{Dr}, -2, v{Dr}
        global_store_dword v{vMst}, v{Dr}, {sp(sMst)}{stc}
        """)
        stamp('h2')
        a(f"""
        s_mov_b64 exec, -1
        """)
        tstamp(f's{sT}')
        if prof and len(stamps) >= 2:
            a('s_waitcnt lgkmcnt(0)')
            for i in range(len(stamps)-1): a(f's_sub_u32 s{sA}, s{sP+2*i+2}, s{sP+2*i}\ns_add_u32 s{sP+21+i}, s{sP+21+i}, s{sA}')
        if prof:
            a(f's_cmp_lg_u32 s{sT}, 3\ns_cbranch_scc1 {L("pf1")}\ns_memtime {sp(sP+28)}\ns_mov_b32 s{sSpin}, 0')
            for i in range(6): a(f's_mov_b32 s{sP+21+i}, 0')
            a(f'{L("pf1")}:\ns_cmp_lg_u32 s{sT}, {nsteps-2}\ns_cbranch_scc1 {L("pf2")}\ns_memtime {sp(sP)}\ns_waitcnt lgkmcnt(0)\ns_sub_u32 s{sP+20}, s{sP}, s{sP+28}\n{L("pf2")}:')
        a(f's_add_u32 s{sT}, s{sT}, 1\ns_branch {L("step")}')
        a.label(L('rp'))
        a(f'global_load_dword v{T+6}, v{T+5}, {sp(sFK)} sc1')
        spin()
        a('s_waitcnt vmcnt(0)')
        fkeval(T+6)
        a(f's_cmp_lt_u32 s{sA}, s{sRdy}\ns_cbranch_scc1 {L("rk")}\ns_sleep 2\ns_branch {L("rp")}')
        a.label(L('last'))
        a('s_nop 7')
        for x_ in lastc: a(x_)
        a(f's_branch {LE}')
    loop(L, stc)
    if mega: loop(lambda x: L('s_' + x), ' sc1')
    a.label(L('end'))
    a('s_mov_b64 exec, -1\ns_nop 7')
    a(f'''
    s_add_u32 s{sKVM}, s{sKVM}, {0 if kvnow else 32*4096}
    s_addc_u32 s{sKVM+1}, s{sKVM+1}, 0
    global_store_dwordx4 v{vLin}, {vr(HK,4)}, {sp(sKVM)} sc1
    v_mov_b32 v{T}, 0x41
    s_waitcnt vmcnt(0)
    s_barrier
    s_mov_b64 exec, {sp(sFm)}
    global_store_dword v{vLin}, v{T}, {sp(sFl)} sc1
    s_mov_b64 exec, -1
    ''')
    if prof:
        for i in range(7): a(f'v_mov_b32 v{T+i}, s{sP+20+i}')
        a(f'''
        v_mov_b32 v{T+7}, s{sSpin}
        s_lshl_b32 s{sA}, s{sH}, 2
        s_add_u32 s{sA}, s{sA}, s{sW}
        s_lshl_b32 s{sA}, s{sA}, 5
        s_add_u32 s{sA}, s{sA}, {WS_PROF}
        v_mov_b32 v{T+8}, s{sA}
        s_mov_b64 exec, 1
        global_store_dwordx4 v{T+8}, {vr(T,4)}, {sp(sWs)}
        global_store_dwordx4 v{T+8}, {vr(T+4,4)}, {sp(sWs)} offset:16
        s_mov_b64 exec, -1
        ''')
    tl(a, 4, T, 0)
    a('s_waitcnt vmcnt(0) lgkmcnt(0)')

def standalone(name='chain_kernel', **kw):
    a = Asm()
    a.raw(khead(name))
    a(f'''
    s_load_dwordx2 {sp(sMem)}, s[0:1], 8
    s_load_dwordx4 s[8:11], s[0:1], 24
    s_load_dwordx2 {sp(sWq)}, s[0:1], 16
    s_load_dwordx2 {sp(sWo)}, s[0:1], 40
    s_load_dwordx2 {sp(sDbg)}, s[0:1], 104
    s_load_dwordx2 {sp(sWs)}, s[0:1], 112
    s_getreg_b32 s{sA}, hwreg(HW_REG_XCC_ID)
    s_and_b32 s{sA}, s{sA}, 15
    s_mov_b32 s{sXcc}, s{sA}
    s_waitcnt lgkmcnt(0)
    s_cmp_lg_u32 s{sA}, 0
    s_cbranch_scc1 L_done_{name}
    v_mov_b32 v1, 0
    v_mov_b32 v2, 1
    v_lshrrev_b32 v4, 6, v0
    v_readfirstlane_b32 s{sW}, v4
    s_cmp_lg_u32 s{sW}, 0
    s_cbranch_scc1 L_t_{name}
    s_mov_b64 exec, 1
    global_atomic_add v3, v1, v2, {sp(sDbg)} offset:252 sc0 sc1
    s_waitcnt vmcnt(0)
    ds_write_b32 v1, v3
    s_waitcnt lgkmcnt(0)
    s_mov_b64 exec, -1
    L_t_{name}:
    s_barrier
    ds_read_b32 v3, v1
    s_waitcnt lgkmcnt(0)
    v_readfirstlane_b32 s{sH}, v3
    s_barrier
    s_cmp_gt_u32 s{sH}, 31
    s_cbranch_scc1 L_done_{name}
    ''')
    chain(a, name, **kw)
    a.label(f'L_done_{name}')
    a('s_endpgm')
    bad = a.check_branches()
    assert bad == 0
    return a

if __name__ == '__main__':
    import sys
    variants = eval(sys.argv[1]) if len(sys.argv) > 1 else [dict()]
    out = ''.join(f'; @launch kernel=c{i}_kernel grid=(256,1,1) block=(256,1,1) lds=163840\n' for i in range(len(variants)))
    out += '.amdgcn_target "amdgcn-amd-amdhsa--gfx950"\n.text\n'
    for i, v in enumerate(variants):
        a = standalone(f'c{i}_kernel', prof=True, **v); out += a.text()
    out += '.section .rodata,"a"\n' + ''.join(kdesc(f'c{i}_kernel') for i in range(len(variants)))
    open('chain.s','w').write(out)
    open('chain.json','w').write(repr(variants))
```

```python
from asmlib import *
import gen_chain as C
from gen_chain import sp, sMem,sWq,sWk,sWv,sWo,sDbg,sWs,sH,sW,sXcc,QSCALE,WS_KVM,f32,WS_FL,FL_K,FL_G,FL_P
import math
NAME = 'gated_mix__memory_aug_recurrent_mem_tr__glu_gated_bilinear__prompt_kernel'
WS_QX = 64<<20; WS_ACT = 128<<20; ACT_T = 180224; WS_F2 = 63<<20
WSPIN = 60000
sGrp = 20; sSpin = 21; sA, sB, sC, sD = 22, 23, 24, 25
sX, sWg, sWu, sWd, sGw, sOut = 30, 32, 34, 36, 38, 40
MF = 'v_mfma_f32_16x16x32_bf16'
X = {}
def NG3(): return X.get('ng3', 4)

def add64(a, d, s, off):
    o = f's{off}' if isinstance(off, str) is False and False else off
    a(f's_add_u32 s{d}, s{s}, {off}\ns_addc_u32 s{d+1}, s{s+1}, 0')

def poll(a, lab, loads, check, sl=8):
    a(f"""
    s_mov_b32 s{sSpin}, 0
    {lab}_p:
    {loads}
    s_add_u32 s{sSpin}, s{sSpin}, 1
    s_cmp_gt_u32 s{sSpin}, {WSPIN}
    s_cbranch_scc1 {lab}_b
    s_waitcnt vmcnt(0)
    {check}
    s_cbranch_vccz {lab}_b
    s_sleep {sl}
    s_branch {lab}_p
    {lab}_b:
    s_waitcnt vmcnt(0)
    """)

class Filt:
    def __init__(s, a): s.__dict__['a'] = a
    def __getattr__(s, k): return getattr(s.a, k)
    def __setattr__(s, k, v): setattr(s.a, k, v)
    def __call__(s, t):
        if t.startswith('global_store_dwordx4 v6'):
            if X.get('nost'): return None
            if X.get('plain'): t = t.replace(' sc1', '')
            if X.get('nt'): t = t.replace(' sc1', ' sc1 nt')
            if X.get('stb'): t = t.replace(' sc1', X['stb'])
        return s.a(t)
def t1(a):
    a = Filt(a)
    sTile, sBuf, sStr, sW0, sW1, sO0, sO1, sBlk, sM, sXb = 44, 45, 46, 48, 50, 52, 54, 56, 57, 58
    sStep, sFo, sFb = 47, 60, 62
    vOne, vFo, vPf, vPr, vRa, vRd, vXr = 14, 15, 7, 128, 129, 130, 131
    XR = 23; NB1 = X.get('nb1', 16)
    ACC = 16; WF = 80; PK = 112
    vLane, vN, vG, vLin, vTr, vRow, vCh, vA, vXo = 3, 4, 5, 6, 8, 10, 11, 12, 13
    acc = lambda T, hf, v: ACC + 16*T + 8*hf + 4*v
    def prefetch(nk=3, st=896):
        a(f'''
        s_sub_u32 s{sA}, s{sGrp}, 1
        s_lshl_b32 s{sB}, s{sH}, 2
        s_add_u32 s{sB}, s{sB}, s{sW}
        s_mul_i32 s{sB}, s{sB}, 7
        s_add_u32 s{sA}, s{sA}, s{sB}
        v_and_b32 v1, 63, v0
        v_lshlrev_b32 v1, 7, v1
        ''')
        for k in range(nk):
            a(f'''
            s_min_u32 s{sA}, s{sA}, 2047
            s_bitcmp1_b32 s{sA}, 9
            s_cselect_b64 {sp(sO0)}, {sp(sWk)}, {sp(sWq)}
            s_cselect_b64 {sp(sO1)}, {sp(sWo)}, {sp(sWv)}
            s_bitcmp1_b32 s{sA}, 10
            s_cselect_b64 {sp(sO0)}, {sp(sO1)}, {sp(sO0)}
            s_and_b32 s{sB}, s{sA}, 511
            s_lshl_b32 s{sB}, s{sB}, 13
            s_add_u32 s{sO0}, s{sO0}, s{sB}
            s_addc_u32 s{sO0+1}, s{sO0+1}, 0
            global_load_dword v{vPf}, v1, {sp(sO0)}{X.get('pfc', '')}
            s_add_u32 s{sA}, s{sA}, {st}
            ''')
    def pfo():
        a(f'''
        s_sub_u32 s{sA}, s{sGrp}, 5
        s_lshl_b32 s{sA}, s{sA}, 7
        s_lshl_b32 s{sB}, s{sH}, 2
        s_add_u32 s{sA}, s{sA}, s{sB}
        s_add_u32 s{sA}, s{sA}, s{sW}
        v_and_b32 v1, 63, v0
        v_lshlrev_b32 v1, 7, v1
        s_cmp_lt_u32 s{sGrp}, 5
        s_cselect_b64 exec, 0, -1
        ''')
        for k in range(2):
            a(f'''
            s_min_u32 s{sA}, s{sA}, 511
            s_lshl_b32 s{sB}, s{sA}, 13
            s_add_u32 s{sO0}, s{sWo}, s{sB}
            s_addc_u32 s{sO0+1}, s{sWo+1}, 0
            global_load_dword v{vPf}, v1, {sp(sO0)}
            s_add_u32 s{sA}, s{sA}, 384
            ''')
        a('s_mov_b64 exec, -1')
    if X.get('pf') == 1: prefetch()
    if X.get('pf') == 5: pfo()
    a(f'''
    s_add_u32 s{sFb}, s{sWs}, {WS_FL}
    s_addc_u32 s{sFb+1}, s{sWs+1}, 0
    v_mov_b32 v{vOne}, 1
    s_cmp_lg_u32 s{sGrp}, 7
    s_cbranch_scc1 Lt1_nz
    s_cmp_gt_u32 s{sH}, 16
    s_cbranch_scc1 Lt1_nz
    s_cmp_eq_u32 s{sH}, 16
    s_cselect_b32 s{sA}, 0, -1
    v_mov_b32 v{PK}, s{sA}
    v_mov_b32 v{PK+1}, s{sA}
    v_mov_b32 v{PK+2}, s{sA}
    v_mov_b32 v{PK+3}, s{sA}
    s_lshl_b32 s{sA}, s{sH}, 15
    s_add_u32 s{sA}, s{sA}, {C.WS_RA}
    s_cmp_eq_u32 s{sH}, 16
    s_cselect_b32 s{sA}, {WS_FL}, s{sA}
    v_lshl_add_u32 v1, v0, 4, s{sA}
    ''')
    for i in range(8):
        a(f'global_store_dwordx4 v1, {vr(PK,4)}, {sp(sWs)} sc1')
        if i < 7: a('v_add_u32 v1, 4096, v1')
    a(f'''
    s_lshl_b32 s{sA}, s{sH}, 10
    s_add_u32 s{sA}, s{sA}, {C.WS_RM}
    v_lshl_add_u32 v1, v0, 2, s{sA}
    global_store_dword v1, v{PK}, {sp(sWs)} sc1
    s_lshl_b32 s{sA}, s{sH}, 2
    s_add_u32 s{sA}, s{sA}, 32
    s_cmp_eq_u32 s{sH}, 16
    s_cselect_b32 s{sA}, 160, s{sA}
    s_add_u32 s{sA}, s{sA}, s{sW}
    v_mov_b32 v1, s{sA}
    s_waitcnt vmcnt(0)
    s_mov_b64 exec, 1
    global_store_byte v1, v{vOne}, {sp(sDbg)} sc1
    s_mov_b64 exec, -1
    Lt1_nz:
    ''')
    if X.get('pf') == 3:
        a(f's_cmp_ge_u32 s{sH}, 21\ns_cbranch_scc1 Lt1_npf')
        prefetch(4, 588)
        a.label('Lt1_npf')
    if X.get('nowork'): a('s_waitcnt vmcnt(0)\ns_endpgm')
    if X.get('only0'): a(f's_waitcnt vmcnt(0)\ns_cmp_lt_u32 s{sH}, 21\ns_cbranch_scc1 L_t1e')
    a(f'''
    v_and_b32 v{vLane}, 63, v0
    v_and_b32 v{vN}, 15, v0
    v_lshrrev_b32 v{vG}, 4, v{vLane}
    v_lshlrev_b32 v{vLin}, 4, v{vLane}
    s_sub_u32 s{sB}, s{sGrp}, 5
    s_sub_u32 s{sA}, s{sH}, {NB1}
    s_and_b32 s{sBlk}, s{sA}, 1
    s_add_u32 s{sBlk}, s{sBlk}, 2
    s_lshr_b32 s{sA}, s{sA}, 1
    s_cmp_lt_u32 s{sH}, {NB1}
    s_cselect_b32 s{sBlk}, 1, s{sBlk}
    s_cselect_b32 s{sA}, s{sH}, s{sA}
    s_cselect_b32 s{sStep}, {NB1}, {(32-NB1)//2}
    s_mul_i32 s{sTile}, s{sB}, s{sStep}
    s_add_u32 s{sTile}, s{sTile}, s{sA}
    s_mul_i32 s{sStep}, s{sStep}, 3
    s_lshl_b32 s{sA}, s{sGrp}, 5
    s_add_u32 s{sA}, s{sA}, s{sH}
    s_sub_u32 s{sA}, s{sA}, 32
    s_cmp_lt_u32 s{sGrp}, 5
    s_cselect_b32 s{sBlk}, 0, s{sBlk}
    s_cselect_b32 s{sTile}, s{sA}, s{sTile}
    s_cselect_b32 s{sStep}, 128, s{sStep}
    ; W prefetch rows: 32*((4*(blk-1)+w)&15) + lane%32
    s_lshl_b32 s{sA}, s{sBlk}, 2
    s_add_u32 s{sA}, s{sA}, s{sW}
    s_and_b32 s{sA}, s{sA}, 7
    s_lshl_b32 s{sA}, s{sA}, 6
    v_add_u32 v{vPr}, s{sA}, v{vLane}
    ; DMA lane: row = l/4 + 128w ; chunk = (l%4) ^ (2*bit5)
    v_lshrrev_b32 v{vRow}, 2, v{vLane}
    s_lshl_b32 s{sA}, s{sW}, 7
    v_add_u32 v{vRow}, s{sA}, v{vRow}
    v_lshrrev_b32 v{vCh}, 4, v{vLane}
    v_and_b32 v{vCh}, 2, v{vCh}
    v_xor_b32 v{vCh}, v{vCh}, v{vLane}
    v_and_b32 v{vCh}, 3, v{vCh}
    v_lshlrev_b32 v{vCh}, 4, v{vCh}
    s_mov_b32 s{sBuf}, 0
    ''')
    def wsrc(tag, tile):
        a(f'''
        s_cmp_ge_u32 s{tile}, 192
        s_cbranch_scc1 Lt1_{tag}_gu
        s_lshr_b32 s{sA}, s{tile}, 6
        s_cmp_eq_u32 s{sA}, 0
        s_cselect_b64 {sp(sW0)}, {sp(sWk)}, {sp(sWv)}
        s_cmp_eq_u32 s{sA}, 2
        s_cselect_b64 {sp(sW0)}, {sp(sWq)}, {sp(sW0)}
        s_and_b32 s{sA}, s{tile}, 63
        s_lshl_b32 s{sA}, s{sA}, 7
        s_add_u32 s{sW0}, s{sW0}, s{sA}
        s_addc_u32 s{sW0+1}, s{sW0+1}, 0
        s_add_u32 s{sW1}, s{sW0}, 64
        s_addc_u32 s{sW1+1}, s{sW0+1}, 0
        s_mov_b32 s{sStr}, 8192
        s_branch Lt1_{tag}_e
        Lt1_{tag}_gu:
        s_min_u32 s{sA}, s{tile}, 234
        s_sub_u32 s{sA}, s{sA}, 192
        s_lshl_b32 s{sA}, s{sA}, 6
        s_add_u32 s{sW0}, s{sWg}, s{sA}
        s_addc_u32 s{sW0+1}, s{sWg+1}, 0
        s_add_u32 s{sW1}, s{sWu}, s{sA}
        s_addc_u32 s{sW1+1}, s{sWu+1}, 0
        s_mov_b32 s{sStr}, 2752
        Lt1_{tag}_e:
        v_mad_u32_u24 v{vA}, v{vRow}, s{sStr}, v{vCh}
        s_lshl_b32 s{sStr}, s{sStr}, 4
        ''')
    def dma(i):
        r = [f's_add_u32 m0, s{sM}, {i*1024}', f'global_load_lds_dwordx4 v{vA}, {sp(sW0)}',
             f's_add_u32 m0, s{sM}, {32768+i*1024}', f'global_load_lds_dwordx4 v{vA}, {sp(sW1)}']
        if i < 7: r.append(f'v_add_u32 v{vA}, s{sStr}, v{vA}')
        return r
    a.label('Lt1_job')
    wsrc('p', sTile)
    a(f's_lshl_b32 s{sM}, s{sW}, 13')
    for i in range(8):
        for x in dma(i): a(x)
    a(f'''
    s_lshl_b32 s{sA}, s{sBlk}, 18
    s_lshl_b32 s{sB}, s{sW}, 16
    s_add_u32 s{sA}, s{sA}, s{sB}
    s_add_u32 s{sXb}, s{sX}, s{sA}
    s_addc_u32 s{sXb+1}, s{sX+1}, 0
    s_mul_i32 s{sD}, s{sW}, {XR*1040}
    s_add_u32 s{sD}, s{sD}, 65536
    v_mov_b32 v{vXo}, v{vLin}
    v_mul_u32_u24 v{vXr}, 1040, v{vN}
    v_lshl_add_u32 v{vXr}, v{vG}, 4, v{vXr}
    v_add_u32 v{vXr}, s{sD}, v{vXr}
    ''')
    xt = {}
    def xdma(r):
        a(f's_add_u32 m0, s{sD}, {(r%XR)*1040 - (r%4)*1024}')
        xt[r] = a(f'global_load_lds_dwordx4 v{vXo}, {sp(sXb)} offset:{(r%4)*1024}')
        if r % 4 == 3: a(f'v_add_u32 v{vXo}, 4096, v{vXo}')
    for r in range(XR): xdma(r)
    if X.get('pf') == 2: prefetch()
    if X.get('pf') == 4: pfo()
    nx = XR
    for T in range(4):
        b = (16*T) % XR
        a(f'v_add_u32 v1, {b*1040}, v{vXr}')
        if b + 16 > XR: a(f'v_cmp_le_u32 vcc, {XR-b}, v{vN}\nv_subrev_u32 v2, {XR*1040}, v1\nv_cndmask_b32 v1, v1, v2, vcc')
        a.wvm(xt[16*T+15])
        for ks in range(16): a(f'ds_read_b128 {vr(64*T+4*ks,4,"a")}, v1 offset:{ks*64}')
        if nx < 64:
            a('s_waitcnt lgkmcnt(0)')
            for r in range(nx, min(nx+16, 64)): xdma(r)
            nx = min(nx+16, 64)
    a(f'''
    v_lshlrev_b32 v{vTr}, 9, v{vG}
    v_and_b32 v1, 12, v{vLane}
    v_lshl_add_u32 v{vTr}, v1, 4, v{vTr}
    v_and_b32 v1, 3, v{vLane}
    v_lshl_add_u32 v{vTr}, v1, 3, v{vTr}
    v_and_b32 v1, 1, v{vG}
    v_lshl_add_u32 v{vTr}, v1, 5, v{vTr}
    v_xor_b32 v{vTr+1}, 32, v{vTr}
    ''')
    a(f'''
    v_mov_b32 v{vFo}, {FL_G+1536}
    s_mov_b64 {sp(sFo)}, 0
    v_mov_b32 v{vRa}, 160
    v_mov_b32 v{vRd}, 0x01010101
    s_cmp_lg_u32 s{sW}, 0
    s_cbranch_scc1 Lt1_n0
    global_load_dword v{vRd}, v{vRa}, {sp(sDbg)} sc1
    Lt1_n0:
    s_waitcnt lgkmcnt(0)
    s_barrier
    ''')
    if C.TL:
        a(f's_cmp_ge_u32 s{sBlk}, 4\ns_cbranch_scc1 Lt1_tile')
        C.tl(a, 1, 1, f's{sGrp}')
    a.label('Lt1_tile')
    if X.get('wpf', 1):
        a(f's_lshl_b32 s{sD}, s{sStep}, 1\ns_add_u32 s{sD}, s{sD}, s{sTile}')
        wsrc('f', sD)
        a(f'''
        s_lshr_b32 s{sStr}, s{sStr}, 4
        v_mul_u32_u24 v1, s{sStr}, v{vPr}
        global_load_dword v{vPf}, v1, {sp(sW0)}
        global_load_dword v{vPf}, v1, {sp(sW1)}
        ''')
    a(f's_add_u32 s{sD}, s{sTile}, s{sStep}')
    wsrc('n', sD)
    a(f's_xor_b32 s{sM}, s{sM}, 65536')
    a(f'''
    s_lshr_b32 s{sA}, s{sTile}, 6
    s_cmp_eq_u32 s{sA}, 1
    s_cbranch_scc1 Lt1_mv
    ''')
    def frags(ks):
        return [f'ds_read_b64_tr_b16 {vr(WF+16*(ks%2)+8*hf+4*v+2*q,2)}, v{vTr+v} offset:{hf*32768+ks*2048+q*256}'
                for hf in range(2) for v in range(2) for q in range(2)]
    def flag(n):
        a(f's_waitcnt vmcnt({n})\ns_mov_b64 exec, {sp(sFo)}\nglobal_store_byte v{vFo}, v{vOne}, {sp(sFb)} sc1\ns_mov_b64 exec, -1')
    def mainloop(swap):
        a.nds = 0
        tg = None
        for x in frags(0): tg = a(x)
        for ks in range(16):
            fill = (frags(ks+1) if ks < 15 else [])
            d = (dma(2*ks) + dma(2*ks+1)) if ks < 4 and not X.get('nodma') else []
            a.wds(tg)
            if ks == X.get('fks', 8): flag(16 + 2*X.get('wpf', 1))
            n = 0
            for hf in range(2):
                for v in range(2):
                    for T in range(4):
                        w_ = vr(WF+16*(ks%2)+8*hf+4*v,4); x_ = vr(64*T+4*ks,4,'a'); c = vr(acc(T,hf,v),4)
                        p, q = (w_, x_) if swap else (x_, w_)
                        a(f'{MF} {c}, {p}, {q}, {c if ks else 0}')
                        if fill and n < 8: tg = a(fill.pop(0))
                        elif d:
                            a(d.pop(0))
                            if d and d[0].startswith('global'): a(d.pop(0))
                        n += 1
            assert not fill and not d
        a(f'''
        v_xor_b32 v{vTr}, 0x10000, v{vTr}
        v_xor_b32 v{vTr+1}, 0x10000, v{vTr+1}
        s_waitcnt vmcnt(0)
        v_cmp_ne_u32 vcc, 0x01010101, v{vRd}
        s_cbranch_vccz Lt1_rd{int(swap)}
        ''')
        poll(a, f'Lt1_r{int(swap)}', f'global_load_dword v{vRd}, v{vRa}, {sp(sDbg)} sc1', f'v_cmp_ne_u32 vcc, 0x01010101, v{vRd}', 8)
        a(f'Lt1_rd{int(swap)}:\ns_barrier')
    def kvbase(base):
        a(f'''
        s_lshl_b32 s{sA}, s{sBlk}, 22
        s_lshl_b32 s{sB}, s{sW}, 20
        s_add_u32 s{sA}, s{sA}, s{sB}
        s_and_b32 s{sB}, s{sTile}, 63
        s_lshl_b32 s{sB}, s{sB}, 13
        s_add_u32 s{sA}, s{sA}, s{sB}
        s_add_u32 s{sA}, s{sA}, {base}
        s_add_u32 s{sO0}, s{sWs}, s{sA}
        s_addc_u32 s{sO0+1}, s{sWs+1}, 0
        s_add_u32 s{sO1}, s{sO0}, 524288
        s_addc_u32 s{sO1+1}, s{sO0+1}, 0
        ''')
    def pack(d, c0, c1):
        a(f'v_cvt_pk_bf16_f32 v{d}, v{c0}, v{c0+1}\nv_cvt_pk_bf16_f32 v{d+1}, v{c0+2}, v{c0+3}')
        a(f'v_cvt_pk_bf16_f32 v{d+2}, v{c1}, v{c1+1}\nv_cvt_pk_bf16_f32 v{d+3}, v{c1+2}, v{c1+3}')
    mainloop(True)
    a(f'''
    s_cmp_ge_u32 s{sTile}, 192
    s_cbranch_scc1 Lt1_eg
    s_mov_b32 s{sC}, 4096
    s_cmp_lt_u32 s{sTile}, 64
    s_cbranch_scc1 Lt1_ek
    s_mov_b32 s{sC}, {QSCALE}
    ''')
    for r in range(64): a(f'v_mul_f32 v{ACC+r}, s{sC}, v{ACC+r}')
    a(f's_mov_b32 s{sC}, {WS_QX+4096}')
    a.label('Lt1_ek')
    kvbase(f's{sC}')
    i = 0
    for T in range(4):
        for hf in range(2):
            d = PK + 4*(i%4); i += 1
            pack(d, acc(T,hf,0), acc(T,hf,1))
            a(f'global_store_dwordx4 v{vLin}, {vr(d,4)}, {sp(sO1 if T//2 else sO0)} offset:{hf*4096-4096+(T%2)*1024} sc1')
    a('s_branch Lt1_next')
    a.label('Lt1_eg')
    a(f'''
    s_lshl_b32 s{sA}, s{sBlk}, 4
    s_lshl_b32 s{sB}, s{sW}, 2
    s_add_u32 s{sA}, s{sA}, s{sB}
    s_mul_i32 s{sA}, s{sA}, {ACT_T}
    s_sub_u32 s{sB}, s{sTile}, 64
    s_lshl_b32 s{sB}, s{sB}, 10
    s_add_u32 s{sA}, s{sA}, s{sB}
    s_add_u32 s{sA}, s{sA}, {WS_ACT}
    s_add_u32 s{sO0}, s{sWs}, s{sA}
    s_addc_u32 s{sO0+1}, s{sWs+1}, 0
    ''')
    for T in range(4):
        for r in range(8): a(f'v_mul_f32 v{acc(T,0,0)+r}, v{acc(T,0,0)+r}, v{acc(T,1,0)+r}')
        d = PK + 4*T
        pack(d, acc(T,0,0), acc(T,0,1))
        a(f'global_store_dwordx4 v{vLin}, {vr(d,4)}, {sp(sO0)} sc1')
        if T < 3: a(f's_add_u32 s{sO0}, s{sO0}, {ACT_T}\ns_addc_u32 s{sO0+1}, s{sO0+1}, 0')
    a('s_branch Lt1_next')
    a.label('Lt1_mv')
    mainloop(False)
    kvbase(4096)
    i = 0
    for s_ in range(2):
        for hf in range(2):
            for u in range(2):
                d = PK + 4*(i%4); i += 1
                pack(d, acc(2*s_,hf,u), acc(2*s_+1,hf,u))
                a(f'global_store_dwordx4 v{vLin}, {vr(d,4)}, {sp(sO1 if s_ else sO0)} offset:{hf*4096-4096+(2+u)*1024} sc1')
    a.label('Lt1_next')
    a(f'''
    s_lshl_b32 s{sA}, s{sBlk}, 2
    s_add_u32 s{sA}, s{sA}, s{sW}
    s_lshl_b32 s{sB}, s{sTile}, 5
    s_add_u32 s{sB}, s{sB}, s{sA}
    s_add_u32 s{sB}, s{sB}, {FL_G-192*32}
    s_lshl_b32 s{sA}, s{sA}, 3
    s_bfe_u32 s{sC}, s{sTile}, 0x50001
    s_lshl_b32 s{sC}, s{sC}, 8
    s_add_u32 s{sA}, s{sA}, s{sC}
    s_lshr_b32 s{sC}, s{sTile}, 6
    s_lshl_b32 s{sC}, s{sC}, 1
    s_add_u32 s{sA}, s{sA}, s{sC}
    s_and_b32 s{sC}, s{sTile}, 1
    s_add_u32 s{sA}, s{sA}, s{sC}
    s_add_u32 s{sA}, s{sA}, {FL_K}
    s_cmp_ge_u32 s{sTile}, 192
    s_cselect_b32 s{sA}, s{sB}, s{sA}
    v_mov_b32 v{vFo}, s{sA}
    s_mov_b64 {sp(sFo)}, 1
    ''')
    if X.get('ef', 1):
        a(f's_cmp_ge_u32 s{sBlk}, {X.get("ef", 1)}\ns_cbranch_scc1 Lt1_nef\ns_add_u32 s{sA}, s{sTile}, s{sStep}\ns_sub_u32 s{sA}, s{sA}, 128\ns_cmp_ge_u32 s{sA}, s{sStep}\ns_cbranch_scc1 Lt1_nef')
        flag(0)
        a(f's_mov_b64 {sp(sFo)}, 0\nLt1_nef:')
    if C.TL:
        a(f's_cmp_ge_u32 s{sTile}, 128\ns_cbranch_scc1 Lt1_ntl\ns_cmp_ge_u32 s{sBlk}, 2\ns_cbranch_scc1 Lt1_ntl')
        C.tl(a, 2, 1, f's{sGrp}')
        a.label('Lt1_ntl')
    a(f'''
    s_add_u32 s{sTile}, s{sTile}, s{sStep}
    s_cmp_lt_u32 s{sTile}, 235
    s_cbranch_scc1 Lt1_tile
    ''')
    flag(0)
    a(f'''
    s_cmp_lg_u32 s{sBlk}, 0
    s_cbranch_scc1 Lt1_end
    s_and_b32 s{sBlk}, s{sH}, 3
    s_add_u32 s{sBlk}, s{sBlk}, 4
    s_lshl_b32 s{sTile}, s{sGrp}, 3
    s_lshr_b32 s{sA}, s{sH}, 2
    s_add_u32 s{sTile}, s{sTile}, s{sA}
    s_sub_u32 s{sTile}, s{sTile}, 8
    s_mov_b32 s{sStep}, 32
    s_branch Lt1_job
    Lt1_end:
    ''')
    C.tl(a, 3, 1, f's{sGrp}')

def t2(a):
    sT, sHd, sK, sQ, sKM, sO, sFl, sMk, sF2 = 44, 45, 46, 48, 50, 52, 54, 56, 64
    vLane, vN, vG, vLin, vKw, vKr, vL2, vNeg = 3, 4, 5, 6, 7, 8, 9, 10
    Q, KX, VX, KM, KT, S, O, P = 16, 48, 80, 112, 128, 144, 176, 240
    DP = 'row_mask:0xf bank_mask:0xf'
    a(f'''
    s_sub_u32 s{sT}, s{sGrp}, {NG3()+1}
    s_lshl_b32 s{sT}, s{sT}, 2
    s_lshr_b32 s{sA}, s{sH}, 3
    s_add_u32 s{sT}, s{sT}, s{sA}
    s_and_b32 s{sHd}, s{sH}, 7
    s_lshl_b32 s{sHd}, s{sHd}, 2
    s_add_u32 s{sHd}, s{sHd}, s{sW}
    s_lshl_b32 s{sA}, s{sW}, 12
    v_lshlrev_b32 v{vKw}, 5, v{vN}
    v_lshl_add_u32 v{vKw}, v{vG}, 3, v{vKw}
    v_add_u32 v{vKw}, s{sA}, v{vKw}
    v_lshlrev_b32 v{vKr}, 3, v{vLane}
    v_add_u32 v{vKr}, s{sA}, v{vKr}
    v_add_u32 v{vL2}, 8192, v{vLin}
    v_mov_b32 v{vNeg}, 0xff800000
    v_lshlrev_b32 v1, 2, v{vG}
    s_lshl_b32 s{sA}, s{sHd}, 7
    s_add_u32 s{sA}, s{sA}, {WS_FL+FL_P}
    s_add_u32 s{sFl}, s{sWs}, s{sA}
    s_addc_u32 s{sFl+1}, s{sWs+1}, 0
    ''')
    for r in range(4):
        a(f'v_add_u32 v2, {r}, v1\nv_cmp_le_u32 {sp(sMk+2*r)}, v2, v{vN}')
    a(f'''
    s_lshl_b32 s{sA}, s{sHd}, 8
    s_add_u32 s{sA}, s{sA}, {WS_FL+FL_K}
    v_lshl_add_u32 v1, v{vLane}, 2, s{sA}
    v_and_b32 v{Q}, 1, v{vLane}
    v_mul_u32_u24 v{Q}, 0x0101, v{Q}
    v_lshlrev_b32 v{Q}, 16, v{Q}
    s_barrier
    ''')
    poll(a, 'Lt2_w', f'global_load_dword v2, v1, {sp(sWs)} sc1', f'v_or_b32 v2, v2, v{Q}\nv_cmp_ne_u32 vcc, 0x01010101, v2', 32)
    C.tl(a, 4, 1, f's{sGrp}')
    a.label('Lt2_seg')
    a(f'''
    s_lshl_b32 s{sA}, s{sT}, 5
    s_add_u32 s{sA}, s{sA}, s{sHd}
    s_lshl_b32 s{sB}, s{sA}, 14
    s_add_u32 s{sB}, s{sB}, 4096
    s_add_u32 s{sK}, s{sWs}, s{sB}
    s_addc_u32 s{sK+1}, s{sWs+1}, 0
    s_add_u32 s{sQ}, s{sK}, {WS_QX}
    s_addc_u32 s{sQ+1}, s{sK+1}, 0
    s_lshl_b32 s{sB}, s{sA}, 12
    s_add_u32 s{sB}, s{sB}, {WS_KVM}
    s_add_u32 s{sKM}, s{sWs}, s{sB}
    s_addc_u32 s{sKM+1}, s{sWs+1}, 0
    s_lshl_b32 s{sB}, s{sA}, 2
    s_add_u32 s{sB}, s{sB}, {WS_F2}
    s_add_u32 s{sF2}, s{sWs}, s{sB}
    s_addc_u32 s{sF2+1}, s{sWs+1}, 0
    s_mul_i32 s{sB}, s{sT}, {2*ACT_T}
    s_lshl_b32 s{sC}, s{sHd}, 12
    s_add_u32 s{sB}, s{sB}, s{sC}
    s_add_u32 s{sB}, s{sB}, {WS_ACT}
    s_add_u32 s{sO}, s{sWs}, s{sB}
    s_addc_u32 s{sO+1}, s{sWs+1}, 0
    ''')
    a.nvm = 0; tq = {}
    for w in range(4):
        for T in range(2):
            va = vL2 if w >= 2 else vLin; off = (w%2)*4096 - 4096
            a(f'global_load_dwordx4 {vr(Q+8*w+4*T,4)}, v{va}, {sp(sQ)} offset:{off+T*1024} sc1')
            tq[w] = a(f'global_load_dwordx4 {vr(KX+8*w+4*T,4)}, v{va}, {sp(sK)} offset:{off+T*1024} sc1')
    for w in range(4):
        for u in range(2):
            va = vL2 if w >= 2 else vLin; off = (w%2)*4096 - 4096
            a(f'global_load_dwordx4 {vr(VX+8*w+4*u,4)}, v{va}, {sp(sK)} offset:{off+2048+u*1024} sc1')
    S00, S01, S11, M0, M1 = S, S+4, S+8, S+12, S+16
    for w in range(4):
        a.wvm(tq[w])
        for (d, tk, tq_) in ((S00,0,0),(S01,0,1),(S11,1,1)):
            a(f'{MF} {vr(d,4)}, {vr(KX+8*w+4*tk,4)}, {vr(Q+8*w+4*tq_,4)}, {vr(d,4) if w else 0}')
    for r in range(4):
        a(f'v_cndmask_b32 v{S00+r}, v{vNeg}, v{S00+r}, {sp(sMk+2*r)}')
        a(f'v_cndmask_b32 v{S11+r}, v{vNeg}, v{S11+r}, {sp(sMk+2*r)}')
    mx0, mx1, t0, t1_ = S+20, S+21, S+22, S+23
    a(f'''
    v_max3_f32 v{mx0}, v{S00}, v{S00+1}, v{S00+2}
    v_max_f32 v{mx0}, v{mx0}, v{S00+3}
    v_max3_f32 v{mx1}, v{S01}, v{S01+1}, v{S01+2}
    v_max3_f32 v{mx1}, v{mx1}, v{S01+3}, v{S11}
    v_max3_f32 v{mx1}, v{mx1}, v{S11+1}, v{S11+2}
    v_max_f32 v{mx1}, v{mx1}, v{S11+3}
    s_add_u32 s{sA}, s{sT}, 2
    v_mov_b32 v1, 0
    s_mov_b32 s{sSpin}, 0
    Lt2_p:
    global_load_dword v2, v1, {sp(sFl)} sc1
    s_add_u32 s{sSpin}, s{sSpin}, 1
    s_cmp_gt_u32 s{sSpin}, {WSPIN}
    s_cbranch_scc1 Lt2_go
    s_waitcnt vmcnt(0)
    v_cmp_le_u32 vcc, s{sA}, v2
    s_cbranch_vccnz Lt2_go
    s_sleep 4
    s_branch Lt2_p
    Lt2_go:
    ''')
    for w in range(4): a(f'global_load_dwordx4 {vr(KM+4*w,4)}, v{vLin}, {sp(sKM)} offset:{w*1024} sc1')
    a('s_waitcnt vmcnt(0)')
    for w in range(4):
        for u in range(2): a(f'ds_write_b32 v{vKw}, v{KM+4*w+u} offset:{w*1024+u*512}')
    a('s_waitcnt lgkmcnt(0)')
    for w in range(4):
        for v in range(2): a(f'ds_read_b64_tr_b16 {vr(KT+4*w+2*v,2)}, v{vKr} offset:{w*1024+v*512}')
    a('s_waitcnt lgkmcnt(0)')
    for w in range(4):
        for T, d in ((0,M0),(1,M1)):
            a(f'{MF} {vr(d,4)}, {vr(KT+4*w,4)}, {vr(Q+8*w+4*T,4)}, {vr(d,4) if w else 0}')
    def xred(op, x, y):
        a(f'''
        v_mov_b32 v{t0}, v{x}
        v_mov_b32 v{t1_}, v{y}
        v_permlane16_swap_b32 v{x}, v{t0}
        v_permlane16_swap_b32 v{y}, v{t1_}
        {op} v{x}, v{x}, v{t0}
        {op} v{y}, v{y}, v{t1_}
        v_mov_b32 v{t0}, v{x}
        v_mov_b32 v{t1_}, v{y}
        v_permlane32_swap_b32 v{x}, v{t0}
        v_permlane32_swap_b32 v{y}, v{t1_}
        {op} v{x}, v{x}, v{t0}
        {op} v{y}, v{y}, v{t1_}
        ''')
    a(f'v_max3_f32 v{mx0}, v{mx0}, v{M0}, v{M0+1}\nv_max3_f32 v{mx1}, v{mx1}, v{M1}, v{M1+1}')
    xred('v_max_f32', mx0, mx1)
    e0 = [S00+r for r in range(4)] + [M0, M0+1]; e1 = [S01+r for r in range(8)] + [M1, M1+1]
    for r in e0: a(f'v_sub_f32 v{r}, v{r}, v{mx0}')
    for r in e1: a(f'v_sub_f32 v{r}, v{r}, v{mx1}')
    for r in e0 + e1: a(f'v_exp_f32 v{r}, v{r}')
    P0, P1, Z0, Z1 = P, P+4, P+8, P+12
    a(f'''
    v_cvt_pk_bf16_f32 v{P0}, v{S00}, v{S00+1}
    v_cvt_pk_bf16_f32 v{P0+1}, v{S00+2}, v{S00+3}
    v_mov_b64 {vr(P0+2,2)}, 0
    v_cvt_pk_bf16_f32 v{P1}, v{S01}, v{S01+1}
    v_cvt_pk_bf16_f32 v{P1+1}, v{S01+2}, v{S01+3}
    v_cvt_pk_bf16_f32 v{P1+2}, v{S11}, v{S11+1}
    v_cvt_pk_bf16_f32 v{P1+3}, v{S11+2}, v{S11+3}
    v_cvt_pk_bf16_f32 v{Z0}, v{M0}, v{M0+1}
    v_mov_b32 v{Z0+1}, 0
    v_mov_b32 v{Z0+2}, 0
    v_mov_b32 v{Z0+3}, v{Z0}
    v_cvt_pk_bf16_f32 v{Z1}, v{M1}, v{M1+1}
    v_mov_b32 v{Z1+1}, 0
    v_mov_b32 v{Z1+2}, 0
    v_mov_b32 v{Z1+3}, v{Z1}
    ''')
    oa = lambda T, w, u: O + 32*T + 8*w + 4*u
    for T in range(2):
        for w in range(4):
            for u in range(2):
                a(f'{MF} {vr(oa(T,w,u),4)}, {vr(VX+8*w+4*u,4)}, {vr(P+4*T,4)}, 0')
    for T in range(2):
        for w in range(4):
            for u in range(2):
                a(f'v_mfma_f32_16x16x16_bf16 {vr(oa(T,w,u),4)}, {vr(KM+4*w+2,2)}, {vr(Z0+4*T+2*u,2)}, {vr(oa(T,w,u),4)}')
    for e in (e0, e1):
        for r in e[1:]: a(f'v_add_f32 v{e[0]}, v{e[0]}, v{r}')
    xred('v_add_f32', e0[0], e1[0])
    a(f'v_rcp_f32 v{e0[0]}, v{e0[0]}\nv_rcp_f32 v{e1[0]}, v{e1[0]}')
    for T in range(2):
        l = (e0, e1)[T][0]
        for w in range(4):
            b = oa(T,w,0)
            for r in range(8): a(f'v_mul_f32 v{b+r}, v{b+r}, v{l}')
            for r in range(4): a(f'v_cvt_pk_bf16_f32 v{b+r}, v{b+2*r}, v{b+2*r+1}')
            a(f'global_store_dwordx4 v{vLin}, {vr(b,4)}, {sp(sO)} offset:{w*1024} sc1')
        if T == 0: a(f's_add_u32 s{sO}, s{sO}, {ACT_T}\ns_addc_u32 s{sO+1}, s{sO+1}, 0')
    a(f'''
    v_mov_b32 v2, 1
    s_waitcnt vmcnt(0)
    s_mov_b64 exec, 1
    global_store_dword v1, v2, {sp(sF2)} sc1
    s_mov_b64 exec, -1
    s_add_u32 s{sT}, s{sT}, {4*(7-NG3())}
    s_cmp_lt_u32 s{sT}, 64
    s_cbranch_scc1 Lt2_seg
    ''')

def t3(a):
    sTau, sAo, sAh, sXa, sF2, sOo, sLb, sTm, sRb = 44, 46, 48, 50, 52, 54, 56, 58, 60
    vLane, vN, vG, vLin, vD, vTr, vXo, vFl, vRs, vOo = 3, 4, 5, 6, 7, 8, 9, 10, 11, 12
    AC = 16; GW = 32; XB = 48; HB = 64; OB = 128; R = 108
    a(f'''
    s_lshl_b32 s{sLb}, s{sW}, 15
    ; DMA lane: row = l/2, chunk = l%2 ; row stride 1024
    v_lshrrev_b32 v{vD}, 1, v{vLane}
    v_lshlrev_b32 v{vD}, 10, v{vD}
    v_and_b32 v1, 1, v{vLane}
    v_lshl_add_u32 v{vD}, v1, 4, v{vD}
    s_lshl_b32 s{sA}, s{sH}, 5
    v_add_u32 v{vD}, s{sA}, v{vD}
    v_lshlrev_b32 v{vTr}, 3, v{vLane}
    v_add_u32 v{vTr}, s{sLb}, v{vTr}
    s_lshl_b32 s{sA}, s{sW}, 20
    s_add_u32 s{sTm}, s{sWo}, s{sA}
    s_addc_u32 s{sTm+1}, s{sWo+1}, 0
    s_barrier
    ''')
    for b in range(32):
        a(f's_add_u32 m0, s{sLb}, {b*1024}\nglobal_load_lds_dwordx4 v{vD}, {sp(sTm)}')
        a(f's_add_u32 s{sTm}, s{sTm}, 32768\ns_addc_u32 s{sTm+1}, s{sTm+1}, 0')
    a(f'''
    v_lshlrev_b32 v1, 4, v{vG}
    s_lshl_b32 s{sA}, s{sW}, 8
    v_add_u32 v1, s{sA}, v1
    v_lshl_add_u32 v{vXo}, v{vN}, 10, v1
    ''')
    for k in range(4): a(f'global_load_dwordx4 {vr(GW+4*k,4)}, v1, {sp(sGw)} offset:{64*k}')
    a('s_waitcnt vmcnt(0)')
    for b in range(32):
        for v in range(2): a(f'ds_read_b64_tr_b16 {vr(4*b+2*v,2,"a")}, v{vTr} offset:{b*1024+v*512}')
    a(f'''
    s_mul_i32 s{sRb}, s{sW}, 11
    s_cmp_eq_u32 s{sW}, 3
    s_subb_u32 s{sRb}, s{sRb}, 0
    s_lshl_b32 s{sA}, s{sRb}, 15
    s_add_u32 s{sTm}, s{sWd}, s{sA}
    s_addc_u32 s{sTm+1}, s{sWd+1}, 0
    s_waitcnt lgkmcnt(0)
    ''')
    for b in range(11):
        a(f's_add_u32 m0, s{sLb}, {b*1024}\nglobal_load_lds_dwordx4 v{vD}, {sp(sTm)}')
        if b < 10: a(f's_add_u32 s{sTm}, s{sTm}, 32768\ns_addc_u32 s{sTm+1}, s{sTm+1}, 0')
    a('s_waitcnt vmcnt(0)')
    for b in range(11):
        for v in range(2): a(f'ds_read_b64_tr_b16 {vr(128+4*b+2*v,2,"a")}, v{vTr} offset:{b*1024+v*512}')
    a(f'''
    s_waitcnt lgkmcnt(0)
    s_cmp_lg_u32 s{sW}, 3
    s_cbranch_scc1 Lt3_nz
    ''')
    for r in range(4): a(f'v_accvgpr_write_b32 a{128+r}, 0')
    a(f'''
    Lt3_nz:
    s_sub_u32 s{sTau}, s{sGrp}, 1
    v_and_b32 v{vFl}, 7, v{vLane}
    v_lshlrev_b32 v{vFl}, 2, v{vFl}
    s_lshl_b32 s{sA}, s{sW}, 5
    v_add_u32 v{vFl}, s{sA}, v{vFl}
    s_mul_i32 s{sA}, s{sW}, 3072
    v_add_u32 v{vRs}, s{sA}, v{vLin}
    v_lshlrev_b32 v{vOo}, 10, v{vN}
    v_lshl_add_u32 v{vOo}, v{vG}, 3, v{vOo}
    s_lshl_b32 s{sA}, s{sH}, 5
    v_add_u32 v{vOo}, s{sA}, v{vOo}
    ''')
    a(f'v_add_u32 v1, {WS_FL+FL_G}, v{vLin}\ns_cmp_lg_u32 s{sW}, 0\ns_cbranch_scc1 Lt3_w_b')
    poll(a, 'Lt3_w', f'global_load_dwordx4 {vr(HB,4)}, v1, {sp(sWs)} sc1\nglobal_load_dwordx4 {vr(HB+4,4)}, v1, {sp(sWs)} offset:352 sc1',
         '\n'.join([f'v_and_b32 v{HB}, v{HB}, v{HB+i}' for i in range(1,8)]) + f'\nv_cmp_ne_u32 vcc, 0x01010101, v{HB}', 64)
    a('s_barrier')
    C.tl(a, 4, 1, f's{sGrp}')
    a.label('Lt3_tile')
    a(f'''
    s_mul_i32 s{sA}, s{sTau}, {ACT_T}
    s_add_u32 s{sA}, s{sA}, {WS_ACT+4096}
    s_lshl_b32 s{sB}, s{sW}, 15
    s_add_u32 s{sB}, s{sB}, s{sA}
    s_add_u32 s{sAo}, s{sWs}, s{sB}
    s_addc_u32 s{sAo+1}, s{sWs+1}, 0
    s_lshl_b32 s{sB}, s{sRb}, 10
    s_add_u32 s{sB}, s{sB}, s{sA}
    s_add_u32 s{sB}, s{sB}, {128*1024}
    s_add_u32 s{sAh}, s{sWs}, s{sB}
    s_addc_u32 s{sAh+1}, s{sWs+1}, 0
    s_lshl_b32 s{sA}, s{sTau}, 14
    s_add_u32 s{sXa}, s{sX}, s{sA}
    s_addc_u32 s{sXa+1}, s{sX+1}, 0
    s_add_u32 s{sOo}, s{sOut}, s{sA}
    s_addc_u32 s{sOo+1}, s{sOut+1}, 0
    s_lshr_b32 s{sA}, s{sTau}, 1
    s_lshl_b32 s{sA}, s{sA}, 7
    s_add_u32 s{sA}, s{sA}, {WS_F2}
    s_add_u32 s{sF2}, s{sWs}, s{sA}
    s_addc_u32 s{sF2+1}, s{sWs+1}, 0
    ''')
    for k in range(4): a(f'global_load_dwordx4 {vr(XB+4*k,4)}, v{vXo}, {sp(sXa)} offset:{64*k}')
    for b in range(11):
        if b == 8: a(f's_add_u32 s{sAh}, s{sAh}, 8192\ns_addc_u32 s{sAh+1}, s{sAh+1}, 0')
        a(f'global_load_dwordx4 {vr(HB+4*b,4)}, v{vLin}, {sp(sAh)} offset:{(b%8)*1024-4096} sc1')
    a(f'''
    s_mov_b32 s{sSpin}, 0
    Lt3_p:
    global_load_dword v2, v{vFl}, {sp(sF2)} sc1
    s_add_u32 s{sSpin}, s{sSpin}, 1
    s_cmp_gt_u32 s{sSpin}, {WSPIN}
    s_cbranch_scc1 Lt3_go
    s_waitcnt vmcnt(0)
    v_cmp_ne_u32 vcc, 1, v2
    s_cbranch_vccz Lt3_go
    s_sleep 4
    s_branch Lt3_p
    Lt3_go:
    s_waitcnt vmcnt(0)
    ''')
    a.nvm = 0; tg = []
    for b in range(32):
        if b and b % 8 == 0: a(f's_add_u32 s{sAo}, s{sAo}, 8192\ns_addc_u32 s{sAo+1}, s{sAo+1}, 0')
        tg.append(a(f'global_load_dwordx4 {vr(OB+4*b,4)}, v{vLin}, {sp(sAo)} offset:{(b%8)*1024-4096} sc1'))
    for k in range(4): a(f'{MF} {vr(AC+8,4)}, {vr(GW+4*k,4)}, {vr(XB+4*k,4)}, {vr(AC+8,4) if k else 0}')
    for b in range(11): a(f'{MF} {vr(AC+4,4)}, {vr(128+4*b,4,"a")}, {vr(HB+4*b,4)}, {vr(AC+4,4) if b else 0}')
    for b in range(32):
        a.wvm(tg[b])
        a(f'{MF} {vr(AC,4)}, {vr(4*b,4,"a")}, {vr(OB+4*b,4)}, {vr(AC,4) if b else 0}')
    a(f'''
    ds_write_b128 v{vRs}, {vr(AC+4,4)} offset:1024
    ds_write_b128 v{vRs}, {vr(AC+8,4)} offset:2048
    ds_write_b128 v{vRs}, {vr(AC,4)}
    s_waitcnt lgkmcnt(0)
    s_barrier
    s_cmp_lg_u32 s{sW}, 0
    s_cbranch_scc1 Lt3_nx
    ''')
    for w in range(1,4):
        for j in range(3): a(f'ds_read_b128 {vr(HB+12*w+4*j,4)}, v{vRs} offset:{3072*w+1024*j}')
    a('s_waitcnt lgkmcnt(0)')
    for w in range(1,4):
        for r in range(9): a(f'v_add_f32 v{AC+r}, v{AC+r}, v{HB+12*w+r}')
    g = AC+8
    a(f'''
    v_mul_f32 v{g}, {f32(-math.log2(math.e))}, v{g}
    v_exp_f32 v{g}, v{g}
    v_add_f32 v{g}, 1.0, v{g}
    v_rcp_f32 v{g}, v{g}
    v_sub_f32 v{g+1}, 1.0, v{g}
    ''')
    for r in range(4): a(f'v_mul_f32 v{AC+r}, v{AC+r}, v{g}\nv_fmac_f32 v{AC+r}, v{AC+4+r}, v{g+1}')
    a(f'''
    v_cvt_pk_bf16_f32 v{AC}, v{AC}, v{AC+1}
    v_cvt_pk_bf16_f32 v{AC+1}, v{AC+2}, v{AC+3}
    global_store_dwordx2 v{vOo}, {vr(AC,2)}, {sp(sOo)}
    Lt3_nx:
    v_xor_b32 v{vRs}, 0x4000, v{vRs}
    s_add_u32 s{sTau}, s{sTau}, {NG3()}
    s_cmp_lt_u32 s{sTau}, 128
    s_cbranch_scc1 Lt3_tile
    ''')

def build(name=NAME, **kw):
    a = Asm()
    a.raw(khead(name))
    a(f'''
    s_cmp_ge_u32 s2, 256
    s_cbranch_scc1 L_done
    s_load_dwordx2 {sp(sDbg)}, s[0:1], 104
    s_load_dwordx2 {sp(sMem)}, s[0:1], 8
    s_load_dwordx4 s[8:11], s[0:1], 24
    s_load_dwordx2 {sp(sWq)}, s[0:1], 16
    s_load_dwordx2 {sp(sWo)}, s[0:1], 40
    s_load_dwordx2 {sp(sWs)}, s[0:1], 112
    s_load_dwordx2 {sp(sX)}, s[0:1], 0
    s_load_dwordx8 s[32:39], s[0:1], 64
    s_load_dwordx2 {sp(sOut)}, s[0:1], 96
    s_getreg_b32 s{sXcc}, hwreg(HW_REG_XCC_ID)
    s_and_b32 s{sXcc}, s{sXcc}, 15
    v_lshrrev_b32 v4, 6, v0
    s_lshr_b32 s{sH}, s2, 3
    {f's_xor_b32 s2, s2, s{sH}' if X.get('perm') else ''}
    s_add_u32 s{sGrp}, s2, {8-X.get('cg', 1)}
    s_and_b32 s{sGrp}, s{sGrp}, 7
    v_readfirstlane_b32 s{sW}, v4
    s_waitcnt lgkmcnt(0)
    ''')
    C.tl(a, 0, 1, f's{sGrp}')
    a(f's_cmp_lg_u32 s{sGrp}, 0\ns_cbranch_scc1 L_work')
    C.chain(a, 'c', mega=True, **kw)
    a('s_endpgm')
    a.label('L_work')
    t1(a)
    if X.get('t1only'):
        a.label('L_t1e')
        C.tl(a, 5, 2, f's{sGrp}')
        a('s_endpgm')
    a(f's_cmp_le_u32 s{sGrp}, {NG3()}\ns_cbranch_scc1 L_t3')
    t2(a)
    C.tl(a, 5, 2, f's{sGrp}')
    a('s_endpgm')
    a.label('L_t3')
    t3(a)
    C.tl(a, 5, 2, f's{sGrp}')
    a.label('L_done')
    a('s_endpgm')
    assert a.check_branches() == 0
    return a

if __name__ == '__main__':
    import sys
    kw = eval(sys.argv[2]) if len(sys.argv) > 2 else {}
    C.TL = kw.pop('tl', False)
    X.update(kw.pop('x', {}))
    ref = open('gated_mix__memory_aug_recurrent_mem_tr__glu_gated_bilinear__prompt.s.ref').read().split('\n')
    head = [l for l in ref if l.startswith(';') and '@launch' not in l]
    out = '\n'.join(head) + '\n; @launch grid=(256,1,1) block=(256,1,1) lds=163840\n'
    out += '.amdgcn_target "amdgcn-amd-amdhsa--gfx950"\n.text\n' + build(**kw).text()
    out += '.section .rodata,"a"\n' + kdesc(NAME)
    open(sys.argv[1], 'w').write(out)
```

```python
from asmlib import *
import struct, math
WS_KV = 0; WS_V = 16<<20; KST = 32*8192; WS_QX = 32<<20; WS_KVM = 48<<20; WS_RA = 60<<20; WS_RM = 61<<20; WS_PROF = 62<<20
RA_SLOT = 128*2048; RM_SLOT = 8192
SLAB = 131072
def f32(x): return struct.unpack('<I', struct.pack('<f', x))[0]
QSCALE = f32(128**-0.5 * math.log2(math.e))

M=0; QV=32; KA=40; KX=48; XO=40; VX=56; S=64; T=96
vIdx,vLin,vKr,vTc,vXw,vXr,vPst,vMst,vLw,vOw,vM0,vM1,HK,_,HV,_2 = range(112,128)
sMem,sWq,sWk,sWv,sWo,sDbg,sWs = 4,6,8,10,12,14,16
sH,sW,sT,sSpin = 18,19,20,21
sTmp=22; sLb=24; sA=25; sB=26; sC=27
sKV=30; sKVM=32; sSt0=34; sSt1=36; sAld=38; sArs=40; sMld=42; sMst=44
sRA=46; sRAo=48; sRMl=50; sRMs=52
sB1=54; sSel=56; sPm=64; sPub=66; sM0kv=68; sQc=69
sFl=28; sXcc=3; sFm=100; sRdy=86; sVer=87; sFK=84; sGot=88; sNx=89
WS_FL = 63<<20; FL_K = 8192; FL_G = 16384; FL_P = 20480
ROLE_LDS = 163832
VERIFY = None
sP=70
SPIN=200000
def sp(x): return f's[{x}:{x+1}]'

LDS_BLK = [('q',0),('q',1),('k',0),('k',6),('k',7),('o',5),('o',6),('o',7)]
NQ = 5
KVS = 2304
L_KV = SLAB+8192; L_MQ = SLAB; L_X = SLAB+28672; L_O = L_MQ
REG_BLK = [(m,i) for m in 'qkvo' for i in range(8) if (m,i) not in LDS_BLK]
def dest(b):
    i = REG_BLK.index(b)
    return ('a', 16*i) if i < 16 else ('v', 128 + 16*(i-16))

WS_TL = (62<<20) + 65536
TL = False
TLN = 0
def tl(a, i, v1, role_hi):
    if not TL: return
    if TL == 2:
        ch = (role_hi == 0)
        if i > 5: return
        a(f"""
        s_memrealtime s[90:91]
        s_waitcnt lgkmcnt(0)
        s_mov_b32 s{74+i}, s90
        """)
        if (ch and i == 4) or (not ch and i == 5):
            global TLN
            TLN += 1
            idx = [0,2,3,4] if ch else [0,3,4,5]
            a(f"""
            s_lshl_b32 s97, s{sH}, 2
            s_add_u32 s97, s97, s{sW}
            """)
            if not ch: a(f's_xor_b32 s96, {role_hi}, 4\ns_or_b32 s97, s97, s96')
            a(f's_cmp_lg_u32 s97, 0\ns_cbranch_scc1 Ltl2_{TLN}')
            for k_, j in enumerate(idx): a(f'v_mov_b32 v{v1+4+k_}, s{74+j}')
            a(f"""
            v_mov_b32 v{v1}, {32 if ch else 48}
            s_mov_b64 exec, 1
            global_store_dwordx4 v{v1}, v[{v1+4}:{v1+7}], {sp(sDbg)} sc1
            s_mov_b64 exec, -1
            Ltl2_{TLN}:
            """)
        return
    ch = (role_hi == 0)
    a(f"""
    s_memrealtime s[98:99]
    s_memtime s[90:91]
    s_waitcnt lgkmcnt(0)
    s_mov_b32 s{70+i}, s98
    """)
    if i < 6: a(f's_mov_b32 s{78+i}, s90')
    if (ch and i == 4) or (not ch and i == 5):
        a(f"""
        s_lshl_b32 s97, {role_hi}, 5
        s_add_u32 s97, s97, s{sH}
        s_lshl_b32 s97, s97, 2
        s_add_u32 s97, s97, s{sW}
        s_lshl_b32 s97, s97, 6
        s_add_u32 s97, s97, {WS_TL}
        v_mov_b32 v{v1}, s97
        s_mov_b64 exec, 1
        """)
        for j in range(14): a(f'v_mov_b32 v{v1+1}, s{70+j}\nglobal_store_dword v{v1}, v{v1+1}, {sp(sWs)} offset:{4*j}\ns_nop 1')
        a('s_mov_b64 exec, -1')

def chain(a, tag, sc='', mega=False, prof=False, nsteps=64, preA=56, preB=44, gapA=48, gapB=48, sgq=-3, pKx=12, pB2=5, ntr=2, rdw=1, wx=1, g7=32, stamps=(), wnt=' nt', ont=None, mord='qkv', warm=22, fkb=22, fke=28, arr=10, fst=0, opipe=1, tls=(0,8,16), opt=(), tsc=' sc1', tdist=1, skip=(), vp='kv@P0 d2@A2 d3@A6 rm@Q2 d0@Q4 fl@Q6 d1@Q9 tc@Q12 r0@Q16 r1@Q20'):
    L = lambda x: f'L{tag}_{x}'
    DIR = True
    stc = (' ' + sc) if sc else ''
    LE = L('end')
    if ont is None: ont = wnt
    kvnow = any(x_[:2] == 'kv' and x_[3] in 'CW' for x_ in vp.split())
    staged = {}
    def B(m, i, u):
        if (m,i) in staged: return vr(staged[(m,i)] + 8*u, 8)
        k, b = dest((m,i)); return vr(b + 8*u, 8, k)
    def SM(acc, A, m, i, u): a(f'v_smfmac_f32_16x16x64_bf16 {vr(acc,4)}, {vr(A,4)}, {B(m,i,u)}, v{vIdx}')
    def stg(blk, r):
        slot = LDS_BLK.index(blk); staged[blk] = r
        return [f'ds_read_b128 {vr(r+4*i,4)}, v{vLw} offset:{slot*4096+i*1024}' for i in range(4)]
    def stamp(i):
        if prof and i in stamps: a(f's_memtime {sp(sP+2*stamps.index(i))}')

    lane,n_,g_,t1,t2,t3 = T,T+1,T+2,T+3,T+4,T+5
    vWa, vOa = KX+4, T+9
    vTr = VX
    vL4, vFd, vFk = T+6, T+7, KX
    vTo = KX+2
    a(f'''
    v_and_b32 v{lane}, 63, v0
    v_and_b32 v{n_}, 15, v0
    v_lshrrev_b32 v{g_}, 4, v{lane}
    v_lshlrev_b32 v{vLin}, 4, v{lane}
    s_lshl_b32 s{sLb}, s{sW}, 15
    s_mul_i32 s{sA}, s{sW}, {KVS}
    s_add_u32 s{sM0kv}, s{sA}, {L_KV}
    v_add_u32 v{vLw}, s{sLb}, v{vLin}
    ; cooperative qkv DMA: instr i=gb, r'=lane/16, p=lane%16 holds chunk p^(2r'+8gb0) of row 32(w&1)+8(w>>1)+4gb1+gb0+16(r'&1)+2(r'>>1)
    v_and_b32 v{t1}, 1, v{g_}
    v_lshrrev_b32 v{t3}, 1, v{g_}          ; gb1
    v_lshlrev_b32 v{t2}, 1, v{g_}
    v_xor_b32 v{t2}, v{t2}, v{n_}
    v_lshlrev_b32 v{t2}, 4, v{t2}
    v_lshl_add_u32 v{t2}, v{t1}, 17, v{t2}
    v_lshl_add_u32 v{t2}, v{t3}, 14, v{t2}
    s_and_b32 s{sA}, s{sW}, 1
    s_lshl_b32 s{sA}, s{sA}, 18
    s_lshr_b32 s{sB}, s{sW}, 1
    s_lshl_b32 s{sB}, s{sB}, 16
    s_add_u32 s{sA}, s{sA}, s{sB}
    s_lshl_b32 s{sB}, s{sH}, 8
    s_add_u32 s{sA}, s{sA}, s{sB}
    v_add_u32 v{vWa}, s{sA}, v{t2}
    v_xor_b32 v{t2}, 128, v{vWa}
    v_add_u32 v{vWa+1}, {8192-1024}, v{t2}
    v_add_u32 v{vWa+2}, {4*8192-2048}, v{vWa}
    v_add_u32 v{vWa+3}, {5*8192-3072}, v{t2}
    ; wo rows: 16*gb0+4*gb1+bit3 ; chunk = (l%8)^(4*gb0)
    v_lshlrev_b32 v{vOa}, 4, v{t1}
    v_lshl_add_u32 v{vOa}, v{t3}, 2, v{vOa}
    v_bfe_u32 v{vTr}, v{lane}, 3, 1
    v_add_u32 v{vOa}, v{vOa}, v{vTr}
    v_lshlrev_b32 v{vTr}, 2, v{t1}
    v_xor_b32 v{vTr}, v{vTr}, v{lane}
    v_and_b32 v{vTr}, 7, v{vTr}
    v_lshlrev_b32 v{vTr}, 4, v{vTr}
    v_lshl_add_u32 v{vOa}, v{vOa}, 10, v{vTr}
    s_lshl_b32 s{sA}, s{sH}, 17
    s_lshl_b32 s{sB}, s{sW}, 8
    s_add_u32 s{sA}, s{sA}, s{sB}
    v_add_u32 v{vOa}, s{sA}, v{vOa}
    ''')
    def dma(bi):
        slot = bi % 8; tg = None
        if bi < 24:
            base = {'q': sWq, 'k': sWk, 'v': sWv}[mord[bi//8]]
            a(f's_add_u32 s{sTmp}, s{base}, {slot<<19}\ns_addc_u32 s{sTmp+1}, s{base+1}, 0\ns_add_u32 m0, s{sLb}, {slot*4096}')
            for J in range(4): tg = a(f'global_load_lds_dwordx4 v{vWa+J}, {sp(sTmp)} offset:{J*1024}{wnt}')
            return tg
        i = slot
        a(f's_xor_b32 s{sA}, s{sW}, {i//2}\ns_lshl_b32 s{sA}, s{sA}, 15')
        for J in range(4):
            off = (i%2)*128 + (8*(J>>1) + 2*(J&1))*1024
            a(f's_add_u32 s{sB}, s{sA}, {off}\ns_add_u32 s{sTmp}, s{sWo}, s{sB}\ns_addc_u32 s{sTmp+1}, s{sWo+1}, 0')
            a(f's_add_u32 m0, s{sLb}, {slot*4096+J*1024}')
            tg = a(f'global_load_lds_dwordx4 v{vOa}, {sp(sTmp)}{ont}')
        return tg
    dtag = {}
    def fkeval(v):
        a(f"""
        v_cmp_eq_u32 vcc, 0x01010101, v{v}
        s_or_b32 s{sTmp}, vcc_lo, 0xaaaaaaaa
        s_or_b32 s{sTmp+1}, vcc_hi, 0xaaaaaaaa
        s_ff0_i32_b64 s{sRdy}, {sp(sTmp)}
        s_min_u32 s{sRdy}, s{sRdy}, 100
        """)
    def first():
        a(f'''
        s_lshl_b32 s{sA}, s{sXcc}, 1
        s_add_u32 s{sA}, s{sA}, 1
        s_mul_i32 s{sXcc}, s{sA}, 0x01010101
        v_mov_b32 v{S}, s{sH}
        v_mov_b32 v{S+1}, s{sA}
        s_cmp_eq_u32 s{sW}, 0
        s_cselect_b32 s{sFm}, 1, 0
        s_mov_b32 s{sFm+1}, 0
        s_mov_b64 exec, {sp(sFm)}
        global_store_byte v{S}, v{S+1}, {sp(sDbg)} sc1
        s_mov_b64 exec, -1
        v_lshlrev_b32 v{S+2}, 4, v{n_}
        v_lshl_add_u32 v{S+2}, v{g_}, 10, v{S+2}
        s_lshl_b32 s{sA}, s{sW}, 8
        v_add_u32 v{S+2}, s{sA}, v{S+2}
        v_add_u32 v{S+3}, 3072, v{S+2}
        s_lshl_b32 s{sA}, s{sW}, 11
        s_add_u32 m0, s{sA}, {L_MQ}
        global_load_lds_dwordx4 v{S+2}, {sp(sMem)}
        global_load_lds_dwordx4 v{S+3}, {sp(sMem)} offset:1024
        ''')
    for bi in range(8):
        if bi == fst: first()
        dtag[bi] = dma(bi)
    if 'a' in tls: tl(a, 5 + tls.index('a'), T+12, 0)
    if 'b' in tls: tl(a, 5 + tls.index('b'), T+12, 0)
    a(f'''
    v_lshrrev_b32 v{t2}, 2, v{n_}
    v_and_b32 v{t3}, 3, v{lane}
    s_lshl_b32 s{sA}, s{sW}, 6
    v_lshl_add_u32 v{vTr}, v{t3}, 3, s{sA}
    v_lshlrev_b32 v{vTr+1}, 5, v{t2}
    v_lshl_add_u32 v{vTr+1}, v{t1}, 7, v{vTr+1}
    v_xor_b32 v{vTr}, v{vTr}, v{vTr+1}
    v_lshl_add_u32 v{vTr}, v{t2}, 8, v{vTr}
    v_lshl_add_u32 v{vTr}, v{g_}, 10, v{vTr}
    v_xor_b32 v{vTr+1}, 32, v{vTr}
    v_add_u32 v{vTr+2}, 0x10000, v{vTr}
    v_add_u32 v{vTr+3}, 0x10000, v{vTr+1}
    ; wo tr-read: gb*256 + bit2*128 + gb0*64 + bit3*32 + c4*8 (u flips bit 6)
    v_lshlrev_b32 v{vTo}, 8, v{g_}
    v_lshl_add_u32 v{vTo}, v{t1}, 6, v{vTo}
    v_lshl_add_u32 v{vTo}, v{t3}, 3, v{vTo}
    v_and_b32 v{vTo+1}, 4, v{lane}
    v_lshl_add_u32 v{vTo}, v{vTo+1}, 5, v{vTo}
    v_and_b32 v{vTo+1}, 8, v{lane}
    v_lshl_add_u32 v{vTo}, v{vTo+1}, 2, v{vTo}
    v_add_u32 v{vTo}, s{sLb}, v{vTo}
    v_xor_b32 v{vTo+1}, 64, v{vTo}
    v_xor_b32 v{vXw}, v{g_}, v{t2}
    v_lshlrev_b32 v{vXw}, 3, v{vXw}
    v_lshl_add_u32 v{vXw}, v{n_}, 5, v{vXw}
    s_lshl_b32 s{sA}, s{sW}, 10
    s_add_u32 s{sA}, s{sA}, {L_X}
    v_add_u32 v{vXw}, s{sA}, v{vXw}
    v_xor_b32 v{vXr}, v{t3}, v{g_}
    v_lshlrev_b32 v{vXr}, 3, v{vXr}
    v_lshl_add_u32 v{vXr}, v{t2}, 5, v{vXr}
    v_lshl_add_u32 v{vXr}, v{g_}, 7, v{vXr}
    v_add_u32 v{vXr}, {L_X}, v{vXr}
    v_lshl_add_u32 v{vPst}, v{t2}, 2, v{g_}
    v_lshlrev_b32 v{vPst}, 11, v{vPst}
    v_lshl_add_u32 v{vPst}, v{t3}, 4, v{vPst}
    s_lshl_b32 s{sA}, s{sW}, 16
    s_lshl_b32 s{sB}, s{sH}, 6
    s_add_u32 s{sA}, s{sA}, s{sB}
    v_add_u32 v{vPst}, s{sA}, v{vPst}
    ; publish: (c/2)*32 + p*16 + (c%2)*8 + (i/2)*4 ; c=g, p=bit2, i=lane%4
    v_lshrrev_b32 v{vMst}, 1, v{g_}
    v_lshlrev_b32 v{vMst}, 5, v{vMst}
    v_lshl_add_u32 v{vMst}, v{t1}, 3, v{vMst}
    v_and_b32 v{t2}, 4, v{lane}
    v_lshl_add_u32 v{vMst}, v{t2}, 2, v{vMst}
    v_and_b32 v{t2}, 2, v{lane}
    v_lshl_add_u32 v{vMst}, v{t2}, 1, v{vMst}
    ; O write: L_O + w*512 + (g*8+t)*16 + half*8 ; t = 2*(n/4)+n%2
    v_lshlrev_b32 v{vOw}, 7, v{g_}
    v_and_b32 v{t2}, 12, v{lane}
    v_lshl_add_u32 v{vOw}, v{t2}, 3, v{vOw}
    v_and_b32 v{t2}, 1, v{lane}
    v_lshl_add_u32 v{vOw}, v{t2}, 4, v{vOw}
    v_and_b32 v{t2}, 2, v{lane}
    v_lshl_add_u32 v{vOw}, v{t2}, 2, v{vOw}
    s_lshl_b32 s{sA}, s{sW}, 9
    s_add_u32 s{sA}, s{sA}, {L_O}
    v_add_u32 v{vOw}, s{sA}, v{vOw}
    s_mov_b32 s{sB1}, 0xcccccccc
    s_mov_b32 s{sB1+1}, 0xcccccccc
    s_mov_b32 s{sPm}, 0xf0f0f0f0
    s_mov_b32 s{sPm+1}, 0xf0f0f0f0
    s_mov_b32 s{sPub}, 0x00550055
    s_mov_b32 s{sPub+1}, 0x00550055
    s_mov_b32 s{sQc}, {QSCALE}
    v_mov_b32 v{t2}, 0x4444
    v_mov_b32 v{t3}, 0xeeee
    v_cndmask_b32 v{vIdx}, v{t2}, v{t3}, {sp(sB1)}
    v_cndmask_b32 v{vM0}, -1, 0, {sp(sB1)}
    v_cndmask_b32 v{vM1}, 0, -1, {sp(sB1)}
    ''')
    for i in range(4):
        a(f's_mov_b32 s{sSel+2*i}, {0x00110011 << i}\ns_mov_b32 s{sSel+2*i+1}, {0x00110011 << i}')
    a(f'''
    s_lshl_b32 s{sA}, s{sH}, 2
    s_add_u32 s{sA}, s{sA}, s{sW}
    s_add_u32 s{sRA}, s{sWs}, {WS_RA}
    s_addc_u32 s{sRA+1}, s{sWs+1}, 0
    s_lshl_b32 s{sB}, s{sA}, 11
    s_add_u32 s{sRAo}, s{sRA}, s{sB}
    s_addc_u32 s{sRAo+1}, s{sRA+1}, 0
    s_lshl_b32 s{sB}, s{sA}, 6
    s_add_u32 s{sB}, s{sB}, {WS_RM}
    s_add_u32 s{sRMs}, s{sWs}, s{sB}
    s_addc_u32 s{sRMs+1}, s{sWs+1}, 0
    s_lshl_b32 s{sB}, s{sW}, 11
    s_add_u32 s{sB}, s{sB}, {WS_RM}
    s_add_u32 s{sRMl}, s{sWs}, s{sB}
    s_addc_u32 s{sRMl+1}, s{sWs+1}, 0
    s_lshl_b32 s{sB}, s{sA}, 11
    s_add_u32 s{sKV}, s{sWs}, s{sB}
    s_addc_u32 s{sKV+1}, s{sWs+1}, 0
    s_lshl_b32 s{sB}, s{sA}, 10
    s_add_u32 s{sB}, s{sB}, {WS_KVM-(32 if kvnow else 64)*4096}
    s_add_u32 s{sKVM}, s{sWs}, s{sB}
    s_addc_u32 s{sKVM+1}, s{sWs+1}, 0
    s_lshl_b32 s{sB}, s{sH}, 7
    s_add_u32 s{sB}, s{sB}, {WS_FL+FL_P}
    s_add_u32 s{sFl}, s{sWs}, s{sB}
    s_addc_u32 s{sFl+1}, s{sWs+1}, 0
    s_lshl_b32 s{sB}, s{sH}, 8
    s_add_u32 s{sB}, s{sB}, {WS_FL+FL_K}
    s_add_u32 s{sFK}, s{sWs}, s{sB}
    s_addc_u32 s{sFK+1}, s{sWs+1}, 0
    ; touch/flag lanes: 0-31 V half of the own K/V record (advances per step), 32-63 ready flags of this head
    s_sub_u32 s{sB}, s{sB}, {2048+256}
    v_lshl_add_u32 v{vTc}, v{lane}, 3, s{sB}
    s_lshl_b32 s{sB}, s{sA}, 11
    s_add_u32 s{sB}, s{sB}, {WS_V-2048}
    v_lshl_add_u32 v{t2}, v{lane}, 6, s{sB}
    v_cmp_gt_u32 vcc, 32, v{lane}
    v_cndmask_b32 v{vTc}, v{vTc}, v{t2}, vcc
    s_mov_b32 s{sRdy}, {0 if mega else 100}
    v_lshlrev_b32 v{vL4}, 2, v{lane}
    v_mov_b64 {vr(HK,2)}, 0
    v_mov_b64 {vr(HV,2)}, 0
    ; M(0) gather: lane(row: b0=t%2,b1=half,b3:2=t/2 ; ga): byte = t*256 + (64s + 16(ea%4) + 4ga + 2half + ea/4)*2
    v_lshrrev_b32 v{t2}, 2, v{n_}
    v_lshlrev_b32 v{t2}, 9, v{t2}
    v_and_b32 v{t3}, 1, v{lane}
    v_lshl_add_u32 v{t2}, v{t3}, 8, v{t2}
    v_lshl_add_u32 v{t2}, v{g_}, 3, v{t2}
    v_and_b32 v{t3}, 2, v{lane}
    v_lshl_add_u32 v{t2}, v{t3}, 1, v{t2}
    s_lshl_b32 s{sA}, s{sW}, 11
    s_add_u32 s{sA}, s{sA}, {L_MQ}
    v_add_u32 v{t2}, s{sA}, v{t2}
    ''')
    if 'c' in tls: tl(a, 5 + tls.index('c'), T+12, 0)
    def warmup():
        a(f"""
        v_lshlrev_b32 v{t1}, 7, v{n_}
        v_and_b32 v{t3}, 1, v{g_}
        v_lshl_add_u32 v{t2}, v{t3}, 18, v{t1}
        global_load_dword v{vFd}, v{t2}, {sp(sRAo)} sc1
        v_lshl_add_u32 v{t1}, v{t3}, 13, v{t1}
        global_load_dword v{vFd}, v{t1}, {sp(sRMl)} sc1
        """)
    def park(pj): return dest(('o', pj+1)) if pj < NQ-1 else ('v', S+16)
    for w in range(1,4): a(f's_cmp_eq_u32 s{sW}, {w}\ns_cbranch_scc1 {L(f"pw{w}")}')
    nvm0, nds0 = a.nvm, a.nds
    for w in range(4):
        a.label(L(f'pw{w}'))
        a.nvm, a.nds = nvm0, nds0
        for bi in range(24):
            m, i = mord[bi//8], (bi%8) ^ (2*w); slot = bi % 8
            a.wvm(dtag[bi]); a('s_barrier')
            if bi in tls: tl(a, 5 + tls.index(bi), t1, 0)
            if bi: dtag[bi+7] = dma(bi+7)
            k, b = park(LDS_BLK.index((m,i))) if (m,i) in LDS_BLK else dest((m,i))
            for u in range(2):
                for J in range(4):
                    a(f'ds_read_b64_tr_b16 {vr(b+8*u+2*J,2,k)}, v{vTr+u+2*(J//2)} offset:{slot*4096+(J%2)*32768}')
            if bi == fst:
                for s_ in range(2):
                    for ea in range(8): a(f'ds_read_u16 v{S+8*s_+ea}, v{t2} offset:{(64*s_ + 16*(ea%4) + ea//4)*2}')
            if bi == fst + 1:
                for r in range(8): a(f'v_lshl_or_b32 v{M+r}, v{S+2*r+1}, 16, v{S+2*r}')
            if bi == arr and 'p3' not in opt: a(f'global_load_dword v{vFd}, v{vL4}, {sp(sDbg)} sc1')
            if bi == arr + 8 and 'p3' not in opt:
                msk = ((1 << 24) - 1) | (1 << 40) if mega else 0xff
                a(f"""
                s_mov_b32 s{sSpin}, 0
                {L(f'tb{w}')}:
                v_and_b32 v{t1}, 0x01010101, v{vFd}
                v_cmp_ne_u32 vcc, 0x01010101, v{t1}
                s_and_b32 s{sA}, vcc_lo, {msk & 0xffffffff}
                s_and_b32 s{sB}, vcc_hi, {msk >> 32}
                s_or_b32 s{sA}, s{sA}, s{sB}
                s_cbranch_scc0 {L(f'tbo{w}')}
                s_sleep 4
                global_load_dword v{vFd}, v{vL4}, {sp(sDbg)} sc1
                s_add_u32 s{sSpin}, s{sSpin}, 1
                s_cmp_gt_u32 s{sSpin}, {SPIN}
                s_cbranch_scc1 {L('end')}
                s_waitcnt vmcnt(0)
                s_branch {L(f'tb{w}')}
                {L(f'tbo{w}')}:
                v_cmp_ne_u32 vcc, s{sXcc}, v{vFd}
                s_and_b32 s{sXcc}, vcc_lo, 0xff
                """)
                a.nvm -= 1
            if bi == warm: warmup()
            if mega and bi == fkb: ftag = a(f'global_load_dword v{vFk}, v{vL4}, {sp(sFK)} sc1')
            a('s_waitcnt lgkmcnt(0)')
        if w < 3: a(f's_branch {L("pwe")}')
    a.label(L('pwe'))
    tl(a, 1, t1, 0)
    def k0():
        a(f"""
        s_mov_b32 m0, s{sM0kv}
        s_nop 0
        global_load_lds_dwordx4 v{vLin}, {sp(sKV)} sc1
        global_load_lds_dwordx4 v{vLin}, {sp(sKV)} offset:1024 sc1
        global_load_lds_dword v{vTc}, {sp(sWs)} offset:2048 sc1
        """)
    for bi in range(24, 32):
        slot = bi % 8
        a.wvm(dtag[bi])
        if bi == 24: a('s_barrier'); dtag[31] = dma(31)
        if bi == warm: warmup()
        if mega and bi == fkb: ftag = a(f'global_load_dword v{vFk}, v{vL4}, {sp(sFK)} sc1')
        if bi == fke:
            if mega:
                a.wvm(ftag)
                fkeval(vFk)
                a(f's_cmp_lg_u32 s{sRdy}, 0\ns_cbranch_scc1 {L("k1")}')
                for _ in range(3): a(f'global_load_dword v{vFk}, v{vL4}, {sp(sFK)} sc1')
                a(f's_branch {L("k2")}')
                a.nvm -= 3
                a.label(L('k1'))
            k0()
            a.label(L('k2'))
        tmp = S + 16*(slot%2)
        k, b = dest(('o', slot)) if slot < NQ else ('v', tmp)
        for u in range(2):
            for J in range(4):
                a(f'ds_read_b64_tr_b16 {vr(b+8*u+2*J,2,k)}, v{vTo+u} offset:{slot*4096+J*1024}')
        if slot >= NQ or not opipe: a('s_waitcnt lgkmcnt(0)')
        k, b = park(slot) if slot < NQ else ('v', tmp)
        for u in range(2):
            for hf in range(2):
                a(f'ds_write_b128 v{vLw}, {vr(b+8*u+4*hf,4,k)} offset:{slot*4096+u*2048+hf*1024}')
        if not opipe: a('s_waitcnt lgkmcnt(0)')
    tl(a, 2, t1, 0)
    if 'ponly' in opt: a(f's_branch {LE}')
    if mega:
        a(f"""
        s_cmp_lg_u32 s{sRdy}, 0
        s_cbranch_scc1 {L("kwe")}
        s_mov_b32 s{sSpin}, 0
        {L('kw')}:
        s_waitcnt vmcnt(0)
        """)
        fkeval(vFk)
        a(f"""
        s_cmp_lg_u32 s{sRdy}, 0
        s_cbranch_scc1 {L("kwd")}
        s_sleep 2
        global_load_dword v{vFk}, v{vL4}, {sp(sFK)} sc1
        s_add_u32 s{sSpin}, s{sSpin}, 1
        s_cmp_gt_u32 s{sSpin}, {SPIN}
        s_cbranch_scc1 {L('end')}
        s_branch {L("kw")}
        """)
        a.label(L('kwd'))
        k0()
        a.label(L('kwe'))
    sKN = sWo
    a(f"""
    s_mov_b64 {sp(sKN)}, {sp(sKV)}
    s_mov_b32 s{sT}, 0
    s_mov_b32 s{sSpin}, 0
    """)
    tl(a, 3, t1, 0)
    if prof:
        for i in range(8): a(f's_mov_b32 s{sP+20+i}, 0')
        a(f's_memtime {sp(sP+28)}')
    def tstamp(idx):
        if 'ts' not in opt and 'tc' not in opt: return
        a(f"""
        {'s_memrealtime' if 'ts' in opt else 's_memtime'} s[96:97]
        s_lshl_b32 s{sA}, s{sH}, 2
        s_add_u32 s{sA}, s{sA}, s{sW}
        s_lshl_b32 s{sA}, s{sA}, 6
        s_add_u32 s{sA}, s{sA}, {idx}
        s_lshl_b32 s{sA}, s{sA}, 2
        s_add_u32 s{sA}, s{sA}, {WS_PROF+131072}
        v_mov_b32 v{T}, s{sA}
        s_waitcnt lgkmcnt(0)
        v_mov_b32 v{T+1}, s96
        s_mov_b64 exec, 1
        global_store_dword v{T}, v{T+1}, {sp(sWs)}
        s_mov_b64 exec, -1
        """)
    tstamp(63)
    DPPM = 'row_mask:0xf bank_mask:0xf'
    QA = T+8; VA = QV; P2 = VX; S0 = S; S1 = S+16; K0 = M+16
    NEG = M+4; Sel = T+4; Dr = T+8
    sB0, sOne, sHalf = 4, 8, 10
    a(f'''
    s_not_b64 {sp(sB0)}, {sp(sB1)}
    s_mov_b32 s{sOne}, 0x3f803f80
    s_mov_b32 s{sOne+1}, 0x3f803f80
    s_mov_b32 s{sHalf}, 0x3f003f00
    s_mov_b32 s{sHalf+1}, 0x3f003f00
    ''')
    def pre1(L=None):
        n0 = len(a.items)
        if L and mega: a(f'v_lshrrev_b32 v{T+5}, 2, v{vLin}\nv_add_u32 v{T+6}, m0, v{T+5}\nds_read_b32 v{T+6}, v{T+6} offset:2048')
        a(f"""
        s_and_b32 s{sA}, s{sT}, 1
        s_lshl_b32 s{sC}, s{sA}, 13
        s_add_u32 s{sMld}, s{sRMl}, s{sC}
        s_addc_u32 s{sMld+1}, s{sRMl+1}, 0
        s_xor_b32 s{sB}, s{sA}, 1
        """)
        for x_ in stg(('k',0), K0): a(x_)
        for i in range(0,16,2): a(f'v_mov_b64 {vr(VA+i,2)}, 0')
        for i in range(0,8,2): a(f'v_mov_b64 {vr(QA+i,2)}, 0')
        return len(a.items) - n0
    def pre2(L=None):
        n0 = len(a.items)
        a(f's_mov_b32 exec_hi, 0\nv_add_u32 v{vTc}, {KST}, v{vTc}\ns_mov_b32 exec_hi, -1')
        a(f"""
        s_lshl_b32 s{sC}, s{sB}, 13
        s_add_u32 s{sMst}, s{sRMs}, s{sC}
        s_addc_u32 s{sMst+1}, s{sRMs+1}, 0
        s_lshl_b32 s{sC}, s{sB}, 18
        s_add_u32 s{sArs}, s{sRAo}, s{sC}
        s_addc_u32 s{sArs+1}, s{sRAo+1}, 0
        s_lshl_b32 s{sC}, s{sA}, 18
        s_add_u32 s{sSt0}, s{sRA}, s{sC}
        s_addc_u32 s{sSt0+1}, s{sRA+1}, 0
        s_add_u32 s{sSt1}, s{sSt0}, 32768
        s_addc_u32 s{sSt1+1}, s{sSt0+1}, 0
        s_add_u32 s{sAld}, s{sRAo}, s{sC}
        s_addc_u32 s{sAld+1}, s{sRAo+1}, 0
        s_add_u32 s{sKV}, s{sKN}, {WS_V}
        s_addc_u32 s{sKV+1}, s{sKN+1}, 0
        s_add_u32 s{sKN}, s{sKN}, {KST}
        s_addc_u32 s{sKN+1}, s{sKN+1}, 0
        s_add_u32 s{sKVM}, s{sKVM}, {32*4096}
        s_addc_u32 s{sKVM+1}, s{sKVM+1}, 0
        s_mul_i32 s{sC}, s{sB}, {4*KVS}
        s_add_u32 m0, s{sC}, s{sM0kv}
        s_mul_i32 s{sC}, s{sA}, {4*KVS}
        s_add_u32 s{sC}, s{sC}, {L_KV}
        v_add_u32 v{vKr}, s{sC}, v{vLin}
        s_lshl_b32 s{sC}, s{sW}, 11
        s_add_u32 s{sC}, s{sC}, {L_MQ}
        v_add_u32 v{T+3}, s{sC}, v{vLin}
        s_add_u32 s{sC}, s{sT}, {int(kvnow)}
        v_mov_b32 v{T+4}, s{sC}
        """)
        for i in range(1,4): a(f'v_xor_b32 v{T+i-1}, {i*2048}, v{T+3}')
        if L and mega:
            a(f'''
            s_waitcnt lgkmcnt(0)
            v_cmp_eq_u32 vcc, 0x01010101, v{T+6}
            s_add_u32 s{sA}, s{sT}, 1
            s_ff0_i32_b32 s{sRdy}, vcc_hi
            s_lshl_b32 s{sRdy}, s{sRdy}, 1
            s_cmp_lt_u32 s{sA}, s{sRdy}
            s_cbranch_scc0 {L('rp')}
            ''')
        return len(a.items) - n0
    def ldM(r): a(f'global_load_dwordx4 {vr(r,4)}, v{vLin}, {sp(sMld)} sc1\nglobal_load_dwordx4 {vr(r+4,4)}, v{vLin}, {sp(sMld)} offset:1024 sc1')
    def ldA(r): a(f'global_load_dwordx4 {vr(r,4)}, v{vLin}, {sp(sAld)} sc1\nglobal_load_dwordx4 {vr(r+4,4)}, v{vLin}, {sp(sAld)} offset:1024 sc1')
    def spin(): a(f's_add_u32 s{sSpin}, s{sSpin}, 1\ns_cmp_gt_u32 s{sSpin}, {SPIN}\ns_cbranch_scc1 {LE}')
    acc = {'q': QA, 'k': KA, 'v': VA}
    def P_(m, sg, u): SM(acc[m]+4*u, M+4*sg, m, sg, u)
    for x_ in stg(('q',0), S0) + stg(('q',1), S1): a(x_)
    for r in (0,2,4,6): a(f'v_min_u32 v{M+r}, -2, v{M+r}')
    pre1(); pre2()
    a('s_waitcnt vmcnt(0) lgkmcnt(0)')
    if mega: a(f's_cmp_lg_u32 s{sXcc}, 0\ns_cbranch_scc1 {L("s_try")}')
    a(f's_branch {L("try")}')
    staged0 = dict(staged)
    def loop(L, stc):
        staged.clear(); staged.update(staged0)
        dm = [f'global_load_lds_dwordx4 v{vLin}, {sp(sKN)} offset:{j*1024} sc1' for j in range(2)] + \
             [f'global_load_dwordx4 {vr(KX+4*j,4)}, v{vLin}, {sp(sKV)} offset:{(j-2)*1024} sc1' for j in (2,3)]
        a.label(L('retry'))
        spin()
        a('s_waitcnt vmcnt(0)')
        for i in range(0,8,2): a(f'v_mov_b64 {vr(M+i,2)}, {vr(P2+i,2)}')
        ldM(P2)
        for i in range(0,8,2): a(f'v_mov_b64 {vr(QA+i,2)}, 0')
        a(f's_branch {L("try")}')
        a.label(L('step'))
        n = pre1(L); a.nops(preB - n - 3)
        ldM(M)
        n = pre2(L); a.nops(gapB - n - 2)
        a.label(L('rk'))
        ldM(P2)
        a(f's_waitcnt vmcnt(2) lgkmcnt(0)')
        a.label(L('try'))
        a.nds = 0; a.nvm = 2; set2 = 2
        stamp('a0')
        ck = M+8
        a(f'ds_write_b128 v{T+3}, {vr(M,4)}\nds_write_b128 v{T+3}, {vr(M+4,4)} offset:1024')
        P_('q',0,0); a(f'v_max3_u32 v{ck}, v{M}, v{M+2}, v{M+4}')
        P_('q',0,1); a(f'v_max_u32 v{ck}, v{ck}, v{M+6}')
        P_('q',1,0); a(f'v_cmp_eq_u32 vcc, -1, v{ck}')
        P_('q',1,1); a(f's_cbranch_vccnz {L("retry")}')
        rlate = any(x_[0] == 'r' and x_[1] != 'm' and x_[3] in 'CW' for x_ in vp.split())
        NG2 = T if rlate else NEG
        rs = [f'global_store_dwordx4 v{vLin}, {vr(NG2,4)}, {sp(sArs)} offset:{1024*i}{stc}' for i in range(2)]
        if rdw: rs = [f'global_store_dword v{vLin}, v{NG2}, {sp(sArs)} offset:{1024*i}{stc}' for i in range(2)]
        vops = dict(d0=dm[0], d1=dm[1], d2=dm[2], d3=dm[3], r0=rs[0], r1=rs[1],
                    kv=f'global_store_dwordx4 v{vLin}, {vr(HK,4)}, {sp(sKVM)} sc1',
                    fl=f's_mov_b64 exec, {sp(sFm)}\nglobal_store_dword v{vLin}, v{T+4}, {sp(sFl)} sc1\ns_mov_b64 exec, -1',
                    tc=f'global_load_lds_dword v{vTc}, {sp(sWs)} offset:2048{tsc}',
                    rm=f'global_store_dword v{vMst}, v{NEG}, {sp(sMst)}{stc}')
        vt = {}
        def VM(slot):
            for x_ in vp.split():
                o, s_ = x_.split('@')
                if s_ != slot: continue
                k_ = slot[0]; n_ = int(slot[1:])
                if o[0] == 'r': assert k_ == 'Q' and (1 if o == 'rm' or rdw else 4) <= n_ or k_ == 'V' or k_ in 'CW' and o != 'rm'
                if o == 'fl': assert k_ in 'AQV'
                if o == 'kv': assert k_ in 'PACW' or k_ == 'Q' and n_ < 21
                if o in ('d0', 'd1', 'tc'): assert 'd2' in vt and 'd3' in vt and 'rm' in vt
                if o in skip: vt[o] = a.nvm; continue
                vt[o] = a(vops[o])
            stamp(slot)
        P_('k',0,0); VM('P0'); a(f's_waitcnt lgkmcnt(0)\ns_barrier')
        stamp('a1')
        mt = {}
        def rdM(sg): mt[sg] = a(f'ds_read_b128 {vr(M+4*sg,4)}, v{T+sg//2-1} offset:{1024*(sg%2)}')
        vq = [(sg,u) for sg in (0,1,4,5,6,7,2,3) for u in (0,1)]
        def V_():
            sg, u = vq.pop(0); P_('v', sg, u)
        g1 = stg(('k',6), S0) + stg(('k',7), S1); tg1 = []
        def G1(i):
            if sgq <= i < sgq + 8: tg1.append(a(g1[i-sgq]))
        rdM(2); rdM(3)
        P_('k',0,1); rdM(4); VM('A0')
        P_('k',1,0); rdM(5); VM('A1')
        P_('k',1,1); rdM(6); VM('A2')
        V_(); rdM(7); VM('A3')
        for i in range(1,4): V_(); G1(i-4); VM(f'A{3+i}')
        stamp('a2')
        QP = T+6; D0 = T; D1 = T+8; Dm = VA; X = XO
        def half(r, d): return [f'v_add_f32 v{r}, v{r}, v{r+2}', f'v_add_f32 v{r+1}, v{r+1}, v{r+3}', f'v_cvt_pk_bf16_f32 v{d}, v{r}, v{r+1}']
        a.wds(mt[2])
        seq = [('q',s_,0) for s_ in range(2,8)] + [('q',2,1),('q',3,1),('k',6,0),('k',6,1),('k',7,0),('k',7,1)] + \
              [('q',s_,1) for s_ in range(4,8)] + [('k',s_,0) for s_ in range(2,6)] + [('k',s_,1) for s_ in range(2,6)]
        z0 = [f'v_mov_b64 {vr(M+2*i,2)}, 0' for i in range(4,8)]
        kx = [f'ds_read_b128 {vr(S+4*i,4)}, v{vKr} offset:{(i//2)*KVS+(i%2)*1024}' for i in range(8)]
        va = {i: f'v_mov_b32 v{NEG+i}, -1' for i in range(1 if rlate or rdw else 4)}
        for i, p_ in enumerate((4,5)): va[p_] = f'v_mov_b64 {vr(M+2*i,2)}, 0'
        wr = {}
        for p_, (r, d, off) in ((7, (QA, QP, 0)), (17, (QA+4, QP+1, 512)), (21, (KA, HK, 4))):
            for j, x_ in enumerate(half(r, d)): va[p_+j] = x_
            wr[p_+3] = f'ds_write_b32 v{vXw}, v{d} offset:{off}'
        xr = [f'ds_read_b64_tr_b16 {vr(X+2*i,2)}, v{vXr} offset:{i*512}' for i in range(8)]
        tx = []
        On = T+12; Cq = T+7
        rV = max([int(x_[4:]) for x_ in vp.split() if x_[0] == 'r' and x_[3] == 'V'] + [-1])
        fv = [f'v_mov_b64 {vr(On,2)}, {sp(sOne)}', f'v_mov_b64 {vr(On+2,2)}, {sp(sHalf)}', f'v_mov_b32 v{Cq}, s{sQc}', f'v_mov_b64 {vr(NEG+2,2)}, 0', f'v_mov_b64 {vr(NEG,2)}, 0']
        g2 = stg(('o',7), M+16)
        for i in range(36):
            if i < 24: P_(*seq[i])
            else: V_()
            if i < 5: a.wds(mt[i+3])
            if 7 <= i <= 10: a.wds(tg1[2*(i-7)+1])
            G1(i)
            if i in wr: a(wr[i])
            if pKx <= i < pKx + 8: tkx = a(kx[i-pKx])
            VM(f'Q{i}' if i < 24 else f'V{i-24}')
            if i in va: a(va[i])
            if i == 23: stamp('b0')
            if i == 25:
                for x_ in half(KA+4, HK+1): a(x_)
                wk = a(f'ds_write_b32 v{vXw}, v{HK+1} offset:516')
            if i == 24 + pB2: a.wds(wk); a('s_barrier'); stamp('b1')
            if i >= 24 + pB2:
                for _ in range(ntr):
                    if len(tx) < 8: tx.append(a(xr[len(tx)])); busy = i
            if i >= max(g7, 34 - 2*len(g2)) and g2 and not (tx and busy == i): a(g2.pop(0))
            if i == 26: a(f's_mov_b64 vcc, {sp(sB0)}\ns_cmp_eq_u32 s{sT}, {nsteps-1}')
            if i == 35: a(f's_cbranch_scc1 {L("last")}')
            if 26 <= i < 35 and i != 24 + pB2 and not (tx and busy == i and ntr > 2) and fv and (len(fv) > 2 or i - 24 > rV): a(fv.pop(0))
        while len(tx) < 8: tx.append(a(xr[len(tx)]))
        stamp('c0')
        vf = half(VA, HV) + half(VA+4, HV+1)
        mx = T+4; tm = T+5; ma = T+6; vOr = T+4
        g5 = stg(('o',5), S0); g6 = stg(('o',6), S1)
        P = T+8; Dd = T+10; Ba = XO; Bb = XO+4; Po = XO+8; Ls = XO+12
        MF = 'v_mfma_f32_16x16x32_bf16'
        lastc = list(vf)
        mg = [f'v_cndmask_b32_dpp v{D0+r}, v{D1+r}, v{D0+r}, vcc quad_perm:[0,1,0,1] {DPPM}' for r in range(4)] + \
             [f'v_max3_f32 v{mx}, v{D0}, v{D0+1}, v{D0+2}', f'v_max_f32 v{mx}, v{mx}, v{D0+3}']
        rest = g2 + fv
        a.wds(tx[{0: 7, 1: 3, 2: 1}[wx]])
        for i in range(12):
            if i < 8:
                w_ = i//2; d = (D0, D1)[i%2]
                a(f'{MF} {vr(d,4)}, {vr(S+4*i,4)}, {vr(X+4*w_,4)}, {vr(d,4) if w_ else 0}')
            else:
                r = X+4*(i-8); a(f'{MF} {vr(Dm,4)}, {vr(r,4)}, {vr(r,4)}, {vr(Dm,4) if i > 8 else 0}')
            stamp(f'M{i}')
            if i == 0:
                for _ in range(2):
                    if rest: a(rest.pop(0))
            elif i == 1 and wx == 2: a.wds(tx[3]); a(vf.pop(0))
            elif i == 3 and wx: a.wds(tx[7]); a(vf.pop(0))
            elif i < 4: a(vf.pop(0)); a(vf.pop(0))
            elif i < 8:
                a(g5.pop(0))
                if vf: a(vf.pop(0))
                elif rest: a(rest.pop(0))
                elif i >= 6: a(g6.pop(0))
            elif i == 8: a(g6.pop(0)); a(g6.pop(0))
            else: a(mg.pop(0)); a(mg.pop(0))
        assert not rest
        for x_ in g6: a(x_)
        stamp('c1')
        a(f'v_max_f32_dpp v{mx}, v{mx}, v{mx} quad_perm:[2,3,0,1] {DPPM}')
        a(f'v_mul_f32 v{mx}, v{mx}, v{Cq}')
        a(f'v_mul_f32_dpp v{Dm}, v{Dm+2}, v{Cq} quad_perm:[0,1,0,1] {DPPM}')
        a(f'v_mul_f32_dpp v{Dm+1}, v{Dm+3}, v{Cq} quad_perm:[0,1,0,1] {DPPM}')
        a(f'v_max3_f32 v{tm}, v{mx}, v{Dm}, v{Dm+1}')
        a(f'v_max3_f32 v{mx}, v{mx}, v{Dm}, v{Dm+1}')
        a(z0.pop()); a(z0.pop())
        a(f'v_permlane16_swap_b32 v{mx}, v{tm}\nv_max_f32 v{ma}, v{mx}, v{tm}\nv_max_f32 v{mx}, v{mx}, v{tm}')
        a(z0.pop()); a(z0.pop())
        a(f'v_permlane32_swap_b32 v{mx}, v{ma}\nv_max_f32 v{mx}, v{mx}, v{ma}')
        ex = [Dm, Dm+1, T, T+1, T+2, T+3]
        for r in ex[:2]: a(f'v_sub_f32 v{r}, v{r}, v{mx}')
        for r in ex[2:]: a(f'v_fma_f32 v{r}, v{r}, v{Cq}, -v{mx}')
        for r in ex[:4]: a(f'v_exp_f32 v{r}, v{r}')
        a(f'v_cvt_pk_bf16_f32 v{Dm}, v{Dm}, v{Dm+1}')
        for r in ex[4:]: a(f'v_exp_f32 v{r}, v{r}')
        stamp('c2')
        a.wvm(max(vt['d2'], vt['d3'], vt['rm']))
        a(f"""
        v_cvt_pk_bf16_f32 v{P}, v{T}, v{T+1}
        v_and_b32 v{Dd}, v{Dm}, v{vM0}
        v_and_b32 v{Dd+1}, v{Dm}, v{vM1}
        v_cvt_pk_bf16_f32 v{P+1}, v{T+2}, v{T+3}
        v_and_b32 v{Ba}, v{P}, v{vM0}
        v_mfma_f32_16x16x16_bf16 {vr(Po,4)}, {vr(HV,2)}, {vr(Dd,2)}, 0
        v_and_b32_dpp v{Ba+2}, v{P}, v{vM0} quad_perm:[2,3,0,1] {DPPM}
        v_and_b32 v{Ba+1}, v{P+1}, v{vM0}
        v_mfma_f32_16x16x32_bf16 {vr(Ls,4)}, {vr(On,4)}, {vr(P,4)}, 0
        v_and_b32_dpp v{Ba+3}, v{P+1}, v{vM0} quad_perm:[2,3,0,1] {DPPM}
        v_and_b32_dpp v{Bb}, v{P}, v{vM1} quad_perm:[2,3,0,1] {DPPM}
        v_and_b32_dpp v{Bb+1}, v{P+1}, v{vM1} quad_perm:[2,3,0,1] {DPPM}
        v_mfma_f32_16x16x32_bf16 {vr(Po,4)}, {vr(VX,4)}, {vr(Ba,4)}, {vr(Po,4)}
        v_and_b32 v{Bb+2}, v{P}, v{vM1}
        v_and_b32 v{Bb+3}, v{P+1}, v{vM1}
        v_and_b32 v{vOr}, -9, v{vOw}
        v_xor_b32 v{vOr+1}, 512, v{vOr}
        v_mfma_f32_16x16x32_bf16 {vr(Po,4)}, {vr(VX+4,4)}, {vr(Bb,4)}, {vr(Po,4)}
        v_add_f32_dpp v{Ls}, v{Ls}, v{Ls} quad_perm:[2,3,0,1] {DPPM}
        v_rcp_f32 v{Ls}, v{Ls}
        v_xor_b32 v{vOr+2}, 1024, v{vOr}
        v_xor_b32 v{vOr+3}, 1536, v{vOr}
        """)
        assert not z0
        if rlate: a(f'v_mov_b64 {vr(T,2)}, -1' + ('' if rdw else f'\nv_mov_b64 {vr(T+2,2)}, -1'))
        a(f"""
        v_mul_f32 v{Po}, v{Po}, v{Ls}
        v_mul_f32 v{Po+1}, v{Po+1}, v{Ls}
        v_mul_f32 v{Po+2}, v{Po+2}, v{Ls}
        v_mul_f32 v{Po+3}, v{Po+3}, v{Ls}
        v_cvt_pk_bf16_f32 v{Po}, v{Po}, v{Po+1}
        v_cvt_pk_bf16_f32 v{Po+1}, v{Po+2}, v{Po+3}
        """)
        O = XO
        ow = a(f'ds_write_b64 v{vOw}, {vr(Po,2)}')
        ot = [a(f'ds_read_b128 {vr(O,4)}, v{vOr}')]
        stamp('c3')
        VM('C0')
        a.wds(ow); a('s_barrier')
        stamp('d0')
        for k_ in range(1,4): ot.append(a(f'ds_read_b128 {vr(O+4*k_,4)}, v{vOr+k_}'))
        VM('C1')
        PS = VA
        def W_(G, ki): SM(M+4*G, O+4*ki, 'o', 2*ki+G//2, G%2)
        def cv(G): return [f'v_cvt_pk_bf16_f32 v{PS+2*G+h_}, v{M+4*G+2*h_}, v{M+4*G+2*h_+1}' for h_ in range(2)]
        a.wds(ot[0])
        for G in range(4):
            W_(G, 0); VM(f'W{G}')
        a.wds(ot[1])
        stamp('d1')
        W_(0,1); VM('W4'); W_(1,1); a.wds(ot[2]); VM('W5'); W_(0,2); VM('W6'); W_(1,2); a.wds(ot[3]); VM('W7'); W_(0,3); VM('W8'); W_(1,3)
        c0 = cv(0); c1 = cv(1); c2 = cv(2); c3 = cv(3)
        W_(2,1); a(c0[0])
        W_(2,2); a(c0[1]); a(c1[0])
        W_(2,3); a(c1[1]); a(f'v_min_u32 v{PS}, -2, v{PS}')
        W_(3,1); a(f'global_store_dwordx4 v{vPst}, {vr(PS,4)}, {sp(sSt0)}{stc}')
        W_(3,2); a(c2[0])
        W_(3,3); a(c2[1]); a(f'v_min_u32 v{PS+4}, -2, v{PS+4}')
        a(f'v_mov_b32 v{T+2}, 0x3f80\nv_mov_b32 v{T+3}, 0x3f800000')
        a(f'v_cndmask_b32 v{T+2}, v{T+2}, v{T+3}, {sp(sPm)}')
        a(c3[0]); a(c3[1])
        a(f'global_store_dwordx4 v{vPst}, {vr(PS+4,4)}, {sp(sSt1)}{stc}')
        stamp('h0')
        n0 = len(a.items)
        for x_ in stg(('q',0), S0) + stg(('q',1), S1): a(x_)
        for i in range(4): a(f'v_cndmask_b32 v{Sel+i}, 0, v{T+2}, {sp(sSel+2*i)}')
        a.nops(preA - (len(a.items) - n0))
        R1 = M+8; R2 = P2
        def redA(R):
            a(f"""
            s_waitcnt vmcnt(3)
            v_mfma_f32_16x16x32_bf16 {vr(Dr,4)}, {vr(R,4)}, {vr(Sel,4)}, 0
            s_waitcnt vmcnt(2)
            v_mfma_f32_16x16x32_bf16 {vr(Dr,4)}, {vr(R+4,4)}, {vr(Sel,4)}, {vr(Dr,4)}
            v_max_u32 v{T}, v{R}, v{R+4}
            v_cmp_eq_u32 vcc, -1, v{T}
            """)
        ldA(R1)
        a.nops(gapA - 2)
        a.label(L('pa'))
        ldA(R2)
        redA(R1)
        a(f's_cbranch_vccz {L("qa")}')
        ldA(R1); spin()
        redA(R2)
        a(f's_cbranch_vccnz {L("pa")}')
        a.label(L('qa'))
        stamp('h1')
        a(f"""
        v_permlane32_swap_b32 v{Dr}, v{Dr+2}
        v_permlane32_swap_b32 v{Dr+1}, v{Dr+3}
        v_add_f32 v{Dr}, v{Dr}, v{Dr+2}
        v_add_f32 v{Dr+1}, v{Dr+1}, v{Dr+3}
        v_permlane16_swap_b32 v{Dr}, v{Dr+1}
        v_add_f32 v{Dr}, v{Dr}, v{Dr+1}
        v_mov_b32_dpp v{Dr+1}, v{Dr} quad_perm:[1,0,3,2] {DPPM}
        v_cvt_pk_bf16_f32 v{Dr}, v{Dr}, v{Dr+1}
        s_mov_b64 exec, {sp(sPub)}
        v_min_u32 v{Dr}, -2, v{Dr}
        global_store_dword v{vMst}, v{Dr}, {sp(sMst)}{stc}
        """)
        stamp('h2')
        a(f"""
        s_mov_b64 exec, -1
        """)
        tstamp(f's{sT}')
        if prof and len(stamps) >= 2:
            a('s_waitcnt lgkmcnt(0)')
            for i in range(len(stamps)-1): a(f's_sub_u32 s{sA}, s{sP+2*i+2}, s{sP+2*i}\ns_add_u32 s{sP+21+i}, s{sP+21+i}, s{sA}')
        if prof:
            a(f's_cmp_lg_u32 s{sT}, 3\ns_cbranch_scc1 {L("pf1")}\ns_memtime {sp(sP+28)}\ns_mov_b32 s{sSpin}, 0')
            for i in range(6): a(f's_mov_b32 s{sP+21+i}, 0')
            a(f'{L("pf1")}:\ns_cmp_lg_u32 s{sT}, {nsteps-2}\ns_cbranch_scc1 {L("pf2")}\ns_memtime {sp(sP)}\ns_waitcnt lgkmcnt(0)\ns_sub_u32 s{sP+20}, s{sP}, s{sP+28}\n{L("pf2")}:')
        a(f's_add_u32 s{sT}, s{sT}, 1\ns_branch {L("step")}')
        a.label(L('rp'))
        a(f'global_load_dword v{T+6}, v{T+5}, {sp(sFK)} sc1')
        spin()
        a('s_waitcnt vmcnt(0)')
        fkeval(T+6)
        a(f's_cmp_lt_u32 s{sA}, s{sRdy}\ns_cbranch_scc1 {L("rk")}\ns_sleep 2\ns_branch {L("rp")}')
        a.label(L('last'))
        a('s_nop 7')
        for x_ in lastc: a(x_)
        a(f's_branch {LE}')
    loop(L, stc)
    if mega: loop(lambda x: L('s_' + x), ' sc1')
    a.label(L('end'))
    a('s_mov_b64 exec, -1\ns_nop 7')
    a(f'''
    s_add_u32 s{sKVM}, s{sKVM}, {0 if kvnow else 32*4096}
    s_addc_u32 s{sKVM+1}, s{sKVM+1}, 0
    global_store_dwordx4 v{vLin}, {vr(HK,4)}, {sp(sKVM)} sc1
    v_mov_b32 v{T}, 0x41
    s_waitcnt vmcnt(0)
    s_barrier
    s_mov_b64 exec, {sp(sFm)}
    global_store_dword v{vLin}, v{T}, {sp(sFl)} sc1
    s_mov_b64 exec, -1
    ''')
    if prof:
        for i in range(7): a(f'v_mov_b32 v{T+i}, s{sP+20+i}')
        a(f'''
        v_mov_b32 v{T+7}, s{sSpin}
        s_lshl_b32 s{sA}, s{sH}, 2
        s_add_u32 s{sA}, s{sA}, s{sW}
        s_lshl_b32 s{sA}, s{sA}, 5
        s_add_u32 s{sA}, s{sA}, {WS_PROF}
        v_mov_b32 v{T+8}, s{sA}
        s_mov_b64 exec, 1
        global_store_dwordx4 v{T+8}, {vr(T,4)}, {sp(sWs)}
        global_store_dwordx4 v{T+8}, {vr(T+4,4)}, {sp(sWs)} offset:16
        s_mov_b64 exec, -1
        ''')
    tl(a, 4, T, 0)
    a('s_waitcnt vmcnt(0) lgkmcnt(0)')

def standalone(name='chain_kernel', **kw):
    a = Asm()
    a.raw(khead(name))
    a(f'''
    s_load_dwordx2 {sp(sMem)}, s[0:1], 8
    s_load_dwordx4 s[8:11], s[0:1], 24
    s_load_dwordx2 {sp(sWq)}, s[0:1], 16
    s_load_dwordx2 {sp(sWo)}, s[0:1], 40
    s_load_dwordx2 {sp(sDbg)}, s[0:1], 104
    s_load_dwordx2 {sp(sWs)}, s[0:1], 112
    s_getreg_b32 s{sA}, hwreg(HW_REG_XCC_ID)
    s_and_b32 s{sA}, s{sA}, 15
    s_mov_b32 s{sXcc}, s{sA}
    s_waitcnt lgkmcnt(0)
    s_cmp_lg_u32 s{sA}, 0
    s_cbranch_scc1 L_done_{name}
    v_mov_b32 v1, 0
    v_mov_b32 v2, 1
    v_lshrrev_b32 v4, 6, v0
    v_readfirstlane_b32 s{sW}, v4
    s_cmp_lg_u32 s{sW}, 0
    s_cbranch_scc1 L_t_{name}
    s_mov_b64 exec, 1
    global_atomic_add v3, v1, v2, {sp(sDbg)} offset:252 sc0 sc1
    s_waitcnt vmcnt(0)
    ds_write_b32 v1, v3
    s_waitcnt lgkmcnt(0)
    s_mov_b64 exec, -1
    L_t_{name}:
    s_barrier
    ds_read_b32 v3, v1
    s_waitcnt lgkmcnt(0)
    v_readfirstlane_b32 s{sH}, v3
    s_barrier
    s_cmp_gt_u32 s{sH}, 31
    s_cbranch_scc1 L_done_{name}
    ''')
    chain(a, name, **kw)
    a.label(f'L_done_{name}')
    a('s_endpgm')
    bad = a.check_branches()
    assert bad == 0
    return a

if __name__ == '__main__':
    import sys
    variants = eval(sys.argv[1]) if len(sys.argv) > 1 else [dict()]
    out = ''.join(f'; @launch kernel=c{i}_kernel grid=(256,1,1) block=(256,1,1) lds=163840\n' for i in range(len(variants)))
    out += '.amdgcn_target "amdgcn-amd-amdhsa--gfx950"\n.text\n'
    for i, v in enumerate(variants):
        a = standalone(f'c{i}_kernel', prof=True, **v); out += a.text()
    out += '.section .rodata,"a"\n' + ''.join(kdesc(f'c{i}_kernel') for i in range(len(variants)))
    open('chain.s','w').write(out)
    open('chain.json','w').write(repr(variants))
```

```python
from asmlib import *
import gen_chain as C
from gen_chain import sp, sMem,sWq,sWk,sWv,sWo,sDbg,sWs,sH,sW,sXcc,QSCALE,WS_KVM,f32,WS_FL,FL_K,FL_G,FL_P
import math
NAME = 'gated_mix__memory_aug_recurrent_mem_tr__glu_gated_bilinear__prompt_kernel'
WS_QX = 64<<20; WS_ACT = 128<<20; ACT_T = 180224; WS_F2 = 63<<20
WSPIN = 60000
sGrp = 20; sSpin = 21; sA, sB, sC, sD = 22, 23, 24, 25
sX, sWg, sWu, sWd, sGw, sOut = 30, 32, 34, 36, 38, 40
MF = 'v_mfma_f32_16x16x32_bf16'
X = {}
def NG3(): return X.get('ng3', 4)

def add64(a, d, s, off):
    o = f's{off}' if isinstance(off, str) is False and False else off
    a(f's_add_u32 s{d}, s{s}, {off}\ns_addc_u32 s{d+1}, s{s+1}, 0')

def poll(a, lab, loads, check, sl=8):
    a(f"""
    s_mov_b32 s{sSpin}, 0
    {lab}_p:
    {loads}
    s_add_u32 s{sSpin}, s{sSpin}, 1
    s_cmp_gt_u32 s{sSpin}, {WSPIN}
    s_cbranch_scc1 {lab}_b
    s_waitcnt vmcnt(0)
    {check}
    s_cbranch_vccz {lab}_b
    s_sleep {sl}
    s_branch {lab}_p
    {lab}_b:
    s_waitcnt vmcnt(0)
    """)

class Filt:
    def __init__(s, a): s.__dict__['a'] = a
    def __getattr__(s, k): return getattr(s.a, k)
    def __setattr__(s, k, v): setattr(s.a, k, v)
    def __call__(s, t):
        if t.startswith('global_store_dwordx4 v6'):
            if X.get('nost'): return None
            if X.get('plain'): t = t.replace(' sc1', '')
            if X.get('nt'): t = t.replace(' sc1', ' sc1 nt')
            if X.get('stb'): t = t.replace(' sc1', X['stb'])
        return s.a(t)
def t1(a):
    a = Filt(a)
    sTile, sBuf, sStr, sW0, sW1, sO0, sO1, sBlk, sM, sXb = 44, 45, 46, 48, 50, 52, 54, 56, 57, 58
    sStep, sFo, sFb = 47, 60, 62
    vOne, vFo, vPf, vPr, vRa, vRd, vXr = 14, 15, 7, 128, 129, 130, 131
    XR = 23; NB1 = X.get('nb1', 16)
    ACC = 16; WF = 80; PK = 112
    vLane, vN, vG, vLin, vTr, vRow, vCh, vA, vXo = 3, 4, 5, 6, 8, 10, 11, 12, 13
    acc = lambda T, hf, v: ACC + 16*T + 8*hf + 4*v
    def prefetch(nk=3, st=896):
        a(f'''
        s_sub_u32 s{sA}, s{sGrp}, 1
        s_lshl_b32 s{sB}, s{sH}, 2
        s_add_u32 s{sB}, s{sB}, s{sW}
        s_mul_i32 s{sB}, s{sB}, 7
        s_add_u32 s{sA}, s{sA}, s{sB}
        v_and_b32 v1, 63, v0
        v_lshlrev_b32 v1, 7, v1
        ''')
        for k in range(nk):
            a(f'''
            s_min_u32 s{sA}, s{sA}, 2047
            s_bitcmp1_b32 s{sA}, 9
            s_cselect_b64 {sp(sO0)}, {sp(sWk)}, {sp(sWq)}
            s_cselect_b64 {sp(sO1)}, {sp(sWo)}, {sp(sWv)}
            s_bitcmp1_b32 s{sA}, 10
            s_cselect_b64 {sp(sO0)}, {sp(sO1)}, {sp(sO0)}
            s_and_b32 s{sB}, s{sA}, 511
            s_lshl_b32 s{sB}, s{sB}, 13
            s_add_u32 s{sO0}, s{sO0}, s{sB}
            s_addc_u32 s{sO0+1}, s{sO0+1}, 0
            global_load_dword v{vPf}, v1, {sp(sO0)}{X.get('pfc', '')}
            s_add_u32 s{sA}, s{sA}, {st}
            ''')
    def pfo():
        a(f'''
        s_sub_u32 s{sA}, s{sGrp}, 5
        s_lshl_b32 s{sA}, s{sA}, 7
        s_lshl_b32 s{sB}, s{sH}, 2
        s_add_u32 s{sA}, s{sA}, s{sB}
        s_add_u32 s{sA}, s{sA}, s{sW}
        v_and_b32 v1, 63, v0
        v_lshlrev_b32 v1, 7, v1
        s_cmp_lt_u32 s{sGrp}, 5
        s_cselect_b64 exec, 0, -1
        ''')
        for k in range(2):
            a(f'''
            s_min_u32 s{sA}, s{sA}, 511
            s_lshl_b32 s{sB}, s{sA}, 13
            s_add_u32 s{sO0}, s{sWo}, s{sB}
            s_addc_u32 s{sO0+1}, s{sWo+1}, 0
            global_load_dword v{vPf}, v1, {sp(sO0)}
            s_add_u32 s{sA}, s{sA}, 384
            ''')
        a('s_mov_b64 exec, -1')
    if X.get('pf') == 1: prefetch()
    if X.get('pf') == 5: pfo()
    a(f'''
    s_add_u32 s{sFb}, s{sWs}, {WS_FL}
    s_addc_u32 s{sFb+1}, s{sWs+1}, 0
    v_mov_b32 v{vOne}, 1
    s_cmp_lg_u32 s{sGrp}, 7
    s_cbranch_scc1 Lt1_nz
    s_cmp_gt_u32 s{sH}, 16
    s_cbranch_scc1 Lt1_nz
    s_cmp_eq_u32 s{sH}, 16
    s_cselect_b32 s{sA}, 0, -1
    v_mov_b32 v{PK}, s{sA}
    v_mov_b32 v{PK+1}, s{sA}
    v_mov_b32 v{PK+2}, s{sA}
    v_mov_b32 v{PK+3}, s{sA}
    s_lshl_b32 s{sA}, s{sH}, 15
    s_add_u32 s{sA}, s{sA}, {C.WS_RA}
    s_cmp_eq_u32 s{sH}, 16
    s_cselect_b32 s{sA}, {WS_FL}, s{sA}
    v_lshl_add_u32 v1, v0, 4, s{sA}
    ''')
    for i in range(8):
        a(f'global_store_dwordx4 v1, {vr(PK,4)}, {sp(sWs)} sc1')
        if i < 7: a('v_add_u32 v1, 4096, v1')
    a(f'''
    s_lshl_b32 s{sA}, s{sH}, 10
    s_add_u32 s{sA}, s{sA}, {C.WS_RM}
    v_lshl_add_u32 v1, v0, 2, s{sA}
    global_store_dword v1, v{PK}, {sp(sWs)} sc1
    s_lshl_b32 s{sA}, s{sH}, 2
    s_add_u32 s{sA}, s{sA}, 32
    s_cmp_eq_u32 s{sH}, 16
    s_cselect_b32 s{sA}, 160, s{sA}
    s_add_u32 s{sA}, s{sA}, s{sW}
    v_mov_b32 v1, s{sA}
    s_waitcnt vmcnt(0)
    s_mov_b64 exec, 1
    global_store_byte v1, v{vOne}, {sp(sDbg)} sc1
    s_mov_b64 exec, -1
    Lt1_nz:
    ''')
    if X.get('pf') == 3:
        a(f's_cmp_ge_u32 s{sH}, 21\ns_cbranch_scc1 Lt1_npf')
        prefetch(4, 588)
        a.label('Lt1_npf')
    if X.get('nowork'): a('s_waitcnt vmcnt(0)\ns_endpgm')
    if X.get('only0'): a(f's_waitcnt vmcnt(0)\ns_cmp_lt_u32 s{sH}, 21\ns_cbranch_scc1 L_t1e')
    a(f'''
    v_and_b32 v{vLane}, 63, v0
    v_and_b32 v{vN}, 15, v0
    v_lshrrev_b32 v{vG}, 4, v{vLane}
    v_lshlrev_b32 v{vLin}, 4, v{vLane}
    s_sub_u32 s{sB}, s{sGrp}, 5
    s_sub_u32 s{sA}, s{sH}, {NB1}
    s_and_b32 s{sBlk}, s{sA}, 1
    s_add_u32 s{sBlk}, s{sBlk}, 2
    s_lshr_b32 s{sA}, s{sA}, 1
    s_cmp_lt_u32 s{sH}, {NB1}
    s_cselect_b32 s{sBlk}, 1, s{sBlk}
    s_cselect_b32 s{sA}, s{sH}, s{sA}
    s_cselect_b32 s{sStep}, {NB1}, {(32-NB1)//2}
    s_mul_i32 s{sTile}, s{sB}, s{sStep}
    s_add_u32 s{sTile}, s{sTile}, s{sA}
    s_mul_i32 s{sStep}, s{sStep}, 3
    s_lshl_b32 s{sA}, s{sGrp}, 5
    s_add_u32 s{sA}, s{sA}, s{sH}
    s_sub_u32 s{sA}, s{sA}, 32
    s_cmp_lt_u32 s{sGrp}, 5
    s_cselect_b32 s{sBlk}, 0, s{sBlk}
    s_cselect_b32 s{sTile}, s{sA}, s{sTile}
    s_cselect_b32 s{sStep}, 128, s{sStep}
    ; W prefetch rows: 32*((4*(blk-1)+w)&15) + lane%32
    s_lshl_b32 s{sA}, s{sBlk}, 2
    s_add_u32 s{sA}, s{sA}, s{sW}
    s_and_b32 s{sA}, s{sA}, 7
    s_lshl_b32 s{sA}, s{sA}, 6
    v_add_u32 v{vPr}, s{sA}, v{vLane}
    ; DMA lane: row = l/4 + 128w ; chunk = (l%4) ^ (2*bit5)
    v_lshrrev_b32 v{vRow}, 2, v{vLane}
    s_lshl_b32 s{sA}, s{sW}, 7
    v_add_u32 v{vRow}, s{sA}, v{vRow}
    v_lshrrev_b32 v{vCh}, 4, v{vLane}
    v_and_b32 v{vCh}, 2, v{vCh}
    v_xor_b32 v{vCh}, v{vCh}, v{vLane}
    v_and_b32 v{vCh}, 3, v{vCh}
    v_lshlrev_b32 v{vCh}, 4, v{vCh}
    s_mov_b32 s{sBuf}, 0
    ''')
    def wsrc(tag, tile):
        a(f'''
        s_cmp_ge_u32 s{tile}, 192
        s_cbranch_scc1 Lt1_{tag}_gu
        s_lshr_b32 s{sA}, s{tile}, 6
        s_cmp_eq_u32 s{sA}, {X.get('vf', 0)}
        s_cselect_b64 {sp(sW0)}, {sp(sWk)}, {sp(sWv)}
        s_cmp_eq_u32 s{sA}, 2
        s_cselect_b64 {sp(sW0)}, {sp(sWq)}, {sp(sW0)}
        s_and_b32 s{sA}, s{tile}, 63
        s_lshl_b32 s{sA}, s{sA}, 7
        s_add_u32 s{sW0}, s{sW0}, s{sA}
        s_addc_u32 s{sW0+1}, s{sW0+1}, 0
        s_add_u32 s{sW1}, s{sW0}, 64
        s_addc_u32 s{sW1+1}, s{sW0+1}, 0
        s_mov_b32 s{sStr}, 8192
        s_branch Lt1_{tag}_e
        Lt1_{tag}_gu:
        s_min_u32 s{sA}, s{tile}, 234
        s_sub_u32 s{sA}, s{sA}, 192
        s_lshl_b32 s{sA}, s{sA}, 6
        s_add_u32 s{sW0}, s{sWg}, s{sA}
        s_addc_u32 s{sW0+1}, s{sWg+1}, 0
        s_add_u32 s{sW1}, s{sWu}, s{sA}
        s_addc_u32 s{sW1+1}, s{sWu+1}, 0
        s_mov_b32 s{sStr}, 2752
        Lt1_{tag}_e:
        v_mad_u32_u24 v{vA}, v{vRow}, s{sStr}, v{vCh}
        s_lshl_b32 s{sStr}, s{sStr}, 4
        ''')
    def dma(i):
        r = [f's_add_u32 m0, s{sM}, {i*1024}', f'global_load_lds_dwordx4 v{vA}, {sp(sW0)}',
             f's_add_u32 m0, s{sM}, {32768+i*1024}', f'global_load_lds_dwordx4 v{vA}, {sp(sW1)}']
        if i < 7: r.append(f'v_add_u32 v{vA}, s{sStr}, v{vA}')
        return r
    a.label('Lt1_job')
    wsrc('p', sTile)
    a(f's_lshl_b32 s{sM}, s{sW}, 13')
    for i in range(8):
        for x in dma(i): a(x)
    a(f'''
    s_lshl_b32 s{sA}, s{sBlk}, 18
    s_lshl_b32 s{sB}, s{sW}, 16
    s_add_u32 s{sA}, s{sA}, s{sB}
    s_add_u32 s{sXb}, s{sX}, s{sA}
    s_addc_u32 s{sXb+1}, s{sX+1}, 0
    s_mul_i32 s{sD}, s{sW}, {XR*1040}
    s_add_u32 s{sD}, s{sD}, 65536
    v_mov_b32 v{vXo}, v{vLin}
    v_mul_u32_u24 v{vXr}, 1040, v{vN}
    v_lshl_add_u32 v{vXr}, v{vG}, 4, v{vXr}
    v_add_u32 v{vXr}, s{sD}, v{vXr}
    ''')
    xt = {}
    def xdma(r):
        a(f's_add_u32 m0, s{sD}, {(r%XR)*1040 - (r%4)*1024}')
        xt[r] = a(f'global_load_lds_dwordx4 v{vXo}, {sp(sXb)} offset:{(r%4)*1024}')
        if r % 4 == 3: a(f'v_add_u32 v{vXo}, 4096, v{vXo}')
    for r in range(XR): xdma(r)
    if X.get('pf') == 2: prefetch()
    if X.get('pf') == 4: pfo()
    nx = XR
    for T in range(4):
        b = (16*T) % XR
        a(f'v_add_u32 v1, {b*1040}, v{vXr}')
        if b + 16 > XR: a(f'v_cmp_le_u32 vcc, {XR-b}, v{vN}\nv_subrev_u32 v2, {XR*1040}, v1\nv_cndmask_b32 v1, v1, v2, vcc')
        a.wvm(xt[16*T+15])
        for ks in range(16): a(f'ds_read_b128 {vr(64*T+4*ks,4,"a")}, v1 offset:{ks*64}')
        if nx < 64:
            a('s_waitcnt lgkmcnt(0)')
            for r in range(nx, min(nx+16, 64)): xdma(r)
            nx = min(nx+16, 64)
    a(f'''
    v_lshlrev_b32 v{vTr}, 9, v{vG}
    v_and_b32 v1, 12, v{vLane}
    v_lshl_add_u32 v{vTr}, v1, 4, v{vTr}
    v_and_b32 v1, 3, v{vLane}
    v_lshl_add_u32 v{vTr}, v1, 3, v{vTr}
    v_and_b32 v1, 1, v{vG}
    v_lshl_add_u32 v{vTr}, v1, 5, v{vTr}
    v_xor_b32 v{vTr+1}, 32, v{vTr}
    ''')
    a(f'''
    v_mov_b32 v{vFo}, {FL_G+1536}
    s_mov_b64 {sp(sFo)}, 0
    v_mov_b32 v{vRa}, 160
    v_mov_b32 v{vRd}, 0x01010101
    s_cmp_lg_u32 s{sW}, 0
    s_cbranch_scc1 Lt1_n0
    global_load_dword v{vRd}, v{vRa}, {sp(sDbg)} sc1
    Lt1_n0:
    s_waitcnt lgkmcnt(0)
    s_barrier
    ''')
    if C.TL:
        a(f's_cmp_ge_u32 s{sBlk}, 4\ns_cbranch_scc1 Lt1_tile')
        C.tl(a, 1, 1, f's{sGrp}')
    a.label('Lt1_tile')
    if X.get('wpf', 1):
        a(f's_lshl_b32 s{sD}, s{sStep}, 1\ns_add_u32 s{sD}, s{sD}, s{sTile}')
        wsrc('f', sD)
        a(f'''
        s_lshr_b32 s{sStr}, s{sStr}, 4
        v_mul_u32_u24 v1, s{sStr}, v{vPr}
        global_load_dword v{vPf}, v1, {sp(sW0)}
        global_load_dword v{vPf}, v1, {sp(sW1)}
        ''')
    a(f's_add_u32 s{sD}, s{sTile}, s{sStep}')
    wsrc('n', sD)
    a(f's_xor_b32 s{sM}, s{sM}, 65536')
    a(f'''
    s_lshr_b32 s{sA}, s{sTile}, 6
    s_cmp_eq_u32 s{sA}, {1-X.get('vf', 0)}
    s_cbranch_scc1 Lt1_mv
    ''')
    def frags(ks):
        return [f'ds_read_b64_tr_b16 {vr(WF+16*(ks%2)+8*hf+4*v+2*q,2)}, v{vTr+v} offset:{hf*32768+ks*2048+q*256}'
                for hf in range(2) for v in range(2) for q in range(2)]
    def flag(n):
        a(f's_waitcnt vmcnt({n})\ns_mov_b64 exec, {sp(sFo)}\nglobal_store_byte v{vFo}, v{vOne}, {sp(sFb)} sc1\ns_mov_b64 exec, -1')
    def mainloop(swap):
        a.nds = 0
        tg = None
        for x in frags(0): tg = a(x)
        for ks in range(16):
            fill = (frags(ks+1) if ks < 15 else [])
            d = (dma(2*ks) + dma(2*ks+1)) if ks < 4 and not X.get('nodma') else []
            a.wds(tg)
            if ks == X.get('fks', 8): flag(16 + 2*X.get('wpf', 1))
            n = 0
            for hf in range(2):
                for v in range(2):
                    for T in range(4):
                        w_ = vr(WF+16*(ks%2)+8*hf+4*v,4); x_ = vr(64*T+4*ks,4,'a'); c = vr(acc(T,hf,v),4)
                        p, q = (w_, x_) if swap else (x_, w_)
                        a(f'{MF} {c}, {p}, {q}, {c if ks else 0}')
                        if fill and n < 8: tg = a(fill.pop(0))
                        elif d:
                            a(d.pop(0))
                            if d and d[0].startswith('global'): a(d.pop(0))
                        n += 1
            assert not fill and not d
        a(f'''
        v_xor_b32 v{vTr}, 0x10000, v{vTr}
        v_xor_b32 v{vTr+1}, 0x10000, v{vTr+1}
        s_waitcnt vmcnt(0)
        v_cmp_ne_u32 vcc, 0x01010101, v{vRd}
        s_cbranch_vccz Lt1_rd{int(swap)}
        ''')
        poll(a, f'Lt1_r{int(swap)}', f'global_load_dword v{vRd}, v{vRa}, {sp(sDbg)} sc1', f'v_cmp_ne_u32 vcc, 0x01010101, v{vRd}', 8)
        a(f'Lt1_rd{int(swap)}:\ns_barrier')
    def kvbase(base):
        a(f'''
        s_lshl_b32 s{sA}, s{sBlk}, 21
        s_lshl_b32 s{sB}, s{sW}, 19
        s_add_u32 s{sA}, s{sA}, s{sB}
        s_and_b32 s{sB}, s{sTile}, 63
        s_lshl_b32 s{sB}, s{sB}, 12
        s_add_u32 s{sA}, s{sA}, s{sB}
        s_add_u32 s{sA}, s{sA}, {base}
        s_add_u32 s{sO0}, s{sWs}, s{sA}
        s_addc_u32 s{sO0+1}, s{sWs+1}, 0
        s_add_u32 s{sO1}, s{sO0}, {C.KST}
        s_addc_u32 s{sO1+1}, s{sO0+1}, 0
        ''')
    def pack(d, c0, c1):
        a(f'v_cvt_pk_bf16_f32 v{d}, v{c0}, v{c0+1}\nv_cvt_pk_bf16_f32 v{d+1}, v{c0+2}, v{c0+3}')
        a(f'v_cvt_pk_bf16_f32 v{d+2}, v{c1}, v{c1+1}\nv_cvt_pk_bf16_f32 v{d+3}, v{c1+2}, v{c1+3}')
    mainloop(True)
    a(f'''
    s_cmp_ge_u32 s{sTile}, 192
    s_cbranch_scc1 Lt1_eg
    s_mov_b32 s{sC}, 0
    s_cmp_lt_u32 s{sTile}, 128
    s_cbranch_scc1 Lt1_ek
    s_mov_b32 s{sC}, {QSCALE}
    ''')
    for r in range(64): a(f'v_mul_f32 v{ACC+r}, s{sC}, v{ACC+r}')
    a(f's_mov_b32 s{sC}, {WS_QX}')
    a.label('Lt1_ek')
    kvbase(f's{sC}')
    i = 0
    for T in range(4):
        for hf in range(2):
            d = PK + 4*(i%4); i += 1
            pack(d, acc(T,hf,0), acc(T,hf,1))
            a(f'global_store_dwordx4 v{vLin}, {vr(d,4)}, {sp(sO1 if T//2 else sO0)} offset:{hf*2048+(T%2)*1024} sc1')
    a('s_branch Lt1_next')
    a.label('Lt1_eg')
    a(f'''
    s_lshl_b32 s{sA}, s{sBlk}, 4
    s_lshl_b32 s{sB}, s{sW}, 2
    s_add_u32 s{sA}, s{sA}, s{sB}
    s_mul_i32 s{sA}, s{sA}, {ACT_T}
    s_sub_u32 s{sB}, s{sTile}, 64
    s_lshl_b32 s{sB}, s{sB}, 10
    s_add_u32 s{sA}, s{sA}, s{sB}
    s_add_u32 s{sA}, s{sA}, {WS_ACT}
    s_add_u32 s{sO0}, s{sWs}, s{sA}
    s_addc_u32 s{sO0+1}, s{sWs+1}, 0
    ''')
    for T in range(4):
        for r in range(8): a(f'v_mul_f32 v{acc(T,0,0)+r}, v{acc(T,0,0)+r}, v{acc(T,1,0)+r}')
        d = PK + 4*T
        pack(d, acc(T,0,0), acc(T,0,1))
        a(f'global_store_dwordx4 v{vLin}, {vr(d,4)}, {sp(sO0)} sc1')
        if T < 3: a(f's_add_u32 s{sO0}, s{sO0}, {ACT_T}\ns_addc_u32 s{sO0+1}, s{sO0+1}, 0')
    a('s_branch Lt1_next')
    a.label('Lt1_mv')
    mainloop(False)
    kvbase(C.WS_V)
    i = 0
    for s_ in range(2):
        for hf in range(2):
            for u in range(2):
                d = PK + 4*(i%4); i += 1
                pack(d, acc(2*s_,hf,u), acc(2*s_+1,hf,u))
                a(f'global_store_dwordx4 v{vLin}, {vr(d,4)}, {sp(sO1 if s_ else sO0)} offset:{hf*2048+u*1024} sc1')
    a.label('Lt1_next')
    a(f'''
    s_lshl_b32 s{sA}, s{sBlk}, 2
    s_add_u32 s{sA}, s{sA}, s{sW}
    s_lshl_b32 s{sB}, s{sTile}, 5
    s_add_u32 s{sB}, s{sB}, s{sA}
    s_add_u32 s{sB}, s{sB}, {FL_G-192*32}
    s_lshl_b32 s{sA}, s{sA}, 3
    s_bfe_u32 s{sC}, s{sTile}, 0x50001
    s_lshl_b32 s{sC}, s{sC}, 8
    s_add_u32 s{sA}, s{sA}, s{sC}
    s_lshr_b32 s{sC}, s{sTile}, 6
    s_lshl_b32 s{sC}, s{sC}, 1
    s_add_u32 s{sA}, s{sA}, s{sC}
    s_and_b32 s{sC}, s{sTile}, 1
    s_add_u32 s{sA}, s{sA}, s{sC}
    s_add_u32 s{sA}, s{sA}, {FL_K}
    s_cmp_ge_u32 s{sTile}, 192
    s_cselect_b32 s{sA}, s{sB}, s{sA}
    v_mov_b32 v{vFo}, s{sA}
    s_mov_b64 {sp(sFo)}, 1
    ''')
    if X.get('ef', 1):
        a(f's_cmp_ge_u32 s{sBlk}, {X.get("ef", 1)}\ns_cbranch_scc1 Lt1_nef\ns_add_u32 s{sA}, s{sTile}, s{sStep}\ns_sub_u32 s{sA}, s{sA}, 128\ns_cmp_ge_u32 s{sA}, s{sStep}\ns_cbranch_scc1 Lt1_nef')
        flag(0)
        a(f's_mov_b64 {sp(sFo)}, 0\nLt1_nef:')
    if C.TL:
        a(f's_cmp_ge_u32 s{sTile}, 128\ns_cbranch_scc1 Lt1_ntl\ns_cmp_ge_u32 s{sBlk}, 2\ns_cbranch_scc1 Lt1_ntl')
        C.tl(a, 2, 1, f's{sGrp}')
        a.label('Lt1_ntl')
    a(f'''
    s_add_u32 s{sTile}, s{sTile}, s{sStep}
    s_cmp_lt_u32 s{sTile}, 235
    s_cbranch_scc1 Lt1_tile
    ''')
    flag(0)
    a(f'''
    s_cmp_lg_u32 s{sBlk}, 0
    s_cbranch_scc1 Lt1_end
    s_and_b32 s{sBlk}, s{sH}, 3
    s_add_u32 s{sBlk}, s{sBlk}, 4
    s_lshl_b32 s{sTile}, s{sGrp}, 3
    s_lshr_b32 s{sA}, s{sH}, 2
    s_add_u32 s{sTile}, s{sTile}, s{sA}
    s_sub_u32 s{sTile}, s{sTile}, 8
    s_mov_b32 s{sStep}, 32
    s_branch Lt1_job
    Lt1_end:
    ''')
    C.tl(a, 3, 1, f's{sGrp}')

def t2(a):
    sT, sHd, sK, sQ, sKM, sO, sFl, sMk, sF2, sV = 44, 45, 46, 48, 50, 52, 54, 56, 64, 66
    vLane, vN, vG, vLin, vKw, vKr, vL2, vNeg = 3, 4, 5, 6, 7, 8, 9, 10
    Q, KX, VX, KM, KT, S, O, P = 16, 48, 80, 112, 128, 144, 176, 240
    DP = 'row_mask:0xf bank_mask:0xf'
    a(f'''
    s_sub_u32 s{sT}, s{sGrp}, {NG3()+1}
    s_lshl_b32 s{sT}, s{sT}, 2
    s_lshr_b32 s{sA}, s{sH}, 3
    s_add_u32 s{sT}, s{sT}, s{sA}
    s_and_b32 s{sHd}, s{sH}, 7
    s_lshl_b32 s{sHd}, s{sHd}, 2
    s_add_u32 s{sHd}, s{sHd}, s{sW}
    s_lshl_b32 s{sA}, s{sW}, 12
    v_lshlrev_b32 v{vKw}, 5, v{vN}
    v_lshl_add_u32 v{vKw}, v{vG}, 3, v{vKw}
    v_add_u32 v{vKw}, s{sA}, v{vKw}
    v_lshlrev_b32 v{vKr}, 3, v{vLane}
    v_add_u32 v{vKr}, s{sA}, v{vKr}
    v_mov_b32 v{vNeg}, 0xff800000
    v_lshlrev_b32 v1, 2, v{vG}
    s_lshl_b32 s{sA}, s{sHd}, 7
    s_add_u32 s{sA}, s{sA}, {WS_FL+FL_P}
    s_add_u32 s{sFl}, s{sWs}, s{sA}
    s_addc_u32 s{sFl+1}, s{sWs+1}, 0
    ''')
    for r in range(4):
        a(f'v_add_u32 v2, {r}, v1\nv_cmp_le_u32 {sp(sMk+2*r)}, v2, v{vN}')
    a(f'''
    s_lshl_b32 s{sA}, s{sHd}, 8
    s_add_u32 s{sA}, s{sA}, {WS_FL+FL_K}
    v_lshl_add_u32 v1, v{vLane}, 2, s{sA}
    v_and_b32 v{Q}, 1, v{vLane}
    v_mul_u32_u24 v{Q}, 0x0101, v{Q}
    v_lshlrev_b32 v{Q}, 16, v{Q}
    s_barrier
    ''')
    poll(a, 'Lt2_w', f'global_load_dword v2, v1, {sp(sWs)} sc1', f'v_or_b32 v2, v2, v{Q}\nv_cmp_ne_u32 vcc, 0x01010101, v2', 32)
    C.tl(a, 4, 1, f's{sGrp}')
    a.label('Lt2_seg')
    a(f'''
    s_lshl_b32 s{sA}, s{sT}, 5
    s_add_u32 s{sA}, s{sA}, s{sHd}
    s_lshl_b32 s{sB}, s{sA}, 13
    s_add_u32 s{sB}, s{sB}, 4096
    s_add_u32 s{sK}, s{sWs}, s{sB}
    s_addc_u32 s{sK+1}, s{sWs+1}, 0
    s_add_u32 s{sQ}, s{sK}, {WS_QX}
    s_addc_u32 s{sQ+1}, s{sK+1}, 0
    s_add_u32 s{sV}, s{sK}, {C.WS_V}
    s_addc_u32 s{sV+1}, s{sK+1}, 0
    s_lshl_b32 s{sB}, s{sA}, 12
    s_add_u32 s{sB}, s{sB}, {WS_KVM}
    s_add_u32 s{sKM}, s{sWs}, s{sB}
    s_addc_u32 s{sKM+1}, s{sWs+1}, 0
    s_lshl_b32 s{sB}, s{sA}, 2
    s_add_u32 s{sB}, s{sB}, {WS_F2}
    s_add_u32 s{sF2}, s{sWs}, s{sB}
    s_addc_u32 s{sF2+1}, s{sWs+1}, 0
    s_mul_i32 s{sB}, s{sT}, {2*ACT_T}
    s_lshl_b32 s{sC}, s{sHd}, 12
    s_add_u32 s{sB}, s{sB}, s{sC}
    s_add_u32 s{sB}, s{sB}, {WS_ACT}
    s_add_u32 s{sO}, s{sWs}, s{sB}
    s_addc_u32 s{sO+1}, s{sWs+1}, 0
    ''')
    a.nvm = 0; tq = {}
    for w in range(4):
        for T in range(2):
            va = vLin; off = w*2048 - 4096
            a(f'global_load_dwordx4 {vr(Q+8*w+4*T,4)}, v{va}, {sp(sQ)} offset:{off+T*1024} sc1')
            tq[w] = a(f'global_load_dwordx4 {vr(KX+8*w+4*T,4)}, v{va}, {sp(sK)} offset:{off+T*1024} sc1')
    for w in range(4):
        for u in range(2):
            va = vLin; off = w*2048 - 4096
            a(f'global_load_dwordx4 {vr(VX+8*w+4*u,4)}, v{va}, {sp(sV)} offset:{off+u*1024} sc1')
    S00, S01, S11, M0, M1 = S, S+4, S+8, S+12, S+16
    for w in range(4):
        a.wvm(tq[w])
        for (d, tk, tq_) in ((S00,0,0),(S01,0,1),(S11,1,1)):
            a(f'{MF} {vr(d,4)}, {vr(KX+8*w+4*tk,4)}, {vr(Q+8*w+4*tq_,4)}, {vr(d,4) if w else 0}')
    for r in range(4):
        a(f'v_cndmask_b32 v{S00+r}, v{vNeg}, v{S00+r}, {sp(sMk+2*r)}')
        a(f'v_cndmask_b32 v{S11+r}, v{vNeg}, v{S11+r}, {sp(sMk+2*r)}')
    mx0, mx1, t0, t1_ = S+20, S+21, S+22, S+23
    a(f'''
    v_max3_f32 v{mx0}, v{S00}, v{S00+1}, v{S00+2}
    v_max_f32 v{mx0}, v{mx0}, v{S00+3}
    v_max3_f32 v{mx1}, v{S01}, v{S01+1}, v{S01+2}
    v_max3_f32 v{mx1}, v{mx1}, v{S01+3}, v{S11}
    v_max3_f32 v{mx1}, v{mx1}, v{S11+1}, v{S11+2}
    v_max_f32 v{mx1}, v{mx1}, v{S11+3}
    s_add_u32 s{sA}, s{sT}, 2
    v_mov_b32 v1, 0
    s_mov_b32 s{sSpin}, 0
    Lt2_p:
    global_load_dword v2, v1, {sp(sFl)} sc1
    s_add_u32 s{sSpin}, s{sSpin}, 1
    s_cmp_gt_u32 s{sSpin}, {WSPIN}
    s_cbranch_scc1 Lt2_go
    s_waitcnt vmcnt(0)
    v_cmp_le_u32 vcc, s{sA}, v2
    s_cbranch_vccnz Lt2_go
    s_sleep 4
    s_branch Lt2_p
    Lt2_go:
    ''')
    for w in range(4): a(f'global_load_dwordx4 {vr(KM+4*w,4)}, v{vLin}, {sp(sKM)} offset:{w*1024} sc1')
    a('s_waitcnt vmcnt(0)')
    for w in range(4):
        for u in range(2): a(f'ds_write_b32 v{vKw}, v{KM+4*w+u} offset:{w*1024+u*512}')
    a('s_waitcnt lgkmcnt(0)')
    for w in range(4):
        for v in range(2): a(f'ds_read_b64_tr_b16 {vr(KT+4*w+2*v,2)}, v{vKr} offset:{w*1024+v*512}')
    a('s_waitcnt lgkmcnt(0)')
    for w in range(4):
        for T, d in ((0,M0),(1,M1)):
            a(f'{MF} {vr(d,4)}, {vr(KT+4*w,4)}, {vr(Q+8*w+4*T,4)}, {vr(d,4) if w else 0}')
    def xred(op, x, y):
        a(f'''
        v_mov_b32 v{t0}, v{x}
        v_mov_b32 v{t1_}, v{y}
        v_permlane16_swap_b32 v{x}, v{t0}
        v_permlane16_swap_b32 v{y}, v{t1_}
        {op} v{x}, v{x}, v{t0}
        {op} v{y}, v{y}, v{t1_}
        v_mov_b32 v{t0}, v{x}
        v_mov_b32 v{t1_}, v{y}
        v_permlane32_swap_b32 v{x}, v{t0}
        v_permlane32_swap_b32 v{y}, v{t1_}
        {op} v{x}, v{x}, v{t0}
        {op} v{y}, v{y}, v{t1_}
        ''')
    a(f'v_max3_f32 v{mx0}, v{mx0}, v{M0}, v{M0+1}\nv_max3_f32 v{mx1}, v{mx1}, v{M1}, v{M1+1}')
    xred('v_max_f32', mx0, mx1)
    e0 = [S00+r for r in range(4)] + [M0, M0+1]; e1 = [S01+r for r in range(8)] + [M1, M1+1]
    for r in e0: a(f'v_sub_f32 v{r}, v{r}, v{mx0}')
    for r in e1: a(f'v_sub_f32 v{r}, v{r}, v{mx1}')
    for r in e0 + e1: a(f'v_exp_f32 v{r}, v{r}')
    P0, P1, Z0, Z1 = P, P+4, P+8, P+12
    a(f'''
    v_cvt_pk_bf16_f32 v{P0}, v{S00}, v{S00+1}
    v_cvt_pk_bf16_f32 v{P0+1}, v{S00+2}, v{S00+3}
    v_mov_b64 {vr(P0+2,2)}, 0
    v_cvt_pk_bf16_f32 v{P1}, v{S01}, v{S01+1}
    v_cvt_pk_bf16_f32 v{P1+1}, v{S01+2}, v{S01+3}
    v_cvt_pk_bf16_f32 v{P1+2}, v{S11}, v{S11+1}
    v_cvt_pk_bf16_f32 v{P1+3}, v{S11+2}, v{S11+3}
    v_cvt_pk_bf16_f32 v{Z0}, v{M0}, v{M0+1}
    v_mov_b32 v{Z0+1}, 0
    v_mov_b32 v{Z0+2}, 0
    v_mov_b32 v{Z0+3}, v{Z0}
    v_cvt_pk_bf16_f32 v{Z1}, v{M1}, v{M1+1}
    v_mov_b32 v{Z1+1}, 0
    v_mov_b32 v{Z1+2}, 0
    v_mov_b32 v{Z1+3}, v{Z1}
    ''')
    oa = lambda T, w, u: O + 32*T + 8*w + 4*u
    for T in range(2):
        for w in range(4):
            for u in range(2):
                a(f'{MF} {vr(oa(T,w,u),4)}, {vr(VX+8*w+4*u,4)}, {vr(P+4*T,4)}, 0')
    for T in range(2):
        for w in range(4):
            for u in range(2):
                a(f'v_mfma_f32_16x16x16_bf16 {vr(oa(T,w,u),4)}, {vr(KM+4*w+2,2)}, {vr(Z0+4*T+2*u,2)}, {vr(oa(T,w,u),4)}')
    for e in (e0, e1):
        for r in e[1:]: a(f'v_add_f32 v{e[0]}, v{e[0]}, v{r}')
    xred('v_add_f32', e0[0], e1[0])
    a(f'v_rcp_f32 v{e0[0]}, v{e0[0]}\nv_rcp_f32 v{e1[0]}, v{e1[0]}')
    for T in range(2):
        l = (e0, e1)[T][0]
        for w in range(4):
            b = oa(T,w,0)
            for r in range(8): a(f'v_mul_f32 v{b+r}, v{b+r}, v{l}')
            for r in range(4): a(f'v_cvt_pk_bf16_f32 v{b+r}, v{b+2*r}, v{b+2*r+1}')
            a(f'global_store_dwordx4 v{vLin}, {vr(b,4)}, {sp(sO)} offset:{w*1024} sc1')
        if T == 0: a(f's_add_u32 s{sO}, s{sO}, {ACT_T}\ns_addc_u32 s{sO+1}, s{sO+1}, 0')
    a(f'''
    v_mov_b32 v2, 1
    s_waitcnt vmcnt(0)
    s_mov_b64 exec, 1
    global_store_dword v1, v2, {sp(sF2)} sc1
    s_mov_b64 exec, -1
    s_add_u32 s{sT}, s{sT}, {4*(7-NG3())}
    s_cmp_lt_u32 s{sT}, 64
    s_cbranch_scc1 Lt2_seg
    ''')

def t3(a):
    sTau, sAo, sAh, sXa, sF2, sOo, sLb, sTm, sRb = 44, 46, 48, 50, 52, 54, 56, 58, 60
    vLane, vN, vG, vLin, vD, vTr, vXo, vFl, vRs, vOo = 3, 4, 5, 6, 7, 8, 9, 10, 11, 12
    AC = 16; GW = 32; XB = 48; HB = 64; OB = 128; R = 108
    a(f'''
    s_lshl_b32 s{sLb}, s{sW}, 15
    ; DMA lane: row = l/2, chunk = l%2 ; row stride 1024
    v_lshrrev_b32 v{vD}, 1, v{vLane}
    v_lshlrev_b32 v{vD}, 10, v{vD}
    v_and_b32 v1, 1, v{vLane}
    v_lshl_add_u32 v{vD}, v1, 4, v{vD}
    s_lshl_b32 s{sA}, s{sH}, 5
    v_add_u32 v{vD}, s{sA}, v{vD}
    v_lshlrev_b32 v{vTr}, 3, v{vLane}
    v_add_u32 v{vTr}, s{sLb}, v{vTr}
    s_lshl_b32 s{sA}, s{sW}, 20
    s_add_u32 s{sTm}, s{sWo}, s{sA}
    s_addc_u32 s{sTm+1}, s{sWo+1}, 0
    s_barrier
    ''')
    for b in range(32):
        a(f's_add_u32 m0, s{sLb}, {b*1024}\nglobal_load_lds_dwordx4 v{vD}, {sp(sTm)}')
        a(f's_add_u32 s{sTm}, s{sTm}, 32768\ns_addc_u32 s{sTm+1}, s{sTm+1}, 0')
    a(f'''
    v_lshlrev_b32 v1, 4, v{vG}
    s_lshl_b32 s{sA}, s{sW}, 8
    v_add_u32 v1, s{sA}, v1
    v_lshl_add_u32 v{vXo}, v{vN}, 10, v1
    ''')
    for k in range(4): a(f'global_load_dwordx4 {vr(GW+4*k,4)}, v1, {sp(sGw)} offset:{64*k}')
    a('s_waitcnt vmcnt(0)')
    for b in range(32):
        for v in range(2): a(f'ds_read_b64_tr_b16 {vr(4*b+2*v,2,"a")}, v{vTr} offset:{b*1024+v*512}')
    a(f'''
    s_mul_i32 s{sRb}, s{sW}, 11
    s_cmp_eq_u32 s{sW}, 3
    s_subb_u32 s{sRb}, s{sRb}, 0
    s_lshl_b32 s{sA}, s{sRb}, 15
    s_add_u32 s{sTm}, s{sWd}, s{sA}
    s_addc_u32 s{sTm+1}, s{sWd+1}, 0
    s_waitcnt lgkmcnt(0)
    ''')
    for b in range(11):
        a(f's_add_u32 m0, s{sLb}, {b*1024}\nglobal_load_lds_dwordx4 v{vD}, {sp(sTm)}')
        if b < 10: a(f's_add_u32 s{sTm}, s{sTm}, 32768\ns_addc_u32 s{sTm+1}, s{sTm+1}, 0')
    a('s_waitcnt vmcnt(0)')
    for b in range(11):
        for v in range(2): a(f'ds_read_b64_tr_b16 {vr(128+4*b+2*v,2,"a")}, v{vTr} offset:{b*1024+v*512}')
    a(f'''
    s_waitcnt lgkmcnt(0)
    s_cmp_lg_u32 s{sW}, 3
    s_cbranch_scc1 Lt3_nz
    ''')
    for r in range(4): a(f'v_accvgpr_write_b32 a{128+r}, 0')
    a(f'''
    Lt3_nz:
    s_sub_u32 s{sTau}, s{sGrp}, 1
    v_and_b32 v{vFl}, 7, v{vLane}
    v_lshlrev_b32 v{vFl}, 2, v{vFl}
    s_lshl_b32 s{sA}, s{sW}, 5
    v_add_u32 v{vFl}, s{sA}, v{vFl}
    s_mul_i32 s{sA}, s{sW}, 3072
    v_add_u32 v{vRs}, s{sA}, v{vLin}
    v_lshlrev_b32 v{vOo}, 10, v{vN}
    v_lshl_add_u32 v{vOo}, v{vG}, 3, v{vOo}
    s_lshl_b32 s{sA}, s{sH}, 5
    v_add_u32 v{vOo}, s{sA}, v{vOo}
    ''')
    a(f'v_add_u32 v1, {WS_FL+FL_G}, v{vLin}\ns_cmp_lg_u32 s{sW}, 0\ns_cbranch_scc1 Lt3_w_b')
    poll(a, 'Lt3_w', f'global_load_dwordx4 {vr(HB,4)}, v1, {sp(sWs)} sc1\nglobal_load_dwordx4 {vr(HB+4,4)}, v1, {sp(sWs)} offset:352 sc1',
         '\n'.join([f'v_and_b32 v{HB}, v{HB}, v{HB+i}' for i in range(1,8)]) + f'\nv_cmp_ne_u32 vcc, 0x01010101, v{HB}', 64)
    a('s_barrier')
    C.tl(a, 4, 1, f's{sGrp}')
    a.label('Lt3_tile')
    a(f'''
    s_mul_i32 s{sA}, s{sTau}, {ACT_T}
    s_add_u32 s{sA}, s{sA}, {WS_ACT+4096}
    s_lshl_b32 s{sB}, s{sW}, 15
    s_add_u32 s{sB}, s{sB}, s{sA}
    s_add_u32 s{sAo}, s{sWs}, s{sB}
    s_addc_u32 s{sAo+1}, s{sWs+1}, 0
    s_lshl_b32 s{sB}, s{sRb}, 10
    s_add_u32 s{sB}, s{sB}, s{sA}
    s_add_u32 s{sB}, s{sB}, {128*1024}
    s_add_u32 s{sAh}, s{sWs}, s{sB}
    s_addc_u32 s{sAh+1}, s{sWs+1}, 0
    s_lshl_b32 s{sA}, s{sTau}, 14
    s_add_u32 s{sXa}, s{sX}, s{sA}
    s_addc_u32 s{sXa+1}, s{sX+1}, 0
    s_add_u32 s{sOo}, s{sOut}, s{sA}
    s_addc_u32 s{sOo+1}, s{sOut+1}, 0
    s_lshr_b32 s{sA}, s{sTau}, 1
    s_lshl_b32 s{sA}, s{sA}, 7
    s_add_u32 s{sA}, s{sA}, {WS_F2}
    s_add_u32 s{sF2}, s{sWs}, s{sA}
    s_addc_u32 s{sF2+1}, s{sWs+1}, 0
    ''')
    for k in range(4): a(f'global_load_dwordx4 {vr(XB+4*k,4)}, v{vXo}, {sp(sXa)} offset:{64*k}')
    for b in range(11):
        if b == 8: a(f's_add_u32 s{sAh}, s{sAh}, 8192\ns_addc_u32 s{sAh+1}, s{sAh+1}, 0')
        a(f'global_load_dwordx4 {vr(HB+4*b,4)}, v{vLin}, {sp(sAh)} offset:{(b%8)*1024-4096} sc1')
    a(f'''
    s_mov_b32 s{sSpin}, 0
    Lt3_p:
    global_load_dword v2, v{vFl}, {sp(sF2)} sc1
    s_add_u32 s{sSpin}, s{sSpin}, 1
    s_cmp_gt_u32 s{sSpin}, {WSPIN}
    s_cbranch_scc1 Lt3_go
    s_waitcnt vmcnt(0)
    v_cmp_ne_u32 vcc, 1, v2
    s_cbranch_vccz Lt3_go
    s_sleep 4
    s_branch Lt3_p
    Lt3_go:
    s_waitcnt vmcnt(0)
    ''')
    a.nvm = 0; tg = []
    for b in range(32):
        if b and b % 8 == 0: a(f's_add_u32 s{sAo}, s{sAo}, 8192\ns_addc_u32 s{sAo+1}, s{sAo+1}, 0')
        tg.append(a(f'global_load_dwordx4 {vr(OB+4*b,4)}, v{vLin}, {sp(sAo)} offset:{(b%8)*1024-4096} sc1'))
    for k in range(4): a(f'{MF} {vr(AC+8,4)}, {vr(GW+4*k,4)}, {vr(XB+4*k,4)}, {vr(AC+8,4) if k else 0}')
    for b in range(11): a(f'{MF} {vr(AC+4,4)}, {vr(128+4*b,4,"a")}, {vr(HB+4*b,4)}, {vr(AC+4,4) if b else 0}')
    for b in range(32):
        a.wvm(tg[b])
        a(f'{MF} {vr(AC,4)}, {vr(4*b,4,"a")}, {vr(OB+4*b,4)}, {vr(AC,4) if b else 0}')
    a(f'''
    ds_write_b128 v{vRs}, {vr(AC+4,4)} offset:1024
    ds_write_b128 v{vRs}, {vr(AC+8,4)} offset:2048
    ds_write_b128 v{vRs}, {vr(AC,4)}
    s_waitcnt lgkmcnt(0)
    s_barrier
    s_cmp_lg_u32 s{sW}, 0
    s_cbranch_scc1 Lt3_nx
    ''')
    for w in range(1,4):
        for j in range(3): a(f'ds_read_b128 {vr(HB+12*w+4*j,4)}, v{vRs} offset:{3072*w+1024*j}')
    a('s_waitcnt lgkmcnt(0)')
    for w in range(1,4):
        for r in range(9): a(f'v_add_f32 v{AC+r}, v{AC+r}, v{HB+12*w+r}')
    g = AC+8
    a(f'''
    v_mul_f32 v{g}, {f32(-math.log2(math.e))}, v{g}
    v_exp_f32 v{g}, v{g}
    v_add_f32 v{g}, 1.0, v{g}
    v_rcp_f32 v{g}, v{g}
    v_sub_f32 v{g+1}, 1.0, v{g}
    ''')
    for r in range(4): a(f'v_mul_f32 v{AC+r}, v{AC+r}, v{g}\nv_fmac_f32 v{AC+r}, v{AC+4+r}, v{g+1}')
    a(f'''
    v_cvt_pk_bf16_f32 v{AC}, v{AC}, v{AC+1}
    v_cvt_pk_bf16_f32 v{AC+1}, v{AC+2}, v{AC+3}
    global_store_dwordx2 v{vOo}, {vr(AC,2)}, {sp(sOo)}
    Lt3_nx:
    v_xor_b32 v{vRs}, 0x4000, v{vRs}
    s_add_u32 s{sTau}, s{sTau}, {NG3()}
    s_cmp_lt_u32 s{sTau}, 128
    s_cbranch_scc1 Lt3_tile
    ''')

def build(name=NAME, **kw):
    a = Asm()
    a.raw(khead(name))
    a(f'''
    s_cmp_ge_u32 s2, 256
    s_cbranch_scc1 L_done
    s_load_dwordx2 {sp(sDbg)}, s[0:1], 104
    s_load_dwordx2 {sp(sMem)}, s[0:1], 8
    s_load_dwordx4 s[8:11], s[0:1], 24
    s_load_dwordx2 {sp(sWq)}, s[0:1], 16
    s_load_dwordx2 {sp(sWo)}, s[0:1], 40
    s_load_dwordx2 {sp(sWs)}, s[0:1], 112
    s_load_dwordx2 {sp(sX)}, s[0:1], 0
    s_load_dwordx8 s[32:39], s[0:1], 64
    s_load_dwordx2 {sp(sOut)}, s[0:1], 96
    s_getreg_b32 s{sXcc}, hwreg(HW_REG_XCC_ID)
    s_and_b32 s{sXcc}, s{sXcc}, 15
    v_lshrrev_b32 v4, 6, v0
    s_lshr_b32 s{sH}, s2, 3
    {f's_xor_b32 s2, s2, s{sH}' if X.get('perm') else ''}
    {f's_xor_b32 s{sH}, s{sH}, {X["hx"]}' if X.get('hx') else ''}
    s_add_u32 s{sGrp}, s2, {8-X.get('cg', 1)}
    s_and_b32 s{sGrp}, s{sGrp}, 7
    v_readfirstlane_b32 s{sW}, v4
    s_waitcnt lgkmcnt(0)
    ''')
    C.tl(a, 0, 1, f's{sGrp}')
    a(f's_cmp_lg_u32 s{sGrp}, 0\ns_cbranch_scc1 L_work')
    C.chain(a, 'c', mega=True, **kw)
    a('s_endpgm')
    a.label('L_work')
    t1(a)
    if X.get('t1only'):
        a.label('L_t1e')
        C.tl(a, 5, 2, f's{sGrp}')
        a('s_endpgm')
    a(f's_cmp_le_u32 s{sGrp}, {NG3()}\ns_cbranch_scc1 L_t3')
    t2(a)
    C.tl(a, 5, 2, f's{sGrp}')
    a('s_endpgm')
    a.label('L_t3')
    t3(a)
    C.tl(a, 5, 2, f's{sGrp}')
    a.label('L_done')
    a('s_endpgm')
    assert a.check_branches() == 0
    return a

if __name__ == '__main__':
    import sys
    kw = eval(sys.argv[2]) if len(sys.argv) > 2 else {}
    C.TL = kw.pop('tl', False)
    X.update(kw.pop('x', {}))
    WS_QX = X.get('qx', 64) << 20
    ref = open('gated_mix__memory_aug_recurrent_mem_tr__glu_gated_bilinear__prompt.s.ref').read().split('\n')
    head = [l for l in ref if l.startswith(';') and '@launch' not in l]
    out = '\n'.join(head) + '\n; @launch grid=(256,1,1) block=(256,1,1) lds=163840\n'
    out += '.amdgcn_target "amdgcn-amd-amdhsa--gfx950"\n.text\n' + build(**kw).text()
    out += '.section .rodata,"a"\n' + kdesc(NAME)
    open(sys.argv[1], 'w').write(out)
```

```python
from asmlib import *
import struct, math
WS_KV = 0; WS_V = 16<<20; KST = 32*8192; WS_QX = 32<<20; WS_KVM = 48<<20; WS_RA = 60<<20; WS_RM = 61<<20; WS_PROF = 62<<20
RA_SLOT = 128*2048; RM_SLOT = 8192
SLAB = 131072
def f32(x): return struct.unpack('<I', struct.pack('<f', x))[0]
QSCALE = f32(128**-0.5 * math.log2(math.e))

M=0; QV=32; KA=40; KX=48; XO=40; VX=56; S=64; T=96
vIdx,vLin,vKr,vTc,vXw,vXr,vPst,vMst,vLw,vOw,vM0,vM1,HK,_,HV,_2 = range(112,128)
sMem,sWq,sWk,sWv,sWo,sDbg,sWs = 4,6,8,10,12,14,16
sH,sW,sT,sSpin = 18,19,20,21
sTmp=22; sLb=24; sA=25; sB=26; sC=27
sKV=30; sKVM=32; sSt0=34; sSt1=36; sAld=38; sArs=40; sMld=42; sMst=44
sRA=46; sRAo=48; sRMl=50; sRMs=52
sB1=54; sSel=56; sPm=64; sPub=66; sM0kv=68; sQc=69
sFl=28; sXcc=3; sFm=100; sRdy=86; sVer=87; sFK=84; sGot=88; sNx=89
WS_FL = 63<<20; FL_K = 8192; FL_G = 16384; FL_P = 20480
ROLE_LDS = 163832
VERIFY = None
sP=70
SPIN=200000
NL = chr(10)
def sp(x): return f's[{x}:{x+1}]'

LDS_BLK = [('q',0),('q',1),('k',0),('k',6),('k',7),('o',5),('o',6),('o',7)]
NQ = 5
KVS = 2304
L_KV = SLAB+8192; L_MQ = SLAB; L_X = SLAB+28672; L_O = SLAB+26624
REG_BLK = [(m,i) for m in 'qkvo' for i in range(8) if (m,i) not in LDS_BLK]
def dest(b):
    i = REG_BLK.index(b)
    return ('a', 16*i) if i < 16 else ('v', 128 + 16*(i-16))

WS_TL = (62<<20) + 65536
TL = False
TLN = 0
def tl(a, i, v1, role_hi):
    if not TL: return
    if TL == 2:
        ch = (role_hi == 0)
        if i > 5: return
        a(f"""
        s_memrealtime s[90:91]
        s_waitcnt lgkmcnt(0)
        s_mov_b32 s{74+i}, s90
        """)
        if (ch and i == 4) or (not ch and i == 5):
            global TLN
            TLN += 1
            idx = [0,2,3,4] if ch else [0,3,4,5]
            a(f"""
            s_lshl_b32 s97, s{sH}, 2
            s_add_u32 s97, s97, s{sW}
            """)
            if not ch: a(f's_xor_b32 s96, {role_hi}, 4\ns_or_b32 s97, s97, s96')
            a(f's_cmp_lg_u32 s97, 0\ns_cbranch_scc1 Ltl2_{TLN}')
            for k_, j in enumerate(idx): a(f'v_mov_b32 v{v1+4+k_}, s{74+j}')
            a(f"""
            v_mov_b32 v{v1}, {32 if ch else 48}
            s_mov_b64 exec, 1
            global_store_dwordx4 v{v1}, v[{v1+4}:{v1+7}], {sp(sDbg)} sc1
            s_mov_b64 exec, -1
            Ltl2_{TLN}:
            """)
        return
    ch = (role_hi == 0)
    a(f"""
    s_memrealtime s[98:99]
    s_memtime s[90:91]
    s_waitcnt lgkmcnt(0)
    s_mov_b32 s{70+i}, s98
    """)
    if i < 6: a(f's_mov_b32 s{78+i}, s90')
    if (ch and i == 4) or (not ch and i == 5):
        a(f"""
        s_lshl_b32 s97, {role_hi}, 5
        s_add_u32 s97, s97, s{sH}
        s_lshl_b32 s97, s97, 2
        s_add_u32 s97, s97, s{sW}
        s_lshl_b32 s97, s97, 6
        s_add_u32 s97, s97, {WS_TL}
        v_mov_b32 v{v1}, s97
        s_mov_b64 exec, 1
        """)
        for j in range(14): a(f'v_mov_b32 v{v1+1}, s{70+j}\nglobal_store_dword v{v1}, v{v1+1}, {sp(sWs)} offset:{4*j}\ns_nop 1')
        a('s_mov_b64 exec, -1')

def chain(a, tag, sc='', mega=False, prof=False, nsteps=64, preA=56, preB=44, gapA=48, gapB=48, sgq=-3, pKx=12, pB2=5, ntr=2, rdw=1, wx=1, g7=32, stamps=(), wnt=' nt', ont=None, mord='qkv', warm=22, fkb=22, fke=28, arr=10, fst=0, opipe=1, tls=(0,8,16), opt=(), tsc=' sc1', tdist=1, skip=(), ra=0, hp=0, dA=28, dB=28, gL=28, gL2=40, b1=5, b2=1, word=0, n3=1, w4=None, bb=1, psw=0, wo=0, dw=0, mk=1, wB=None, pb1=5, yd=0, ckp=(3,5,7,8), kp=3, qo=0, g0p=8, nvo=0, wsh=0, vmf=0, fc=0, nr0=2, ps=0, pmf=21, pad=23, g56=(18,19,20,26,27,28), ft=0, nc=0, vp=None):
    L = lambda x: f'L{tag}_{x}'
    DIR = True
    stc = (' ' + sc) if sc else ''
    LE = L('end')
    if ont is None: ont = wnt
    if yd and vp is None: vp = 'kv@Q2 d2@Q10 d3@Q13 rm@Q15 d0@Q17 fl@Q19 d1@Q21 tc@Q24 r0@Q27 r1@Q30'
    if vp is None: vp = 'kv@A0 d2@A2 d3@Q0 rm@Q2 d0@Q4 fl@Q6 d1@Q9 tc@Q12 r0@Q16 r1@Q20' if hp else 'kv@P0 d2@A2 d3@A6 rm@Q2 d0@Q4 fl@Q6 d1@Q9 tc@Q12 r0@Q16 r1@Q20'
    if w4: ra = 4; rdw = 1 if dw and mk == 1 else 0
    L_X = SLAB+18432 if ps else SLAB+28672
    L_S = SLAB+28672
    kvnow = any(x_[:2] == 'kv' and x_[3] in 'CW' for x_ in vp.split())
    staged = {}
    def B(m, i, u):
        if (m,i) in staged: return vr(staged[(m,i)] + 8*u, 8)
        k, b = dest((m,i)); return vr(b + 8*u, 8, k)
    def SM(acc, A, m, i, u): a(f'v_smfmac_f32_16x16x64_bf16 {vr(acc,4)}, {vr(A,4)}, {B(m,i,u)}, v{vIdx}')
    def stg(blk, r):
        slot = LDS_BLK.index(blk); staged[blk] = r
        return [f'ds_read_b128 {vr(r+4*i,4)}, v{vLw} offset:{slot*4096+i*1024}' for i in range(4)]
    def stamp(i):
        if prof and i in stamps: a(f's_memtime {sp(sP+2*stamps.index(i))}')

    lane,n_,g_,t1,t2,t3 = T,T+1,T+2,T+3,T+4,T+5
    vWa, vOa = KX+4, T+9
    vTr = VX
    vL4, vFd, vFk = T+6, T+7, KX
    vTo = KX+2
    a(f'''
    v_and_b32 v{lane}, 63, v0
    v_and_b32 v{n_}, 15, v0
    v_lshrrev_b32 v{g_}, 4, v{lane}
    v_lshlrev_b32 v{vLin}, 4, v{lane}
    s_lshl_b32 s{sLb}, s{sW}, 15
    s_mul_i32 s{sA}, s{sW}, {KVS}
    s_add_u32 s{sM0kv}, s{sA}, {L_KV}
    v_add_u32 v{vLw}, s{sLb}, v{vLin}
    ; cooperative qkv DMA: instr i=gb, r'=lane/16, p=lane%16 holds chunk p^(2r'+8gb0) of row 32(w&1)+8(w>>1)+4gb1+gb0+16(r'&1)+2(r'>>1)
    v_and_b32 v{t1}, 1, v{g_}
    v_lshrrev_b32 v{t3}, 1, v{g_}          ; gb1
    v_lshlrev_b32 v{t2}, 1, v{g_}
    v_xor_b32 v{t2}, v{t2}, v{n_}
    v_lshlrev_b32 v{t2}, 4, v{t2}
    v_lshl_add_u32 v{t2}, v{t1}, {13 if dw else 17}, v{t2}
    v_lshl_add_u32 v{t2}, v{t3}, 14, v{t2}
    s_and_b32 s{sA}, s{sW}, 1
    s_lshl_b32 s{sA}, s{sA}, {15 if dw else 18}
    s_lshr_b32 s{sB}, s{sW}, 1
    s_lshl_b32 s{sB}, s{sB}, {18 if dw else 16}
    s_add_u32 s{sA}, s{sA}, s{sB}
    s_lshl_b32 s{sB}, s{sH}, 8
    s_add_u32 s{sA}, s{sA}, s{sB}
    v_add_u32 v{vWa}, s{sA}, v{t2}
    v_xor_b32 v{t2}, 128, v{vWa}
    v_add_u32 v{vWa+1}, {(8 if dw else 1)*8192-1024}, v{t2}
    v_add_u32 v{vWa+2}, {(16 if dw else 4)*8192-2048}, v{vWa}
    v_add_u32 v{vWa+3}, {(24 if dw else 5)*8192-3072}, v{t2}
    ; wo rows: 16*gb0+4*gb1+bit3 ; chunk = (l%8)^(4*gb0)
    v_lshlrev_b32 v{vOa}, 4, v{t1}
    v_lshl_add_u32 v{vOa}, v{t3}, 2, v{vOa}
    v_bfe_u32 v{vTr}, v{lane}, 3, 1
    v_add_u32 v{vOa}, v{vOa}, v{vTr}
    v_lshlrev_b32 v{vTr}, 2, v{t1}
    v_xor_b32 v{vTr}, v{vTr}, v{lane}
    v_and_b32 v{vTr}, 7, v{vTr}
    v_lshlrev_b32 v{vTr}, 4, v{vTr}
    v_lshl_add_u32 v{vOa}, v{vOa}, 10, v{vTr}
    s_lshl_b32 s{sA}, s{sH}, 17
    s_lshl_b32 s{sB}, s{sW}, 8
    s_add_u32 s{sA}, s{sA}, s{sB}
    v_add_u32 v{vOa}, s{sA}, v{vOa}
    ''')
    def dma(bi):
        slot = bi % 8; tg = None
        if bi < 24:
            base = {'q': sWq, 'k': sWk, 'v': sWv}[mord[bi//8]]
            a(f's_add_u32 s{sTmp}, s{base}, {slot<<19}\ns_addc_u32 s{sTmp+1}, s{base+1}, 0\ns_add_u32 m0, s{sLb}, {slot*4096}')
            for J in range(4): tg = a(f'global_load_lds_dwordx4 v{vWa+J}, {sp(sTmp)} offset:{J*1024}{wnt}')
            return tg
        i = slot
        a(f's_xor_b32 s{sA}, s{sW}, {i//2}\ns_lshl_b32 s{sA}, s{sA}, 15')
        for J in range(4):
            off = (i%2)*128 + (8*(J>>1) + 2*(J&1))*1024
            a(f's_add_u32 s{sB}, s{sA}, {off}\ns_add_u32 s{sTmp}, s{sWo}, s{sB}\ns_addc_u32 s{sTmp+1}, s{sWo+1}, 0')
            a(f's_add_u32 m0, s{sLb}, {slot*4096+J*1024}')
            tg = a(f'global_load_lds_dwordx4 v{vOa}, {sp(sTmp)}{ont}')
        return tg
    dtag = {}
    def fkeval(v):
        a(f"""
        v_cmp_eq_u32 vcc, 0x01010101, v{v}
        s_or_b32 s{sTmp}, vcc_lo, 0xaaaaaaaa
        s_or_b32 s{sTmp+1}, vcc_hi, 0xaaaaaaaa
        s_ff0_i32_b64 s{sRdy}, {sp(sTmp)}
        s_min_u32 s{sRdy}, s{sRdy}, 100
        """)
    def first():
        a(f'''
        s_lshl_b32 s{sA}, s{sXcc}, 1
        s_add_u32 s{sA}, s{sA}, 1
        s_mul_i32 s{sXcc}, s{sA}, 0x01010101
        v_mov_b32 v{S}, s{sH}
        v_mov_b32 v{S+1}, s{sA}
        s_cmp_eq_u32 s{sW}, 0
        s_cselect_b32 s{sFm}, 1, 0
        s_mov_b32 s{sFm+1}, 0
        s_mov_b64 exec, {sp(sFm)}
        global_store_byte v{S}, v{S+1}, {sp(sDbg)} sc1
        s_mov_b64 exec, -1
        v_lshlrev_b32 v{S+2}, 4, v{n_}
        v_lshl_add_u32 v{S+2}, v{g_}, 10, v{S+2}
        s_lshl_b32 s{sA}, s{sW}, 8
        v_add_u32 v{S+2}, s{sA}, v{S+2}
        v_add_u32 v{S+3}, 3072, v{S+2}
        s_lshl_b32 s{sA}, s{sW}, 11
        s_add_u32 m0, s{sA}, {L_MQ}
        global_load_lds_dwordx4 v{S+2}, {sp(sMem)}
        global_load_lds_dwordx4 v{S+3}, {sp(sMem)} offset:1024
        ''')
    for bi in range(8):
        if bi == fst: first()
        dtag[bi] = dma(bi)
    if 'a' in tls: tl(a, 5 + tls.index('a'), T+12, 0)
    if 'b' in tls: tl(a, 5 + tls.index('b'), T+12, 0)
    a(f'''
    v_lshrrev_b32 v{t2}, 2, v{n_}
    v_and_b32 v{t3}, 3, v{lane}
    s_lshl_b32 s{sA}, s{sW}, 6
    v_lshl_add_u32 v{vTr}, v{t3}, 3, s{sA}
    v_lshlrev_b32 v{vTr+1}, 5, v{t2}
    v_lshl_add_u32 v{vTr+1}, v{t1}, 7, v{vTr+1}
    v_xor_b32 v{vTr}, v{vTr}, v{vTr+1}
    v_lshl_add_u32 v{vTr}, v{t2}, 8, v{vTr}
    v_lshl_add_u32 v{vTr}, v{g_}, 10, v{vTr}
    v_xor_b32 v{vTr+1}, 32, v{vTr}
    v_add_u32 v{vTr+2}, 0x10000, v{vTr}
    v_add_u32 v{vTr+3}, 0x10000, v{vTr+1}
    ; wo tr-read: gb*256 + bit2*128 + gb0*64 + bit3*32 + c4*8 (u flips bit 6)
    v_lshlrev_b32 v{vTo}, 8, v{g_}
    v_lshl_add_u32 v{vTo}, v{t1}, 6, v{vTo}
    {f'v_and_b32 v{vTo+1}, 2, v{lane}{NL}v_lshl_add_u32 v{vTo}, v{vTo+1}, 2, v{vTo}{NL}v_and_b32 v{vTo+1}, 1, v{lane}{NL}v_lshlrev_b32 v{vTo+1}, 6, v{vTo+1}{NL}v_xor_b32 v{vTo}, v{vTo}, v{vTo+1}' if w4 and not dw else f'v_lshl_add_u32 v{vTo}, v{t3}, 3, v{vTo}'}
    v_and_b32 v{vTo+1}, 4, v{lane}
    v_lshl_add_u32 v{vTo}, v{vTo+1}, 5, v{vTo}
    v_and_b32 v{vTo+1}, 8, v{lane}
    v_lshl_add_u32 v{vTo}, v{vTo+1}, 2, v{vTo}
    v_add_u32 v{vTo}, s{sLb}, v{vTo}
    v_xor_b32 v{vTo+1}, {16 if w4 and not dw else 64}, v{vTo}
    v_xor_b32 v{vXw}, v{g_}, v{t2}
    v_lshlrev_b32 v{vXw}, 3, v{vXw}
    v_lshl_add_u32 v{vXw}, v{n_}, 5, v{vXw}
    s_lshl_b32 s{sA}, s{sW}, 10
    s_add_u32 s{sA}, s{sA}, {L_X}
    v_add_u32 v{vXw}, s{sA}, v{vXw}
    v_xor_b32 v{vXr}, v{t3}, v{g_}
    v_lshlrev_b32 v{vXr}, 3, v{vXr}
    v_lshl_add_u32 v{vXr}, v{t2}, 5, v{vXr}
    v_lshl_add_u32 v{vXr}, v{g_}, 7, v{vXr}
    v_add_u32 v{vXr}, {L_X}, v{vXr}
    v_lshl_add_u32 v{vPst}, v{t2}, 2, v{g_}
    v_lshlrev_b32 v{vPst}, 11, v{vPst}
    v_lshl_add_u32 v{vPst}, v{t3}, 4, v{vPst}
    s_lshl_b32 s{sA}, s{sW}, 16
    s_lshl_b32 s{sB}, s{sH}, 6
    s_add_u32 s{sA}, s{sA}, s{sB}
    v_add_u32 v{vPst}, s{sA}, v{vPst}
    ''')
    if w4: a(f'''
    ; reducer CU = 8w + 4(n/8) + g, wave G ; off = cu*8192 + G*2048 + h*64 + (n%8)*8 (+4096 imm bias)
    v_lshrrev_b32 v{vPst}, {4 if dw else 3}, v{n_}
    v_lshl_add_u32 v{vPst}, v{vPst}, 2, v{g_}
    v_mul_u32_u24 v{vMst}, {psw}, v{vPst}
    v_add_u32 v{vMst}, s{sB}, v{vMst}
    v_and_b32 v{vMst}, 0x7ff, v{vMst}
    v_lshl_add_u32 v{vPst}, v{vPst}, 13, v{vMst}
    v_and_b32 v{vMst}, {15 if dw else 7}, v{lane}
    v_lshl_add_u32 v{vPst}, v{vMst}, {2 if dw else 3}, v{vPst}
    s_lshl_b32 s{sA}, s{sW}, 16
    s_add_u32 s{sA}, s{sA}, 4096
    v_add_u32 v{vPst}, s{sA}, v{vPst}
    ''')
    a(f'''
    ; publish: (c/2)*32 + p*16 + (c%2)*8 + (i/2)*4
    v_mov_b32 v{vMst}, 0
    {chr(10).join(f'v_bfe_u32 v{t2}, v{lane}, {b_}, 1{chr(10)}v_lshl_add_u32 v{vMst}, v{t2}, {o_}, v{vMst}' for b_, o_ in {0: ((5,5),(2,4),(4,3),(1,2)), 1: ((5,5),(0,4),(4,3)), 2: ((2,5),(4,4),(1,3),(0,2)), 4: ((1,5),(4,4),(0,3),(5,2)), 5: ((0,5),(4,4),(5,3),(1,2)), 6: ((5,5),(4,4),(1,3),(0,2))}[6 if dw else 5 if w4 else ra])}
    ; O write: L_O + w*512 + (g*8+t)*16 + half*8 ; t = 2*(n/4)+n%2
    v_lshlrev_b32 v{vOw}, 7, v{g_}
    v_and_b32 v{t2}, 12, v{lane}
    v_lshl_add_u32 v{vOw}, v{t2}, 3, v{vOw}
    v_and_b32 v{t2}, 1, v{lane}
    v_lshl_add_u32 v{vOw}, v{t2}, 4, v{vOw}
    v_and_b32 v{t2}, 2, v{lane}
    v_lshl_add_u32 v{vOw}, v{t2}, 2, v{vOw}
    s_lshl_b32 s{sA}, s{sW}, 9
    s_add_u32 s{sA}, s{sA}, {L_O}
    v_add_u32 v{vOw}, s{sA}, v{vOw}
    s_mov_b32 s{sB1}, 0xcccccccc
    s_mov_b32 s{sB1+1}, 0xcccccccc
    s_mov_b32 s{sPm}, {0xaaaaaaaa if ra == 1 else 0xf0f0f0f0}
    s_mov_b32 s{sPm+1}, {0xaaaaaaaa if ra == 1 else 0xf0f0f0f0}
    s_mov_b32 s{sPub}, {(0x00550055, 0x00030003, 0x00ff00ff, 0, 0x000f000f)[ra]}
    s_mov_b32 s{sPub+1}, {(0x00550055, 0x00030003, 0, 0, 0x000f000f)[ra]}
    s_mov_b32 s{sQc}, {QSCALE}
    v_mov_b32 v{t2}, 0x4444
    v_mov_b32 v{t3}, 0xeeee
    v_cndmask_b32 v{vIdx}, v{t2}, v{t3}, {sp(sB1)}
    v_cndmask_b32 v{vM0}, -1, 0, {sp(sB1)}
    v_cndmask_b32 v{vM1}, 0, -1, {sp(sB1)}
    ''')
    for i in range(4):
        m_ = {0: 0x00110011 << i, 1: 0x11111111, 2: 0x55555555 << (i%2), 4: 0x00550055 << (i%2 + 8*(i//2))}[ra]
        a(f's_mov_b32 s{sSel+2*i}, {m_}\ns_mov_b32 s{sSel+2*i+1}, {m_}')
    a(f'''
    s_lshl_b32 s{sA}, s{sH}, 2
    s_add_u32 s{sA}, s{sA}, s{sW}
    s_add_u32 s{sRA}, s{sWs}, {WS_RA}
    s_addc_u32 s{sRA+1}, s{sWs+1}, 0
    s_mov_b32 s{sC}, s{sA}
    ''')
    if hp: a(f'''
    s_lshr_b32 s{sB}, s{sA}, 1
    s_and_b32 s{sB}, s{sB}, 15
    s_and_b32 s{sC}, s{sA}, 0x60
    s_or_b32 s{sC}, s{sC}, s{sB}
    s_and_b32 s{sB}, s{sA}, 1
    s_lshl_b32 s{sB}, s{sB}, 4
    s_or_b32 s{sC}, s{sC}, s{sB}
    ''')
    a(f'''
    s_lshl_b32 s{sB}, s{sC}, 11
    s_add_u32 s{sRAo}, s{sRA}, s{sB}
    s_addc_u32 s{sRAo+1}, s{sRA+1}, 0
    ''')
    if w4: a(f'''
    s_and_b32 s{sC}, s{sH}, 24
    s_lshl_b32 s{sC}, s{sC}, 2
    s_and_b32 s{sB}, s{sH}, 7
    s_add_u32 s{sC}, s{sC}, s{sB}
    s_lshl_b32 s{sB}, s{sW}, 3
    s_add_u32 s{sC}, s{sC}, s{sB}
    ''')
    a(f'''
    s_lshl_b32 s{sB}, s{sC}, 6
    s_add_u32 s{sB}, s{sB}, {WS_RM}
    s_add_u32 s{sRMs}, s{sWs}, s{sB}
    s_addc_u32 s{sRMs+1}, s{sWs+1}, 0
    s_lshl_b32 s{sB}, s{sW}, 11
    s_add_u32 s{sB}, s{sB}, {WS_RM}
    s_add_u32 s{sRMl}, s{sWs}, s{sB}
    s_addc_u32 s{sRMl+1}, s{sWs+1}, 0
    s_lshl_b32 s{sB}, s{sA}, 11
    s_add_u32 s{sKV}, s{sWs}, s{sB}
    s_addc_u32 s{sKV+1}, s{sWs+1}, 0
    s_lshl_b32 s{sB}, s{sA}, 10
    s_add_u32 s{sB}, s{sB}, {WS_KVM-(32 if kvnow else 64)*4096}
    s_add_u32 s{sKVM}, s{sWs}, s{sB}
    s_addc_u32 s{sKVM+1}, s{sWs+1}, 0
    s_lshl_b32 s{sB}, s{sH}, 7
    s_add_u32 s{sB}, s{sB}, {WS_FL+FL_P}
    s_add_u32 s{sFl}, s{sWs}, s{sB}
    s_addc_u32 s{sFl+1}, s{sWs+1}, 0
    s_lshl_b32 s{sB}, s{sH}, 8
    s_add_u32 s{sB}, s{sB}, {WS_FL+FL_K}
    s_add_u32 s{sFK}, s{sWs}, s{sB}
    s_addc_u32 s{sFK+1}, s{sWs+1}, 0
    ; touch/flag lanes: 0-31 V half of the own K/V record (advances per step), 32-63 ready flags of this head
    s_sub_u32 s{sB}, s{sB}, {2048+256}
    v_lshl_add_u32 v{vTc}, v{lane}, 3, s{sB}
    s_lshl_b32 s{sB}, s{sA}, 11
    s_add_u32 s{sB}, s{sB}, {WS_V-2048}
    v_lshl_add_u32 v{t2}, v{lane}, 6, s{sB}
    v_cmp_gt_u32 vcc, 32, v{lane}
    v_cndmask_b32 v{vTc}, v{vTc}, v{t2}, vcc
    s_mov_b32 s{sRdy}, {0 if mega else 100}
    v_lshlrev_b32 v{vL4}, 2, v{lane}
    v_mov_b64 {vr(HK,2)}, 0
    v_mov_b64 {vr(HV,2)}, 0
    ; M(0) gather: lane(row: b0=t%2,b1=half,b3:2=t/2 ; ga): byte = t*256 + (64s + 16(ea%4) + 4ga + 2half + ea/4)*2
    v_lshrrev_b32 v{t2}, 2, v{n_}
    v_lshlrev_b32 v{t2}, 9, v{t2}
    v_and_b32 v{t3}, 1, v{lane}
    v_lshl_add_u32 v{t2}, v{t3}, 8, v{t2}
    v_lshl_add_u32 v{t2}, v{g_}, {5 if dw else 3}, v{t2}
    v_and_b32 v{t3}, 2, v{lane}
    v_lshl_add_u32 v{t2}, v{t3}, 1, v{t2}
    s_lshl_b32 s{sA}, s{sW}, 11
    s_add_u32 s{sA}, s{sA}, {L_MQ}
    v_add_u32 v{t2}, s{sA}, v{t2}
    ''')
    if 'c' in tls: tl(a, 5 + tls.index('c'), T+12, 0)
    def warmup():
        a(f"""
        v_lshlrev_b32 v{t1}, 7, v{n_}
        v_and_b32 v{t3}, 1, v{g_}
        v_lshl_add_u32 v{t2}, v{t3}, 18, v{t1}
        global_load_dword v{vFd}, v{t2}, {sp(sRAo)} sc1
        v_lshl_add_u32 v{t1}, v{t3}, 13, v{t1}
        global_load_dword v{vFd}, v{t1}, {sp(sRMl)} sc1
        """)
    def park(pj): return dest(('o', pj+1)) if pj < NQ-1 else ('v', S+16)
    for w in range(1,4): a(f's_cmp_eq_u32 s{sW}, {w}\ns_cbranch_scc1 {L(f"pw{w}")}')
    nvm0, nds0 = a.nvm, a.nds
    for w in range(4):
        a.label(L(f'pw{w}'))
        a.nvm, a.nds = nvm0, nds0
        for bi in range(24):
            m, i = mord[bi//8], (bi%8) ^ (2*w); slot = bi % 8
            a.wvm(dtag[bi]); a('s_barrier')
            if bi in tls: tl(a, 5 + tls.index(bi), t1, 0)
            if bi: dtag[bi+7] = dma(bi+7)
            k, b = park(LDS_BLK.index((m,i))) if (m,i) in LDS_BLK else dest((m,i))
            for u in range(2):
                for J in range(4):
                    a(f'ds_read_b64_tr_b16 {vr(b+8*u+2*J,2,k)}, v{vTr+u+2*(J//2)} offset:{slot*4096+(J%2)*32768}')
            if bi == fst:
                for s_ in range(2):
                    for ea in range(8): a(f'ds_read_u16 v{S+8*s_+ea}, v{t2} offset:{(64*s_ + (4*(ea//2) + ea%2 if dw else 16*(ea%4) + ea//4))*2}')
            if bi == fst + 1:
                for r in range(8): a(f'v_lshl_or_b32 v{M+r}, v{S+2*r+1}, 16, v{S+2*r}')
            if bi == arr and 'p3' not in opt: a(f'global_load_dword v{vFd}, v{vL4}, {sp(sDbg)} sc1')
            if bi == arr + 8 and 'p3' not in opt:
                msk = ((1 << 24) - 1) | (1 << 40) if mega else 0xff
                a(f"""
                s_mov_b32 s{sSpin}, 0
                {L(f'tb{w}')}:
                v_and_b32 v{t1}, 0x01010101, v{vFd}
                v_cmp_ne_u32 vcc, 0x01010101, v{t1}
                s_and_b32 s{sA}, vcc_lo, {msk & 0xffffffff}
                s_and_b32 s{sB}, vcc_hi, {msk >> 32}
                s_or_b32 s{sA}, s{sA}, s{sB}
                s_cbranch_scc0 {L(f'tbo{w}')}
                s_sleep 4
                global_load_dword v{vFd}, v{vL4}, {sp(sDbg)} sc1
                s_add_u32 s{sSpin}, s{sSpin}, 1
                s_cmp_gt_u32 s{sSpin}, {SPIN}
                s_cbranch_scc1 {L('end')}
                s_waitcnt vmcnt(0)
                s_branch {L(f'tb{w}')}
                {L(f'tbo{w}')}:
                v_cmp_ne_u32 vcc, s{sXcc}, v{vFd}
                s_and_b32 s{sXcc}, vcc_lo, 0xff
                """)
                a.nvm -= 1
            if bi == warm: warmup()
            if mega and bi == fkb: ftag = a(f'global_load_dword v{vFk}, v{vL4}, {sp(sFK)} sc1')
            a('s_waitcnt lgkmcnt(0)')
        if w < 3: a(f's_branch {L("pwe")}')
    a.label(L('pwe'))
    tl(a, 1, t1, 0)
    def k0():
        a(f"""
        s_mov_b32 m0, s{sM0kv}
        s_nop 0
        global_load_lds_dwordx4 v{vLin}, {sp(sKV)} sc1
        global_load_lds_dwordx4 v{vLin}, {sp(sKV)} offset:1024 sc1
        global_load_lds_dword v{vTc}, {sp(sWs)} offset:2048 sc1
        """)
    for bi in range(24, 32):
        slot = bi % 8
        a.wvm(dtag[bi])
        if bi == 24: a('s_barrier'); dtag[31] = dma(31)
        if bi == warm: warmup()
        if mega and bi == fkb: ftag = a(f'global_load_dword v{vFk}, v{vL4}, {sp(sFK)} sc1')
        if bi == fke:
            if mega:
                a.wvm(ftag)
                fkeval(vFk)
                a(f's_cmp_lg_u32 s{sRdy}, 0\ns_cbranch_scc1 {L("k1")}')
                for _ in range(3): a(f'global_load_dword v{vFk}, v{vL4}, {sp(sFK)} sc1')
                a(f's_branch {L("k2")}')
                a.nvm -= 3
                a.label(L('k1'))
            k0()
            a.label(L('k2'))
        tmp = S + 16*(slot%2)
        k, b = dest(('o', slot)) if slot < NQ else ('v', tmp)
        for u in range(2):
            for J in range(4):
                a(f'ds_read_b64_tr_b16 {vr(b+8*u+2*J,2,k)}, v{vTo+u} offset:{slot*4096+J*1024}')
        if slot >= NQ or not opipe: a('s_waitcnt lgkmcnt(0)')
        k, b = park(slot) if slot < NQ else ('v', tmp)
        for u in range(2):
            for hf in range(2):
                a(f'ds_write_b128 v{vLw}, {vr(b+8*u+4*hf,4,k)} offset:{slot*4096+u*2048+hf*1024}')
        if not opipe: a('s_waitcnt lgkmcnt(0)')
    tl(a, 2, t1, 0)
    if 'ponly' in opt: a(f's_branch {LE}')
    if mega:
        a(f"""
        s_cmp_lg_u32 s{sRdy}, 0
        s_cbranch_scc1 {L("kwe")}
        s_mov_b32 s{sSpin}, 0
        {L('kw')}:
        s_waitcnt vmcnt(0)
        """)
        fkeval(vFk)
        a(f"""
        s_cmp_lg_u32 s{sRdy}, 0
        s_cbranch_scc1 {L("kwd")}
        s_sleep 2
        global_load_dword v{vFk}, v{vL4}, {sp(sFK)} sc1
        s_add_u32 s{sSpin}, s{sSpin}, 1
        s_cmp_gt_u32 s{sSpin}, {SPIN}
        s_cbranch_scc1 {L('end')}
        s_branch {L("kw")}
        """)
        a.label(L('kwd'))
        k0()
        a.label(L('kwe'))
    sKN = sWo
    a(f"""
    s_mov_b64 {sp(sKN)}, {sp(sKV)}
    s_mov_b32 s{sT}, 0
    s_mov_b32 s{sSpin}, 0
    """)
    tl(a, 3, t1, 0)
    if prof:
        for i in range(8): a(f's_mov_b32 s{sP+20+i}, 0')
        a(f's_memtime {sp(sP+28)}')
    def tstamp(idx, T=T):
        if 'ts' not in opt and 'tc' not in opt: return
        a(f"""
        {'s_memrealtime' if 'ts' in opt else 's_memtime'} s[96:97]
        s_lshl_b32 s{sA}, s{sH}, 2
        s_add_u32 s{sA}, s{sA}, s{sW}
        s_lshl_b32 s{sA}, s{sA}, 6
        s_add_u32 s{sA}, s{sA}, {idx}
        s_lshl_b32 s{sA}, s{sA}, 2
        s_add_u32 s{sA}, s{sA}, {WS_PROF+131072}
        v_mov_b32 v{T}, s{sA}
        s_waitcnt lgkmcnt(0)
        v_mov_b32 v{T+1}, s96
        s_mov_b64 exec, 1
        global_store_dword v{T}, v{T+1}, {sp(sWs)}
        s_mov_b64 exec, -1
        """)
    tstamp(63)
    DPPM = 'row_mask:0xf bank_mask:0xf'
    QA = T+8; VA = QV; P2 = VX; S0 = S; S1 = S+16; K0 = M+16
    NEG = M+4; Sel = T+4; Dr = T+8
    if yd: K0 = KX; P2 = M+16; NEG = T+5
    sB0, sOne, sHalf = 4, 8, 10
    a(f'''
    s_not_b64 {sp(sB0)}, {sp(sB1)}
    s_mov_b32 s{sOne}, 0x3f803f80
    s_mov_b32 s{sOne+1}, 0x3f803f80
    s_mov_b32 s{sHalf}, 0x3f003f00
    s_mov_b32 s{sHalf+1}, 0x3f003f00
    ''')
    def pre1(L=None):
        n0 = len(a.items)
        if ps:
            a(f'v_lshrrev_b32 v{T+5}, 2, v{vLin}\nv_add_u32 v{T+3}, m0, v{vLin}')
            if L and mega: a(f'v_add_u32 v{T+6}, m0, v{T+5}\nds_read_b32 v{T+6}, v{T+6} offset:2048')
            a(f'''
            ds_read_b128 {vr(KX,4)}, v{T+3}
            ds_read_b128 {vr(KX+4,4)}, v{T+3} offset:1024
            v_add_u32 v{T+3}, s{sLb}, v{T+5}
            v_mov_b32 v{T+7}, 0
            v_add_u32 v{T+5}, {L_S}, v{T+5}
            ds_write_b32 v{T+3}, v{T+7}
            ''')
        elif L and mega: a(f'v_lshrrev_b32 v{T+5}, 2, v{vLin}\nv_add_u32 v{T+6}, m0, v{T+5}\nds_read_b32 v{T+6}, v{T+6} offset:2048')
        a(f"""
        s_and_b32 s{sA}, s{sT}, 1
        s_lshl_b32 s{sC}, s{sA}, 13
        s_add_u32 s{sMld}, s{sRMl}, s{sC}
        s_addc_u32 s{sMld+1}, s{sRMl+1}, 0
        s_xor_b32 s{sB}, s{sA}, 1
        """)
        if yd: a(f's_mov_b32 m0, s{sLb}')
        if yd == 1: a(f's_mov_b32 s{sGot}, 0')
        for x_ in stg(('k',0), K0): a(x_)
        for i in range(0,16,2): a(f'v_mov_b64 {vr(VA+i,2)}, 0')
        for i in range(0,8,2): a(f'v_mov_b64 {vr(QA+i,2)}, 0')
        return len(a.items) - n0
    def pre2(L=None):
        n0 = len(a.items)
        a(f's_mov_b32 exec_hi, 0\nv_add_u32 v{vTc}, {KST}, v{vTc}\ns_mov_b32 exec_hi, -1')
        a(f"""
        s_lshl_b32 s{sC}, s{sB}, 13
        s_add_u32 s{sMst}, s{sRMs}, s{sC}
        s_addc_u32 s{sMst+1}, s{sRMs+1}, 0
        s_lshl_b32 s{sC}, s{sB}, 18
        s_add_u32 s{sArs}, s{sRAo}, s{sC}
        s_addc_u32 s{sArs+1}, s{sRAo+1}, 0
        s_lshl_b32 s{sC}, s{sA}, 18
        s_add_u32 s{sSt0}, s{sRA}, s{sC}
        s_addc_u32 s{sSt0+1}, s{sRA+1}, 0
        s_add_u32 s{sSt1}, s{sSt0}, 32768
        s_addc_u32 s{sSt1+1}, s{sSt0+1}, 0
        s_add_u32 s{sAld}, s{sRAo}, s{sC}
        s_addc_u32 s{sAld+1}, s{sRAo+1}, 0
        s_add_u32 s{sKV}, s{sKN}, {WS_V}
        s_addc_u32 s{sKV+1}, s{sKN+1}, 0
        s_add_u32 s{sKN}, s{sKN}, {KST}
        s_addc_u32 s{sKN+1}, s{sKN+1}, 0
        s_add_u32 s{sKVM}, s{sKVM}, {32*4096}
        s_addc_u32 s{sKVM+1}, s{sKVM+1}, 0
        """)
        if not ps: a(f"""
        s_mul_i32 s{sC}, s{sB}, {4*KVS}
        s_add_u32 {f's{sVer}' if yd == 2 else 'm0'}, s{sC}, s{sM0kv}
        s_mul_i32 s{sC}, s{sA}, {4*KVS}
        s_add_u32 s{sC}, s{sC}, {L_KV}
        v_add_u32 v{vKr}, s{sC}, v{vLin}
        """)
        a(f"""
        s_lshl_b32 s{sC}, s{sW}, 11
        s_add_u32 s{sC}, s{sC}, {L_MQ}
        v_add_u32 v{T+3}, s{sC}, v{vLin}
        s_add_u32 s{sC}, s{sT}, {int(kvnow)}
        v_mov_b32 v{T+4}, s{sC}
        """)
        for i in range(1,4): a(f'v_xor_b32 v{T+i-1}, {i*2048}, v{T+3}')
        if L and mega:
            a(f'''
            s_waitcnt lgkmcnt(0)
            v_cmp_eq_u32 vcc, 0x01010101, v{T+6}
            s_add_u32 s{sA}, s{sT}, 1
            s_ff0_i32_b32 s{sRdy}, vcc_hi
            s_lshl_b32 s{sRdy}, s{sRdy}, 1
            s_cmp_lt_u32 s{sA}, s{sRdy}
            s_cbranch_scc0 {L('rp')}
            ''')
        return len(a.items) - n0
    def ldM(r):
        if yd: a(f'global_load_lds_dwordx4 v{vLin}, {sp(sMld)} sc1\nglobal_load_lds_dwordx4 v{vLin}, {sp(sMld)} offset:1024 sc1')
        else: a(f'global_load_dwordx4 {vr(r,4)}, v{vLin}, {sp(sMld)} sc1\nglobal_load_dwordx4 {vr(r+4,4)}, v{vLin}, {sp(sMld)} offset:1024 sc1')
    def ldA(r):
        if ra == 1:
            for i in range(8): a(f'global_load_dword v{r+i}, v{T+1}, {sp(sAld)} offset:{256*i} sc1')
            return
        if ra == 2:
            for i in range(4): a(f'global_load_dwordx2 {vr(r+2*i,2)}, v{T+1}, {sp(sAld)} offset:{512*i} sc1')
            return
        a(f'global_load_dwordx4 {vr(r,4)}, v{vLin}, {sp(sAld)} sc1\nglobal_load_dwordx4 {vr(r+4,4)}, v{vLin}, {sp(sAld)} offset:1024 sc1')
    def spin(): a(f's_add_u32 s{sSpin}, s{sSpin}, 1\ns_cmp_gt_u32 s{sSpin}, {SPIN}\ns_cbranch_scc1 {LE}')
    acc = {'q': QA, 'k': KA, 'v': VA}
    def P_(m, sg, u): SM(acc[m]+4*u, M+4*sg, m, sg, u)
    for x_ in stg(('q',0), S0) + stg(('q',1), S1): a(x_)
    for r in range(8): a(f'v_min_u32 v{M+r}, -2, v{M+r}')
    if yd: a(f's_lshl_b32 s{sLb}, s{sW}, 11\ns_add_u32 s{sLb}, s{sLb}, {L_MQ}')
    if ps: a(f'''
    s_lshl_b32 s{sLb}, s{sW}, 10
    v_add_u32 v{vKr}, s{sLb}, v{vXr}
    s_add_u32 s{sLb}, s{sLb}, {L_X+4096}
    v_add_u32 v{T}, s{sLb}, v{vLin}
    v_mov_b64 {vr(T+4,2)}, 0
    v_mov_b64 {vr(T+6,2)}, 0
    ds_write_b128 v{T}, {vr(T+4,4)}
    s_lshl_b32 s{sLb}, s{sW}, 8
    s_add_u32 s{sLb}, s{sLb}, {L_S}
    s_waitcnt vmcnt(0)
    ''')
    pre1(); pre2()
    if yd: a(f'ds_write_b128 v{T+3}, {vr(M,4)}\nds_write_b128 v{T+3}, {vr(M+4,4)} offset:1024')
    a('s_waitcnt vmcnt(0) lgkmcnt(0)')
    if mega: a(f's_cmp_lg_u32 s{sXcc}, 0\ns_cbranch_scc1 {L("s_try")}')
    a(f's_branch {L("try")}')
    staged0 = dict(staged)
    def loop(L, stc, mk=mk, rdw=rdw):
        staged.clear(); staged.update(staged0)
        dm = [f'global_load_lds_dwordx4 v{vLin}, {sp(sKN)} offset:{j*1024} sc1' for j in range(2)] + \
             [f'global_load_dwordx4 {vr(KX+4*j,4)}, v{vLin}, {sp(sKV)} offset:{(j-2)*1024} sc1' for j in (2,3)]
        kvb = int('kv@B0' in vp.split()); kvst = f'global_store_dwordx4 v{vLin}, {vr(HK,4)}, {sp(sKVM)} sc1'
        a.label(L('retry'))
        spin()
        if prof: a(f's_add_u32 s{sP+26}, s{sP+26}, 59')
        if yd == 2:
            a('s_nop 2')
            for i in range(0,4,2): a(f'v_mov_b64 {vr(QA+i,2)}, 0')
            for i in range(0,8,2): a(f'v_mov_b64 {vr(KA+i,2)}, 0')
            a(f's_waitcnt vmcnt({kvb})')
            ldM(None)
            if kvb: a(kvst)
        elif yd:
            a(f's_waitcnt lgkmcnt(0)\ns_cmp_eq_u32 s{sGot}, 0\ns_cbranch_scc1 {L("r1")}\ns_barrier')
            ldM(None)
            a.label(L('r1'))
            a(f's_mov_b32 s{sGot}, 1\ns_sub_u32 s{sC}, m0, s{sM0kv}\ns_add_u32 s{sC}, s{sC}, {L_KV}')
            for i in range(4): a(f's_xor_b32 s{sA}, s{sW}, {i}\ns_mul_i32 s{sA}, s{sA}, {KVS}\ns_add_u32 s{sA}, s{sA}, s{sC}\nv_add_u32 v{T+(i-1)%4}, s{sA}, v{vLin}')
            for i in range(0,8,2): a(f'v_mov_b64 {vr(KA+i,2)}, 0')
            for i in range(0,8,2): a(f'v_mov_b64 {vr(QA+i,2)}, 0')
            a('s_waitcnt vmcnt(0)')
        else:
            a(f's_waitcnt vmcnt({kvb})')
            for i in range(0,8,2): a(f'v_mov_b64 {vr(M+i,2)}, {vr(P2+i,2)}')
            ldM(P2)
            if kvb: a(kvst)
            for i in range(0,8,2): a(f'v_mov_b64 {vr(QA+i,2)}, 0')
        a(f's_branch {L("try")}')
        a.label(L('step'))
        n = pre1(L)
        if wB:
            cur = n + 3
            for w_ in (3,2,1,0):
                a.nops(wB[w_] - cur - (2 if w_ else 0)); cur = max(cur + (2 if w_ else 0), wB[w_])
                if w_: a(f's_cmp_eq_u32 s{sW}, {w_}\ns_cbranch_scc1 {L("p1")}')
            a.label(L('p1'))
        else: a.nops(preB - n - 3)
        ldM(M)
        n = pre2(L); a.nops(gapB - n - 2)
        a.label(L('rk'))
        ldM(P2)
        if kvb: a(kvst)
        a(f's_waitcnt vmcnt({2+kvb}) lgkmcnt(0)')
        a.label(L('try'))
        a.nds = 0; a.nvm = 2 + kvb; set2 = 2
        stamp('a0')
        ck = M+8
        if not yd:
            mw = [f'ds_write_b128 v{T+3}, {vr(M,4)}', f'ds_write_b128 v{T+3}, {vr(M+4,4)} offset:1024']
            if wsh == 3: mw = [f'ds_write_b64 v{T+3}, {vr(M+2*i,2)} offset:{(i//2)*1024+(i%2)*8}' for i in range(4)]
            for _ in range({0:2, 1:0, 2:1, 3:0, 4:0}[wsh]): a(mw.pop(0))
            P_('q',0,0)
            for _ in range({0:0, 1:1, 2:1, 3:2, 4:2}[wsh]): a(mw.pop(0))
            stamp('w0')
            a(f'v_max_u32 v{ck}, v{M}, v{M+4}' if fc else f'v_max3_u32 v{ck}, v{M}, v{M+2}, v{M+4}')
            if fc == 2: a(f'v_cmp_eq_u32 vcc, -1, v{ck}')
            P_('q',0,1)
            for x_ in mw: a(x_)
            stamp('w1')
            if fc == 2: a(f's_cbranch_vccnz {L("retry")}')
            elif fc:
                a(f'v_cmp_eq_u32 vcc, -1, v{ck}')
                P_('q',1,0); a(f's_cbranch_vccnz {L("retry")}')
            else:
                a(f'v_max_u32 v{ck}, v{ck}, v{M+6}')
                if mk == 8: a(f'v_max3_u32 v{ck}, v{ck}, v{M+1}, v{M+3}\nv_max3_u32 v{ck}, v{ck}, v{M+5}, v{M+7}')
                P_('q',1,0); a(f'v_cmp_eq_u32 vcc, -1, v{ck}')
                P_('q',1,1); a(f's_cbranch_vccnz {L("retry")}')
        rlate = any(x_[0] == 'r' and x_[1] != 'm' and x_[3] in 'CW' for x_ in vp.split())
        NG2 = T if rlate else NEG
        rs = [f'global_store_dwordx4 v{vLin}, {vr(NG2,4)}, {sp(sArs)} offset:{1024*i}{stc}' for i in range(2)]
        if rdw: rs = [f'global_store_dword v{vLin}, v{NG2}, {sp(sArs)} offset:{1024*i}{stc}' for i in range(2)]
        vops = dict(d0=dm[0], d1=dm[1], d2=dm[2], d3=dm[3], r0=rs[0], r1=rs[1],
                    kv=f'global_store_dwordx4 v{vLin}, {vr(HK,4)}, {sp(sKVM)} sc1',
                    fl=f's_mov_b64 exec, {sp(sFm)}\nglobal_store_dword v{vLin}, v{T+4}, {sp(sFl)} sc1\ns_mov_b64 exec, -1',
                    tc=f'global_load_lds_dword v{vTc}, {sp(sWs)} offset:2048{tsc}',
                    rm=f'global_store_dword v{vMst}, v{NEG}, {sp(sMst)}{stc}')
        vt = {}
        def VM(slot):
            for x_ in vp.split():
                o, s_ = x_.split('@')
                if s_ != slot: continue
                k_ = slot[0]; n_ = int(slot[1:])
                if yd == 2: assert k_ != 'Q' or n_ > 2 + (o[0] == 'r')
                if yd == 1 and o != 'kv': assert k_ != 'Q' or n_ > ckp[3] + 1 + (o[0] == 'r') * 2
                if o[0] == 'r': assert k_ == 'Q' and (1 if o == 'rm' or rdw else 4) <= n_ or k_ == 'V' or k_ in 'CW' and o != 'rm'
                if o == 'fl': assert k_ in 'AQV'
                if o == 'kv': assert k_ in 'PACW' or k_ == 'Q' and n_ < 21
                if o in ('d0', 'd1', 'tc'): assert 'd2' in vt and 'd3' in vt and 'rm' in vt
                if o in skip: vt[o] = a.nvm; continue
                vt[o] = a(vops[o])
            stamp(slot)
        mt = {}
        def rdM(sg): mt[sg] = a(f'ds_read_b128 {vr(M+4*sg,4)}, v{T+(sg//2-1)%4} offset:{1024*(sg%2)}')
        vq = [(sg,u) for sg in ((4,5,6,7,0,1,2,3) if yd else (0,1,4,5,6,7,2,3)) for u in (0,1)]
        def V_():
            sg, u = vq.pop(0); P_('v', sg, u)
        g1 = stg(('k',6), S0) + stg(('k',7), S1); tg1 = []
        def G1(i):
            if sgq <= i < sgq + 8: tg1.append(a(g1[i-sgq]))
        rq = [2,3,4,5,6,7]
        for j in range(3-fc,0 if yd else 12):
            if j == 3 - fc: pass
            elif j < 4: P_('q',1,j%2)
            elif j < 8: P_('k',(j-4)//2,j%2)
            else: V_()
            if vmf and j >= 4: VM('P0' if j == 4 else f'A{j-5}')
            if j > pb1 - 1 and rq and (rq[0] < 4 or j >= 3 + rq[0]//2): rdM(rq.pop(0))
            if j >= 9: G1(j-12)
            if not vmf and j >= 4: VM('P0' if j == 4 else f'A{j-5}')
            if j == pb1 - 1:
                a(f's_waitcnt lgkmcnt(0)\ns_barrier')
                stamp('a1')
                for _ in range(nr0): rdM(rq.pop(0))
        if yd == 1:
            a('s_barrier'); stamp('a1'); rq = list(range(8))
        if yd == 2: rq = [0,1]
        while rq: rdM(rq.pop(0))
        stamp('a2')
        QP = T+6; D0 = T; D1 = T+8; Dm = VA; X = XO
        def half(r, d): return [f'v_add_f32 v{r}, v{r}, v{r+2}', f'v_add_f32 v{r+1}, v{r+1}, v{r+3}', f'v_cvt_pk_bf16_f32 v{d}, v{r}, v{r+1}']
        a.wds(mt[0 if yd else 2])
        seq = [('q',s_,0) for s_ in range(2,8)] + [('q',2,1),('q',3,1),('k',6,0),('k',6,1),('k',7,0),('k',7,1)] + \
              [('q',s_,1) for s_ in range(4,8)] + [('k',s_,0) for s_ in range(2,6)] + [('k',s_,1) for s_ in range(2,6)]
        z0 = [f'v_mov_b64 {vr(M+2*i,2)}, 0' for i in range(4,8)]
        kx = [f'ds_read_b128 {vr(S+4*i,4)}, v{vKr} offset:{(i//2)*KVS+(i%2)*1024}' for i in range(8)]
        va = {i: f'v_mov_b32 v{NEG+i}, -1' for i in range(1 if rlate or rdw else 4)}
        for i, p_ in enumerate((4,5)): va[p_] = f'v_mov_b64 {vr(M+2*i,2)}, 0'
        wr = {}
        for p_, (r, d, off) in ((7, (QA, QP, 0)), (17, (QA+4, QP+1, 512)), (21, (KA, HK, 4))):
            for j, x_ in enumerate(half(r, d)): va[p_+j] = x_
            wr[p_+3] = f'ds_write_b32 v{vXw}, v{d} offset:{off}'
        xr = [f'ds_read_b64_tr_b16 {vr(X+2*i,2)}, v{vXr} offset:{i*512}' for i in range(8)]
        tx = []
        On = T+12; Cq = T+7
        rV = max([int(x_[4:]) for x_ in vp.split() if x_[0] == 'r' and x_[3] == 'V'] + [-1])
        fv = [f'v_mov_b64 {vr(On,2)}, {sp(sOne)}', f'v_mov_b64 {vr(On+2,2)}, {sp(sHalf)}', f'v_mov_b32 v{Cq}, s{sQc}', f'v_mov_b64 {vr(NEG+2,2)}, 0', f'v_mov_b64 {vr(NEG,2)}, 0']
        g2 = stg(('o',7), M+16)
        if yd:
            ku0 = [('k',s_,0) for s_ in range(1,6)]
            seq = [('q',0,0),('k',0,0),('k',0,1),('q',0,1),('q',1,0),('q',1,1)] + [('q',s_,u) for u in (0,1) for s_ in range(2,8)] + \
                  ku0[:kp] + [('k',6,0),('k',6,1),('k',7,0),('k',7,1)] + ku0[kp:] + [('k',s_,1) for s_ in range(1,6)]
            ck = NEG; got = 0
            va = {ckp[0]: f'v_max3_u32 v{ck}, v{M}, v{M+4}, v{M+8}', ckp[1]: f'v_max3_u32 v{ck}, v{ck}, v{M+12}, v{M+16}', ckp[2]: f'v_max3_u32 v{ck}, v{ck}, v{M+20}, v{M+24}',
                  ckp[3]: f'v_max_u32 v{ck}, v{ck}, v{M+28}', ckp[3]+1: f'v_cmp_eq_u32 vcc, -1, v{ck}', ckp[3]+3: f'v_mov_b32 v{NEG}, -1'}
            wr = {}
            for p_, (r, d, off) in ((13, (QA, QP, 0)), (19, (QA+4, QP+1, 512)), (28, (KA, HK, 4))):
                for j, x_ in enumerate(half(r, d)):
                    assert p_+j not in va
                    va[p_+j] = x_
                wr[p_+3] = f'ds_write_b32 v{vXw}, v{d} offset:{off}'
            fv = fv[:3]; fz = [f'v_mov_b64 {vr(M+2*i,2)}, 0' for i in range(4)]
            p6 = 18 + kp; g0 = ckp[3] + 2; NQK = 32
            if yd == 2:
                ku0 = [('k',s_,0) for s_ in range(2,6)]
                vo = [('v',0,0),('v',0,1),('v',1,0),('v',1,1)][:nvo]
                for x_ in vo: vq.remove(x_[1:])
                seq = [('q',0,0),('k',0,0),('k',0,1),('q',0,1),('q',1,0),('q',1,1),('k',1,0),('k',1,1)] + vo + \
                      ([('q',s_,u) for s_ in range(2,8) for u in (0,1)] if qo else [('q',s_,u) for u in (0,1) for s_ in range(2,8)]) + \
                      ku0[:kp] + [('k',6,0),('k',6,1),('k',7,0),('k',7,1)] + ku0[kp:] + [('k',s_,1) for s_ in range(2,6)]
                NQK = 32 + nvo
                va = {0: f'v_max_u32 v{ck}, v{M}, v{M+4}', 1: f'v_cmp_eq_u32 vcc, -1, v{ck}', 3: f'v_mov_b32 v{NEG}, -1'}
                wr = {}
                for p_, (r, d, off) in ((20 if qo else 15, (QA, QP, 0)), (23 if qo else 21, (QA+4, QP+1, 512)), (29, (KA, HK, 4))):
                    for j, x_ in enumerate(half(r, d)): va[p_+j+nvo] = x_
                    wr[p_+3+nvo] = f'ds_write_b32 v{vXw}, v{d} offset:{off}'
                p6 = 20 + kp + nvo; g0 = g0p
            for i in range(48):
                j = i - NQK
                if i < NQK: P_(*seq[i])
                else: V_()
                if vmf: VM(f'Q{i}' if i < NQK else f'V{j}')
                if yd == 2:
                    nd = 1 if i == 0 else seq[i+1][1] if i < 20 + nvo else 0
                    if i == 2:
                        a(f's_cbranch_vccnz {L("retry")}'); VM('P0'); a('s_barrier'); stamp('a1')
                        rdM(2); rdM(3); a(f's_mov_b32 m0, s{sVer}')
                    if 3 <= i < 7: rdM(i+1)
                else: nd = max([seq[i+1][1] if i < 11 else 0] + [(2,4,6,7)[c_] for c_ in range(4) if ckp[c_] == i])
                if nd > got: a.wds(mt[nd]); got = nd
                if i == g0 and yd == 1: a(f's_cbranch_vccnz {L("retry")}'); stamp('a3')
                if p6 - 1 <= i < p6 + 3: a.wds(tg1[2*(i-p6+1)+1])
                if g0 <= i < g0 + 8: tg1.append(a(g1[i-g0]))
                if i in wr: a(wr[i])
                if p6 + 4 <= i < p6 + 12: tkx = a(kx[i-p6-4])
                if not vmf: VM(f'Q{i}' if i < NQK else f'V{j}')
                if i in va: a(va[i])
                if i == NQK - 1: stamp('b0')
                if j == 1:
                    for x_ in half(KA+4, HK+1): a(x_)
                    wk = a(f'ds_write_b32 v{vXw}, v{HK+1} offset:516')
                if j == pB2: a.wds(wk); a('s_barrier'); stamp('b1')
                if j >= pB2:
                    for _ in range(ntr):
                        if len(tx) < 8: tx.append(a(xr[len(tx)])); busy = i
                if j >= max(g7 - 24, 10 - 2*len(g2)) and g2 and not (tx and busy == i): a(g2.pop(0))
                if j == 2: a(f's_mov_b64 vcc, {sp(sB0)}\ns_cmp_eq_u32 s{sT}, {nsteps-1}')
                if i == 47: a(f's_cbranch_scc1 {L("last")}')
                if 2 <= j and i < 47 and j != pB2:
                    if fv: a(fv.pop(0))
                    elif fz and not any(x_[0] == (0 if len(fz) > 2 else 1) for x_ in vq) and i >= (42 if len(fz) > 2 else 44) - 8*(nvo // 4): a(fz.pop(0))
            fv += fz
        MF = 'v_mfma_f32_16x16x32_bf16'
        p6 = 8
        if ps:
            seq = [('q',s_,u) for u in (0,1) for s_ in range(2,8)] + [('k',6,0),('k',6,1),('k',7,0),('k',7,1)] + [('k',s_,u) for u in (0,1) for s_ in range(2,6)]
            p6 = 12
            for p_ in range(17,20): del va[p_]
            for j, x_ in enumerate(half(QA+4, QP)): va[13+j] = x_
            del wr[20]
            B0 = T+8; B1 = T; DP = T+12
            for u in (0,1):
                wr[10+6*u] = f'ds_write_b64 v{vXw}, {vr(QP,2)} offset:{512*u}\nds_write_b32 v{vXw}, v{QP} offset:{4096+512*u+4}'
                rd_ = f'ds_read_b64_tr_b16 {vr(B0+2*u,2)}, v{vKr} offset:{512*u}\nds_read_b64_tr_b16 {vr(B1+2*u,2)}, v{vKr} offset:{4096+512*u}'
                wr[11+6*u] = rd_
            g5 = None
            xr += [f'ds_read2st64_b32 {vr(D0+2*i,2)}, v{T+5} offset0:{2*i} offset1:{2*i+1}' for i in range(2)]
        for i in range(0 if yd else 36):
            if i < 24: P_(*seq[i])
            else: V_()
            if i < 5: a.wds(mt[i+3])
            if p6 - 1 <= i < p6 + 3: a.wds(tg1[2*(i-p6+1)+1])
            G1(i)
            if i in wr: tw = a(wr[i])
            if ps:
                if i == 17: tq = tw
                if i == 16: g5 = stg(('o',5), S0) + stg(('o',6), S1)
                if i in (pad, pad+1):
                    for r in range(2*(i-pad), 2*(i-pad)+2): a(f'ds_add_f32 v{T+5}, v{DP+r} offset:{256*r}')
                if i in g56: a(g5.pop(0))
            elif pKx <= i < pKx + 8: tkx = a(kx[i-pKx])
            VM(f'Q{i}' if i < 24 else f'V{i-24}')
            if i in va: a(va[i])
            if ps and i == pmf:
                a.wds(tq)
                a(f'{MF} {vr(DP,4)}, {vr(KX,4)}, {vr(B0,4)}, 0\n{MF} {vr(DP,4)}, {vr(KX+4,4)}, {vr(B1,4)}, {vr(DP,4)}')
            if i == 23: stamp('b0')
            if i == 25:
                for x_ in half(KA+4, HK+1): a(x_)
                wk = a(f'ds_write_b32 v{vXw}, v{HK+1} offset:516')
            if i == 24 + pB2: a.wds(wk); a('s_barrier'); stamp('b1')
            if i >= 24 + pB2:
                for _ in range(ntr):
                    if len(tx) < len(xr): tx.append(a(xr[len(tx)])); busy = i
            if i >= max(g7, 34 - 2*len(g2)) and g2 and not (tx and busy == i): a(g2.pop(0))
            if i == 26: a(f's_mov_b64 vcc, {sp(sB0)}\ns_cmp_eq_u32 s{sT}, {nsteps-1}')
            if i == 35: a(f's_cbranch_scc1 {L("last")}')
            if 26 <= i < 35 and i != 24 + pB2 and not (tx and busy == i and ntr > 2) and fv and (len(fv) > 2 or i - 24 > rV): a(fv.pop(0))
        while len(tx) < len(xr): tx.append(a(xr[len(tx)]))
        stamp('c0')
        vf = half(VA, HV) + half(VA+4, HV+1)
        mx = T+4; tm = T+5; ma = T+6; vOr = T+4
        if not ps: g5 = stg(('o',5), S0); g6 = stg(('o',6), S1)
        P = T+8; Dd = T+10; Ba = XO; Bb = XO+4; Po = XO+8; Ls = XO+12
        MF = 'v_mfma_f32_16x16x32_bf16'
        lastc = list(vf)
        mg = [f'v_cndmask_b32_dpp v{D0+r}, v{D1+r}, v{D0+r}, vcc quad_perm:[0,1,0,1] {DPPM}' for r in range(4)] + \
             [f'v_max3_f32 v{mx}, v{D0}, v{D0+1}, v{D0+2}', f'v_max_f32 v{mx}, v{mx}, v{D0+3}']
        rest = g2 + fv
        a.wds(tx[{0: 7, 1: 3, 2: 1}[wx]])
        Dq = Dm
        if ps:
            Dq = D1; g6 = g2 + g5; rest = []
            fl_ = fv + vf[:3] + mg[4:] + vf[3:]
            for i in range(4):
                r = X+4*i; a(f'{MF} {vr(Dq,4)}, {vr(r,4)}, {vr(r,4)}, {vr(Dq,4) if i else 0}')
                stamp(f'M{i}')
                if i == 1: a.wds(tx[9])
                for _ in range(2):
                    if g6: a(g6.pop(0))
                for _ in range(2 if i else 1): a(fl_.pop(0))
            for x_ in fl_: a(x_)
        for i in range(0 if ps else 12):
            if i < 8:
                w_ = i//2; d = (D0, D1)[i%2]
                a(f'{MF} {vr(d,4)}, {vr(S+4*i,4)}, {vr(X+4*w_,4)}, {vr(d,4) if w_ else 0}')
            else:
                r = X+4*(i-8); a(f'{MF} {vr(Dm,4)}, {vr(r,4)}, {vr(r,4)}, {vr(Dm,4) if i > 8 else 0}')
            stamp(f'M{i}')
            if i == 0:
                for _ in range(2):
                    if rest: a(rest.pop(0))
            elif i == 1 and wx == 2: a.wds(tx[3]); a(vf.pop(0))
            elif i == 3 and wx: a.wds(tx[7]); a(vf.pop(0))
            elif i < 4: a(vf.pop(0)); a(vf.pop(0))
            elif i < 8:
                a(g5.pop(0))
                if vf: a(vf.pop(0))
                elif rest: a(rest.pop(0))
                elif i >= 6: a(g6.pop(0))
            elif i == 8: a(g6.pop(0)); a(g6.pop(0))
            else: a(mg.pop(0)); a(mg.pop(0))
        assert not rest
        for x_ in g6: a(x_)
        stamp('c1')
        a(f'v_max_f32_dpp v{mx}, v{mx}, v{mx} quad_perm:[2,3,0,1] {DPPM}')
        a(f'v_mul_f32 v{mx}, v{mx}, v{Cq}')
        a(f'v_mul_f32_dpp v{Dm}, v{Dq+2}, v{Cq} quad_perm:[0,1,0,1] {DPPM}')
        a(f'v_mul_f32_dpp v{Dm+1}, v{Dq+3}, v{Cq} quad_perm:[0,1,0,1] {DPPM}')
        a(f'v_max3_f32 v{tm}, v{mx}, v{Dm}, v{Dm+1}')
        a(f'v_max3_f32 v{mx}, v{mx}, v{Dm}, v{Dm+1}')
        a(z0.pop()); a(z0.pop())
        a(f'v_permlane16_swap_b32 v{mx}, v{tm}\nv_max_f32 v{ma}, v{mx}, v{tm}\nv_max_f32 v{mx}, v{mx}, v{tm}')
        a(z0.pop()); a(z0.pop())
        a(f'v_permlane32_swap_b32 v{mx}, v{ma}\nv_max_f32 v{mx}, v{mx}, v{ma}')
        ex = [Dm, Dm+1, T, T+1, T+2, T+3]
        for r in ex[:2]: a(f'v_sub_f32 v{r}, v{r}, v{mx}')
        for r in ex[2:]: a(f'v_fma_f32 v{r}, v{r}, v{Cq}, -v{mx}')
        for r in ex[:4]: a(f'v_exp_f32 v{r}, v{r}')
        a(f'v_cvt_pk_bf16_f32 v{Dm}, v{Dm}, v{Dm+1}')
        for r in ex[4:]: a(f'v_exp_f32 v{r}, v{r}')
        stamp('c2')
        a.wvm(max(vt['d2'], vt['d3'], vt['rm']))
        a(f"""
        v_cvt_pk_bf16_f32 v{P}, v{T}, v{T+1}
        v_and_b32 v{Dd}, v{Dm}, v{vM0}
        v_and_b32 v{Dd+1}, v{Dm}, v{vM1}
        v_cvt_pk_bf16_f32 v{P+1}, v{T+2}, v{T+3}
        v_and_b32 v{Ba}, v{P}, v{vM0}
        v_mfma_f32_16x16x16_bf16 {vr(Po,4)}, {vr(HV,2)}, {vr(Dd,2)}, 0
        v_and_b32_dpp v{Ba+2}, v{P}, v{vM0} quad_perm:[2,3,0,1] {DPPM}
        v_and_b32 v{Ba+1}, v{P+1}, v{vM0}
        v_mfma_f32_16x16x32_bf16 {vr(Ls,4)}, {vr(On,4)}, {vr(P,4)}, 0
        v_and_b32_dpp v{Ba+3}, v{P+1}, v{vM0} quad_perm:[2,3,0,1] {DPPM}
        v_and_b32_dpp v{Bb}, v{P}, v{vM1} quad_perm:[2,3,0,1] {DPPM}
        v_and_b32_dpp v{Bb+1}, v{P+1}, v{vM1} quad_perm:[2,3,0,1] {DPPM}
        v_mfma_f32_16x16x32_bf16 {vr(Po,4)}, {vr(VX,4)}, {vr(Ba,4)}, {vr(Po,4)}
        v_and_b32 v{Bb+2}, v{P}, v{vM1}
        v_and_b32 v{Bb+3}, v{P+1}, v{vM1}
        v_and_b32 v{vOr}, -9, v{vOw}
        v_xor_b32 v{vOr+1}, 512, v{vOr}
        v_mfma_f32_16x16x32_bf16 {vr(Po,4)}, {vr(VX+4,4)}, {vr(Bb,4)}, {vr(Po,4)}
        v_add_f32_dpp v{Ls}, v{Ls}, v{Ls} quad_perm:[2,3,0,1] {DPPM}
        v_rcp_f32 v{Ls}, v{Ls}
        v_xor_b32 v{vOr+2}, 1024, v{vOr}
        v_xor_b32 v{vOr+3}, 1536, v{vOr}
        """)
        assert not z0
        if rlate: a(f'v_mov_b64 {vr(T,2)}, -1' + ('' if rdw else f'\nv_mov_b64 {vr(T+2,2)}, -1'))
        a(f"""
        v_mul_f32 v{Po}, v{Po}, v{Ls}
        v_mul_f32 v{Po+1}, v{Po+1}, v{Ls}
        v_mul_f32 v{Po+2}, v{Po+2}, v{Ls}
        v_mul_f32 v{Po+3}, v{Po+3}, v{Ls}
        v_cvt_pk_bf16_f32 v{Po}, v{Po}, v{Po+1}
        v_cvt_pk_bf16_f32 v{Po+1}, v{Po+2}, v{Po+3}
        """)
        O = XO
        ow = a(f'ds_write_b64 v{vOw}, {vr(Po,2)}')
        ot = [a(f'ds_read_b128 {vr(O,4)}, v{vOr}')]
        stamp('c3')
        VM('C0')
        a.wds(ow); a('s_barrier')
        stamp('d0')
        for k_ in range(1,4): ot.append(a(f'ds_read_b128 {vr(O+4*k_,4)}, v{vOr+k_}'))
        VM('C1')
        PS = VA
        def W_(G, ki): SM(M+4*G, O+4*ki, 'o', 2*ki+G//2, G%2)
        def cv(G): return [f'v_cvt_pk_bf16_f32 v{PS+2*G+h_}, v{M+4*G+2*h_}, v{M+4*G+2*h_+1}' for h_ in range(2)]
        a.wds(ot[0])
        for G in range(4):
            W_(G, 0); VM(f'W{G}')
        a.wds(ot[1])
        stamp('d1')
        if w4:
            def st_(G):
                c_ = cv(G)
                if dw: return sum([[c_[h_], f'v_min_u32 v{PS+2*G+h_}, -2, v{PS+2*G+h_}', f'global_store_dword v{vPst}, v{PS+2*G+h_}, {sp((sSt0,sSt1)[h_])} offset:{2048*G-4096}{stc}'] for h_ in range(2)], [])
                return [c_[0], f'v_min_u32 v{PS+2*G}, -2, v{PS+2*G}', c_[1], f'global_store_dwordx2 v{vPst}, {vr(PS+2*G,2)}, {sp(sSt0)} offset:{2048*G-4096}{stc}']
            fl_ = [f'v_mov_b32 v{T+2}, 0x3f80', f'v_mov_b32 v{T+3}, 0x3f800000', f'v_cndmask_b32 v{T+2}, v{T+2}, v{T+3}, {sp(sPm)}']
            W_(0,1); a.wds(ot[2]); W_(0,2); a.wds(ot[3]); W_(0,3)
            if wo >= 4:
                sd = lambda G, h_: f'global_store_dword v{vPst}, v{PS+2*G+h_}, {sp((sSt0,sSt1)[h_])} offset:{2048*G-4096}{stc}'
                for G in range(1,4):
                    c_ = cv(G-1)
                    W_(G,1)
                    if G > 1 and wo == 4: a(sd(G-2,1))
                    a(fl_.pop(0))
                    W_(G,2); a(c_[0])
                    if wo == 5: a(c_[1])
                    W_(G,3); a(sd(G-1,0))
                    if wo == 5: a(sd(G-1,1))
                    else: a(c_[1])
                a(f'v_cndmask_b32 v{Sel}, 0, v{T+2}, {sp(sSel)}')
                if wo == 4: a(sd(2,1))
                for i in range(1,4): a(f'v_cndmask_b32 v{Sel+i}, 0, v{T+2}, {sp(sSel+2*i)}')
                for x_ in cv(3) + [sd(3,0), sd(3,1)]: a(x_)
            for G in range(1,4 if wo < 4 else 0):
                q_ = st_(G-1)
                W_(G,1); a(fl_.pop(0))
                if wo == 2 and G == 1:
                    for x_ in q_: a(x_)
                    q_ = []
                W_(G,2)
                for _ in range((6 if wo >= 1 and G == 1 else 3) if dw else 4 if wo >= 1 and G == 1 else 2):
                    if q_: a(q_.pop(0))
                W_(G,3)
                for x_ in q_: a(x_)
            if wo < 4:
                for i in range(4): a(f'v_cndmask_b32 v{Sel+i}, 0, v{T+2}, {sp(sSel+2*i)}')
                for x_ in st_(3): a(x_)
        else:
            W_(0,1); VM('W4'); W_(1,1); a.wds(ot[2]); VM('W5'); W_(0,2); VM('W6'); W_(1,2); a.wds(ot[3]); VM('W7'); W_(0,3); VM('W8'); W_(1,3)
            c0 = cv(0); c1 = cv(1); c2 = cv(2); c3 = cv(3)
            W_(2,1); a(c0[0])
            W_(2,2); a(c0[1]); a(c1[0])
            W_(2,3); a(c1[1]); a(f'v_min_u32 v{PS}, -2, v{PS}')
            W_(3,1); a(f'global_store_dwordx4 v{vPst}, {vr(PS,4)}, {sp(sSt0)}{stc}')
            W_(3,2); a(c2[0])
            W_(3,3); a(c2[1]); a(f'v_min_u32 v{PS+4}, -2, v{PS+4}')
            a(f'v_mov_b32 v{T+2}, 0x3f80\nv_mov_b32 v{T+3}, 0x3f800000')
            a(f'v_cndmask_b32 v{T+2}, v{T+2}, v{T+3}, {sp(sPm)}')
            a(c3[0]); a(c3[1])
            a(f'global_store_dwordx4 v{vPst}, {vr(PS+4,4)}, {sp(sSt1)}{stc}')
        stamp('h0')
        if 'ack' in opt: a('s_waitcnt vmcnt(0)'); stamp('hk')
        n0 = len(a.items)
        for x_ in stg(('q',0), S0) + stg(('q',1), S1): a(x_)
        if not w4:
            for i in range(4): a(f'v_mov_b32 v{Sel+i}, v{T+2}' if ra == 1 else f'v_cndmask_b32 v{Sel+i}, 0, v{T+2}, {sp(sSel+2*i)}')
            if ra in (1,2): a(f'v_lshrrev_b32 v{T+1}, {3-ra}, v{vLin}\nv_cndmask_b32 v{T+3}, -1, -2, {sp(sSel)}')
            a.nops(preA - (len(a.items) - n0))
        else:
            cur = len(a.items) - n0
            for w_ in range(4):
                a.nops(w4[w_] - cur - (2 if w_ < 3 else 0)); cur = max(cur + (2 if w_ < 3 else 0), w4[w_])
                if w_ < 3: a(f's_cmp_eq_u32 s{sW}, {w_}\ns_cbranch_scc1 {L("p0")}')
            a.label(L('p0'))
        R1 = M+8; R2 = P2
        def redA(R):
            if ra == 2:
                a(f"""
                s_waitcnt vmcnt(6)
                v_mfma_f32_16x16x32_bf16 {vr(Dr,4)}, {vr(Sel,4)}, {vr(R,4)}, 0
                s_waitcnt vmcnt(4)
                v_mfma_f32_16x16x32_bf16 {vr(Dr,4)}, {vr(Sel,4)}, {vr(R+4,4)}, {vr(Dr,4)}
                v_max3_u32 v{T}, v{R}, v{R+2}, v{R+4}
                v_max_u32 v{T}, v{T}, v{R+6}
                v_cmp_gt_u32 vcc, v{T}, v{T+3}
                """)
                return
            if ra == 4:
                a(f"""
                s_waitcnt vmcnt(3)
                v_mfma_f32_16x16x32_bf16 {vr(Dr,4)}, {vr(Sel,4)}, {vr(R,4)}, 0
                {f'v_max3_u32 v{T}, v{R}, v{R+1}, v{R+2}' if dw and mk == 8 else ''}
                s_waitcnt vmcnt(2)
                v_mfma_f32_16x16x32_bf16 {vr(Dr,4)}, {vr(Sel,4)}, {vr(R+4,4)}, {vr(Dr,4)}
                {f'v_max3_u32 v{T}, v{T}, v{R+3}, v{R+4}{NL}v_max3_u32 v{T}, v{T}, v{R+5}, v{R+6}{NL}v_max_u32 v{T}, v{T}, v{R+7}' if dw and mk == 8 else f'v_max3_u32 v{T}, v{R}, v{R+2}, v{R+4}{NL}v_max_u32 v{T}, v{T}, v{R+6}' if w4 and not dw else f'v_max_u32 v{T}, v{R}, v{R+4}'}
                v_cmp_eq_u32 vcc, -1, v{T}
                """)
                return
            if ra:
                a(f"""
                s_waitcnt vmcnt(12)
                v_mfma_f32_16x16x32_bf16 {vr(Dr,4)}, {vr(R,4)}, {vr(Sel,4)}, 0
                v_max3_u32 v{T}, v{R}, v{R+1}, v{R+2}
                s_waitcnt vmcnt(8)
                v_mfma_f32_16x16x32_bf16 {vr(Dr,4)}, {vr(R+4,4)}, {vr(Sel,4)}, {vr(Dr,4)}
                v_max3_u32 v{T}, v{T}, v{R+3}, v{R+4}
                v_max3_u32 v{T}, v{T}, v{R+5}, v{R+6}
                v_max_u32 v{T}, v{T}, v{R+7}
                v_cmp_gt_u32 vcc, v{T}, v{T+3}
                """)
                return
            a(f"""
            s_waitcnt vmcnt(3)
            v_mfma_f32_16x16x32_bf16 {vr(Dr,4)}, {vr(R,4)}, {vr(Sel,4)}, 0
            s_waitcnt vmcnt(2)
            v_mfma_f32_16x16x32_bf16 {vr(Dr,4)}, {vr(R+4,4)}, {vr(Sel,4)}, {vr(Dr,4)}
            v_max_u32 v{T}, v{R}, v{R+4}
            v_cmp_eq_u32 vcc, -1, v{T}
            """)
        ldA(R1)
        a.nops(gapA - {0:2, 1:8, 2:4, 4:2}[ra])
        a.label(L('pa'))
        ldA(R2)
        redA(R1)
        if ft: a(f's_cbranch_vccnz {L("pb")}')
        else:
            a(f's_cbranch_vccz {L("qa")}')
            ldA(R1); spin()
            redA(R2)
            a(f's_cbranch_vccnz {L("pa")}')
        a.label(L('qa'))
        stamp('h1')
        if ra > 1:
            for ro in ((8,) if ra == 2 else (8,4)):
                for r in range(2): a(f'v_add_f32_dpp v{Dr+r}, v{Dr+r}, v{Dr+r} row_ror:{ro} {DPPM}')
            a(f"""
            s_mov_b64 exec, {sp(sPub)}
            v_cvt_pk_bf16_f32 v{Dr}, v{Dr}, v{Dr+1}
            {'' if nc else f'v_min_u32 v{Dr}, -2, v{Dr}'}
            global_store_dword v{vMst}, v{Dr}, {sp(sMst)}{stc}
            """)
        elif ra: a(f"""
        s_mov_b64 exec, {sp(sPub)}
        v_cvt_pk_bf16_f32 v{Dr}, v{Dr}, v{Dr+1}
        v_cvt_pk_bf16_f32 v{Dr+1}, v{Dr+2}, v{Dr+3}
        v_min_u32 v{Dr}, -2, v{Dr}
        global_store_dwordx2 v{vMst}, {vr(Dr,2)}, {sp(sMst)}{stc}
        """)
        else: a(f"""
        v_permlane32_swap_b32 v{Dr}, v{Dr+2}
        v_permlane32_swap_b32 v{Dr+1}, v{Dr+3}
        v_add_f32 v{Dr}, v{Dr}, v{Dr+2}
        v_add_f32 v{Dr+1}, v{Dr+1}, v{Dr+3}
        v_permlane16_swap_b32 v{Dr}, v{Dr+1}
        v_add_f32 v{Dr}, v{Dr}, v{Dr+1}
        v_mov_b32_dpp v{Dr+1}, v{Dr} quad_perm:[1,0,3,2] {DPPM}
        v_cvt_pk_bf16_f32 v{Dr}, v{Dr}, v{Dr+1}
        s_mov_b64 exec, {sp(sPub)}
        v_min_u32 v{Dr}, -2, v{Dr}
        global_store_dword v{vMst}, v{Dr}, {sp(sMst)}{stc}
        """)
        stamp('h2')
        a(f"""
        s_mov_b64 exec, -1
        """)
        if w4 and bb: a('s_barrier')
        stamp('h3')
        tstamp(f's{sT}')
        if prof and len(stamps) >= 2:
            a('s_waitcnt lgkmcnt(0)')
            for i in range(len(stamps)-1): a(f's_sub_u32 s{sA}, s{sP+2*i+2}, s{sP+2*i}\ns_add_u32 s{sP+21+i}, s{sP+21+i}, s{sA}')
        if prof:
            a(f's_cmp_lg_u32 s{sT}, 3\ns_cbranch_scc1 {L("pf1")}\ns_memtime {sp(sP+28)}\ns_mov_b32 s{sSpin}, 0')
            for i in range(6): a(f's_mov_b32 s{sP+21+i}, 0')
            a(f'{L("pf1")}:\ns_cmp_lg_u32 s{sT}, {nsteps-2}\ns_cbranch_scc1 {L("pf2")}\ns_memtime {sp(sP)}\ns_waitcnt lgkmcnt(0)\ns_sub_u32 s{sP+20}, s{sP}, s{sP+28}\n{L("pf2")}:')
        a(f's_add_u32 s{sT}, s{sT}, 1\ns_branch {L("step")}')
        if ft:
            a.label(L('pb'))
            ldA(R1); spin()
            redA(R2)
            a(f's_cbranch_vccnz {L("pa")}\ns_branch {L("qa")}')
        a.label(L('rp'))
        if ps: a(f'v_lshrrev_b32 v{T+6}, 2, v{vLin}')
        a(f'global_load_dword v{T+6}, v{T+6 if ps else T+5}, {sp(sFK)} sc1')
        spin()
        a('s_waitcnt vmcnt(0)')
        fkeval(T+6)
        a(f's_cmp_lt_u32 s{sA}, s{sRdy}\ns_cbranch_scc1 {L("rk")}\ns_sleep 2\ns_branch {L("rp")}')
        a.label(L('last'))
        a('s_nop 7')
        for x_ in lastc: a(x_)
        a(f's_branch {LE}')
    loop(L, stc)
    if mega: loop(lambda x: L('s_' + x), ' sc1', *((8, 0) if dw else ()))
    a.label(L('end'))
    a('s_mov_b64 exec, -1\ns_nop 7')
    a(f'''
    s_add_u32 s{sKVM}, s{sKVM}, {0 if kvnow else 32*4096}
    s_addc_u32 s{sKVM+1}, s{sKVM+1}, 0
    global_store_dwordx4 v{vLin}, {vr(HK,4)}, {sp(sKVM)} sc1
    v_mov_b32 v{T}, 0x41
    s_waitcnt vmcnt(0)
    s_barrier
    s_mov_b64 exec, {sp(sFm)}
    global_store_dword v{vLin}, v{T}, {sp(sFl)} sc1
    s_mov_b64 exec, -1
    ''')
    if prof:
        for i in range(7): a(f'v_mov_b32 v{T+i}, s{sP+20+i}')
        a(f'''
        v_mov_b32 v{T+7}, s{sSpin}
        s_lshl_b32 s{sA}, s{sH}, 2
        s_add_u32 s{sA}, s{sA}, s{sW}
        s_lshl_b32 s{sA}, s{sA}, 5
        s_add_u32 s{sA}, s{sA}, {WS_PROF}
        v_mov_b32 v{T+8}, s{sA}
        s_mov_b64 exec, 1
        global_store_dwordx4 v{T+8}, {vr(T,4)}, {sp(sWs)}
        global_store_dwordx4 v{T+8}, {vr(T+4,4)}, {sp(sWs)} offset:16
        s_mov_b64 exec, -1
        ''')
    tl(a, 4, T, 0)
    a('s_waitcnt vmcnt(0) lgkmcnt(0)')

def standalone(name='chain_kernel', **kw):
    a = Asm()
    a.raw(khead(name))
    a(f'''
    s_load_dwordx2 {sp(sMem)}, s[0:1], 8
    s_load_dwordx4 s[8:11], s[0:1], 24
    s_load_dwordx2 {sp(sWq)}, s[0:1], 16
    s_load_dwordx2 {sp(sWo)}, s[0:1], 40
    s_load_dwordx2 {sp(sDbg)}, s[0:1], 104
    s_load_dwordx2 {sp(sWs)}, s[0:1], 112
    s_getreg_b32 s{sA}, hwreg(HW_REG_XCC_ID)
    s_and_b32 s{sA}, s{sA}, 15
    s_mov_b32 s{sXcc}, s{sA}
    s_waitcnt lgkmcnt(0)
    s_cmp_lg_u32 s{sA}, 0
    s_cbranch_scc1 L_done_{name}
    v_mov_b32 v1, 0
    v_mov_b32 v2, 1
    v_lshrrev_b32 v4, 6, v0
    v_readfirstlane_b32 s{sW}, v4
    s_cmp_lg_u32 s{sW}, 0
    s_cbranch_scc1 L_t_{name}
    s_mov_b64 exec, 1
    global_atomic_add v3, v1, v2, {sp(sDbg)} offset:252 sc0 sc1
    s_waitcnt vmcnt(0)
    ds_write_b32 v1, v3
    s_waitcnt lgkmcnt(0)
    s_mov_b64 exec, -1
    L_t_{name}:
    s_barrier
    ds_read_b32 v3, v1
    s_waitcnt lgkmcnt(0)
    v_readfirstlane_b32 s{sH}, v3
    s_barrier
    s_cmp_gt_u32 s{sH}, 31
    s_cbranch_scc1 L_done_{name}
    ''')
    chain(a, name, **kw)
    a.label(f'L_done_{name}')
    a('s_endpgm')
    bad = a.check_branches()
    assert bad == 0
    return a

if __name__ == '__main__':
    import sys
    variants = eval(sys.argv[1]) if len(sys.argv) > 1 else [dict()]
    out = ''.join(f'; @launch kernel=c{i}_kernel grid=(256,1,1) block=(256,1,1) lds=163840\n' for i in range(len(variants)))
    out += '.amdgcn_target "amdgcn-amd-amdhsa--gfx950"\n.text\n'
    for i, v in enumerate(variants):
        a = standalone(f'c{i}_kernel', prof=True, **v); out += a.text()
    out += '.section .rodata,"a"\n' + ''.join(kdesc(f'c{i}_kernel') for i in range(len(variants)))
    open('chain.s','w').write(out)
    open('chain.json','w').write(repr(variants))
```

```python
from asmlib import *
import struct, math
WS_KV = 0; WS_V = 16<<20; KST = 32*8192; WS_QX = 32<<20; WS_KVM = 48<<20; WS_RA = 60<<20; WS_RM = 61<<20; WS_PROF = 62<<20
RA_SLOT = 128*2048; RM_SLOT = 8192
SLAB = 131072
def f32(x): return struct.unpack('<I', struct.pack('<f', x))[0]
QSCALE = f32(128**-0.5 * math.log2(math.e))

M=0; QV=32; KA=40; KX=48; XO=40; VX=56; S=64; T=96
vIdx,vLin,vKr,vTc,vXw,vXr,vPst,vMst,vLw,vOw,vM0,vM1,HK,_,HV,_2 = range(112,128)
sMem,sWq,sWk,sWv,sWo,sDbg,sWs = 4,6,8,10,12,14,16
sH,sW,sT,sSpin = 18,19,20,21
sTmp=22; sLb=24; sA=25; sB=26; sC=27
sKV=30; sKVM=32; sSt0=34; sSt1=36; sAld=38; sArs=40; sMld=42; sMst=44
sRA=46; sRAo=48; sRMl=50; sRMs=52
sB1=54; sSel=56; sPm=64; sPub=66; sM0kv=68; sQc=69
sFl=28; sXcc=3; sFm=100; sRdy=86; sVer=87; sFK=84; sGot=88; sNx=89
WS_FL = 63<<20; FL_K = 8192; FL_G = 16384; FL_P = 20480
ROLE_LDS = 163832
VERIFY = None
sP=70
SPIN=200000
NL = chr(10)
def sp(x): return f's[{x}:{x+1}]'

LDS_BLK = [('q',0),('q',1),('k',0),('k',6),('k',7),('o',5),('o',6),('o',7)]
NQ = 5
KVS = 2304
L_KV = SLAB+8192; L_MQ = SLAB; L_X = SLAB+28672; L_O = SLAB+26624
REG_BLK = [(m,i) for m in 'qkvo' for i in range(8) if (m,i) not in LDS_BLK]
def dest(b):
    i = REG_BLK.index(b)
    return ('a', 16*i) if i < 16 else ('v', 128 + 16*(i-16))

WS_TL = (62<<20) + 65536
TL = False
TLN = 0
def tl(a, i, v1, role_hi):
    if not TL: return
    if TL == 2:
        ch = (role_hi == 0)
        if i > 5: return
        a(f"""
        s_memrealtime s[90:91]
        s_waitcnt lgkmcnt(0)
        s_mov_b32 s{74+i}, s90
        """)
        if (ch and i == 4) or (not ch and i == 5):
            global TLN
            TLN += 1
            idx = [0,2,3,4] if ch else [0,3,4,5]
            a(f"""
            s_lshl_b32 s97, s{sH}, 2
            s_add_u32 s97, s97, s{sW}
            """)
            if not ch: a(f's_xor_b32 s96, {role_hi}, 4\ns_or_b32 s97, s97, s96')
            a(f's_cmp_lg_u32 s97, 0\ns_cbranch_scc1 Ltl2_{TLN}')
            for k_, j in enumerate(idx): a(f'v_mov_b32 v{v1+4+k_}, s{74+j}')
            a(f"""
            v_mov_b32 v{v1}, {32 if ch else 48}
            s_mov_b64 exec, 1
            global_store_dwordx4 v{v1}, v[{v1+4}:{v1+7}], {sp(sDbg)} sc1
            s_mov_b64 exec, -1
            Ltl2_{TLN}:
            """)
        return
    ch = (role_hi == 0)
    a(f"""
    s_memrealtime s[98:99]
    s_memtime s[90:91]
    s_waitcnt lgkmcnt(0)
    s_mov_b32 s{70+i}, s98
    """)
    if i < 6: a(f's_mov_b32 s{78+i}, s90')
    if (ch and i == 4) or (not ch and i == 5):
        a(f"""
        s_lshl_b32 s97, {role_hi}, 5
        s_add_u32 s97, s97, s{sH}
        s_lshl_b32 s97, s97, 2
        s_add_u32 s97, s97, s{sW}
        s_lshl_b32 s97, s97, 6
        s_add_u32 s97, s97, {WS_TL}
        v_mov_b32 v{v1}, s97
        s_mov_b64 exec, 1
        """)
        for j in range(14): a(f'v_mov_b32 v{v1+1}, s{70+j}\nglobal_store_dword v{v1}, v{v1+1}, {sp(sWs)} offset:{4*j}\ns_nop 1')
        if ch: a(f'v_mov_b32 v{v1+1}, s{sSpin}\nglobal_store_dword v{v1}, v{v1+1}, {sp(sWs)} offset:56\ns_nop 1')
        a('s_mov_b64 exec, -1')

def chain(a, tag, sc='', mega=False, prof=False, nsteps=64, preA=56, preB=44, gapA=48, gapB=48, sgq=-3, pKx=12, pB2=5, ntr=2, rdw=1, wx=1, g7=32, stamps=(), wnt=' nt', ont=None, mord='qkv', warm=22, fkb=22, fke=28, arr=10, fst=0, opipe=1, tls=(0,8,16), opt=(), tsc=' sc1', tdist=1, skip=(), ra=0, hp=0, dA=28, dB=28, gL=28, gL2=40, b1=5, b2=1, word=0, n3=1, w4=None, bb=1, psw=0, wo=0, dw=0, mk=1, wB=None, pb1=5, yd=0, ckp=(3,5,7,8), kp=3, qo=0, g0p=8, nvo=0, wsh=0, vmf=0, fc=0, nr0=2, ps=0, pmf=21, pad=23, g56=(18,19,20,26,27,28), ft=0, nc=0, vp=None):
    L = lambda x: f'L{tag}_{x}'
    DIR = True
    stc = (' ' + sc) if sc else ''
    LE = L('end')
    if ont is None: ont = wnt
    if yd and vp is None: vp = 'kv@Q2 d2@Q10 d3@Q13 rm@Q15 d0@Q17 fl@Q19 d1@Q21 tc@Q24 r0@Q27 r1@Q30'
    if vp is None: vp = 'kv@A0 d2@A2 d3@Q0 rm@Q2 d0@Q4 fl@Q6 d1@Q9 tc@Q12 r0@Q16 r1@Q20' if hp else 'kv@P0 d2@A2 d3@A6 rm@Q2 d0@Q4 fl@Q6 d1@Q9 tc@Q12 r0@Q16 r1@Q20'
    if w4: ra = 4; rdw = 1 if dw and mk == 1 else 0
    L_X = SLAB+18432 if ps else SLAB+28672
    L_S = SLAB+28672
    kvnow = any(x_[:2] == 'kv' and x_[3] in 'CW' for x_ in vp.split())
    staged = {}
    def B(m, i, u):
        if (m,i) in staged: return vr(staged[(m,i)] + 8*u, 8)
        k, b = dest((m,i)); return vr(b + 8*u, 8, k)
    def SM(acc, A, m, i, u): a(f'v_smfmac_f32_16x16x64_bf16 {vr(acc,4)}, {vr(A,4)}, {B(m,i,u)}, v{vIdx}')
    def stg(blk, r):
        slot = LDS_BLK.index(blk); staged[blk] = r
        return [f'ds_read_b128 {vr(r+4*i,4)}, v{vLw} offset:{slot*4096+i*1024}' for i in range(4)]
    AK = {}
    def stamp(i):
        if prof and i in stamps: a(f's_memtime {sp(sP+2*stamps.index(i))}')
        if f'ak:{i}' in opt: a.wvm(max(AK['vt'][o_] for o_ in ('d0','d1','tc'))); stamp('ak')

    lane,n_,g_,t1,t2,t3 = T,T+1,T+2,T+3,T+4,T+5
    vWa, vOa = KX+4, T+9
    vTr = VX
    vL4, vFd, vFk = T+6, T+7, KX
    vTo = KX+2
    a(f'''
    v_and_b32 v{lane}, 63, v0
    v_and_b32 v{n_}, 15, v0
    v_lshrrev_b32 v{g_}, 4, v{lane}
    v_lshlrev_b32 v{vLin}, 4, v{lane}
    s_lshl_b32 s{sLb}, s{sW}, 15
    s_mul_i32 s{sA}, s{sW}, {KVS}
    s_add_u32 s{sM0kv}, s{sA}, {L_KV}
    v_add_u32 v{vLw}, s{sLb}, v{vLin}
    ; cooperative qkv DMA: instr i=gb, r'=lane/16, p=lane%16 holds chunk p^(2r'+8gb0) of row 32(w&1)+8(w>>1)+4gb1+gb0+16(r'&1)+2(r'>>1)
    v_and_b32 v{t1}, 1, v{g_}
    v_lshrrev_b32 v{t3}, 1, v{g_}          ; gb1
    v_lshlrev_b32 v{t2}, 1, v{g_}
    v_xor_b32 v{t2}, v{t2}, v{n_}
    v_lshlrev_b32 v{t2}, 4, v{t2}
    v_lshl_add_u32 v{t2}, v{t1}, {13 if dw else 17}, v{t2}
    v_lshl_add_u32 v{t2}, v{t3}, 14, v{t2}
    s_and_b32 s{sA}, s{sW}, 1
    s_lshl_b32 s{sA}, s{sA}, {15 if dw else 18}
    s_lshr_b32 s{sB}, s{sW}, 1
    s_lshl_b32 s{sB}, s{sB}, {18 if dw else 16}
    s_add_u32 s{sA}, s{sA}, s{sB}
    s_lshl_b32 s{sB}, s{sH}, 8
    s_add_u32 s{sA}, s{sA}, s{sB}
    v_add_u32 v{vWa}, s{sA}, v{t2}
    v_xor_b32 v{t2}, 128, v{vWa}
    v_add_u32 v{vWa+1}, {(8 if dw else 1)*8192-1024}, v{t2}
    v_add_u32 v{vWa+2}, {(16 if dw else 4)*8192-2048}, v{vWa}
    v_add_u32 v{vWa+3}, {(24 if dw else 5)*8192-3072}, v{t2}
    ; wo rows: 16*gb0+4*gb1+bit3 ; chunk = (l%8)^(4*gb0)
    v_lshlrev_b32 v{vOa}, 4, v{t1}
    v_lshl_add_u32 v{vOa}, v{t3}, 2, v{vOa}
    v_bfe_u32 v{vTr}, v{lane}, 3, 1
    v_add_u32 v{vOa}, v{vOa}, v{vTr}
    v_lshlrev_b32 v{vTr}, 2, v{t1}
    v_xor_b32 v{vTr}, v{vTr}, v{lane}
    v_and_b32 v{vTr}, 7, v{vTr}
    v_lshlrev_b32 v{vTr}, 4, v{vTr}
    v_lshl_add_u32 v{vOa}, v{vOa}, 10, v{vTr}
    s_lshl_b32 s{sA}, s{sH}, 17
    s_lshl_b32 s{sB}, s{sW}, 8
    s_add_u32 s{sA}, s{sA}, s{sB}
    v_add_u32 v{vOa}, s{sA}, v{vOa}
    ''')
    def dma(bi):
        slot = bi % 8; tg = None
        if bi < 24:
            base = {'q': sWq, 'k': sWk, 'v': sWv}[mord[bi//8]]
            a(f's_add_u32 s{sTmp}, s{base}, {slot<<19}\ns_addc_u32 s{sTmp+1}, s{base+1}, 0\ns_add_u32 m0, s{sLb}, {slot*4096}')
            for J in range(4): tg = a(f'global_load_lds_dwordx4 v{vWa+J}, {sp(sTmp)} offset:{J*1024}{wnt}')
            return tg
        i = slot
        a(f's_xor_b32 s{sA}, s{sW}, {i//2}\ns_lshl_b32 s{sA}, s{sA}, 15')
        for J in range(4):
            off = (i%2)*128 + (8*(J>>1) + 2*(J&1))*1024
            a(f's_add_u32 s{sB}, s{sA}, {off}\ns_add_u32 s{sTmp}, s{sWo}, s{sB}\ns_addc_u32 s{sTmp+1}, s{sWo+1}, 0')
            a(f's_add_u32 m0, s{sLb}, {slot*4096+J*1024}')
            tg = a(f'global_load_lds_dwordx4 v{vOa}, {sp(sTmp)}{ont}')
        return tg
    dtag = {}
    def fkeval(v):
        a(f"""
        v_cmp_eq_u32 vcc, 0x01010101, v{v}
        s_or_b32 s{sTmp}, vcc_lo, 0xaaaaaaaa
        s_or_b32 s{sTmp+1}, vcc_hi, 0xaaaaaaaa
        s_ff0_i32_b64 s{sRdy}, {sp(sTmp)}
        s_min_u32 s{sRdy}, s{sRdy}, 100
        """)
    def first():
        a(f'''
        s_lshl_b32 s{sA}, s{sXcc}, 1
        s_add_u32 s{sA}, s{sA}, 1
        s_mul_i32 s{sXcc}, s{sA}, 0x01010101
        v_mov_b32 v{S}, s{sH}
        v_mov_b32 v{S+1}, s{sA}
        s_cmp_eq_u32 s{sW}, 0
        s_cselect_b32 s{sFm}, 1, 0
        s_mov_b32 s{sFm+1}, 0
        s_mov_b64 exec, {sp(sFm)}
        global_store_byte v{S}, v{S+1}, {sp(sDbg)} sc1
        s_mov_b64 exec, -1
        v_lshlrev_b32 v{S+2}, 4, v{n_}
        v_lshl_add_u32 v{S+2}, v{g_}, 10, v{S+2}
        s_lshl_b32 s{sA}, s{sW}, 8
        v_add_u32 v{S+2}, s{sA}, v{S+2}
        v_add_u32 v{S+3}, 3072, v{S+2}
        s_lshl_b32 s{sA}, s{sW}, 11
        s_add_u32 m0, s{sA}, {L_MQ}
        global_load_lds_dwordx4 v{S+2}, {sp(sMem)}
        global_load_lds_dwordx4 v{S+3}, {sp(sMem)} offset:1024
        ''')
    for bi in range(8):
        if bi == fst: first()
        dtag[bi] = dma(bi)
    if 'a' in tls: tl(a, 5 + tls.index('a'), T+12, 0)
    if 'b' in tls: tl(a, 5 + tls.index('b'), T+12, 0)
    a(f'''
    v_lshrrev_b32 v{t2}, 2, v{n_}
    v_and_b32 v{t3}, 3, v{lane}
    s_lshl_b32 s{sA}, s{sW}, 6
    v_lshl_add_u32 v{vTr}, v{t3}, 3, s{sA}
    v_lshlrev_b32 v{vTr+1}, 5, v{t2}
    v_lshl_add_u32 v{vTr+1}, v{t1}, 7, v{vTr+1}
    v_xor_b32 v{vTr}, v{vTr}, v{vTr+1}
    v_lshl_add_u32 v{vTr}, v{t2}, 8, v{vTr}
    v_lshl_add_u32 v{vTr}, v{g_}, 10, v{vTr}
    v_xor_b32 v{vTr+1}, 32, v{vTr}
    v_add_u32 v{vTr+2}, 0x10000, v{vTr}
    v_add_u32 v{vTr+3}, 0x10000, v{vTr+1}
    ; wo tr-read: gb*256 + bit2*128 + gb0*64 + bit3*32 + c4*8 (u flips bit 6)
    v_lshlrev_b32 v{vTo}, 8, v{g_}
    v_lshl_add_u32 v{vTo}, v{t1}, 6, v{vTo}
    {f'v_and_b32 v{vTo+1}, 2, v{lane}{NL}v_lshl_add_u32 v{vTo}, v{vTo+1}, 2, v{vTo}{NL}v_and_b32 v{vTo+1}, 1, v{lane}{NL}v_lshlrev_b32 v{vTo+1}, 6, v{vTo+1}{NL}v_xor_b32 v{vTo}, v{vTo}, v{vTo+1}' if w4 and not dw else f'v_lshl_add_u32 v{vTo}, v{t3}, 3, v{vTo}'}
    v_and_b32 v{vTo+1}, 4, v{lane}
    v_lshl_add_u32 v{vTo}, v{vTo+1}, 5, v{vTo}
    v_and_b32 v{vTo+1}, 8, v{lane}
    v_lshl_add_u32 v{vTo}, v{vTo+1}, 2, v{vTo}
    v_add_u32 v{vTo}, s{sLb}, v{vTo}
    v_xor_b32 v{vTo+1}, {16 if w4 and not dw else 64}, v{vTo}
    v_xor_b32 v{vXw}, v{g_}, v{t2}
    v_lshlrev_b32 v{vXw}, 3, v{vXw}
    v_lshl_add_u32 v{vXw}, v{n_}, 5, v{vXw}
    s_lshl_b32 s{sA}, s{sW}, 10
    s_add_u32 s{sA}, s{sA}, {L_X}
    v_add_u32 v{vXw}, s{sA}, v{vXw}
    v_xor_b32 v{vXr}, v{t3}, v{g_}
    v_lshlrev_b32 v{vXr}, 3, v{vXr}
    v_lshl_add_u32 v{vXr}, v{t2}, 5, v{vXr}
    v_lshl_add_u32 v{vXr}, v{g_}, 7, v{vXr}
    v_add_u32 v{vXr}, {L_X}, v{vXr}
    v_lshl_add_u32 v{vPst}, v{t2}, 2, v{g_}
    v_lshlrev_b32 v{vPst}, 11, v{vPst}
    v_lshl_add_u32 v{vPst}, v{t3}, 4, v{vPst}
    s_lshl_b32 s{sA}, s{sW}, 16
    s_lshl_b32 s{sB}, s{sH}, 6
    s_add_u32 s{sA}, s{sA}, s{sB}
    v_add_u32 v{vPst}, s{sA}, v{vPst}
    ''')
    if w4: a(f'''
    ; reducer CU = 8w + 4(n/8) + g, wave G ; off = cu*8192 + G*2048 + h*64 + (n%8)*8 (+4096 imm bias)
    v_lshrrev_b32 v{vPst}, {4 if dw else 3}, v{n_}
    v_lshl_add_u32 v{vPst}, v{vPst}, 2, v{g_}
    v_mul_u32_u24 v{vMst}, {psw}, v{vPst}
    v_add_u32 v{vMst}, s{sB}, v{vMst}
    v_and_b32 v{vMst}, 0x7ff, v{vMst}
    v_lshl_add_u32 v{vPst}, v{vPst}, 13, v{vMst}
    v_and_b32 v{vMst}, {15 if dw else 7}, v{lane}
    v_lshl_add_u32 v{vPst}, v{vMst}, {2 if dw else 3}, v{vPst}
    s_lshl_b32 s{sA}, s{sW}, 16
    s_add_u32 s{sA}, s{sA}, 4096
    v_add_u32 v{vPst}, s{sA}, v{vPst}
    ''')
    a(f'''
    ; publish: (c/2)*32 + p*16 + (c%2)*8 + (i/2)*4
    v_mov_b32 v{vMst}, 0
    {chr(10).join(f'v_bfe_u32 v{t2}, v{lane}, {b_}, 1{chr(10)}v_lshl_add_u32 v{vMst}, v{t2}, {o_}, v{vMst}' for b_, o_ in {0: ((5,5),(2,4),(4,3),(1,2)), 1: ((5,5),(0,4),(4,3)), 2: ((2,5),(4,4),(1,3),(0,2)), 4: ((1,5),(4,4),(0,3),(5,2)), 5: ((0,5),(4,4),(5,3),(1,2)), 6: ((5,5),(4,4),(1,3),(0,2))}[6 if dw else 5 if w4 else ra])}
    ; O write: L_O + w*512 + (g*8+t)*16 + half*8 ; t = 2*(n/4)+n%2
    v_lshlrev_b32 v{vOw}, 7, v{g_}
    v_and_b32 v{t2}, 12, v{lane}
    v_lshl_add_u32 v{vOw}, v{t2}, 3, v{vOw}
    v_and_b32 v{t2}, 1, v{lane}
    v_lshl_add_u32 v{vOw}, v{t2}, 4, v{vOw}
    v_and_b32 v{t2}, 2, v{lane}
    v_lshl_add_u32 v{vOw}, v{t2}, 2, v{vOw}
    s_lshl_b32 s{sA}, s{sW}, 9
    s_add_u32 s{sA}, s{sA}, {L_O}
    v_add_u32 v{vOw}, s{sA}, v{vOw}
    s_mov_b32 s{sB1}, 0xcccccccc
    s_mov_b32 s{sB1+1}, 0xcccccccc
    s_mov_b32 s{sPm}, {0xaaaaaaaa if ra == 1 else 0xf0f0f0f0}
    s_mov_b32 s{sPm+1}, {0xaaaaaaaa if ra == 1 else 0xf0f0f0f0}
    s_mov_b32 s{sPub}, {(0x00550055, 0x00030003, 0x00ff00ff, 0, 0x000f000f)[ra]}
    s_mov_b32 s{sPub+1}, {(0x00550055, 0x00030003, 0, 0, 0x000f000f)[ra]}
    s_mov_b32 s{sQc}, {QSCALE}
    v_mov_b32 v{t2}, 0x4444
    v_mov_b32 v{t3}, 0xeeee
    v_cndmask_b32 v{vIdx}, v{t2}, v{t3}, {sp(sB1)}
    v_cndmask_b32 v{vM0}, -1, 0, {sp(sB1)}
    v_cndmask_b32 v{vM1}, 0, -1, {sp(sB1)}
    ''')
    for i in range(4):
        m_ = {0: 0x00110011 << i, 1: 0x11111111, 2: 0x55555555 << (i%2), 4: 0x00550055 << (i%2 + 8*(i//2))}[ra]
        a(f's_mov_b32 s{sSel+2*i}, {m_}\ns_mov_b32 s{sSel+2*i+1}, {m_}')
    a(f'''
    s_lshl_b32 s{sA}, s{sH}, 2
    s_add_u32 s{sA}, s{sA}, s{sW}
    s_add_u32 s{sRA}, s{sWs}, {WS_RA}
    s_addc_u32 s{sRA+1}, s{sWs+1}, 0
    s_mov_b32 s{sC}, s{sA}
    ''')
    if hp: a(f'''
    s_lshr_b32 s{sB}, s{sA}, 1
    s_and_b32 s{sB}, s{sB}, 15
    s_and_b32 s{sC}, s{sA}, 0x60
    s_or_b32 s{sC}, s{sC}, s{sB}
    s_and_b32 s{sB}, s{sA}, 1
    s_lshl_b32 s{sB}, s{sB}, 4
    s_or_b32 s{sC}, s{sC}, s{sB}
    ''')
    a(f'''
    s_lshl_b32 s{sB}, s{sC}, 11
    s_add_u32 s{sRAo}, s{sRA}, s{sB}
    s_addc_u32 s{sRAo+1}, s{sRA+1}, 0
    ''')
    if w4: a(f'''
    s_and_b32 s{sC}, s{sH}, 24
    s_lshl_b32 s{sC}, s{sC}, 2
    s_and_b32 s{sB}, s{sH}, 7
    s_add_u32 s{sC}, s{sC}, s{sB}
    s_lshl_b32 s{sB}, s{sW}, 3
    s_add_u32 s{sC}, s{sC}, s{sB}
    ''')
    a(f'''
    s_lshl_b32 s{sB}, s{sC}, 6
    s_add_u32 s{sB}, s{sB}, {WS_RM}
    s_add_u32 s{sRMs}, s{sWs}, s{sB}
    s_addc_u32 s{sRMs+1}, s{sWs+1}, 0
    s_lshl_b32 s{sB}, s{sW}, 11
    s_add_u32 s{sB}, s{sB}, {WS_RM}
    s_add_u32 s{sRMl}, s{sWs}, s{sB}
    s_addc_u32 s{sRMl+1}, s{sWs+1}, 0
    s_lshl_b32 s{sB}, s{sA}, 11
    s_add_u32 s{sKV}, s{sWs}, s{sB}
    s_addc_u32 s{sKV+1}, s{sWs+1}, 0
    s_lshl_b32 s{sB}, s{sA}, 10
    s_add_u32 s{sB}, s{sB}, {WS_KVM-(32 if kvnow else 64)*4096}
    s_add_u32 s{sKVM}, s{sWs}, s{sB}
    s_addc_u32 s{sKVM+1}, s{sWs+1}, 0
    s_lshl_b32 s{sB}, s{sH}, 7
    s_add_u32 s{sB}, s{sB}, {WS_FL+FL_P}
    s_add_u32 s{sFl}, s{sWs}, s{sB}
    s_addc_u32 s{sFl+1}, s{sWs+1}, 0
    s_lshl_b32 s{sB}, s{sH}, 8
    s_add_u32 s{sB}, s{sB}, {WS_FL+FL_K}
    s_add_u32 s{sFK}, s{sWs}, s{sB}
    s_addc_u32 s{sFK+1}, s{sWs+1}, 0
    ; touch/flag lanes: 0-31 V half of the own K/V record (advances per step), 32-63 ready flags of this head
    s_sub_u32 s{sB}, s{sB}, {2048+256}
    v_lshl_add_u32 v{vTc}, v{lane}, 3, s{sB}
    s_lshl_b32 s{sB}, s{sA}, 11
    s_add_u32 s{sB}, s{sB}, {WS_V-2048}
    v_lshl_add_u32 v{t2}, v{lane}, 6, s{sB}
    v_cmp_gt_u32 vcc, 32, v{lane}
    v_cndmask_b32 v{vTc}, v{vTc}, v{t2}, vcc
    s_mov_b32 s{sRdy}, {0 if mega else 100}
    v_lshlrev_b32 v{vL4}, 2, v{lane}
    v_mov_b64 {vr(HK,2)}, 0
    v_mov_b64 {vr(HV,2)}, 0
    ; M(0) gather: lane(row: b0=t%2,b1=half,b3:2=t/2 ; ga): byte = t*256 + (64s + 16(ea%4) + 4ga + 2half + ea/4)*2
    v_lshrrev_b32 v{t2}, 2, v{n_}
    v_lshlrev_b32 v{t2}, 9, v{t2}
    v_and_b32 v{t3}, 1, v{lane}
    v_lshl_add_u32 v{t2}, v{t3}, 8, v{t2}
    v_lshl_add_u32 v{t2}, v{g_}, {5 if dw else 3}, v{t2}
    v_and_b32 v{t3}, 2, v{lane}
    v_lshl_add_u32 v{t2}, v{t3}, 1, v{t2}
    s_lshl_b32 s{sA}, s{sW}, 11
    s_add_u32 s{sA}, s{sA}, {L_MQ}
    v_add_u32 v{t2}, s{sA}, v{t2}
    ''')
    if 'c' in tls: tl(a, 5 + tls.index('c'), T+12, 0)
    def warmup():
        a(f"""
        v_lshlrev_b32 v{t1}, 7, v{n_}
        v_and_b32 v{t3}, 1, v{g_}
        v_lshl_add_u32 v{t2}, v{t3}, 18, v{t1}
        global_load_dword v{vFd}, v{t2}, {sp(sRAo)} sc1
        v_lshl_add_u32 v{t1}, v{t3}, 13, v{t1}
        global_load_dword v{vFd}, v{t1}, {sp(sRMl)} sc1
        """)
    def park(pj): return dest(('o', pj+1)) if pj < NQ-1 else ('v', S+16)
    for w in range(1,4): a(f's_cmp_eq_u32 s{sW}, {w}\ns_cbranch_scc1 {L(f"pw{w}")}')
    nvm0, nds0 = a.nvm, a.nds
    for w in range(4):
        a.label(L(f'pw{w}'))
        a.nvm, a.nds = nvm0, nds0
        for bi in range(24):
            m, i = mord[bi//8], (bi%8) ^ (2*w); slot = bi % 8
            a.wvm(dtag[bi]); a('s_barrier')
            if bi in tls: tl(a, 5 + tls.index(bi), t1, 0)
            if bi: dtag[bi+7] = dma(bi+7)
            k, b = park(LDS_BLK.index((m,i))) if (m,i) in LDS_BLK else dest((m,i))
            for u in range(2):
                for J in range(4):
                    a(f'ds_read_b64_tr_b16 {vr(b+8*u+2*J,2,k)}, v{vTr+u+2*(J//2)} offset:{slot*4096+(J%2)*32768}')
            if bi == fst:
                for s_ in range(2):
                    for ea in range(8): a(f'ds_read_u16 v{S+8*s_+ea}, v{t2} offset:{(64*s_ + (4*(ea//2) + ea%2 if dw else 16*(ea%4) + ea//4))*2}')
            if bi == fst + 1:
                for r in range(8): a(f'v_lshl_or_b32 v{M+r}, v{S+2*r+1}, 16, v{S+2*r}')
            if bi == arr and 'p3' not in opt: a(f'global_load_dword v{vFd}, v{vL4}, {sp(sDbg)} sc1')
            if bi == arr + 8 and 'p3' not in opt:
                msk = ((1 << 24) - 1) | (1 << 40) if mega else 0xff
                a(f"""
                s_mov_b32 s{sSpin}, 0
                {L(f'tb{w}')}:
                v_and_b32 v{t1}, 0x01010101, v{vFd}
                v_cmp_ne_u32 vcc, 0x01010101, v{t1}
                s_and_b32 s{sA}, vcc_lo, {msk & 0xffffffff}
                s_and_b32 s{sB}, vcc_hi, {msk >> 32}
                s_or_b32 s{sA}, s{sA}, s{sB}
                s_cbranch_scc0 {L(f'tbo{w}')}
                s_sleep 4
                global_load_dword v{vFd}, v{vL4}, {sp(sDbg)} sc1
                s_add_u32 s{sSpin}, s{sSpin}, 1
                s_cmp_gt_u32 s{sSpin}, {SPIN}
                s_cbranch_scc1 {L('end')}
                s_waitcnt vmcnt(0)
                s_branch {L(f'tb{w}')}
                {L(f'tbo{w}')}:
                v_cmp_ne_u32 vcc, s{sXcc}, v{vFd}
                s_and_b32 s{sXcc}, vcc_lo, 0xff
                """)
                a.nvm -= 1
            if bi == warm: warmup()
            if mega and bi == fkb: ftag = a(f'global_load_dword v{vFk}, v{vL4}, {sp(sFK)} sc1')
            a('s_waitcnt lgkmcnt(0)')
        if w < 3: a(f's_branch {L("pwe")}')
    a.label(L('pwe'))
    tl(a, 1, t1, 0)
    def k0():
        a(f"""
        s_mov_b32 m0, s{sM0kv}
        s_nop 0
        global_load_lds_dwordx4 v{vLin}, {sp(sKV)} sc1
        global_load_lds_dwordx4 v{vLin}, {sp(sKV)} offset:1024 sc1
        global_load_lds_dword v{vTc}, {sp(sWs)} offset:2048 sc1
        """)
    for bi in range(24, 32):
        slot = bi % 8
        a.wvm(dtag[bi])
        if bi == 24: a('s_barrier'); dtag[31] = dma(31)
        if bi == warm: warmup()
        if mega and bi == fkb: ftag = a(f'global_load_dword v{vFk}, v{vL4}, {sp(sFK)} sc1')
        if bi == fke:
            if mega:
                a.wvm(ftag)
                fkeval(vFk)
                a(f's_cmp_lg_u32 s{sRdy}, 0\ns_cbranch_scc1 {L("k1")}')
                for _ in range(3): a(f'global_load_dword v{vFk}, v{vL4}, {sp(sFK)} sc1')
                a(f's_branch {L("k2")}')
                a.nvm -= 3
                a.label(L('k1'))
            k0()
            a.label(L('k2'))
        tmp = S + 16*(slot%2)
        k, b = dest(('o', slot)) if slot < NQ else ('v', tmp)
        for u in range(2):
            for J in range(4):
                a(f'ds_read_b64_tr_b16 {vr(b+8*u+2*J,2,k)}, v{vTo+u} offset:{slot*4096+J*1024}')
        if slot >= NQ or not opipe: a('s_waitcnt lgkmcnt(0)')
        k, b = park(slot) if slot < NQ else ('v', tmp)
        for u in range(2):
            for hf in range(2):
                a(f'ds_write_b128 v{vLw}, {vr(b+8*u+4*hf,4,k)} offset:{slot*4096+u*2048+hf*1024}')
        if not opipe: a('s_waitcnt lgkmcnt(0)')
    tl(a, 2, t1, 0)
    if 'ponly' in opt: a(f's_branch {LE}')
    if mega:
        a(f"""
        s_cmp_lg_u32 s{sRdy}, 0
        s_cbranch_scc1 {L("kwe")}
        s_mov_b32 s{sSpin}, 0
        {L('kw')}:
        s_waitcnt vmcnt(0)
        """)
        fkeval(vFk)
        a(f"""
        s_cmp_lg_u32 s{sRdy}, 0
        s_cbranch_scc1 {L("kwd")}
        s_sleep 2
        global_load_dword v{vFk}, v{vL4}, {sp(sFK)} sc1
        s_add_u32 s{sSpin}, s{sSpin}, 1
        s_cmp_gt_u32 s{sSpin}, {SPIN}
        s_cbranch_scc1 {L('end')}
        s_branch {L("kw")}
        """)
        a.label(L('kwd'))
        k0()
        a.label(L('kwe'))
    sKN = sWo
    a(f"""
    s_mov_b64 {sp(sKN)}, {sp(sKV)}
    s_mov_b32 s{sT}, 0
    s_mov_b32 s{sSpin}, 0
    """)
    tl(a, 3, t1, 0)
    if prof:
        for i in range(8): a(f's_mov_b32 s{sP+20+i}, 0')
        a(f's_memtime {sp(sP+28)}')
    def tstamp(idx, T=T):
        if 'ts' not in opt and 'tc' not in opt and 'tb' not in opt: return
        a(f"""
        {'s_memrealtime' if 'ts' in opt else 's_memtime'} s[96:97]
        {'s_memrealtime s[94:95]' if 'tb' in opt else ''}
        s_lshl_b32 s{sA}, s{sH}, 2
        s_add_u32 s{sA}, s{sA}, s{sW}
        s_lshl_b32 s{sA}, s{sA}, 6
        s_add_u32 s{sA}, s{sA}, {idx}
        s_lshl_b32 s{sA}, s{sA}, 2
        s_add_u32 s{sA}, s{sA}, {WS_PROF+131072}
        v_mov_b32 v{T}, s{sA}
        s_waitcnt lgkmcnt(0)
        {f's_bitcmp1_b32 s{sW}, 0{NL}s_cselect_b32 s96, s94, s96' if 'tb' in opt else ''}
        v_mov_b32 v{T+1}, s96
        s_mov_b64 exec, 1
        global_store_dword v{T}, v{T+1}, {sp(sWs)}
        """)
        if 'tk' in opt:
            for j_ in range(len(stamps)-1): a(f's_sub_u32 s96, s{sP+2*j_+2}, s{sP+2*j_}\nv_add_u32 v{T}, 32768, v{T}\nv_mov_b32 v{T+2+j_}, s96\nglobal_store_dword v{T}, v{T+2+j_}, {sp(sWs)}')
        a('s_mov_b64 exec, -1')
    tstamp(63)
    DPPM = 'row_mask:0xf bank_mask:0xf'
    QA = T+8; VA = QV; P2 = VX; S0 = S; S1 = S+16; K0 = M+16
    NEG = M+4; Sel = T+4; Dr = T+8
    if yd: K0 = KX; P2 = M+16; NEG = T+5
    sB0, sOne, sHalf = 4, 8, 10
    a(f'''
    s_not_b64 {sp(sB0)}, {sp(sB1)}
    s_mov_b32 s{sOne}, 0x3f803f80
    s_mov_b32 s{sOne+1}, 0x3f803f80
    s_mov_b32 s{sHalf}, 0x3f003f00
    s_mov_b32 s{sHalf+1}, 0x3f003f00
    ''')
    def pre1(L=None):
        n0 = len(a.items)
        if ps:
            a(f'v_lshrrev_b32 v{T+5}, 2, v{vLin}\nv_add_u32 v{T+3}, m0, v{vLin}')
            if L and mega: a(f'v_add_u32 v{T+6}, m0, v{T+5}\nds_read_b32 v{T+6}, v{T+6} offset:2048')
            a(f'''
            ds_read_b128 {vr(KX,4)}, v{T+3}
            ds_read_b128 {vr(KX+4,4)}, v{T+3} offset:1024
            v_add_u32 v{T+3}, s{sLb}, v{T+5}
            v_mov_b32 v{T+7}, 0
            v_add_u32 v{T+5}, {L_S}, v{T+5}
            ds_write_b32 v{T+3}, v{T+7}
            ''')
        elif L and mega: a(f'v_lshrrev_b32 v{T+5}, 2, v{vLin}\nv_add_u32 v{T+6}, m0, v{T+5}\nds_read_b32 v{T+6}, v{T+6} offset:2048')
        a(f"""
        s_and_b32 s{sA}, s{sT}, 1
        s_lshl_b32 s{sC}, s{sA}, 13
        s_add_u32 s{sMld}, s{sRMl}, s{sC}
        s_addc_u32 s{sMld+1}, s{sRMl+1}, 0
        s_xor_b32 s{sB}, s{sA}, 1
        """)
        if yd: a(f's_mov_b32 m0, s{sLb}')
        if yd == 1: a(f's_mov_b32 s{sGot}, 0')
        for x_ in stg(('k',0), K0): a(x_)
        for i in range(0,16,2): a(f'v_mov_b64 {vr(VA+i,2)}, 0')
        for i in range(0,8,2): a(f'v_mov_b64 {vr(QA+i,2)}, 0')
        return len(a.items) - n0
    def pre2(L=None):
        n0 = len(a.items)
        a(f's_mov_b32 exec_hi, 0\nv_add_u32 v{vTc}, {KST}, v{vTc}\ns_mov_b32 exec_hi, -1')
        a(f"""
        s_lshl_b32 s{sC}, s{sB}, 13
        s_add_u32 s{sMst}, s{sRMs}, s{sC}
        s_addc_u32 s{sMst+1}, s{sRMs+1}, 0
        s_lshl_b32 s{sC}, s{sB}, 18
        s_add_u32 s{sArs}, s{sRAo}, s{sC}
        s_addc_u32 s{sArs+1}, s{sRAo+1}, 0
        s_lshl_b32 s{sC}, s{sA}, 18
        s_add_u32 s{sSt0}, s{sRA}, s{sC}
        s_addc_u32 s{sSt0+1}, s{sRA+1}, 0
        s_add_u32 s{sSt1}, s{sSt0}, 32768
        s_addc_u32 s{sSt1+1}, s{sSt0+1}, 0
        s_add_u32 s{sAld}, s{sRAo}, s{sC}
        s_addc_u32 s{sAld+1}, s{sRAo+1}, 0
        s_add_u32 s{sKV}, s{sKN}, {WS_V}
        s_addc_u32 s{sKV+1}, s{sKN+1}, 0
        s_add_u32 s{sKN}, s{sKN}, {KST}
        s_addc_u32 s{sKN+1}, s{sKN+1}, 0
        s_add_u32 s{sKVM}, s{sKVM}, {32*4096}
        s_addc_u32 s{sKVM+1}, s{sKVM+1}, 0
        """)
        if not ps: a(f"""
        s_mul_i32 s{sC}, s{sB}, {4*KVS}
        s_add_u32 {f's{sVer}' if yd == 2 else 'm0'}, s{sC}, s{sM0kv}
        s_mul_i32 s{sC}, s{sA}, {4*KVS}
        s_add_u32 s{sC}, s{sC}, {L_KV}
        v_add_u32 v{vKr}, s{sC}, v{vLin}
        """)
        a(f"""
        s_lshl_b32 s{sC}, s{sW}, 11
        s_add_u32 s{sC}, s{sC}, {L_MQ}
        v_add_u32 v{T+3}, s{sC}, v{vLin}
        s_add_u32 s{sC}, s{sT}, {int(kvnow)}
        v_mov_b32 v{T+4}, s{sC}
        """)
        for i in range(1,4): a(f'v_xor_b32 v{T+i-1}, {i*2048}, v{T+3}')
        if L and mega:
            a(f'''
            s_waitcnt lgkmcnt(0)
            v_cmp_eq_u32 vcc, 0x01010101, v{T+6}
            s_add_u32 s{sA}, s{sT}, 1
            s_ff0_i32_b32 s{sRdy}, vcc_hi
            s_lshl_b32 s{sRdy}, s{sRdy}, 1
            s_cmp_lt_u32 s{sA}, s{sRdy}
            s_cbranch_scc0 {L('rp')}
            ''')
        return len(a.items) - n0
    def ldM(r):
        if yd: a(f'global_load_lds_dwordx4 v{vLin}, {sp(sMld)} sc1\nglobal_load_lds_dwordx4 v{vLin}, {sp(sMld)} offset:1024 sc1')
        else: a(f'global_load_dwordx4 {vr(r,4)}, v{vLin}, {sp(sMld)} sc1\nglobal_load_dwordx4 {vr(r+4,4)}, v{vLin}, {sp(sMld)} offset:1024 sc1')
    def ldA(r):
        if ra == 1:
            for i in range(8): a(f'global_load_dword v{r+i}, v{T+1}, {sp(sAld)} offset:{256*i} sc1')
            return
        if ra == 2:
            for i in range(4): a(f'global_load_dwordx2 {vr(r+2*i,2)}, v{T+1}, {sp(sAld)} offset:{512*i} sc1')
            return
        a(f'global_load_dwordx4 {vr(r,4)}, v{vLin}, {sp(sAld)} sc1\nglobal_load_dwordx4 {vr(r+4,4)}, v{vLin}, {sp(sAld)} offset:1024 sc1')
    def spin(): a(f's_add_u32 s{sSpin}, s{sSpin}, 1\ns_cmp_gt_u32 s{sSpin}, {SPIN}\ns_cbranch_scc1 {LE}')
    acc = {'q': QA, 'k': KA, 'v': VA}
    def P_(m, sg, u): SM(acc[m]+4*u, M+4*sg, m, sg, u)
    for x_ in stg(('q',0), S0) + stg(('q',1), S1): a(x_)
    for r in range(8): a(f'v_min_u32 v{M+r}, -2, v{M+r}')
    if yd: a(f's_lshl_b32 s{sLb}, s{sW}, 11\ns_add_u32 s{sLb}, s{sLb}, {L_MQ}')
    if ps: a(f'''
    s_lshl_b32 s{sLb}, s{sW}, 10
    v_add_u32 v{vKr}, s{sLb}, v{vXr}
    s_add_u32 s{sLb}, s{sLb}, {L_X+4096}
    v_add_u32 v{T}, s{sLb}, v{vLin}
    v_mov_b64 {vr(T+4,2)}, 0
    v_mov_b64 {vr(T+6,2)}, 0
    ds_write_b128 v{T}, {vr(T+4,4)}
    s_lshl_b32 s{sLb}, s{sW}, 8
    s_add_u32 s{sLb}, s{sLb}, {L_S}
    s_waitcnt vmcnt(0)
    ''')
    pre1(); pre2()
    if yd: a(f'ds_write_b128 v{T+3}, {vr(M,4)}\nds_write_b128 v{T+3}, {vr(M+4,4)} offset:1024')
    a('s_waitcnt vmcnt(0) lgkmcnt(0)')
    if mega: a(f's_cmp_lg_u32 s{sXcc}, 0\ns_cbranch_scc1 {L("s_try")}')
    a(f's_branch {L("try")}')
    staged0 = dict(staged)
    def loop(L, stc, mk=mk, rdw=rdw):
        staged.clear(); staged.update(staged0)
        dm = [f'global_load_lds_dwordx4 v{vLin}, {sp(sKN)} offset:{j*1024} sc1' for j in range(2)] + \
             [f'global_load_dwordx4 {vr(KX+4*j,4)}, v{vLin}, {sp(sKV)} offset:{(j-2)*1024} sc1' for j in (2,3)]
        kvb = int('kv@B0' in vp.split()); kvst = f'global_store_dwordx4 v{vLin}, {vr(HK,4)}, {sp(sKVM)} sc1'
        a.label(L('retry'))
        spin()
        if prof: a(f's_add_u32 s{sP+26}, s{sP+26}, 59')
        if TL: a(f's_add_u32 s{sSpin}, s{sSpin}, 255')
        if yd == 2:
            a('s_nop 2')
            for i in range(0,4,2): a(f'v_mov_b64 {vr(QA+i,2)}, 0')
            for i in range(0,8,2): a(f'v_mov_b64 {vr(KA+i,2)}, 0')
            a(f's_waitcnt vmcnt({kvb})')
            ldM(None)
            if kvb: a(kvst)
        elif yd:
            a(f's_waitcnt lgkmcnt(0)\ns_cmp_eq_u32 s{sGot}, 0\ns_cbranch_scc1 {L("r1")}\ns_barrier')
            ldM(None)
            a.label(L('r1'))
            a(f's_mov_b32 s{sGot}, 1\ns_sub_u32 s{sC}, m0, s{sM0kv}\ns_add_u32 s{sC}, s{sC}, {L_KV}')
            for i in range(4): a(f's_xor_b32 s{sA}, s{sW}, {i}\ns_mul_i32 s{sA}, s{sA}, {KVS}\ns_add_u32 s{sA}, s{sA}, s{sC}\nv_add_u32 v{T+(i-1)%4}, s{sA}, v{vLin}')
            for i in range(0,8,2): a(f'v_mov_b64 {vr(KA+i,2)}, 0')
            for i in range(0,8,2): a(f'v_mov_b64 {vr(QA+i,2)}, 0')
            a('s_waitcnt vmcnt(0)')
        else:
            a(f's_waitcnt vmcnt({kvb})')
            for i in range(0,8,2): a(f'v_mov_b64 {vr(M+i,2)}, {vr(P2+i,2)}')
            ldM(P2)
            if kvb: a(kvst)
            for i in range(0,8,2): a(f'v_mov_b64 {vr(QA+i,2)}, 0')
        a(f's_branch {L("try")}')
        a.label(L('step'))
        n = pre1(L)
        if wB:
            cur = n + 3
            for w_ in (3,2,1,0):
                a.nops(wB[w_] - cur - (2 if w_ else 0)); cur = max(cur + (2 if w_ else 0), wB[w_])
                if w_: a(f's_cmp_eq_u32 s{sW}, {w_}\ns_cbranch_scc1 {L("p1")}')
            a.label(L('p1'))
        else: a.nops(preB - n - 3)
        ldM(M)
        n = pre2(L); a.nops(gapB - n - 2)
        a.label(L('rk'))
        ldM(P2)
        if kvb: a(kvst)
        a(f's_waitcnt vmcnt({2+kvb}) lgkmcnt(0)')
        a.label(L('try'))
        a.nds = 0; a.nvm = 2 + kvb; set2 = 2
        stamp('a0')
        ck = M+8
        if not yd:
            mw = [f'ds_write_b128 v{T+3}, {vr(M,4)}', f'ds_write_b128 v{T+3}, {vr(M+4,4)} offset:1024']
            if wsh == 3: mw = [f'ds_write_b64 v{T+3}, {vr(M+2*i,2)} offset:{(i//2)*1024+(i%2)*8}' for i in range(4)]
            for _ in range({0:2, 1:0, 2:1, 3:0, 4:0}[wsh]): a(mw.pop(0))
            P_('q',0,0)
            for _ in range({0:0, 1:1, 2:1, 3:2, 4:2}[wsh]): a(mw.pop(0))
            stamp('w0')
            a(f'v_max_u32 v{ck}, v{M}, v{M+4}' if fc else f'v_max3_u32 v{ck}, v{M}, v{M+2}, v{M+4}')
            if fc == 2: a(f'v_cmp_eq_u32 vcc, -1, v{ck}')
            P_('q',0,1)
            for x_ in mw: a(x_)
            stamp('w1')
            if fc == 2: a(f's_cbranch_vccnz {L("retry")}')
            elif fc:
                a(f'v_cmp_eq_u32 vcc, -1, v{ck}')
                P_('q',1,0); a(f's_cbranch_vccnz {L("retry")}')
            else:
                a(f'v_max_u32 v{ck}, v{ck}, v{M+6}')
                if mk == 8: a(f'v_max3_u32 v{ck}, v{ck}, v{M+1}, v{M+3}\nv_max3_u32 v{ck}, v{ck}, v{M+5}, v{M+7}')
                P_('q',1,0); a(f'v_cmp_eq_u32 vcc, -1, v{ck}')
                P_('q',1,1); a(f's_cbranch_vccnz {L("retry")}')
        rlate = any(x_[0] == 'r' and x_[1] != 'm' and x_[3] in 'CW' for x_ in vp.split())
        NG2 = T if rlate else NEG
        rs = [f'global_store_dwordx4 v{vLin}, {vr(NG2,4)}, {sp(sArs)} offset:{1024*i}{stc}' for i in range(2)]
        if rdw: rs = [f'global_store_dword v{vLin}, v{NG2}, {sp(sArs)} offset:{1024*i}{stc}' for i in range(2)]
        vops = dict(d0=dm[0], d1=dm[1], d2=dm[2], d3=dm[3], r0=rs[0], r1=rs[1],
                    kv=f'global_store_dwordx4 v{vLin}, {vr(HK,4)}, {sp(sKVM)} sc1',
                    fl=f's_mov_b64 exec, {sp(sFm)}\nglobal_store_dword v{vLin}, v{T+4}, {sp(sFl)} sc1\ns_mov_b64 exec, -1',
                    tc=f'global_load_lds_dword v{vTc}, {sp(sWs)} offset:2048{tsc}',
                    rm=f'global_store_dword v{vMst}, v{NEG}, {sp(sMst)}{stc}')
        vt = {}; AK['vt'] = vt
        def VM(slot):
            for x_ in vp.split():
                o, s_ = x_.split('@')
                if s_ != slot: continue
                k_ = slot[0]; n_ = int(slot[1:])
                if yd == 2: assert k_ != 'Q' or n_ > 2 + (o[0] == 'r')
                if yd == 1 and o != 'kv': assert k_ != 'Q' or n_ > ckp[3] + 1 + (o[0] == 'r') * 2
                if o[0] == 'r': assert k_ == 'Q' and (1 if o == 'rm' or rdw else 4) <= n_ or k_ == 'V' or k_ in 'CW' and o != 'rm'
                if o == 'fl': assert k_ in 'AQV'
                if o == 'kv': assert k_ in 'PACW' or k_ == 'Q' and n_ < 21
                if o in ('d0', 'd1', 'tc'): assert 'd2' in vt and 'd3' in vt and 'rm' in vt
                if o in skip: vt[o] = a.nvm; continue
                vt[o] = a(vops[o])
            stamp(slot)
        mt = {}
        def rdM(sg): mt[sg] = a(f'ds_read_b128 {vr(M+4*sg,4)}, v{T+(sg//2-1)%4} offset:{1024*(sg%2)}')
        vq = [(sg,u) for sg in ((4,5,6,7,0,1,2,3) if yd else (0,1,4,5,6,7,2,3)) for u in (0,1)]
        def V_():
            sg, u = vq.pop(0); P_('v', sg, u)
        g1 = stg(('k',6), S0) + stg(('k',7), S1); tg1 = []
        def G1(i):
            if sgq <= i < sgq + 8: tg1.append(a(g1[i-sgq]))
        rq = [2,3,4,5,6,7]
        for j in range(3-fc,0 if yd else 12):
            if j == 3 - fc: pass
            elif j < 4: P_('q',1,j%2)
            elif j < 8: P_('k',(j-4)//2,j%2)
            else: V_()
            if vmf and j >= 4: VM('P0' if j == 4 else f'A{j-5}')
            if j > pb1 - 1 and rq and (rq[0] < 4 or j >= 3 + rq[0]//2): rdM(rq.pop(0))
            if j >= 9: G1(j-12)
            if not vmf and j >= 4: VM('P0' if j == 4 else f'A{j-5}')
            if j == pb1 - 1:
                a(f's_waitcnt lgkmcnt(0)\ns_barrier')
                stamp('a1')
                for _ in range(nr0): rdM(rq.pop(0))
        if yd == 1:
            a('s_barrier'); stamp('a1'); rq = list(range(8))
        if yd == 2: rq = [0,1]
        while rq: rdM(rq.pop(0))
        stamp('a2')
        QP = T+6; D0 = T; D1 = T+8; Dm = VA; X = XO
        def half(r, d): return [f'v_add_f32 v{r}, v{r}, v{r+2}', f'v_add_f32 v{r+1}, v{r+1}, v{r+3}', f'v_cvt_pk_bf16_f32 v{d}, v{r}, v{r+1}']
        a.wds(mt[0 if yd else 2])
        seq = [('q',s_,0) for s_ in range(2,8)] + [('q',2,1),('q',3,1),('k',6,0),('k',6,1),('k',7,0),('k',7,1)] + \
              [('q',s_,1) for s_ in range(4,8)] + [('k',s_,0) for s_ in range(2,6)] + [('k',s_,1) for s_ in range(2,6)]
        z0 = [f'v_mov_b64 {vr(M+2*i,2)}, 0' for i in range(4,8)]
        kx = [f'ds_read_b128 {vr(S+4*i,4)}, v{vKr} offset:{(i//2)*KVS+(i%2)*1024}' for i in range(8)]
        va = {i: f'v_mov_b32 v{NEG+i}, -1' for i in range(1 if rlate or rdw else 4)}
        for i, p_ in enumerate((4,5)): va[p_] = f'v_mov_b64 {vr(M+2*i,2)}, 0'
        wr = {}
        for p_, (r, d, off) in ((7, (QA, QP, 0)), (17, (QA+4, QP+1, 512)), (21, (KA, HK, 4))):
            for j, x_ in enumerate(half(r, d)): va[p_+j] = x_
            wr[p_+3] = f'ds_write_b32 v{vXw}, v{d} offset:{off}'
        xr = [f'ds_read_b64_tr_b16 {vr(X+2*i,2)}, v{vXr} offset:{i*512}' for i in range(8)]
        tx = []
        On = T+12; Cq = T+7
        rV = max([int(x_[4:]) for x_ in vp.split() if x_[0] == 'r' and x_[3] == 'V'] + [-1])
        fv = [f'v_mov_b64 {vr(On,2)}, {sp(sOne)}', f'v_mov_b64 {vr(On+2,2)}, {sp(sHalf)}', f'v_mov_b32 v{Cq}, s{sQc}', f'v_mov_b64 {vr(NEG+2,2)}, 0', f'v_mov_b64 {vr(NEG,2)}, 0']
        g2 = stg(('o',7), M+16)
        if yd:
            ku0 = [('k',s_,0) for s_ in range(1,6)]
            seq = [('q',0,0),('k',0,0),('k',0,1),('q',0,1),('q',1,0),('q',1,1)] + [('q',s_,u) for u in (0,1) for s_ in range(2,8)] + \
                  ku0[:kp] + [('k',6,0),('k',6,1),('k',7,0),('k',7,1)] + ku0[kp:] + [('k',s_,1) for s_ in range(1,6)]
            ck = NEG; got = 0
            va = {ckp[0]: f'v_max3_u32 v{ck}, v{M}, v{M+4}, v{M+8}', ckp[1]: f'v_max3_u32 v{ck}, v{ck}, v{M+12}, v{M+16}', ckp[2]: f'v_max3_u32 v{ck}, v{ck}, v{M+20}, v{M+24}',
                  ckp[3]: f'v_max_u32 v{ck}, v{ck}, v{M+28}', ckp[3]+1: f'v_cmp_eq_u32 vcc, -1, v{ck}', ckp[3]+3: f'v_mov_b32 v{NEG}, -1'}
            wr = {}
            for p_, (r, d, off) in ((13, (QA, QP, 0)), (19, (QA+4, QP+1, 512)), (28, (KA, HK, 4))):
                for j, x_ in enumerate(half(r, d)):
                    assert p_+j not in va
                    va[p_+j] = x_
                wr[p_+3] = f'ds_write_b32 v{vXw}, v{d} offset:{off}'
            fv = fv[:3]; fz = [f'v_mov_b64 {vr(M+2*i,2)}, 0' for i in range(4)]
            p6 = 18 + kp; g0 = ckp[3] + 2; NQK = 32
            if yd == 2:
                ku0 = [('k',s_,0) for s_ in range(2,6)]
                vo = [('v',0,0),('v',0,1),('v',1,0),('v',1,1)][:nvo]
                for x_ in vo: vq.remove(x_[1:])
                seq = [('q',0,0),('k',0,0),('k',0,1),('q',0,1),('q',1,0),('q',1,1),('k',1,0),('k',1,1)] + vo + \
                      ([('q',s_,u) for s_ in range(2,8) for u in (0,1)] if qo else [('q',s_,u) for u in (0,1) for s_ in range(2,8)]) + \
                      ku0[:kp] + [('k',6,0),('k',6,1),('k',7,0),('k',7,1)] + ku0[kp:] + [('k',s_,1) for s_ in range(2,6)]
                NQK = 32 + nvo
                va = {0: f'v_max_u32 v{ck}, v{M}, v{M+4}', 1: f'v_cmp_eq_u32 vcc, -1, v{ck}', 3: f'v_mov_b32 v{NEG}, -1'}
                wr = {}
                for p_, (r, d, off) in ((20 if qo else 15, (QA, QP, 0)), (23 if qo else 21, (QA+4, QP+1, 512)), (29, (KA, HK, 4))):
                    for j, x_ in enumerate(half(r, d)): va[p_+j+nvo] = x_
                    wr[p_+3+nvo] = f'ds_write_b32 v{vXw}, v{d} offset:{off}'
                p6 = 20 + kp + nvo; g0 = g0p
            for i in range(48):
                j = i - NQK
                if i < NQK: P_(*seq[i])
                else: V_()
                if vmf: VM(f'Q{i}' if i < NQK else f'V{j}')
                if yd == 2:
                    nd = 1 if i == 0 else seq[i+1][1] if i < 20 + nvo else 0
                    if i == 2:
                        a(f's_cbranch_vccnz {L("retry")}'); VM('P0'); a('s_barrier'); stamp('a1')
                        rdM(2); rdM(3); a(f's_mov_b32 m0, s{sVer}')
                    if 3 <= i < 7: rdM(i+1)
                else: nd = max([seq[i+1][1] if i < 11 else 0] + [(2,4,6,7)[c_] for c_ in range(4) if ckp[c_] == i])
                if nd > got: a.wds(mt[nd]); got = nd
                if i == g0 and yd == 1: a(f's_cbranch_vccnz {L("retry")}'); stamp('a3')
                if p6 - 1 <= i < p6 + 3: a.wds(tg1[2*(i-p6+1)+1])
                if g0 <= i < g0 + 8: tg1.append(a(g1[i-g0]))
                if i in wr: a(wr[i])
                if p6 + 4 <= i < p6 + 12: tkx = a(kx[i-p6-4])
                if not vmf: VM(f'Q{i}' if i < NQK else f'V{j}')
                if i in va: a(va[i])
                if i == NQK - 1: stamp('b0')
                if j == 1:
                    for x_ in half(KA+4, HK+1): a(x_)
                    wk = a(f'ds_write_b32 v{vXw}, v{HK+1} offset:516')
                if j == pB2: a.wds(wk); a('s_barrier'); stamp('b1')
                if j >= pB2:
                    for _ in range(ntr):
                        if len(tx) < 8: tx.append(a(xr[len(tx)])); busy = i
                if j >= max(g7 - 24, 10 - 2*len(g2)) and g2 and not (tx and busy == i): a(g2.pop(0))
                if j == 2: a(f's_mov_b64 vcc, {sp(sB0)}\ns_cmp_eq_u32 s{sT}, {nsteps-1}')
                if i == 47: a(f's_cbranch_scc1 {L("last")}')
                if 2 <= j and i < 47 and j != pB2:
                    if fv: a(fv.pop(0))
                    elif fz and not any(x_[0] == (0 if len(fz) > 2 else 1) for x_ in vq) and i >= (42 if len(fz) > 2 else 44) - 8*(nvo // 4): a(fz.pop(0))
            fv += fz
        MF = 'v_mfma_f32_16x16x32_bf16'
        p6 = 8
        if ps:
            seq = [('q',s_,u) for u in (0,1) for s_ in range(2,8)] + [('k',6,0),('k',6,1),('k',7,0),('k',7,1)] + [('k',s_,u) for u in (0,1) for s_ in range(2,6)]
            p6 = 12
            for p_ in range(17,20): del va[p_]
            for j, x_ in enumerate(half(QA+4, QP)): va[13+j] = x_
            del wr[20]
            B0 = T+8; B1 = T; DP = T+12
            for u in (0,1):
                wr[10+6*u] = f'ds_write_b64 v{vXw}, {vr(QP,2)} offset:{512*u}\nds_write_b32 v{vXw}, v{QP} offset:{4096+512*u+4}'
                rd_ = f'ds_read_b64_tr_b16 {vr(B0+2*u,2)}, v{vKr} offset:{512*u}\nds_read_b64_tr_b16 {vr(B1+2*u,2)}, v{vKr} offset:{4096+512*u}'
                wr[11+6*u] = rd_
            g5 = None
            xr += [f'ds_read2st64_b32 {vr(D0+2*i,2)}, v{T+5} offset0:{2*i} offset1:{2*i+1}' for i in range(2)]
        for i in range(0 if yd else 36):
            if i < 24: P_(*seq[i])
            else: V_()
            if i < 5: a.wds(mt[i+3])
            if p6 - 1 <= i < p6 + 3: a.wds(tg1[2*(i-p6+1)+1])
            G1(i)
            if i in wr: tw = a(wr[i])
            if ps:
                if i == 17: tq = tw
                if i == 16: g5 = stg(('o',5), S0) + stg(('o',6), S1)
                if i in (pad, pad+1):
                    for r in range(2*(i-pad), 2*(i-pad)+2): a(f'ds_add_f32 v{T+5}, v{DP+r} offset:{256*r}')
                if i in g56: a(g5.pop(0))
            elif pKx <= i < pKx + 8: tkx = a(kx[i-pKx])
            VM(f'Q{i}' if i < 24 else f'V{i-24}')
            if i in va: a(va[i])
            if ps and i == pmf:
                a.wds(tq)
                a(f'{MF} {vr(DP,4)}, {vr(KX,4)}, {vr(B0,4)}, 0\n{MF} {vr(DP,4)}, {vr(KX+4,4)}, {vr(B1,4)}, {vr(DP,4)}')
            if i == 23: stamp('b0')
            if i == 25:
                for x_ in half(KA+4, HK+1): a(x_)
                wk = a(f'ds_write_b32 v{vXw}, v{HK+1} offset:516')
            if i == 24 + pB2: a.wds(wk); a('s_barrier'); stamp('b1')
            if i >= 24 + pB2:
                for _ in range(ntr):
                    if len(tx) < len(xr): tx.append(a(xr[len(tx)])); busy = i
            if i >= max(g7, 34 - 2*len(g2)) and g2 and not (tx and busy == i): a(g2.pop(0))
            if i == 26: a(f's_mov_b64 vcc, {sp(sB0)}\ns_cmp_eq_u32 s{sT}, {nsteps-1}')
            if i == 35: a(f's_cbranch_scc1 {L("last")}')
            if 26 <= i < 35 and i != 24 + pB2 and not (tx and busy == i and ntr > 2) and fv and (len(fv) > 2 or i - 24 > rV): a(fv.pop(0))
        while len(tx) < len(xr): tx.append(a(xr[len(tx)]))
        stamp('c0')
        vf = half(VA, HV) + half(VA+4, HV+1)
        mx = T+4; tm = T+5; ma = T+6; vOr = T+4
        if not ps: g5 = stg(('o',5), S0); g6 = stg(('o',6), S1)
        P = T+8; Dd = T+10; Ba = XO; Bb = XO+4; Po = XO+8; Ls = XO+12
        MF = 'v_mfma_f32_16x16x32_bf16'
        lastc = list(vf)
        mg = [f'v_cndmask_b32_dpp v{D0+r}, v{D1+r}, v{D0+r}, vcc quad_perm:[0,1,0,1] {DPPM}' for r in range(4)] + \
             [f'v_max3_f32 v{mx}, v{D0}, v{D0+1}, v{D0+2}', f'v_max_f32 v{mx}, v{mx}, v{D0+3}']
        rest = g2 + fv
        a.wds(tx[{0: 7, 1: 3, 2: 1}[wx]])
        Dq = Dm
        if ps:
            Dq = D1; g6 = g2 + g5; rest = []
            fl_ = fv + vf[:3] + mg[4:] + vf[3:]
            for i in range(4):
                r = X+4*i; a(f'{MF} {vr(Dq,4)}, {vr(r,4)}, {vr(r,4)}, {vr(Dq,4) if i else 0}')
                stamp(f'M{i}')
                if i == 1: a.wds(tx[9])
                for _ in range(2):
                    if g6: a(g6.pop(0))
                for _ in range(2 if i else 1): a(fl_.pop(0))
            for x_ in fl_: a(x_)
        for i in range(0 if ps else 12):
            if i < 8:
                w_ = i//2; d = (D0, D1)[i%2]
                a(f'{MF} {vr(d,4)}, {vr(S+4*i,4)}, {vr(X+4*w_,4)}, {vr(d,4) if w_ else 0}')
            else:
                r = X+4*(i-8); a(f'{MF} {vr(Dm,4)}, {vr(r,4)}, {vr(r,4)}, {vr(Dm,4) if i > 8 else 0}')
            stamp(f'M{i}')
            if i == 0:
                for _ in range(2):
                    if rest: a(rest.pop(0))
            elif i == 1 and wx == 2: a.wds(tx[3]); a(vf.pop(0))
            elif i == 3 and wx: a.wds(tx[7]); a(vf.pop(0))
            elif i < 4: a(vf.pop(0)); a(vf.pop(0))
            elif i < 8:
                a(g5.pop(0))
                if vf: a(vf.pop(0))
                elif rest: a(rest.pop(0))
                elif i >= 6: a(g6.pop(0))
            elif i == 8: a(g6.pop(0)); a(g6.pop(0))
            else: a(mg.pop(0)); a(mg.pop(0))
        assert not rest
        for x_ in g6: a(x_)
        stamp('c1')
        a(f'v_max_f32_dpp v{mx}, v{mx}, v{mx} quad_perm:[2,3,0,1] {DPPM}')
        a(f'v_mul_f32 v{mx}, v{mx}, v{Cq}')
        a(f'v_mul_f32_dpp v{Dm}, v{Dq+2}, v{Cq} quad_perm:[0,1,0,1] {DPPM}')
        a(f'v_mul_f32_dpp v{Dm+1}, v{Dq+3}, v{Cq} quad_perm:[0,1,0,1] {DPPM}')
        a(f'v_max3_f32 v{tm}, v{mx}, v{Dm}, v{Dm+1}')
        a(f'v_max3_f32 v{mx}, v{mx}, v{Dm}, v{Dm+1}')
        a(z0.pop()); a(z0.pop())
        a(f'v_permlane16_swap_b32 v{mx}, v{tm}\nv_max_f32 v{ma}, v{mx}, v{tm}\nv_max_f32 v{mx}, v{mx}, v{tm}')
        a(z0.pop()); a(z0.pop())
        a(f'v_permlane32_swap_b32 v{mx}, v{ma}\nv_max_f32 v{mx}, v{mx}, v{ma}')
        ex = [Dm, Dm+1, T, T+1, T+2, T+3]
        for r in ex[:2]: a(f'v_sub_f32 v{r}, v{r}, v{mx}')
        for r in ex[2:]: a(f'v_fma_f32 v{r}, v{r}, v{Cq}, -v{mx}')
        for r in ex[:4]: a(f'v_exp_f32 v{r}, v{r}')
        a(f'v_cvt_pk_bf16_f32 v{Dm}, v{Dm}, v{Dm+1}')
        for r in ex[4:]: a(f'v_exp_f32 v{r}, v{r}')
        stamp('c2')
        a.wvm(max(vt['d2'], vt['d3'], vt['rm']))
        a(f"""
        v_cvt_pk_bf16_f32 v{P}, v{T}, v{T+1}
        v_and_b32 v{Dd}, v{Dm}, v{vM0}
        v_and_b32 v{Dd+1}, v{Dm}, v{vM1}
        v_cvt_pk_bf16_f32 v{P+1}, v{T+2}, v{T+3}
        v_and_b32 v{Ba}, v{P}, v{vM0}
        v_mfma_f32_16x16x16_bf16 {vr(Po,4)}, {vr(HV,2)}, {vr(Dd,2)}, 0
        v_and_b32_dpp v{Ba+2}, v{P}, v{vM0} quad_perm:[2,3,0,1] {DPPM}
        v_and_b32 v{Ba+1}, v{P+1}, v{vM0}
        v_mfma_f32_16x16x32_bf16 {vr(Ls,4)}, {vr(On,4)}, {vr(P,4)}, 0
        v_and_b32_dpp v{Ba+3}, v{P+1}, v{vM0} quad_perm:[2,3,0,1] {DPPM}
        v_and_b32_dpp v{Bb}, v{P}, v{vM1} quad_perm:[2,3,0,1] {DPPM}
        v_and_b32_dpp v{Bb+1}, v{P+1}, v{vM1} quad_perm:[2,3,0,1] {DPPM}
        v_mfma_f32_16x16x32_bf16 {vr(Po,4)}, {vr(VX,4)}, {vr(Ba,4)}, {vr(Po,4)}
        v_and_b32 v{Bb+2}, v{P}, v{vM1}
        v_and_b32 v{Bb+3}, v{P+1}, v{vM1}
        v_and_b32 v{vOr}, -9, v{vOw}
        v_xor_b32 v{vOr+1}, 512, v{vOr}
        v_mfma_f32_16x16x32_bf16 {vr(Po,4)}, {vr(VX+4,4)}, {vr(Bb,4)}, {vr(Po,4)}
        v_add_f32_dpp v{Ls}, v{Ls}, v{Ls} quad_perm:[2,3,0,1] {DPPM}
        v_rcp_f32 v{Ls}, v{Ls}
        v_xor_b32 v{vOr+2}, 1024, v{vOr}
        v_xor_b32 v{vOr+3}, 1536, v{vOr}
        """)
        assert not z0
        if rlate: a(f'v_mov_b64 {vr(T,2)}, -1' + ('' if rdw else f'\nv_mov_b64 {vr(T+2,2)}, -1'))
        a(f"""
        v_mul_f32 v{Po}, v{Po}, v{Ls}
        v_mul_f32 v{Po+1}, v{Po+1}, v{Ls}
        v_mul_f32 v{Po+2}, v{Po+2}, v{Ls}
        v_mul_f32 v{Po+3}, v{Po+3}, v{Ls}
        v_cvt_pk_bf16_f32 v{Po}, v{Po}, v{Po+1}
        v_cvt_pk_bf16_f32 v{Po+1}, v{Po+2}, v{Po+3}
        """)
        O = XO
        ow = a(f'ds_write_b64 v{vOw}, {vr(Po,2)}')
        ot = [a(f'ds_read_b128 {vr(O,4)}, v{vOr}')]
        stamp('c3')
        VM('C0')
        a.wds(ow); a('s_barrier')
        stamp('d0')
        for k_ in range(1,4): ot.append(a(f'ds_read_b128 {vr(O+4*k_,4)}, v{vOr+k_}'))
        VM('C1')
        PS = VA
        def W_(G, ki): SM(M+4*G, O+4*ki, 'o', 2*ki+G//2, G%2)
        def cv(G): return [f'v_cvt_pk_bf16_f32 v{PS+2*G+h_}, v{M+4*G+2*h_}, v{M+4*G+2*h_+1}' for h_ in range(2)]
        a.wds(ot[0])
        for G in range(4):
            W_(G, 0); VM(f'W{G}')
        a.wds(ot[1])
        stamp('d1')
        if w4:
            def st_(G):
                c_ = cv(G)
                if dw: return sum([[c_[h_], f'v_min_u32 v{PS+2*G+h_}, -2, v{PS+2*G+h_}', f'global_store_dword v{vPst}, v{PS+2*G+h_}, {sp((sSt0,sSt1)[h_])} offset:{2048*G-4096}{stc}'] for h_ in range(2)], [])
                return [c_[0], f'v_min_u32 v{PS+2*G}, -2, v{PS+2*G}', c_[1], f'global_store_dwordx2 v{vPst}, {vr(PS+2*G,2)}, {sp(sSt0)} offset:{2048*G-4096}{stc}']
            fl_ = [f'v_mov_b32 v{T+2}, 0x3f80', f'v_mov_b32 v{T+3}, 0x3f800000', f'v_cndmask_b32 v{T+2}, v{T+2}, v{T+3}, {sp(sPm)}']
            W_(0,1); a.wds(ot[2]); W_(0,2); a.wds(ot[3]); W_(0,3)
            if wo >= 4:
                sd = lambda G, h_: f'global_store_dword v{vPst}, v{PS+2*G+h_}, {sp((sSt0,sSt1)[h_])} offset:{2048*G-4096}{stc}'
                for G in range(1,4):
                    c_ = cv(G-1)
                    W_(G,1)
                    if G > 1 and wo == 4: a(sd(G-2,1))
                    a(fl_.pop(0))
                    W_(G,2); a(c_[0])
                    if wo == 5: a(c_[1])
                    W_(G,3); a(sd(G-1,0))
                    if wo == 5: a(sd(G-1,1))
                    else: a(c_[1])
                a(f'v_cndmask_b32 v{Sel}, 0, v{T+2}, {sp(sSel)}')
                if wo == 4: a(sd(2,1))
                for i in range(1,4): a(f'v_cndmask_b32 v{Sel+i}, 0, v{T+2}, {sp(sSel+2*i)}')
                for x_ in cv(3) + [sd(3,0), sd(3,1)]: a(x_)
            for G in range(1,4 if wo < 4 else 0):
                q_ = st_(G-1)
                W_(G,1); a(fl_.pop(0))
                if wo == 2 and G == 1:
                    for x_ in q_: a(x_)
                    q_ = []
                W_(G,2)
                for _ in range((6 if wo >= 1 and G == 1 else 3) if dw else 4 if wo >= 1 and G == 1 else 2):
                    if q_: a(q_.pop(0))
                W_(G,3)
                for x_ in q_: a(x_)
            if wo < 4:
                for i in range(4): a(f'v_cndmask_b32 v{Sel+i}, 0, v{T+2}, {sp(sSel+2*i)}')
                for x_ in st_(3): a(x_)
        else:
            W_(0,1); VM('W4'); W_(1,1); a.wds(ot[2]); VM('W5'); W_(0,2); VM('W6'); W_(1,2); a.wds(ot[3]); VM('W7'); W_(0,3); VM('W8'); W_(1,3)
            c0 = cv(0); c1 = cv(1); c2 = cv(2); c3 = cv(3)
            W_(2,1); a(c0[0])
            W_(2,2); a(c0[1]); a(c1[0])
            W_(2,3); a(c1[1]); a(f'v_min_u32 v{PS}, -2, v{PS}')
            W_(3,1); a(f'global_store_dwordx4 v{vPst}, {vr(PS,4)}, {sp(sSt0)}{stc}')
            W_(3,2); a(c2[0])
            W_(3,3); a(c2[1]); a(f'v_min_u32 v{PS+4}, -2, v{PS+4}')
            a(f'v_mov_b32 v{T+2}, 0x3f80\nv_mov_b32 v{T+3}, 0x3f800000')
            a(f'v_cndmask_b32 v{T+2}, v{T+2}, v{T+3}, {sp(sPm)}')
            a(c3[0]); a(c3[1])
            a(f'global_store_dwordx4 v{vPst}, {vr(PS+4,4)}, {sp(sSt1)}{stc}')
        stamp('h0')
        if 'ack' in opt: a('s_waitcnt vmcnt(0)'); stamp('hk')
        n0 = len(a.items)
        for x_ in stg(('q',0), S0) + stg(('q',1), S1): a(x_)
        if not w4:
            for i in range(4): a(f'v_mov_b32 v{Sel+i}, v{T+2}' if ra == 1 else f'v_cndmask_b32 v{Sel+i}, 0, v{T+2}, {sp(sSel+2*i)}')
            if ra in (1,2): a(f'v_lshrrev_b32 v{T+1}, {3-ra}, v{vLin}\nv_cndmask_b32 v{T+3}, -1, -2, {sp(sSel)}')
            a.nops(preA - (len(a.items) - n0))
        else:
            cur = len(a.items) - n0
            for w_ in range(4):
                a.nops(w4[w_] - cur - (2 if w_ < 3 else 0)); cur = max(cur + (2 if w_ < 3 else 0), w4[w_])
                if w_ < 3: a(f's_cmp_eq_u32 s{sW}, {w_}\ns_cbranch_scc1 {L("p0")}')
            a.label(L('p0'))
        R1 = M+8; R2 = P2
        def redA(R):
            if ra == 2:
                a(f"""
                s_waitcnt vmcnt(6)
                v_mfma_f32_16x16x32_bf16 {vr(Dr,4)}, {vr(Sel,4)}, {vr(R,4)}, 0
                s_waitcnt vmcnt(4)
                v_mfma_f32_16x16x32_bf16 {vr(Dr,4)}, {vr(Sel,4)}, {vr(R+4,4)}, {vr(Dr,4)}
                v_max3_u32 v{T}, v{R}, v{R+2}, v{R+4}
                v_max_u32 v{T}, v{T}, v{R+6}
                v_cmp_gt_u32 vcc, v{T}, v{T+3}
                """)
                return
            if ra == 4:
                a(f"""
                s_waitcnt vmcnt(3)
                v_mfma_f32_16x16x32_bf16 {vr(Dr,4)}, {vr(Sel,4)}, {vr(R,4)}, 0
                {f'v_max3_u32 v{T}, v{R}, v{R+1}, v{R+2}' if dw and mk == 8 else ''}
                s_waitcnt vmcnt(2)
                v_mfma_f32_16x16x32_bf16 {vr(Dr,4)}, {vr(Sel,4)}, {vr(R+4,4)}, {vr(Dr,4)}
                {f'v_max3_u32 v{T}, v{T}, v{R+3}, v{R+4}{NL}v_max3_u32 v{T}, v{T}, v{R+5}, v{R+6}{NL}v_max_u32 v{T}, v{T}, v{R+7}' if dw and mk == 8 else f'v_max3_u32 v{T}, v{R}, v{R+2}, v{R+4}{NL}v_max_u32 v{T}, v{T}, v{R+6}' if w4 and not dw else f'v_max_u32 v{T}, v{R}, v{R+4}'}
                v_cmp_eq_u32 vcc, -1, v{T}
                """)
                return
            if ra:
                a(f"""
                s_waitcnt vmcnt(12)
                v_mfma_f32_16x16x32_bf16 {vr(Dr,4)}, {vr(R,4)}, {vr(Sel,4)}, 0
                v_max3_u32 v{T}, v{R}, v{R+1}, v{R+2}
                s_waitcnt vmcnt(8)
                v_mfma_f32_16x16x32_bf16 {vr(Dr,4)}, {vr(R+4,4)}, {vr(Sel,4)}, {vr(Dr,4)}
                v_max3_u32 v{T}, v{T}, v{R+3}, v{R+4}
                v_max3_u32 v{T}, v{T}, v{R+5}, v{R+6}
                v_max_u32 v{T}, v{T}, v{R+7}
                v_cmp_gt_u32 vcc, v{T}, v{T+3}
                """)
                return
            a(f"""
            s_waitcnt vmcnt(3)
            v_mfma_f32_16x16x32_bf16 {vr(Dr,4)}, {vr(R,4)}, {vr(Sel,4)}, 0
            s_waitcnt vmcnt(2)
            v_mfma_f32_16x16x32_bf16 {vr(Dr,4)}, {vr(R+4,4)}, {vr(Sel,4)}, {vr(Dr,4)}
            v_max_u32 v{T}, v{R}, v{R+4}
            v_cmp_eq_u32 vcc, -1, v{T}
            """)
        ldA(R1)
        a.nops(gapA - {0:2, 1:8, 2:4, 4:2}[ra])
        a.label(L('pa'))
        ldA(R2)
        redA(R1)
        if ft: a(f's_cbranch_vccnz {L("pb")}')
        else:
            a(f's_cbranch_vccz {L("qa")}')
            ldA(R1); spin()
            redA(R2)
            a(f's_cbranch_vccnz {L("pa")}')
        a.label(L('qa'))
        stamp('h1')
        if ra > 1:
            for ro in ((8,) if ra == 2 else (8,4)):
                for r in range(2): a(f'v_add_f32_dpp v{Dr+r}, v{Dr+r}, v{Dr+r} row_ror:{ro} {DPPM}')
            a(f"""
            s_mov_b64 exec, {sp(sPub)}
            v_cvt_pk_bf16_f32 v{Dr}, v{Dr}, v{Dr+1}
            {'' if nc else f'v_min_u32 v{Dr}, -2, v{Dr}'}
            global_store_dword v{vMst}, v{Dr}, {sp(sMst)}{stc}
            """)
        elif ra: a(f"""
        s_mov_b64 exec, {sp(sPub)}
        v_cvt_pk_bf16_f32 v{Dr}, v{Dr}, v{Dr+1}
        v_cvt_pk_bf16_f32 v{Dr+1}, v{Dr+2}, v{Dr+3}
        v_min_u32 v{Dr}, -2, v{Dr}
        global_store_dwordx2 v{vMst}, {vr(Dr,2)}, {sp(sMst)}{stc}
        """)
        else: a(f"""
        v_permlane32_swap_b32 v{Dr}, v{Dr+2}
        v_permlane32_swap_b32 v{Dr+1}, v{Dr+3}
        v_add_f32 v{Dr}, v{Dr}, v{Dr+2}
        v_add_f32 v{Dr+1}, v{Dr+1}, v{Dr+3}
        v_permlane16_swap_b32 v{Dr}, v{Dr+1}
        v_add_f32 v{Dr}, v{Dr}, v{Dr+1}
        v_mov_b32_dpp v{Dr+1}, v{Dr} quad_perm:[1,0,3,2] {DPPM}
        v_cvt_pk_bf16_f32 v{Dr}, v{Dr}, v{Dr+1}
        s_mov_b64 exec, {sp(sPub)}
        v_min_u32 v{Dr}, -2, v{Dr}
        global_store_dword v{vMst}, v{Dr}, {sp(sMst)}{stc}
        """)
        stamp('h2')
        a(f"""
        s_mov_b64 exec, -1
        """)
        if w4 and bb: a('s_barrier')
        stamp('h3')
        tstamp(f's{sT}')
        if prof and len(stamps) >= 2:
            a('s_waitcnt lgkmcnt(0)')
            for i in range(len(stamps)-1): a(f's_sub_u32 s{sA}, s{sP+2*i+2}, s{sP+2*i}\ns_add_u32 s{sP+21+i}, s{sP+21+i}, s{sA}')
        if prof:
            a(f's_cmp_lg_u32 s{sT}, 3\ns_cbranch_scc1 {L("pf1")}\ns_memtime {sp(sP+28)}\ns_mov_b32 s{sSpin}, 0')
            for i in range(6): a(f's_mov_b32 s{sP+21+i}, 0')
            a(f'{L("pf1")}:\ns_cmp_lg_u32 s{sT}, {nsteps-2}\ns_cbranch_scc1 {L("pf2")}\ns_memtime {sp(sP)}\ns_waitcnt lgkmcnt(0)\ns_sub_u32 s{sP+20}, s{sP}, s{sP+28}\n{L("pf2")}:')
        a(f's_add_u32 s{sT}, s{sT}, 1\ns_branch {L("step")}')
        if ft:
            a.label(L('pb'))
            ldA(R1); spin()
            redA(R2)
            a(f's_cbranch_vccnz {L("pa")}\ns_branch {L("qa")}')
        a.label(L('rp'))
        if ps: a(f'v_lshrrev_b32 v{T+6}, 2, v{vLin}')
        a(f'global_load_dword v{T+6}, v{T+6 if ps else T+5}, {sp(sFK)} sc1')
        spin()
        a('s_waitcnt vmcnt(0)')
        fkeval(T+6)
        a(f's_cmp_lt_u32 s{sA}, s{sRdy}\ns_cbranch_scc1 {L("rk")}\ns_sleep 2\ns_branch {L("rp")}')
        a.label(L('last'))
        a('s_nop 7')
        for x_ in lastc: a(x_)
        a(f's_branch {LE}')
    loop(L, stc)
    if mega: loop(lambda x: L('s_' + x), ' sc1', *((8, 0) if dw else ()))
    a.label(L('end'))
    a('s_mov_b64 exec, -1\ns_nop 7')
    a(f'''
    s_add_u32 s{sKVM}, s{sKVM}, {0 if kvnow else 32*4096}
    s_addc_u32 s{sKVM+1}, s{sKVM+1}, 0
    global_store_dwordx4 v{vLin}, {vr(HK,4)}, {sp(sKVM)} sc1
    v_mov_b32 v{T}, 0x41
    s_waitcnt vmcnt(0)
    s_barrier
    s_mov_b64 exec, {sp(sFm)}
    global_store_dword v{vLin}, v{T}, {sp(sFl)} sc1
    s_mov_b64 exec, -1
    ''')
    if prof:
        for i in range(7): a(f'v_mov_b32 v{T+i}, s{sP+20+i}')
        a(f'''
        v_mov_b32 v{T+7}, s{sSpin}
        s_lshl_b32 s{sA}, s{sH}, 2
        s_add_u32 s{sA}, s{sA}, s{sW}
        s_lshl_b32 s{sA}, s{sA}, 5
        s_add_u32 s{sA}, s{sA}, {WS_PROF}
        v_mov_b32 v{T+8}, s{sA}
        s_mov_b64 exec, 1
        global_store_dwordx4 v{T+8}, {vr(T,4)}, {sp(sWs)}
        global_store_dwordx4 v{T+8}, {vr(T+4,4)}, {sp(sWs)} offset:16
        s_mov_b64 exec, -1
        ''')
    tl(a, 4, T, 0)
    a('s_waitcnt vmcnt(0) lgkmcnt(0)')

def standalone(name='chain_kernel', **kw):
    a = Asm()
    a.raw(khead(name))
    a(f'''
    s_load_dwordx2 {sp(sMem)}, s[0:1], 8
    s_load_dwordx4 s[8:11], s[0:1], 24
    s_load_dwordx2 {sp(sWq)}, s[0:1], 16
    s_load_dwordx2 {sp(sWo)}, s[0:1], 40
    s_load_dwordx2 {sp(sDbg)}, s[0:1], 104
    s_load_dwordx2 {sp(sWs)}, s[0:1], 112
    s_getreg_b32 s{sA}, hwreg(HW_REG_XCC_ID)
    s_and_b32 s{sA}, s{sA}, 15
    s_mov_b32 s{sXcc}, s{sA}
    s_waitcnt lgkmcnt(0)
    s_cmp_lg_u32 s{sA}, 0
    s_cbranch_scc1 L_done_{name}
    v_mov_b32 v1, 0
    v_mov_b32 v2, 1
    v_lshrrev_b32 v4, 6, v0
    v_readfirstlane_b32 s{sW}, v4
    s_cmp_lg_u32 s{sW}, 0
    s_cbranch_scc1 L_t_{name}
    s_mov_b64 exec, 1
    global_atomic_add v3, v1, v2, {sp(sDbg)} offset:252 sc0 sc1
    s_waitcnt vmcnt(0)
    ds_write_b32 v1, v3
    s_waitcnt lgkmcnt(0)
    s_mov_b64 exec, -1
    L_t_{name}:
    s_barrier
    ds_read_b32 v3, v1
    s_waitcnt lgkmcnt(0)
    v_readfirstlane_b32 s{sH}, v3
    s_barrier
    s_cmp_gt_u32 s{sH}, 31
    s_cbranch_scc1 L_done_{name}
    ''')
    chain(a, name, **kw)
    a.label(f'L_done_{name}')
    a('s_endpgm')
    bad = a.check_branches()
    assert bad == 0
    return a

if __name__ == '__main__':
    import sys
    variants = eval(sys.argv[1]) if len(sys.argv) > 1 else [dict()]
    out = ''.join(f'; @launch kernel=c{i}_kernel grid=(256,1,1) block=(256,1,1) lds=163840\n' for i in range(len(variants)))
    out += '.amdgcn_target "amdgcn-amd-amdhsa--gfx950"\n.text\n'
    for i, v in enumerate(variants):
        a = standalone(f'c{i}_kernel', prof=True, **v); out += a.text()
    out += '.section .rodata,"a"\n' + ''.join(kdesc(f'c{i}_kernel') for i in range(len(variants)))
    open('chain.s','w').write(out)
    open('chain.json','w').write(repr(variants))
```

```python
from asmlib import *
import struct, math
WS_KV = 0; WS_V = 16<<20; KST = 32*8192; WS_QX = 32<<20; WS_KVM = 48<<20; WS_RA = 60<<20; WS_RM = 61<<20; WS_PROF = 62<<20
RA_SLOT = 128*2048; RM_SLOT = 8192
SLAB = 131072
def f32(x): return struct.unpack('<I', struct.pack('<f', x))[0]
QSCALE = f32(128**-0.5 * math.log2(math.e))

M=0; QV=32; KA=40; KX=48; XO=40; VX=56; S=64; T=96
vIdx,vLin,vKr,vTc,vXw,vXr,vPst,vMst,vLw,vOw,vM0,vM1,HK,_,HV,_2 = range(112,128)
sMem,sWq,sWk,sWv,sWo,sDbg,sWs = 4,6,8,10,12,14,16
sH,sW,sT,sSpin = 18,19,20,21
sTmp=22; sLb=24; sA=25; sB=26; sC=27
sKV=30; sKVM=32; sSt0=34; sSt1=36; sAld=38; sArs=40; sMld=42; sMst=44
sRA=46; sRAo=48; sRMl=50; sRMs=52
sB1=54; sSel=56; sPm=64; sPub=66; sM0kv=68; sQc=69
sFl=28; sXcc=3; sFm=100; sRdy=86; sVer=87; sFK=84; sGot=88; sNx=89
WS_FL = 63<<20; FL_K = 8192; FL_G = 16384; FL_P = 20480
ROLE_LDS = 163832
VERIFY = None
sP=70
SPIN=200000
NL = chr(10)
def sp(x): return f's[{x}:{x+1}]'

LDS_BLK = [('q',0),('q',1),('k',0),('k',6),('k',7),('o',5),('o',6),('o',7)]
NQ = 5
KVS = 2304
L_KV = SLAB+8192; L_MQ = SLAB; L_X = SLAB+28672; L_O = SLAB+26624
REG_BLK = [(m,i) for m in 'qkvo' for i in range(8) if (m,i) not in LDS_BLK]
def dest(b):
    i = REG_BLK.index(b)
    return ('a', 16*i) if i < 16 else ('v', 128 + 16*(i-16))

WS_TL = (62<<20) + 65536
TL = False
TLN = 0
def tl(a, i, v1, role_hi):
    if not TL: return
    if TL == 2:
        ch = (role_hi == 0)
        if i > 5: return
        a(f"""
        s_memrealtime s[90:91]
        s_waitcnt lgkmcnt(0)
        s_mov_b32 s{74+i}, s90
        """)
        if (ch and i == 4) or (not ch and i == 5):
            global TLN
            TLN += 1
            idx = [0,2,3,4] if ch else [0,3,4,5]
            a(f"""
            s_lshl_b32 s97, s{sH}, 2
            s_add_u32 s97, s97, s{sW}
            """)
            if not ch: a(f's_xor_b32 s96, {role_hi}, 5\ns_or_b32 s97, s97, s96')
            a(f's_cmp_lg_u32 s97, 0\ns_cbranch_scc1 Ltl2_{TLN}')
            for k_, j in enumerate(idx): a(f'v_mov_b32 v{v1+4+k_}, s{74+j}')
            a(f"""
            v_mov_b32 v{v1}, {32 if ch else 48}
            s_mov_b64 exec, 1
            global_store_dwordx4 v{v1}, v[{v1+4}:{v1+7}], {sp(sDbg)} sc1
            s_mov_b64 exec, -1
            Ltl2_{TLN}:
            """)
        return
    ch = (role_hi == 0)
    a(f"""
    s_memrealtime s[98:99]
    s_memtime s[90:91]
    s_waitcnt lgkmcnt(0)
    s_mov_b32 s{70+i}, s98
    """)
    if i < 6: a(f's_mov_b32 s{78+i}, s90')
    if (ch and i == 4) or (not ch and i == 5):
        a(f"""
        s_lshl_b32 s97, {role_hi}, 5
        s_add_u32 s97, s97, s{sH}
        s_lshl_b32 s97, s97, 2
        s_add_u32 s97, s97, s{sW}
        s_lshl_b32 s97, s97, 6
        s_add_u32 s97, s97, {WS_TL}
        v_mov_b32 v{v1}, s97
        s_mov_b64 exec, 1
        """)
        for j in range(14): a(f'v_mov_b32 v{v1+1}, s{70+j}\nglobal_store_dword v{v1}, v{v1+1}, {sp(sWs)} offset:{4*j}\ns_nop 1')
        if ch: a(f'v_mov_b32 v{v1+1}, s{sSpin}\nglobal_store_dword v{v1}, v{v1+1}, {sp(sWs)} offset:56\ns_nop 1\nv_mov_b32 v{v1+1}, s94\nglobal_store_dword v{v1}, v{v1+1}, {sp(sWs)} offset:60\ns_nop 1')
        a('s_mov_b64 exec, -1')

def chain(a, tag, sc='', mega=False, prof=False, nsteps=64, preA=56, preB=44, gapA=48, gapB=48, sgq=-3, pKx=12, pB2=5, ntr=2, rdw=1, wx=1, g7=32, stamps=(), wnt=' nt', ont=None, mord='qkv', warm=22, fkb=22, fke=28, arr=10, fst=0, opipe=1, tls=(0,8,16), opt=(), tsc=' sc1', tdist=1, skip=(), ra=0, hp=0, dA=28, dB=28, gL=28, gL2=40, b1=5, b2=1, word=0, n3=1, w4=None, bb=1, psw=0, wo=0, dw=0, mk=1, wB=None, pb1=5, yd=0, ckp=(3,5,7,8), kp=3, qo=0, g0p=8, nvo=0, wsh=0, vmf=0, fc=0, nr0=2, ps=0, pmf=21, pad=23, g56=(18,19,20,26,27,28), ft=0, nc=0, wb=0, vp=None):
    L = lambda x: f'L{tag}_{x}'
    DIR = True
    stc = (' ' + sc) if sc else ''
    LE = L('end')
    if ont is None: ont = wnt
    if yd and vp is None: vp = 'kv@Q2 d2@Q10 d3@Q13 rm@Q15 d0@Q17 fl@Q19 d1@Q21 tc@Q24 r0@Q27 r1@Q30'
    if vp is None: vp = 'kv@A0 d2@A2 d3@Q0 rm@Q2 d0@Q4 fl@Q6 d1@Q9 tc@Q12 r0@Q16 r1@Q20' if hp else 'kv@P0 d2@A2 d3@A6 rm@Q2 d0@Q4 fl@Q6 d1@Q9 tc@Q12 r0@Q16 r1@Q20'
    if w4: ra = 4; rdw = 1 if dw and mk == 1 else 0
    L_X = SLAB+18432 if ps else SLAB+28672
    L_S = SLAB+28672
    kvnow = any(x_[:2] == 'kv' and x_[3] in 'CW' for x_ in vp.split())
    staged = {}
    def B(m, i, u):
        if (m,i) in staged: return vr(staged[(m,i)] + 8*u, 8)
        k, b = dest((m,i)); return vr(b + 8*u, 8, k)
    def SM(acc, A, m, i, u): a(f'v_smfmac_f32_16x16x64_bf16 {vr(acc,4)}, {vr(A,4)}, {B(m,i,u)}, v{vIdx}')
    def stg(blk, r):
        slot = LDS_BLK.index(blk); staged[blk] = r
        return [f'ds_read_b128 {vr(r+4*i,4)}, v{vLw} offset:{slot*4096+i*1024}' for i in range(4)]
    AK = {}
    def stamp(i):
        if prof and i in stamps: a(f's_memtime {sp(sP+2*stamps.index(i))}')
        if f'ak:{i}' in opt: a.wvm(max(AK['vt'][o_] for o_ in ('d0','d1','tc'))); stamp('ak')

    lane,n_,g_,t1,t2,t3 = T,T+1,T+2,T+3,T+4,T+5
    vWa, vOa = KX+4, T+9
    vTr = VX
    vL4, vFd, vFk = T+6, T+7, KX
    vTo = KX+2
    a(f'''
    v_and_b32 v{lane}, 63, v0
    v_and_b32 v{n_}, 15, v0
    v_lshrrev_b32 v{g_}, 4, v{lane}
    v_lshlrev_b32 v{vLin}, 4, v{lane}
    s_lshl_b32 s{sLb}, s{sW}, 15
    s_mul_i32 s{sA}, s{sW}, {KVS}
    s_add_u32 s{sM0kv}, s{sA}, {L_KV}
    v_add_u32 v{vLw}, s{sLb}, v{vLin}
    ; cooperative qkv DMA: instr i=gb, r'=lane/16, p=lane%16 holds chunk p^(2r'+8gb0) of row 32(w&1)+8(w>>1)+4gb1+gb0+16(r'&1)+2(r'>>1)
    v_and_b32 v{t1}, 1, v{g_}
    v_lshrrev_b32 v{t3}, 1, v{g_}          ; gb1
    v_lshlrev_b32 v{t2}, 1, v{g_}
    v_xor_b32 v{t2}, v{t2}, v{n_}
    v_lshlrev_b32 v{t2}, 4, v{t2}
    v_lshl_add_u32 v{t2}, v{t1}, {13 if dw else 17}, v{t2}
    v_lshl_add_u32 v{t2}, v{t3}, 14, v{t2}
    s_and_b32 s{sA}, s{sW}, 1
    s_lshl_b32 s{sA}, s{sA}, {15 if dw else 18}
    s_lshr_b32 s{sB}, s{sW}, 1
    s_lshl_b32 s{sB}, s{sB}, {18 if dw else 16}
    s_add_u32 s{sA}, s{sA}, s{sB}
    s_lshl_b32 s{sB}, s{sH}, 8
    s_add_u32 s{sA}, s{sA}, s{sB}
    v_add_u32 v{vWa}, s{sA}, v{t2}
    v_xor_b32 v{t2}, 128, v{vWa}
    v_add_u32 v{vWa+1}, {(8 if dw else 1)*8192-1024}, v{t2}
    v_add_u32 v{vWa+2}, {(16 if dw else 4)*8192-2048}, v{vWa}
    v_add_u32 v{vWa+3}, {(24 if dw else 5)*8192-3072}, v{t2}
    ; wo rows: 16*gb0+4*gb1+bit3 ; chunk = (l%8)^(4*gb0)
    v_lshlrev_b32 v{vOa}, 4, v{t1}
    v_lshl_add_u32 v{vOa}, v{t3}, 2, v{vOa}
    v_bfe_u32 v{vTr}, v{lane}, 3, 1
    v_add_u32 v{vOa}, v{vOa}, v{vTr}
    v_lshlrev_b32 v{vTr}, 2, v{t1}
    v_xor_b32 v{vTr}, v{vTr}, v{lane}
    v_and_b32 v{vTr}, 7, v{vTr}
    v_lshlrev_b32 v{vTr}, 4, v{vTr}
    v_lshl_add_u32 v{vOa}, v{vOa}, 10, v{vTr}
    s_lshl_b32 s{sA}, s{sH}, 17
    s_lshl_b32 s{sB}, s{sW}, 8
    s_add_u32 s{sA}, s{sA}, s{sB}
    v_add_u32 v{vOa}, s{sA}, v{vOa}
    ''')
    def dma(bi):
        slot = bi % 8; tg = None
        if bi < 24:
            base = {'q': sWq, 'k': sWk, 'v': sWv}[mord[bi//8]]
            a(f's_add_u32 s{sTmp}, s{base}, {slot<<19}\ns_addc_u32 s{sTmp+1}, s{base+1}, 0\ns_add_u32 m0, s{sLb}, {slot*4096}')
            for J in range(4): tg = a(f'global_load_lds_dwordx4 v{vWa+J}, {sp(sTmp)} offset:{J*1024}{wnt}')
            return tg
        i = slot
        a(f's_xor_b32 s{sA}, s{sW}, {i//2}\ns_lshl_b32 s{sA}, s{sA}, 15')
        for J in range(4):
            off = (i%2)*128 + (8*(J>>1) + 2*(J&1))*1024
            a(f's_add_u32 s{sB}, s{sA}, {off}\ns_add_u32 s{sTmp}, s{sWo}, s{sB}\ns_addc_u32 s{sTmp+1}, s{sWo+1}, 0')
            a(f's_add_u32 m0, s{sLb}, {slot*4096+J*1024}')
            tg = a(f'global_load_lds_dwordx4 v{vOa}, {sp(sTmp)}{ont}')
        return tg
    dtag = {}
    def fkeval(v):
        a(f"""
        v_cmp_eq_u32 vcc, 0x01010101, v{v}
        s_or_b32 s{sTmp}, vcc_lo, 0xaaaaaaaa
        s_or_b32 s{sTmp+1}, vcc_hi, 0xaaaaaaaa
        s_ff0_i32_b64 s{sRdy}, {sp(sTmp)}
        s_min_u32 s{sRdy}, s{sRdy}, 100
        """)
    def first():
        a(f'''
        s_lshl_b32 s{sA}, s{sXcc}, 1
        s_add_u32 s{sA}, s{sA}, 1
        s_mul_i32 s{sXcc}, s{sA}, 0x01010101
        v_mov_b32 v{S}, s{sH}
        v_mov_b32 v{S+1}, s{sA}
        s_cmp_eq_u32 s{sW}, 0
        s_cselect_b32 s{sFm}, 1, 0
        s_mov_b32 s{sFm+1}, 0
        s_mov_b64 exec, {sp(sFm)}
        global_store_byte v{S}, v{S+1}, {sp(sDbg)} sc1
        s_mov_b64 exec, -1
        v_lshlrev_b32 v{S+2}, 4, v{n_}
        v_lshl_add_u32 v{S+2}, v{g_}, 10, v{S+2}
        s_lshl_b32 s{sA}, s{sW}, 8
        v_add_u32 v{S+2}, s{sA}, v{S+2}
        v_add_u32 v{S+3}, 3072, v{S+2}
        s_lshl_b32 s{sA}, s{sW}, 11
        s_add_u32 m0, s{sA}, {L_MQ}
        global_load_lds_dwordx4 v{S+2}, {sp(sMem)}
        global_load_lds_dwordx4 v{S+3}, {sp(sMem)} offset:1024
        ''')
    for bi in range(8):
        if bi == fst: first()
        dtag[bi] = dma(bi)
    if 'a' in tls: tl(a, 5 + tls.index('a'), T+12, 0)
    if 'b' in tls: tl(a, 5 + tls.index('b'), T+12, 0)
    a(f'''
    v_lshrrev_b32 v{t2}, 2, v{n_}
    v_and_b32 v{t3}, 3, v{lane}
    s_lshl_b32 s{sA}, s{sW}, 6
    v_lshl_add_u32 v{vTr}, v{t3}, 3, s{sA}
    v_lshlrev_b32 v{vTr+1}, 5, v{t2}
    v_lshl_add_u32 v{vTr+1}, v{t1}, 7, v{vTr+1}
    v_xor_b32 v{vTr}, v{vTr}, v{vTr+1}
    v_lshl_add_u32 v{vTr}, v{t2}, 8, v{vTr}
    v_lshl_add_u32 v{vTr}, v{g_}, 10, v{vTr}
    v_xor_b32 v{vTr+1}, 32, v{vTr}
    v_add_u32 v{vTr+2}, 0x10000, v{vTr}
    v_add_u32 v{vTr+3}, 0x10000, v{vTr+1}
    ; wo tr-read: gb*256 + bit2*128 + gb0*64 + bit3*32 + c4*8 (u flips bit 6)
    v_lshlrev_b32 v{vTo}, 8, v{g_}
    v_lshl_add_u32 v{vTo}, v{t1}, 6, v{vTo}
    {f'v_and_b32 v{vTo+1}, 2, v{lane}{NL}v_lshl_add_u32 v{vTo}, v{vTo+1}, 2, v{vTo}{NL}v_and_b32 v{vTo+1}, 1, v{lane}{NL}v_lshlrev_b32 v{vTo+1}, 6, v{vTo+1}{NL}v_xor_b32 v{vTo}, v{vTo}, v{vTo+1}' if w4 and not dw else f'v_lshl_add_u32 v{vTo}, v{t3}, 3, v{vTo}'}
    v_and_b32 v{vTo+1}, 4, v{lane}
    v_lshl_add_u32 v{vTo}, v{vTo+1}, 5, v{vTo}
    v_and_b32 v{vTo+1}, 8, v{lane}
    v_lshl_add_u32 v{vTo}, v{vTo+1}, 2, v{vTo}
    v_add_u32 v{vTo}, s{sLb}, v{vTo}
    v_xor_b32 v{vTo+1}, {16 if w4 and not dw else 64}, v{vTo}
    v_xor_b32 v{vXw}, v{g_}, v{t2}
    v_lshlrev_b32 v{vXw}, 3, v{vXw}
    v_lshl_add_u32 v{vXw}, v{n_}, 5, v{vXw}
    s_lshl_b32 s{sA}, s{sW}, 10
    s_add_u32 s{sA}, s{sA}, {L_X}
    v_add_u32 v{vXw}, s{sA}, v{vXw}
    v_xor_b32 v{vXr}, v{t3}, v{g_}
    v_lshlrev_b32 v{vXr}, 3, v{vXr}
    v_lshl_add_u32 v{vXr}, v{t2}, 5, v{vXr}
    v_lshl_add_u32 v{vXr}, v{g_}, 7, v{vXr}
    v_add_u32 v{vXr}, {L_X}, v{vXr}
    v_lshl_add_u32 v{vPst}, v{t2}, 2, v{g_}
    v_lshlrev_b32 v{vPst}, 11, v{vPst}
    v_lshl_add_u32 v{vPst}, v{t3}, 4, v{vPst}
    s_lshl_b32 s{sA}, s{sW}, 16
    s_lshl_b32 s{sB}, s{sH}, 6
    s_add_u32 s{sA}, s{sA}, s{sB}
    v_add_u32 v{vPst}, s{sA}, v{vPst}
    ''')
    if w4: a(f'''
    ; reducer CU = 8w + 4(n/8) + g, wave G ; off = cu*8192 + G*2048 + h*64 + (n%8)*8 (+4096 imm bias)
    v_lshrrev_b32 v{vPst}, {4 if dw else 3}, v{n_}
    v_lshl_add_u32 v{vPst}, v{vPst}, 2, v{g_}
    v_mul_u32_u24 v{vMst}, {psw}, v{vPst}
    v_add_u32 v{vMst}, s{sB}, v{vMst}
    v_and_b32 v{vMst}, 0x7ff, v{vMst}
    v_lshl_add_u32 v{vPst}, v{vPst}, 13, v{vMst}
    v_and_b32 v{vMst}, {15 if dw else 7}, v{lane}
    v_lshl_add_u32 v{vPst}, v{vMst}, {2 if dw else 3}, v{vPst}
    s_lshl_b32 s{sA}, s{sW}, 16
    s_add_u32 s{sA}, s{sA}, 4096
    v_add_u32 v{vPst}, s{sA}, v{vPst}
    ''')
    a(f'''
    ; publish: (c/2)*32 + p*16 + (c%2)*8 + (i/2)*4
    v_mov_b32 v{vMst}, 0
    {chr(10).join(f'v_bfe_u32 v{t2}, v{lane}, {b_}, 1{chr(10)}v_lshl_add_u32 v{vMst}, v{t2}, {o_}, v{vMst}' for b_, o_ in {0: ((5,5),(2,4),(4,3),(1,2)), 1: ((5,5),(0,4),(4,3)), 2: ((2,5),(4,4),(1,3),(0,2)), 4: ((1,5),(4,4),(0,3),(5,2)), 5: ((0,5),(4,4),(5,3),(1,2)), 6: ((5,5),(4,4),(1,3),(0,2))}[6 if dw else 5 if w4 else ra])}
    ; O write: L_O + w*512 + (g*8+t)*16 + half*8 ; t = 2*(n/4)+n%2
    v_lshlrev_b32 v{vOw}, 7, v{g_}
    v_and_b32 v{t2}, 12, v{lane}
    v_lshl_add_u32 v{vOw}, v{t2}, 3, v{vOw}
    v_and_b32 v{t2}, 1, v{lane}
    v_lshl_add_u32 v{vOw}, v{t2}, 4, v{vOw}
    v_and_b32 v{t2}, 2, v{lane}
    v_lshl_add_u32 v{vOw}, v{t2}, 2, v{vOw}
    s_lshl_b32 s{sA}, s{sW}, 9
    s_add_u32 s{sA}, s{sA}, {L_O}
    v_add_u32 v{vOw}, s{sA}, v{vOw}
    s_mov_b32 s{sB1}, 0xcccccccc
    s_mov_b32 s{sB1+1}, 0xcccccccc
    s_mov_b32 s{sPm}, {0xaaaaaaaa if ra == 1 else 0xf0f0f0f0}
    s_mov_b32 s{sPm+1}, {0xaaaaaaaa if ra == 1 else 0xf0f0f0f0}
    s_mov_b32 s{sPub}, {(0x00550055, 0x00030003, 0x00ff00ff, 0, 0x000f000f)[ra]}
    s_mov_b32 s{sPub+1}, {(0x00550055, 0x00030003, 0, 0, 0x000f000f)[ra]}
    s_mov_b32 s{sQc}, {QSCALE}
    v_mov_b32 v{t2}, 0x4444
    v_mov_b32 v{t3}, 0xeeee
    v_cndmask_b32 v{vIdx}, v{t2}, v{t3}, {sp(sB1)}
    v_cndmask_b32 v{vM0}, -1, 0, {sp(sB1)}
    v_cndmask_b32 v{vM1}, 0, -1, {sp(sB1)}
    ''')
    for i in range(4):
        m_ = {0: 0x00110011 << i, 1: 0x11111111, 2: 0x55555555 << (i%2), 4: 0x00550055 << (i%2 + 8*(i//2))}[ra]
        a(f's_mov_b32 s{sSel+2*i}, {m_}\ns_mov_b32 s{sSel+2*i+1}, {m_}')
    a(f'''
    s_lshl_b32 s{sA}, s{sH}, 2
    s_add_u32 s{sA}, s{sA}, s{sW}
    s_add_u32 s{sRA}, s{sWs}, {WS_RA}
    s_addc_u32 s{sRA+1}, s{sWs+1}, 0
    s_mov_b32 s{sC}, s{sA}
    ''')
    if hp: a(f'''
    s_lshr_b32 s{sB}, s{sA}, 1
    s_and_b32 s{sB}, s{sB}, 15
    s_and_b32 s{sC}, s{sA}, 0x60
    s_or_b32 s{sC}, s{sC}, s{sB}
    s_and_b32 s{sB}, s{sA}, 1
    s_lshl_b32 s{sB}, s{sB}, 4
    s_or_b32 s{sC}, s{sC}, s{sB}
    ''')
    a(f'''
    s_lshl_b32 s{sB}, s{sC}, 11
    s_add_u32 s{sRAo}, s{sRA}, s{sB}
    s_addc_u32 s{sRAo+1}, s{sRA+1}, 0
    ''')
    if w4: a(f'''
    s_and_b32 s{sC}, s{sH}, 24
    s_lshl_b32 s{sC}, s{sC}, 2
    s_and_b32 s{sB}, s{sH}, 7
    s_add_u32 s{sC}, s{sC}, s{sB}
    s_lshl_b32 s{sB}, s{sW}, 3
    s_add_u32 s{sC}, s{sC}, s{sB}
    ''')
    a(f'''
    s_lshl_b32 s{sB}, s{sC}, 6
    s_add_u32 s{sB}, s{sB}, {WS_RM}
    s_add_u32 s{sRMs}, s{sWs}, s{sB}
    s_addc_u32 s{sRMs+1}, s{sWs+1}, 0
    s_lshl_b32 s{sB}, s{sW}, 11
    s_add_u32 s{sB}, s{sB}, {WS_RM}
    s_add_u32 s{sRMl}, s{sWs}, s{sB}
    s_addc_u32 s{sRMl+1}, s{sWs+1}, 0
    s_lshl_b32 s{sB}, s{sA}, 11
    s_add_u32 s{sKV}, s{sWs}, s{sB}
    s_addc_u32 s{sKV+1}, s{sWs+1}, 0
    s_lshl_b32 s{sB}, s{sA}, 10
    s_add_u32 s{sB}, s{sB}, {WS_KVM-(32 if kvnow else 64)*4096}
    s_add_u32 s{sKVM}, s{sWs}, s{sB}
    s_addc_u32 s{sKVM+1}, s{sWs+1}, 0
    s_lshl_b32 s{sB}, s{sH}, 7
    s_add_u32 s{sB}, s{sB}, {WS_FL+FL_P}
    s_add_u32 s{sFl}, s{sWs}, s{sB}
    s_addc_u32 s{sFl+1}, s{sWs+1}, 0
    s_lshl_b32 s{sB}, s{sH}, 8
    s_add_u32 s{sB}, s{sB}, {WS_FL+FL_K}
    s_add_u32 s{sFK}, s{sWs}, s{sB}
    s_addc_u32 s{sFK+1}, s{sWs+1}, 0
    ; touch/flag lanes: 0-31 V half of the own K/V record (advances per step), 32-63 ready flags of this head
    s_sub_u32 s{sB}, s{sB}, {2048+256}
    v_lshl_add_u32 v{vTc}, v{lane}, 3, s{sB}
    s_lshl_b32 s{sB}, s{sA}, 11
    s_add_u32 s{sB}, s{sB}, {WS_V-2048}
    v_lshl_add_u32 v{t2}, v{lane}, 6, s{sB}
    v_cmp_gt_u32 vcc, 32, v{lane}
    v_cndmask_b32 v{vTc}, v{vTc}, v{t2}, vcc
    s_mov_b32 s{sRdy}, {0 if mega else 100}
    v_lshlrev_b32 v{vL4}, 2, v{lane}
    v_mov_b64 {vr(HK,2)}, 0
    v_mov_b64 {vr(HV,2)}, 0
    ; M(0) gather: lane(row: b0=t%2,b1=half,b3:2=t/2 ; ga): byte = t*256 + (64s + 16(ea%4) + 4ga + 2half + ea/4)*2
    v_lshrrev_b32 v{t2}, 2, v{n_}
    v_lshlrev_b32 v{t2}, 9, v{t2}
    v_and_b32 v{t3}, 1, v{lane}
    v_lshl_add_u32 v{t2}, v{t3}, 8, v{t2}
    v_lshl_add_u32 v{t2}, v{g_}, {5 if dw else 3}, v{t2}
    v_and_b32 v{t3}, 2, v{lane}
    v_lshl_add_u32 v{t2}, v{t3}, 1, v{t2}
    s_lshl_b32 s{sA}, s{sW}, 11
    s_add_u32 s{sA}, s{sA}, {L_MQ}
    v_add_u32 v{t2}, s{sA}, v{t2}
    ''')
    if 'c' in tls: tl(a, 5 + tls.index('c'), T+12, 0)
    def warmup():
        a(f"""
        v_lshlrev_b32 v{t1}, 7, v{n_}
        v_and_b32 v{t3}, 1, v{g_}
        v_lshl_add_u32 v{t2}, v{t3}, 18, v{t1}
        global_load_dword v{vFd}, v{t2}, {sp(sRAo)} sc1
        v_lshl_add_u32 v{t1}, v{t3}, 13, v{t1}
        global_load_dword v{vFd}, v{t1}, {sp(sRMl)} sc1
        """)
    def park(pj): return dest(('o', pj+1)) if pj < NQ-1 else ('v', S+16)
    for w in range(1,4): a(f's_cmp_eq_u32 s{sW}, {w}\ns_cbranch_scc1 {L(f"pw{w}")}')
    nvm0, nds0 = a.nvm, a.nds
    for w in range(4):
        a.label(L(f'pw{w}'))
        a.nvm, a.nds = nvm0, nds0
        for bi in range(24):
            m, i = mord[bi//8], (bi%8) ^ (2*w); slot = bi % 8
            a.wvm(dtag[bi]); a('s_barrier')
            if bi in tls: tl(a, 5 + tls.index(bi), t1, 0)
            if bi: dtag[bi+7] = dma(bi+7)
            k, b = park(LDS_BLK.index((m,i))) if (m,i) in LDS_BLK else dest((m,i))
            for u in range(2):
                for J in range(4):
                    a(f'ds_read_b64_tr_b16 {vr(b+8*u+2*J,2,k)}, v{vTr+u+2*(J//2)} offset:{slot*4096+(J%2)*32768}')
            if bi == fst:
                for s_ in range(2):
                    for ea in range(8): a(f'ds_read_u16 v{S+8*s_+ea}, v{t2} offset:{(64*s_ + (4*(ea//2) + ea%2 if dw else 16*(ea%4) + ea//4))*2}')
            if bi == fst + 1:
                for r in range(8): a(f'v_lshl_or_b32 v{M+r}, v{S+2*r+1}, 16, v{S+2*r}')
            if bi == arr and 'p3' not in opt: a(f'global_load_dword v{vFd}, v{vL4}, {sp(sDbg)} sc1')
            if bi == arr + 8 and 'p3' not in opt:
                msk = ((1 << 24) - 1) | (1 << 40) if mega else 0xff
                a(f"""
                s_mov_b32 s{sSpin}, 0
                {L(f'tb{w}')}:
                v_and_b32 v{t1}, 0x01010101, v{vFd}
                v_cmp_ne_u32 vcc, 0x01010101, v{t1}
                s_and_b32 s{sA}, vcc_lo, {msk & 0xffffffff}
                s_and_b32 s{sB}, vcc_hi, {msk >> 32}
                s_or_b32 s{sA}, s{sA}, s{sB}
                s_cbranch_scc0 {L(f'tbo{w}')}
                s_sleep 4
                global_load_dword v{vFd}, v{vL4}, {sp(sDbg)} sc1
                s_add_u32 s{sSpin}, s{sSpin}, 1
                s_cmp_gt_u32 s{sSpin}, {SPIN}
                s_cbranch_scc1 {L('end')}
                s_waitcnt vmcnt(0)
                s_branch {L(f'tb{w}')}
                {L(f'tbo{w}')}:
                v_cmp_ne_u32 vcc, s{sXcc}, v{vFd}
                s_and_b32 s{sXcc}, vcc_lo, 0xff
                """)
                a.nvm -= 1
            if bi == warm: warmup()
            if mega and bi == fkb: ftag = a(f'global_load_dword v{vFk}, v{vL4}, {sp(sFK)} sc1')
            a('s_waitcnt lgkmcnt(0)')
        if w < 3: a(f's_branch {L("pwe")}')
    a.label(L('pwe'))
    tl(a, 1, t1, 0)
    def k0():
        a(f"""
        s_mov_b32 m0, s{sM0kv}
        s_nop 0
        global_load_lds_dwordx4 v{vLin}, {sp(sKV)} sc1
        global_load_lds_dwordx4 v{vLin}, {sp(sKV)} offset:1024 sc1
        global_load_lds_dword v{vTc}, {sp(sWs)} offset:2048 sc1
        """)
    for bi in range(24, 32):
        slot = bi % 8
        a.wvm(dtag[bi])
        if bi == 24: a('s_barrier'); dtag[31] = dma(31)
        if bi == warm: warmup()
        if mega and bi == fkb: ftag = a(f'global_load_dword v{vFk}, v{vL4}, {sp(sFK)} sc1')
        if bi == fke:
            if mega:
                a.wvm(ftag)
                fkeval(vFk)
                a(f's_cmp_lg_u32 s{sRdy}, 0\ns_cbranch_scc1 {L("k1")}')
                for _ in range(3): a(f'global_load_dword v{vFk}, v{vL4}, {sp(sFK)} sc1')
                a(f's_branch {L("k2")}')
                a.nvm -= 3
                a.label(L('k1'))
            k0()
            a.label(L('k2'))
        tmp = S + 16*(slot%2)
        k, b = dest(('o', slot)) if slot < NQ else ('v', tmp)
        for u in range(2):
            for J in range(4):
                a(f'ds_read_b64_tr_b16 {vr(b+8*u+2*J,2,k)}, v{vTo+u} offset:{slot*4096+J*1024}')
        if slot >= NQ or not opipe: a('s_waitcnt lgkmcnt(0)')
        k, b = park(slot) if slot < NQ else ('v', tmp)
        for u in range(2):
            for hf in range(2):
                a(f'ds_write_b128 v{vLw}, {vr(b+8*u+4*hf,4,k)} offset:{slot*4096+u*2048+hf*1024}')
        if not opipe: a('s_waitcnt lgkmcnt(0)')
    tl(a, 2, t1, 0)
    if 'ponly' in opt: a(f's_branch {LE}')
    if mega:
        a(f"""
        s_cmp_lg_u32 s{sRdy}, 0
        s_cbranch_scc1 {L("kwe")}
        s_mov_b32 s{sSpin}, 0
        {L('kw')}:
        s_waitcnt vmcnt(0)
        """)
        fkeval(vFk)
        a(f"""
        s_cmp_lg_u32 s{sRdy}, 0
        s_cbranch_scc1 {L("kwd")}
        s_sleep 2
        global_load_dword v{vFk}, v{vL4}, {sp(sFK)} sc1
        s_add_u32 s{sSpin}, s{sSpin}, 1
        s_cmp_gt_u32 s{sSpin}, {SPIN}
        s_cbranch_scc1 {L('end')}
        s_branch {L("kw")}
        """)
        a.label(L('kwd'))
        k0()
        a.label(L('kwe'))
    sKN = sWo
    a(f"""
    s_mov_b64 {sp(sKN)}, {sp(sKV)}
    s_mov_b32 s{sT}, 0
    s_mov_b32 s{sSpin}, 0
    """)
    tl(a, 3, t1, 0)
    if prof:
        for i in range(8): a(f's_mov_b32 s{sP+20+i}, 0')
        a(f's_memtime {sp(sP+28)}')
    def tstamp(idx, T=T):
        if 'ts' not in opt and 'tc' not in opt and 'tb' not in opt: return
        a(f"""
        {'s_memrealtime' if 'ts' in opt else 's_memtime'} s[96:97]
        {'s_memrealtime s[94:95]' if 'tb' in opt else ''}
        s_lshl_b32 s{sA}, s{sH}, 2
        s_add_u32 s{sA}, s{sA}, s{sW}
        s_lshl_b32 s{sA}, s{sA}, 6
        s_add_u32 s{sA}, s{sA}, {idx}
        s_lshl_b32 s{sA}, s{sA}, 2
        s_add_u32 s{sA}, s{sA}, {WS_PROF+131072}
        v_mov_b32 v{T}, s{sA}
        s_waitcnt lgkmcnt(0)
        {f's_bitcmp1_b32 s{sW}, 0{NL}s_cselect_b32 s96, s94, s96' if 'tb' in opt else ''}
        v_mov_b32 v{T+1}, s96
        s_mov_b64 exec, 1
        global_store_dword v{T}, v{T+1}, {sp(sWs)}
        """)
        if 'tk' in opt:
            for j_ in range(len(stamps)-1): a(f's_sub_u32 s96, s{sP+2*j_+2}, s{sP+2*j_}\nv_add_u32 v{T}, 32768, v{T}\nv_mov_b32 v{T+2+j_}, s96\nglobal_store_dword v{T}, v{T+2+j_}, {sp(sWs)}')
        a('s_mov_b64 exec, -1')
    tstamp(63)
    DPPM = 'row_mask:0xf bank_mask:0xf'
    QA = T+8; VA = QV; P2 = VX; S0 = S; S1 = S+16; K0 = M+16
    NEG = M+4; Sel = T+4; Dr = T+8
    if yd: K0 = KX; P2 = M+16; NEG = T+5
    sB0, sOne, sHalf = 4, 8, 10
    a(f'''
    s_not_b64 {sp(sB0)}, {sp(sB1)}
    s_mov_b32 s{sOne}, 0x3f803f80
    s_mov_b32 s{sOne+1}, 0x3f803f80
    s_mov_b32 s{sHalf}, 0x3f003f00
    s_mov_b32 s{sHalf+1}, 0x3f003f00
    ''')
    def pre1(L=None):
        n0 = len(a.items)
        if TL and L:
            a(f's_cmp_lg_u32 s{sT}, 24\ns_cbranch_scc1 {L("tls")}\ns_memtime s[92:93]\ns_memrealtime s[76:77]\ns_mov_b32 s{sSpin}, 0')
            a.label(L('tls')); n0 += 4
        if ps:
            a(f'v_lshrrev_b32 v{T+5}, 2, v{vLin}\nv_add_u32 v{T+3}, m0, v{vLin}')
            if L and mega: a(f'v_add_u32 v{T+6}, m0, v{T+5}\nds_read_b32 v{T+6}, v{T+6} offset:2048')
            a(f'''
            ds_read_b128 {vr(KX,4)}, v{T+3}
            ds_read_b128 {vr(KX+4,4)}, v{T+3} offset:1024
            v_add_u32 v{T+3}, s{sLb}, v{T+5}
            v_mov_b32 v{T+7}, 0
            v_add_u32 v{T+5}, {L_S}, v{T+5}
            ds_write_b32 v{T+3}, v{T+7}
            ''')
        elif L and mega: a(f'v_lshrrev_b32 v{T+5}, 2, v{vLin}\nv_add_u32 v{T+6}, m0, v{T+5}\nds_read_b32 v{T+6}, v{T+6} offset:2048')
        a(f"""
        s_and_b32 s{sA}, s{sT}, 1
        s_lshl_b32 s{sC}, s{sA}, 13
        s_add_u32 s{sMld}, s{sRMl}, s{sC}
        s_addc_u32 s{sMld+1}, s{sRMl+1}, 0
        s_xor_b32 s{sB}, s{sA}, 1
        """)
        if yd: a(f's_mov_b32 m0, s{sLb}')
        if yd == 1: a(f's_mov_b32 s{sGot}, 0')
        for x_ in stg(('k',0), K0): a(x_)
        for i in range(0,16,2): a(f'v_mov_b64 {vr(VA+i,2)}, 0')
        for i in range(0,8,2): a(f'v_mov_b64 {vr(QA+i,2)}, 0')
        return len(a.items) - n0
    def pre2(L=None):
        n0 = len(a.items)
        a(f's_mov_b32 exec_hi, 0\nv_add_u32 v{vTc}, {KST}, v{vTc}\ns_mov_b32 exec_hi, -1')
        a(f"""
        s_lshl_b32 s{sC}, s{sB}, 13
        s_add_u32 s{sMst}, s{sRMs}, s{sC}
        s_addc_u32 s{sMst+1}, s{sRMs+1}, 0
        s_lshl_b32 s{sC}, s{sB}, 18
        s_add_u32 s{sArs}, s{sRAo}, s{sC}
        s_addc_u32 s{sArs+1}, s{sRAo+1}, 0
        s_lshl_b32 s{sC}, s{sA}, 18
        s_add_u32 s{sSt0}, s{sRA}, s{sC}
        s_addc_u32 s{sSt0+1}, s{sRA+1}, 0
        s_add_u32 s{sSt1}, s{sSt0}, 32768
        s_addc_u32 s{sSt1+1}, s{sSt0+1}, 0
        s_add_u32 s{sAld}, s{sRAo}, s{sC}
        s_addc_u32 s{sAld+1}, s{sRAo+1}, 0
        s_add_u32 s{sKV}, s{sKN}, {WS_V}
        s_addc_u32 s{sKV+1}, s{sKN+1}, 0
        s_add_u32 s{sKN}, s{sKN}, {KST}
        s_addc_u32 s{sKN+1}, s{sKN+1}, 0
        s_add_u32 s{sKVM}, s{sKVM}, {32*4096}
        s_addc_u32 s{sKVM+1}, s{sKVM+1}, 0
        """)
        if not ps: a(f"""
        s_mul_i32 s{sC}, s{sB}, {4*KVS}
        s_add_u32 {f's{sVer}' if yd == 2 else 'm0'}, s{sC}, s{sM0kv}
        s_mul_i32 s{sC}, s{sA}, {4*KVS}
        s_add_u32 s{sC}, s{sC}, {L_KV}
        v_add_u32 v{vKr}, s{sC}, v{vLin}
        """)
        a(f"""
        s_lshl_b32 s{sC}, s{sW}, 11
        s_add_u32 s{sC}, s{sC}, {L_MQ}
        v_add_u32 v{T+3}, s{sC}, v{vLin}
        s_add_u32 s{sC}, s{sT}, {int(kvnow)}
        v_mov_b32 v{T+4}, s{sC}
        """)
        for i in range(1,4): a(f'v_xor_b32 v{T+i-1}, {i*2048}, v{T+3}')
        if L and mega:
            a(f'''
            s_waitcnt lgkmcnt(0)
            v_cmp_eq_u32 vcc, 0x01010101, v{T+6}
            s_add_u32 s{sA}, s{sT}, 1
            s_ff0_i32_b32 s{sRdy}, vcc_hi
            s_lshl_b32 s{sRdy}, s{sRdy}, 1
            s_cmp_lt_u32 s{sA}, s{sRdy}
            s_cbranch_scc0 {L('rp')}
            ''')
        return len(a.items) - n0
    def ldM(r):
        if yd: a(f'global_load_lds_dwordx4 v{vLin}, {sp(sMld)} sc1\nglobal_load_lds_dwordx4 v{vLin}, {sp(sMld)} offset:1024 sc1')
        else: a(f'global_load_dwordx4 {vr(r,4)}, v{vLin}, {sp(sMld)} sc1\nglobal_load_dwordx4 {vr(r+4,4)}, v{vLin}, {sp(sMld)} offset:1024 sc1')
    def ldA(r):
        if ra == 1:
            for i in range(8): a(f'global_load_dword v{r+i}, v{T+1}, {sp(sAld)} offset:{256*i} sc1')
            return
        if ra == 2:
            for i in range(4): a(f'global_load_dwordx2 {vr(r+2*i,2)}, v{T+1}, {sp(sAld)} offset:{512*i} sc1')
            return
        a(f'global_load_dwordx4 {vr(r,4)}, v{vLin}, {sp(sAld)} sc1\nglobal_load_dwordx4 {vr(r+4,4)}, v{vLin}, {sp(sAld)} offset:1024 sc1')
    def spin(): a(f's_add_u32 s{sSpin}, s{sSpin}, 1\ns_cmp_gt_u32 s{sSpin}, {SPIN}\ns_cbranch_scc1 {LE}')
    acc = {'q': QA, 'k': KA, 'v': VA}
    def P_(m, sg, u): SM(acc[m]+4*u, M+4*sg, m, sg, u)
    for x_ in stg(('q',0), S0) + stg(('q',1), S1): a(x_)
    for r in range(8): a(f'v_min_u32 v{M+r}, -2, v{M+r}')
    if yd: a(f's_lshl_b32 s{sLb}, s{sW}, 11\ns_add_u32 s{sLb}, s{sLb}, {L_MQ}')
    if ps: a(f'''
    s_lshl_b32 s{sLb}, s{sW}, 10
    v_add_u32 v{vKr}, s{sLb}, v{vXr}
    s_add_u32 s{sLb}, s{sLb}, {L_X+4096}
    v_add_u32 v{T}, s{sLb}, v{vLin}
    v_mov_b64 {vr(T+4,2)}, 0
    v_mov_b64 {vr(T+6,2)}, 0
    ds_write_b128 v{T}, {vr(T+4,4)}
    s_lshl_b32 s{sLb}, s{sW}, 8
    s_add_u32 s{sLb}, s{sLb}, {L_S}
    s_waitcnt vmcnt(0)
    ''')
    pre1(); pre2()
    if yd: a(f'ds_write_b128 v{T+3}, {vr(M,4)}\nds_write_b128 v{T+3}, {vr(M+4,4)} offset:1024')
    a('s_waitcnt vmcnt(0) lgkmcnt(0)')
    if mega: a(f's_cmp_lg_u32 s{sXcc}, 0\ns_cbranch_scc1 {L("s_try")}')
    a(f's_branch {L("try")}')
    staged0 = dict(staged)
    def loop(L, stc, mk=mk, rdw=rdw):
        staged.clear(); staged.update(staged0)
        dm = [f'global_load_lds_dwordx4 v{vLin}, {sp(sKN)} offset:{j*1024} sc1' for j in range(2)] + \
             [f'global_load_dwordx4 {vr(KX+4*j,4)}, v{vLin}, {sp(sKV)} offset:{(j-2)*1024} sc1' for j in (2,3)]
        kvb = int('kv@B0' in vp.split()); kvst = f'global_store_dwordx4 v{vLin}, {vr(HK,4)}, {sp(sKVM)} sc1'
        a.label(L('retry'))
        spin()
        if prof: a(f's_add_u32 s{sP+26}, s{sP+26}, 59')
        if TL: a(f's_add_u32 s{sSpin}, s{sSpin}, 255')
        if yd == 2:
            a('s_nop 2')
            for i in range(0,4,2): a(f'v_mov_b64 {vr(QA+i,2)}, 0')
            for i in range(0,8,2): a(f'v_mov_b64 {vr(KA+i,2)}, 0')
            a(f's_waitcnt vmcnt({kvb})')
            ldM(None)
            if kvb: a(kvst)
        elif yd:
            a(f's_waitcnt lgkmcnt(0)\ns_cmp_eq_u32 s{sGot}, 0\ns_cbranch_scc1 {L("r1")}\ns_barrier')
            ldM(None)
            a.label(L('r1'))
            a(f's_mov_b32 s{sGot}, 1\ns_sub_u32 s{sC}, m0, s{sM0kv}\ns_add_u32 s{sC}, s{sC}, {L_KV}')
            for i in range(4): a(f's_xor_b32 s{sA}, s{sW}, {i}\ns_mul_i32 s{sA}, s{sA}, {KVS}\ns_add_u32 s{sA}, s{sA}, s{sC}\nv_add_u32 v{T+(i-1)%4}, s{sA}, v{vLin}')
            for i in range(0,8,2): a(f'v_mov_b64 {vr(KA+i,2)}, 0')
            for i in range(0,8,2): a(f'v_mov_b64 {vr(QA+i,2)}, 0')
            a('s_waitcnt vmcnt(0)')
        else:
            a(f's_waitcnt vmcnt({kvb})')
            for i in range(0,8,2): a(f'v_mov_b64 {vr(M+i,2)}, {vr(P2+i,2)}')
            ldM(P2)
            if kvb: a(kvst)
            for i in range(0,8,2): a(f'v_mov_b64 {vr(QA+i,2)}, 0')
        a(f's_branch {L("try")}')
        a.label(L('step'))
        n = pre1(L)
        if wB:
            cur = n + 3
            for w_ in (3,2,1,0):
                a.nops(wB[w_] - cur - (2 if w_ else 0)); cur = max(cur + (2 if w_ else 0), wB[w_])
                if w_: a(f's_cmp_eq_u32 s{sW}, {w_}\ns_cbranch_scc1 {L("p1")}')
            a.label(L('p1'))
        else: a.nops(preB - n - 3)
        ldM(M)
        n = pre2(L); a.nops(gapB - n - 2)
        a.label(L('rk'))
        ldM(P2)
        if kvb: a(kvst)
        a(f's_waitcnt vmcnt({2+kvb}) lgkmcnt(0)')
        a.label(L('try'))
        a.nds = 0; a.nvm = 2 + kvb; set2 = 2
        stamp('a0')
        ck = M+8
        if not yd:
            mw = [f'ds_write_b128 v{T+3}, {vr(M,4)}', f'ds_write_b128 v{T+3}, {vr(M+4,4)} offset:1024']
            if wsh == 3: mw = [f'ds_write_b64 v{T+3}, {vr(M+2*i,2)} offset:{(i//2)*1024+(i%2)*8}' for i in range(4)]
            for _ in range({0:2, 1:0, 2:1, 3:0, 4:0}[wsh]): a(mw.pop(0))
            P_('q',0,0)
            for _ in range({0:0, 1:1, 2:1, 3:2, 4:2}[wsh]): a(mw.pop(0))
            stamp('w0')
            a(f'v_max_u32 v{ck}, v{M}, v{M+4}' if fc else f'v_max3_u32 v{ck}, v{M}, v{M+2}, v{M+4}')
            if fc == 2: a(f'v_cmp_eq_u32 vcc, -1, v{ck}')
            P_('q',0,1)
            for x_ in mw: a(x_)
            stamp('w1')
            if fc == 2: a(f's_cbranch_vccnz {L("retry")}')
            elif fc:
                a(f'v_cmp_eq_u32 vcc, -1, v{ck}')
                P_('q',1,0); a(f's_cbranch_vccnz {L("retry")}')
            else:
                a(f'v_max_u32 v{ck}, v{ck}, v{M+6}')
                if mk == 8: a(f'v_max3_u32 v{ck}, v{ck}, v{M+1}, v{M+3}\nv_max3_u32 v{ck}, v{ck}, v{M+5}, v{M+7}')
                P_('q',1,0); a(f'v_cmp_eq_u32 vcc, -1, v{ck}')
                P_('q',1,1); a(f's_cbranch_vccnz {L("retry")}')
        rlate = any(x_[0] == 'r' and x_[1] != 'm' and x_[3] in 'CW' for x_ in vp.split())
        NG2 = T if rlate else NEG
        rs = [f'global_store_dwordx4 v{vLin}, {vr(NG2,4)}, {sp(sArs)} offset:{1024*i}{stc}' for i in range(2)]
        if rdw: rs = [f'global_store_dword v{vLin}, v{NG2}, {sp(sArs)} offset:{1024*i}{stc}' for i in range(2)]
        vops = dict(d0=dm[0], d1=dm[1], d2=dm[2], d3=dm[3], r0=rs[0], r1=rs[1],
                    kv=f'global_store_dwordx4 v{vLin}, {vr(HK,4)}, {sp(sKVM)} sc1',
                    fl=f's_mov_b64 exec, {sp(sFm)}\nglobal_store_dword v{vLin}, v{T+4}, {sp(sFl)} sc1\ns_mov_b64 exec, -1',
                    tc=f'global_load_lds_dword v{vTc}, {sp(sWs)} offset:2048{tsc}',
                    rm=f'global_store_dword v{vMst}, v{NEG}, {sp(sMst)}{stc}')
        vt = {}; AK['vt'] = vt
        def VM(slot):
            for x_ in vp.split():
                o, s_ = x_.split('@')
                if s_ != slot: continue
                k_ = slot[0]; n_ = int(slot[1:])
                if yd == 2: assert k_ != 'Q' or n_ > 2 + (o[0] == 'r')
                if yd == 1 and o != 'kv': assert k_ != 'Q' or n_ > ckp[3] + 1 + (o[0] == 'r') * 2
                if o[0] == 'r': assert k_ == 'Q' and (1 if o == 'rm' or rdw else 4) <= n_ or k_ == 'V' or k_ in 'CW' and o != 'rm'
                if o == 'fl': assert k_ in 'AQV'
                if o == 'kv': assert k_ in 'PACW' or k_ == 'Q' and n_ < 21
                if o in ('d0', 'd1', 'tc'): assert 'd2' in vt and 'd3' in vt and 'rm' in vt
                if o in skip: vt[o] = a.nvm; continue
                vt[o] = a(vops[o])
            stamp(slot)
        mt = {}
        def rdM(sg): mt[sg] = a(f'ds_read_b128 {vr(M+4*sg,4)}, v{T+(sg//2-1)%4} offset:{1024*(sg%2)}')
        vq = [(sg,u) for sg in ((4,5,6,7,0,1,2,3) if yd else (0,1,4,5,6,7,2,3)) for u in (0,1)]
        def V_():
            sg, u = vq.pop(0); P_('v', sg, u)
        g1 = stg(('k',6), S0) + stg(('k',7), S1); tg1 = []
        def G1(i):
            if sgq <= i < sgq + 8: tg1.append(a(g1[i-sgq]))
        rq = [2,3,4,5,6,7]
        for j in range(3-fc,0 if yd else 12):
            if j == 3 - fc: pass
            elif j < 4: P_('q',1,j%2)
            elif j < 8: P_('k',(j-4)//2,j%2)
            else: V_()
            if vmf and j >= 4: VM('P0' if j == 4 else f'A{j-5}')
            if j > pb1 - 1 and rq and (rq[0] < 4 or j >= 3 + rq[0]//2): rdM(rq.pop(0))
            if j >= 9: G1(j-12)
            if not vmf and j >= 4: VM('P0' if j == 4 else f'A{j-5}')
            if j == pb1 - 1:
                a(f's_waitcnt lgkmcnt(0)\ns_barrier')
                stamp('a1')
                for _ in range(nr0): rdM(rq.pop(0))
        if yd == 1:
            a('s_barrier'); stamp('a1'); rq = list(range(8))
        if yd == 2: rq = [0,1]
        while rq: rdM(rq.pop(0))
        stamp('a2')
        QP = T+6; D0 = T; D1 = T+8; Dm = VA; X = XO
        def half(r, d): return [f'v_add_f32 v{r}, v{r}, v{r+2}', f'v_add_f32 v{r+1}, v{r+1}, v{r+3}', f'v_cvt_pk_bf16_f32 v{d}, v{r}, v{r+1}']
        a.wds(mt[0 if yd else 2])
        seq = [('q',s_,0) for s_ in range(2,8)] + [('q',2,1),('q',3,1),('k',6,0),('k',6,1),('k',7,0),('k',7,1)] + \
              [('q',s_,1) for s_ in range(4,8)] + [('k',s_,0) for s_ in range(2,6)] + [('k',s_,1) for s_ in range(2,6)]
        z0 = [f'v_mov_b64 {vr(M+2*i,2)}, 0' for i in range(4,8)]
        kx = [f'ds_read_b128 {vr(S+4*i,4)}, v{vKr} offset:{(i//2)*KVS+(i%2)*1024}' for i in range(8)]
        va = {i: f'v_mov_b32 v{NEG+i}, -1' for i in range(1 if rlate or rdw else 4)}
        for i, p_ in enumerate((4,5)): va[p_] = f'v_mov_b64 {vr(M+2*i,2)}, 0'
        wr = {}
        for p_, (r, d, off) in ((7, (QA, QP, 0)), (17, (QA+4, QP+1, 512)), (21, (KA, HK, 4))):
            for j, x_ in enumerate(half(r, d)): va[p_+j] = x_
            wr[p_+3] = f'ds_write_b32 v{vXw}, v{d} offset:{off}'
        xr = [f'ds_read_b64_tr_b16 {vr(X+2*i,2)}, v{vXr} offset:{i*512}' for i in range(8)]
        tx = []
        On = T+12; Cq = T+7
        rV = max([int(x_[4:]) for x_ in vp.split() if x_[0] == 'r' and x_[3] == 'V'] + [-1])
        fv = [f'v_mov_b64 {vr(On,2)}, {sp(sOne)}', f'v_mov_b64 {vr(On+2,2)}, {sp(sHalf)}', f'v_mov_b32 v{Cq}, s{sQc}', f'v_mov_b64 {vr(NEG+2,2)}, 0', f'v_mov_b64 {vr(NEG,2)}, 0']
        g2 = stg(('o',7), M+16)
        if yd:
            ku0 = [('k',s_,0) for s_ in range(1,6)]
            seq = [('q',0,0),('k',0,0),('k',0,1),('q',0,1),('q',1,0),('q',1,1)] + [('q',s_,u) for u in (0,1) for s_ in range(2,8)] + \
                  ku0[:kp] + [('k',6,0),('k',6,1),('k',7,0),('k',7,1)] + ku0[kp:] + [('k',s_,1) for s_ in range(1,6)]
            ck = NEG; got = 0
            va = {ckp[0]: f'v_max3_u32 v{ck}, v{M}, v{M+4}, v{M+8}', ckp[1]: f'v_max3_u32 v{ck}, v{ck}, v{M+12}, v{M+16}', ckp[2]: f'v_max3_u32 v{ck}, v{ck}, v{M+20}, v{M+24}',
                  ckp[3]: f'v_max_u32 v{ck}, v{ck}, v{M+28}', ckp[3]+1: f'v_cmp_eq_u32 vcc, -1, v{ck}', ckp[3]+3: f'v_mov_b32 v{NEG}, -1'}
            wr = {}
            for p_, (r, d, off) in ((13, (QA, QP, 0)), (19, (QA+4, QP+1, 512)), (28, (KA, HK, 4))):
                for j, x_ in enumerate(half(r, d)):
                    assert p_+j not in va
                    va[p_+j] = x_
                wr[p_+3] = f'ds_write_b32 v{vXw}, v{d} offset:{off}'
            fv = fv[:3]; fz = [f'v_mov_b64 {vr(M+2*i,2)}, 0' for i in range(4)]
            p6 = 18 + kp; g0 = ckp[3] + 2; NQK = 32
            if yd == 2:
                ku0 = [('k',s_,0) for s_ in range(2,6)]
                vo = [('v',0,0),('v',0,1),('v',1,0),('v',1,1)][:nvo]
                for x_ in vo: vq.remove(x_[1:])
                seq = [('q',0,0),('k',0,0),('k',0,1),('q',0,1),('q',1,0),('q',1,1),('k',1,0),('k',1,1)] + vo + \
                      ([('q',s_,u) for s_ in range(2,8) for u in (0,1)] if qo else [('q',s_,u) for u in (0,1) for s_ in range(2,8)]) + \
                      ku0[:kp] + [('k',6,0),('k',6,1),('k',7,0),('k',7,1)] + ku0[kp:] + [('k',s_,1) for s_ in range(2,6)]
                NQK = 32 + nvo
                va = {0: f'v_max_u32 v{ck}, v{M}, v{M+4}', 1: f'v_cmp_eq_u32 vcc, -1, v{ck}', 3: f'v_mov_b32 v{NEG}, -1'}
                wr = {}
                for p_, (r, d, off) in ((20 if qo else 15, (QA, QP, 0)), (23 if qo else 21, (QA+4, QP+1, 512)), (29, (KA, HK, 4))):
                    for j, x_ in enumerate(half(r, d)): va[p_+j+nvo] = x_
                    wr[p_+3+nvo] = f'ds_write_b32 v{vXw}, v{d} offset:{off}'
                p6 = 20 + kp + nvo; g0 = g0p
            for i in range(48):
                j = i - NQK
                if i < NQK: P_(*seq[i])
                else: V_()
                if vmf: VM(f'Q{i}' if i < NQK else f'V{j}')
                if yd == 2:
                    nd = 1 if i == 0 else seq[i+1][1] if i < 20 + nvo else 0
                    if i == 2:
                        a(f's_cbranch_vccnz {L("retry")}'); VM('P0'); a('s_barrier'); stamp('a1')
                        rdM(2); rdM(3); a(f's_mov_b32 m0, s{sVer}')
                    if 3 <= i < 7: rdM(i+1)
                else: nd = max([seq[i+1][1] if i < 11 else 0] + [(2,4,6,7)[c_] for c_ in range(4) if ckp[c_] == i])
                if nd > got: a.wds(mt[nd]); got = nd
                if i == g0 and yd == 1: a(f's_cbranch_vccnz {L("retry")}'); stamp('a3')
                if p6 - 1 <= i < p6 + 3: a.wds(tg1[2*(i-p6+1)+1])
                if g0 <= i < g0 + 8: tg1.append(a(g1[i-g0]))
                if i in wr: a(wr[i])
                if p6 + 4 <= i < p6 + 12: tkx = a(kx[i-p6-4])
                if not vmf: VM(f'Q{i}' if i < NQK else f'V{j}')
                if i in va: a(va[i])
                if i == NQK - 1: stamp('b0')
                if j == 1:
                    for x_ in half(KA+4, HK+1): a(x_)
                    wk = a(f'ds_write_b32 v{vXw}, v{HK+1} offset:516')
                if j == pB2: a.wds(wk); a('s_barrier'); stamp('b1')
                if j >= pB2:
                    for _ in range(ntr):
                        if len(tx) < 8: tx.append(a(xr[len(tx)])); busy = i
                if j >= max(g7 - 24, 10 - 2*len(g2)) and g2 and not (tx and busy == i): a(g2.pop(0))
                if j == 2: a(f's_mov_b64 vcc, {sp(sB0)}\ns_cmp_eq_u32 s{sT}, {nsteps-1}')
                if i == 47: a(f's_cbranch_scc1 {L("last")}')
                if 2 <= j and i < 47 and j != pB2:
                    if fv: a(fv.pop(0))
                    elif fz and not any(x_[0] == (0 if len(fz) > 2 else 1) for x_ in vq) and i >= (42 if len(fz) > 2 else 44) - 8*(nvo // 4): a(fz.pop(0))
            fv += fz
        MF = 'v_mfma_f32_16x16x32_bf16'
        p6 = 8
        if ps:
            seq = [('q',s_,u) for u in (0,1) for s_ in range(2,8)] + [('k',6,0),('k',6,1),('k',7,0),('k',7,1)] + [('k',s_,u) for u in (0,1) for s_ in range(2,6)]
            p6 = 12
            for p_ in range(17,20): del va[p_]
            for j, x_ in enumerate(half(QA+4, QP)): va[13+j] = x_
            del wr[20]
            B0 = T+8; B1 = T; DP = T+12
            for u in (0,1):
                wr[10+6*u] = f'ds_write_b64 v{vXw}, {vr(QP,2)} offset:{512*u}\nds_write_b32 v{vXw}, v{QP} offset:{4096+512*u+4}'
                rd_ = f'ds_read_b64_tr_b16 {vr(B0+2*u,2)}, v{vKr} offset:{512*u}\nds_read_b64_tr_b16 {vr(B1+2*u,2)}, v{vKr} offset:{4096+512*u}'
                wr[11+6*u] = rd_
            g5 = None
            xr += [f'ds_read2st64_b32 {vr(D0+2*i,2)}, v{T+5} offset0:{2*i} offset1:{2*i+1}' for i in range(2)]
        for i in range(0 if yd else 36):
            if i < 24: P_(*seq[i])
            else: V_()
            if i < 5: a.wds(mt[i+3])
            if p6 - 1 <= i < p6 + 3: a.wds(tg1[2*(i-p6+1)+1])
            G1(i)
            if i in wr: tw = a(wr[i])
            if ps:
                if i == 17: tq = tw
                if i == 16: g5 = stg(('o',5), S0) + stg(('o',6), S1)
                if i in (pad, pad+1):
                    for r in range(2*(i-pad), 2*(i-pad)+2): a(f'ds_add_f32 v{T+5}, v{DP+r} offset:{256*r}')
                if i in g56: a(g5.pop(0))
            elif pKx <= i < pKx + 8: tkx = a(kx[i-pKx])
            VM(f'Q{i}' if i < 24 else f'V{i-24}')
            if i in va: a(va[i])
            if ps and i == pmf:
                a.wds(tq)
                a(f'{MF} {vr(DP,4)}, {vr(KX,4)}, {vr(B0,4)}, 0\n{MF} {vr(DP,4)}, {vr(KX+4,4)}, {vr(B1,4)}, {vr(DP,4)}')
            if i == 23: stamp('b0')
            if i == 25:
                for x_ in half(KA+4, HK+1): a(x_)
                wk = a(f'ds_write_b32 v{vXw}, v{HK+1} offset:516')
            if i == 24 + pB2: a.wds(wk); a('s_barrier'); stamp('b1')
            if i >= 24 + pB2:
                for _ in range(ntr):
                    if len(tx) < len(xr): tx.append(a(xr[len(tx)])); busy = i
            if i >= max(g7, 34 - 2*len(g2)) and g2 and not (tx and busy == i): a(g2.pop(0))
            if i == 26: a(f's_mov_b64 vcc, {sp(sB0)}\ns_cmp_eq_u32 s{sT}, {nsteps-1}')
            if i == 35: a(f's_cbranch_scc1 {L("last")}')
            if 26 <= i < 35 and i != 24 + pB2 and not (tx and busy == i and ntr > 2) and fv and (len(fv) > 2 or i - 24 > rV): a(fv.pop(0))
        while len(tx) < len(xr): tx.append(a(xr[len(tx)]))
        stamp('c0')
        vf = half(VA, HV) + half(VA+4, HV+1)
        mx = T+4; tm = T+5; ma = T+6; vOr = T+4
        if not ps: g5 = stg(('o',5), S0); g6 = stg(('o',6), S1)
        P = T+8; Dd = T+10; Ba = XO; Bb = XO+4; Po = XO+8; Ls = XO+12
        MF = 'v_mfma_f32_16x16x32_bf16'
        lastc = list(vf)
        mg = [f'v_cndmask_b32_dpp v{D0+r}, v{D1+r}, v{D0+r}, vcc quad_perm:[0,1,0,1] {DPPM}' for r in range(4)] + \
             [f'v_max3_f32 v{mx}, v{D0}, v{D0+1}, v{D0+2}', f'v_max_f32 v{mx}, v{mx}, v{D0+3}']
        rest = g2 + fv
        a.wds(tx[{0: 7, 1: 3, 2: 1}[wx]])
        Dq = Dm
        if ps:
            Dq = D1; g6 = g2 + g5; rest = []
            fl_ = fv + vf[:3] + mg[4:] + vf[3:]
            for i in range(4):
                r = X+4*i; a(f'{MF} {vr(Dq,4)}, {vr(r,4)}, {vr(r,4)}, {vr(Dq,4) if i else 0}')
                stamp(f'M{i}')
                if i == 1: a.wds(tx[9])
                for _ in range(2):
                    if g6: a(g6.pop(0))
                for _ in range(2 if i else 1): a(fl_.pop(0))
            for x_ in fl_: a(x_)
        for i in range(0 if ps else 12):
            if i < 8:
                w_ = i//2; d = (D0, D1)[i%2]
                a(f'{MF} {vr(d,4)}, {vr(S+4*i,4)}, {vr(X+4*w_,4)}, {vr(d,4) if w_ else 0}')
            else:
                r = X+4*(i-8); a(f'{MF} {vr(Dm,4)}, {vr(r,4)}, {vr(r,4)}, {vr(Dm,4) if i > 8 else 0}')
            stamp(f'M{i}')
            if i == 0:
                for _ in range(2):
                    if rest: a(rest.pop(0))
            elif i == 1 and wx == 2: a.wds(tx[3]); a(vf.pop(0))
            elif i == 3 and wx: a.wds(tx[7]); a(vf.pop(0))
            elif i < 4: a(vf.pop(0)); a(vf.pop(0))
            elif i < 8:
                a(g5.pop(0))
                if vf: a(vf.pop(0))
                elif rest: a(rest.pop(0))
                elif i >= 6: a(g6.pop(0))
            elif i == 8: a(g6.pop(0)); a(g6.pop(0))
            else: a(mg.pop(0)); a(mg.pop(0))
        assert not rest
        for x_ in g6: a(x_)
        stamp('c1')
        a(f'v_max_f32_dpp v{mx}, v{mx}, v{mx} quad_perm:[2,3,0,1] {DPPM}')
        a(f'v_mul_f32 v{mx}, v{mx}, v{Cq}')
        a(f'v_mul_f32_dpp v{Dm}, v{Dq+2}, v{Cq} quad_perm:[0,1,0,1] {DPPM}')
        a(f'v_mul_f32_dpp v{Dm+1}, v{Dq+3}, v{Cq} quad_perm:[0,1,0,1] {DPPM}')
        a(f'v_max3_f32 v{tm}, v{mx}, v{Dm}, v{Dm+1}')
        a(f'v_max3_f32 v{mx}, v{mx}, v{Dm}, v{Dm+1}')
        a(z0.pop()); a(z0.pop())
        a(f'v_permlane16_swap_b32 v{mx}, v{tm}\nv_max_f32 v{ma}, v{mx}, v{tm}\nv_max_f32 v{mx}, v{mx}, v{tm}')
        a(z0.pop()); a(z0.pop())
        a(f'v_permlane32_swap_b32 v{mx}, v{ma}\nv_max_f32 v{mx}, v{mx}, v{ma}')
        ex = [Dm, Dm+1, T, T+1, T+2, T+3]
        for r in ex[:2]: a(f'v_sub_f32 v{r}, v{r}, v{mx}')
        for r in ex[2:]: a(f'v_fma_f32 v{r}, v{r}, v{Cq}, -v{mx}')
        for r in ex[:4]: a(f'v_exp_f32 v{r}, v{r}')
        a(f'v_cvt_pk_bf16_f32 v{Dm}, v{Dm}, v{Dm+1}')
        for r in ex[4:]: a(f'v_exp_f32 v{r}, v{r}')
        stamp('c2')
        a.wvm(max(vt['d2'], vt['d3'], vt['rm']))
        a(f"""
        v_cvt_pk_bf16_f32 v{P}, v{T}, v{T+1}
        v_and_b32 v{Dd}, v{Dm}, v{vM0}
        v_and_b32 v{Dd+1}, v{Dm}, v{vM1}
        v_cvt_pk_bf16_f32 v{P+1}, v{T+2}, v{T+3}
        v_and_b32 v{Ba}, v{P}, v{vM0}
        v_mfma_f32_16x16x16_bf16 {vr(Po,4)}, {vr(HV,2)}, {vr(Dd,2)}, 0
        v_and_b32_dpp v{Ba+2}, v{P}, v{vM0} quad_perm:[2,3,0,1] {DPPM}
        v_and_b32 v{Ba+1}, v{P+1}, v{vM0}
        v_mfma_f32_16x16x32_bf16 {vr(Ls,4)}, {vr(On,4)}, {vr(P,4)}, 0
        v_and_b32_dpp v{Ba+3}, v{P+1}, v{vM0} quad_perm:[2,3,0,1] {DPPM}
        v_and_b32_dpp v{Bb}, v{P}, v{vM1} quad_perm:[2,3,0,1] {DPPM}
        v_and_b32_dpp v{Bb+1}, v{P+1}, v{vM1} quad_perm:[2,3,0,1] {DPPM}
        v_mfma_f32_16x16x32_bf16 {vr(Po,4)}, {vr(VX,4)}, {vr(Ba,4)}, {vr(Po,4)}
        v_and_b32 v{Bb+2}, v{P}, v{vM1}
        v_and_b32 v{Bb+3}, v{P+1}, v{vM1}
        v_and_b32 v{vOr}, -9, v{vOw}
        v_xor_b32 v{vOr+1}, 512, v{vOr}
        v_mfma_f32_16x16x32_bf16 {vr(Po,4)}, {vr(VX+4,4)}, {vr(Bb,4)}, {vr(Po,4)}
        v_add_f32_dpp v{Ls}, v{Ls}, v{Ls} quad_perm:[2,3,0,1] {DPPM}
        v_rcp_f32 v{Ls}, v{Ls}
        v_xor_b32 v{vOr+2}, 1024, v{vOr}
        v_xor_b32 v{vOr+3}, 1536, v{vOr}
        """)
        assert not z0
        if rlate: a(f'v_mov_b64 {vr(T,2)}, -1' + ('' if rdw else f'\nv_mov_b64 {vr(T+2,2)}, -1'))
        a(f"""
        v_mul_f32 v{Po}, v{Po}, v{Ls}
        v_mul_f32 v{Po+1}, v{Po+1}, v{Ls}
        v_mul_f32 v{Po+2}, v{Po+2}, v{Ls}
        v_mul_f32 v{Po+3}, v{Po+3}, v{Ls}
        v_cvt_pk_bf16_f32 v{Po}, v{Po}, v{Po+1}
        v_cvt_pk_bf16_f32 v{Po+1}, v{Po+2}, v{Po+3}
        """)
        O = XO
        ow = a(f'ds_write_b64 v{vOw}, {vr(Po,2)}')
        ot = [a(f'ds_read_b128 {vr(O,4)}, v{vOr}')]
        stamp('c3')
        VM('C0')
        a.wds(ow); a('s_barrier')
        stamp('d0')
        for k_ in range(1,4): ot.append(a(f'ds_read_b128 {vr(O+4*k_,4)}, v{vOr+k_}'))
        VM('C1')
        PS = VA
        def W_(G, ki): SM(M+4*G, O+4*ki, 'o', 2*ki+G//2, G%2)
        def cv(G): return [f'v_cvt_pk_bf16_f32 v{PS+2*G+h_}, v{M+4*G+2*h_}, v{M+4*G+2*h_+1}' for h_ in range(2)]
        a.wds(ot[0])
        for G in range(4):
            W_(G, 0); VM(f'W{G}')
        a.wds(ot[1])
        stamp('d1')
        if w4:
            def st_(G):
                c_ = cv(G)
                if dw: return sum([[c_[h_], f'v_min_u32 v{PS+2*G+h_}, -2, v{PS+2*G+h_}', f'global_store_dword v{vPst}, v{PS+2*G+h_}, {sp((sSt0,sSt1)[h_])} offset:{2048*G-4096}{stc}'] for h_ in range(2)], [])
                return [c_[0], f'v_min_u32 v{PS+2*G}, -2, v{PS+2*G}', c_[1], f'global_store_dwordx2 v{vPst}, {vr(PS+2*G,2)}, {sp(sSt0)} offset:{2048*G-4096}{stc}']
            fl_ = [f'v_mov_b32 v{T+2}, 0x3f80', f'v_mov_b32 v{T+3}, 0x3f800000', f'v_cndmask_b32 v{T+2}, v{T+2}, v{T+3}, {sp(sPm)}']
            W_(0,1); a.wds(ot[2]); W_(0,2); a.wds(ot[3]); W_(0,3)
            if wo >= 4:
                sd = lambda G, h_: f'global_store_dword v{vPst}, v{PS+2*G+h_}, {sp((sSt0,sSt1)[h_])} offset:{2048*G-4096}{stc}'
                for G in range(1,4):
                    c_ = cv(G-1)
                    W_(G,1)
                    if G > 1 and wo == 4: a(sd(G-2,1))
                    a(fl_.pop(0))
                    W_(G,2); a(c_[0])
                    if wo == 5: a(c_[1])
                    W_(G,3); a(sd(G-1,0))
                    if wo == 5: a(sd(G-1,1))
                    else: a(c_[1])
                a(f'v_cndmask_b32 v{Sel}, 0, v{T+2}, {sp(sSel)}')
                if wo == 4: a(sd(2,1))
                for i in range(1,4): a(f'v_cndmask_b32 v{Sel+i}, 0, v{T+2}, {sp(sSel+2*i)}')
                for x_ in cv(3) + [sd(3,0), sd(3,1)]: a(x_)
            for G in range(1,4 if wo < 4 else 0):
                q_ = st_(G-1)
                W_(G,1); a(fl_.pop(0))
                if wo == 2 and G == 1:
                    for x_ in q_: a(x_)
                    q_ = []
                W_(G,2)
                for _ in range((6 if wo >= 1 and G == 1 else 3) if dw else 4 if wo >= 1 and G == 1 else 2):
                    if q_: a(q_.pop(0))
                W_(G,3)
                for x_ in q_: a(x_)
            if wo < 4:
                for i in range(4): a(f'v_cndmask_b32 v{Sel+i}, 0, v{T+2}, {sp(sSel+2*i)}')
                for x_ in st_(3): a(x_)
        else:
            W_(0,1); VM('W4'); W_(1,1); a.wds(ot[2]); VM('W5'); W_(0,2); VM('W6'); W_(1,2); a.wds(ot[3]); VM('W7'); W_(0,3); VM('W8'); W_(1,3)
            c0 = cv(0); c1 = cv(1); c2 = cv(2); c3 = cv(3)
            W_(2,1); a(c0[0])
            W_(2,2); a(c0[1]); a(c1[0])
            W_(2,3); a(c1[1]); a(f'v_min_u32 v{PS}, -2, v{PS}')
            W_(3,1); a(f'global_store_dwordx4 v{vPst}, {vr(PS,4)}, {sp(sSt0)}{stc}')
            W_(3,2); a(c2[0])
            W_(3,3); a(c2[1]); a(f'v_min_u32 v{PS+4}, -2, v{PS+4}')
            a(f'v_mov_b32 v{T+2}, 0x3f80\nv_mov_b32 v{T+3}, 0x3f800000')
            a(f'v_cndmask_b32 v{T+2}, v{T+2}, v{T+3}, {sp(sPm)}')
            a(c3[0]); a(c3[1])
            a(f'global_store_dwordx4 v{vPst}, {vr(PS+4,4)}, {sp(sSt1)}{stc}')
        stamp('h0')
        if 'ack' in opt: a('s_waitcnt vmcnt(0)'); stamp('hk')
        n0 = len(a.items)
        for x_ in stg(('q',0), S0) + stg(('q',1), S1): a(x_)
        if not w4:
            for i in range(4): a(f'v_mov_b32 v{Sel+i}, v{T+2}' if ra == 1 else f'v_cndmask_b32 v{Sel+i}, 0, v{T+2}, {sp(sSel+2*i)}')
            if ra in (1,2): a(f'v_lshrrev_b32 v{T+1}, {3-ra}, v{vLin}\nv_cndmask_b32 v{T+3}, -1, -2, {sp(sSel)}')
            a.nops(preA - (len(a.items) - n0))
        else:
            cur = len(a.items) - n0
            for w_ in range(4):
                a.nops(w4[w_] - cur - (2 if w_ < 3 else 0)); cur = max(cur + (2 if w_ < 3 else 0), w4[w_])
                if w_ < 3: a(f's_cmp_eq_u32 s{sW}, {w_}\ns_cbranch_scc1 {L("p0")}')
            a.label(L('p0'))
        R1 = M+8; R2 = P2
        def redA(R):
            if ra == 2:
                a(f"""
                s_waitcnt vmcnt(6)
                v_mfma_f32_16x16x32_bf16 {vr(Dr,4)}, {vr(Sel,4)}, {vr(R,4)}, 0
                s_waitcnt vmcnt(4)
                v_mfma_f32_16x16x32_bf16 {vr(Dr,4)}, {vr(Sel,4)}, {vr(R+4,4)}, {vr(Dr,4)}
                v_max3_u32 v{T}, v{R}, v{R+2}, v{R+4}
                v_max_u32 v{T}, v{T}, v{R+6}
                v_cmp_gt_u32 vcc, v{T}, v{T+3}
                """)
                return
            if ra == 4:
                a(f"""
                s_waitcnt vmcnt(3)
                v_mfma_f32_16x16x32_bf16 {vr(Dr,4)}, {vr(Sel,4)}, {vr(R,4)}, 0
                {f'v_max3_u32 v{T}, v{R}, v{R+1}, v{R+2}' if dw and mk == 8 else ''}
                s_waitcnt vmcnt(2)
                v_mfma_f32_16x16x32_bf16 {vr(Dr,4)}, {vr(Sel,4)}, {vr(R+4,4)}, {vr(Dr,4)}
                {f'v_max3_u32 v{T}, v{T}, v{R+3}, v{R+4}{NL}v_max3_u32 v{T}, v{T}, v{R+5}, v{R+6}{NL}v_max_u32 v{T}, v{T}, v{R+7}' if dw and mk == 8 else f'v_max3_u32 v{T}, v{R}, v{R+2}, v{R+4}{NL}v_max_u32 v{T}, v{T}, v{R+6}' if w4 and not dw else f'v_max_u32 v{T}, v{R}, v{R+4}'}
                v_cmp_eq_u32 vcc, -1, v{T}
                """)
                return
            if ra:
                a(f"""
                s_waitcnt vmcnt(12)
                v_mfma_f32_16x16x32_bf16 {vr(Dr,4)}, {vr(R,4)}, {vr(Sel,4)}, 0
                v_max3_u32 v{T}, v{R}, v{R+1}, v{R+2}
                s_waitcnt vmcnt(8)
                v_mfma_f32_16x16x32_bf16 {vr(Dr,4)}, {vr(R+4,4)}, {vr(Sel,4)}, {vr(Dr,4)}
                v_max3_u32 v{T}, v{T}, v{R+3}, v{R+4}
                v_max3_u32 v{T}, v{T}, v{R+5}, v{R+6}
                v_max_u32 v{T}, v{T}, v{R+7}
                v_cmp_gt_u32 vcc, v{T}, v{T+3}
                """)
                return
            a(f"""
            s_waitcnt vmcnt(3)
            v_mfma_f32_16x16x32_bf16 {vr(Dr,4)}, {vr(R,4)}, {vr(Sel,4)}, 0
            s_waitcnt vmcnt(2)
            v_mfma_f32_16x16x32_bf16 {vr(Dr,4)}, {vr(R+4,4)}, {vr(Sel,4)}, {vr(Dr,4)}
            v_max_u32 v{T}, v{R}, v{R+4}
            v_cmp_eq_u32 vcc, -1, v{T}
            """)
        ldA(R1)
        a.nops(gapA - {0:2, 1:8, 2:4, 4:2}[ra])
        a.label(L('pa'))
        ldA(R2)
        redA(R1)
        if ft: a(f's_cbranch_vccnz {L("pb")}')
        else:
            a(f's_cbranch_vccz {L("qa")}')
            ldA(R1); spin()
            redA(R2)
            a(f's_cbranch_vccnz {L("pa")}')
        a.label(L('qa'))
        stamp('h1')
        if ra > 1:
            for ro in ((8,) if ra == 2 else (8,4)):
                for r in range(2): a(f'v_add_f32_dpp v{Dr+r}, v{Dr+r}, v{Dr+r} row_ror:{ro} {DPPM}')
            a(f"""
            s_mov_b64 exec, {sp(sPub)}
            v_cvt_pk_bf16_f32 v{Dr}, v{Dr}, v{Dr+1}
            {'' if nc else f'v_min_u32 v{Dr}, -2, v{Dr}'}
            global_store_dword v{vMst}, v{Dr}, {sp(sMst)}{stc}
            """)
        elif ra: a(f"""
        s_mov_b64 exec, {sp(sPub)}
        v_cvt_pk_bf16_f32 v{Dr}, v{Dr}, v{Dr+1}
        v_cvt_pk_bf16_f32 v{Dr+1}, v{Dr+2}, v{Dr+3}
        v_min_u32 v{Dr}, -2, v{Dr}
        global_store_dwordx2 v{vMst}, {vr(Dr,2)}, {sp(sMst)}{stc}
        """)
        else: a(f"""
        v_permlane32_swap_b32 v{Dr}, v{Dr+2}
        v_permlane32_swap_b32 v{Dr+1}, v{Dr+3}
        v_add_f32 v{Dr}, v{Dr}, v{Dr+2}
        v_add_f32 v{Dr+1}, v{Dr+1}, v{Dr+3}
        v_permlane16_swap_b32 v{Dr}, v{Dr+1}
        v_add_f32 v{Dr}, v{Dr}, v{Dr+1}
        v_mov_b32_dpp v{Dr+1}, v{Dr} quad_perm:[1,0,3,2] {DPPM}
        v_cvt_pk_bf16_f32 v{Dr}, v{Dr}, v{Dr+1}
        s_mov_b64 exec, {sp(sPub)}
        v_min_u32 v{Dr}, -2, v{Dr}
        global_store_dword v{vMst}, v{Dr}, {sp(sMst)}{stc}
        """)
        stamp('h2')
        a(f"""
        s_mov_b64 exec, -1
        """)
        if w4 and bb: a('s_barrier')
        stamp('h3')
        tstamp(f's{sT}')
        if prof and len(stamps) >= 2:
            a('s_waitcnt lgkmcnt(0)')
            for i in range(len(stamps)-1): a(f's_sub_u32 s{sA}, s{sP+2*i+2}, s{sP+2*i}\ns_add_u32 s{sP+21+i}, s{sP+21+i}, s{sA}')
        if prof:
            a(f's_cmp_lg_u32 s{sT}, 3\ns_cbranch_scc1 {L("pf1")}\ns_memtime {sp(sP+28)}\ns_mov_b32 s{sSpin}, 0')
            for i in range(6): a(f's_mov_b32 s{sP+21+i}, 0')
            a(f'{L("pf1")}:\ns_cmp_lg_u32 s{sT}, {nsteps-2}\ns_cbranch_scc1 {L("pf2")}\ns_memtime {sp(sP)}\ns_waitcnt lgkmcnt(0)\ns_sub_u32 s{sP+20}, s{sP}, s{sP+28}\n{L("pf2")}:')
        a(f's_add_u32 s{sT}, s{sT}, 1\ns_branch {L("step")}')
        if ft:
            a.label(L('pb'))
            ldA(R1); spin()
            redA(R2)
            a(f's_cbranch_vccnz {L("pa")}\ns_branch {L("qa")}')
        a.label(L('rp'))
        if ps: a(f'v_lshrrev_b32 v{T+6}, 2, v{vLin}')
        a(f'global_load_dword v{T+6}, v{T+6 if ps else T+5}, {sp(sFK)} sc1')
        spin()
        a('s_waitcnt vmcnt(0)')
        fkeval(T+6)
        a(f's_cmp_lt_u32 s{sA}, s{sRdy}\ns_cbranch_scc1 {L("rk")}\ns_sleep 2\ns_branch {L("rp")}')
        a.label(L('last'))
        if TL: a(f's_memtime s[94:95]\ns_waitcnt lgkmcnt(0)\ns_sub_u32 s94, s94, s92')
        a('s_nop 7')
        for x_ in lastc: a(x_)
        a(f's_branch {LE}')
    loop(L, stc)
    if mega: loop(lambda x: L('s_' + x), ' sc1', *((8, 0) if dw else ()))
    a.label(L('end'))
    a('s_mov_b64 exec, -1\ns_nop 7')
    a(f'''
    s_add_u32 s{sKVM}, s{sKVM}, {0 if kvnow else 32*4096}
    s_addc_u32 s{sKVM+1}, s{sKVM+1}, 0
    global_store_dwordx4 v{vLin}, {vr(HK,4)}, {sp(sKVM)} sc1
    v_mov_b32 v{T}, 0x41
    s_waitcnt vmcnt(0)
    s_barrier
    s_mov_b64 exec, {sp(sFm)}
    global_store_dword v{vLin}, v{T}, {sp(sFl)} sc1
    s_mov_b64 exec, -1
    ''')
    if wb == 1: a(f's_cmp_lg_u32 s{sW}, 0\ns_cbranch_scc1 {L("nwb")}\nbuffer_wbl2 sc1\n{L("nwb")}:')
    if wb == 2: a(f's_lshl_b32 s{sA}, s{sH}, 2\ns_add_u32 s{sA}, s{sA}, s{sW}\ns_cmp_lg_u32 s{sA}, 0\ns_cbranch_scc1 {L("nwb")}\nbuffer_wbl2 sc1\n{L("nwb")}:')
    if prof:
        for i in range(7): a(f'v_mov_b32 v{T+i}, s{sP+20+i}')
        a(f'''
        v_mov_b32 v{T+7}, s{sSpin}
        s_lshl_b32 s{sA}, s{sH}, 2
        s_add_u32 s{sA}, s{sA}, s{sW}
        s_lshl_b32 s{sA}, s{sA}, 5
        s_add_u32 s{sA}, s{sA}, {WS_PROF}
        v_mov_b32 v{T+8}, s{sA}
        s_mov_b64 exec, 1
        global_store_dwordx4 v{T+8}, {vr(T,4)}, {sp(sWs)}
        global_store_dwordx4 v{T+8}, {vr(T+4,4)}, {sp(sWs)} offset:16
        s_mov_b64 exec, -1
        ''')
    tl(a, 4, T, 0)
    a('s_waitcnt vmcnt(0) lgkmcnt(0)')

def standalone(name='chain_kernel', **kw):
    a = Asm()
    a.raw(khead(name))
    a(f'''
    s_load_dwordx2 {sp(sMem)}, s[0:1], 8
    s_load_dwordx4 s[8:11], s[0:1], 24
    s_load_dwordx2 {sp(sWq)}, s[0:1], 16
    s_load_dwordx2 {sp(sWo)}, s[0:1], 40
    s_load_dwordx2 {sp(sDbg)}, s[0:1], 104
    s_load_dwordx2 {sp(sWs)}, s[0:1], 112
    s_getreg_b32 s{sA}, hwreg(HW_REG_XCC_ID)
    s_and_b32 s{sA}, s{sA}, 15
    s_mov_b32 s{sXcc}, s{sA}
    s_waitcnt lgkmcnt(0)
    s_cmp_lg_u32 s{sA}, 0
    s_cbranch_scc1 L_done_{name}
    v_mov_b32 v1, 0
    v_mov_b32 v2, 1
    v_lshrrev_b32 v4, 6, v0
    v_readfirstlane_b32 s{sW}, v4
    s_cmp_lg_u32 s{sW}, 0
    s_cbranch_scc1 L_t_{name}
    s_mov_b64 exec, 1
    global_atomic_add v3, v1, v2, {sp(sDbg)} offset:252 sc0 sc1
    s_waitcnt vmcnt(0)
    ds_write_b32 v1, v3
    s_waitcnt lgkmcnt(0)
    s_mov_b64 exec, -1
    L_t_{name}:
    s_barrier
    ds_read_b32 v3, v1
    s_waitcnt lgkmcnt(0)
    v_readfirstlane_b32 s{sH}, v3
    s_barrier
    s_cmp_gt_u32 s{sH}, 31
    s_cbranch_scc1 L_done_{name}
    ''')
    chain(a, name, **kw)
    a.label(f'L_done_{name}')
    a('s_endpgm')
    bad = a.check_branches()
    assert bad == 0
    return a

if __name__ == '__main__':
    import sys
    variants = eval(sys.argv[1]) if len(sys.argv) > 1 else [dict()]
    out = ''.join(f'; @launch kernel=c{i}_kernel grid=(256,1,1) block=(256,1,1) lds=163840\n' for i in range(len(variants)))
    out += '.amdgcn_target "amdgcn-amd-amdhsa--gfx950"\n.text\n'
    for i, v in enumerate(variants):
        a = standalone(f'c{i}_kernel', prof=True, **v); out += a.text()
    out += '.section .rodata,"a"\n' + ''.join(kdesc(f'c{i}_kernel') for i in range(len(variants)))
    open('chain.s','w').write(out)
    open('chain.json','w').write(repr(variants))
```

```python
from asmlib import *
import gen_chain as C
from gen_chain import sp, sMem,sWq,sWk,sWv,sWo,sDbg,sWs,sH,sW,sXcc,QSCALE,WS_KVM,f32,WS_FL,FL_K,FL_G,FL_P
import math
NAME = 'gated_mix__memory_aug_recurrent_mem_tr__glu_gated_bilinear__prompt_kernel'
WS_QX = 64<<20; WS_ACT = 128<<20; ACT_T = 180224; WS_F2 = 63<<20
WSPIN = 60000
sGrp = 20; sSpin = 21; sA, sB, sC, sD = 22, 23, 24, 25
sX, sWg, sWu, sWd, sGw, sOut = 30, 32, 34, 36, 38, 40
MF = 'v_mfma_f32_16x16x32_bf16'
X = {}
def NG3(): return X.get('ng3', 4)

def add64(a, d, s, off):
    o = f's{off}' if isinstance(off, str) is False and False else off
    a(f's_add_u32 s{d}, s{s}, {off}\ns_addc_u32 s{d+1}, s{s+1}, 0')

def poll(a, lab, loads, check, sl=8):
    a(f"""
    s_mov_b32 s{sSpin}, 0
    {lab}_p:
    {loads}
    s_add_u32 s{sSpin}, s{sSpin}, 1
    s_cmp_gt_u32 s{sSpin}, {WSPIN}
    s_cbranch_scc1 {lab}_b
    s_waitcnt vmcnt(0)
    {check}
    s_cbranch_vccz {lab}_b
    s_sleep {sl}
    s_branch {lab}_p
    {lab}_b:
    s_waitcnt vmcnt(0)
    """)

class Filt:
    def __init__(s, a): s.__dict__['a'] = a
    def __getattr__(s, k): return getattr(s.a, k)
    def __setattr__(s, k, v): setattr(s.a, k, v)
    def __call__(s, t):
        if t.startswith('global_store_dwordx4 v6'):
            if X.get('nost'): return None
            if X.get('plain'): t = t.replace(' sc1', '')
            if X.get('nt'): t = t.replace(' sc1', ' sc1 nt')
            if X.get('stb'): t = t.replace(' sc1', X['stb'])
        return s.a(t)
def t1(a):
    a = Filt(a)
    sTile, sBuf, sStr, sW0, sW1, sO0, sO1, sBlk, sM, sXb = 44, 45, 46, 48, 50, 52, 54, 56, 57, 58
    sStep, sFo, sFb = 47, 60, 62
    vOne, vFo, vPf, vPr, vRa, vRd, vXr = 14, 15, 7, 128, 129, 130, 131
    XR = 23; NB1 = X.get('nb1', 16)
    ACC = 16; WF = 80; PK = 112
    vLane, vN, vG, vLin, vTr, vRow, vCh, vA, vXo = 3, 4, 5, 6, 8, 10, 11, 12, 13
    acc = lambda T, hf, v: ACC + 16*T + 8*hf + 4*v
    def prefetch(nk=3, st=896):
        a(f'''
        s_sub_u32 s{sA}, s{sGrp}, 1
        s_lshl_b32 s{sB}, s{sH}, 2
        s_add_u32 s{sB}, s{sB}, s{sW}
        s_mul_i32 s{sB}, s{sB}, 7
        s_add_u32 s{sA}, s{sA}, s{sB}
        v_and_b32 v1, 63, v0
        v_lshlrev_b32 v1, 7, v1
        ''')
        for k in range(nk):
            a(f'''
            s_min_u32 s{sA}, s{sA}, 2047
            s_bitcmp1_b32 s{sA}, 9
            s_cselect_b64 {sp(sO0)}, {sp(sWk)}, {sp(sWq)}
            s_cselect_b64 {sp(sO1)}, {sp(sWo)}, {sp(sWv)}
            s_bitcmp1_b32 s{sA}, 10
            s_cselect_b64 {sp(sO0)}, {sp(sO1)}, {sp(sO0)}
            s_and_b32 s{sB}, s{sA}, 511
            s_lshl_b32 s{sB}, s{sB}, 13
            s_add_u32 s{sO0}, s{sO0}, s{sB}
            s_addc_u32 s{sO0+1}, s{sO0+1}, 0
            global_load_dword v{vPf}, v1, {sp(sO0)}{X.get('pfc', '')}
            s_add_u32 s{sA}, s{sA}, {st}
            ''')
    def pfo():
        a(f'''
        s_sub_u32 s{sA}, s{sGrp}, 5
        s_lshl_b32 s{sA}, s{sA}, 7
        s_lshl_b32 s{sB}, s{sH}, 2
        s_add_u32 s{sA}, s{sA}, s{sB}
        s_add_u32 s{sA}, s{sA}, s{sW}
        v_and_b32 v1, 63, v0
        v_lshlrev_b32 v1, 7, v1
        s_cmp_lt_u32 s{sGrp}, 5
        s_cselect_b64 exec, 0, -1
        ''')
        for mat in X.get('pfm', 'o'):
            b_ = dict(q=sWq, k=sWk, v=sWv, o=sWo)[mat]
            for k in range(2):
                a(f'''
                s_add_u32 s{sB}, s{sA}, {384*k}
                s_min_u32 s{sB}, s{sB}, 511
                s_lshl_b32 s{sB}, s{sB}, 13
                s_add_u32 s{sO0}, s{b_}, s{sB}
                s_addc_u32 s{sO0+1}, s{b_+1}, 0
                global_load_dword v{vPf}, v1, {sp(sO0)}
                ''')
        a('s_mov_b64 exec, -1')
    if X.get('pf') == 1: prefetch()
    if X.get('pf') == 5: pfo()
    a(f'''
    s_add_u32 s{sFb}, s{sWs}, {WS_FL}
    s_addc_u32 s{sFb+1}, s{sWs+1}, 0
    v_mov_b32 v{vOne}, 1
    s_cmp_lg_u32 s{sGrp}, 7
    s_cbranch_scc1 Lt1_nz
    s_cmp_gt_u32 s{sH}, 16
    s_cbranch_scc1 Lt1_nz
    s_cmp_eq_u32 s{sH}, 16
    s_cselect_b32 s{sA}, 0, -1
    v_mov_b32 v{PK}, s{sA}
    v_mov_b32 v{PK+1}, s{sA}
    v_mov_b32 v{PK+2}, s{sA}
    v_mov_b32 v{PK+3}, s{sA}
    s_lshl_b32 s{sA}, s{sH}, 15
    s_add_u32 s{sA}, s{sA}, {C.WS_RA}
    s_cmp_eq_u32 s{sH}, 16
    s_cselect_b32 s{sA}, {WS_FL}, s{sA}
    v_lshl_add_u32 v1, v0, 4, s{sA}
    ''')
    for i in range(8):
        a(f'global_store_dwordx4 v1, {vr(PK,4)}, {sp(sWs)} sc1')
        if i < 7: a('v_add_u32 v1, 4096, v1')
    a(f'''
    s_lshl_b32 s{sA}, s{sH}, 10
    s_add_u32 s{sA}, s{sA}, {C.WS_RM}
    v_lshl_add_u32 v1, v0, 2, s{sA}
    global_store_dword v1, v{PK}, {sp(sWs)} sc1
    s_lshl_b32 s{sA}, s{sH}, 2
    s_add_u32 s{sA}, s{sA}, 32
    s_cmp_eq_u32 s{sH}, 16
    s_cselect_b32 s{sA}, 160, s{sA}
    s_add_u32 s{sA}, s{sA}, s{sW}
    v_mov_b32 v1, s{sA}
    s_waitcnt vmcnt(0)
    s_mov_b64 exec, 1
    global_store_byte v1, v{vOne}, {sp(sDbg)} sc1
    s_mov_b64 exec, -1
    Lt1_nz:
    ''')
    if X.get('pf') == 3:
        a(f's_cmp_ge_u32 s{sH}, 21\ns_cbranch_scc1 Lt1_npf')
        prefetch(4, 588)
        a.label('Lt1_npf')
    if X.get('nowork'): a('s_waitcnt vmcnt(0)\ns_endpgm')
    if X.get('only0'): a(f's_waitcnt vmcnt(0)\ns_cmp_lt_u32 s{sH}, 21\ns_cbranch_scc1 L_t1e')
    a(f'''
    v_and_b32 v{vLane}, 63, v0
    v_and_b32 v{vN}, 15, v0
    v_lshrrev_b32 v{vG}, 4, v{vLane}
    v_lshlrev_b32 v{vLin}, 4, v{vLane}
    s_sub_u32 s{sB}, s{sGrp}, 5
    s_sub_u32 s{sA}, s{sH}, {NB1}
    s_and_b32 s{sBlk}, s{sA}, 1
    s_add_u32 s{sBlk}, s{sBlk}, 2
    s_lshr_b32 s{sA}, s{sA}, 1
    s_cmp_lt_u32 s{sH}, {NB1}
    s_cselect_b32 s{sBlk}, 1, s{sBlk}
    s_cselect_b32 s{sA}, s{sH}, s{sA}
    s_cselect_b32 s{sStep}, {NB1}, {(32-NB1)//2}
    s_mul_i32 s{sTile}, s{sB}, s{sStep}
    s_add_u32 s{sTile}, s{sTile}, s{sA}
    s_mul_i32 s{sStep}, s{sStep}, 3
    s_lshl_b32 s{sA}, s{sGrp}, 5
    s_add_u32 s{sA}, s{sA}, s{sH}
    s_sub_u32 s{sA}, s{sA}, 32
    s_cmp_lt_u32 s{sGrp}, 5
    s_cselect_b32 s{sBlk}, 0, s{sBlk}
    s_cselect_b32 s{sTile}, s{sA}, s{sTile}
    s_cselect_b32 s{sStep}, 128, s{sStep}
    ; W prefetch rows: 32*((4*(blk-1)+w)&15) + lane%32
    s_lshl_b32 s{sA}, s{sBlk}, 2
    s_add_u32 s{sA}, s{sA}, s{sW}
    s_and_b32 s{sA}, s{sA}, 7
    s_lshl_b32 s{sA}, s{sA}, 6
    v_add_u32 v{vPr}, s{sA}, v{vLane}
    ; DMA lane: row = l/4 + 128w ; chunk = (l%4) ^ (2*bit5)
    v_lshrrev_b32 v{vRow}, 2, v{vLane}
    s_lshl_b32 s{sA}, s{sW}, 7
    v_add_u32 v{vRow}, s{sA}, v{vRow}
    v_lshrrev_b32 v{vCh}, 4, v{vLane}
    v_and_b32 v{vCh}, 2, v{vCh}
    v_xor_b32 v{vCh}, v{vCh}, v{vLane}
    v_and_b32 v{vCh}, 3, v{vCh}
    v_lshlrev_b32 v{vCh}, 4, v{vCh}
    s_mov_b32 s{sBuf}, 0
    ''')
    def wsrc(tag, tile):
        a(f'''
        s_cmp_ge_u32 s{tile}, 192
        s_cbranch_scc1 Lt1_{tag}_gu
        s_lshr_b32 s{sA}, s{tile}, 6
        s_cmp_eq_u32 s{sA}, {X.get('vf', 0)}
        s_cselect_b64 {sp(sW0)}, {sp(sWk)}, {sp(sWv)}
        s_cmp_eq_u32 s{sA}, 2
        s_cselect_b64 {sp(sW0)}, {sp(sWq)}, {sp(sW0)}
        s_and_b32 s{sA}, s{tile}, 63
        s_lshl_b32 s{sA}, s{sA}, 7
        s_add_u32 s{sW0}, s{sW0}, s{sA}
        s_addc_u32 s{sW0+1}, s{sW0+1}, 0
        s_add_u32 s{sW1}, s{sW0}, 64
        s_addc_u32 s{sW1+1}, s{sW0+1}, 0
        s_mov_b32 s{sStr}, 8192
        s_branch Lt1_{tag}_e
        Lt1_{tag}_gu:
        s_min_u32 s{sA}, s{tile}, 234
        s_sub_u32 s{sA}, s{sA}, 192
        s_lshl_b32 s{sA}, s{sA}, 6
        s_add_u32 s{sW0}, s{sWg}, s{sA}
        s_addc_u32 s{sW0+1}, s{sWg+1}, 0
        s_add_u32 s{sW1}, s{sWu}, s{sA}
        s_addc_u32 s{sW1+1}, s{sWu+1}, 0
        s_mov_b32 s{sStr}, 2752
        Lt1_{tag}_e:
        v_mad_u32_u24 v{vA}, v{vRow}, s{sStr}, v{vCh}
        s_lshl_b32 s{sStr}, s{sStr}, 4
        ''')
    def dma(i):
        r = [f's_add_u32 m0, s{sM}, {i*1024}', f'global_load_lds_dwordx4 v{vA}, {sp(sW0)}',
             f's_add_u32 m0, s{sM}, {32768+i*1024}', f'global_load_lds_dwordx4 v{vA}, {sp(sW1)}']
        if i < 7: r.append(f'v_add_u32 v{vA}, s{sStr}, v{vA}')
        return r
    a.label('Lt1_job')
    wsrc('p', sTile)
    a(f's_lshl_b32 s{sM}, s{sW}, 13')
    for i in range(8):
        for x in dma(i): a(x)
    a(f'''
    s_lshl_b32 s{sA}, s{sBlk}, 18
    s_lshl_b32 s{sB}, s{sW}, 16
    s_add_u32 s{sA}, s{sA}, s{sB}
    s_add_u32 s{sXb}, s{sX}, s{sA}
    s_addc_u32 s{sXb+1}, s{sX+1}, 0
    s_mul_i32 s{sD}, s{sW}, {XR*1040}
    s_add_u32 s{sD}, s{sD}, 65536
    v_mov_b32 v{vXo}, v{vLin}
    v_mul_u32_u24 v{vXr}, 1040, v{vN}
    v_lshl_add_u32 v{vXr}, v{vG}, 4, v{vXr}
    v_add_u32 v{vXr}, s{sD}, v{vXr}
    ''')
    xt = {}
    def xdma(r):
        a(f's_add_u32 m0, s{sD}, {(r%XR)*1040 - (r%4)*1024}')
        xt[r] = a(f'global_load_lds_dwordx4 v{vXo}, {sp(sXb)} offset:{(r%4)*1024}')
        if r % 4 == 3: a(f'v_add_u32 v{vXo}, 4096, v{vXo}')
    for r in range(XR): xdma(r)
    if X.get('pf') == 2: prefetch()
    if X.get('pf') == 4: pfo()
    nx = XR
    for T in range(4):
        b = (16*T) % XR
        a(f'v_add_u32 v1, {b*1040}, v{vXr}')
        if b + 16 > XR: a(f'v_cmp_le_u32 vcc, {XR-b}, v{vN}\nv_subrev_u32 v2, {XR*1040}, v1\nv_cndmask_b32 v1, v1, v2, vcc')
        a.wvm(xt[16*T+15])
        for ks in range(16): a(f'ds_read_b128 {vr(64*T+4*ks,4,"a")}, v1 offset:{ks*64}')
        if nx < 64:
            a('s_waitcnt lgkmcnt(0)')
            for r in range(nx, min(nx+16, 64)): xdma(r)
            nx = min(nx+16, 64)
    a(f'''
    v_lshlrev_b32 v{vTr}, 9, v{vG}
    v_and_b32 v1, 12, v{vLane}
    v_lshl_add_u32 v{vTr}, v1, 4, v{vTr}
    v_and_b32 v1, 3, v{vLane}
    v_lshl_add_u32 v{vTr}, v1, 3, v{vTr}
    v_and_b32 v1, 1, v{vG}
    v_lshl_add_u32 v{vTr}, v1, 5, v{vTr}
    v_xor_b32 v{vTr+1}, 32, v{vTr}
    ''')
    a(f'''
    v_mov_b32 v{vFo}, {FL_G+1536}
    s_mov_b64 {sp(sFo)}, 0
    v_mov_b32 v{vRa}, 160
    v_mov_b32 v{vRd}, 0x01010101
    s_cmp_lg_u32 s{sW}, 0
    s_cbranch_scc1 Lt1_n0
    global_load_dword v{vRd}, v{vRa}, {sp(sDbg)} sc1
    Lt1_n0:
    s_waitcnt lgkmcnt(0)
    s_barrier
    ''')
    if C.TL:
        a(f's_cmp_ge_u32 s{sBlk}, 4\ns_cbranch_scc1 Lt1_tile')
        C.tl(a, 1, 1, f's{sGrp}')
    a.label('Lt1_tile')
    if X.get('wpf', 1):
        a(f's_lshl_b32 s{sD}, s{sStep}, 1\ns_add_u32 s{sD}, s{sD}, s{sTile}')
        wsrc('f', sD)
        a(f'''
        s_lshr_b32 s{sStr}, s{sStr}, 4
        v_mul_u32_u24 v1, s{sStr}, v{vPr}
        global_load_dword v{vPf}, v1, {sp(sW0)}
        global_load_dword v{vPf}, v1, {sp(sW1)}
        ''')
    a(f's_add_u32 s{sD}, s{sTile}, s{sStep}')
    wsrc('n', sD)
    a(f's_xor_b32 s{sM}, s{sM}, 65536')
    a(f'''
    s_lshr_b32 s{sA}, s{sTile}, 6
    s_cmp_eq_u32 s{sA}, {1-X.get('vf', 0)}
    s_cbranch_scc1 Lt1_mv
    ''')
    def frags(ks):
        return [f'ds_read_b64_tr_b16 {vr(WF+16*(ks%2)+8*hf+4*v+2*q,2)}, v{vTr+v} offset:{hf*32768+ks*2048+q*256}'
                for hf in range(2) for v in range(2) for q in range(2)]
    def flag(n):
        a(f's_waitcnt vmcnt({n})\ns_mov_b64 exec, {sp(sFo)}\nglobal_store_byte v{vFo}, v{vOne}, {sp(sFb)} sc1\ns_mov_b64 exec, -1')
    def mainloop(swap):
        a.nds = 0
        tg = None
        for x in frags(0): tg = a(x)
        for ks in range(16):
            fill = (frags(ks+1) if ks < 15 else [])
            d = (dma(2*ks) + dma(2*ks+1)) if ks < 4 and not X.get('nodma') else []
            a.wds(tg)
            if ks == X.get('fks', 8): flag(16 + 2*X.get('wpf', 1))
            n = 0
            for hf in range(2):
                for v in range(2):
                    for T in range(4):
                        w_ = vr(WF+16*(ks%2)+8*hf+4*v,4); x_ = vr(64*T+4*ks,4,'a'); c = vr(acc(T,hf,v),4)
                        p, q = (w_, x_) if swap else (x_, w_)
                        a(f'{MF} {c}, {p}, {q}, {c if ks else 0}')
                        if fill and n < 8: tg = a(fill.pop(0))
                        elif d:
                            a(d.pop(0))
                            if d and d[0].startswith('global'): a(d.pop(0))
                        n += 1
            assert not fill and not d
        a(f'''
        v_xor_b32 v{vTr}, 0x10000, v{vTr}
        v_xor_b32 v{vTr+1}, 0x10000, v{vTr+1}
        s_waitcnt vmcnt(0)
        v_cmp_ne_u32 vcc, 0x01010101, v{vRd}
        s_cbranch_vccz Lt1_rd{int(swap)}
        ''')
        poll(a, f'Lt1_r{int(swap)}', f'global_load_dword v{vRd}, v{vRa}, {sp(sDbg)} sc1', f'v_cmp_ne_u32 vcc, 0x01010101, v{vRd}', 8)
        a(f'Lt1_rd{int(swap)}:\ns_barrier')
    def kvbase(base):
        a(f'''
        s_lshl_b32 s{sA}, s{sBlk}, 21
        s_lshl_b32 s{sB}, s{sW}, 19
        s_add_u32 s{sA}, s{sA}, s{sB}
        s_and_b32 s{sB}, s{sTile}, 63
        s_lshl_b32 s{sB}, s{sB}, 12
        s_add_u32 s{sA}, s{sA}, s{sB}
        s_add_u32 s{sA}, s{sA}, {base}
        s_add_u32 s{sO0}, s{sWs}, s{sA}
        s_addc_u32 s{sO0+1}, s{sWs+1}, 0
        s_add_u32 s{sO1}, s{sO0}, {C.KST}
        s_addc_u32 s{sO1+1}, s{sO0+1}, 0
        ''')
    def pack(d, c0, c1):
        a(f'v_cvt_pk_bf16_f32 v{d}, v{c0}, v{c0+1}\nv_cvt_pk_bf16_f32 v{d+1}, v{c0+2}, v{c0+3}')
        a(f'v_cvt_pk_bf16_f32 v{d+2}, v{c1}, v{c1+1}\nv_cvt_pk_bf16_f32 v{d+3}, v{c1+2}, v{c1+3}')
    mainloop(True)
    a(f'''
    s_cmp_ge_u32 s{sTile}, 192
    s_cbranch_scc1 Lt1_eg
    s_mov_b32 s{sC}, 0
    s_cmp_lt_u32 s{sTile}, 128
    s_cbranch_scc1 Lt1_ek
    s_mov_b32 s{sC}, {QSCALE}
    ''')
    for r in range(64): a(f'v_mul_f32 v{ACC+r}, s{sC}, v{ACC+r}')
    a(f's_mov_b32 s{sC}, {WS_QX}')
    a.label('Lt1_ek')
    kvbase(f's{sC}')
    i = 0
    for T in range(4):
        for hf in range(2):
            d = PK + 4*(i%4); i += 1
            pack(d, acc(T,hf,0), acc(T,hf,1))
            a(f'global_store_dwordx4 v{vLin}, {vr(d,4)}, {sp(sO1 if T//2 else sO0)} offset:{hf*2048+(T%2)*1024} sc1')
    a('s_branch Lt1_next')
    a.label('Lt1_eg')
    a(f'''
    s_lshl_b32 s{sA}, s{sBlk}, 4
    s_lshl_b32 s{sB}, s{sW}, 2
    s_add_u32 s{sA}, s{sA}, s{sB}
    s_mul_i32 s{sA}, s{sA}, {ACT_T}
    s_sub_u32 s{sB}, s{sTile}, 64
    s_lshl_b32 s{sB}, s{sB}, 10
    s_add_u32 s{sA}, s{sA}, s{sB}
    s_add_u32 s{sA}, s{sA}, {WS_ACT}
    s_add_u32 s{sO0}, s{sWs}, s{sA}
    s_addc_u32 s{sO0+1}, s{sWs+1}, 0
    ''')
    for T in range(4):
        for r in range(8): a(f'v_mul_f32 v{acc(T,0,0)+r}, v{acc(T,0,0)+r}, v{acc(T,1,0)+r}')
        d = PK + 4*T
        pack(d, acc(T,0,0), acc(T,0,1))
        a(f'global_store_dwordx4 v{vLin}, {vr(d,4)}, {sp(sO0)} sc1')
        if T < 3: a(f's_add_u32 s{sO0}, s{sO0}, {ACT_T}\ns_addc_u32 s{sO0+1}, s{sO0+1}, 0')
    a('s_branch Lt1_next')
    a.label('Lt1_mv')
    mainloop(False)
    kvbase(C.WS_V)
    i = 0
    for s_ in range(2):
        for hf in range(2):
            for u in range(2):
                d = PK + 4*(i%4); i += 1
                pack(d, acc(2*s_,hf,u), acc(2*s_+1,hf,u))
                a(f'global_store_dwordx4 v{vLin}, {vr(d,4)}, {sp(sO1 if s_ else sO0)} offset:{hf*2048+u*1024} sc1')
    a.label('Lt1_next')
    a(f'''
    s_lshl_b32 s{sA}, s{sBlk}, 2
    s_add_u32 s{sA}, s{sA}, s{sW}
    s_lshl_b32 s{sB}, s{sTile}, 5
    s_add_u32 s{sB}, s{sB}, s{sA}
    s_add_u32 s{sB}, s{sB}, {FL_G-192*32}
    s_lshl_b32 s{sA}, s{sA}, 3
    s_bfe_u32 s{sC}, s{sTile}, 0x50001
    s_lshl_b32 s{sC}, s{sC}, 8
    s_add_u32 s{sA}, s{sA}, s{sC}
    s_lshr_b32 s{sC}, s{sTile}, 6
    s_lshl_b32 s{sC}, s{sC}, 1
    s_add_u32 s{sA}, s{sA}, s{sC}
    s_and_b32 s{sC}, s{sTile}, 1
    s_add_u32 s{sA}, s{sA}, s{sC}
    s_add_u32 s{sA}, s{sA}, {FL_K}
    s_cmp_ge_u32 s{sTile}, 192
    s_cselect_b32 s{sA}, s{sB}, s{sA}
    v_mov_b32 v{vFo}, s{sA}
    s_mov_b64 {sp(sFo)}, 1
    ''')
    if X.get('ef', 1):
        a(f's_cmp_ge_u32 s{sBlk}, {X.get("ef", 1)}\ns_cbranch_scc1 Lt1_nef\ns_add_u32 s{sA}, s{sTile}, s{sStep}\ns_sub_u32 s{sA}, s{sA}, 128\ns_cmp_ge_u32 s{sA}, s{sStep}\ns_cbranch_scc1 Lt1_nef')
        flag(0)
        a(f's_mov_b64 {sp(sFo)}, 0\nLt1_nef:')
    if C.TL:
        a(f's_cmp_ge_u32 s{sTile}, 128\ns_cbranch_scc1 Lt1_ntl\ns_cmp_ge_u32 s{sBlk}, 2\ns_cbranch_scc1 Lt1_ntl')
        C.tl(a, 2, 1, f's{sGrp}')
        a.label('Lt1_ntl')
    if X.get('slp'): a(f's_cmp_lt_u32 s{sBlk}, {X.get("slb", 4)}\ns_cbranch_scc1 Lt1_nsl\ns_sleep {X["slp"]}\nLt1_nsl:')
    a(f'''
    s_add_u32 s{sTile}, s{sTile}, s{sStep}
    s_cmp_lt_u32 s{sTile}, 235
    s_cbranch_scc1 Lt1_tile
    ''')
    flag(0)
    a(f'''
    s_cmp_lg_u32 s{sBlk}, 0
    s_cbranch_scc1 Lt1_end
    s_and_b32 s{sBlk}, s{sH}, 3
    s_add_u32 s{sBlk}, s{sBlk}, 4
    s_lshl_b32 s{sTile}, s{sGrp}, 3
    s_lshr_b32 s{sA}, s{sH}, 2
    s_add_u32 s{sTile}, s{sTile}, s{sA}
    s_sub_u32 s{sTile}, s{sTile}, 8
    s_mov_b32 s{sStep}, 32
    s_branch Lt1_job
    Lt1_end:
    ''')
    C.tl(a, 3, 1, f's{sGrp}')

def t2(a):
    sT, sHd, sK, sQ, sKM, sO, sFl, sMk, sF2, sV = 44, 45, 46, 48, 50, 52, 54, 56, 64, 66
    vLane, vN, vG, vLin, vKw, vKr, vL2, vNeg = 3, 4, 5, 6, 7, 8, 9, 10
    Q, KX, VX, KM, KT, S, O, P = 16, 48, 80, 112, 128, 144, 176, 240
    DP = 'row_mask:0xf bank_mask:0xf'
    a(f'''
    s_sub_u32 s{sT}, s{sGrp}, {NG3()+1}
    s_lshl_b32 s{sT}, s{sT}, 2
    s_lshr_b32 s{sA}, s{sH}, 3
    s_add_u32 s{sT}, s{sT}, s{sA}
    s_and_b32 s{sHd}, s{sH}, 7
    s_lshl_b32 s{sHd}, s{sHd}, 2
    s_add_u32 s{sHd}, s{sHd}, s{sW}
    s_lshl_b32 s{sA}, s{sW}, 12
    v_lshlrev_b32 v{vKw}, 5, v{vN}
    v_lshl_add_u32 v{vKw}, v{vG}, 3, v{vKw}
    v_add_u32 v{vKw}, s{sA}, v{vKw}
    v_lshlrev_b32 v{vKr}, 3, v{vLane}
    v_add_u32 v{vKr}, s{sA}, v{vKr}
    v_mov_b32 v{vNeg}, 0xff800000
    v_lshlrev_b32 v1, 2, v{vG}
    s_lshl_b32 s{sA}, s{sHd}, 7
    s_add_u32 s{sA}, s{sA}, {WS_FL+FL_P}
    s_add_u32 s{sFl}, s{sWs}, s{sA}
    s_addc_u32 s{sFl+1}, s{sWs+1}, 0
    ''')
    for r in range(4):
        a(f'v_add_u32 v2, {r}, v1\nv_cmp_le_u32 {sp(sMk+2*r)}, v2, v{vN}')
    a(f'''
    s_lshl_b32 s{sA}, s{sHd}, 8
    s_add_u32 s{sA}, s{sA}, {WS_FL+FL_K}
    v_lshl_add_u32 v1, v{vLane}, 2, s{sA}
    v_and_b32 v{Q}, 1, v{vLane}
    v_mul_u32_u24 v{Q}, 0x0101, v{Q}
    v_lshlrev_b32 v{Q}, 16, v{Q}
    s_barrier
    ''')
    poll(a, 'Lt2_w', f'global_load_dword v2, v1, {sp(sWs)} sc1', f'v_or_b32 v2, v2, v{Q}\nv_cmp_ne_u32 vcc, 0x01010101, v2', 32)
    C.tl(a, 4, 1, f's{sGrp}')
    a.label('Lt2_seg')
    a(f'''
    s_lshl_b32 s{sA}, s{sT}, 5
    s_add_u32 s{sA}, s{sA}, s{sHd}
    s_lshl_b32 s{sB}, s{sA}, 13
    s_add_u32 s{sB}, s{sB}, 4096
    s_add_u32 s{sK}, s{sWs}, s{sB}
    s_addc_u32 s{sK+1}, s{sWs+1}, 0
    s_add_u32 s{sQ}, s{sK}, {WS_QX}
    s_addc_u32 s{sQ+1}, s{sK+1}, 0
    s_add_u32 s{sV}, s{sK}, {C.WS_V}
    s_addc_u32 s{sV+1}, s{sK+1}, 0
    s_lshl_b32 s{sB}, s{sA}, 12
    s_add_u32 s{sB}, s{sB}, {WS_KVM}
    s_add_u32 s{sKM}, s{sWs}, s{sB}
    s_addc_u32 s{sKM+1}, s{sWs+1}, 0
    s_lshl_b32 s{sB}, s{sA}, 2
    s_add_u32 s{sB}, s{sB}, {WS_F2}
    s_add_u32 s{sF2}, s{sWs}, s{sB}
    s_addc_u32 s{sF2+1}, s{sWs+1}, 0
    s_mul_i32 s{sB}, s{sT}, {2*ACT_T}
    s_lshl_b32 s{sC}, s{sHd}, 12
    s_add_u32 s{sB}, s{sB}, s{sC}
    s_add_u32 s{sB}, s{sB}, {WS_ACT}
    s_add_u32 s{sO}, s{sWs}, s{sB}
    s_addc_u32 s{sO+1}, s{sWs+1}, 0
    ''')
    a.nvm = 0; tq = {}
    for w in range(4):
        for T in range(2):
            va = vLin; off = w*2048 - 4096
            a(f'global_load_dwordx4 {vr(Q+8*w+4*T,4)}, v{va}, {sp(sQ)} offset:{off+T*1024} sc1')
            tq[w] = a(f'global_load_dwordx4 {vr(KX+8*w+4*T,4)}, v{va}, {sp(sK)} offset:{off+T*1024} sc1')
    for w in range(4):
        for u in range(2):
            va = vLin; off = w*2048 - 4096
            a(f'global_load_dwordx4 {vr(VX+8*w+4*u,4)}, v{va}, {sp(sV)} offset:{off+u*1024} sc1')
    S00, S01, S11, M0, M1 = S, S+4, S+8, S+12, S+16
    for w in range(4):
        a.wvm(tq[w])
        for (d, tk, tq_) in ((S00,0,0),(S01,0,1),(S11,1,1)):
            a(f'{MF} {vr(d,4)}, {vr(KX+8*w+4*tk,4)}, {vr(Q+8*w+4*tq_,4)}, {vr(d,4) if w else 0}')
    for r in range(4):
        a(f'v_cndmask_b32 v{S00+r}, v{vNeg}, v{S00+r}, {sp(sMk+2*r)}')
        a(f'v_cndmask_b32 v{S11+r}, v{vNeg}, v{S11+r}, {sp(sMk+2*r)}')
    mx0, mx1, t0, t1_ = S+20, S+21, S+22, S+23
    a(f'''
    v_max3_f32 v{mx0}, v{S00}, v{S00+1}, v{S00+2}
    v_max_f32 v{mx0}, v{mx0}, v{S00+3}
    v_max3_f32 v{mx1}, v{S01}, v{S01+1}, v{S01+2}
    v_max3_f32 v{mx1}, v{mx1}, v{S01+3}, v{S11}
    v_max3_f32 v{mx1}, v{mx1}, v{S11+1}, v{S11+2}
    v_max_f32 v{mx1}, v{mx1}, v{S11+3}
    s_add_u32 s{sA}, s{sT}, 2
    v_mov_b32 v1, 0
    s_mov_b32 s{sSpin}, 0
    Lt2_p:
    global_load_dword v2, v1, {sp(sFl)} sc1
    s_add_u32 s{sSpin}, s{sSpin}, 1
    s_cmp_gt_u32 s{sSpin}, {WSPIN}
    s_cbranch_scc1 Lt2_go
    s_waitcnt vmcnt(0)
    v_cmp_le_u32 vcc, s{sA}, v2
    s_cbranch_vccnz Lt2_go
    s_sleep 4
    s_branch Lt2_p
    Lt2_go:
    ''')
    for w in range(4): a(f'global_load_dwordx4 {vr(KM+4*w,4)}, v{vLin}, {sp(sKM)} offset:{w*1024} sc1')
    a('s_waitcnt vmcnt(0)')
    for w in range(4):
        for u in range(2): a(f'ds_write_b32 v{vKw}, v{KM+4*w+u} offset:{w*1024+u*512}')
    a('s_waitcnt lgkmcnt(0)')
    for w in range(4):
        for v in range(2): a(f'ds_read_b64_tr_b16 {vr(KT+4*w+2*v,2)}, v{vKr} offset:{w*1024+v*512}')
    a('s_waitcnt lgkmcnt(0)')
    for w in range(4):
        for T, d in ((0,M0),(1,M1)):
            a(f'{MF} {vr(d,4)}, {vr(KT+4*w,4)}, {vr(Q+8*w+4*T,4)}, {vr(d,4) if w else 0}')
    def xred(op, x, y):
        a(f'''
        v_mov_b32 v{t0}, v{x}
        v_mov_b32 v{t1_}, v{y}
        v_permlane16_swap_b32 v{x}, v{t0}
        v_permlane16_swap_b32 v{y}, v{t1_}
        {op} v{x}, v{x}, v{t0}
        {op} v{y}, v{y}, v{t1_}
        v_mov_b32 v{t0}, v{x}
        v_mov_b32 v{t1_}, v{y}
        v_permlane32_swap_b32 v{x}, v{t0}
        v_permlane32_swap_b32 v{y}, v{t1_}
        {op} v{x}, v{x}, v{t0}
        {op} v{y}, v{y}, v{t1_}
        ''')
    a(f'v_max3_f32 v{mx0}, v{mx0}, v{M0}, v{M0+1}\nv_max3_f32 v{mx1}, v{mx1}, v{M1}, v{M1+1}')
    xred('v_max_f32', mx0, mx1)
    e0 = [S00+r for r in range(4)] + [M0, M0+1]; e1 = [S01+r for r in range(8)] + [M1, M1+1]
    for r in e0: a(f'v_sub_f32 v{r}, v{r}, v{mx0}')
    for r in e1: a(f'v_sub_f32 v{r}, v{r}, v{mx1}')
    for r in e0 + e1: a(f'v_exp_f32 v{r}, v{r}')
    P0, P1, Z0, Z1 = P, P+4, P+8, P+12
    a(f'''
    v_cvt_pk_bf16_f32 v{P0}, v{S00}, v{S00+1}
    v_cvt_pk_bf16_f32 v{P0+1}, v{S00+2}, v{S00+3}
    v_mov_b64 {vr(P0+2,2)}, 0
    v_cvt_pk_bf16_f32 v{P1}, v{S01}, v{S01+1}
    v_cvt_pk_bf16_f32 v{P1+1}, v{S01+2}, v{S01+3}
    v_cvt_pk_bf16_f32 v{P1+2}, v{S11}, v{S11+1}
    v_cvt_pk_bf16_f32 v{P1+3}, v{S11+2}, v{S11+3}
    v_cvt_pk_bf16_f32 v{Z0}, v{M0}, v{M0+1}
    v_mov_b32 v{Z0+1}, 0
    v_mov_b32 v{Z0+2}, 0
    v_mov_b32 v{Z0+3}, v{Z0}
    v_cvt_pk_bf16_f32 v{Z1}, v{M1}, v{M1+1}
    v_mov_b32 v{Z1+1}, 0
    v_mov_b32 v{Z1+2}, 0
    v_mov_b32 v{Z1+3}, v{Z1}
    ''')
    oa = lambda T, w, u: O + 32*T + 8*w + 4*u
    for T in range(2):
        for w in range(4):
            for u in range(2):
                a(f'{MF} {vr(oa(T,w,u),4)}, {vr(VX+8*w+4*u,4)}, {vr(P+4*T,4)}, 0')
    for T in range(2):
        for w in range(4):
            for u in range(2):
                a(f'v_mfma_f32_16x16x16_bf16 {vr(oa(T,w,u),4)}, {vr(KM+4*w+2,2)}, {vr(Z0+4*T+2*u,2)}, {vr(oa(T,w,u),4)}')
    for e in (e0, e1):
        for r in e[1:]: a(f'v_add_f32 v{e[0]}, v{e[0]}, v{r}')
    xred('v_add_f32', e0[0], e1[0])
    a(f'v_rcp_f32 v{e0[0]}, v{e0[0]}\nv_rcp_f32 v{e1[0]}, v{e1[0]}')
    for T in range(2):
        l = (e0, e1)[T][0]
        for w in range(4):
            b = oa(T,w,0)
            for r in range(8): a(f'v_mul_f32 v{b+r}, v{b+r}, v{l}')
            for r in range(4): a(f'v_cvt_pk_bf16_f32 v{b+r}, v{b+2*r}, v{b+2*r+1}')
            a(f'global_store_dwordx4 v{vLin}, {vr(b,4)}, {sp(sO)} offset:{w*1024} sc1')
        if T == 0: a(f's_add_u32 s{sO}, s{sO}, {ACT_T}\ns_addc_u32 s{sO+1}, s{sO+1}, 0')
    a(f'''
    v_mov_b32 v2, 1
    s_waitcnt vmcnt(0)
    s_mov_b64 exec, 1
    global_store_dword v1, v2, {sp(sF2)} sc1
    s_mov_b64 exec, -1
    s_add_u32 s{sT}, s{sT}, {4*(7-NG3())}
    s_cmp_lt_u32 s{sT}, 64
    s_cbranch_scc1 Lt2_seg
    ''')

def t3(a):
    sTau, sAo, sAh, sXa, sF2, sOo, sLb, sTm, sRb = 44, 46, 48, 50, 52, 54, 56, 58, 60
    vLane, vN, vG, vLin, vD, vTr, vXo, vFl, vRs, vOo = 3, 4, 5, 6, 7, 8, 9, 10, 11, 12
    AC = 16; GW = 32; XB = 48; HB = 64; OB = 128; R = 108
    a(f'''
    s_lshl_b32 s{sLb}, s{sW}, 15
    ; DMA lane: row = l/2, chunk = l%2 ; row stride 1024
    v_lshrrev_b32 v{vD}, 1, v{vLane}
    v_lshlrev_b32 v{vD}, 10, v{vD}
    v_and_b32 v1, 1, v{vLane}
    v_lshl_add_u32 v{vD}, v1, 4, v{vD}
    s_lshl_b32 s{sA}, s{sH}, 5
    v_add_u32 v{vD}, s{sA}, v{vD}
    v_lshlrev_b32 v{vTr}, 3, v{vLane}
    v_add_u32 v{vTr}, s{sLb}, v{vTr}
    s_lshl_b32 s{sA}, s{sW}, 20
    s_add_u32 s{sTm}, s{sWo}, s{sA}
    s_addc_u32 s{sTm+1}, s{sWo+1}, 0
    s_barrier
    ''')
    for b in range(32):
        a(f's_add_u32 m0, s{sLb}, {b*1024}\nglobal_load_lds_dwordx4 v{vD}, {sp(sTm)}')
        a(f's_add_u32 s{sTm}, s{sTm}, 32768\ns_addc_u32 s{sTm+1}, s{sTm+1}, 0')
    a(f'''
    v_lshlrev_b32 v1, 4, v{vG}
    s_lshl_b32 s{sA}, s{sW}, 8
    v_add_u32 v1, s{sA}, v1
    v_lshl_add_u32 v{vXo}, v{vN}, 10, v1
    ''')
    for k in range(4): a(f'global_load_dwordx4 {vr(GW+4*k,4)}, v1, {sp(sGw)} offset:{64*k}')
    a('s_waitcnt vmcnt(0)')
    for b in range(32):
        for v in range(2): a(f'ds_read_b64_tr_b16 {vr(4*b+2*v,2,"a")}, v{vTr} offset:{b*1024+v*512}')
    a(f'''
    s_mul_i32 s{sRb}, s{sW}, 11
    s_cmp_eq_u32 s{sW}, 3
    s_subb_u32 s{sRb}, s{sRb}, 0
    s_lshl_b32 s{sA}, s{sRb}, 15
    s_add_u32 s{sTm}, s{sWd}, s{sA}
    s_addc_u32 s{sTm+1}, s{sWd+1}, 0
    s_waitcnt lgkmcnt(0)
    ''')
    for b in range(11):
        a(f's_add_u32 m0, s{sLb}, {b*1024}\nglobal_load_lds_dwordx4 v{vD}, {sp(sTm)}')
        if b < 10: a(f's_add_u32 s{sTm}, s{sTm}, 32768\ns_addc_u32 s{sTm+1}, s{sTm+1}, 0')
    a('s_waitcnt vmcnt(0)')
    for b in range(11):
        for v in range(2): a(f'ds_read_b64_tr_b16 {vr(128+4*b+2*v,2,"a")}, v{vTr} offset:{b*1024+v*512}')
    a(f'''
    s_waitcnt lgkmcnt(0)
    s_cmp_lg_u32 s{sW}, 3
    s_cbranch_scc1 Lt3_nz
    ''')
    for r in range(4): a(f'v_accvgpr_write_b32 a{128+r}, 0')
    a(f'''
    Lt3_nz:
    s_sub_u32 s{sTau}, s{sGrp}, 1
    v_and_b32 v{vFl}, 7, v{vLane}
    v_lshlrev_b32 v{vFl}, 2, v{vFl}
    s_lshl_b32 s{sA}, s{sW}, 5
    v_add_u32 v{vFl}, s{sA}, v{vFl}
    s_mul_i32 s{sA}, s{sW}, 3072
    v_add_u32 v{vRs}, s{sA}, v{vLin}
    v_lshlrev_b32 v{vOo}, 10, v{vN}
    v_lshl_add_u32 v{vOo}, v{vG}, 3, v{vOo}
    s_lshl_b32 s{sA}, s{sH}, 5
    v_add_u32 v{vOo}, s{sA}, v{vOo}
    ''')
    a(f'v_add_u32 v1, {WS_FL+FL_G}, v{vLin}\ns_cmp_lg_u32 s{sW}, 0\ns_cbranch_scc1 Lt3_w_b')
    poll(a, 'Lt3_w', f'global_load_dwordx4 {vr(HB,4)}, v1, {sp(sWs)} sc1\nglobal_load_dwordx4 {vr(HB+4,4)}, v1, {sp(sWs)} offset:352 sc1',
         '\n'.join([f'v_and_b32 v{HB}, v{HB}, v{HB+i}' for i in range(1,8)]) + f'\nv_cmp_ne_u32 vcc, 0x01010101, v{HB}', 64)
    a('s_barrier')
    C.tl(a, 4, 1, f's{sGrp}')
    a.label('Lt3_tile')
    a(f'''
    s_mul_i32 s{sA}, s{sTau}, {ACT_T}
    s_add_u32 s{sA}, s{sA}, {WS_ACT+4096}
    s_lshl_b32 s{sB}, s{sW}, 15
    s_add_u32 s{sB}, s{sB}, s{sA}
    s_add_u32 s{sAo}, s{sWs}, s{sB}
    s_addc_u32 s{sAo+1}, s{sWs+1}, 0
    s_lshl_b32 s{sB}, s{sRb}, 10
    s_add_u32 s{sB}, s{sB}, s{sA}
    s_add_u32 s{sB}, s{sB}, {128*1024}
    s_add_u32 s{sAh}, s{sWs}, s{sB}
    s_addc_u32 s{sAh+1}, s{sWs+1}, 0
    s_lshl_b32 s{sA}, s{sTau}, 14
    s_add_u32 s{sXa}, s{sX}, s{sA}
    s_addc_u32 s{sXa+1}, s{sX+1}, 0
    s_add_u32 s{sOo}, s{sOut}, s{sA}
    s_addc_u32 s{sOo+1}, s{sOut+1}, 0
    s_lshr_b32 s{sA}, s{sTau}, 1
    s_lshl_b32 s{sA}, s{sA}, 7
    s_add_u32 s{sA}, s{sA}, {WS_F2}
    s_add_u32 s{sF2}, s{sWs}, s{sA}
    s_addc_u32 s{sF2+1}, s{sWs+1}, 0
    ''')
    for k in range(4): a(f'global_load_dwordx4 {vr(XB+4*k,4)}, v{vXo}, {sp(sXa)} offset:{64*k}')
    for b in range(11):
        if b == 8: a(f's_add_u32 s{sAh}, s{sAh}, 8192\ns_addc_u32 s{sAh+1}, s{sAh+1}, 0')
        a(f'global_load_dwordx4 {vr(HB+4*b,4)}, v{vLin}, {sp(sAh)} offset:{(b%8)*1024-4096} sc1')
    a(f'''
    s_mov_b32 s{sSpin}, 0
    Lt3_p:
    global_load_dword v2, v{vFl}, {sp(sF2)} sc1
    s_add_u32 s{sSpin}, s{sSpin}, 1
    s_cmp_gt_u32 s{sSpin}, {WSPIN}
    s_cbranch_scc1 Lt3_go
    s_waitcnt vmcnt(0)
    v_cmp_ne_u32 vcc, 1, v2
    s_cbranch_vccz Lt3_go
    s_sleep 4
    s_branch Lt3_p
    Lt3_go:
    s_waitcnt vmcnt(0)
    ''')
    a.nvm = 0; tg = []
    for b in range(32):
        if b and b % 8 == 0: a(f's_add_u32 s{sAo}, s{sAo}, 8192\ns_addc_u32 s{sAo+1}, s{sAo+1}, 0')
        tg.append(a(f'global_load_dwordx4 {vr(OB+4*b,4)}, v{vLin}, {sp(sAo)} offset:{(b%8)*1024-4096} sc1'))
    for k in range(4): a(f'{MF} {vr(AC+8,4)}, {vr(GW+4*k,4)}, {vr(XB+4*k,4)}, {vr(AC+8,4) if k else 0}')
    for b in range(11): a(f'{MF} {vr(AC+4,4)}, {vr(128+4*b,4,"a")}, {vr(HB+4*b,4)}, {vr(AC+4,4) if b else 0}')
    for b in range(32):
        a.wvm(tg[b])
        a(f'{MF} {vr(AC,4)}, {vr(4*b,4,"a")}, {vr(OB+4*b,4)}, {vr(AC,4) if b else 0}')
    a(f'''
    ds_write_b128 v{vRs}, {vr(AC+4,4)} offset:1024
    ds_write_b128 v{vRs}, {vr(AC+8,4)} offset:2048
    ds_write_b128 v{vRs}, {vr(AC,4)}
    s_waitcnt lgkmcnt(0)
    s_barrier
    s_cmp_lg_u32 s{sW}, 0
    s_cbranch_scc1 Lt3_nx
    ''')
    for w in range(1,4):
        for j in range(3): a(f'ds_read_b128 {vr(HB+12*w+4*j,4)}, v{vRs} offset:{3072*w+1024*j}')
    a('s_waitcnt lgkmcnt(0)')
    for w in range(1,4):
        for r in range(9): a(f'v_add_f32 v{AC+r}, v{AC+r}, v{HB+12*w+r}')
    g = AC+8
    a(f'''
    v_mul_f32 v{g}, {f32(-math.log2(math.e))}, v{g}
    v_exp_f32 v{g}, v{g}
    v_add_f32 v{g}, 1.0, v{g}
    v_rcp_f32 v{g}, v{g}
    v_sub_f32 v{g+1}, 1.0, v{g}
    ''')
    for r in range(4): a(f'v_mul_f32 v{AC+r}, v{AC+r}, v{g}\nv_fmac_f32 v{AC+r}, v{AC+4+r}, v{g+1}')
    a(f'''
    v_cvt_pk_bf16_f32 v{AC}, v{AC}, v{AC+1}
    v_cvt_pk_bf16_f32 v{AC+1}, v{AC+2}, v{AC+3}
    global_store_dwordx2 v{vOo}, {vr(AC,2)}, {sp(sOo)}{X.get('osc','')}
    Lt3_nx:
    v_xor_b32 v{vRs}, 0x4000, v{vRs}
    s_add_u32 s{sTau}, s{sTau}, {NG3()}
    s_cmp_lt_u32 s{sTau}, 128
    s_cbranch_scc1 Lt3_tile
    ''')

def build(name=NAME, **kw):
    a = Asm()
    a.raw(khead(name))
    a(f'''
    s_cmp_ge_u32 s2, 256
    s_cbranch_scc1 L_done
    s_load_dwordx2 {sp(sDbg)}, s[0:1], 104
    s_load_dwordx2 {sp(sMem)}, s[0:1], 8
    s_load_dwordx4 s[8:11], s[0:1], 24
    s_load_dwordx2 {sp(sWq)}, s[0:1], 16
    s_load_dwordx2 {sp(sWo)}, s[0:1], 40
    s_load_dwordx2 {sp(sWs)}, s[0:1], 112
    s_load_dwordx2 {sp(sX)}, s[0:1], 0
    s_load_dwordx8 s[32:39], s[0:1], 64
    s_load_dwordx2 {sp(sOut)}, s[0:1], 96
    s_getreg_b32 s{sXcc}, hwreg(HW_REG_XCC_ID)
    s_and_b32 s{sXcc}, s{sXcc}, 15
    v_lshrrev_b32 v4, 6, v0
    s_lshr_b32 s{sH}, s2, 3
    {f's_xor_b32 s2, s2, s{sH}' if X.get('perm') else ''}
    {f's_xor_b32 s{sH}, s{sH}, {X["hx"]}' if X.get('hx') else ''}
    s_add_u32 s{sGrp}, s2, {8-X.get('cg', 1)}
    s_and_b32 s{sGrp}, s{sGrp}, 7
    v_readfirstlane_b32 s{sW}, v4
    s_waitcnt lgkmcnt(0)
    ''')
    C.tl(a, 0, 1, f's{sGrp}')
    a(f's_cmp_lg_u32 s{sGrp}, 0\ns_cbranch_scc1 L_work')
    C.chain(a, 'c', mega=True, **kw)
    a('s_endpgm')
    a.label('L_work')
    t1(a)
    if X.get('t1only'):
        a.label('L_t1e')
        C.tl(a, 5, 2, f's{sGrp}')
        a('s_endpgm')
    a(f's_cmp_le_u32 s{sGrp}, {NG3()}\ns_cbranch_scc1 L_t3')
    t2(a)
    C.tl(a, 5, 2, f's{sGrp}')
    a('s_endpgm')
    a.label('L_t3')
    t3(a)
    C.tl(a, 5, 2, f's{sGrp}')
    a.label('L_done')
    a('s_endpgm')
    assert a.check_branches() == 0
    return a

if __name__ == '__main__':
    import sys
    kw = eval(sys.argv[2]) if len(sys.argv) > 2 else {}
    C.TL = kw.pop('tl', False)
    X.update(kw.pop('x', {}))
    WS_QX = X.get('qx', 64) << 20
    ref = open('gated_mix__memory_aug_recurrent_mem_tr__glu_gated_bilinear__prompt.s.ref').read().split('\n')
    head = [l for l in ref if l.startswith(';') and '@launch' not in l]
    out = '\n'.join(head) + '\n; @launch grid=(256,1,1) block=(256,1,1) lds=163840\n'
    out += '.amdgcn_target "amdgcn-amd-amdhsa--gfx950"\n.text\n' + build(**kw).text()
    out += '.section .rodata,"a"\n' + kdesc(NAME)
    open(sys.argv[1], 'w').write(out)
```

```python
from asmlib import *
import gen_chain as C
from gen_chain import sp, sMem,sWq,sWk,sWv,sWo,sDbg,sWs,sH,sW,sXcc,QSCALE,WS_KVM,f32,WS_FL,FL_K,FL_G,FL_P
import math
NAME = 'gated_mix__memory_aug_recurrent_mem_tr__glu_gated_bilinear__prompt_kernel'
WS_QX = 64<<20; WS_ACT = 128<<20; ACT_T = 180224; WS_F2 = 63<<20
WSPIN = 60000
WS_IB = 96<<20; FL_X = 24576
def TM(): return X.get('tm', 128)
sGrp = 20; sSpin = 21; sA, sB, sC, sD = 22, 23, 24, 25
sX, sWg, sWu, sWd, sGw, sOut = 30, 32, 34, 36, 38, 40
MF = 'v_mfma_f32_16x16x32_bf16'
X = {}
def NG3(): return X.get('ng3', 4)

def add64(a, d, s, off):
    o = f's{off}' if isinstance(off, str) is False and False else off
    a(f's_add_u32 s{d}, s{s}, {off}\ns_addc_u32 s{d+1}, s{s+1}, 0')

def poll(a, lab, loads, check, sl=8):
    a(f"""
    s_mov_b32 s{sSpin}, 0
    {lab}_p:
    {loads}
    s_add_u32 s{sSpin}, s{sSpin}, 1
    s_cmp_gt_u32 s{sSpin}, {WSPIN}
    s_cbranch_scc1 {lab}_b
    s_waitcnt vmcnt(0)
    {check}
    s_cbranch_vccz {lab}_b
    s_sleep {sl}
    s_branch {lab}_p
    {lab}_b:
    s_waitcnt vmcnt(0)
    """)

class Filt:
    def __init__(s, a): s.__dict__['a'] = a
    def __getattr__(s, k): return getattr(s.a, k)
    def __setattr__(s, k, v): setattr(s.a, k, v)
    def __call__(s, t):
        if t.startswith('global_store_dwordx4 v6'):
            if X.get('nost'): return None
            if X.get('plain'): t = t.replace(' sc1', '')
            if X.get('nt'): t = t.replace(' sc1', ' sc1 nt')
            if X.get('stb'): t = t.replace(' sc1', X['stb'])
        return s.a(t)
def t1(a):
    a = Filt(a)
    sTile, sBuf, sStr, sW0, sW1, sO0, sO1, sBlk, sM, sXb = 44, 45, 46, 48, 50, 52, 54, 56, 57, 58
    sStep, sFo, sFb = 47, 60, 62
    vOne, vFo, vPf, vPr, vRa, vRd, vXr = 14, 15, 7, 128, 129, 130, 131
    XR = 23; NB1 = X.get('nb1', 16)
    ACC = 16; WF = 80; PK = 112
    vLane, vN, vG, vLin, vTr, vRow, vCh, vA, vXo = 3, 4, 5, 6, 8, 10, 11, 12, 13
    acc = lambda T, hf, v: ACC + 16*T + 8*hf + 4*v
    def prefetch(nk=3, st=896):
        a(f'''
        s_sub_u32 s{sA}, s{sGrp}, 1
        s_lshl_b32 s{sB}, s{sH}, 2
        s_add_u32 s{sB}, s{sB}, s{sW}
        s_mul_i32 s{sB}, s{sB}, 7
        s_add_u32 s{sA}, s{sA}, s{sB}
        v_and_b32 v1, 63, v0
        v_lshlrev_b32 v1, 7, v1
        ''')
        for k in range(nk):
            a(f'''
            s_min_u32 s{sA}, s{sA}, 2047
            s_bitcmp1_b32 s{sA}, 9
            s_cselect_b64 {sp(sO0)}, {sp(sWk)}, {sp(sWq)}
            s_cselect_b64 {sp(sO1)}, {sp(sWo)}, {sp(sWv)}
            s_bitcmp1_b32 s{sA}, 10
            s_cselect_b64 {sp(sO0)}, {sp(sO1)}, {sp(sO0)}
            s_and_b32 s{sB}, s{sA}, 511
            s_lshl_b32 s{sB}, s{sB}, 13
            s_add_u32 s{sO0}, s{sO0}, s{sB}
            s_addc_u32 s{sO0+1}, s{sO0+1}, 0
            global_load_dword v{vPf}, v1, {sp(sO0)}{X.get('pfc', '')}
            s_add_u32 s{sA}, s{sA}, {st}
            ''')
    def pfo():
        a(f'''
        s_sub_u32 s{sA}, s{sGrp}, 5
        s_lshl_b32 s{sA}, s{sA}, 7
        s_lshl_b32 s{sB}, s{sH}, 2
        s_add_u32 s{sA}, s{sA}, s{sB}
        s_add_u32 s{sA}, s{sA}, s{sW}
        v_and_b32 v1, 63, v0
        v_lshlrev_b32 v1, 7, v1
        s_cmp_lt_u32 s{sGrp}, 5
        s_cselect_b64 exec, 0, -1
        ''')
        for mat in X.get('pfm', 'o'):
            b_ = dict(q=sWq, k=sWk, v=sWv, o=sWo)[mat]
            for k in range(2):
                a(f'''
                s_add_u32 s{sB}, s{sA}, {384*k}
                s_min_u32 s{sB}, s{sB}, 511
                s_lshl_b32 s{sB}, s{sB}, 13
                s_add_u32 s{sO0}, s{b_}, s{sB}
                s_addc_u32 s{sO0+1}, s{b_+1}, 0
                global_load_dword v{vPf}, v1, {sp(sO0)}
                ''')
        a('s_mov_b64 exec, -1')
    if X.get('pf') == 1: prefetch()
    if X.get('pf') == 5: pfo()
    a(f'''
    s_add_u32 s{sFb}, s{sWs}, {WS_FL}
    s_addc_u32 s{sFb+1}, s{sWs+1}, 0
    v_mov_b32 v{vOne}, 1
    s_cmp_lg_u32 s{sGrp}, 7
    s_cbranch_scc1 Lt1_nz
    s_cmp_gt_u32 s{sH}, 16
    s_cbranch_scc1 Lt1_nz
    s_cmp_eq_u32 s{sH}, 16
    s_cselect_b32 s{sA}, 0, -1
    v_mov_b32 v{PK}, s{sA}
    v_mov_b32 v{PK+1}, s{sA}
    v_mov_b32 v{PK+2}, s{sA}
    v_mov_b32 v{PK+3}, s{sA}
    s_lshl_b32 s{sA}, s{sH}, 15
    s_add_u32 s{sA}, s{sA}, {C.WS_RA}
    s_cmp_eq_u32 s{sH}, 16
    s_cselect_b32 s{sA}, {WS_FL}, s{sA}
    v_lshl_add_u32 v1, v0, 4, s{sA}
    ''')
    for i in range(8):
        a(f'global_store_dwordx4 v1, {vr(PK,4)}, {sp(sWs)} sc1')
        if i < 7: a('v_add_u32 v1, 4096, v1')
    a(f'''
    s_lshl_b32 s{sA}, s{sH}, 10
    s_add_u32 s{sA}, s{sA}, {C.WS_RM}
    v_lshl_add_u32 v1, v0, 2, s{sA}
    global_store_dword v1, v{PK}, {sp(sWs)} sc1
    s_lshl_b32 s{sA}, s{sH}, 2
    s_add_u32 s{sA}, s{sA}, 32
    s_cmp_eq_u32 s{sH}, 16
    s_cselect_b32 s{sA}, 160, s{sA}
    s_add_u32 s{sA}, s{sA}, s{sW}
    v_mov_b32 v1, s{sA}
    s_waitcnt vmcnt(0)
    s_mov_b64 exec, 1
    global_store_byte v1, v{vOne}, {sp(sDbg)} sc1
    s_mov_b64 exec, -1
    Lt1_nz:
    ''')
    if X.get('pf') == 3:
        a(f's_cmp_ge_u32 s{sH}, 21\ns_cbranch_scc1 Lt1_npf')
        prefetch(4, 588)
        a.label('Lt1_npf')
    if X.get('nowork'): a('s_waitcnt vmcnt(0)\ns_endpgm')
    if X.get('only0'): a(f's_waitcnt vmcnt(0)\ns_cmp_lt_u32 s{sH}, 21\ns_cbranch_scc1 L_t1e')
    a(f'''
    v_and_b32 v{vLane}, 63, v0
    v_and_b32 v{vN}, 15, v0
    v_lshrrev_b32 v{vG}, 4, v{vLane}
    v_lshlrev_b32 v{vLin}, 4, v{vLane}
    s_sub_u32 s{sB}, s{sGrp}, 5
    s_sub_u32 s{sA}, s{sH}, {NB1}
    s_and_b32 s{sBlk}, s{sA}, 1
    s_add_u32 s{sBlk}, s{sBlk}, 2
    s_lshr_b32 s{sA}, s{sA}, 1
    s_cmp_lt_u32 s{sH}, {NB1}
    s_cselect_b32 s{sBlk}, 1, s{sBlk}
    s_cselect_b32 s{sA}, s{sH}, s{sA}
    s_cselect_b32 s{sStep}, {NB1}, {(32-NB1)//2}
    s_mul_i32 s{sTile}, s{sB}, s{sStep}
    s_add_u32 s{sTile}, s{sTile}, s{sA}
    s_mul_i32 s{sStep}, s{sStep}, 3
    s_lshl_b32 s{sA}, s{sGrp}, 5
    s_add_u32 s{sA}, s{sA}, s{sH}
    s_sub_u32 s{sA}, s{sA}, 32
    s_cmp_lt_u32 s{sGrp}, 5
    s_cselect_b32 s{sBlk}, 0, s{sBlk}
    s_cselect_b32 s{sTile}, s{sA}, s{sTile}
    s_cselect_b32 s{sStep}, 128, s{sStep}
    ; W prefetch rows: 32*((4*(blk-1)+w)&15) + lane%32
    s_lshl_b32 s{sA}, s{sBlk}, 2
    s_add_u32 s{sA}, s{sA}, s{sW}
    s_and_b32 s{sA}, s{sA}, 7
    s_lshl_b32 s{sA}, s{sA}, 6
    v_add_u32 v{vPr}, s{sA}, v{vLane}
    ; DMA lane: row = l/4 + 128w ; chunk = (l%4) ^ (2*bit5)
    v_lshrrev_b32 v{vRow}, 2, v{vLane}
    s_lshl_b32 s{sA}, s{sW}, 7
    v_add_u32 v{vRow}, s{sA}, v{vRow}
    v_lshrrev_b32 v{vCh}, 4, v{vLane}
    v_and_b32 v{vCh}, 2, v{vCh}
    v_xor_b32 v{vCh}, v{vCh}, v{vLane}
    v_and_b32 v{vCh}, 3, v{vCh}
    v_lshlrev_b32 v{vCh}, 4, v{vCh}
    s_mov_b32 s{sBuf}, 0
    ''')
    def wsrc(tag, tile):
        a(f'''
        s_cmp_ge_u32 s{tile}, 192
        s_cbranch_scc1 Lt1_{tag}_gu
        s_lshr_b32 s{sA}, s{tile}, 6
        s_cmp_eq_u32 s{sA}, {X.get('vf', 0)}
        s_cselect_b64 {sp(sW0)}, {sp(sWk)}, {sp(sWv)}
        s_cmp_eq_u32 s{sA}, 2
        s_cselect_b64 {sp(sW0)}, {sp(sWq)}, {sp(sW0)}
        s_and_b32 s{sA}, s{tile}, 63
        s_lshl_b32 s{sA}, s{sA}, 7
        s_add_u32 s{sW0}, s{sW0}, s{sA}
        s_addc_u32 s{sW0+1}, s{sW0+1}, 0
        s_add_u32 s{sW1}, s{sW0}, 64
        s_addc_u32 s{sW1+1}, s{sW0+1}, 0
        s_mov_b32 s{sStr}, 8192
        s_branch Lt1_{tag}_e
        Lt1_{tag}_gu:
        s_min_u32 s{sA}, s{tile}, 234
        s_sub_u32 s{sA}, s{sA}, 192
        s_lshl_b32 s{sA}, s{sA}, 6
        s_add_u32 s{sW0}, s{sWg}, s{sA}
        s_addc_u32 s{sW0+1}, s{sWg+1}, 0
        s_add_u32 s{sW1}, s{sWu}, s{sA}
        s_addc_u32 s{sW1+1}, s{sWu+1}, 0
        s_mov_b32 s{sStr}, 2752
        Lt1_{tag}_e:
        v_mad_u32_u24 v{vA}, v{vRow}, s{sStr}, v{vCh}
        s_lshl_b32 s{sStr}, s{sStr}, 4
        ''')
    def dma(i):
        r = [f's_add_u32 m0, s{sM}, {i*1024}', f'global_load_lds_dwordx4 v{vA}, {sp(sW0)}',
             f's_add_u32 m0, s{sM}, {32768+i*1024}', f'global_load_lds_dwordx4 v{vA}, {sp(sW1)}']
        if i < 7: r.append(f'v_add_u32 v{vA}, s{sStr}, v{vA}')
        return r
    a.label('Lt1_job')
    wsrc('p', sTile)
    a(f's_lshl_b32 s{sM}, s{sW}, 13')
    for i in range(8):
        for x in dma(i): a(x)
    a(f'''
    s_lshl_b32 s{sA}, s{sBlk}, 18
    s_lshl_b32 s{sB}, s{sW}, 16
    s_add_u32 s{sA}, s{sA}, s{sB}
    s_add_u32 s{sXb}, s{sX}, s{sA}
    s_addc_u32 s{sXb+1}, s{sX+1}, 0
    s_mul_i32 s{sD}, s{sW}, {XR*1040}
    s_add_u32 s{sD}, s{sD}, 65536
    v_mov_b32 v{vXo}, v{vLin}
    v_mul_u32_u24 v{vXr}, 1040, v{vN}
    v_lshl_add_u32 v{vXr}, v{vG}, 4, v{vXr}
    v_add_u32 v{vXr}, s{sD}, v{vXr}
    ''')
    xt = {}
    def xdma(r):
        a(f's_add_u32 m0, s{sD}, {(r%XR)*1040 - (r%4)*1024}')
        xt[r] = a(f'global_load_lds_dwordx4 v{vXo}, {sp(sXb)} offset:{(r%4)*1024}')
        if r % 4 == 3: a(f'v_add_u32 v{vXo}, 4096, v{vXo}')
    for r in range(XR): xdma(r)
    if X.get('pf') == 2: prefetch()
    if X.get('pf') == 4: pfo()
    nx = XR
    for T in range(4):
        b = (16*T) % XR
        a(f'v_add_u32 v1, {b*1040}, v{vXr}')
        if b + 16 > XR: a(f'v_cmp_le_u32 vcc, {XR-b}, v{vN}\nv_subrev_u32 v2, {XR*1040}, v1\nv_cndmask_b32 v1, v1, v2, vcc')
        a.wvm(xt[16*T+15])
        for ks in range(16): a(f'ds_read_b128 {vr(64*T+4*ks,4,"a")}, v1 offset:{ks*64}')
        if nx < 64:
            a('s_waitcnt lgkmcnt(0)')
            for r in range(nx, min(nx+16, 64)): xdma(r)
            nx = min(nx+16, 64)
    a(f'''
    v_lshlrev_b32 v{vTr}, 9, v{vG}
    v_and_b32 v1, 12, v{vLane}
    v_lshl_add_u32 v{vTr}, v1, 4, v{vTr}
    v_and_b32 v1, 3, v{vLane}
    v_lshl_add_u32 v{vTr}, v1, 3, v{vTr}
    v_and_b32 v1, 1, v{vG}
    v_lshl_add_u32 v{vTr}, v1, 5, v{vTr}
    v_xor_b32 v{vTr+1}, 32, v{vTr}
    ''')
    a(f'''
    v_mov_b32 v{vFo}, {FL_G+1536}
    s_mov_b64 {sp(sFo)}, 0
    v_mov_b32 v{vRa}, 160
    v_mov_b32 v{vRd}, 0x01010101
    s_cmp_lg_u32 s{sW}, 0
    s_cbranch_scc1 Lt1_n0
    global_load_dword v{vRd}, v{vRa}, {sp(sDbg)} sc1
    Lt1_n0:
    s_waitcnt lgkmcnt(0)
    s_barrier
    ''')
    if C.TL:
        a(f's_cmp_ge_u32 s{sBlk}, 4\ns_cbranch_scc1 Lt1_tile')
        C.tl(a, 1, 1, f's{sGrp}')
    a.label('Lt1_tile')
    if X.get('wpf', 1):
        a(f's_lshl_b32 s{sD}, s{sStep}, 1\ns_add_u32 s{sD}, s{sD}, s{sTile}')
        wsrc('f', sD)
        a(f'''
        s_lshr_b32 s{sStr}, s{sStr}, 4
        v_mul_u32_u24 v1, s{sStr}, v{vPr}
        global_load_dword v{vPf}, v1, {sp(sW0)}
        global_load_dword v{vPf}, v1, {sp(sW1)}
        ''')
    a(f's_add_u32 s{sD}, s{sTile}, s{sStep}')
    wsrc('n', sD)
    a(f's_xor_b32 s{sM}, s{sM}, 65536')
    a(f'''
    s_lshr_b32 s{sA}, s{sTile}, 6
    s_cmp_eq_u32 s{sA}, {1-X.get('vf', 0)}
    s_cbranch_scc1 Lt1_mv
    ''')
    def frags(ks):
        return [f'ds_read_b64_tr_b16 {vr(WF+16*(ks%2)+8*hf+4*v+2*q,2)}, v{vTr+v} offset:{hf*32768+ks*2048+q*256}'
                for hf in range(2) for v in range(2) for q in range(2)]
    def flag(n):
        a(f's_waitcnt vmcnt({n})\ns_mov_b64 exec, {sp(sFo)}\nglobal_store_byte v{vFo}, v{vOne}, {sp(sFb)} sc1\ns_mov_b64 exec, -1')
    def mainloop(swap):
        a.nds = 0
        tg = None
        for x in frags(0): tg = a(x)
        for ks in range(16):
            fill = (frags(ks+1) if ks < 15 else [])
            d = (dma(2*ks) + dma(2*ks+1)) if ks < 4 and not X.get('nodma') else []
            a.wds(tg)
            if ks == X.get('fks', 8): flag(16 + 2*X.get('wpf', 1))
            n = 0
            for hf in range(2):
                for v in range(2):
                    for T in range(4):
                        w_ = vr(WF+16*(ks%2)+8*hf+4*v,4); x_ = vr(64*T+4*ks,4,'a'); c = vr(acc(T,hf,v),4)
                        p, q = (w_, x_) if swap else (x_, w_)
                        a(f'{MF} {c}, {p}, {q}, {c if ks else 0}')
                        if fill and n < 8: tg = a(fill.pop(0))
                        elif d:
                            a(d.pop(0))
                            if d and d[0].startswith('global'): a(d.pop(0))
                        n += 1
            assert not fill and not d
        a(f'''
        v_xor_b32 v{vTr}, 0x10000, v{vTr}
        v_xor_b32 v{vTr+1}, 0x10000, v{vTr+1}
        s_waitcnt vmcnt(0)
        v_cmp_ne_u32 vcc, 0x01010101, v{vRd}
        s_cbranch_vccz Lt1_rd{int(swap)}
        ''')
        poll(a, f'Lt1_r{int(swap)}', f'global_load_dword v{vRd}, v{vRa}, {sp(sDbg)} sc1', f'v_cmp_ne_u32 vcc, 0x01010101, v{vRd}', 8)
        a(f'Lt1_rd{int(swap)}:\ns_barrier')
    def kvbase(base):
        a(f'''
        s_lshl_b32 s{sA}, s{sBlk}, 21
        s_lshl_b32 s{sB}, s{sW}, 19
        s_add_u32 s{sA}, s{sA}, s{sB}
        s_and_b32 s{sB}, s{sTile}, 63
        s_lshl_b32 s{sB}, s{sB}, 12
        s_add_u32 s{sA}, s{sA}, s{sB}
        s_add_u32 s{sA}, s{sA}, {base}
        s_add_u32 s{sO0}, s{sWs}, s{sA}
        s_addc_u32 s{sO0+1}, s{sWs+1}, 0
        s_add_u32 s{sO1}, s{sO0}, {C.KST}
        s_addc_u32 s{sO1+1}, s{sO0+1}, 0
        ''')
    def pack(d, c0, c1):
        a(f'v_cvt_pk_bf16_f32 v{d}, v{c0}, v{c0+1}\nv_cvt_pk_bf16_f32 v{d+1}, v{c0+2}, v{c0+3}')
        a(f'v_cvt_pk_bf16_f32 v{d+2}, v{c1}, v{c1+1}\nv_cvt_pk_bf16_f32 v{d+3}, v{c1+2}, v{c1+3}')
    mainloop(True)
    a(f'''
    s_cmp_ge_u32 s{sTile}, 192
    s_cbranch_scc1 Lt1_eg
    s_mov_b32 s{sC}, 0
    s_cmp_lt_u32 s{sTile}, 128
    s_cbranch_scc1 Lt1_ek
    s_mov_b32 s{sC}, {QSCALE}
    ''')
    for r in range(64): a(f'v_mul_f32 v{ACC+r}, s{sC}, v{ACC+r}')
    a(f's_mov_b32 s{sC}, {WS_QX}')
    a.label('Lt1_ek')
    kvbase(f's{sC}')
    i = 0
    for T in range(4):
        for hf in range(2):
            d = PK + 4*(i%4); i += 1
            pack(d, acc(T,hf,0), acc(T,hf,1))
            a(f'global_store_dwordx4 v{vLin}, {vr(d,4)}, {sp(sO1 if T//2 else sO0)} offset:{hf*2048+(T%2)*1024} sc1')
    if TM() < 128:
        a(f'''
        s_cmp_lg_u32 s{sBlk}, 7
        s_cbranch_scc1 Lt1_next
        s_cmp_ge_u32 s{sTile}, 64
        s_cbranch_scc1 Lt1_next
        s_lshl_b32 s{sA}, s{sW}, 18
        s_lshl_b32 s{sB}, s{sTile}, 11
        s_add_u32 s{sA}, s{sA}, s{sB}
        s_add_u32 s{sA}, s{sA}, {WS_KVM+56*131072}
        s_add_u32 s{sO0}, s{sWs}, s{sA}
        s_addc_u32 s{sO0+1}, s{sWs+1}, 0
        s_add_u32 s{sO1}, s{sO0}, 131072
        s_addc_u32 s{sO1+1}, s{sO0+1}, 0
        v_mov_b64 {vr(WF,2)}, -1
        v_mov_b64 {vr(WF+2,2)}, -1
        ''')
        for j in range(4): a(f'global_store_dwordx4 v{vLin}, {vr(WF,4)}, {sp(sO1 if j//2 else sO0)} offset:{(j%2)*1024} sc1')
    a('s_branch Lt1_next')
    a.label('Lt1_eg')
    a(f'''
    s_lshl_b32 s{sA}, s{sBlk}, 4
    s_lshl_b32 s{sB}, s{sW}, 2
    s_add_u32 s{sA}, s{sA}, s{sB}
    s_mul_i32 s{sA}, s{sA}, {ACT_T}
    s_sub_u32 s{sB}, s{sTile}, 64
    s_lshl_b32 s{sB}, s{sB}, 10
    s_add_u32 s{sA}, s{sA}, s{sB}
    s_add_u32 s{sA}, s{sA}, {WS_ACT}
    s_add_u32 s{sO0}, s{sWs}, s{sA}
    s_addc_u32 s{sO0+1}, s{sWs+1}, 0
    ''')
    for T in range(4):
        for r in range(8): a(f'v_mul_f32 v{acc(T,0,0)+r}, v{acc(T,0,0)+r}, v{acc(T,1,0)+r}')
        d = PK + 4*T
        pack(d, acc(T,0,0), acc(T,0,1))
        a(f'global_store_dwordx4 v{vLin}, {vr(d,4)}, {sp(sO0)} sc1')
        if T < 3: a(f's_add_u32 s{sO0}, s{sO0}, {ACT_T}\ns_addc_u32 s{sO0+1}, s{sO0+1}, 0')
    a('s_branch Lt1_next')
    a.label('Lt1_mv')
    mainloop(False)
    kvbase(C.WS_V)
    i = 0
    for s_ in range(2):
        for hf in range(2):
            for u in range(2):
                d = PK + 4*(i%4); i += 1
                pack(d, acc(2*s_,hf,u), acc(2*s_+1,hf,u))
                a(f'global_store_dwordx4 v{vLin}, {vr(d,4)}, {sp(sO1 if s_ else sO0)} offset:{hf*2048+u*1024} sc1')
    a.label('Lt1_next')
    a(f'''
    s_lshl_b32 s{sA}, s{sBlk}, 2
    s_add_u32 s{sA}, s{sA}, s{sW}
    s_lshl_b32 s{sB}, s{sTile}, 5
    s_add_u32 s{sB}, s{sB}, s{sA}
    s_add_u32 s{sB}, s{sB}, {FL_G-192*32}
    s_lshl_b32 s{sA}, s{sA}, 3
    s_bfe_u32 s{sC}, s{sTile}, 0x50001
    s_lshl_b32 s{sC}, s{sC}, 8
    s_add_u32 s{sA}, s{sA}, s{sC}
    s_lshr_b32 s{sC}, s{sTile}, 6
    s_lshl_b32 s{sC}, s{sC}, 1
    s_add_u32 s{sA}, s{sA}, s{sC}
    s_and_b32 s{sC}, s{sTile}, 1
    s_add_u32 s{sA}, s{sA}, s{sC}
    s_add_u32 s{sA}, s{sA}, {FL_K}
    s_cmp_ge_u32 s{sTile}, 192
    s_cselect_b32 s{sA}, s{sB}, s{sA}
    v_mov_b32 v{vFo}, s{sA}
    s_mov_b64 {sp(sFo)}, 1
    ''')
    if X.get('ef', 1):
        a(f's_cmp_ge_u32 s{sBlk}, {X.get("ef", 1)}\ns_cbranch_scc1 Lt1_nef\ns_add_u32 s{sA}, s{sTile}, s{sStep}\ns_sub_u32 s{sA}, s{sA}, 128\ns_cmp_ge_u32 s{sA}, s{sStep}\ns_cbranch_scc1 Lt1_nef')
        flag(0)
        a(f's_mov_b64 {sp(sFo)}, 0\nLt1_nef:')
    if C.TL:
        a(f's_cmp_ge_u32 s{sTile}, 128\ns_cbranch_scc1 Lt1_ntl\ns_cmp_ge_u32 s{sBlk}, 2\ns_cbranch_scc1 Lt1_ntl')
        C.tl(a, 2, 1, f's{sGrp}')
        a.label('Lt1_ntl')
    if X.get('slp'): a(f's_cmp_lt_u32 s{sBlk}, {X.get("slb", 4)}\ns_cbranch_scc1 Lt1_nsl\ns_sleep {X["slp"]}\nLt1_nsl:')
    a(f'''
    s_add_u32 s{sTile}, s{sTile}, s{sStep}
    s_cmp_lt_u32 s{sTile}, 235
    s_cbranch_scc1 Lt1_tile
    ''')
    flag(0)
    a(f'''
    s_cmp_lg_u32 s{sBlk}, 0
    s_cbranch_scc1 Lt1_end
    s_and_b32 s{sBlk}, s{sH}, 3
    s_add_u32 s{sBlk}, s{sBlk}, 4
    s_lshl_b32 s{sTile}, s{sGrp}, 3
    s_lshr_b32 s{sA}, s{sH}, 2
    s_add_u32 s{sTile}, s{sTile}, s{sA}
    s_sub_u32 s{sTile}, s{sTile}, 8
    s_mov_b32 s{sStep}, 32
    s_branch Lt1_job
    Lt1_end:
    ''')
    C.tl(a, 3, 1, f's{sGrp}')

def t2(a):
    sT, sHd, sK, sQ, sKM, sO, sFl, sMk, sF2, sV = 44, 45, 46, 48, 50, 52, 54, 56, 64, 66
    vLane, vN, vG, vLin, vKw, vKr, vL2, vNeg = 3, 4, 5, 6, 7, 8, 9, 10
    Q, KX, VX, KM, KT, S, O, P = 16, 48, 80, 112, 128, 144, 176, 240
    DP = 'row_mask:0xf bank_mask:0xf'
    a(f'''
    s_sub_u32 s{sT}, s{sGrp}, {NG3()+1}
    s_lshl_b32 s{sT}, s{sT}, 2
    s_lshr_b32 s{sA}, s{sH}, 3
    s_add_u32 s{sT}, s{sT}, s{sA}
    s_and_b32 s{sHd}, s{sH}, 7
    s_lshl_b32 s{sHd}, s{sHd}, 2
    s_add_u32 s{sHd}, s{sHd}, s{sW}
    s_lshl_b32 s{sA}, s{sW}, 12
    v_lshlrev_b32 v{vKw}, 5, v{vN}
    v_lshl_add_u32 v{vKw}, v{vG}, 3, v{vKw}
    v_add_u32 v{vKw}, s{sA}, v{vKw}
    v_lshlrev_b32 v{vKr}, 3, v{vLane}
    v_add_u32 v{vKr}, s{sA}, v{vKr}
    v_mov_b32 v{vNeg}, 0xff800000
    v_lshlrev_b32 v1, 2, v{vG}
    s_lshl_b32 s{sA}, s{sHd}, 7
    s_add_u32 s{sA}, s{sA}, {WS_FL+FL_P}
    s_add_u32 s{sFl}, s{sWs}, s{sA}
    s_addc_u32 s{sFl+1}, s{sWs+1}, 0
    ''')
    for r in range(4):
        a(f'v_add_u32 v2, {r}, v1\nv_cmp_le_u32 {sp(sMk+2*r)}, v2, v{vN}')
    a(f'''
    s_lshl_b32 s{sA}, s{sHd}, 8
    s_add_u32 s{sA}, s{sA}, {WS_FL+FL_K}
    v_lshl_add_u32 v1, v{vLane}, 2, s{sA}
    v_and_b32 v{Q}, 1, v{vLane}
    v_mul_u32_u24 v{Q}, 0x0101, v{Q}
    v_lshlrev_b32 v{Q}, 16, v{Q}
    s_barrier
    ''')
    poll(a, 'Lt2_w', f'global_load_dword v2, v1, {sp(sWs)} sc1', f'v_or_b32 v2, v2, v{Q}\nv_cmp_ne_u32 vcc, 0x01010101, v2', 32)
    C.tl(a, 4, 1, f's{sGrp}')
    a.label('Lt2_seg')
    a(f'''
    s_lshl_b32 s{sA}, s{sT}, 5
    s_add_u32 s{sA}, s{sA}, s{sHd}
    s_lshl_b32 s{sB}, s{sA}, 13
    s_add_u32 s{sB}, s{sB}, 4096
    s_add_u32 s{sK}, s{sWs}, s{sB}
    s_addc_u32 s{sK+1}, s{sWs+1}, 0
    s_add_u32 s{sQ}, s{sK}, {WS_QX}
    s_addc_u32 s{sQ+1}, s{sK+1}, 0
    s_add_u32 s{sV}, s{sK}, {C.WS_V}
    s_addc_u32 s{sV+1}, s{sK+1}, 0
    s_lshl_b32 s{sB}, s{sA}, 12
    s_add_u32 s{sB}, s{sB}, {WS_KVM}
    s_add_u32 s{sKM}, s{sWs}, s{sB}
    s_addc_u32 s{sKM+1}, s{sWs+1}, 0
    s_lshl_b32 s{sB}, s{sA}, 2
    s_add_u32 s{sB}, s{sB}, {WS_F2}
    s_add_u32 s{sF2}, s{sWs}, s{sB}
    s_addc_u32 s{sF2+1}, s{sWs+1}, 0
    s_mul_i32 s{sB}, s{sT}, {2*ACT_T}
    s_lshl_b32 s{sC}, s{sHd}, 12
    s_add_u32 s{sB}, s{sB}, s{sC}
    s_add_u32 s{sB}, s{sB}, {WS_ACT}
    s_add_u32 s{sO}, s{sWs}, s{sB}
    s_addc_u32 s{sO+1}, s{sWs+1}, 0
    ''')
    a.nvm = 0; tq = {}
    for w in range(4):
        for T in range(2):
            va = vLin; off = w*2048 - 4096
            a(f'global_load_dwordx4 {vr(Q+8*w+4*T,4)}, v{va}, {sp(sQ)} offset:{off+T*1024} sc1')
            tq[w] = a(f'global_load_dwordx4 {vr(KX+8*w+4*T,4)}, v{va}, {sp(sK)} offset:{off+T*1024} sc1')
    for w in range(4):
        for u in range(2):
            va = vLin; off = w*2048 - 4096
            a(f'global_load_dwordx4 {vr(VX+8*w+4*u,4)}, v{va}, {sp(sV)} offset:{off+u*1024} sc1')
    S00, S01, S11, M0, M1 = S, S+4, S+8, S+12, S+16
    for w in range(4):
        a.wvm(tq[w])
        for (d, tk, tq_) in ((S00,0,0),(S01,0,1),(S11,1,1)):
            a(f'{MF} {vr(d,4)}, {vr(KX+8*w+4*tk,4)}, {vr(Q+8*w+4*tq_,4)}, {vr(d,4) if w else 0}')
    for r in range(4):
        a(f'v_cndmask_b32 v{S00+r}, v{vNeg}, v{S00+r}, {sp(sMk+2*r)}')
        a(f'v_cndmask_b32 v{S11+r}, v{vNeg}, v{S11+r}, {sp(sMk+2*r)}')
    mx0, mx1, t0, t1_ = S+20, S+21, S+22, S+23
    a(f'''
    v_max3_f32 v{mx0}, v{S00}, v{S00+1}, v{S00+2}
    v_max_f32 v{mx0}, v{mx0}, v{S00+3}
    v_max3_f32 v{mx1}, v{S01}, v{S01+1}, v{S01+2}
    v_max3_f32 v{mx1}, v{mx1}, v{S01+3}, v{S11}
    v_max3_f32 v{mx1}, v{mx1}, v{S11+1}, v{S11+2}
    v_max_f32 v{mx1}, v{mx1}, v{S11+3}
    s_add_u32 s{sA}, s{sT}, 2
    v_mov_b32 v1, 0
    s_mov_b32 s{sSpin}, 0
    Lt2_p:
    global_load_dword v2, v1, {sp(sFl)} sc1
    s_add_u32 s{sSpin}, s{sSpin}, 1
    s_cmp_gt_u32 s{sSpin}, {WSPIN}
    s_cbranch_scc1 Lt2_go
    s_waitcnt vmcnt(0)
    v_cmp_le_u32 vcc, s{sA}, v2
    s_cbranch_vccnz Lt2_go
    s_sleep 4
    s_branch Lt2_p
    Lt2_go:
    ''')
    for w in range(4): a(f'global_load_dwordx4 {vr(KM+4*w,4)}, v{vLin}, {sp(sKM)} offset:{w*1024} sc1')
    a('s_waitcnt vmcnt(0)')
    for w in range(4):
        for u in range(2): a(f'ds_write_b32 v{vKw}, v{KM+4*w+u} offset:{w*1024+u*512}')
    a('s_waitcnt lgkmcnt(0)')
    for w in range(4):
        for v in range(2): a(f'ds_read_b64_tr_b16 {vr(KT+4*w+2*v,2)}, v{vKr} offset:{w*1024+v*512}')
    a('s_waitcnt lgkmcnt(0)')
    for w in range(4):
        for T, d in ((0,M0),(1,M1)):
            a(f'{MF} {vr(d,4)}, {vr(KT+4*w,4)}, {vr(Q+8*w+4*T,4)}, {vr(d,4) if w else 0}')
    def xred(op, x, y):
        a(f'''
        v_mov_b32 v{t0}, v{x}
        v_mov_b32 v{t1_}, v{y}
        v_permlane16_swap_b32 v{x}, v{t0}
        v_permlane16_swap_b32 v{y}, v{t1_}
        {op} v{x}, v{x}, v{t0}
        {op} v{y}, v{y}, v{t1_}
        v_mov_b32 v{t0}, v{x}
        v_mov_b32 v{t1_}, v{y}
        v_permlane32_swap_b32 v{x}, v{t0}
        v_permlane32_swap_b32 v{y}, v{t1_}
        {op} v{x}, v{x}, v{t0}
        {op} v{y}, v{y}, v{t1_}
        ''')
    a(f'v_max3_f32 v{mx0}, v{mx0}, v{M0}, v{M0+1}\nv_max3_f32 v{mx1}, v{mx1}, v{M1}, v{M1+1}')
    xred('v_max_f32', mx0, mx1)
    e0 = [S00+r for r in range(4)] + [M0, M0+1]; e1 = [S01+r for r in range(8)] + [M1, M1+1]
    for r in e0: a(f'v_sub_f32 v{r}, v{r}, v{mx0}')
    for r in e1: a(f'v_sub_f32 v{r}, v{r}, v{mx1}')
    for r in e0 + e1: a(f'v_exp_f32 v{r}, v{r}')
    P0, P1, Z0, Z1 = P, P+4, P+8, P+12
    a(f'''
    v_cvt_pk_bf16_f32 v{P0}, v{S00}, v{S00+1}
    v_cvt_pk_bf16_f32 v{P0+1}, v{S00+2}, v{S00+3}
    v_mov_b64 {vr(P0+2,2)}, 0
    v_cvt_pk_bf16_f32 v{P1}, v{S01}, v{S01+1}
    v_cvt_pk_bf16_f32 v{P1+1}, v{S01+2}, v{S01+3}
    v_cvt_pk_bf16_f32 v{P1+2}, v{S11}, v{S11+1}
    v_cvt_pk_bf16_f32 v{P1+3}, v{S11+2}, v{S11+3}
    v_cvt_pk_bf16_f32 v{Z0}, v{M0}, v{M0+1}
    v_mov_b32 v{Z0+1}, 0
    v_mov_b32 v{Z0+2}, 0
    v_mov_b32 v{Z0+3}, v{Z0}
    v_cvt_pk_bf16_f32 v{Z1}, v{M1}, v{M1+1}
    v_mov_b32 v{Z1+1}, 0
    v_mov_b32 v{Z1+2}, 0
    v_mov_b32 v{Z1+3}, v{Z1}
    ''')
    oa = lambda T, w, u: O + 32*T + 8*w + 4*u
    for T in range(2):
        for w in range(4):
            for u in range(2):
                a(f'{MF} {vr(oa(T,w,u),4)}, {vr(VX+8*w+4*u,4)}, {vr(P+4*T,4)}, 0')
    for T in range(2):
        for w in range(4):
            for u in range(2):
                a(f'v_mfma_f32_16x16x16_bf16 {vr(oa(T,w,u),4)}, {vr(KM+4*w+2,2)}, {vr(Z0+4*T+2*u,2)}, {vr(oa(T,w,u),4)}')
    for e in (e0, e1):
        for r in e[1:]: a(f'v_add_f32 v{e[0]}, v{e[0]}, v{r}')
    xred('v_add_f32', e0[0], e1[0])
    a(f'v_rcp_f32 v{e0[0]}, v{e0[0]}\nv_rcp_f32 v{e1[0]}, v{e1[0]}')
    for T in range(2):
        l = (e0, e1)[T][0]
        for w in range(4):
            b = oa(T,w,0)
            for r in range(8): a(f'v_mul_f32 v{b+r}, v{b+r}, v{l}')
            for r in range(4): a(f'v_cvt_pk_bf16_f32 v{b+r}, v{b+2*r}, v{b+2*r+1}')
            a(f'global_store_dwordx4 v{vLin}, {vr(b,4)}, {sp(sO)} offset:{w*1024} sc1')
        if T == 0: a(f's_add_u32 s{sO}, s{sO}, {ACT_T}\ns_addc_u32 s{sO+1}, s{sO+1}, 0')
    a(f'''
    v_mov_b32 v2, 1
    s_waitcnt vmcnt(0)
    s_mov_b64 exec, 1
    global_store_dword v1, v2, {sp(sF2)} sc1
    s_mov_b64 exec, -1
    s_add_u32 s{sT}, s{sT}, {4*(7-NG3())}
    s_cmp_lt_u32 s{sT}, {TM()//2}
    s_cbranch_scc1 Lt2_seg
    ''')

def t3(a):
    sTau, sAo, sAh, sXa, sF2, sOo, sLb, sTm, sRb = 44, 46, 48, 50, 52, 54, 56, 58, 60
    vLane, vN, vG, vLin, vD, vTr, vXo, vFl, vRs, vOo = 3, 4, 5, 6, 7, 8, 9, 10, 11, 12
    AC = 16; GW = 32; XB = 48; HB = 64; OB = 128; R = 108
    a(f'''
    s_lshl_b32 s{sLb}, s{sW}, 15
    ; DMA lane: row = l/2, chunk = l%2 ; row stride 1024
    v_lshrrev_b32 v{vD}, 1, v{vLane}
    v_lshlrev_b32 v{vD}, 10, v{vD}
    v_and_b32 v1, 1, v{vLane}
    v_lshl_add_u32 v{vD}, v1, 4, v{vD}
    s_lshl_b32 s{sA}, s{sH}, 5
    v_add_u32 v{vD}, s{sA}, v{vD}
    v_lshlrev_b32 v{vTr}, 3, v{vLane}
    v_add_u32 v{vTr}, s{sLb}, v{vTr}
    s_lshl_b32 s{sA}, s{sW}, 20
    s_add_u32 s{sTm}, s{sWo}, s{sA}
    s_addc_u32 s{sTm+1}, s{sWo+1}, 0
    s_barrier
    ''')
    for b in range(32):
        a(f's_add_u32 m0, s{sLb}, {b*1024}\nglobal_load_lds_dwordx4 v{vD}, {sp(sTm)}')
        a(f's_add_u32 s{sTm}, s{sTm}, 32768\ns_addc_u32 s{sTm+1}, s{sTm+1}, 0')
    a(f'''
    v_lshlrev_b32 v1, 4, v{vG}
    s_lshl_b32 s{sA}, s{sW}, 8
    v_add_u32 v1, s{sA}, v1
    v_lshl_add_u32 v{vXo}, v{vN}, 10, v1
    ''')
    for k in range(4): a(f'global_load_dwordx4 {vr(GW+4*k,4)}, v1, {sp(sGw)} offset:{64*k}')
    a('s_waitcnt vmcnt(0)')
    for b in range(32):
        for v in range(2): a(f'ds_read_b64_tr_b16 {vr(4*b+2*v,2,"a")}, v{vTr} offset:{b*1024+v*512}')
    a(f'''
    s_mul_i32 s{sRb}, s{sW}, 11
    s_cmp_eq_u32 s{sW}, 3
    s_subb_u32 s{sRb}, s{sRb}, 0
    s_lshl_b32 s{sA}, s{sRb}, 15
    s_add_u32 s{sTm}, s{sWd}, s{sA}
    s_addc_u32 s{sTm+1}, s{sWd+1}, 0
    s_waitcnt lgkmcnt(0)
    ''')
    for b in range(11):
        a(f's_add_u32 m0, s{sLb}, {b*1024}\nglobal_load_lds_dwordx4 v{vD}, {sp(sTm)}')
        if b < 10: a(f's_add_u32 s{sTm}, s{sTm}, 32768\ns_addc_u32 s{sTm+1}, s{sTm+1}, 0')
    a('s_waitcnt vmcnt(0)')
    for b in range(11):
        for v in range(2): a(f'ds_read_b64_tr_b16 {vr(128+4*b+2*v,2,"a")}, v{vTr} offset:{b*1024+v*512}')
    a(f'''
    s_waitcnt lgkmcnt(0)
    s_cmp_lg_u32 s{sW}, 3
    s_cbranch_scc1 Lt3_nz
    ''')
    for r in range(4): a(f'v_accvgpr_write_b32 a{128+r}, 0')
    a(f'''
    Lt3_nz:
    s_add_u32 s{sTau}, s{sGrp}, {X.get('rot', 0) - 1}
    s_cmp_ge_u32 s{sTau}, {NG3()}
    s_cselect_b32 s{sA}, {NG3()}, 0
    s_sub_u32 s{sTau}, s{sTau}, s{sA}
    v_and_b32 v{vFl}, 7, v{vLane}
    v_lshlrev_b32 v{vFl}, 2, v{vFl}
    s_lshl_b32 s{sA}, s{sW}, 5
    v_add_u32 v{vFl}, s{sA}, v{vFl}
    s_mul_i32 s{sA}, s{sW}, 3072
    s_add_u32 s{sA}, s{sA}, 131072
    v_add_u32 v{vRs}, s{sA}, v{vLin}
    v_lshlrev_b32 v{vOo}, 10, v{vN}
    v_lshl_add_u32 v{vOo}, v{vG}, 3, v{vOo}
    s_lshl_b32 s{sA}, s{sH}, 5
    v_add_u32 v{vOo}, s{sA}, v{vOo}
    ''')
    vQ, vIn, vNeg, vBr, vO4, vQi, Sel = 108, 116, 127, 13, 14, 15, 28
    vKm, vOw, vPs, vKw = 48, 52, 56, 57
    sIb, sKM, sQ, sK, sV, sFast, sBb, sSl, sT4 = 62, 52, 46, 64, 66, 68, 69, 26, 27
    Q, KX, VX, KM, KT, S0, Mm, O, P, Z, Ls, One = 128, 144, 176, 184, 200, 216, 224, 232, 240, 244, 248, 252
    mx, m2, t0, lx = 228, 229, 230, 231
    G_, Bm = AC+4, AC
    Y = 64; OX = 144; IN = 160; PS = 96; Dr = 24
    L_O = 131072 + 12288
    DP = 'row_mask:0xf bank_mask:0xf'
    T4 = TM() < 128; NS = -(-(128-TM()) // NG3()); PJ = X.get('pj', 1)
    state = [Q+i for i in range(16)] + [O+i for i in range(8)] + [mx, lx, G_] + [Bm+i for i in range(4)]
    park = [f'a{i}' for i in range(172,256)] + [f'v{i}' for i in (112,113,114,115,120,121,122,123,124,125,126)]
    assert NS * len(state) <= len(park)
    def xred(op, x):
        a(f'''
        v_mov_b32 v{t0}, v{x}
        v_permlane16_swap_b32 v{x}, v{t0}
        {op} v{x}, v{x}, v{t0}
        v_mov_b32 v{t0}, v{x}
        v_permlane32_swap_b32 v{x}, v{t0}
        {op} v{x}, v{x}, v{t0}
        ''')
    if T4:
        a(f'''
        s_mul_i32 s{sA}, s{sGrp}, {NS*524288}
        s_add_u32 s{sA}, s{sA}, {WS_IB}
        s_add_u32 s{sIb}, s{sWs}, s{sA}
        s_addc_u32 s{sIb+1}, s{sWs+1}, 0
        s_lshr_b32 s{sA}, s{sH}, 3
        s_lshl_b32 s{sA}, s{sA}, 17
        s_lshl_b32 s{sB}, s{sW}, 15
        s_add_u32 s{sA}, s{sA}, s{sB}
        s_and_b32 s{sB}, s{sH}, 7
        s_lshl_b32 s{sB}, s{sB}, 7
        s_add_u32 s{sA}, s{sA}, s{sB}
        v_lshrrev_b32 v1, 3, v{vLane}
        v_lshl_add_u32 v1, v1, 10, s{sA}
        v_and_b32 v2, 7, v{vLane}
        v_lshl_add_u32 v{vIn}, v2, 4, v1
        v_add_u32 v{vIn+1}, 8192, v{vIn}
        v_add_u32 v{vIn+2}, 16384, v{vIn}
        v_add_u32 v{vIn+3}, 24576, v{vIn}
        s_lshl_b32 s{sA}, s{sH}, 5
        v_subrev_u32 v{vD}, s{sA}, v{vD}
        s_mov_b32 s{sBb}, 0
        s_mov_b32 s{sSl}, 0
        s_lshl_b32 s{sA}, s{sH}, 17
        s_lshl_b32 s{sB}, s{sW}, 8
        s_add_u32 s{sA}, s{sA}, s{sB}
        s_add_u32 s{sTm}, s{sWo}, s{sA}
        s_addc_u32 s{sTm+1}, s{sWo+1}, 0
        s_lshl_b32 s{sA}, s{sW}, 11
        v_add_u32 v{vQ}, s{sA}, v{vLin}
        v_xor_b32 v{vQ+1}, 2048, v{vQ}
        v_xor_b32 v{vQ+2}, 4096, v{vQ}
        v_xor_b32 v{vQ+3}, 6144, v{vQ}
        v_mov_b32 v{vNeg}, 0xff800000
        ; q = (2n+g)%16 ; selector rows 0..7
        v_lshl_add_u32 v1, v{vN}, 1, v{vG}
        v_and_b32 v1, 15, v1
        s_lshl_b32 s{sA}, s{sH}, 5
        s_lshl_b32 s{sB}, s{sW}, 3
        s_add_u32 s{sA}, s{sA}, s{sB}
        v_lshl_add_u32 v{vO4}, v1, 10, s{sA}
        s_lshl_b32 s{sA}, s{sW}, 8
        s_add_u32 s{sA}, s{sA}, 131072
        v_lshl_add_u32 v{vBr}, v1, 4, s{sA}
        v_and_b32 v1, 1, v{vN}
        v_lshlrev_b32 v1, 4, v1
        v_mov_b32 v2, 0x3f80
        v_lshlrev_b32 v1, v1, v2
        v_lshrrev_b32 v2, 1, v{vN}
        ''')
        for i in range(4): a(f'v_cmp_eq_u32 vcc, {i}, v2\nv_cndmask_b32 v{Sel+i}, 0, v1, vcc')
    a(f'v_add_u32 v1, {WS_FL+FL_G}, v{vLin}\ns_cmp_lg_u32 s{sW}, 0\ns_cbranch_scc1 Lt3_w_b')
    if T4:
        a(f'''
        s_lshl_b32 s{sA}, s{sH}, 8
        s_add_u32 s{sA}, s{sA}, {WS_FL+FL_K}
        v_lshl_add_u32 v{HB+9}, v{vLane}, 2, s{sA}
        v_and_b32 v{HB+10}, 1, v{vLane}
        v_mul_u32_u24 v{HB+10}, 0x0101, v{HB+10}
        v_lshlrev_b32 v{HB+10}, 16, v{HB+10}
        ''')
    poll(a, 'Lt3_w', f'global_load_dwordx4 {vr(HB,4)}, v1, {sp(sWs)} sc1\nglobal_load_dwordx4 {vr(HB+4,4)}, v1, {sp(sWs)} offset:352 sc1' + (f'\nglobal_load_dword v{HB+8}, v{HB+9}, {sp(sWs)} sc1' if T4 else ''),
         (f'v_or_b32 v{HB+8}, v{HB+8}, v{HB+10}\n' if T4 else '') + '\n'.join([f'v_and_b32 v{HB}, v{HB}, v{HB+i}' for i in range(1,8+T4)]) + f'\nv_cmp_ne_u32 vcc, 0x01010101, v{HB}', 64)
    a('s_barrier')
    C.tl(a, 4, 1, f's{sGrp}')
    def pre(tau):
        a(f'''
        s_mul_i32 s{sA}, s{tau}, {ACT_T}
        s_lshl_b32 s{sB}, s{sRb}, 10
        s_add_u32 s{sB}, s{sB}, s{sA}
        s_add_u32 s{sB}, s{sB}, {WS_ACT+4096+128*1024}
        s_add_u32 s{sAh}, s{sWs}, s{sB}
        s_addc_u32 s{sAh+1}, s{sWs+1}, 0
        s_lshl_b32 s{sA}, s{tau}, 14
        s_add_u32 s{sXa}, s{sX}, s{sA}
        s_addc_u32 s{sXa+1}, s{sX+1}, 0
        ''')
        for k in range(4): a(f'global_load_dwordx4 {vr(XB+4*k,4)}, v{vXo}, {sp(sXa)} offset:{64*k}')
        for b in range(11):
            if b == 8: a(f's_add_u32 s{sAh}, s{sAh}, 8192\ns_addc_u32 s{sAh+1}, s{sAh+1}, 0')
            th = a(f'global_load_dwordx4 {vr(HB+4*b,4)}, v{vLin}, {sp(sAh)} offset:{(b%8)*1024-4096} sc1')
        return th
    def gb():
        for k in range(4): a(f'{MF} {vr(AC+8,4)}, {vr(GW+4*k,4)}, {vr(XB+4*k,4)}, {vr(AC+8,4) if k else 0}')
        for b in range(11): a(f'{MF} {vr(AC+4,4)}, {vr(128+4*b,4,"a")}, {vr(HB+4*b,4)}, {vr(AC+4,4) if b else 0}')
    def sigm(g):
        a(f'''
        v_mul_f32 v{g}, {f32(-math.log2(math.e))}, v{g}
        v_exp_f32 v{g}, v{g}
        v_add_f32 v{g}, 1.0, v{g}
        v_rcp_f32 v{g}, v{g}
        v_sub_f32 v{g+1}, 1.0, v{g}
        ''')
    a.label('Lt3_tile')
    if T4:
        a(f'''
        s_cmp_lt_u32 s{sTau}, {TM() - NG3()*(NS+PJ)}
        s_cbranch_scc1 Lt3_np
        s_cmp_ge_u32 s{sSl}, {NS}
        s_cbranch_scc1 Lt3_np
        s_add_u32 s{sT4}, s{sTau}, {NG3()*(NS+PJ)}
        s_cmp_ge_u32 s{sT4}, 128
        s_cbranch_scc1 Lt3_pb
        s_lshl_b32 s{sA}, s{sSl}, 19
        s_add_u32 s{sKM}, s{sIb}, s{sA}
        s_addc_u32 s{sKM+1}, s{sIb+1}, 0
        v_mov_b64 {vr(P,2)}, -1
        v_mov_b64 {vr(P+2,2)}, -1
        ''')
        a.nvm = 0; a.nds = 0
        for i in range(4): a(f'global_store_dwordx4 v{vIn+i}, {vr(P,4)}, {sp(sKM)} sc1')
        th = pre(sT4)
        a(f'''
        s_lshr_b32 s{sA}, s{sT4}, 1
        s_lshl_b32 s{sA}, s{sA}, 5
        s_add_u32 s{sA}, s{sA}, s{sH}
        s_lshl_b32 s{sB}, s{sA}, 13
        s_add_u32 s{sK}, s{sWs}, s{sB}
        s_addc_u32 s{sK+1}, s{sWs+1}, 0
        s_and_b32 s{sC}, s{sT4}, 1
        s_lshl_b32 s{sB}, s{sC}, 10
        s_add_u32 s{sB}, s{sB}, {WS_QX}
        s_add_u32 s{sQ}, s{sK}, s{sB}
        s_addc_u32 s{sQ+1}, s{sK+1}, 0
        s_add_u32 s{sV}, s{sK}, {C.WS_V}
        s_addc_u32 s{sV+1}, s{sK+1}, 0
        s_lshl_b32 s{sC}, s{sC}, 4
        v_lshlrev_b32 v1, 2, v{vG}
        v_sub_u32 v{vQi}, v{vN}, v1
        v_add_u32 v{vQi}, s{sC}, v{vQi}
        v_and_b32 v1, 0x4000, v{vRs}
        v_or_b32 v1, v{vBr}, v1
        ''')
        for i in range(4):
            a(f'global_load_dwordx4 {vr(Q+4*i,4)}, v{vQ+i}, {sp(sQ)} sc1')
            for kt in range(2): tk = a(f'global_load_dwordx4 {vr(KX+8*i+4*kt,4)}, v{vQ+i}, {sp(sK)} offset:{1024*kt} sc1')
        for u in range(2): tv = a(f'global_load_dwordx4 {vr(VX+4*u,4)}, v{vQ}, {sp(sV)} offset:{1024*u} sc1')
        a.wvm(th)
        if X.get('iw', 2) == 2:
            for i in range(4): a(f'global_load_dwordx4 {vr(KT+4*i,4)}, v{vIn+i}, {sp(sKM)} sc1')
        gb()
        a(f'''
        ds_write_b32 v{vRs}, v{AC+8} offset:2048
        ds_write_b128 v{vRs}, {vr(AC+4,4)} offset:1024
        ''')
        a.wvm(tk)
        for i in range(4):
            for kt in range(2): a(f'{MF} {vr(S0+4*kt,4)}, {vr(KX+8*i+4*kt,4)}, {vr(Q+4*i,4)}, {vr(S0+4*kt,4) if i else 0}')
        a('s_waitcnt lgkmcnt(0)\ns_barrier')
        for w in range(4):
            a(f'ds_read_b128 {vr(HB+4*w,4)}, v1 offset:{3072*w+1024}\nds_read_b32 v{HB+16+w}, v1 offset:{3072*w+2048}')
        for r in range(8): a(f'v_cmp_le_i32 vcc, {16*(r//4)+r%4}, v{vQi}\nv_cndmask_b32 v{S0+r}, v{vNeg}, v{S0+r}, vcc')
        a(f'''
        v_max3_f32 v{mx}, v{S0}, v{S0+1}, v{S0+2}
        v_max3_f32 v{mx}, v{mx}, v{S0+3}, v{S0+4}
        v_max3_f32 v{mx}, v{mx}, v{S0+5}, v{S0+6}
        v_max_f32 v{mx}, v{mx}, v{S0+7}
        ''')
        xred('v_max_f32', mx)
        for r in range(8): a(f'v_sub_f32 v{S0+r}, v{S0+r}, v{mx}')
        for r in range(8): a(f'v_exp_f32 v{S0+r}, v{S0+r}')
        for r in range(4): a(f'v_cvt_pk_bf16_f32 v{P+r}, v{S0+2*r}, v{S0+2*r+1}')
        a.wvm(tv)
        for u in range(2): a(f'{MF} {vr(O+4*u,4)}, {vr(VX+4*u,4)}, {vr(P,4)}, 0')
        a(f'v_add_f32 v{lx}, v{S0}, v{S0+1}')
        for r in range(2,8): a(f'v_add_f32 v{lx}, v{lx}, v{S0+r}')
        xred('v_add_f32', lx)
        a('s_waitcnt lgkmcnt(0)')
        for r in range(4):
            a(f'v_add_f32 v{Bm+r}, v{HB+r}, v{HB+4+r}\nv_add_f32 v{HB+8+r}, v{HB+8+r}, v{HB+12+r}\nv_add_f32 v{Bm+r}, v{Bm+r}, v{HB+8+r}')
        a(f'''
        v_add_f32 v{G_}, v{HB+16}, v{HB+17}
        v_add_f32 v{G_+1}, v{HB+18}, v{HB+19}
        v_add_f32 v{G_}, v{G_}, v{G_+1}
        ''')
        sigm(G_)
        for r in range(4): a(f'v_mul_f32 v{Bm+r}, v{Bm+r}, v{G_+1}')
        a(f'v_xor_b32 v{vRs}, 0x4000, v{vRs}')
        for k in range(NS):
            if k < NS-1: a(f's_cmp_lg_u32 s{sSl}, {k}\ns_cbranch_scc1 Lt3_pk{k+1}')
            for r, d in zip(state, park[k*len(state):]): a(f'v_accvgpr_write_b32 {d}, v{r}' if d[0] == 'a' else f'v_mov_b32 {d}, v{r}')
            if k < NS-1: a(f's_branch Lt3_pe\nLt3_pk{k+1}:')
        a(f'''
        Lt3_pb:
        s_lshl_b32 s{sA}, s{sGrp}, 6
        s_add_u32 s{sA}, s{sA}, s{sH}
        s_add_u32 s{sA}, s{sA}, {WS_FL+FL_X}
        v_mov_b32 v1, s{sA}
        s_lshl_b32 s{sA}, s{sXcc}, 1
        s_add_u32 s{sA}, s{sA}, 1
        v_mov_b32 v2, s{sA}
        s_cmp_eq_u32 s{sW}, 0
        s_cselect_b64 exec, 1, 0
        global_store_byte v1, v2, {sp(sWs)} sc1
        s_mov_b64 exec, -1
        Lt3_pe:
        s_add_u32 s{sSl}, s{sSl}, 1
        Lt3_np:
        ''')
    def pre2(tau, tag):
        pre(tau)
        a(f'''
        s_lshr_b32 s{sA}, s{tau}, 1
        s_lshl_b32 s{sA}, s{sA}, 7
        s_add_u32 s{sA}, s{sA}, {WS_F2}
        s_add_u32 s{sF2}, s{sWs}, s{sA}
        s_addc_u32 s{sF2+1}, s{sWs+1}, 0
        global_load_dword v2, v{vFl}, {sp(sF2)} sc1
        ''')
        if not T4: return
        if tag == 'd': a(f's_cmp_ge_u32 s{sBb}, 32\ns_cbranch_scc1 Lt3_nd')
        a(f'''
        s_lshl_b32 s{sB}, s{sBb}, 10
        s_add_u32 m0, s{sLb}, s{sB}
        s_and_b32 s{sB}, s{sBb}, 2
        s_xor_b32 s{sB}, s{sB}, s{sW}
        s_lshl_b32 s{sB}, s{sB}, 15
        s_lshr_b32 s{sA}, s{sBb}, 2
        s_lshl_b32 s{sA}, s{sA}, 5
        s_add_u32 s{sA}, s{sA}, s{sB}
        v_add_u32 v1, s{sA}, v{vD}
        global_load_lds_dwordx4 v1, {sp(sTm)}
        s_add_u32 m0, m0, 1024
        v_xor_b32 v1, 0x8000, v1
        global_load_lds_dwordx4 v1, {sp(sTm)}
        s_add_u32 s{sBb}, s{sBb}, 2
        ''')
        assert TM() // NG3() >= 16
    pre2(sTau, 'd')
    a.label('Lt3_nd')
    a(f'''
    s_mul_i32 s{sA}, s{sTau}, {ACT_T}
    s_add_u32 s{sA}, s{sA}, {WS_ACT+4096}
    s_lshl_b32 s{sB}, s{sW}, 15
    s_add_u32 s{sB}, s{sB}, s{sA}
    s_add_u32 s{sAo}, s{sWs}, s{sB}
    s_addc_u32 s{sAo+1}, s{sWs+1}, 0
    s_lshl_b32 s{sA}, s{sTau}, 14
    s_add_u32 s{sOo}, s{sOut}, s{sA}
    s_addc_u32 s{sOo+1}, s{sOut+1}, 0
    s_mov_b32 s{sSpin}, 0
    Lt3_p:
    s_waitcnt vmcnt(0)
    v_cmp_ne_u32 vcc, 1, v2
    s_cbranch_vccz Lt3_go
    s_add_u32 s{sSpin}, s{sSpin}, 1
    s_cmp_gt_u32 s{sSpin}, {WSPIN}
    s_cbranch_scc1 Lt3_go
    s_sleep 4
    global_load_dword v2, v{vFl}, {sp(sF2)} sc1
    s_branch Lt3_p
    Lt3_go:
    ''')
    if C.TL and X.get('cu'):
        a(f's_cmp_eq_u32 s{sSpin}, 0\ns_cbranch_scc1 Lt3_cu\ns_cmp_lt_u32 s{sTau}, 30\ns_cbranch_scc1 Lt3_cu\ns_cmp_eq_u32 s84, s70\ns_cbranch_scc1 Lt3_cu\ns_mov_b32 s84, s70')
        C.tl(a, 3, 1, f's{sGrp}')
        a.label('Lt3_cu')
    a.nvm = 0; tg = []
    for b in range(32):
        if b and b % 8 == 0: a(f's_add_u32 s{sAo}, s{sAo}, 8192\ns_addc_u32 s{sAo+1}, s{sAo+1}, 0')
        tg.append(a(f'global_load_dwordx4 {vr(OB+4*b,4)}, v{vLin}, {sp(sAo)} offset:{(b%8)*1024-4096} sc1'))
    gb()
    def omm():
        for b in range(32):
            a.wvm(tg[b])
            a(f'{MF} {vr(AC,4)}, {vr(4*b,4,"a")}, {vr(OB+4*b,4)}, {vr(AC,4) if b else 0}')
    PP = X.get('pp', 0)
    if PP:
        assert PP <= TM() - NG3()*(NS+PJ) and PP <= 15*NG3()
        a(f's_add_u32 s{sD}, s{sTau}, {NG3()}\ns_cmp_ge_u32 s{sD}, {PP}\ns_cbranch_scc1 Lt3_o2')
        pre2(sD, 'p'); omm()
        a('s_branch Lt3_o3\nLt3_o2:'); a.nvm = 32
    omm()
    a.label('Lt3_o3')
    a(f'''
    ds_write_b128 v{vRs}, {vr(AC+4,4)} offset:1024
    ds_write_b128 v{vRs}, {vr(AC+8,4)} offset:2048
    ds_write_b128 v{vRs}, {vr(AC,4)}
    s_waitcnt lgkmcnt(0)
    s_barrier
    s_cmp_lg_u32 s{sW}, 0
    s_cbranch_scc1 Lt3_nx
    ''')
    for w in range(1,4):
        for j in range(3): a(f'ds_read_b128 {vr(OB+12*w+4*j,4)}, v{vRs} offset:{3072*w+1024*j}')
    a('s_waitcnt lgkmcnt(0)')
    for w in range(1,4):
        for r in range(9): a(f'v_add_f32 v{AC+r}, v{AC+r}, v{OB+12*w+r}')
    g = AC+8
    sigm(g)
    for r in range(4): a(f'v_mul_f32 v{AC+r}, v{AC+r}, v{g}\nv_fmac_f32 v{AC+r}, v{AC+4+r}, v{g+1}')
    a(f'''
    v_cvt_pk_bf16_f32 v{AC}, v{AC}, v{AC+1}
    v_cvt_pk_bf16_f32 v{AC+1}, v{AC+2}, v{AC+3}
    global_store_dwordx2 v{vOo}, {vr(AC,2)}, {sp(sOo)}
    Lt3_nx:
    v_xor_b32 v{vRs}, 0x4000, v{vRs}
    s_add_u32 s{sTau}, s{sTau}, {NG3()}
    s_cmp_lt_u32 s{sTau}, {PP}
    s_cbranch_scc1 Lt3_nd
    s_cmp_lt_u32 s{sTau}, {TM()}
    s_cbranch_scc1 Lt3_tile
    ''')
    if not T4: return
    if C.TL and X.get('t4s'): C.tl(a, 6, 1, f's{sGrp}')
    a(f'''
    s_lshl_b32 s{sA}, s{sGrp}, 6
    s_add_u32 s{sA}, s{sA}, {WS_FL+FL_X}
    v_and_b32 v1, 7, v{vLane}
    v_lshl_add_u32 v1, v1, 2, s{sA}
    global_load_dword v2, v1, {sp(sWs)} sc1
    ''')
    for b in range(32):
        for v in range(2): a(f'ds_read_b64_tr_b16 {vr(4*b+2*v,2,"a")}, v{vTr} offset:{b*1024+v*512}')
    a(f'''
    s_lshl_b32 s{sA}, s{sW}, 10
    v_add_u32 v{vKm}, s{sA}, v{vLin}
    v_add_u32 v{vOw}, {L_O}, v{vKm}
    ''')
    for i in range(1,4): a(f'v_xor_b32 v{vKm+i}, {1024*i}, v{vKm}\nv_xor_b32 v{vOw+i}, {1024*i}, v{vOw}')
    a(f'''
    s_lshl_b32 s{sA}, s{sW}, 17
    s_lshl_b32 s{sB}, s{sH}, 10
    s_add_u32 s{sA}, s{sA}, s{sB}
    v_lshl_add_u32 v{vPs}, v{vG}, 15, s{sA}
    v_lshl_add_u32 v{vPs}, v{vN}, 3, v{vPs}
    v_lshl_add_u32 v{vKw}, v{vN}, 5, s{sLb}
    v_lshl_add_u32 v{vKw}, v{vG}, 3, v{vKw}
    v_mov_b32 v{One}, 0x3f803f80
    v_mov_b32 v{One+1}, 0x3f803f80
    v_mov_b32 v{Z+1}, 0
    v_mov_b32 v{Z+2}, 0
    s_mov_b32 s{sSl}, 0
    s_waitcnt vmcnt(0)
    v_and_b32 v{Q}, 0x01010101, v2
    v_cmp_ne_u32 vcc, 0x01010101, v{Q}
    s_cbranch_vccz Lt4_x_b
    ''')
    poll(a, 'Lt4_x', f'global_load_dword v2, v1, {sp(sWs)} sc1', f'v_and_b32 v{Q}, 0x01010101, v2\nv_cmp_ne_u32 vcc, 0x01010101, v{Q}', 8)
    a(f'''
    s_lshl_b32 s{sA}, s{sXcc}, 1
    s_add_u32 s{sA}, s{sA}, 1
    s_mul_i32 s{sA}, s{sA}, 0x01010101
    v_cmp_ne_u32 vcc, s{sA}, v2
    s_waitcnt lgkmcnt(0)
    s_mov_b32 s{sFast}, vcc_lo
    ''')
    if C.TL and X.get('t4s'): C.tl(a, 7, 1, f's{sGrp}')
    a.label('Lt4_tile')
    if C.TL and X.get('t4s') and not X.get('cu'): C.tl(a, 3, 1, f's{sGrp}')
    a(f'''
    s_lshl_b32 s{sA}, s{sTau}, 14
    s_add_u32 s{sOo}, s{sOut}, s{sA}
    s_addc_u32 s{sOo+1}, s{sOut+1}, 0
    s_lshr_b32 s{sA}, s{sTau}, 1
    s_lshl_b32 s{sA}, s{sA}, 5
    s_add_u32 s{sA}, s{sA}, s{sH}
    s_lshl_b32 s{sB}, s{sA}, 12
    s_add_u32 s{sB}, s{sB}, {WS_KVM}
    s_add_u32 s{sKM}, s{sWs}, s{sB}
    s_addc_u32 s{sKM+1}, s{sWs+1}, 0
    ''')
    if X.get('iw', 2) == 1:
        for i in range(4): a(f'global_load_dwordx4 {vr(IN+4*i,4)}, v{vIn+i}, {sp(sIb)} sc1')
    for i in range(4): a(f'global_load_dwordx4 {vr(KM+4*i,4)}, v{vKm+i}, {sp(sKM)} sc1')
    for k in range(NS):
        if k < NS-1: a(f's_cmp_lg_u32 s{sSl}, {k}\ns_cbranch_scc1 Lt4_pk{k+1}')
        for r, d in zip(state, park[k*len(state):]): a(f'v_accvgpr_read_b32 v{r}, {d}' if d[0] == 'a' else f'v_mov_b32 v{r}, {d}')
        if k < NS-1: a(f's_branch Lt4_pe\nLt4_pk{k+1}:')
    a(f'''
    Lt4_pe:
    s_mov_b32 s{sSpin}, 0
    s_branch Lt4_p
    Lt4_r:
    s_add_u32 s{sSpin}, s{sSpin}, 1
    s_cmp_gt_u32 s{sSpin}, {WSPIN}
    s_cbranch_scc1 Lt4_go
    {f"s_sleep {X.get('ks', 1)}" if X.get('ks', 1) else ''}
    ''')
    for i in range(4): a(f'global_load_dwordx4 {vr(KM+4*i,4)}, v{vKm+i}, {sp(sKM)} sc1')
    a.label('Lt4_p')
    for i in range(4): a(f's_waitcnt vmcnt({3-i})\nds_write2st64_b32 v{vKw}, v{KM+4*i}, v{KM+4*i+1} offset0:{4*i} offset1:{4*i+2}')
    a.nds = 0; tx = []
    for i in range(4):
        for v in range(2): tx.append(a(f'ds_read_b64_tr_b16 {vr(KT+4*i+2*v,2)}, v{vTr} offset:{i*1024+v*512}'))
    a(f'''
    v_max3_u32 v{t0}, v{KM}, v{KM+1}, v{KM+2}
    v_max3_u32 v{t0}, v{t0}, v{KM+3}, v{KM+4}
    v_max3_u32 v{t0}, v{t0}, v{KM+5}, v{KM+8}
    v_max3_u32 v{t0}, v{t0}, v{KM+9}, v{KM+12}
    v_max_u32 v{t0}, v{t0}, v{KM+13}
    v_cmp_eq_u32 vcc, -1, v{t0}
    s_cbranch_vccnz Lt4_r
    Lt4_go:
    ''')
    if C.TL: C.tl(a, 1, 1, f's{sGrp}')
    for i in range(4):
        a.wds(tx[2*i+1])
        a(f'{MF} {vr(Mm,4)}, {vr(KT+4*i,4)}, {vr(Q+4*i,4)}, {vr(Mm,4) if i else 0}')
    a(f'''
    v_max3_f32 v{m2}, v{mx}, v{Mm}, v{Mm+1}
    v_max3_f32 v{t0}, v{mx}, v{Mm}, v{Mm+1}
    v_permlane16_swap_b32 v{m2}, v{t0}
    v_max_f32 v{Mm+2}, v{m2}, v{t0}
    v_max_f32 v{m2}, v{m2}, v{t0}
    v_permlane32_swap_b32 v{m2}, v{Mm+2}
    v_max_f32 v{m2}, v{m2}, v{Mm+2}
    v_sub_f32 v{mx}, v{mx}, v{m2}
    v_sub_f32 v{Mm}, v{Mm}, v{m2}
    v_sub_f32 v{Mm+1}, v{Mm+1}, v{m2}
    v_exp_f32 v{mx}, v{mx}
    v_exp_f32 v{Mm}, v{Mm}
    v_exp_f32 v{Mm+1}, v{Mm+1}
    v_mul_f32 v{Ls}, v{lx}, v{mx}
    v_cvt_pk_bf16_f32 v{Z}, v{Mm}, v{Mm+1}
    v_cvt_pk_bf16_f32 v{Z+3}, v{Mm}, v{Mm+1}
    v_mul_f32 v{O}, v{O}, v{mx}
    v_mul_f32 v{O+1}, v{O+1}, v{mx}
    v_mfma_f32_16x16x16_bf16 {vr(Ls,4)}, {vr(One,2)}, {vr(Z,2)}, {vr(Ls,4)}
    v_mul_f32 v{O+2}, v{O+2}, v{mx}
    v_mul_f32 v{O+3}, v{O+3}, v{mx}
    v_mul_f32 v{O+4}, v{O+4}, v{mx}
    v_mul_f32 v{O+5}, v{O+5}, v{mx}
    v_mfma_f32_16x16x16_bf16 {vr(O,4)}, {vr(KM+2,2)}, {vr(Z,2)}, {vr(O,4)}
    v_mul_f32 v{O+6}, v{O+6}, v{mx}
    v_mul_f32 v{O+7}, v{O+7}, v{mx}
    v_mfma_f32_16x16x16_bf16 {vr(O+4,4)}, {vr(KM+2,2)}, {vr(Z+2,2)}, {vr(O+4,4)}
    v_rcp_f32 v{Ls}, v{Ls}
    ''')
    for r in range(4): a(f'v_mul_f32 v{O+r}, v{O+r}, v{Ls}')
    for r in range(2): a(f'v_cvt_pk_bf16_f32 v{OX+r}, v{O+2*r}, v{O+2*r+1}')
    for r in range(4,8): a(f'v_mul_f32 v{O+r}, v{O+r}, v{Ls}')
    for r in range(2,4): a(f'v_cvt_pk_bf16_f32 v{OX+r}, v{O+2*r}, v{O+2*r+1}')
    a(f'ds_write_b128 v{vOw}, {vr(OX,4)}')
    W_ = lambda c, i: a(f'{MF} {vr(Y+4*c,4)}, {vr(16*c+4*i,4,"a")}, {vr(OX+4*i,4)}, {vr(Y+4*c,4) if i else 0}')
    W_(0,0); W_(1,0)
    a('s_waitcnt lgkmcnt(0)\ns_barrier')
    a.nds = 0; to = [a(f'ds_read_b128 {vr(OX+4*i,4)}, v{vOw+i}') for i in range(1,4)]
    for c in range(2,8): W_(c,0)
    a(f's_cmp_lg_u32 s{sFast}, 0\ns_cbranch_scc1 Lt4_s')
    def wo(sc):
        a.nds = 3
        def st(c): return [f'v_cvt_pk_bf16_f32 v{PS+2*(c%4)}, v{Y+4*c}, v{Y+4*c+1}', f'v_cvt_pk_bf16_f32 v{PS+2*(c%4)+1}, v{Y+4*c+2}, v{Y+4*c+3}',
                           f'global_store_dwordx2 v{vPs}, {vr(PS+2*(c%4),2)}, {sp(sIb)} offset:{128*c}{sc}']
        q_ = []
        for c in range(0,8,2):
            for i in range(1,4):
                if c == 0: a.wds(to[i-1])
                for d in range(2):
                    W_(c+d, i)
                    if q_ and (i > 1 or d): a(q_.pop(0))
                    if q_ and q_[0].startswith('global'): a(q_.pop(0))
            for x_ in q_: a(x_)
            q_ = st(c) + st(c+1)
        for x_ in q_: a(x_)
    wo(''); a('s_branch Lt4_e'); a.label('Lt4_s'); wo(' sc1'); a.label('Lt4_e')
    if C.TL: C.tl(a, 2, 1, f's{sGrp}')
    a.nops(X.get('iz', 0))
    a(f'''
    s_mov_b32 s{sSpin}, 0
    Lt4_i:
    ''')
    for i in range(4): a(f'global_load_dwordx4 {vr(IN+4*i,4)}, v{vIn+i}, {sp(sIb)} sc1')
    a(f's_add_u32 s{sSpin}, s{sSpin}, 1\ns_cmp_gt_u32 s{sSpin}, {WSPIN}\ns_cbranch_scc1 Lt4_f')
    for i in range(4):
        r = IN+4*i
        a(f's_waitcnt vmcnt({3-i})\n{MF} {vr(Dr,4)}, {vr(Sel,4)}, {vr(r,4)}, {vr(Dr,4) if i else 0}')
        a(f'v_max3_u32 v{t0}, v{t0 if i else r}, v{r}, v{r+1}\nv_max3_u32 v{t0}, v{t0}, v{r+2}, v{r+3}')
    a(f'''
    v_cmp_eq_u32 vcc, -1, v{t0}
    s_cbranch_vccnz Lt4_i
    Lt4_f:
    ''')
    for r in range(4): a(f'v_add_f32_dpp v{Dr+r}, v{Dr+r}, v{Dr+r} row_ror:8 {DP}')
    for r in range(4): a(f'v_fma_f32 v{Dr+r}, v{Dr+r}, v{G_}, v{Bm+r}')
    a(f'''
    s_mov_b64 exec, 0x00ff00ff
    v_cvt_pk_bf16_f32 v{Dr}, v{Dr}, v{Dr+1}
    v_cvt_pk_bf16_f32 v{Dr+1}, v{Dr+2}, v{Dr+3}
    global_store_dwordx2 v{vO4}, {vr(Dr,2)}, {sp(sOo)}
    s_mov_b64 exec, -1
    s_waitcnt vmcnt(1)
    s_add_u32 s{sSl}, s{sSl}, 1
    s_add_u32 s{sIb}, s{sIb}, 524288
    s_addc_u32 s{sIb+1}, s{sIb+1}, 0
    s_add_u32 s{sTau}, s{sTau}, {NG3()}
    s_cmp_lt_u32 s{sTau}, 128
    s_cbranch_scc1 Lt4_tile
    ''')

def build(name=NAME, **kw):
    a = Asm()
    a.raw(khead(name))
    a(f'''
    s_cmp_ge_u32 s2, 256
    s_cbranch_scc1 L_done
    s_load_dwordx2 {sp(sDbg)}, s[0:1], 104
    s_load_dwordx2 {sp(sMem)}, s[0:1], 8
    s_load_dwordx4 s[8:11], s[0:1], 24
    s_load_dwordx2 {sp(sWq)}, s[0:1], 16
    s_load_dwordx2 {sp(sWo)}, s[0:1], 40
    s_load_dwordx2 {sp(sWs)}, s[0:1], 112
    s_load_dwordx2 {sp(sX)}, s[0:1], 0
    s_load_dwordx8 s[32:39], s[0:1], 64
    s_load_dwordx2 {sp(sOut)}, s[0:1], 96
    s_getreg_b32 s{sXcc}, hwreg(HW_REG_XCC_ID)
    s_and_b32 s{sXcc}, s{sXcc}, 15
    v_lshrrev_b32 v4, 6, v0
    s_lshr_b32 s{sH}, s2, 3
    {f's_xor_b32 s2, s2, s{sH}' if X.get('perm') else ''}
    {f's_xor_b32 s{sH}, s{sH}, {X["hx"]}' if X.get('hx') else ''}
    s_add_u32 s{sGrp}, s2, {8-X.get('cg', 1)}
    s_and_b32 s{sGrp}, s{sGrp}, 7
    v_readfirstlane_b32 s{sW}, v4
    s_waitcnt lgkmcnt(0)
    ''')
    C.tl(a, 0, 1, f's{sGrp}')
    a(f's_cmp_lg_u32 s{sGrp}, 0\ns_cbranch_scc1 L_work')
    C.chain(a, 'c', mega=True, **kw)
    a('s_endpgm')
    a.label('L_work')
    t1(a)
    if X.get('t1only'):
        a.label('L_t1e')
        C.tl(a, 5, 2, f's{sGrp}')
        a('s_endpgm')
    a(f's_cmp_le_u32 s{sGrp}, {NG3()}\ns_cbranch_scc1 L_t3')
    t2(a)
    C.tl(a, 5, 2, f's{sGrp}')
    a('s_endpgm')
    a.label('L_t3')
    t3(a)
    C.tl(a, 5, 2, f's{sGrp}')
    a.label('L_done')
    a('s_endpgm')
    assert a.check_branches() == 0
    return a

if __name__ == '__main__':
    import sys
    kw = eval(sys.argv[2]) if len(sys.argv) > 2 else {}
    C.TL = kw.pop('tl', False)
    X.update(kw.pop('x', {}))
    WS_QX = X.get('qx', 64) << 20
    ref = open('gated_mix__memory_aug_recurrent_mem_tr__glu_gated_bilinear__prompt.s.ref').read().split('\n')
    head = [l for l in ref if l.startswith(';') and '@launch' not in l]
    out = '\n'.join(head) + '\n; @launch grid=(256,1,1) block=(256,1,1) lds=163840\n'
    out += '.amdgcn_target "amdgcn-amd-amdhsa--gfx950"\n.text\n' + build(**kw).text()
    out += '.section .rodata,"a"\n' + kdesc(NAME)
    open(sys.argv[1], 'w').write(out)
```

```python
from asmlib import *
import struct, math
WS_KV = 0; WS_V = 16<<20; KST = 32*8192; WS_QX = 32<<20; WS_KVM = 48<<20; WS_RA = 60<<20; WS_RM = 61<<20; WS_PROF = 62<<20
WS_OX = 200<<20
RA_SLOT = 128*2048; RM_SLOT = 8192
SLAB = 131072
def f32(x): return struct.unpack('<I', struct.pack('<f', x))[0]
QSCALE = f32(128**-0.5 * math.log2(math.e))

M=0; QV=32; KA=40; KX=48; XO=40; VX=56; S=64; T=96
vIdx,vLin,vKr,vTc,vXw,vXr,vPst,vMst,vLw,vOw,vM0,vM1,HK,_,HV,_2 = range(112,128)
sMem,sWq,sWk,sWv,sWo,sDbg,sWs = 4,6,8,10,12,14,16
sH,sW,sT,sSpin = 18,19,20,21
sTmp=22; sLb=24; sA=25; sB=26; sC=27
sKV=30; sKVM=32; sSt0=34; sSt1=36; sAld=38; sArs=40; sMld=42; sMst=44
sRA=46; sRAo=48; sRMl=50; sRMs=52
sB1=54; sSel=56; sPm=64; sPub=66; sM0kv=68; sQc=69
sFl=28; sXcc=3; sFm=100; sRdy=86; sVer=87; sFK=84; sGot=88; sNx=89
WS_FL = 63<<20; FL_K = 8192; FL_G = 16384; FL_P = 20480
ROLE_LDS = 163832
VERIFY = None
sP=70
SPIN=200000
NL = chr(10)
def sp(x): return f's[{x}:{x+1}]'

LDS_BLK = [('q',0),('q',1),('k',0),('k',6),('k',7),('o',5),('o',6),('o',7)]
NQ = 5
KVS = 2304
L_KV = SLAB+8192; L_MQ = SLAB; L_X = SLAB+28672; L_O = SLAB+26624
REG_BLK = [(m,i) for m in 'qkvo' for i in range(8) if (m,i) not in LDS_BLK]
def dest(b):
    i = REG_BLK.index(b)
    return ('a', 16*i) if i < 16 else ('v', 128 + 16*(i-16))

WS_TL = (62<<20) + 65536
TL = False
TLN = 0
def tl(a, i, v1, role_hi):
    if not TL: return
    if TL == 2:
        ch = (role_hi == 0)
        if i > 5: return
        a(f"""
        s_memrealtime s[90:91]
        s_waitcnt lgkmcnt(0)
        s_mov_b32 s{74+i}, s90
        """)
        if (ch and i == 4) or (not ch and i == 5):
            global TLN
            TLN += 1
            idx = [0,2,3,4] if ch else [0,3,4,5]
            a(f"""
            s_lshl_b32 s97, s{sH}, 2
            s_add_u32 s97, s97, s{sW}
            """)
            if not ch: a(f's_xor_b32 s96, {role_hi}, 5\ns_or_b32 s97, s97, s96')
            a(f's_cmp_lg_u32 s97, 0\ns_cbranch_scc1 Ltl2_{TLN}')
            for k_, j in enumerate(idx): a(f'v_mov_b32 v{v1+4+k_}, s{74+j}')
            a(f"""
            v_mov_b32 v{v1}, {32 if ch else 48}
            s_mov_b64 exec, 1
            global_store_dwordx4 v{v1}, v[{v1+4}:{v1+7}], {sp(sDbg)} sc1
            s_mov_b64 exec, -1
            Ltl2_{TLN}:
            """)
        return
    ch = (role_hi == 0)
    a(f"""
    s_memrealtime s[98:99]
    s_memtime s[90:91]
    s_waitcnt lgkmcnt(0)
    s_mov_b32 s{70+i}, s98
    """)
    if i < 6: a(f's_mov_b32 s{78+i}, s90')
    if (ch and i == 4) or (not ch and i == 5):
        a(f"""
        s_lshl_b32 s97, {role_hi}, 5
        s_add_u32 s97, s97, s{sH}
        s_lshl_b32 s97, s97, 2
        s_add_u32 s97, s97, s{sW}
        s_lshl_b32 s97, s97, 6
        s_add_u32 s97, s97, {WS_TL}
        v_mov_b32 v{v1}, s97
        s_mov_b64 exec, 1
        """)
        for j in range(14): a(f'v_mov_b32 v{v1+1}, s{70+j}\nglobal_store_dword v{v1}, v{v1+1}, {sp(sWs)} offset:{4*j}\ns_nop 1')
        if ch: a(f'v_mov_b32 v{v1+1}, s{sSpin}\nglobal_store_dword v{v1}, v{v1+1}, {sp(sWs)} offset:56\ns_nop 1\nv_mov_b32 v{v1+1}, s94\nglobal_store_dword v{v1}, v{v1+1}, {sp(sWs)} offset:60\ns_nop 1')
        a('s_mov_b64 exec, -1')

def chain(a, tag, sc='', mega=False, prof=False, nsteps=64, preA=56, preB=44, gapA=48, gapB=48, sgq=-3, pKx=12, pB2=5, ntr=2, rdw=1, wx=1, g7=32, stamps=(), wnt=' nt', ont=None, mord='qkv', warm=22, fkb=22, fke=28, arr=10, fst=0, opipe=1, tls=(0,8,16), opt=(), tsc=' sc1', tdist=1, skip=(), ra=0, hp=0, dA=28, dB=28, gL=28, gL2=40, b1=5, b2=1, word=0, n3=1, w4=None, bb=1, psw=0, wo=0, dw=0, mk=1, wB=None, pb1=5, yd=0, ckp=(3,5,7,8), kp=3, qo=0, g0p=8, nvo=0, wsh=0, vmf=0, fc=0, nr0=2, ps=0, pmf=21, pad=23, g56=(18,19,20,26,27,28), ft=0, nc=0, wb=0, vp=None, ox=0, thr=0, thi=0, the=24, ex=0, exc=0, lp=0, lpf=0, hlp=()):
    L = lambda x: f'L{tag}_{x}'
    DIR = True
    stc = (' ' + sc) if sc else ''
    LE = L('end')
    if ont is None: ont = wnt
    if yd and vp is None: vp = 'kv@Q2 d2@Q10 d3@Q13 rm@Q15 d0@Q17 fl@Q19 d1@Q21 tc@Q24 r0@Q27 r1@Q30'
    if vp is None: vp = 'kv@A0 d2@A2 d3@Q0 rm@Q2 d0@Q4 fl@Q6 d1@Q9 tc@Q12 r0@Q16 r1@Q20' if hp else 'kv@P0 d2@A2 d3@A6 rm@Q2 d0@Q4 fl@Q6 d1@Q9 tc@Q12 r0@Q16 r1@Q20'
    if w4: ra = 4; rdw = 1 if dw and mk == 1 else 0
    L_X = SLAB+18432 if ps else SLAB+28672
    L_S = SLAB+28672
    kvnow = any(x_[:2] == 'kv' and x_[3] in 'CW' for x_ in vp.split())
    staged = {}
    def B(m, i, u):
        if (m,i) in staged: return vr(staged[(m,i)] + 8*u, 8)
        k, b = dest((m,i)); return vr(b + 8*u, 8, k)
    def SM(acc, A, m, i, u): a(f'v_smfmac_f32_16x16x64_bf16 {vr(acc,4)}, {vr(A,4)}, {B(m,i,u)}, v{vIdx}')
    def stg(blk, r):
        slot = LDS_BLK.index(blk); staged[blk] = r
        return [f'ds_read_b128 {vr(r+4*i,4)}, v{vLw} offset:{slot*4096+i*1024}' for i in range(4)]
    AK = {}
    def stamp(i):
        if prof and i in stamps: a(f's_memtime {sp(sP+2*stamps.index(i))}')
        if f'ak:{i}' in opt: a.wvm(max(AK['vt'][o_] for o_ in ('d0','d1','tc'))); stamp('ak')

    lane,n_,g_,t1,t2,t3 = T,T+1,T+2,T+3,T+4,T+5
    vWa, vOa = KX+4, T+9
    vTr = VX
    vL4, vFd, vFk = T+6, T+7, KX
    vTo = KX+2
    a(f'''
    v_and_b32 v{lane}, 63, v0
    v_and_b32 v{n_}, 15, v0
    v_lshrrev_b32 v{g_}, 4, v{lane}
    v_lshlrev_b32 v{vLin}, 4, v{lane}
    s_lshl_b32 s{sLb}, s{sW}, 15
    s_mul_i32 s{sA}, s{sW}, {KVS}
    s_add_u32 s{sM0kv}, s{sA}, {L_KV}
    v_add_u32 v{vLw}, s{sLb}, v{vLin}
    ; cooperative qkv DMA: instr i=gb, r'=lane/16, p=lane%16 holds chunk p^(2r'+8gb0) of row 32(w&1)+8(w>>1)+4gb1+gb0+16(r'&1)+2(r'>>1)
    v_and_b32 v{t1}, 1, v{g_}
    v_lshrrev_b32 v{t3}, 1, v{g_}          ; gb1
    v_lshlrev_b32 v{t2}, 1, v{g_}
    v_xor_b32 v{t2}, v{t2}, v{n_}
    v_lshlrev_b32 v{t2}, 4, v{t2}
    v_lshl_add_u32 v{t2}, v{t1}, {13 if dw else 17}, v{t2}
    v_lshl_add_u32 v{t2}, v{t3}, 14, v{t2}
    s_and_b32 s{sA}, s{sW}, 1
    s_lshl_b32 s{sA}, s{sA}, {15 if dw else 18}
    s_lshr_b32 s{sB}, s{sW}, 1
    s_lshl_b32 s{sB}, s{sB}, {18 if dw else 16}
    s_add_u32 s{sA}, s{sA}, s{sB}
    s_lshl_b32 s{sB}, s{sH}, 8
    s_add_u32 s{sA}, s{sA}, s{sB}
    v_add_u32 v{vWa}, s{sA}, v{t2}
    v_xor_b32 v{t2}, 128, v{vWa}
    v_add_u32 v{vWa+1}, {(8 if dw else 1)*8192-1024}, v{t2}
    v_add_u32 v{vWa+2}, {(16 if dw else 4)*8192-2048}, v{vWa}
    v_add_u32 v{vWa+3}, {(24 if dw else 5)*8192-3072}, v{t2}
    ; wo rows: 16*gb0+4*gb1+bit3 ; chunk = (l%8)^(4*gb0)
    v_lshlrev_b32 v{vOa}, 4, v{t1}
    v_lshl_add_u32 v{vOa}, v{t3}, 2, v{vOa}
    v_bfe_u32 v{vTr}, v{lane}, 3, 1
    v_add_u32 v{vOa}, v{vOa}, v{vTr}
    v_lshlrev_b32 v{vTr}, 2, v{t1}
    v_xor_b32 v{vTr}, v{vTr}, v{lane}
    v_and_b32 v{vTr}, 7, v{vTr}
    v_lshlrev_b32 v{vTr}, 4, v{vTr}
    v_lshl_add_u32 v{vOa}, v{vOa}, 10, v{vTr}
    s_lshl_b32 s{sA}, s{sH}, 17
    s_lshl_b32 s{sB}, s{sW}, 8
    s_add_u32 s{sA}, s{sA}, s{sB}
    v_add_u32 v{vOa}, s{sA}, v{vOa}
    ''')
    if ex == 1:
        for J in range(4): a(f'''
        v_add_u32 v{vWa+J}, {1024*J}, v{vWa+J}
        v_lshrrev_b32 v{t2}, 13, v{vWa+J}
        v_and_b32 v{vWa+J}, 255, v{vWa+J}
        v_lshl_add_u32 v{vWa+J}, v{t2}, 8, v{vWa+J}
        s_min_u32 s{sA}, s{sH}, 30
        s_lshl_b32 s{sA}, s{sA}, 17
        s_add_u32 s{sA}, s{sA}, {4096-1024*J}
        v_add_u32 v{vWa+J}, s{sA}, v{vWa+J}
        ''')
    if ex == 2:
        for J in range(4): a(f'v_xor_b32 v{vWa+J}, {256*J}, v{vWa+J}')
    if ex == 3: a(f's_and_b32 s{sA}, s{sH}, 3\ns_cmp_lg_u32 s{sA}, {exc}\ns_cbranch_scc1 L_done')
    if ex == 4: a(f's_and_b32 s{sA}, s{sH}, 16\ns_cmp_lg_u32 s{sA}, {exc}\ns_cbranch_scc1 L_done')
    if ox: a(f'''
    s_add_u32 s{sTmp}, s{sWs}, {WS_OX-256}
    s_addc_u32 s{sTmp+1}, s{sWs+1}, 0
    s_cmp_eq_u32 s{sW}, 1
    s_cselect_b64 {sp(sWo)}, {sp(sTmp)}, {sp(sWo)}
    s_cselect_b32 s{sNx}, 256, 0
    ''')
    def dma(bi):
        slot = bi % 8; tg = None
        if bi < 24:
            base = {'q': sWq, 'k': sWk, 'v': sWv}[mord[bi//8]]
            a(f's_add_u32 s{sTmp}, s{base}, {slot<<(14 if ex == 1 else 19)}\ns_addc_u32 s{sTmp+1}, s{base+1}, 0\ns_add_u32 m0, s{sLb}, {slot*4096}')
            for J in range(4): tg = a(f'global_load_lds_dwordx4 v{vWa+J}, {sp(sTmp)} offset:{J*1024}{wnt}')
            return tg
        i = slot
        a(f's_xor_b32 s{sA}, s{sW}, {i//2}\ns_lshl_b32 s{sA}, s{sA}, 15')
        if ox: a(f's_mul_i32 s{sB}, s{sNx}, {(0,2,3,0)[i//2] if ox == 1 else 1}\ns_add_u32 s{sA}, s{sA}, s{sB}')
        for J in range(4):
            off = (i%2)*128 + (8*(J>>1) + 2*(J&1))*1024
            a(f's_add_u32 s{sB}, s{sA}, {off}\ns_add_u32 s{sTmp}, s{sWo}, s{sB}\ns_addc_u32 s{sTmp+1}, s{sWo+1}, 0')
            a(f's_add_u32 m0, s{sLb}, {slot*4096+J*1024}')
            tg = a(f'global_load_lds_dwordx4 v{vOa}, {sp(sTmp)}{ont}')
        return tg
    vPq, vPo, vPd = QV, QV+1, QV+2
    if lp: a(f'''
    s_lshr_b32 s{sA}, s{sW}, 1
    s_lshl_b32 s{sA}, s{sA}, 19
    s_and_b32 s{sB}, s{sW}, 1
    s_lshl_b32 s{sB}, s{sB}, 7
    s_add_u32 s{sA}, s{sA}, s{sB}
    s_lshl_b32 s{sB}, s{sH}, 8
    s_add_u32 s{sA}, s{sA}, s{sB}
    v_lshl_add_u32 v{vPq}, v{lane}, 13, s{sA}
    s_lshl_b32 s{sA}, s{sH}, 17
    s_lshl_b32 s{sB}, s{sW}, 8
    s_add_u32 s{sA}, s{sA}, s{sB}
    v_lshrrev_b32 v{vPo}, 1, v{lane}
    v_lshlrev_b32 v{vPo}, 10, v{vPo}
    v_and_b32 v{vPd}, 1, v{lane}
    v_lshl_add_u32 v{vPo}, v{vPd}, 7, v{vPo}
    v_add_u32 v{vPo}, s{sA}, v{vPo}
    ''')
    vH = QV+4
    if hlp:
        a(f'''
        s_and_b32 s{sA}, s{sH}, 3
        s_xor_b32 s{sB}, s{sA}, 1
        s_lshl_b32 s{sB}, s{sB}, 8
        s_sub_u32 s{sC}, s{sA}, 1
        s_max_i32 s{sC}, s{sC}, 0
        s_lshl_b32 s{sC}, s{sC}, 19
        s_cmp_eq_u32 s{sA}, 1
        s_cselect_b32 s{sA}, 0, -1
        ''')
        for J in range(4): a(f'''
        v_xor_b32 v{vH+J}, s{sB}, v{vWa+J}
        v_add_u32 v{vH+J}, s{sC}, v{vH+J}
        v_and_b32 v{vH+J}, s{sA}, v{vH+J}
        ''')
    def help_(j):
        base = {'q': sWq, 'k': sWk, 'v': sWv}[mord[j//8]]
        assert j % 8 <= 5
        a(f's_add_u32 s{sTmp}, s{base}, {(j%8)<<19}\ns_addc_u32 s{sTmp+1}, s{base+1}, 0')
        for J in range(4): a(f'global_load_dwordx4 {vr(KA,4)}, v{vH+J}, {sp(sTmp)} offset:{J*1024}')
    def lpre(j):
        if j >= 32 or j % 2: return
        if j < 24:
            base = {'q': sWq, 'k': sWk, 'v': sWv}[mord[j//8]]
            a(f's_add_u32 s{sTmp}, s{base}, {(j%8)<<19}\ns_addc_u32 s{sTmp+1}, s{base+1}, 0\nglobal_load_dword v{vPd}, v{vPq}, {sp(sTmp)}')
        else:
            a(f's_xor_b32 s{sA}, s{sW}, {(j%8)//2}\ns_lshl_b32 s{sA}, s{sA}, 15\ns_add_u32 s{sTmp}, s{sWo}, s{sA}\ns_addc_u32 s{sTmp+1}, s{sWo+1}, 0\nglobal_load_dword v{vPd}, v{vPo}, {sp(sTmp)}')
    dtag = {}
    def fkeval(v):
        a(f"""
        v_cmp_eq_u32 vcc, 0x01010101, v{v}
        s_or_b32 s{sTmp}, vcc_lo, 0xaaaaaaaa
        s_or_b32 s{sTmp+1}, vcc_hi, 0xaaaaaaaa
        s_ff0_i32_b64 s{sRdy}, {sp(sTmp)}
        s_min_u32 s{sRdy}, s{sRdy}, 100
        """)
    def first():
        a(f'''
        s_lshl_b32 s{sA}, s{sXcc}, 1
        s_add_u32 s{sA}, s{sA}, 1
        s_mul_i32 s{sXcc}, s{sA}, 0x01010101
        v_mov_b32 v{S}, s{sH}
        v_mov_b32 v{S+1}, s{sA}
        s_cmp_eq_u32 s{sW}, 0
        s_cselect_b32 s{sFm}, 1, 0
        s_mov_b32 s{sFm+1}, 0
        s_mov_b64 exec, {sp(sFm)}
        global_store_byte v{S}, v{S+1}, {sp(sDbg)} sc1
        s_mov_b64 exec, -1
        v_lshlrev_b32 v{S+2}, 4, v{n_}
        v_lshl_add_u32 v{S+2}, v{g_}, 10, v{S+2}
        s_lshl_b32 s{sA}, s{sW}, 8
        v_add_u32 v{S+2}, s{sA}, v{S+2}
        v_add_u32 v{S+3}, 3072, v{S+2}
        s_lshl_b32 s{sA}, s{sW}, 11
        s_add_u32 m0, s{sA}, {L_MQ}
        global_load_lds_dwordx4 v{S+2}, {sp(sMem)}
        global_load_lds_dwordx4 v{S+3}, {sp(sMem)} offset:1024
        ''')
    if thr: a(f's_and_b32 s{sNx}, s{sH}, 3' if not lp else f's_mov_b32 s{sNx}, 0')
    if lpf:
        for j in range(8 + lp): lpre(j)
    for bi in range(8):
        if bi == fst: first()
        if thi and bi >= 8 - thi:
            a(f's_cmp_eq_u32 s{sNx}, 1\ns_cbranch_scc1 {L(f"ti{bi}")}')
            a.wvm(dtag[bi-8+thi]); a.label(L(f'ti{bi}'))
        dtag[bi] = dma(bi)
    if lp and not lpf:
        for j in range(8, 8 + lp): lpre(j)
    if 'a' in tls: tl(a, 5 + tls.index('a'), T+12, 0)
    if 'b' in tls: tl(a, 5 + tls.index('b'), T+12, 0)
    a(f'''
    v_lshrrev_b32 v{t2}, 2, v{n_}
    v_and_b32 v{t3}, 3, v{lane}
    s_lshl_b32 s{sA}, s{sW}, 6
    v_lshl_add_u32 v{vTr}, v{t3}, 3, s{sA}
    v_lshlrev_b32 v{vTr+1}, 5, v{t2}
    v_lshl_add_u32 v{vTr+1}, v{t1}, 7, v{vTr+1}
    v_xor_b32 v{vTr}, v{vTr}, v{vTr+1}
    v_lshl_add_u32 v{vTr}, v{t2}, 8, v{vTr}
    v_lshl_add_u32 v{vTr}, v{g_}, 10, v{vTr}
    v_xor_b32 v{vTr+1}, 32, v{vTr}
    v_add_u32 v{vTr+2}, 0x10000, v{vTr}
    v_add_u32 v{vTr+3}, 0x10000, v{vTr+1}
    ; wo tr-read: gb*256 + bit2*128 + gb0*64 + bit3*32 + c4*8 (u flips bit 6)
    v_lshlrev_b32 v{vTo}, 8, v{g_}
    v_lshl_add_u32 v{vTo}, v{t1}, 6, v{vTo}
    {f'v_and_b32 v{vTo+1}, 2, v{lane}{NL}v_lshl_add_u32 v{vTo}, v{vTo+1}, 2, v{vTo}{NL}v_and_b32 v{vTo+1}, 1, v{lane}{NL}v_lshlrev_b32 v{vTo+1}, 6, v{vTo+1}{NL}v_xor_b32 v{vTo}, v{vTo}, v{vTo+1}' if w4 and not dw else f'v_lshl_add_u32 v{vTo}, v{t3}, 3, v{vTo}'}
    v_and_b32 v{vTo+1}, 4, v{lane}
    v_lshl_add_u32 v{vTo}, v{vTo+1}, 5, v{vTo}
    v_and_b32 v{vTo+1}, 8, v{lane}
    v_lshl_add_u32 v{vTo}, v{vTo+1}, 2, v{vTo}
    v_add_u32 v{vTo}, s{sLb}, v{vTo}
    v_xor_b32 v{vTo+1}, {16 if w4 and not dw else 64}, v{vTo}
    v_xor_b32 v{vXw}, v{g_}, v{t2}
    v_lshlrev_b32 v{vXw}, 3, v{vXw}
    v_lshl_add_u32 v{vXw}, v{n_}, 5, v{vXw}
    s_lshl_b32 s{sA}, s{sW}, 10
    s_add_u32 s{sA}, s{sA}, {L_X}
    v_add_u32 v{vXw}, s{sA}, v{vXw}
    v_xor_b32 v{vXr}, v{t3}, v{g_}
    v_lshlrev_b32 v{vXr}, 3, v{vXr}
    v_lshl_add_u32 v{vXr}, v{t2}, 5, v{vXr}
    v_lshl_add_u32 v{vXr}, v{g_}, 7, v{vXr}
    v_add_u32 v{vXr}, {L_X}, v{vXr}
    v_lshl_add_u32 v{vPst}, v{t2}, 2, v{g_}
    v_lshlrev_b32 v{vPst}, 11, v{vPst}
    v_lshl_add_u32 v{vPst}, v{t3}, 4, v{vPst}
    s_lshl_b32 s{sA}, s{sW}, 16
    s_lshl_b32 s{sB}, s{sH}, 6
    s_add_u32 s{sA}, s{sA}, s{sB}
    v_add_u32 v{vPst}, s{sA}, v{vPst}
    ''')
    if w4: a(f'''
    ; reducer CU = 8w + 4(n/8) + g, wave G ; off = cu*8192 + G*2048 + h*64 + (n%8)*8 (+4096 imm bias)
    v_lshrrev_b32 v{vPst}, {4 if dw else 3}, v{n_}
    v_lshl_add_u32 v{vPst}, v{vPst}, 2, v{g_}
    v_mul_u32_u24 v{vMst}, {psw}, v{vPst}
    v_add_u32 v{vMst}, s{sB}, v{vMst}
    v_and_b32 v{vMst}, 0x7ff, v{vMst}
    v_lshl_add_u32 v{vPst}, v{vPst}, 13, v{vMst}
    v_and_b32 v{vMst}, {15 if dw else 7}, v{lane}
    v_lshl_add_u32 v{vPst}, v{vMst}, {2 if dw else 3}, v{vPst}
    s_lshl_b32 s{sA}, s{sW}, 16
    s_add_u32 s{sA}, s{sA}, 4096
    v_add_u32 v{vPst}, s{sA}, v{vPst}
    ''')
    a(f'''
    ; publish: (c/2)*32 + p*16 + (c%2)*8 + (i/2)*4
    v_mov_b32 v{vMst}, 0
    {chr(10).join(f'v_bfe_u32 v{t2}, v{lane}, {b_}, 1{chr(10)}v_lshl_add_u32 v{vMst}, v{t2}, {o_}, v{vMst}' for b_, o_ in {0: ((5,5),(2,4),(4,3),(1,2)), 1: ((5,5),(0,4),(4,3)), 2: ((2,5),(4,4),(1,3),(0,2)), 4: ((1,5),(4,4),(0,3),(5,2)), 5: ((0,5),(4,4),(5,3),(1,2)), 6: ((5,5),(4,4),(1,3),(0,2))}[6 if dw else 5 if w4 else ra])}
    ; O write: L_O + w*512 + (g*8+t)*16 + half*8 ; t = 2*(n/4)+n%2
    v_lshlrev_b32 v{vOw}, 7, v{g_}
    v_and_b32 v{t2}, 12, v{lane}
    v_lshl_add_u32 v{vOw}, v{t2}, 3, v{vOw}
    v_and_b32 v{t2}, 1, v{lane}
    v_lshl_add_u32 v{vOw}, v{t2}, 4, v{vOw}
    v_and_b32 v{t2}, 2, v{lane}
    v_lshl_add_u32 v{vOw}, v{t2}, 2, v{vOw}
    s_lshl_b32 s{sA}, s{sW}, 9
    s_add_u32 s{sA}, s{sA}, {L_O}
    v_add_u32 v{vOw}, s{sA}, v{vOw}
    s_mov_b32 s{sB1}, 0xcccccccc
    s_mov_b32 s{sB1+1}, 0xcccccccc
    s_mov_b32 s{sPm}, {0xaaaaaaaa if ra == 1 else 0xf0f0f0f0}
    s_mov_b32 s{sPm+1}, {0xaaaaaaaa if ra == 1 else 0xf0f0f0f0}
    s_mov_b32 s{sPub}, {(0x00550055, 0x00030003, 0x00ff00ff, 0, 0x000f000f)[ra]}
    s_mov_b32 s{sPub+1}, {(0x00550055, 0x00030003, 0, 0, 0x000f000f)[ra]}
    s_mov_b32 s{sQc}, {QSCALE}
    v_mov_b32 v{t2}, 0x4444
    v_mov_b32 v{t3}, 0xeeee
    v_cndmask_b32 v{vIdx}, v{t2}, v{t3}, {sp(sB1)}
    v_cndmask_b32 v{vM0}, -1, 0, {sp(sB1)}
    v_cndmask_b32 v{vM1}, 0, -1, {sp(sB1)}
    ''')
    for i in range(4):
        m_ = {0: 0x00110011 << i, 1: 0x11111111, 2: 0x55555555 << (i%2), 4: 0x00550055 << (i%2 + 8*(i//2))}[ra]
        a(f's_mov_b32 s{sSel+2*i}, {m_}\ns_mov_b32 s{sSel+2*i+1}, {m_}')
    a(f'''
    s_lshl_b32 s{sA}, s{sH}, 2
    s_add_u32 s{sA}, s{sA}, s{sW}
    s_add_u32 s{sRA}, s{sWs}, {WS_RA}
    s_addc_u32 s{sRA+1}, s{sWs+1}, 0
    s_mov_b32 s{sC}, s{sA}
    ''')
    if hp: a(f'''
    s_lshr_b32 s{sB}, s{sA}, 1
    s_and_b32 s{sB}, s{sB}, 15
    s_and_b32 s{sC}, s{sA}, 0x60
    s_or_b32 s{sC}, s{sC}, s{sB}
    s_and_b32 s{sB}, s{sA}, 1
    s_lshl_b32 s{sB}, s{sB}, 4
    s_or_b32 s{sC}, s{sC}, s{sB}
    ''')
    a(f'''
    s_lshl_b32 s{sB}, s{sC}, 11
    s_add_u32 s{sRAo}, s{sRA}, s{sB}
    s_addc_u32 s{sRAo+1}, s{sRA+1}, 0
    ''')
    if w4: a(f'''
    s_and_b32 s{sC}, s{sH}, 24
    s_lshl_b32 s{sC}, s{sC}, 2
    s_and_b32 s{sB}, s{sH}, 7
    s_add_u32 s{sC}, s{sC}, s{sB}
    s_lshl_b32 s{sB}, s{sW}, 3
    s_add_u32 s{sC}, s{sC}, s{sB}
    ''')
    a(f'''
    s_lshl_b32 s{sB}, s{sC}, 6
    s_add_u32 s{sB}, s{sB}, {WS_RM}
    s_add_u32 s{sRMs}, s{sWs}, s{sB}
    s_addc_u32 s{sRMs+1}, s{sWs+1}, 0
    s_lshl_b32 s{sB}, s{sW}, 11
    s_add_u32 s{sB}, s{sB}, {WS_RM}
    s_add_u32 s{sRMl}, s{sWs}, s{sB}
    s_addc_u32 s{sRMl+1}, s{sWs+1}, 0
    s_lshl_b32 s{sB}, s{sA}, 11
    s_add_u32 s{sKV}, s{sWs}, s{sB}
    s_addc_u32 s{sKV+1}, s{sWs+1}, 0
    s_lshl_b32 s{sB}, s{sA}, 10
    s_add_u32 s{sB}, s{sB}, {WS_KVM-(32 if kvnow else 64)*4096}
    s_add_u32 s{sKVM}, s{sWs}, s{sB}
    s_addc_u32 s{sKVM+1}, s{sWs+1}, 0
    s_lshl_b32 s{sB}, s{sH}, 7
    s_add_u32 s{sB}, s{sB}, {WS_FL+FL_P}
    s_add_u32 s{sFl}, s{sWs}, s{sB}
    s_addc_u32 s{sFl+1}, s{sWs+1}, 0
    s_lshl_b32 s{sB}, s{sH}, 8
    s_add_u32 s{sB}, s{sB}, {WS_FL+FL_K}
    s_add_u32 s{sFK}, s{sWs}, s{sB}
    s_addc_u32 s{sFK+1}, s{sWs+1}, 0
    ; touch/flag lanes: 0-31 V half of the own K/V record (advances per step), 32-63 ready flags of this head
    s_sub_u32 s{sB}, s{sB}, {2048+256}
    v_lshl_add_u32 v{vTc}, v{lane}, 3, s{sB}
    s_lshl_b32 s{sB}, s{sA}, 11
    s_add_u32 s{sB}, s{sB}, {WS_V-2048}
    v_lshl_add_u32 v{t2}, v{lane}, 6, s{sB}
    v_cmp_gt_u32 vcc, 32, v{lane}
    v_cndmask_b32 v{vTc}, v{vTc}, v{t2}, vcc
    s_mov_b32 s{sRdy}, {0 if mega else 100}
    v_lshlrev_b32 v{vL4}, 2, v{lane}
    v_mov_b64 {vr(HK,2)}, 0
    v_mov_b64 {vr(HV,2)}, 0
    ; M(0) gather: lane(row: b0=t%2,b1=half,b3:2=t/2 ; ga): byte = t*256 + (64s + 16(ea%4) + 4ga + 2half + ea/4)*2
    v_lshrrev_b32 v{t2}, 2, v{n_}
    v_lshlrev_b32 v{t2}, 9, v{t2}
    v_and_b32 v{t3}, 1, v{lane}
    v_lshl_add_u32 v{t2}, v{t3}, 8, v{t2}
    v_lshl_add_u32 v{t2}, v{g_}, {5 if dw else 3}, v{t2}
    v_and_b32 v{t3}, 2, v{lane}
    v_lshl_add_u32 v{t2}, v{t3}, 1, v{t2}
    s_lshl_b32 s{sA}, s{sW}, 11
    s_add_u32 s{sA}, s{sA}, {L_MQ}
    v_add_u32 v{t2}, s{sA}, v{t2}
    ''')
    if 'c' in tls: tl(a, 5 + tls.index('c'), T+12, 0)
    def warmup():
        a(f"""
        v_lshlrev_b32 v{t1}, 7, v{n_}
        v_and_b32 v{t3}, 1, v{g_}
        v_lshl_add_u32 v{t2}, v{t3}, 18, v{t1}
        global_load_dword v{vFd}, v{t2}, {sp(sRAo)} sc1
        v_lshl_add_u32 v{t1}, v{t3}, 13, v{t1}
        global_load_dword v{vFd}, v{t1}, {sp(sRMl)} sc1
        """)
    def park(pj): return dest(('o', pj+1)) if pj < NQ-1 else ('v', S+16)
    for w in range(1,4): a(f's_cmp_eq_u32 s{sW}, {w}\ns_cbranch_scc1 {L(f"pw{w}")}')
    nvm0, nds0 = a.nvm, a.nds
    for w in range(4):
        a.label(L(f'pw{w}'))
        a.nvm, a.nds = nvm0, nds0
        for bi in range(24):
            m, i = mord[bi//8], (bi%8) ^ (2*w); slot = bi % 8
            a.wvm(dtag[bi]); a('s_barrier')
            if bi in tls: tl(a, 5 + tls.index(bi), t1, 0)
            if bi and thr and bi < the:
                a(f's_cmp_eq_u32 s{sNx}, 1\ns_cbranch_scc1 {L(f"th{w}_{bi}")}')
                a.wvm(dtag[bi+thr]); a.label(L(f'th{w}_{bi}'))
            if bi: dtag[bi+7] = dma(bi+7)
            if bi and lp: lpre(bi+7+lp)
            for hb, hj in hlp:
                if hb == bi: help_(hj)
            k, b = park(LDS_BLK.index((m,i))) if (m,i) in LDS_BLK else dest((m,i))
            for u in range(2):
                for J in range(4):
                    a(f'ds_read_b64_tr_b16 {vr(b+8*u+2*J,2,k)}, v{vTr+u+2*(J//2)} offset:{slot*4096+(J%2)*32768}')
            if bi == fst:
                for s_ in range(2):
                    for ea in range(8): a(f'ds_read_u16 v{S+8*s_+ea}, v{t2} offset:{(64*s_ + (4*(ea//2) + ea%2 if dw else 16*(ea%4) + ea//4))*2}')
            if bi == fst + 1:
                for r in range(8): a(f'v_lshl_or_b32 v{M+r}, v{S+2*r+1}, 16, v{S+2*r}')
            if bi == arr and 'p3' not in opt: a(f'global_load_dword v{vFd}, v{vL4}, {sp(sDbg)} sc1')
            if bi == arr + 8 and 'p3' not in opt:
                msk = ((1 << 24) - 1) | (1 << 40) if mega else 0xff
                a(f"""
                s_mov_b32 s{sSpin}, 0
                {L(f'tb{w}')}:
                v_and_b32 v{t1}, 0x01010101, v{vFd}
                v_cmp_ne_u32 vcc, 0x01010101, v{t1}
                s_and_b32 s{sA}, vcc_lo, {msk & 0xffffffff}
                s_and_b32 s{sB}, vcc_hi, {msk >> 32}
                s_or_b32 s{sA}, s{sA}, s{sB}
                s_cbranch_scc0 {L(f'tbo{w}')}
                s_sleep 4
                global_load_dword v{vFd}, v{vL4}, {sp(sDbg)} sc1
                s_add_u32 s{sSpin}, s{sSpin}, 1
                s_cmp_gt_u32 s{sSpin}, {SPIN}
                s_cbranch_scc1 {L('end')}
                s_waitcnt vmcnt(0)
                s_branch {L(f'tb{w}')}
                {L(f'tbo{w}')}:
                v_cmp_ne_u32 vcc, s{sXcc}, v{vFd}
                s_and_b32 s{sXcc}, vcc_lo, 0xff
                """)
                a.nvm -= 1
            if bi == warm: warmup()
            if mega and bi == fkb: ftag = a(f'global_load_dword v{vFk}, v{vL4}, {sp(sFK)} sc1')
            a('s_waitcnt lgkmcnt(0)')
        if w < 3: a(f's_branch {L("pwe")}')
    a.label(L('pwe'))
    tl(a, 1, t1, 0)
    def k0():
        a(f"""
        s_mov_b32 m0, s{sM0kv}
        s_nop 0
        global_load_lds_dwordx4 v{vLin}, {sp(sKV)} sc1
        global_load_lds_dwordx4 v{vLin}, {sp(sKV)} offset:1024 sc1
        global_load_lds_dword v{vTc}, {sp(sWs)} offset:2048 sc1
        """)
    for bi in range(24, 32):
        slot = bi % 8
        a.wvm(dtag[bi])
        if bi == 24: a('s_barrier'); dtag[31] = dma(31)
        if bi == warm: warmup()
        if mega and bi == fkb: ftag = a(f'global_load_dword v{vFk}, v{vL4}, {sp(sFK)} sc1')
        if bi == fke:
            if mega:
                a.wvm(ftag)
                fkeval(vFk)
                a(f's_cmp_lg_u32 s{sRdy}, 0\ns_cbranch_scc1 {L("k1")}')
                for _ in range(3): a(f'global_load_dword v{vFk}, v{vL4}, {sp(sFK)} sc1')
                a(f's_branch {L("k2")}')
                a.nvm -= 3
                a.label(L('k1'))
            k0()
            a.label(L('k2'))
        tmp = S + 16*(slot%2)
        k, b = dest(('o', slot)) if slot < NQ else ('v', tmp)
        for u in range(2):
            for J in range(4):
                a(f'ds_read_b64_tr_b16 {vr(b+8*u+2*J,2,k)}, v{vTo+u} offset:{slot*4096+J*1024}')
        if slot >= NQ or not opipe: a('s_waitcnt lgkmcnt(0)')
        k, b = park(slot) if slot < NQ else ('v', tmp)
        for u in range(2):
            for hf in range(2):
                a(f'ds_write_b128 v{vLw}, {vr(b+8*u+4*hf,4,k)} offset:{slot*4096+u*2048+hf*1024}')
        if not opipe: a('s_waitcnt lgkmcnt(0)')
    tl(a, 2, t1, 0)
    if 'ponly' in opt: a(f's_branch {LE}')
    if mega:
        a(f"""
        s_cmp_lg_u32 s{sRdy}, 0
        s_cbranch_scc1 {L("kwe")}
        s_mov_b32 s{sSpin}, 0
        {L('kw')}:
        s_waitcnt vmcnt(0)
        """)
        fkeval(vFk)
        a(f"""
        s_cmp_lg_u32 s{sRdy}, 0
        s_cbranch_scc1 {L("kwd")}
        s_sleep 2
        global_load_dword v{vFk}, v{vL4}, {sp(sFK)} sc1
        s_add_u32 s{sSpin}, s{sSpin}, 1
        s_cmp_gt_u32 s{sSpin}, {SPIN}
        s_cbranch_scc1 {L('end')}
        s_branch {L("kw")}
        """)
        a.label(L('kwd'))
        k0()
        a.label(L('kwe'))
    sKN = sWo
    a(f"""
    s_mov_b64 {sp(sKN)}, {sp(sKV)}
    s_mov_b32 s{sT}, 0
    s_mov_b32 s{sSpin}, 0
    """)
    tl(a, 3, t1, 0)
    if prof:
        for i in range(8): a(f's_mov_b32 s{sP+20+i}, 0')
        a(f's_memtime {sp(sP+28)}')
    def tstamp(idx, T=T):
        if 'ts' not in opt and 'tc' not in opt and 'tb' not in opt: return
        a(f"""
        {'s_memrealtime' if 'ts' in opt else 's_memtime'} s[96:97]
        {'s_memrealtime s[94:95]' if 'tb' in opt else ''}
        s_lshl_b32 s{sA}, s{sH}, 2
        s_add_u32 s{sA}, s{sA}, s{sW}
        s_lshl_b32 s{sA}, s{sA}, 6
        s_add_u32 s{sA}, s{sA}, {idx}
        s_lshl_b32 s{sA}, s{sA}, 2
        s_add_u32 s{sA}, s{sA}, {WS_PROF+131072}
        v_mov_b32 v{T}, s{sA}
        s_waitcnt lgkmcnt(0)
        {f's_bitcmp1_b32 s{sW}, 0{NL}s_cselect_b32 s96, s94, s96' if 'tb' in opt else ''}
        v_mov_b32 v{T+1}, s96
        s_mov_b64 exec, 1
        global_store_dword v{T}, v{T+1}, {sp(sWs)}
        """)
        if 'tk' in opt:
            for j_ in range(len(stamps)-1): a(f's_sub_u32 s96, s{sP+2*j_+2}, s{sP+2*j_}\nv_add_u32 v{T}, 32768, v{T}\nv_mov_b32 v{T+2+j_}, s96\nglobal_store_dword v{T}, v{T+2+j_}, {sp(sWs)}')
        a('s_mov_b64 exec, -1')
    tstamp(63)
    DPPM = 'row_mask:0xf bank_mask:0xf'
    QA = T+8; VA = QV; P2 = VX; S0 = S; S1 = S+16; K0 = M+16
    NEG = M+4; Sel = T+4; Dr = T+8
    if yd: K0 = KX; P2 = M+16; NEG = T+5
    sB0, sOne, sHalf = 4, 8, 10
    a(f'''
    s_not_b64 {sp(sB0)}, {sp(sB1)}
    s_mov_b32 s{sOne}, 0x3f803f80
    s_mov_b32 s{sOne+1}, 0x3f803f80
    s_mov_b32 s{sHalf}, 0x3f003f00
    s_mov_b32 s{sHalf+1}, 0x3f003f00
    ''')
    def pre1(L=None):
        n0 = len(a.items)
        if TL and L:
            a(f's_cmp_lg_u32 s{sT}, 24\ns_cbranch_scc1 {L("tls")}\ns_memtime s[92:93]\ns_memrealtime s[76:77]\ns_mov_b32 s{sSpin}, 0')
            a.label(L('tls')); n0 += 4
        if ps:
            a(f'v_lshrrev_b32 v{T+5}, 2, v{vLin}\nv_add_u32 v{T+3}, m0, v{vLin}')
            if L and mega: a(f'v_add_u32 v{T+6}, m0, v{T+5}\nds_read_b32 v{T+6}, v{T+6} offset:2048')
            a(f'''
            ds_read_b128 {vr(KX,4)}, v{T+3}
            ds_read_b128 {vr(KX+4,4)}, v{T+3} offset:1024
            v_add_u32 v{T+3}, s{sLb}, v{T+5}
            v_mov_b32 v{T+7}, 0
            v_add_u32 v{T+5}, {L_S}, v{T+5}
            ds_write_b32 v{T+3}, v{T+7}
            ''')
        elif L and mega: a(f'v_lshrrev_b32 v{T+5}, 2, v{vLin}\nv_add_u32 v{T+6}, m0, v{T+5}\nds_read_b32 v{T+6}, v{T+6} offset:2048')
        a(f"""
        s_and_b32 s{sA}, s{sT}, 1
        s_lshl_b32 s{sC}, s{sA}, 13
        s_add_u32 s{sMld}, s{sRMl}, s{sC}
        s_addc_u32 s{sMld+1}, s{sRMl+1}, 0
        s_xor_b32 s{sB}, s{sA}, 1
        """)
        if yd: a(f's_mov_b32 m0, s{sLb}')
        if yd == 1: a(f's_mov_b32 s{sGot}, 0')
        for x_ in stg(('k',0), K0): a(x_)
        for i in range(0,16,2): a(f'v_mov_b64 {vr(VA+i,2)}, 0')
        for i in range(0,8,2): a(f'v_mov_b64 {vr(QA+i,2)}, 0')
        return len(a.items) - n0
    def pre2(L=None):
        n0 = len(a.items)
        a(f's_mov_b32 exec_hi, 0\nv_add_u32 v{vTc}, {KST}, v{vTc}\ns_mov_b32 exec_hi, -1')
        a(f"""
        s_lshl_b32 s{sC}, s{sB}, 13
        s_add_u32 s{sMst}, s{sRMs}, s{sC}
        s_addc_u32 s{sMst+1}, s{sRMs+1}, 0
        s_lshl_b32 s{sC}, s{sB}, 18
        s_add_u32 s{sArs}, s{sRAo}, s{sC}
        s_addc_u32 s{sArs+1}, s{sRAo+1}, 0
        s_lshl_b32 s{sC}, s{sA}, 18
        s_add_u32 s{sSt0}, s{sRA}, s{sC}
        s_addc_u32 s{sSt0+1}, s{sRA+1}, 0
        s_add_u32 s{sSt1}, s{sSt0}, 32768
        s_addc_u32 s{sSt1+1}, s{sSt0+1}, 0
        s_add_u32 s{sAld}, s{sRAo}, s{sC}
        s_addc_u32 s{sAld+1}, s{sRAo+1}, 0
        s_add_u32 s{sKV}, s{sKN}, {WS_V}
        s_addc_u32 s{sKV+1}, s{sKN+1}, 0
        s_add_u32 s{sKN}, s{sKN}, {KST}
        s_addc_u32 s{sKN+1}, s{sKN+1}, 0
        s_add_u32 s{sKVM}, s{sKVM}, {32*4096}
        s_addc_u32 s{sKVM+1}, s{sKVM+1}, 0
        """)
        if not ps: a(f"""
        s_mul_i32 s{sC}, s{sB}, {4*KVS}
        s_add_u32 {f's{sVer}' if yd == 2 else 'm0'}, s{sC}, s{sM0kv}
        s_mul_i32 s{sC}, s{sA}, {4*KVS}
        s_add_u32 s{sC}, s{sC}, {L_KV}
        v_add_u32 v{vKr}, s{sC}, v{vLin}
        """)
        a(f"""
        s_lshl_b32 s{sC}, s{sW}, 11
        s_add_u32 s{sC}, s{sC}, {L_MQ}
        v_add_u32 v{T+3}, s{sC}, v{vLin}
        s_add_u32 s{sC}, s{sT}, {int(kvnow)}
        v_mov_b32 v{T+4}, s{sC}
        """)
        for i in range(1,4): a(f'v_xor_b32 v{T+i-1}, {i*2048}, v{T+3}')
        if L and mega:
            a(f'''
            s_waitcnt lgkmcnt(0)
            v_cmp_eq_u32 vcc, 0x01010101, v{T+6}
            s_add_u32 s{sA}, s{sT}, 1
            s_ff0_i32_b32 s{sRdy}, vcc_hi
            s_lshl_b32 s{sRdy}, s{sRdy}, 1
            s_cmp_lt_u32 s{sA}, s{sRdy}
            s_cbranch_scc0 {L('rp')}
            ''')
        return len(a.items) - n0
    def ldM(r):
        if yd: a(f'global_load_lds_dwordx4 v{vLin}, {sp(sMld)} sc1\nglobal_load_lds_dwordx4 v{vLin}, {sp(sMld)} offset:1024 sc1')
        else: a(f'global_load_dwordx4 {vr(r,4)}, v{vLin}, {sp(sMld)} sc1\nglobal_load_dwordx4 {vr(r+4,4)}, v{vLin}, {sp(sMld)} offset:1024 sc1')
    def ldA(r):
        if ra == 1:
            for i in range(8): a(f'global_load_dword v{r+i}, v{T+1}, {sp(sAld)} offset:{256*i} sc1')
            return
        if ra == 2:
            for i in range(4): a(f'global_load_dwordx2 {vr(r+2*i,2)}, v{T+1}, {sp(sAld)} offset:{512*i} sc1')
            return
        a(f'global_load_dwordx4 {vr(r,4)}, v{vLin}, {sp(sAld)} sc1\nglobal_load_dwordx4 {vr(r+4,4)}, v{vLin}, {sp(sAld)} offset:1024 sc1')
    def spin(): a(f's_add_u32 s{sSpin}, s{sSpin}, 1\ns_cmp_gt_u32 s{sSpin}, {SPIN}\ns_cbranch_scc1 {LE}')
    acc = {'q': QA, 'k': KA, 'v': VA}
    def P_(m, sg, u): SM(acc[m]+4*u, M+4*sg, m, sg, u)
    for x_ in stg(('q',0), S0) + stg(('q',1), S1): a(x_)
    for r in range(8): a(f'v_min_u32 v{M+r}, -2, v{M+r}')
    if yd: a(f's_lshl_b32 s{sLb}, s{sW}, 11\ns_add_u32 s{sLb}, s{sLb}, {L_MQ}')
    if ps: a(f'''
    s_lshl_b32 s{sLb}, s{sW}, 10
    v_add_u32 v{vKr}, s{sLb}, v{vXr}
    s_add_u32 s{sLb}, s{sLb}, {L_X+4096}
    v_add_u32 v{T}, s{sLb}, v{vLin}
    v_mov_b64 {vr(T+4,2)}, 0
    v_mov_b64 {vr(T+6,2)}, 0
    ds_write_b128 v{T}, {vr(T+4,4)}
    s_lshl_b32 s{sLb}, s{sW}, 8
    s_add_u32 s{sLb}, s{sLb}, {L_S}
    s_waitcnt vmcnt(0)
    ''')
    pre1(); pre2()
    if yd: a(f'ds_write_b128 v{T+3}, {vr(M,4)}\nds_write_b128 v{T+3}, {vr(M+4,4)} offset:1024')
    a('s_waitcnt vmcnt(0) lgkmcnt(0)')
    if mega: a(f's_cmp_lg_u32 s{sXcc}, 0\ns_cbranch_scc1 {L("s_try")}')
    a(f's_branch {L("try")}')
    staged0 = dict(staged)
    def loop(L, stc, mk=mk, rdw=rdw):
        staged.clear(); staged.update(staged0)
        dm = [f'global_load_lds_dwordx4 v{vLin}, {sp(sKN)} offset:{j*1024} sc1' for j in range(2)] + \
             [f'global_load_dwordx4 {vr(KX+4*j,4)}, v{vLin}, {sp(sKV)} offset:{(j-2)*1024} sc1' for j in (2,3)]
        kvb = int('kv@B0' in vp.split()); kvst = f'global_store_dwordx4 v{vLin}, {vr(HK,4)}, {sp(sKVM)} sc1'
        a.label(L('retry'))
        spin()
        if prof: a(f's_add_u32 s{sP+26}, s{sP+26}, 59')
        if TL: a(f's_add_u32 s{sSpin}, s{sSpin}, 255')
        if yd == 2:
            a('s_nop 2')
            for i in range(0,4,2): a(f'v_mov_b64 {vr(QA+i,2)}, 0')
            for i in range(0,8,2): a(f'v_mov_b64 {vr(KA+i,2)}, 0')
            a(f's_waitcnt vmcnt({kvb})')
            ldM(None)
            if kvb: a(kvst)
        elif yd:
            a(f's_waitcnt lgkmcnt(0)\ns_cmp_eq_u32 s{sGot}, 0\ns_cbranch_scc1 {L("r1")}\ns_barrier')
            ldM(None)
            a.label(L('r1'))
            a(f's_mov_b32 s{sGot}, 1\ns_sub_u32 s{sC}, m0, s{sM0kv}\ns_add_u32 s{sC}, s{sC}, {L_KV}')
            for i in range(4): a(f's_xor_b32 s{sA}, s{sW}, {i}\ns_mul_i32 s{sA}, s{sA}, {KVS}\ns_add_u32 s{sA}, s{sA}, s{sC}\nv_add_u32 v{T+(i-1)%4}, s{sA}, v{vLin}')
            for i in range(0,8,2): a(f'v_mov_b64 {vr(KA+i,2)}, 0')
            for i in range(0,8,2): a(f'v_mov_b64 {vr(QA+i,2)}, 0')
            a('s_waitcnt vmcnt(0)')
        else:
            a(f's_waitcnt vmcnt({kvb})')
            for i in range(0,8,2): a(f'v_mov_b64 {vr(M+i,2)}, {vr(P2+i,2)}')
            ldM(P2)
            if kvb: a(kvst)
            for i in range(0,8,2): a(f'v_mov_b64 {vr(QA+i,2)}, 0')
        a(f's_branch {L("try")}')
        a.label(L('step'))
        n = pre1(L)
        if wB:
            cur = n + 3
            for w_ in (3,2,1,0):
                a.nops(wB[w_] - cur - (2 if w_ else 0)); cur = max(cur + (2 if w_ else 0), wB[w_])
                if w_: a(f's_cmp_eq_u32 s{sW}, {w_}\ns_cbranch_scc1 {L("p1")}')
            a.label(L('p1'))
        else: a.nops(preB - n - 3)
        ldM(M)
        n = pre2(L); a.nops(gapB - n - 2)
        a.label(L('rk'))
        ldM(P2)
        if kvb: a(kvst)
        a(f's_waitcnt vmcnt({2+kvb}) lgkmcnt(0)')
        a.label(L('try'))
        a.nds = 0; a.nvm = 2 + kvb; set2 = 2
        stamp('a0')
        ck = M+8
        if not yd:
            mw = [f'ds_write_b128 v{T+3}, {vr(M,4)}', f'ds_write_b128 v{T+3}, {vr(M+4,4)} offset:1024']
            if wsh == 3: mw = [f'ds_write_b64 v{T+3}, {vr(M+2*i,2)} offset:{(i//2)*1024+(i%2)*8}' for i in range(4)]
            for _ in range({0:2, 1:0, 2:1, 3:0, 4:0}[wsh]): a(mw.pop(0))
            P_('q',0,0)
            for _ in range({0:0, 1:1, 2:1, 3:2, 4:2}[wsh]): a(mw.pop(0))
            stamp('w0')
            a(f'v_max_u32 v{ck}, v{M}, v{M+4}' if fc else f'v_max3_u32 v{ck}, v{M}, v{M+2}, v{M+4}')
            if fc == 2: a(f'v_cmp_eq_u32 vcc, -1, v{ck}')
            P_('q',0,1)
            for x_ in mw: a(x_)
            stamp('w1')
            if fc == 2: a(f's_cbranch_vccnz {L("retry")}')
            elif fc:
                a(f'v_cmp_eq_u32 vcc, -1, v{ck}')
                P_('q',1,0); a(f's_cbranch_vccnz {L("retry")}')
            else:
                a(f'v_max_u32 v{ck}, v{ck}, v{M+6}')
                if mk == 8: a(f'v_max3_u32 v{ck}, v{ck}, v{M+1}, v{M+3}\nv_max3_u32 v{ck}, v{ck}, v{M+5}, v{M+7}')
                P_('q',1,0); a(f'v_cmp_eq_u32 vcc, -1, v{ck}')
                P_('q',1,1); a(f's_cbranch_vccnz {L("retry")}')
        rlate = any(x_[0] == 'r' and x_[1] != 'm' and x_[3] in 'CW' for x_ in vp.split())
        NG2 = T if rlate else NEG
        rs = [f'global_store_dwordx4 v{vLin}, {vr(NG2,4)}, {sp(sArs)} offset:{1024*i}{stc}' for i in range(2)]
        if rdw: rs = [f'global_store_dword v{vLin}, v{NG2}, {sp(sArs)} offset:{1024*i}{stc}' for i in range(2)]
        vops = dict(d0=dm[0], d1=dm[1], d2=dm[2], d3=dm[3], r0=rs[0], r1=rs[1],
                    kv=f'global_store_dwordx4 v{vLin}, {vr(HK,4)}, {sp(sKVM)} sc1',
                    fl=f's_mov_b64 exec, {sp(sFm)}\nglobal_store_dword v{vLin}, v{T+4}, {sp(sFl)} sc1\ns_mov_b64 exec, -1',
                    tc=f'global_load_lds_dword v{vTc}, {sp(sWs)} offset:2048{tsc}',
                    rm=f'global_store_dword v{vMst}, v{NEG}, {sp(sMst)}{stc}')
        vt = {}; AK['vt'] = vt
        def VM(slot):
            for x_ in vp.split():
                o, s_ = x_.split('@')
                if s_ != slot: continue
                k_ = slot[0]; n_ = int(slot[1:])
                if yd == 2: assert k_ != 'Q' or n_ > 2 + (o[0] == 'r')
                if yd == 1 and o != 'kv': assert k_ != 'Q' or n_ > ckp[3] + 1 + (o[0] == 'r') * 2
                if o[0] == 'r': assert k_ == 'Q' and (1 if o == 'rm' or rdw else 4) <= n_ or k_ == 'V' or k_ in 'CW' and o != 'rm'
                if o == 'fl': assert k_ in 'AQV'
                if o == 'kv': assert k_ in 'PACW' or k_ == 'Q' and n_ < 21
                if o in ('d0', 'd1', 'tc'): assert 'd2' in vt and 'd3' in vt and 'rm' in vt
                if o in skip: vt[o] = a.nvm; continue
                vt[o] = a(vops[o])
            stamp(slot)
        mt = {}
        def rdM(sg): mt[sg] = a(f'ds_read_b128 {vr(M+4*sg,4)}, v{T+(sg//2-1)%4} offset:{1024*(sg%2)}')
        vq = [(sg,u) for sg in ((4,5,6,7,0,1,2,3) if yd else (0,1,4,5,6,7,2,3)) for u in (0,1)]
        def V_():
            sg, u = vq.pop(0); P_('v', sg, u)
        g1 = stg(('k',6), S0) + stg(('k',7), S1); tg1 = []
        def G1(i):
            if sgq <= i < sgq + 8: tg1.append(a(g1[i-sgq]))
        rq = [2,3,4,5,6,7]
        for j in range(3-fc,0 if yd else 12):
            if j == 3 - fc: pass
            elif j < 4: P_('q',1,j%2)
            elif j < 8: P_('k',(j-4)//2,j%2)
            else: V_()
            if vmf and j >= 4: VM('P0' if j == 4 else f'A{j-5}')
            if j > pb1 - 1 and rq and (rq[0] < 4 or j >= 3 + rq[0]//2): rdM(rq.pop(0))
            if j >= 9: G1(j-12)
            if not vmf and j >= 4: VM('P0' if j == 4 else f'A{j-5}')
            if j == pb1 - 1:
                a(f's_waitcnt lgkmcnt(0)\ns_barrier')
                stamp('a1')
                for _ in range(nr0): rdM(rq.pop(0))
        if yd == 1:
            a('s_barrier'); stamp('a1'); rq = list(range(8))
        if yd == 2: rq = [0,1]
        while rq: rdM(rq.pop(0))
        stamp('a2')
        QP = T+6; D0 = T; D1 = T+8; Dm = VA; X = XO
        def half(r, d): return [f'v_add_f32 v{r}, v{r}, v{r+2}', f'v_add_f32 v{r+1}, v{r+1}, v{r+3}', f'v_cvt_pk_bf16_f32 v{d}, v{r}, v{r+1}']
        a.wds(mt[0 if yd else 2])
        seq = [('q',s_,0) for s_ in range(2,8)] + [('q',2,1),('q',3,1),('k',6,0),('k',6,1),('k',7,0),('k',7,1)] + \
              [('q',s_,1) for s_ in range(4,8)] + [('k',s_,0) for s_ in range(2,6)] + [('k',s_,1) for s_ in range(2,6)]
        z0 = [f'v_mov_b64 {vr(M+2*i,2)}, 0' for i in range(4,8)]
        kx = [f'ds_read_b128 {vr(S+4*i,4)}, v{vKr} offset:{(i//2)*KVS+(i%2)*1024}' for i in range(8)]
        va = {i: f'v_mov_b32 v{NEG+i}, -1' for i in range(1 if rlate or rdw else 4)}
        for i, p_ in enumerate((4,5)): va[p_] = f'v_mov_b64 {vr(M+2*i,2)}, 0'
        wr = {}
        for p_, (r, d, off) in ((7, (QA, QP, 0)), (17, (QA+4, QP+1, 512)), (21, (KA, HK, 4))):
            for j, x_ in enumerate(half(r, d)): va[p_+j] = x_
            wr[p_+3] = f'ds_write_b32 v{vXw}, v{d} offset:{off}'
        xr = [f'ds_read_b64_tr_b16 {vr(X+2*i,2)}, v{vXr} offset:{i*512}' for i in range(8)]
        tx = []
        On = T+12; Cq = T+7
        rV = max([int(x_[4:]) for x_ in vp.split() if x_[0] == 'r' and x_[3] == 'V'] + [-1])
        fv = [f'v_mov_b64 {vr(On,2)}, {sp(sOne)}', f'v_mov_b64 {vr(On+2,2)}, {sp(sHalf)}', f'v_mov_b32 v{Cq}, s{sQc}', f'v_mov_b64 {vr(NEG+2,2)}, 0', f'v_mov_b64 {vr(NEG,2)}, 0']
        g2 = stg(('o',7), M+16)
        if yd:
            ku0 = [('k',s_,0) for s_ in range(1,6)]
            seq = [('q',0,0),('k',0,0),('k',0,1),('q',0,1),('q',1,0),('q',1,1)] + [('q',s_,u) for u in (0,1) for s_ in range(2,8)] + \
                  ku0[:kp] + [('k',6,0),('k',6,1),('k',7,0),('k',7,1)] + ku0[kp:] + [('k',s_,1) for s_ in range(1,6)]
            ck = NEG; got = 0
            va = {ckp[0]: f'v_max3_u32 v{ck}, v{M}, v{M+4}, v{M+8}', ckp[1]: f'v_max3_u32 v{ck}, v{ck}, v{M+12}, v{M+16}', ckp[2]: f'v_max3_u32 v{ck}, v{ck}, v{M+20}, v{M+24}',
                  ckp[3]: f'v_max_u32 v{ck}, v{ck}, v{M+28}', ckp[3]+1: f'v_cmp_eq_u32 vcc, -1, v{ck}', ckp[3]+3: f'v_mov_b32 v{NEG}, -1'}
            wr = {}
            for p_, (r, d, off) in ((13, (QA, QP, 0)), (19, (QA+4, QP+1, 512)), (28, (KA, HK, 4))):
                for j, x_ in enumerate(half(r, d)):
                    assert p_+j not in va
                    va[p_+j] = x_
                wr[p_+3] = f'ds_write_b32 v{vXw}, v{d} offset:{off}'
            fv = fv[:3]; fz = [f'v_mov_b64 {vr(M+2*i,2)}, 0' for i in range(4)]
            p6 = 18 + kp; g0 = ckp[3] + 2; NQK = 32
            if yd == 2:
                ku0 = [('k',s_,0) for s_ in range(2,6)]
                vo = [('v',0,0),('v',0,1),('v',1,0),('v',1,1)][:nvo]
                for x_ in vo: vq.remove(x_[1:])
                seq = [('q',0,0),('k',0,0),('k',0,1),('q',0,1),('q',1,0),('q',1,1),('k',1,0),('k',1,1)] + vo + \
                      ([('q',s_,u) for s_ in range(2,8) for u in (0,1)] if qo else [('q',s_,u) for u in (0,1) for s_ in range(2,8)]) + \
                      ku0[:kp] + [('k',6,0),('k',6,1),('k',7,0),('k',7,1)] + ku0[kp:] + [('k',s_,1) for s_ in range(2,6)]
                NQK = 32 + nvo
                va = {0: f'v_max_u32 v{ck}, v{M}, v{M+4}', 1: f'v_cmp_eq_u32 vcc, -1, v{ck}', 3: f'v_mov_b32 v{NEG}, -1'}
                wr = {}
                for p_, (r, d, off) in ((20 if qo else 15, (QA, QP, 0)), (23 if qo else 21, (QA+4, QP+1, 512)), (29, (KA, HK, 4))):
                    for j, x_ in enumerate(half(r, d)): va[p_+j+nvo] = x_
                    wr[p_+3+nvo] = f'ds_write_b32 v{vXw}, v{d} offset:{off}'
                p6 = 20 + kp + nvo; g0 = g0p
            for i in range(48):
                j = i - NQK
                if i < NQK: P_(*seq[i])
                else: V_()
                if vmf: VM(f'Q{i}' if i < NQK else f'V{j}')
                if yd == 2:
                    nd = 1 if i == 0 else seq[i+1][1] if i < 20 + nvo else 0
                    if i == 2:
                        a(f's_cbranch_vccnz {L("retry")}'); VM('P0'); a('s_barrier'); stamp('a1')
                        rdM(2); rdM(3); a(f's_mov_b32 m0, s{sVer}')
                    if 3 <= i < 7: rdM(i+1)
                else: nd = max([seq[i+1][1] if i < 11 else 0] + [(2,4,6,7)[c_] for c_ in range(4) if ckp[c_] == i])
                if nd > got: a.wds(mt[nd]); got = nd
                if i == g0 and yd == 1: a(f's_cbranch_vccnz {L("retry")}'); stamp('a3')
                if p6 - 1 <= i < p6 + 3: a.wds(tg1[2*(i-p6+1)+1])
                if g0 <= i < g0 + 8: tg1.append(a(g1[i-g0]))
                if i in wr: a(wr[i])
                if p6 + 4 <= i < p6 + 12: tkx = a(kx[i-p6-4])
                if not vmf: VM(f'Q{i}' if i < NQK else f'V{j}')
                if i in va: a(va[i])
                if i == NQK - 1: stamp('b0')
                if j == 1:
                    for x_ in half(KA+4, HK+1): a(x_)
                    wk = a(f'ds_write_b32 v{vXw}, v{HK+1} offset:516')
                if j == pB2: a.wds(wk); a('s_barrier'); stamp('b1')
                if j >= pB2:
                    for _ in range(ntr):
                        if len(tx) < 8: tx.append(a(xr[len(tx)])); busy = i
                if j >= max(g7 - 24, 10 - 2*len(g2)) and g2 and not (tx and busy == i): a(g2.pop(0))
                if j == 2: a(f's_mov_b64 vcc, {sp(sB0)}\ns_cmp_eq_u32 s{sT}, {nsteps-1}')
                if i == 47: a(f's_cbranch_scc1 {L("last")}')
                if 2 <= j and i < 47 and j != pB2:
                    if fv: a(fv.pop(0))
                    elif fz and not any(x_[0] == (0 if len(fz) > 2 else 1) for x_ in vq) and i >= (42 if len(fz) > 2 else 44) - 8*(nvo // 4): a(fz.pop(0))
            fv += fz
        MF = 'v_mfma_f32_16x16x32_bf16'
        p6 = 8
        if ps:
            seq = [('q',s_,u) for u in (0,1) for s_ in range(2,8)] + [('k',6,0),('k',6,1),('k',7,0),('k',7,1)] + [('k',s_,u) for u in (0,1) for s_ in range(2,6)]
            p6 = 12
            for p_ in range(17,20): del va[p_]
            for j, x_ in enumerate(half(QA+4, QP)): va[13+j] = x_
            del wr[20]
            B0 = T+8; B1 = T; DP = T+12
            for u in (0,1):
                wr[10+6*u] = f'ds_write_b64 v{vXw}, {vr(QP,2)} offset:{512*u}\nds_write_b32 v{vXw}, v{QP} offset:{4096+512*u+4}'
                rd_ = f'ds_read_b64_tr_b16 {vr(B0+2*u,2)}, v{vKr} offset:{512*u}\nds_read_b64_tr_b16 {vr(B1+2*u,2)}, v{vKr} offset:{4096+512*u}'
                wr[11+6*u] = rd_
            g5 = None
            xr += [f'ds_read2st64_b32 {vr(D0+2*i,2)}, v{T+5} offset0:{2*i} offset1:{2*i+1}' for i in range(2)]
        for i in range(0 if yd else 36):
            if i < 24: P_(*seq[i])
            else: V_()
            if i < 5: a.wds(mt[i+3])
            if p6 - 1 <= i < p6 + 3: a.wds(tg1[2*(i-p6+1)+1])
            G1(i)
            if i in wr: tw = a(wr[i])
            if ps:
                if i == 17: tq = tw
                if i == 16: g5 = stg(('o',5), S0) + stg(('o',6), S1)
                if i in (pad, pad+1):
                    for r in range(2*(i-pad), 2*(i-pad)+2): a(f'ds_add_f32 v{T+5}, v{DP+r} offset:{256*r}')
                if i in g56: a(g5.pop(0))
            elif pKx <= i < pKx + 8: tkx = a(kx[i-pKx])
            VM(f'Q{i}' if i < 24 else f'V{i-24}')
            if i in va: a(va[i])
            if ps and i == pmf:
                a.wds(tq)
                a(f'{MF} {vr(DP,4)}, {vr(KX,4)}, {vr(B0,4)}, 0\n{MF} {vr(DP,4)}, {vr(KX+4,4)}, {vr(B1,4)}, {vr(DP,4)}')
            if i == 23: stamp('b0')
            if i == 25:
                for x_ in half(KA+4, HK+1): a(x_)
                wk = a(f'ds_write_b32 v{vXw}, v{HK+1} offset:516')
            if i == 24 + pB2: a.wds(wk); a('s_barrier'); stamp('b1')
            if i >= 24 + pB2:
                for _ in range(ntr):
                    if len(tx) < len(xr): tx.append(a(xr[len(tx)])); busy = i
            if i >= max(g7, 34 - 2*len(g2)) and g2 and not (tx and busy == i): a(g2.pop(0))
            if i == 26: a(f's_mov_b64 vcc, {sp(sB0)}\ns_cmp_eq_u32 s{sT}, {nsteps-1}')
            if i == 35: a(f's_cbranch_scc1 {L("last")}')
            if 26 <= i < 35 and i != 24 + pB2 and not (tx and busy == i and ntr > 2) and fv and (len(fv) > 2 or i - 24 > rV): a(fv.pop(0))
        while len(tx) < len(xr): tx.append(a(xr[len(tx)]))
        stamp('c0')
        vf = half(VA, HV) + half(VA+4, HV+1)
        mx = T+4; tm = T+5; ma = T+6; vOr = T+4
        if not ps: g5 = stg(('o',5), S0); g6 = stg(('o',6), S1)
        P = T+8; Dd = T+10; Ba = XO; Bb = XO+4; Po = XO+8; Ls = XO+12
        MF = 'v_mfma_f32_16x16x32_bf16'
        lastc = list(vf)
        mg = [f'v_cndmask_b32_dpp v{D0+r}, v{D1+r}, v{D0+r}, vcc quad_perm:[0,1,0,1] {DPPM}' for r in range(4)] + \
             [f'v_max3_f32 v{mx}, v{D0}, v{D0+1}, v{D0+2}', f'v_max_f32 v{mx}, v{mx}, v{D0+3}']
        rest = g2 + fv
        a.wds(tx[{0: 7, 1: 3, 2: 1}[wx]])
        Dq = Dm
        if ps:
            Dq = D1; g6 = g2 + g5; rest = []
            fl_ = fv + vf[:3] + mg[4:] + vf[3:]
            for i in range(4):
                r = X+4*i; a(f'{MF} {vr(Dq,4)}, {vr(r,4)}, {vr(r,4)}, {vr(Dq,4) if i else 0}')
                stamp(f'M{i}')
                if i == 1: a.wds(tx[9])
                for _ in range(2):
                    if g6: a(g6.pop(0))
                for _ in range(2 if i else 1): a(fl_.pop(0))
            for x_ in fl_: a(x_)
        for i in range(0 if ps else 12):
            if i < 8:
                w_ = i//2; d = (D0, D1)[i%2]
                a(f'{MF} {vr(d,4)}, {vr(S+4*i,4)}, {vr(X+4*w_,4)}, {vr(d,4) if w_ else 0}')
            else:
                r = X+4*(i-8); a(f'{MF} {vr(Dm,4)}, {vr(r,4)}, {vr(r,4)}, {vr(Dm,4) if i > 8 else 0}')
            stamp(f'M{i}')
            if i == 0:
                for _ in range(2):
                    if rest: a(rest.pop(0))
            elif i == 1 and wx == 2: a.wds(tx[3]); a(vf.pop(0))
            elif i == 3 and wx: a.wds(tx[7]); a(vf.pop(0))
            elif i < 4: a(vf.pop(0)); a(vf.pop(0))
            elif i < 8:
                a(g5.pop(0))
                if vf: a(vf.pop(0))
                elif rest: a(rest.pop(0))
                elif i >= 6: a(g6.pop(0))
            elif i == 8: a(g6.pop(0)); a(g6.pop(0))
            else: a(mg.pop(0)); a(mg.pop(0))
        assert not rest
        for x_ in g6: a(x_)
        stamp('c1')
        a(f'v_max_f32_dpp v{mx}, v{mx}, v{mx} quad_perm:[2,3,0,1] {DPPM}')
        a(f'v_mul_f32 v{mx}, v{mx}, v{Cq}')
        a(f'v_mul_f32_dpp v{Dm}, v{Dq+2}, v{Cq} quad_perm:[0,1,0,1] {DPPM}')
        a(f'v_mul_f32_dpp v{Dm+1}, v{Dq+3}, v{Cq} quad_perm:[0,1,0,1] {DPPM}')
        a(f'v_max3_f32 v{tm}, v{mx}, v{Dm}, v{Dm+1}')
        a(f'v_max3_f32 v{mx}, v{mx}, v{Dm}, v{Dm+1}')
        a(z0.pop()); a(z0.pop())
        a(f'v_permlane16_swap_b32 v{mx}, v{tm}\nv_max_f32 v{ma}, v{mx}, v{tm}\nv_max_f32 v{mx}, v{mx}, v{tm}')
        a(z0.pop()); a(z0.pop())
        a(f'v_permlane32_swap_b32 v{mx}, v{ma}\nv_max_f32 v{mx}, v{mx}, v{ma}')
        ex = [Dm, Dm+1, T, T+1, T+2, T+3]
        for r in ex[:2]: a(f'v_sub_f32 v{r}, v{r}, v{mx}')
        for r in ex[2:]: a(f'v_fma_f32 v{r}, v{r}, v{Cq}, -v{mx}')
        for r in ex[:4]: a(f'v_exp_f32 v{r}, v{r}')
        a(f'v_cvt_pk_bf16_f32 v{Dm}, v{Dm}, v{Dm+1}')
        for r in ex[4:]: a(f'v_exp_f32 v{r}, v{r}')
        stamp('c2')
        a.wvm(max(vt['d2'], vt['d3'], vt['rm']))
        a(f"""
        v_cvt_pk_bf16_f32 v{P}, v{T}, v{T+1}
        v_and_b32 v{Dd}, v{Dm}, v{vM0}
        v_and_b32 v{Dd+1}, v{Dm}, v{vM1}
        v_cvt_pk_bf16_f32 v{P+1}, v{T+2}, v{T+3}
        v_and_b32 v{Ba}, v{P}, v{vM0}
        v_mfma_f32_16x16x16_bf16 {vr(Po,4)}, {vr(HV,2)}, {vr(Dd,2)}, 0
        v_and_b32_dpp v{Ba+2}, v{P}, v{vM0} quad_perm:[2,3,0,1] {DPPM}
        v_and_b32 v{Ba+1}, v{P+1}, v{vM0}
        v_mfma_f32_16x16x32_bf16 {vr(Ls,4)}, {vr(On,4)}, {vr(P,4)}, 0
        v_and_b32_dpp v{Ba+3}, v{P+1}, v{vM0} quad_perm:[2,3,0,1] {DPPM}
        v_and_b32_dpp v{Bb}, v{P}, v{vM1} quad_perm:[2,3,0,1] {DPPM}
        v_and_b32_dpp v{Bb+1}, v{P+1}, v{vM1} quad_perm:[2,3,0,1] {DPPM}
        v_mfma_f32_16x16x32_bf16 {vr(Po,4)}, {vr(VX,4)}, {vr(Ba,4)}, {vr(Po,4)}
        v_and_b32 v{Bb+2}, v{P}, v{vM1}
        v_and_b32 v{Bb+3}, v{P+1}, v{vM1}
        v_and_b32 v{vOr}, -9, v{vOw}
        v_xor_b32 v{vOr+1}, 512, v{vOr}
        v_mfma_f32_16x16x32_bf16 {vr(Po,4)}, {vr(VX+4,4)}, {vr(Bb,4)}, {vr(Po,4)}
        v_add_f32_dpp v{Ls}, v{Ls}, v{Ls} quad_perm:[2,3,0,1] {DPPM}
        v_rcp_f32 v{Ls}, v{Ls}
        v_xor_b32 v{vOr+2}, 1024, v{vOr}
        v_xor_b32 v{vOr+3}, 1536, v{vOr}
        """)
        assert not z0
        if rlate: a(f'v_mov_b64 {vr(T,2)}, -1' + ('' if rdw else f'\nv_mov_b64 {vr(T+2,2)}, -1'))
        a(f"""
        v_mul_f32 v{Po}, v{Po}, v{Ls}
        v_mul_f32 v{Po+1}, v{Po+1}, v{Ls}
        v_mul_f32 v{Po+2}, v{Po+2}, v{Ls}
        v_mul_f32 v{Po+3}, v{Po+3}, v{Ls}
        v_cvt_pk_bf16_f32 v{Po}, v{Po}, v{Po+1}
        v_cvt_pk_bf16_f32 v{Po+1}, v{Po+2}, v{Po+3}
        """)
        O = XO
        ow = a(f'ds_write_b64 v{vOw}, {vr(Po,2)}')
        ot = [a(f'ds_read_b128 {vr(O,4)}, v{vOr}')]
        stamp('c3')
        VM('C0')
        a.wds(ow); a('s_barrier')
        stamp('d0')
        for k_ in range(1,4): ot.append(a(f'ds_read_b128 {vr(O+4*k_,4)}, v{vOr+k_}'))
        VM('C1')
        PS = VA
        def W_(G, ki): SM(M+4*G, O+4*ki, 'o', 2*ki+G//2, G%2)
        def cv(G): return [f'v_cvt_pk_bf16_f32 v{PS+2*G+h_}, v{M+4*G+2*h_}, v{M+4*G+2*h_+1}' for h_ in range(2)]
        a.wds(ot[0])
        for G in range(4):
            W_(G, 0); VM(f'W{G}')
        a.wds(ot[1])
        stamp('d1')
        if w4:
            def st_(G):
                c_ = cv(G)
                if dw: return sum([[c_[h_], f'v_min_u32 v{PS+2*G+h_}, -2, v{PS+2*G+h_}', f'global_store_dword v{vPst}, v{PS+2*G+h_}, {sp((sSt0,sSt1)[h_])} offset:{2048*G-4096}{stc}'] for h_ in range(2)], [])
                return [c_[0], f'v_min_u32 v{PS+2*G}, -2, v{PS+2*G}', c_[1], f'global_store_dwordx2 v{vPst}, {vr(PS+2*G,2)}, {sp(sSt0)} offset:{2048*G-4096}{stc}']
            fl_ = [f'v_mov_b32 v{T+2}, 0x3f80', f'v_mov_b32 v{T+3}, 0x3f800000', f'v_cndmask_b32 v{T+2}, v{T+2}, v{T+3}, {sp(sPm)}']
            W_(0,1); a.wds(ot[2]); W_(0,2); a.wds(ot[3]); W_(0,3)
            if wo >= 4:
                sd = lambda G, h_: f'global_store_dword v{vPst}, v{PS+2*G+h_}, {sp((sSt0,sSt1)[h_])} offset:{2048*G-4096}{stc}'
                for G in range(1,4):
                    c_ = cv(G-1)
                    W_(G,1)
                    if G > 1 and wo == 4: a(sd(G-2,1))
                    a(fl_.pop(0))
                    W_(G,2); a(c_[0])
                    if wo == 5: a(c_[1])
                    W_(G,3); a(sd(G-1,0))
                    if wo == 5: a(sd(G-1,1))
                    else: a(c_[1])
                a(f'v_cndmask_b32 v{Sel}, 0, v{T+2}, {sp(sSel)}')
                if wo == 4: a(sd(2,1))
                for i in range(1,4): a(f'v_cndmask_b32 v{Sel+i}, 0, v{T+2}, {sp(sSel+2*i)}')
                for x_ in cv(3) + [sd(3,0), sd(3,1)]: a(x_)
            for G in range(1,4 if wo < 4 else 0):
                q_ = st_(G-1)
                W_(G,1); a(fl_.pop(0))
                if wo == 2 and G == 1:
                    for x_ in q_: a(x_)
                    q_ = []
                W_(G,2)
                for _ in range((6 if wo >= 1 and G == 1 else 3) if dw else 4 if wo >= 1 and G == 1 else 2):
                    if q_: a(q_.pop(0))
                W_(G,3)
                for x_ in q_: a(x_)
            if wo < 4:
                for i in range(4): a(f'v_cndmask_b32 v{Sel+i}, 0, v{T+2}, {sp(sSel+2*i)}')
                for x_ in st_(3): a(x_)
        else:
            W_(0,1); VM('W4'); W_(1,1); a.wds(ot[2]); VM('W5'); W_(0,2); VM('W6'); W_(1,2); a.wds(ot[3]); VM('W7'); W_(0,3); VM('W8'); W_(1,3)
            c0 = cv(0); c1 = cv(1); c2 = cv(2); c3 = cv(3)
            W_(2,1); a(c0[0])
            W_(2,2); a(c0[1]); a(c1[0])
            W_(2,3); a(c1[1]); a(f'v_min_u32 v{PS}, -2, v{PS}')
            W_(3,1); a(f'global_store_dwordx4 v{vPst}, {vr(PS,4)}, {sp(sSt0)}{stc}')
            W_(3,2); a(c2[0])
            W_(3,3); a(c2[1]); a(f'v_min_u32 v{PS+4}, -2, v{PS+4}')
            a(f'v_mov_b32 v{T+2}, 0x3f80\nv_mov_b32 v{T+3}, 0x3f800000')
            a(f'v_cndmask_b32 v{T+2}, v{T+2}, v{T+3}, {sp(sPm)}')
            a(c3[0]); a(c3[1])
            a(f'global_store_dwordx4 v{vPst}, {vr(PS+4,4)}, {sp(sSt1)}{stc}')
        stamp('h0')
        if 'ack' in opt: a('s_waitcnt vmcnt(0)'); stamp('hk')
        n0 = len(a.items)
        for x_ in stg(('q',0), S0) + stg(('q',1), S1): a(x_)
        if not w4:
            for i in range(4): a(f'v_mov_b32 v{Sel+i}, v{T+2}' if ra == 1 else f'v_cndmask_b32 v{Sel+i}, 0, v{T+2}, {sp(sSel+2*i)}')
            if ra in (1,2): a(f'v_lshrrev_b32 v{T+1}, {3-ra}, v{vLin}\nv_cndmask_b32 v{T+3}, -1, -2, {sp(sSel)}')
            a.nops(preA - (len(a.items) - n0))
        else:
            cur = len(a.items) - n0
            for w_ in range(4):
                a.nops(w4[w_] - cur - (2 if w_ < 3 else 0)); cur = max(cur + (2 if w_ < 3 else 0), w4[w_])
                if w_ < 3: a(f's_cmp_eq_u32 s{sW}, {w_}\ns_cbranch_scc1 {L("p0")}')
            a.label(L('p0'))
        R1 = M+8; R2 = P2
        def redA(R):
            if ra == 2:
                a(f"""
                s_waitcnt vmcnt(6)
                v_mfma_f32_16x16x32_bf16 {vr(Dr,4)}, {vr(Sel,4)}, {vr(R,4)}, 0
                s_waitcnt vmcnt(4)
                v_mfma_f32_16x16x32_bf16 {vr(Dr,4)}, {vr(Sel,4)}, {vr(R+4,4)}, {vr(Dr,4)}
                v_max3_u32 v{T}, v{R}, v{R+2}, v{R+4}
                v_max_u32 v{T}, v{T}, v{R+6}
                v_cmp_gt_u32 vcc, v{T}, v{T+3}
                """)
                return
            if ra == 4:
                a(f"""
                s_waitcnt vmcnt(3)
                v_mfma_f32_16x16x32_bf16 {vr(Dr,4)}, {vr(Sel,4)}, {vr(R,4)}, 0
                {f'v_max3_u32 v{T}, v{R}, v{R+1}, v{R+2}' if dw and mk == 8 else ''}
                s_waitcnt vmcnt(2)
                v_mfma_f32_16x16x32_bf16 {vr(Dr,4)}, {vr(Sel,4)}, {vr(R+4,4)}, {vr(Dr,4)}
                {f'v_max3_u32 v{T}, v{T}, v{R+3}, v{R+4}{NL}v_max3_u32 v{T}, v{T}, v{R+5}, v{R+6}{NL}v_max_u32 v{T}, v{T}, v{R+7}' if dw and mk == 8 else f'v_max3_u32 v{T}, v{R}, v{R+2}, v{R+4}{NL}v_max_u32 v{T}, v{T}, v{R+6}' if w4 and not dw else f'v_max_u32 v{T}, v{R}, v{R+4}'}
                v_cmp_eq_u32 vcc, -1, v{T}
                """)
                return
            if ra:
                a(f"""
                s_waitcnt vmcnt(12)
                v_mfma_f32_16x16x32_bf16 {vr(Dr,4)}, {vr(R,4)}, {vr(Sel,4)}, 0
                v_max3_u32 v{T}, v{R}, v{R+1}, v{R+2}
                s_waitcnt vmcnt(8)
                v_mfma_f32_16x16x32_bf16 {vr(Dr,4)}, {vr(R+4,4)}, {vr(Sel,4)}, {vr(Dr,4)}
                v_max3_u32 v{T}, v{T}, v{R+3}, v{R+4}
                v_max3_u32 v{T}, v{T}, v{R+5}, v{R+6}
                v_max_u32 v{T}, v{T}, v{R+7}
                v_cmp_gt_u32 vcc, v{T}, v{T+3}
                """)
                return
            a(f"""
            s_waitcnt vmcnt(3)
            v_mfma_f32_16x16x32_bf16 {vr(Dr,4)}, {vr(R,4)}, {vr(Sel,4)}, 0
            s_waitcnt vmcnt(2)
            v_mfma_f32_16x16x32_bf16 {vr(Dr,4)}, {vr(R+4,4)}, {vr(Sel,4)}, {vr(Dr,4)}
            v_max_u32 v{T}, v{R}, v{R+4}
            v_cmp_eq_u32 vcc, -1, v{T}
            """)
        ldA(R1)
        a.nops(gapA - {0:2, 1:8, 2:4, 4:2}[ra])
        a.label(L('pa'))
        ldA(R2)
        redA(R1)
        if ft: a(f's_cbranch_vccnz {L("pb")}')
        else:
            a(f's_cbranch_vccz {L("qa")}')
            ldA(R1); spin()
            redA(R2)
            a(f's_cbranch_vccnz {L("pa")}')
        a.label(L('qa'))
        stamp('h1')
        if ra > 1:
            for ro in ((8,) if ra == 2 else (8,4)):
                for r in range(2): a(f'v_add_f32_dpp v{Dr+r}, v{Dr+r}, v{Dr+r} row_ror:{ro} {DPPM}')
            a(f"""
            s_mov_b64 exec, {sp(sPub)}
            v_cvt_pk_bf16_f32 v{Dr}, v{Dr}, v{Dr+1}
            {'' if nc else f'v_min_u32 v{Dr}, -2, v{Dr}'}
            global_store_dword v{vMst}, v{Dr}, {sp(sMst)}{stc}
            """)
        elif ra: a(f"""
        s_mov_b64 exec, {sp(sPub)}
        v_cvt_pk_bf16_f32 v{Dr}, v{Dr}, v{Dr+1}
        v_cvt_pk_bf16_f32 v{Dr+1}, v{Dr+2}, v{Dr+3}
        v_min_u32 v{Dr}, -2, v{Dr}
        global_store_dwordx2 v{vMst}, {vr(Dr,2)}, {sp(sMst)}{stc}
        """)
        else: a(f"""
        v_permlane32_swap_b32 v{Dr}, v{Dr+2}
        v_permlane32_swap_b32 v{Dr+1}, v{Dr+3}
        v_add_f32 v{Dr}, v{Dr}, v{Dr+2}
        v_add_f32 v{Dr+1}, v{Dr+1}, v{Dr+3}
        v_permlane16_swap_b32 v{Dr}, v{Dr+1}
        v_add_f32 v{Dr}, v{Dr}, v{Dr+1}
        v_mov_b32_dpp v{Dr+1}, v{Dr} quad_perm:[1,0,3,2] {DPPM}
        v_cvt_pk_bf16_f32 v{Dr}, v{Dr}, v{Dr+1}
        s_mov_b64 exec, {sp(sPub)}
        v_min_u32 v{Dr}, -2, v{Dr}
        global_store_dword v{vMst}, v{Dr}, {sp(sMst)}{stc}
        """)
        stamp('h2')
        a(f"""
        s_mov_b64 exec, -1
        """)
        if w4 and bb: a('s_barrier')
        stamp('h3')
        tstamp(f's{sT}')
        if prof and len(stamps) >= 2:
            a('s_waitcnt lgkmcnt(0)')
            for i in range(len(stamps)-1): a(f's_sub_u32 s{sA}, s{sP+2*i+2}, s{sP+2*i}\ns_add_u32 s{sP+21+i}, s{sP+21+i}, s{sA}')
        if prof:
            a(f's_cmp_lg_u32 s{sT}, 3\ns_cbranch_scc1 {L("pf1")}\ns_memtime {sp(sP+28)}\ns_mov_b32 s{sSpin}, 0')
            for i in range(6): a(f's_mov_b32 s{sP+21+i}, 0')
            a(f'{L("pf1")}:\ns_cmp_lg_u32 s{sT}, {nsteps-2}\ns_cbranch_scc1 {L("pf2")}\ns_memtime {sp(sP)}\ns_waitcnt lgkmcnt(0)\ns_sub_u32 s{sP+20}, s{sP}, s{sP+28}\n{L("pf2")}:')
        a(f's_add_u32 s{sT}, s{sT}, 1\ns_branch {L("step")}')
        if ft:
            a.label(L('pb'))
            ldA(R1); spin()
            redA(R2)
            a(f's_cbranch_vccnz {L("pa")}\ns_branch {L("qa")}')
        a.label(L('rp'))
        if ps: a(f'v_lshrrev_b32 v{T+6}, 2, v{vLin}')
        a(f'global_load_dword v{T+6}, v{T+6 if ps else T+5}, {sp(sFK)} sc1')
        spin()
        a('s_waitcnt vmcnt(0)')
        fkeval(T+6)
        a(f's_cmp_lt_u32 s{sA}, s{sRdy}\ns_cbranch_scc1 {L("rk")}\ns_sleep 2\ns_branch {L("rp")}')
        a.label(L('last'))
        if TL: a(f's_memtime s[94:95]\ns_waitcnt lgkmcnt(0)\ns_sub_u32 s94, s94, s92')
        a('s_nop 7')
        for x_ in lastc: a(x_)
        a(f's_branch {LE}')
    loop(L, stc)
    if mega: loop(lambda x: L('s_' + x), ' sc1', *((8, 0) if dw else ()))
    a.label(L('end'))
    a('s_mov_b64 exec, -1\ns_nop 7')
    a(f'''
    s_add_u32 s{sKVM}, s{sKVM}, {0 if kvnow else 32*4096}
    s_addc_u32 s{sKVM+1}, s{sKVM+1}, 0
    global_store_dwordx4 v{vLin}, {vr(HK,4)}, {sp(sKVM)} sc1
    v_mov_b32 v{T}, 0x41
    s_waitcnt vmcnt(0)
    s_barrier
    s_mov_b64 exec, {sp(sFm)}
    global_store_dword v{vLin}, v{T}, {sp(sFl)} sc1
    s_mov_b64 exec, -1
    ''')
    if wb == 1: a(f's_cmp_lg_u32 s{sW}, 0\ns_cbranch_scc1 {L("nwb")}\nbuffer_wbl2 sc1\n{L("nwb")}:')
    if wb == 2: a(f's_lshl_b32 s{sA}, s{sH}, 2\ns_add_u32 s{sA}, s{sA}, s{sW}\ns_cmp_lg_u32 s{sA}, 0\ns_cbranch_scc1 {L("nwb")}\nbuffer_wbl2 sc1\n{L("nwb")}:')
    if prof:
        for i in range(7): a(f'v_mov_b32 v{T+i}, s{sP+20+i}')
        a(f'''
        v_mov_b32 v{T+7}, s{sSpin}
        s_lshl_b32 s{sA}, s{sH}, 2
        s_add_u32 s{sA}, s{sA}, s{sW}
        s_lshl_b32 s{sA}, s{sA}, 5
        s_add_u32 s{sA}, s{sA}, {WS_PROF}
        v_mov_b32 v{T+8}, s{sA}
        s_mov_b64 exec, 1
        global_store_dwordx4 v{T+8}, {vr(T,4)}, {sp(sWs)}
        global_store_dwordx4 v{T+8}, {vr(T+4,4)}, {sp(sWs)} offset:16
        s_mov_b64 exec, -1
        ''')
    tl(a, 4, T, 0)
    a('s_waitcnt vmcnt(0) lgkmcnt(0)')

def standalone(name='chain_kernel', **kw):
    a = Asm()
    a.raw(khead(name))
    a(f'''
    s_load_dwordx2 {sp(sMem)}, s[0:1], 8
    s_load_dwordx4 s[8:11], s[0:1], 24
    s_load_dwordx2 {sp(sWq)}, s[0:1], 16
    s_load_dwordx2 {sp(sWo)}, s[0:1], 40
    s_load_dwordx2 {sp(sDbg)}, s[0:1], 104
    s_load_dwordx2 {sp(sWs)}, s[0:1], 112
    s_getreg_b32 s{sA}, hwreg(HW_REG_XCC_ID)
    s_and_b32 s{sA}, s{sA}, 15
    s_mov_b32 s{sXcc}, s{sA}
    s_waitcnt lgkmcnt(0)
    s_cmp_lg_u32 s{sA}, 0
    s_cbranch_scc1 L_done_{name}
    v_mov_b32 v1, 0
    v_mov_b32 v2, 1
    v_lshrrev_b32 v4, 6, v0
    v_readfirstlane_b32 s{sW}, v4
    s_cmp_lg_u32 s{sW}, 0
    s_cbranch_scc1 L_t_{name}
    s_mov_b64 exec, 1
    global_atomic_add v3, v1, v2, {sp(sDbg)} offset:252 sc0 sc1
    s_waitcnt vmcnt(0)
    ds_write_b32 v1, v3
    s_waitcnt lgkmcnt(0)
    s_mov_b64 exec, -1
    L_t_{name}:
    s_barrier
    ds_read_b32 v3, v1
    s_waitcnt lgkmcnt(0)
    v_readfirstlane_b32 s{sH}, v3
    s_barrier
    s_cmp_gt_u32 s{sH}, 31
    s_cbranch_scc1 L_done_{name}
    ''')
    chain(a, name, **kw)
    a.label(f'L_done_{name}')
    a('s_endpgm')
    bad = a.check_branches()
    assert bad == 0
    return a

if __name__ == '__main__':
    import sys
    variants = eval(sys.argv[1]) if len(sys.argv) > 1 else [dict()]
    out = ''.join(f'; @launch kernel=c{i}_kernel grid=(256,1,1) block=(256,1,1) lds=163840\n' for i in range(len(variants)))
    out += '.amdgcn_target "amdgcn-amd-amdhsa--gfx950"\n.text\n'
    for i, v in enumerate(variants):
        a = standalone(f'c{i}_kernel', prof=True, **v); out += a.text()
    out += '.section .rodata,"a"\n' + ''.join(kdesc(f'c{i}_kernel') for i in range(len(variants)))
    open('chain.s','w').write(out)
    open('chain.json','w').write(repr(variants))
```

```python
from asmlib import *
import gen_chain as C
from gen_chain import sp, sMem,sWq,sWk,sWv,sWo,sDbg,sWs,sH,sW,sXcc,QSCALE,WS_KVM,f32,WS_FL,FL_K,FL_G,FL_P
import math
NAME = 'gated_mix__memory_aug_recurrent_mem_tr__glu_gated_bilinear__prompt_kernel'
WS_QX = 64<<20; WS_ACT = 128<<20; ACT_T = 180224; WS_F2 = 63<<20
WSPIN = 60000
WS_IB = 96<<20; FL_X = 24576
def TM(): return X.get('tm', 128)
sGrp = 20; sSpin = 21; sA, sB, sC, sD = 22, 23, 24, 25
sX, sWg, sWu, sWd, sGw, sOut = 30, 32, 34, 36, 38, 40
MF = 'v_mfma_f32_16x16x32_bf16'
X = {}
def NG3(): return X.get('ng3', 4)

def add64(a, d, s, off):
    o = f's{off}' if isinstance(off, str) is False and False else off
    a(f's_add_u32 s{d}, s{s}, {off}\ns_addc_u32 s{d+1}, s{s+1}, 0')

def poll(a, lab, loads, check, sl=8):
    a(f"""
    s_mov_b32 s{sSpin}, 0
    {lab}_p:
    {loads}
    s_add_u32 s{sSpin}, s{sSpin}, 1
    s_cmp_gt_u32 s{sSpin}, {WSPIN}
    s_cbranch_scc1 {lab}_b
    s_waitcnt vmcnt(0)
    {check}
    s_cbranch_vccz {lab}_b
    s_sleep {sl}
    s_branch {lab}_p
    {lab}_b:
    s_waitcnt vmcnt(0)
    """)

class Filt:
    def __init__(s, a): s.__dict__['a'] = a
    def __getattr__(s, k): return getattr(s.a, k)
    def __setattr__(s, k, v): setattr(s.a, k, v)
    def __call__(s, t):
        if t.startswith('global_store_dwordx4 v6'):
            if X.get('nost'): return None
            if X.get('plain'): t = t.replace(' sc1', '')
            if X.get('nt'): t = t.replace(' sc1', ' sc1 nt')
            if X.get('stb'): t = t.replace(' sc1', X['stb'])
        return s.a(t)
def t1(a):
    a = Filt(a)
    sTile, sBuf, sStr, sW0, sW1, sO0, sO1, sBlk, sM, sXb = 44, 45, 46, 48, 50, 52, 54, 56, 57, 58
    sStep, sFo, sFb = 47, 60, 62
    vOne, vFo, vPf, vPr, vRa, vRd, vXr = 14, 15, 7, 128, 129, 130, 131
    XR = 23; NB1 = X.get('nb1', 16)
    ACC = 16; WF = 80; PK = 112
    vLane, vN, vG, vLin, vTr, vRow, vCh, vA, vXo = 3, 4, 5, 6, 8, 10, 11, 12, 13
    acc = lambda T, hf, v: ACC + 16*T + 8*hf + 4*v
    def prefetch(nk=3, st=896):
        a(f'''
        s_sub_u32 s{sA}, s{sGrp}, 1
        s_lshl_b32 s{sB}, s{sH}, 2
        s_add_u32 s{sB}, s{sB}, s{sW}
        s_mul_i32 s{sB}, s{sB}, 7
        s_add_u32 s{sA}, s{sA}, s{sB}
        v_and_b32 v1, 63, v0
        v_lshlrev_b32 v1, 7, v1
        ''')
        for k in range(nk):
            a(f'''
            s_min_u32 s{sA}, s{sA}, 2047
            s_bitcmp1_b32 s{sA}, 9
            s_cselect_b64 {sp(sO0)}, {sp(sWk)}, {sp(sWq)}
            s_cselect_b64 {sp(sO1)}, {sp(sWo)}, {sp(sWv)}
            s_bitcmp1_b32 s{sA}, 10
            s_cselect_b64 {sp(sO0)}, {sp(sO1)}, {sp(sO0)}
            s_and_b32 s{sB}, s{sA}, 511
            s_lshl_b32 s{sB}, s{sB}, 13
            s_add_u32 s{sO0}, s{sO0}, s{sB}
            s_addc_u32 s{sO0+1}, s{sO0+1}, 0
            global_load_dword v{vPf}, v1, {sp(sO0)}{X.get('pfc', '')}
            s_add_u32 s{sA}, s{sA}, {st}
            ''')
    def pfo():
        a(f'''
        s_sub_u32 s{sA}, s{sGrp}, 5
        s_lshl_b32 s{sA}, s{sA}, 7
        s_lshl_b32 s{sB}, s{sH}, 2
        s_add_u32 s{sA}, s{sA}, s{sB}
        s_add_u32 s{sA}, s{sA}, s{sW}
        v_and_b32 v1, 63, v0
        v_lshlrev_b32 v1, {X.get('pfs', 7)}, v1
        s_cmp_lt_u32 s{sGrp}, 5
        s_cselect_b64 exec, 0, -1
        ''')
        ps_ = X.get('pfs', 7); nr_ = 512 << (7 - ps_)
        for mat in X.get('pfm', 'o'):
            if mat == 'Q':
                a(f'''
                v_and_b32 v2, 3, v0
                v_lshlrev_b32 v2, 6, v2
                v_bfe_u32 v3, v0, 2, 4
                v_lshl_add_u32 v2, v3, 10, v2
                v_add_u32 v2, 256, v2
                s_min_u32 s{sB}, s{sA}, 255
                s_lshl_b32 s{sB}, s{sB}, 14
                s_add_u32 s{sO0}, s{sWq}, s{sB}
                s_addc_u32 s{sO0+1}, s{sWq+1}, 0
                global_load_dword v{vPf}, v2, {sp(sO0)}
                v_and_b32 v3, 63, v0
                ''')
                continue
            b_ = dict(q=sWq, k=sWk, v=sWv, o=sWo)[mat]
            for k in range((nr_ + 383) // 384):
                a(f'''
                s_add_u32 s{sB}, s{sA}, {384*k}
                s_min_u32 s{sB}, s{sB}, {nr_-1}
                s_lshl_b32 s{sB}, s{sB}, {ps_+6}
                s_add_u32 s{sO0}, s{b_}, s{sB}
                s_addc_u32 s{sO0+1}, s{b_+1}, 0
                global_load_dword v{vPf}, v1, {sp(sO0)}
                ''')
        a('s_mov_b64 exec, -1')
    if X.get('pf') == 1: prefetch()
    if X.get('pf') == 5: pfo()
    a(f'''
    s_add_u32 s{sFb}, s{sWs}, {WS_FL}
    s_addc_u32 s{sFb+1}, s{sWs+1}, 0
    v_mov_b32 v{vOne}, 1
    s_cmp_lg_u32 s{sGrp}, 7
    s_cbranch_scc1 Lt1_nz
    s_cmp_gt_u32 s{sH}, 16
    s_cbranch_scc1 Lt1_nz
    s_cmp_eq_u32 s{sH}, 16
    s_cselect_b32 s{sA}, 0, -1
    v_mov_b32 v{PK}, s{sA}
    v_mov_b32 v{PK+1}, s{sA}
    v_mov_b32 v{PK+2}, s{sA}
    v_mov_b32 v{PK+3}, s{sA}
    s_lshl_b32 s{sA}, s{sH}, 15
    s_add_u32 s{sA}, s{sA}, {C.WS_RA}
    s_cmp_eq_u32 s{sH}, 16
    s_cselect_b32 s{sA}, {WS_FL}, s{sA}
    v_lshl_add_u32 v1, v0, 4, s{sA}
    ''')
    for i in range(8):
        a(f'global_store_dwordx4 v1, {vr(PK,4)}, {sp(sWs)} sc1')
        if i < 7: a('v_add_u32 v1, 4096, v1')
    a(f'''
    s_lshl_b32 s{sA}, s{sH}, 10
    s_add_u32 s{sA}, s{sA}, {C.WS_RM}
    v_lshl_add_u32 v1, v0, 2, s{sA}
    global_store_dword v1, v{PK}, {sp(sWs)} sc1
    s_lshl_b32 s{sA}, s{sH}, 2
    s_add_u32 s{sA}, s{sA}, 32
    s_cmp_eq_u32 s{sH}, 16
    s_cselect_b32 s{sA}, 160, s{sA}
    s_add_u32 s{sA}, s{sA}, s{sW}
    v_mov_b32 v1, s{sA}
    s_waitcnt vmcnt(0)
    s_mov_b64 exec, 1
    global_store_byte v1, v{vOne}, {sp(sDbg)} sc1
    s_mov_b64 exec, -1
    Lt1_nz:
    ''')
    if X.get('pf') == 3:
        a(f's_cmp_ge_u32 s{sH}, 21\ns_cbranch_scc1 Lt1_npf')
        prefetch(4, 588)
        a.label('Lt1_npf')
    if X.get('nowork'): a('s_waitcnt vmcnt(0)\ns_endpgm')
    if X.get('only0'): a(f's_waitcnt vmcnt(0)\ns_cmp_lt_u32 s{sH}, 21\ns_cbranch_scc1 L_t1e')
    a(f'''
    v_and_b32 v{vLane}, 63, v0
    v_and_b32 v{vN}, 15, v0
    v_lshrrev_b32 v{vG}, 4, v{vLane}
    v_lshlrev_b32 v{vLin}, 4, v{vLane}
    s_sub_u32 s{sB}, s{sGrp}, 5
    s_sub_u32 s{sA}, s{sH}, {NB1}
    s_and_b32 s{sBlk}, s{sA}, 1
    s_add_u32 s{sBlk}, s{sBlk}, 2
    s_lshr_b32 s{sA}, s{sA}, 1
    s_cmp_lt_u32 s{sH}, {NB1}
    s_cselect_b32 s{sBlk}, 1, s{sBlk}
    s_cselect_b32 s{sA}, s{sH}, s{sA}
    s_cselect_b32 s{sStep}, {NB1}, {(32-NB1)//2}
    s_mul_i32 s{sTile}, s{sB}, s{sStep}
    s_add_u32 s{sTile}, s{sTile}, s{sA}
    s_mul_i32 s{sStep}, s{sStep}, 3
    s_lshl_b32 s{sA}, s{sGrp}, 5
    s_add_u32 s{sA}, s{sA}, s{sH}
    s_sub_u32 s{sA}, s{sA}, 32
    s_cmp_lt_u32 s{sGrp}, 5
    s_cselect_b32 s{sBlk}, 0, s{sBlk}
    s_cselect_b32 s{sTile}, s{sA}, s{sTile}
    s_cselect_b32 s{sStep}, 128, s{sStep}
    ; W prefetch rows: 32*((4*(blk-1)+w)&15) + lane%32
    s_lshl_b32 s{sA}, s{sBlk}, 2
    s_add_u32 s{sA}, s{sA}, s{sW}
    s_and_b32 s{sA}, s{sA}, 7
    s_lshl_b32 s{sA}, s{sA}, 6
    v_add_u32 v{vPr}, s{sA}, v{vLane}
    ; DMA lane: row = l/4 + 128w ; chunk = (l%4) ^ (2*bit5)
    v_lshrrev_b32 v{vRow}, 2, v{vLane}
    s_lshl_b32 s{sA}, s{sW}, 7
    v_add_u32 v{vRow}, s{sA}, v{vRow}
    v_lshrrev_b32 v{vCh}, 4, v{vLane}
    v_and_b32 v{vCh}, 2, v{vCh}
    v_xor_b32 v{vCh}, v{vCh}, v{vLane}
    v_and_b32 v{vCh}, 3, v{vCh}
    v_lshlrev_b32 v{vCh}, 4, v{vCh}
    s_mov_b32 s{sBuf}, 0
    ''')
    def wsrc(tag, tile):
        a(f'''
        s_cmp_ge_u32 s{tile}, 192
        s_cbranch_scc1 Lt1_{tag}_gu
        s_lshr_b32 s{sA}, s{tile}, 6
        s_cmp_eq_u32 s{sA}, {X.get('vf', 0)}
        s_cselect_b64 {sp(sW0)}, {sp(sWk)}, {sp(sWv)}
        s_cmp_eq_u32 s{sA}, 2
        s_cselect_b64 {sp(sW0)}, {sp(sWq)}, {sp(sW0)}
        s_and_b32 s{sA}, s{tile}, 63
        s_lshl_b32 s{sA}, s{sA}, 7
        s_add_u32 s{sW0}, s{sW0}, s{sA}
        s_addc_u32 s{sW0+1}, s{sW0+1}, 0
        s_add_u32 s{sW1}, s{sW0}, 64
        s_addc_u32 s{sW1+1}, s{sW0+1}, 0
        s_mov_b32 s{sStr}, 8192
        s_branch Lt1_{tag}_e
        Lt1_{tag}_gu:
        s_min_u32 s{sA}, s{tile}, 234
        s_sub_u32 s{sA}, s{sA}, 192
        s_lshl_b32 s{sA}, s{sA}, 6
        s_add_u32 s{sW0}, s{sWg}, s{sA}
        s_addc_u32 s{sW0+1}, s{sWg+1}, 0
        s_add_u32 s{sW1}, s{sWu}, s{sA}
        s_addc_u32 s{sW1+1}, s{sWu+1}, 0
        s_mov_b32 s{sStr}, 2752
        Lt1_{tag}_e:
        v_mad_u32_u24 v{vA}, v{vRow}, s{sStr}, v{vCh}
        s_lshl_b32 s{sStr}, s{sStr}, 4
        ''')
    def dma(i):
        r = [f's_add_u32 m0, s{sM}, {i*1024}', f'global_load_lds_dwordx4 v{vA}, {sp(sW0)}',
             f's_add_u32 m0, s{sM}, {32768+i*1024}', f'global_load_lds_dwordx4 v{vA}, {sp(sW1)}']
        if i < 7: r.append(f'v_add_u32 v{vA}, s{sStr}, v{vA}')
        return r
    a.label('Lt1_job')
    wsrc('p', sTile)
    a(f's_lshl_b32 s{sM}, s{sW}, 13')
    for i in range(8):
        for x in dma(i): a(x)
    a(f'''
    s_lshl_b32 s{sA}, s{sBlk}, 18
    s_lshl_b32 s{sB}, s{sW}, 16
    s_add_u32 s{sA}, s{sA}, s{sB}
    s_add_u32 s{sXb}, s{sX}, s{sA}
    s_addc_u32 s{sXb+1}, s{sX+1}, 0
    s_mul_i32 s{sD}, s{sW}, {XR*1040}
    s_add_u32 s{sD}, s{sD}, 65536
    v_mov_b32 v{vXo}, v{vLin}
    v_mul_u32_u24 v{vXr}, 1040, v{vN}
    v_lshl_add_u32 v{vXr}, v{vG}, 4, v{vXr}
    v_add_u32 v{vXr}, s{sD}, v{vXr}
    ''')
    xt = {}
    def xdma(r):
        a(f's_add_u32 m0, s{sD}, {(r%XR)*1040 - (r%4)*1024}')
        xt[r] = a(f'global_load_lds_dwordx4 v{vXo}, {sp(sXb)} offset:{(r%4)*1024}')
        if r % 4 == 3: a(f'v_add_u32 v{vXo}, 4096, v{vXo}')
    for r in range(XR): xdma(r)
    if X.get('pf') == 2: prefetch()
    if X.get('pf') == 4: pfo()
    nx = XR
    for T in range(4):
        b = (16*T) % XR
        a(f'v_add_u32 v1, {b*1040}, v{vXr}')
        if b + 16 > XR: a(f'v_cmp_le_u32 vcc, {XR-b}, v{vN}\nv_subrev_u32 v2, {XR*1040}, v1\nv_cndmask_b32 v1, v1, v2, vcc')
        a.wvm(xt[16*T+15])
        for ks in range(16): a(f'ds_read_b128 {vr(64*T+4*ks,4,"a")}, v1 offset:{ks*64}')
        if nx < 64:
            a('s_waitcnt lgkmcnt(0)')
            for r in range(nx, min(nx+16, 64)): xdma(r)
            nx = min(nx+16, 64)
    a(f'''
    v_lshlrev_b32 v{vTr}, 9, v{vG}
    v_and_b32 v1, 12, v{vLane}
    v_lshl_add_u32 v{vTr}, v1, 4, v{vTr}
    v_and_b32 v1, 3, v{vLane}
    v_lshl_add_u32 v{vTr}, v1, 3, v{vTr}
    v_and_b32 v1, 1, v{vG}
    v_lshl_add_u32 v{vTr}, v1, 5, v{vTr}
    v_xor_b32 v{vTr+1}, 32, v{vTr}
    ''')
    a(f'''
    v_mov_b32 v{vFo}, {FL_G+1536}
    s_mov_b64 {sp(sFo)}, 0
    v_mov_b32 v{vRa}, 160
    v_mov_b32 v{vRd}, 0x01010101
    s_cmp_lg_u32 s{sW}, 0
    s_cbranch_scc1 Lt1_n0
    global_load_dword v{vRd}, v{vRa}, {sp(sDbg)} sc1
    Lt1_n0:
    s_waitcnt lgkmcnt(0)
    s_barrier
    ''')
    if C.TL:
        a(f's_cmp_ge_u32 s{sBlk}, 4\ns_cbranch_scc1 Lt1_tile')
        C.tl(a, 1, 1, f's{sGrp}')
    if X.get('dly'):
        a(f's_cmp_lt_u32 s{sGrp}, {X.get("dlg", 5)}\ns_cbranch_scc1 Lt1_tile\ns_cmp_lt_u32 s{sH}, {X.get("dlh", 0)}\ns_cbranch_scc1 Lt1_tile')
        for _ in range(X['dly']): a('s_sleep 33')
    a.label('Lt1_tile')
    if X.get('wpf', 1):
        a(f's_lshl_b32 s{sD}, s{sStep}, 1\ns_add_u32 s{sD}, s{sD}, s{sTile}')
        wsrc('f', sD)
        a(f'''
        s_lshr_b32 s{sStr}, s{sStr}, 4
        v_mul_u32_u24 v1, s{sStr}, v{vPr}
        global_load_dword v{vPf}, v1, {sp(sW0)}
        global_load_dword v{vPf}, v1, {sp(sW1)}
        ''')
    a(f's_add_u32 s{sD}, s{sTile}, s{sStep}')
    wsrc('n', sD)
    a(f's_xor_b32 s{sM}, s{sM}, 65536')
    a(f'''
    s_lshr_b32 s{sA}, s{sTile}, 6
    s_cmp_eq_u32 s{sA}, {1-X.get('vf', 0)}
    s_cbranch_scc1 Lt1_mv
    ''')
    def frags(ks):
        return [f'ds_read_b64_tr_b16 {vr(WF+16*(ks%2)+8*hf+4*v+2*q,2)}, v{vTr+v} offset:{hf*32768+ks*2048+q*256}'
                for hf in range(2) for v in range(2) for q in range(2)]
    def flag(n):
        a(f's_waitcnt vmcnt({n})\ns_mov_b64 exec, {sp(sFo)}\nglobal_store_byte v{vFo}, v{vOne}, {sp(sFb)} sc1\ns_mov_b64 exec, -1')
    def mainloop(swap):
        a.nds = 0
        tg = None
        for x in frags(0): tg = a(x)
        for ks in range(16):
            fill = (frags(ks+1) if ks < 15 else [])
            d = (dma(2*ks) + dma(2*ks+1)) if ks < 4 and not X.get('nodma') else []
            a.wds(tg)
            if ks == X.get('fks', 8): flag(16 + 2*X.get('wpf', 1))
            n = 0
            for hf in range(2):
                for v in range(2):
                    for T in range(4):
                        w_ = vr(WF+16*(ks%2)+8*hf+4*v,4); x_ = vr(64*T+4*ks,4,'a'); c = vr(acc(T,hf,v),4)
                        p, q = (w_, x_) if swap else (x_, w_)
                        a(f'{MF} {c}, {p}, {q}, {c if ks else 0}')
                        if fill and n < 8: tg = a(fill.pop(0))
                        elif d:
                            a(d.pop(0))
                            if d and d[0].startswith('global'): a(d.pop(0))
                        n += 1
            assert not fill and not d
        a(f'''
        v_xor_b32 v{vTr}, 0x10000, v{vTr}
        v_xor_b32 v{vTr+1}, 0x10000, v{vTr+1}
        s_waitcnt vmcnt(0)
        v_cmp_ne_u32 vcc, 0x01010101, v{vRd}
        s_cbranch_vccz Lt1_rd{int(swap)}
        ''')
        poll(a, f'Lt1_r{int(swap)}', f'global_load_dword v{vRd}, v{vRa}, {sp(sDbg)} sc1', f'v_cmp_ne_u32 vcc, 0x01010101, v{vRd}', 8)
        a(f'Lt1_rd{int(swap)}:\ns_barrier')
    def kvbase(base):
        a(f'''
        s_lshl_b32 s{sA}, s{sBlk}, 21
        s_lshl_b32 s{sB}, s{sW}, 19
        s_add_u32 s{sA}, s{sA}, s{sB}
        s_and_b32 s{sB}, s{sTile}, 63
        s_lshl_b32 s{sB}, s{sB}, 12
        s_add_u32 s{sA}, s{sA}, s{sB}
        s_add_u32 s{sA}, s{sA}, {base}
        s_add_u32 s{sO0}, s{sWs}, s{sA}
        s_addc_u32 s{sO0+1}, s{sWs+1}, 0
        s_add_u32 s{sO1}, s{sO0}, {C.KST}
        s_addc_u32 s{sO1+1}, s{sO0+1}, 0
        ''')
    def pack(d, c0, c1):
        a(f'v_cvt_pk_bf16_f32 v{d}, v{c0}, v{c0+1}\nv_cvt_pk_bf16_f32 v{d+1}, v{c0+2}, v{c0+3}')
        a(f'v_cvt_pk_bf16_f32 v{d+2}, v{c1}, v{c1+1}\nv_cvt_pk_bf16_f32 v{d+3}, v{c1+2}, v{c1+3}')
    mainloop(True)
    a(f'''
    s_cmp_ge_u32 s{sTile}, 192
    s_cbranch_scc1 Lt1_eg
    s_mov_b32 s{sC}, 0
    s_cmp_lt_u32 s{sTile}, 128
    s_cbranch_scc1 Lt1_ek
    s_mov_b32 s{sC}, {QSCALE}
    ''')
    for r in range(64): a(f'v_mul_f32 v{ACC+r}, s{sC}, v{ACC+r}')
    a(f's_mov_b32 s{sC}, {WS_QX}')
    a.label('Lt1_ek')
    kvbase(f's{sC}')
    i = 0
    for T in range(4):
        for hf in range(2):
            d = PK + 4*(i%4); i += 1
            pack(d, acc(T,hf,0), acc(T,hf,1))
            a(f'global_store_dwordx4 v{vLin}, {vr(d,4)}, {sp(sO1 if T//2 else sO0)} offset:{hf*2048+(T%2)*1024} sc1')
    if TM() < 128:
        a(f'''
        s_cmp_lg_u32 s{sBlk}, 7
        s_cbranch_scc1 Lt1_next
        s_cmp_ge_u32 s{sTile}, 64
        s_cbranch_scc1 Lt1_next
        s_lshl_b32 s{sA}, s{sW}, 18
        s_lshl_b32 s{sB}, s{sTile}, 11
        s_add_u32 s{sA}, s{sA}, s{sB}
        s_add_u32 s{sA}, s{sA}, {WS_KVM+56*131072}
        s_add_u32 s{sO0}, s{sWs}, s{sA}
        s_addc_u32 s{sO0+1}, s{sWs+1}, 0
        s_add_u32 s{sO1}, s{sO0}, 131072
        s_addc_u32 s{sO1+1}, s{sO0+1}, 0
        v_mov_b64 {vr(WF,2)}, -1
        v_mov_b64 {vr(WF+2,2)}, -1
        ''')
        for j in range(4): a(f'global_store_dwordx4 v{vLin}, {vr(WF,4)}, {sp(sO1 if j//2 else sO0)} offset:{(j%2)*1024} sc1')
    a('s_branch Lt1_next')
    a.label('Lt1_eg')
    a(f'''
    s_lshl_b32 s{sA}, s{sBlk}, 4
    s_lshl_b32 s{sB}, s{sW}, 2
    s_add_u32 s{sA}, s{sA}, s{sB}
    s_mul_i32 s{sA}, s{sA}, {ACT_T}
    s_sub_u32 s{sB}, s{sTile}, 64
    s_lshl_b32 s{sB}, s{sB}, 10
    s_add_u32 s{sA}, s{sA}, s{sB}
    s_add_u32 s{sA}, s{sA}, {WS_ACT}
    s_add_u32 s{sO0}, s{sWs}, s{sA}
    s_addc_u32 s{sO0+1}, s{sWs+1}, 0
    ''')
    for T in range(4):
        for r in range(8): a(f'v_mul_f32 v{acc(T,0,0)+r}, v{acc(T,0,0)+r}, v{acc(T,1,0)+r}')
        d = PK + 4*T
        pack(d, acc(T,0,0), acc(T,0,1))
        a(f'global_store_dwordx4 v{vLin}, {vr(d,4)}, {sp(sO0)} sc1')
        if T < 3: a(f's_add_u32 s{sO0}, s{sO0}, {ACT_T}\ns_addc_u32 s{sO0+1}, s{sO0+1}, 0')
    a('s_branch Lt1_next')
    a.label('Lt1_mv')
    mainloop(False)
    kvbase(C.WS_V)
    i = 0
    for s_ in range(2):
        for hf in range(2):
            for u in range(2):
                d = PK + 4*(i%4); i += 1
                pack(d, acc(2*s_,hf,u), acc(2*s_+1,hf,u))
                a(f'global_store_dwordx4 v{vLin}, {vr(d,4)}, {sp(sO1 if s_ else sO0)} offset:{hf*2048+u*1024} sc1')
    a.label('Lt1_next')
    a(f'''
    s_lshl_b32 s{sA}, s{sBlk}, 2
    s_add_u32 s{sA}, s{sA}, s{sW}
    s_lshl_b32 s{sB}, s{sTile}, 5
    s_add_u32 s{sB}, s{sB}, s{sA}
    s_add_u32 s{sB}, s{sB}, {FL_G-192*32}
    s_lshl_b32 s{sA}, s{sA}, 3
    s_bfe_u32 s{sC}, s{sTile}, 0x50001
    s_lshl_b32 s{sC}, s{sC}, 8
    s_add_u32 s{sA}, s{sA}, s{sC}
    s_lshr_b32 s{sC}, s{sTile}, 6
    s_lshl_b32 s{sC}, s{sC}, 1
    s_add_u32 s{sA}, s{sA}, s{sC}
    s_and_b32 s{sC}, s{sTile}, 1
    s_add_u32 s{sA}, s{sA}, s{sC}
    s_add_u32 s{sA}, s{sA}, {FL_K}
    s_cmp_ge_u32 s{sTile}, 192
    s_cselect_b32 s{sA}, s{sB}, s{sA}
    v_mov_b32 v{vFo}, s{sA}
    s_mov_b64 {sp(sFo)}, 1
    ''')
    if X.get('ef', 1):
        a(f's_cmp_ge_u32 s{sBlk}, {X.get("ef", 1)}\ns_cbranch_scc1 Lt1_nef\ns_add_u32 s{sA}, s{sTile}, s{sStep}\ns_sub_u32 s{sA}, s{sA}, 128\ns_cmp_ge_u32 s{sA}, s{sStep}\ns_cbranch_scc1 Lt1_nef')
        flag(0)
        a(f's_mov_b64 {sp(sFo)}, 0\nLt1_nef:')
    if C.TL:
        a(f's_cmp_ge_u32 s{sTile}, 128\ns_cbranch_scc1 Lt1_ntl\ns_cmp_ge_u32 s{sBlk}, 2\ns_cbranch_scc1 Lt1_ntl')
        C.tl(a, 2, 1, f's{sGrp}')
        a.label('Lt1_ntl')
    if X.get('slp'): a(f's_cmp_lt_u32 s{sBlk}, {X.get("slb", 4)}\ns_cbranch_scc1 Lt1_nsl\ns_sleep {X["slp"]}\nLt1_nsl:')
    a(f'''
    s_add_u32 s{sTile}, s{sTile}, s{sStep}
    s_cmp_lt_u32 s{sTile}, 235
    s_cbranch_scc1 Lt1_tile
    ''')
    flag(0)
    a(f'''
    s_cmp_lg_u32 s{sBlk}, 0
    s_cbranch_scc1 Lt1_end
    s_and_b32 s{sBlk}, s{sH}, 3
    s_add_u32 s{sBlk}, s{sBlk}, 4
    s_lshl_b32 s{sTile}, s{sGrp}, 3
    s_lshr_b32 s{sA}, s{sH}, 2
    s_add_u32 s{sTile}, s{sTile}, s{sA}
    s_sub_u32 s{sTile}, s{sTile}, 8
    s_mov_b32 s{sStep}, 32
    s_branch Lt1_job
    Lt1_end:
    ''')
    C.tl(a, 3, 1, f's{sGrp}')

def t2(a):
    sT, sHd, sK, sQ, sKM, sO, sFl, sMk, sF2, sV = 44, 45, 46, 48, 50, 52, 54, 56, 64, 66
    vLane, vN, vG, vLin, vKw, vKr, vL2, vNeg = 3, 4, 5, 6, 7, 8, 9, 10
    Q, KX, VX, KM, KT, S, O, P = 16, 48, 80, 112, 128, 144, 176, 240
    DP = 'row_mask:0xf bank_mask:0xf'
    a(f'''
    s_sub_u32 s{sT}, s{sGrp}, {NG3()+1}
    s_lshl_b32 s{sT}, s{sT}, 2
    s_lshr_b32 s{sA}, s{sH}, 3
    s_add_u32 s{sT}, s{sT}, s{sA}
    s_and_b32 s{sHd}, s{sH}, 7
    s_lshl_b32 s{sHd}, s{sHd}, 2
    s_add_u32 s{sHd}, s{sHd}, s{sW}
    s_lshl_b32 s{sA}, s{sW}, 12
    v_lshlrev_b32 v{vKw}, 5, v{vN}
    v_lshl_add_u32 v{vKw}, v{vG}, 3, v{vKw}
    v_add_u32 v{vKw}, s{sA}, v{vKw}
    v_lshlrev_b32 v{vKr}, 3, v{vLane}
    v_add_u32 v{vKr}, s{sA}, v{vKr}
    v_mov_b32 v{vNeg}, 0xff800000
    v_lshlrev_b32 v1, 2, v{vG}
    s_lshl_b32 s{sA}, s{sHd}, 7
    s_add_u32 s{sA}, s{sA}, {WS_FL+FL_P}
    s_add_u32 s{sFl}, s{sWs}, s{sA}
    s_addc_u32 s{sFl+1}, s{sWs+1}, 0
    ''')
    for r in range(4):
        a(f'v_add_u32 v2, {r}, v1\nv_cmp_le_u32 {sp(sMk+2*r)}, v2, v{vN}')
    a(f'''
    s_lshl_b32 s{sA}, s{sHd}, 8
    s_add_u32 s{sA}, s{sA}, {WS_FL+FL_K}
    v_lshl_add_u32 v1, v{vLane}, 2, s{sA}
    v_and_b32 v{Q}, 1, v{vLane}
    v_mul_u32_u24 v{Q}, 0x0101, v{Q}
    v_lshlrev_b32 v{Q}, 16, v{Q}
    s_barrier
    ''')
    poll(a, 'Lt2_w', f'global_load_dword v2, v1, {sp(sWs)} sc1', f'v_or_b32 v2, v2, v{Q}\nv_cmp_ne_u32 vcc, 0x01010101, v2', 32)
    C.tl(a, 4, 1, f's{sGrp}')
    a.label('Lt2_seg')
    a(f'''
    s_lshl_b32 s{sA}, s{sT}, 5
    s_add_u32 s{sA}, s{sA}, s{sHd}
    s_lshl_b32 s{sB}, s{sA}, 13
    s_add_u32 s{sB}, s{sB}, 4096
    s_add_u32 s{sK}, s{sWs}, s{sB}
    s_addc_u32 s{sK+1}, s{sWs+1}, 0
    s_add_u32 s{sQ}, s{sK}, {WS_QX}
    s_addc_u32 s{sQ+1}, s{sK+1}, 0
    s_add_u32 s{sV}, s{sK}, {C.WS_V}
    s_addc_u32 s{sV+1}, s{sK+1}, 0
    s_lshl_b32 s{sB}, s{sA}, 12
    s_add_u32 s{sB}, s{sB}, {WS_KVM}
    s_add_u32 s{sKM}, s{sWs}, s{sB}
    s_addc_u32 s{sKM+1}, s{sWs+1}, 0
    s_lshl_b32 s{sB}, s{sA}, 2
    s_add_u32 s{sB}, s{sB}, {WS_F2}
    s_add_u32 s{sF2}, s{sWs}, s{sB}
    s_addc_u32 s{sF2+1}, s{sWs+1}, 0
    s_mul_i32 s{sB}, s{sT}, {2*ACT_T}
    s_lshl_b32 s{sC}, s{sHd}, 12
    s_add_u32 s{sB}, s{sB}, s{sC}
    s_add_u32 s{sB}, s{sB}, {WS_ACT}
    s_add_u32 s{sO}, s{sWs}, s{sB}
    s_addc_u32 s{sO+1}, s{sWs+1}, 0
    ''')
    a.nvm = 0; tq = {}
    for w in range(4):
        for T in range(2):
            va = vLin; off = w*2048 - 4096
            a(f'global_load_dwordx4 {vr(Q+8*w+4*T,4)}, v{va}, {sp(sQ)} offset:{off+T*1024} sc1')
            tq[w] = a(f'global_load_dwordx4 {vr(KX+8*w+4*T,4)}, v{va}, {sp(sK)} offset:{off+T*1024} sc1')
    for w in range(4):
        for u in range(2):
            va = vLin; off = w*2048 - 4096
            a(f'global_load_dwordx4 {vr(VX+8*w+4*u,4)}, v{va}, {sp(sV)} offset:{off+u*1024} sc1')
    S00, S01, S11, M0, M1 = S, S+4, S+8, S+12, S+16
    for w in range(4):
        a.wvm(tq[w])
        for (d, tk, tq_) in ((S00,0,0),(S01,0,1),(S11,1,1)):
            a(f'{MF} {vr(d,4)}, {vr(KX+8*w+4*tk,4)}, {vr(Q+8*w+4*tq_,4)}, {vr(d,4) if w else 0}')
    for r in range(4):
        a(f'v_cndmask_b32 v{S00+r}, v{vNeg}, v{S00+r}, {sp(sMk+2*r)}')
        a(f'v_cndmask_b32 v{S11+r}, v{vNeg}, v{S11+r}, {sp(sMk+2*r)}')
    mx0, mx1, t0, t1_ = S+20, S+21, S+22, S+23
    a(f'''
    v_max3_f32 v{mx0}, v{S00}, v{S00+1}, v{S00+2}
    v_max_f32 v{mx0}, v{mx0}, v{S00+3}
    v_max3_f32 v{mx1}, v{S01}, v{S01+1}, v{S01+2}
    v_max3_f32 v{mx1}, v{mx1}, v{S01+3}, v{S11}
    v_max3_f32 v{mx1}, v{mx1}, v{S11+1}, v{S11+2}
    v_max_f32 v{mx1}, v{mx1}, v{S11+3}
    s_add_u32 s{sA}, s{sT}, 2
    v_mov_b32 v1, 0
    s_mov_b32 s{sSpin}, 0
    Lt2_p:
    global_load_dword v2, v1, {sp(sFl)} sc1
    s_add_u32 s{sSpin}, s{sSpin}, 1
    s_cmp_gt_u32 s{sSpin}, {WSPIN}
    s_cbranch_scc1 Lt2_go
    s_waitcnt vmcnt(0)
    v_cmp_le_u32 vcc, s{sA}, v2
    s_cbranch_vccnz Lt2_go
    s_sleep 4
    s_branch Lt2_p
    Lt2_go:
    ''')
    for w in range(4): a(f'global_load_dwordx4 {vr(KM+4*w,4)}, v{vLin}, {sp(sKM)} offset:{w*1024} sc1')
    a('s_waitcnt vmcnt(0)')
    for w in range(4):
        for u in range(2): a(f'ds_write_b32 v{vKw}, v{KM+4*w+u} offset:{w*1024+u*512}')
    a('s_waitcnt lgkmcnt(0)')
    for w in range(4):
        for v in range(2): a(f'ds_read_b64_tr_b16 {vr(KT+4*w+2*v,2)}, v{vKr} offset:{w*1024+v*512}')
    a('s_waitcnt lgkmcnt(0)')
    for w in range(4):
        for T, d in ((0,M0),(1,M1)):
            a(f'{MF} {vr(d,4)}, {vr(KT+4*w,4)}, {vr(Q+8*w+4*T,4)}, {vr(d,4) if w else 0}')
    def xred(op, x, y):
        a(f'''
        v_mov_b32 v{t0}, v{x}
        v_mov_b32 v{t1_}, v{y}
        v_permlane16_swap_b32 v{x}, v{t0}
        v_permlane16_swap_b32 v{y}, v{t1_}
        {op} v{x}, v{x}, v{t0}
        {op} v{y}, v{y}, v{t1_}
        v_mov_b32 v{t0}, v{x}
        v_mov_b32 v{t1_}, v{y}
        v_permlane32_swap_b32 v{x}, v{t0}
        v_permlane32_swap_b32 v{y}, v{t1_}
        {op} v{x}, v{x}, v{t0}
        {op} v{y}, v{y}, v{t1_}
        ''')
    a(f'v_max3_f32 v{mx0}, v{mx0}, v{M0}, v{M0+1}\nv_max3_f32 v{mx1}, v{mx1}, v{M1}, v{M1+1}')
    xred('v_max_f32', mx0, mx1)
    e0 = [S00+r for r in range(4)] + [M0, M0+1]; e1 = [S01+r for r in range(8)] + [M1, M1+1]
    for r in e0: a(f'v_sub_f32 v{r}, v{r}, v{mx0}')
    for r in e1: a(f'v_sub_f32 v{r}, v{r}, v{mx1}')
    for r in e0 + e1: a(f'v_exp_f32 v{r}, v{r}')
    P0, P1, Z0, Z1 = P, P+4, P+8, P+12
    a(f'''
    v_cvt_pk_bf16_f32 v{P0}, v{S00}, v{S00+1}
    v_cvt_pk_bf16_f32 v{P0+1}, v{S00+2}, v{S00+3}
    v_mov_b64 {vr(P0+2,2)}, 0
    v_cvt_pk_bf16_f32 v{P1}, v{S01}, v{S01+1}
    v_cvt_pk_bf16_f32 v{P1+1}, v{S01+2}, v{S01+3}
    v_cvt_pk_bf16_f32 v{P1+2}, v{S11}, v{S11+1}
    v_cvt_pk_bf16_f32 v{P1+3}, v{S11+2}, v{S11+3}
    v_cvt_pk_bf16_f32 v{Z0}, v{M0}, v{M0+1}
    v_mov_b32 v{Z0+1}, 0
    v_mov_b32 v{Z0+2}, 0
    v_mov_b32 v{Z0+3}, v{Z0}
    v_cvt_pk_bf16_f32 v{Z1}, v{M1}, v{M1+1}
    v_mov_b32 v{Z1+1}, 0
    v_mov_b32 v{Z1+2}, 0
    v_mov_b32 v{Z1+3}, v{Z1}
    ''')
    oa = lambda T, w, u: O + 32*T + 8*w + 4*u
    for T in range(2):
        for w in range(4):
            for u in range(2):
                a(f'{MF} {vr(oa(T,w,u),4)}, {vr(VX+8*w+4*u,4)}, {vr(P+4*T,4)}, 0')
    for T in range(2):
        for w in range(4):
            for u in range(2):
                a(f'v_mfma_f32_16x16x16_bf16 {vr(oa(T,w,u),4)}, {vr(KM+4*w+2,2)}, {vr(Z0+4*T+2*u,2)}, {vr(oa(T,w,u),4)}')
    for e in (e0, e1):
        for r in e[1:]: a(f'v_add_f32 v{e[0]}, v{e[0]}, v{r}')
    xred('v_add_f32', e0[0], e1[0])
    a(f'v_rcp_f32 v{e0[0]}, v{e0[0]}\nv_rcp_f32 v{e1[0]}, v{e1[0]}')
    for T in range(2):
        l = (e0, e1)[T][0]
        for w in range(4):
            b = oa(T,w,0)
            for r in range(8): a(f'v_mul_f32 v{b+r}, v{b+r}, v{l}')
            for r in range(4): a(f'v_cvt_pk_bf16_f32 v{b+r}, v{b+2*r}, v{b+2*r+1}')
            a(f'global_store_dwordx4 v{vLin}, {vr(b,4)}, {sp(sO)} offset:{w*1024} sc1')
        if T == 0: a(f's_add_u32 s{sO}, s{sO}, {ACT_T}\ns_addc_u32 s{sO+1}, s{sO+1}, 0')
    a(f'''
    v_mov_b32 v2, 1
    s_waitcnt vmcnt(0)
    s_mov_b64 exec, 1
    global_store_dword v1, v2, {sp(sF2)} sc1
    s_mov_b64 exec, -1
    s_add_u32 s{sT}, s{sT}, {4*(7-NG3())}
    s_cmp_lt_u32 s{sT}, {TM()//2}
    s_cbranch_scc1 Lt2_seg
    ''')

def t3(a):
    sTau, sAo, sAh, sXa, sF2, sOo, sLb, sTm, sRb = 44, 46, 48, 50, 52, 54, 56, 58, 60
    vLane, vN, vG, vLin, vD, vTr, vXo, vFl, vRs, vOo = 3, 4, 5, 6, 7, 8, 9, 10, 11, 12
    AC = 16; GW = 32; XB = 48; HB = 64; OB = 128; R = 108
    a(f'''
    s_lshl_b32 s{sLb}, s{sW}, 15
    ; DMA lane: row = l/2, chunk = l%2 ; row stride 1024
    v_lshrrev_b32 v{vD}, 1, v{vLane}
    v_lshlrev_b32 v{vD}, 10, v{vD}
    v_and_b32 v1, 1, v{vLane}
    v_lshl_add_u32 v{vD}, v1, 4, v{vD}
    s_lshl_b32 s{sA}, s{sH}, 5
    v_add_u32 v{vD}, s{sA}, v{vD}
    v_lshlrev_b32 v{vTr}, 3, v{vLane}
    v_add_u32 v{vTr}, s{sLb}, v{vTr}
    s_lshl_b32 s{sA}, s{sW}, 20
    s_add_u32 s{sTm}, s{sWo}, s{sA}
    s_addc_u32 s{sTm+1}, s{sWo+1}, 0
    s_barrier
    ''')
    for b in range(32):
        a(f's_add_u32 m0, s{sLb}, {b*1024}\nglobal_load_lds_dwordx4 v{vD}, {sp(sTm)}')
        a(f's_add_u32 s{sTm}, s{sTm}, 32768\ns_addc_u32 s{sTm+1}, s{sTm+1}, 0')
    a(f'''
    v_lshlrev_b32 v1, 4, v{vG}
    s_lshl_b32 s{sA}, s{sW}, 8
    v_add_u32 v1, s{sA}, v1
    v_lshl_add_u32 v{vXo}, v{vN}, 10, v1
    ''')
    for k in range(4): a(f'global_load_dwordx4 {vr(GW+4*k,4)}, v1, {sp(sGw)} offset:{64*k}')
    a('s_waitcnt vmcnt(0)')
    for b in range(32):
        for v in range(2): a(f'ds_read_b64_tr_b16 {vr(4*b+2*v,2,"a")}, v{vTr} offset:{b*1024+v*512}')
    a(f'''
    s_mul_i32 s{sRb}, s{sW}, 11
    s_cmp_eq_u32 s{sW}, 3
    s_subb_u32 s{sRb}, s{sRb}, 0
    s_lshl_b32 s{sA}, s{sRb}, 15
    s_add_u32 s{sTm}, s{sWd}, s{sA}
    s_addc_u32 s{sTm+1}, s{sWd+1}, 0
    s_waitcnt lgkmcnt(0)
    ''')
    for b in range(11):
        a(f's_add_u32 m0, s{sLb}, {b*1024}\nglobal_load_lds_dwordx4 v{vD}, {sp(sTm)}')
        if b < 10: a(f's_add_u32 s{sTm}, s{sTm}, 32768\ns_addc_u32 s{sTm+1}, s{sTm+1}, 0')
    a('s_waitcnt vmcnt(0)')
    for b in range(11):
        for v in range(2): a(f'ds_read_b64_tr_b16 {vr(128+4*b+2*v,2,"a")}, v{vTr} offset:{b*1024+v*512}')
    a(f'''
    s_waitcnt lgkmcnt(0)
    s_cmp_lg_u32 s{sW}, 3
    s_cbranch_scc1 Lt3_nz
    ''')
    for r in range(4): a(f'v_accvgpr_write_b32 a{128+r}, 0')
    a(f'''
    Lt3_nz:
    s_add_u32 s{sTau}, s{sGrp}, {X.get('rot', 0) - 1}
    s_cmp_ge_u32 s{sTau}, {NG3()}
    s_cselect_b32 s{sA}, {NG3()}, 0
    s_sub_u32 s{sTau}, s{sTau}, s{sA}
    v_and_b32 v{vFl}, 7, v{vLane}
    v_lshlrev_b32 v{vFl}, 2, v{vFl}
    s_lshl_b32 s{sA}, s{sW}, 5
    v_add_u32 v{vFl}, s{sA}, v{vFl}
    s_mul_i32 s{sA}, s{sW}, 3072
    s_add_u32 s{sA}, s{sA}, 131072
    v_add_u32 v{vRs}, s{sA}, v{vLin}
    v_lshlrev_b32 v{vOo}, 10, v{vN}
    v_lshl_add_u32 v{vOo}, v{vG}, 3, v{vOo}
    s_lshl_b32 s{sA}, s{sH}, 5
    v_add_u32 v{vOo}, s{sA}, v{vOo}
    ''')
    vQ, vIn, vNeg, vBr, vO4, vQi, Sel = 108, 116, 127, 13, 14, 15, 28
    vKm, vOw, vPs, vKw = 48, 52, 56, 57
    sIb, sKM, sQ, sK, sV, sFast, sBb, sSl, sT4 = 62, 52, 46, 64, 66, 68, 69, 26, 27
    Q, KX, VX, KM, KT, S0, Mm, O, P, Z, Ls, One = 128, 144, 176, 184, 200, 216, 224, 232, 240, 244, 248, 252
    mx, m2, t0, lx = 228, 229, 230, 231
    G_, Bm = AC+4, AC
    Y = 64; OX = 144; IN = 160; PS = 96; Dr = 24
    L_O = 131072 + 12288
    DP = 'row_mask:0xf bank_mask:0xf'
    T4 = TM() < 128; NS = -(-(128-TM()) // NG3()); PJ = X.get('pj', 1)
    state = [Q+i for i in range(16)] + [O+i for i in range(8)] + [mx, lx, G_] + [Bm+i for i in range(4)]
    park = [f'a{i}' for i in range(172,256)] + [f'v{i}' for i in (112,113,114,115,120,121,122,123,124,125,126)]
    assert NS * len(state) <= len(park)
    def xred(op, x):
        a(f'''
        v_mov_b32 v{t0}, v{x}
        v_permlane16_swap_b32 v{x}, v{t0}
        {op} v{x}, v{x}, v{t0}
        v_mov_b32 v{t0}, v{x}
        v_permlane32_swap_b32 v{x}, v{t0}
        {op} v{x}, v{x}, v{t0}
        ''')
    if T4:
        a(f'''
        s_mul_i32 s{sA}, s{sGrp}, {NS*524288}
        s_add_u32 s{sA}, s{sA}, {WS_IB}
        s_add_u32 s{sIb}, s{sWs}, s{sA}
        s_addc_u32 s{sIb+1}, s{sWs+1}, 0
        s_lshr_b32 s{sA}, s{sH}, 3
        s_lshl_b32 s{sA}, s{sA}, 17
        s_lshl_b32 s{sB}, s{sW}, 15
        s_add_u32 s{sA}, s{sA}, s{sB}
        s_and_b32 s{sB}, s{sH}, 7
        s_lshl_b32 s{sB}, s{sB}, 7
        s_add_u32 s{sA}, s{sA}, s{sB}
        v_lshrrev_b32 v1, 3, v{vLane}
        v_lshl_add_u32 v1, v1, 10, s{sA}
        v_and_b32 v2, 7, v{vLane}
        v_lshl_add_u32 v{vIn}, v2, 4, v1
        v_add_u32 v{vIn+1}, 8192, v{vIn}
        v_add_u32 v{vIn+2}, 16384, v{vIn}
        v_add_u32 v{vIn+3}, 24576, v{vIn}
        s_lshl_b32 s{sA}, s{sH}, 5
        v_subrev_u32 v{vD}, s{sA}, v{vD}
        s_mov_b32 s{sBb}, 0
        s_mov_b32 s{sSl}, 0
        s_lshl_b32 s{sA}, s{sH}, 17
        s_lshl_b32 s{sB}, s{sW}, 8
        s_add_u32 s{sA}, s{sA}, s{sB}
        s_add_u32 s{sTm}, s{sWo}, s{sA}
        s_addc_u32 s{sTm+1}, s{sWo+1}, 0
        s_lshl_b32 s{sA}, s{sW}, 11
        v_add_u32 v{vQ}, s{sA}, v{vLin}
        v_xor_b32 v{vQ+1}, 2048, v{vQ}
        v_xor_b32 v{vQ+2}, 4096, v{vQ}
        v_xor_b32 v{vQ+3}, 6144, v{vQ}
        v_mov_b32 v{vNeg}, 0xff800000
        ; q = (2n+g)%16 ; selector rows 0..7
        v_lshl_add_u32 v1, v{vN}, 1, v{vG}
        v_and_b32 v1, 15, v1
        s_lshl_b32 s{sA}, s{sH}, 5
        s_lshl_b32 s{sB}, s{sW}, 3
        s_add_u32 s{sA}, s{sA}, s{sB}
        v_lshl_add_u32 v{vO4}, v1, 10, s{sA}
        s_lshl_b32 s{sA}, s{sW}, 8
        s_add_u32 s{sA}, s{sA}, 131072
        v_lshl_add_u32 v{vBr}, v1, 4, s{sA}
        v_and_b32 v1, 1, v{vN}
        v_lshlrev_b32 v1, 4, v1
        v_mov_b32 v2, 0x3f80
        v_lshlrev_b32 v1, v1, v2
        v_lshrrev_b32 v2, 1, v{vN}
        ''')
        for i in range(4): a(f'v_cmp_eq_u32 vcc, {i}, v2\nv_cndmask_b32 v{Sel+i}, 0, v1, vcc')
    a(f'v_add_u32 v1, {WS_FL+FL_G}, v{vLin}\ns_cmp_lg_u32 s{sW}, 0\ns_cbranch_scc1 Lt3_w_b')
    if T4:
        a(f'''
        s_lshl_b32 s{sA}, s{sH}, 8
        s_add_u32 s{sA}, s{sA}, {WS_FL+FL_K}
        v_lshl_add_u32 v{HB+9}, v{vLane}, 2, s{sA}
        v_and_b32 v{HB+10}, 1, v{vLane}
        v_mul_u32_u24 v{HB+10}, 0x0101, v{HB+10}
        v_lshlrev_b32 v{HB+10}, 16, v{HB+10}
        ''')
    poll(a, 'Lt3_w', f'global_load_dwordx4 {vr(HB,4)}, v1, {sp(sWs)} sc1\nglobal_load_dwordx4 {vr(HB+4,4)}, v1, {sp(sWs)} offset:352 sc1' + (f'\nglobal_load_dword v{HB+8}, v{HB+9}, {sp(sWs)} sc1' if T4 else ''),
         (f'v_or_b32 v{HB+8}, v{HB+8}, v{HB+10}\n' if T4 else '') + '\n'.join([f'v_and_b32 v{HB}, v{HB}, v{HB+i}' for i in range(1,8+T4)]) + f'\nv_cmp_ne_u32 vcc, 0x01010101, v{HB}', 64)
    a('s_barrier')
    C.tl(a, 4, 1, f's{sGrp}')
    def pre(tau):
        a(f'''
        s_mul_i32 s{sA}, s{tau}, {ACT_T}
        s_lshl_b32 s{sB}, s{sRb}, 10
        s_add_u32 s{sB}, s{sB}, s{sA}
        s_add_u32 s{sB}, s{sB}, {WS_ACT+4096+128*1024}
        s_add_u32 s{sAh}, s{sWs}, s{sB}
        s_addc_u32 s{sAh+1}, s{sWs+1}, 0
        s_lshl_b32 s{sA}, s{tau}, 14
        s_add_u32 s{sXa}, s{sX}, s{sA}
        s_addc_u32 s{sXa+1}, s{sX+1}, 0
        ''')
        for k in range(4): a(f'global_load_dwordx4 {vr(XB+4*k,4)}, v{vXo}, {sp(sXa)} offset:{64*k}')
        for b in range(11):
            if b == 8: a(f's_add_u32 s{sAh}, s{sAh}, 8192\ns_addc_u32 s{sAh+1}, s{sAh+1}, 0')
            th = a(f'global_load_dwordx4 {vr(HB+4*b,4)}, v{vLin}, {sp(sAh)} offset:{(b%8)*1024-4096} sc1')
        return th
    def gb():
        for k in range(4): a(f'{MF} {vr(AC+8,4)}, {vr(GW+4*k,4)}, {vr(XB+4*k,4)}, {vr(AC+8,4) if k else 0}')
        for b in range(11): a(f'{MF} {vr(AC+4,4)}, {vr(128+4*b,4,"a")}, {vr(HB+4*b,4)}, {vr(AC+4,4) if b else 0}')
    def sigm(g):
        a(f'''
        v_mul_f32 v{g}, {f32(-math.log2(math.e))}, v{g}
        v_exp_f32 v{g}, v{g}
        v_add_f32 v{g}, 1.0, v{g}
        v_rcp_f32 v{g}, v{g}
        v_sub_f32 v{g+1}, 1.0, v{g}
        ''')
    a.label('Lt3_tile')
    if T4:
        a(f'''
        s_cmp_lt_u32 s{sTau}, {TM() - NG3()*(NS+PJ)}
        s_cbranch_scc1 Lt3_np
        s_cmp_ge_u32 s{sSl}, {NS}
        s_cbranch_scc1 Lt3_np
        s_add_u32 s{sT4}, s{sTau}, {NG3()*(NS+PJ)}
        s_cmp_ge_u32 s{sT4}, 128
        s_cbranch_scc1 Lt3_pb
        s_lshl_b32 s{sA}, s{sSl}, 19
        s_add_u32 s{sKM}, s{sIb}, s{sA}
        s_addc_u32 s{sKM+1}, s{sIb+1}, 0
        v_mov_b64 {vr(P,2)}, -1
        v_mov_b64 {vr(P+2,2)}, -1
        ''')
        a.nvm = 0; a.nds = 0
        for i in range(4): a(f'global_store_dwordx4 v{vIn+i}, {vr(P,4)}, {sp(sKM)} sc1')
        th = pre(sT4)
        a(f'''
        s_lshr_b32 s{sA}, s{sT4}, 1
        s_lshl_b32 s{sA}, s{sA}, 5
        s_add_u32 s{sA}, s{sA}, s{sH}
        s_lshl_b32 s{sB}, s{sA}, 13
        s_add_u32 s{sK}, s{sWs}, s{sB}
        s_addc_u32 s{sK+1}, s{sWs+1}, 0
        s_and_b32 s{sC}, s{sT4}, 1
        s_lshl_b32 s{sB}, s{sC}, 10
        s_add_u32 s{sB}, s{sB}, {WS_QX}
        s_add_u32 s{sQ}, s{sK}, s{sB}
        s_addc_u32 s{sQ+1}, s{sK+1}, 0
        s_add_u32 s{sV}, s{sK}, {C.WS_V}
        s_addc_u32 s{sV+1}, s{sK+1}, 0
        s_lshl_b32 s{sC}, s{sC}, 4
        v_lshlrev_b32 v1, 2, v{vG}
        v_sub_u32 v{vQi}, v{vN}, v1
        v_add_u32 v{vQi}, s{sC}, v{vQi}
        v_and_b32 v1, 0x4000, v{vRs}
        v_or_b32 v1, v{vBr}, v1
        ''')
        for i in range(4):
            a(f'global_load_dwordx4 {vr(Q+4*i,4)}, v{vQ+i}, {sp(sQ)} sc1')
            for kt in range(2): tk = a(f'global_load_dwordx4 {vr(KX+8*i+4*kt,4)}, v{vQ+i}, {sp(sK)} offset:{1024*kt} sc1')
        for u in range(2): tv = a(f'global_load_dwordx4 {vr(VX+4*u,4)}, v{vQ}, {sp(sV)} offset:{1024*u} sc1')
        a.wvm(th)
        if X.get('iw', 2) == 2:
            for i in range(4): a(f'global_load_dwordx4 {vr(KT+4*i,4)}, v{vIn+i}, {sp(sKM)} sc1')
        gb()
        a(f'''
        ds_write_b32 v{vRs}, v{AC+8} offset:2048
        ds_write_b128 v{vRs}, {vr(AC+4,4)} offset:1024
        ''')
        a.wvm(tk)
        for i in range(4):
            for kt in range(2): a(f'{MF} {vr(S0+4*kt,4)}, {vr(KX+8*i+4*kt,4)}, {vr(Q+4*i,4)}, {vr(S0+4*kt,4) if i else 0}')
        a('s_waitcnt lgkmcnt(0)\ns_barrier')
        for w in range(4):
            a(f'ds_read_b128 {vr(HB+4*w,4)}, v1 offset:{3072*w+1024}\nds_read_b32 v{HB+16+w}, v1 offset:{3072*w+2048}')
        for r in range(8): a(f'v_cmp_le_i32 vcc, {16*(r//4)+r%4}, v{vQi}\nv_cndmask_b32 v{S0+r}, v{vNeg}, v{S0+r}, vcc')
        a(f'''
        v_max3_f32 v{mx}, v{S0}, v{S0+1}, v{S0+2}
        v_max3_f32 v{mx}, v{mx}, v{S0+3}, v{S0+4}
        v_max3_f32 v{mx}, v{mx}, v{S0+5}, v{S0+6}
        v_max_f32 v{mx}, v{mx}, v{S0+7}
        ''')
        xred('v_max_f32', mx)
        for r in range(8): a(f'v_sub_f32 v{S0+r}, v{S0+r}, v{mx}')
        for r in range(8): a(f'v_exp_f32 v{S0+r}, v{S0+r}')
        for r in range(4): a(f'v_cvt_pk_bf16_f32 v{P+r}, v{S0+2*r}, v{S0+2*r+1}')
        a.wvm(tv)
        for u in range(2): a(f'{MF} {vr(O+4*u,4)}, {vr(VX+4*u,4)}, {vr(P,4)}, 0')
        a(f'v_add_f32 v{lx}, v{S0}, v{S0+1}')
        for r in range(2,8): a(f'v_add_f32 v{lx}, v{lx}, v{S0+r}')
        xred('v_add_f32', lx)
        a('s_waitcnt lgkmcnt(0)')
        for r in range(4):
            a(f'v_add_f32 v{Bm+r}, v{HB+r}, v{HB+4+r}\nv_add_f32 v{HB+8+r}, v{HB+8+r}, v{HB+12+r}\nv_add_f32 v{Bm+r}, v{Bm+r}, v{HB+8+r}')
        a(f'''
        v_add_f32 v{G_}, v{HB+16}, v{HB+17}
        v_add_f32 v{G_+1}, v{HB+18}, v{HB+19}
        v_add_f32 v{G_}, v{G_}, v{G_+1}
        ''')
        sigm(G_)
        for r in range(4): a(f'v_mul_f32 v{Bm+r}, v{Bm+r}, v{G_+1}')
        a(f'v_xor_b32 v{vRs}, 0x4000, v{vRs}')
        for k in range(NS):
            if k < NS-1: a(f's_cmp_lg_u32 s{sSl}, {k}\ns_cbranch_scc1 Lt3_pk{k+1}')
            for r, d in zip(state, park[k*len(state):]): a(f'v_accvgpr_write_b32 {d}, v{r}' if d[0] == 'a' else f'v_mov_b32 {d}, v{r}')
            if k < NS-1: a(f's_branch Lt3_pe\nLt3_pk{k+1}:')
        a(f'''
        Lt3_pb:
        s_lshl_b32 s{sA}, s{sGrp}, 6
        s_add_u32 s{sA}, s{sA}, s{sH}
        s_add_u32 s{sA}, s{sA}, {WS_FL+FL_X}
        v_mov_b32 v1, s{sA}
        s_lshl_b32 s{sA}, s{sXcc}, 1
        s_add_u32 s{sA}, s{sA}, 1
        v_mov_b32 v2, s{sA}
        s_cmp_eq_u32 s{sW}, 0
        s_cselect_b64 exec, 1, 0
        global_store_byte v1, v2, {sp(sWs)} sc1
        s_mov_b64 exec, -1
        Lt3_pe:
        s_add_u32 s{sSl}, s{sSl}, 1
        Lt3_np:
        ''')
    def pre2(tau, tag):
        pre(tau)
        a(f'''
        s_lshr_b32 s{sA}, s{tau}, 1
        s_lshl_b32 s{sA}, s{sA}, 7
        s_add_u32 s{sA}, s{sA}, {WS_F2}
        s_add_u32 s{sF2}, s{sWs}, s{sA}
        s_addc_u32 s{sF2+1}, s{sWs+1}, 0
        global_load_dword v2, v{vFl}, {sp(sF2)} sc1
        ''')
        if not T4: return
        if tag == 'd': a(f's_cmp_ge_u32 s{sBb}, 32\ns_cbranch_scc1 Lt3_nd')
        a(f'''
        s_lshl_b32 s{sB}, s{sBb}, 10
        s_add_u32 m0, s{sLb}, s{sB}
        s_and_b32 s{sB}, s{sBb}, 2
        s_xor_b32 s{sB}, s{sB}, s{sW}
        s_lshl_b32 s{sB}, s{sB}, 15
        s_lshr_b32 s{sA}, s{sBb}, 2
        s_lshl_b32 s{sA}, s{sA}, 5
        s_add_u32 s{sA}, s{sA}, s{sB}
        v_add_u32 v1, s{sA}, v{vD}
        global_load_lds_dwordx4 v1, {sp(sTm)}
        s_add_u32 m0, m0, 1024
        v_xor_b32 v1, 0x8000, v1
        global_load_lds_dwordx4 v1, {sp(sTm)}
        s_add_u32 s{sBb}, s{sBb}, 2
        ''')
        assert TM() // NG3() >= 16
    pre2(sTau, 'd')
    a.label('Lt3_nd')
    a(f'''
    s_mul_i32 s{sA}, s{sTau}, {ACT_T}
    s_add_u32 s{sA}, s{sA}, {WS_ACT+4096}
    s_lshl_b32 s{sB}, s{sW}, 15
    s_add_u32 s{sB}, s{sB}, s{sA}
    s_add_u32 s{sAo}, s{sWs}, s{sB}
    s_addc_u32 s{sAo+1}, s{sWs+1}, 0
    s_lshl_b32 s{sA}, s{sTau}, 14
    s_add_u32 s{sOo}, s{sOut}, s{sA}
    s_addc_u32 s{sOo+1}, s{sOut+1}, 0
    s_mov_b32 s{sSpin}, 0
    Lt3_p:
    s_waitcnt vmcnt(0)
    v_cmp_ne_u32 vcc, 1, v2
    s_cbranch_vccz Lt3_go
    s_add_u32 s{sSpin}, s{sSpin}, 1
    s_cmp_gt_u32 s{sSpin}, {WSPIN}
    s_cbranch_scc1 Lt3_go
    s_sleep 4
    global_load_dword v2, v{vFl}, {sp(sF2)} sc1
    s_branch Lt3_p
    Lt3_go:
    ''')
    if C.TL and X.get('cu'):
        a(f's_cmp_eq_u32 s{sSpin}, 0\ns_cbranch_scc1 Lt3_cu\ns_cmp_lt_u32 s{sTau}, 30\ns_cbranch_scc1 Lt3_cu\ns_cmp_eq_u32 s84, s70\ns_cbranch_scc1 Lt3_cu\ns_mov_b32 s84, s70')
        C.tl(a, 3, 1, f's{sGrp}')
        a.label('Lt3_cu')
    a.nvm = 0; tg = []
    for b in range(32):
        if b and b % 8 == 0: a(f's_add_u32 s{sAo}, s{sAo}, 8192\ns_addc_u32 s{sAo+1}, s{sAo+1}, 0')
        tg.append(a(f'global_load_dwordx4 {vr(OB+4*b,4)}, v{vLin}, {sp(sAo)} offset:{(b%8)*1024-4096} sc1'))
    gb()
    def omm():
        for b in range(32):
            a.wvm(tg[b])
            a(f'{MF} {vr(AC,4)}, {vr(4*b,4,"a")}, {vr(OB+4*b,4)}, {vr(AC,4) if b else 0}')
    PP = X.get('pp', 0)
    if PP:
        assert PP <= TM() - NG3()*(NS+PJ) and PP <= 15*NG3()
        a(f's_add_u32 s{sD}, s{sTau}, {NG3()}\ns_cmp_ge_u32 s{sD}, {PP}\ns_cbranch_scc1 Lt3_o2')
        pre2(sD, 'p'); omm()
        a('s_branch Lt3_o3\nLt3_o2:'); a.nvm = 32
    omm()
    a.label('Lt3_o3')
    a(f'''
    ds_write_b128 v{vRs}, {vr(AC+4,4)} offset:1024
    ds_write_b128 v{vRs}, {vr(AC+8,4)} offset:2048
    ds_write_b128 v{vRs}, {vr(AC,4)}
    s_waitcnt lgkmcnt(0)
    s_barrier
    s_cmp_lg_u32 s{sW}, 0
    s_cbranch_scc1 Lt3_nx
    ''')
    for w in range(1,4):
        for j in range(3): a(f'ds_read_b128 {vr(OB+12*w+4*j,4)}, v{vRs} offset:{3072*w+1024*j}')
    a('s_waitcnt lgkmcnt(0)')
    for w in range(1,4):
        for r in range(9): a(f'v_add_f32 v{AC+r}, v{AC+r}, v{OB+12*w+r}')
    g = AC+8
    sigm(g)
    for r in range(4): a(f'v_mul_f32 v{AC+r}, v{AC+r}, v{g}\nv_fmac_f32 v{AC+r}, v{AC+4+r}, v{g+1}')
    a(f'''
    v_cvt_pk_bf16_f32 v{AC}, v{AC}, v{AC+1}
    v_cvt_pk_bf16_f32 v{AC+1}, v{AC+2}, v{AC+3}
    global_store_dwordx2 v{vOo}, {vr(AC,2)}, {sp(sOo)}
    Lt3_nx:
    v_xor_b32 v{vRs}, 0x4000, v{vRs}
    s_add_u32 s{sTau}, s{sTau}, {NG3()}
    s_cmp_lt_u32 s{sTau}, {PP}
    s_cbranch_scc1 Lt3_nd
    s_cmp_lt_u32 s{sTau}, {TM()}
    s_cbranch_scc1 Lt3_tile
    ''')
    if not T4: return
    if C.TL and X.get('t4s'): C.tl(a, 6, 1, f's{sGrp}')
    a(f'''
    s_lshl_b32 s{sA}, s{sGrp}, 6
    s_add_u32 s{sA}, s{sA}, {WS_FL+FL_X}
    v_and_b32 v1, 7, v{vLane}
    v_lshl_add_u32 v1, v1, 2, s{sA}
    global_load_dword v2, v1, {sp(sWs)} sc1
    ''')
    for b in range(32):
        for v in range(2): a(f'ds_read_b64_tr_b16 {vr(4*b+2*v,2,"a")}, v{vTr} offset:{b*1024+v*512}')
    a(f'''
    s_lshl_b32 s{sA}, s{sW}, 10
    v_add_u32 v{vKm}, s{sA}, v{vLin}
    v_add_u32 v{vOw}, {L_O}, v{vKm}
    ''')
    for i in range(1,4): a(f'v_xor_b32 v{vKm+i}, {1024*i}, v{vKm}\nv_xor_b32 v{vOw+i}, {1024*i}, v{vOw}')
    a(f'''
    s_lshl_b32 s{sA}, s{sW}, 17
    s_lshl_b32 s{sB}, s{sH}, 10
    s_add_u32 s{sA}, s{sA}, s{sB}
    v_lshl_add_u32 v{vPs}, v{vG}, 15, s{sA}
    v_lshl_add_u32 v{vPs}, v{vN}, 3, v{vPs}
    v_lshl_add_u32 v{vKw}, v{vN}, 5, s{sLb}
    v_lshl_add_u32 v{vKw}, v{vG}, 3, v{vKw}
    v_mov_b32 v{One}, 0x3f803f80
    v_mov_b32 v{One+1}, 0x3f803f80
    v_mov_b32 v{Z+1}, 0
    v_mov_b32 v{Z+2}, 0
    s_mov_b32 s{sSl}, 0
    s_waitcnt vmcnt(0)
    v_and_b32 v{Q}, 0x01010101, v2
    v_cmp_ne_u32 vcc, 0x01010101, v{Q}
    s_cbranch_vccz Lt4_x_b
    ''')
    poll(a, 'Lt4_x', f'global_load_dword v2, v1, {sp(sWs)} sc1', f'v_and_b32 v{Q}, 0x01010101, v2\nv_cmp_ne_u32 vcc, 0x01010101, v{Q}', 8)
    a(f'''
    s_lshl_b32 s{sA}, s{sXcc}, 1
    s_add_u32 s{sA}, s{sA}, 1
    s_mul_i32 s{sA}, s{sA}, 0x01010101
    v_cmp_ne_u32 vcc, s{sA}, v2
    s_waitcnt lgkmcnt(0)
    s_mov_b32 s{sFast}, vcc_lo
    ''')
    if C.TL and X.get('t4s'): C.tl(a, 7, 1, f's{sGrp}')
    a.label('Lt4_tile')
    if C.TL and X.get('t4s') and not X.get('cu'): C.tl(a, 3, 1, f's{sGrp}')
    a(f'''
    s_lshl_b32 s{sA}, s{sTau}, 14
    s_add_u32 s{sOo}, s{sOut}, s{sA}
    s_addc_u32 s{sOo+1}, s{sOut+1}, 0
    s_lshr_b32 s{sA}, s{sTau}, 1
    s_lshl_b32 s{sA}, s{sA}, 5
    s_add_u32 s{sA}, s{sA}, s{sH}
    s_lshl_b32 s{sB}, s{sA}, 12
    s_add_u32 s{sB}, s{sB}, {WS_KVM}
    s_add_u32 s{sKM}, s{sWs}, s{sB}
    s_addc_u32 s{sKM+1}, s{sWs+1}, 0
    ''')
    if X.get('iw', 2) == 1:
        for i in range(4): a(f'global_load_dwordx4 {vr(IN+4*i,4)}, v{vIn+i}, {sp(sIb)} sc1')
    for i in range(4): a(f'global_load_dwordx4 {vr(KM+4*i,4)}, v{vKm+i}, {sp(sKM)} sc1')
    for k in range(NS):
        if k < NS-1: a(f's_cmp_lg_u32 s{sSl}, {k}\ns_cbranch_scc1 Lt4_pk{k+1}')
        for r, d in zip(state, park[k*len(state):]): a(f'v_accvgpr_read_b32 v{r}, {d}' if d[0] == 'a' else f'v_mov_b32 v{r}, {d}')
        if k < NS-1: a(f's_branch Lt4_pe\nLt4_pk{k+1}:')
    a(f'''
    Lt4_pe:
    s_mov_b32 s{sSpin}, 0
    s_branch Lt4_p
    Lt4_r:
    s_add_u32 s{sSpin}, s{sSpin}, 1
    s_cmp_gt_u32 s{sSpin}, {WSPIN}
    s_cbranch_scc1 Lt4_go
    {f"s_sleep {X.get('ks', 1)}" if X.get('ks', 1) else ''}
    ''')
    for i in range(4): a(f'global_load_dwordx4 {vr(KM+4*i,4)}, v{vKm+i}, {sp(sKM)} sc1')
    a.label('Lt4_p')
    for i in range(4): a(f's_waitcnt vmcnt({3-i})\nds_write2st64_b32 v{vKw}, v{KM+4*i}, v{KM+4*i+1} offset0:{4*i} offset1:{4*i+2}')
    a.nds = 0; tx = []
    for i in range(4):
        for v in range(2): tx.append(a(f'ds_read_b64_tr_b16 {vr(KT+4*i+2*v,2)}, v{vTr} offset:{i*1024+v*512}'))
    a(f'''
    v_max3_u32 v{t0}, v{KM}, v{KM+1}, v{KM+2}
    v_max3_u32 v{t0}, v{t0}, v{KM+3}, v{KM+4}
    v_max3_u32 v{t0}, v{t0}, v{KM+5}, v{KM+8}
    v_max3_u32 v{t0}, v{t0}, v{KM+9}, v{KM+12}
    v_max_u32 v{t0}, v{t0}, v{KM+13}
    v_cmp_eq_u32 vcc, -1, v{t0}
    s_cbranch_vccnz Lt4_r
    Lt4_go:
    ''')
    if C.TL: C.tl(a, 1, 1, f's{sGrp}')
    for i in range(4):
        a.wds(tx[2*i+1])
        a(f'{MF} {vr(Mm,4)}, {vr(KT+4*i,4)}, {vr(Q+4*i,4)}, {vr(Mm,4) if i else 0}')
    a(f'''
    v_max3_f32 v{m2}, v{mx}, v{Mm}, v{Mm+1}
    v_max3_f32 v{t0}, v{mx}, v{Mm}, v{Mm+1}
    v_permlane16_swap_b32 v{m2}, v{t0}
    v_max_f32 v{Mm+2}, v{m2}, v{t0}
    v_max_f32 v{m2}, v{m2}, v{t0}
    v_permlane32_swap_b32 v{m2}, v{Mm+2}
    v_max_f32 v{m2}, v{m2}, v{Mm+2}
    v_sub_f32 v{mx}, v{mx}, v{m2}
    v_sub_f32 v{Mm}, v{Mm}, v{m2}
    v_sub_f32 v{Mm+1}, v{Mm+1}, v{m2}
    v_exp_f32 v{mx}, v{mx}
    v_exp_f32 v{Mm}, v{Mm}
    v_exp_f32 v{Mm+1}, v{Mm+1}
    v_mul_f32 v{Ls}, v{lx}, v{mx}
    v_cvt_pk_bf16_f32 v{Z}, v{Mm}, v{Mm+1}
    v_cvt_pk_bf16_f32 v{Z+3}, v{Mm}, v{Mm+1}
    v_mul_f32 v{O}, v{O}, v{mx}
    v_mul_f32 v{O+1}, v{O+1}, v{mx}
    v_mfma_f32_16x16x16_bf16 {vr(Ls,4)}, {vr(One,2)}, {vr(Z,2)}, {vr(Ls,4)}
    v_mul_f32 v{O+2}, v{O+2}, v{mx}
    v_mul_f32 v{O+3}, v{O+3}, v{mx}
    v_mul_f32 v{O+4}, v{O+4}, v{mx}
    v_mul_f32 v{O+5}, v{O+5}, v{mx}
    v_mfma_f32_16x16x16_bf16 {vr(O,4)}, {vr(KM+2,2)}, {vr(Z,2)}, {vr(O,4)}
    v_mul_f32 v{O+6}, v{O+6}, v{mx}
    v_mul_f32 v{O+7}, v{O+7}, v{mx}
    v_mfma_f32_16x16x16_bf16 {vr(O+4,4)}, {vr(KM+2,2)}, {vr(Z+2,2)}, {vr(O+4,4)}
    v_rcp_f32 v{Ls}, v{Ls}
    ''')
    for r in range(4): a(f'v_mul_f32 v{O+r}, v{O+r}, v{Ls}')
    for r in range(2): a(f'v_cvt_pk_bf16_f32 v{OX+r}, v{O+2*r}, v{O+2*r+1}')
    for r in range(4,8): a(f'v_mul_f32 v{O+r}, v{O+r}, v{Ls}')
    for r in range(2,4): a(f'v_cvt_pk_bf16_f32 v{OX+r}, v{O+2*r}, v{O+2*r+1}')
    a(f'ds_write_b128 v{vOw}, {vr(OX,4)}')
    W_ = lambda c, i: a(f'{MF} {vr(Y+4*c,4)}, {vr(16*c+4*i,4,"a")}, {vr(OX+4*i,4)}, {vr(Y+4*c,4) if i else 0}')
    W_(0,0); W_(1,0)
    a('s_waitcnt lgkmcnt(0)\ns_barrier')
    a.nds = 0; to = [a(f'ds_read_b128 {vr(OX+4*i,4)}, v{vOw+i}') for i in range(1,4)]
    for c in range(2,8): W_(c,0)
    a(f's_cmp_lg_u32 s{sFast}, 0\ns_cbranch_scc1 Lt4_s')
    def wo(sc):
        a.nds = 3
        def st(c): return [f'v_cvt_pk_bf16_f32 v{PS+2*(c%4)}, v{Y+4*c}, v{Y+4*c+1}', f'v_cvt_pk_bf16_f32 v{PS+2*(c%4)+1}, v{Y+4*c+2}, v{Y+4*c+3}',
                           f'global_store_dwordx2 v{vPs}, {vr(PS+2*(c%4),2)}, {sp(sIb)} offset:{128*c}{sc}']
        q_ = []
        for c in range(0,8,2):
            for i in range(1,4):
                if c == 0: a.wds(to[i-1])
                for d in range(2):
                    W_(c+d, i)
                    if q_ and (i > 1 or d): a(q_.pop(0))
                    if q_ and q_[0].startswith('global'): a(q_.pop(0))
            for x_ in q_: a(x_)
            q_ = st(c) + st(c+1)
        for x_ in q_: a(x_)
    wo(''); a('s_branch Lt4_e'); a.label('Lt4_s'); wo(' sc1'); a.label('Lt4_e')
    if C.TL: C.tl(a, 2, 1, f's{sGrp}')
    a.nops(X.get('iz', 0))
    a(f'''
    s_mov_b32 s{sSpin}, 0
    Lt4_i:
    ''')
    for i in range(4): a(f'global_load_dwordx4 {vr(IN+4*i,4)}, v{vIn+i}, {sp(sIb)} sc1')
    a(f's_add_u32 s{sSpin}, s{sSpin}, 1\ns_cmp_gt_u32 s{sSpin}, {WSPIN}\ns_cbranch_scc1 Lt4_f')
    for i in range(4):
        r = IN+4*i
        a(f's_waitcnt vmcnt({3-i})\n{MF} {vr(Dr,4)}, {vr(Sel,4)}, {vr(r,4)}, {vr(Dr,4) if i else 0}')
        a(f'v_max3_u32 v{t0}, v{t0 if i else r}, v{r}, v{r+1}\nv_max3_u32 v{t0}, v{t0}, v{r+2}, v{r+3}')
    a(f'''
    v_cmp_eq_u32 vcc, -1, v{t0}
    s_cbranch_vccnz Lt4_i
    Lt4_f:
    ''')
    for r in range(4): a(f'v_add_f32_dpp v{Dr+r}, v{Dr+r}, v{Dr+r} row_ror:8 {DP}')
    for r in range(4): a(f'v_fma_f32 v{Dr+r}, v{Dr+r}, v{G_}, v{Bm+r}')
    a(f'''
    s_mov_b64 exec, 0x00ff00ff
    v_cvt_pk_bf16_f32 v{Dr}, v{Dr}, v{Dr+1}
    v_cvt_pk_bf16_f32 v{Dr+1}, v{Dr+2}, v{Dr+3}
    global_store_dwordx2 v{vO4}, {vr(Dr,2)}, {sp(sOo)}
    s_mov_b64 exec, -1
    s_waitcnt vmcnt(1)
    s_add_u32 s{sSl}, s{sSl}, 1
    s_add_u32 s{sIb}, s{sIb}, 524288
    s_addc_u32 s{sIb+1}, s{sIb+1}, 0
    s_add_u32 s{sTau}, s{sTau}, {NG3()}
    s_cmp_lt_u32 s{sTau}, 128
    s_cbranch_scc1 Lt4_tile
    ''')

def build(name=NAME, **kw):
    a = Asm()
    a.raw(khead(name))
    a(f'''
    s_cmp_ge_u32 s2, 256
    s_cbranch_scc1 L_done
    s_load_dwordx2 {sp(sDbg)}, s[0:1], 104
    s_load_dwordx2 {sp(sMem)}, s[0:1], 8
    s_load_dwordx4 s[8:11], s[0:1], 24
    s_load_dwordx2 {sp(sWq)}, s[0:1], 16
    s_load_dwordx2 {sp(sWo)}, s[0:1], 40
    s_load_dwordx2 {sp(sWs)}, s[0:1], 112
    s_load_dwordx2 {sp(sX)}, s[0:1], 0
    s_load_dwordx8 s[32:39], s[0:1], 64
    s_load_dwordx2 {sp(sOut)}, s[0:1], 96
    s_getreg_b32 s{sXcc}, hwreg(HW_REG_XCC_ID)
    s_and_b32 s{sXcc}, s{sXcc}, 15
    v_lshrrev_b32 v4, 6, v0
    s_lshr_b32 s{sH}, s2, 3
    {f's_xor_b32 s2, s2, s{sH}' if X.get('perm') else ''}
    {f's_xor_b32 s{sH}, s{sH}, {X["hx"]}' if X.get('hx') else ''}
    s_add_u32 s{sGrp}, s2, {8-X.get('cg', 1)}
    s_and_b32 s{sGrp}, s{sGrp}, 7
    v_readfirstlane_b32 s{sW}, v4
    s_waitcnt lgkmcnt(0)
    ''')
    C.tl(a, 0, 1, f's{sGrp}')
    a(f's_cmp_lg_u32 s{sGrp}, 0\ns_cbranch_scc1 L_work')
    C.chain(a, 'c', mega=True, **kw)
    a('s_endpgm')
    a.label('L_work')
    t1(a)
    if X.get('t1only'):
        a.label('L_t1e')
        C.tl(a, 5, 2, f's{sGrp}')
        a('s_endpgm')
    a(f's_cmp_le_u32 s{sGrp}, {NG3()}\ns_cbranch_scc1 L_t3')
    t2(a)
    C.tl(a, 5, 2, f's{sGrp}')
    a('s_endpgm')
    a.label('L_t3')
    t3(a)
    C.tl(a, 5, 2, f's{sGrp}')
    a.label('L_done')
    a('s_endpgm')
    assert a.check_branches() == 0
    return a

if __name__ == '__main__':
    import sys
    kw = eval(sys.argv[2]) if len(sys.argv) > 2 else {}
    C.TL = kw.pop('tl', False)
    X.update(kw.pop('x', {}))
    WS_QX = X.get('qx', 64) << 20
    ref = open('gated_mix__memory_aug_recurrent_mem_tr__glu_gated_bilinear__prompt.s.ref').read().split('\n')
    head = [l for l in ref if l.startswith(';') and '@launch' not in l]
    out = '\n'.join(head) + '\n; @launch grid=(256,1,1) block=(256,1,1) lds=163840\n'
    out += '.amdgcn_target "amdgcn-amd-amdhsa--gfx950"\n.text\n' + build(**kw).text()
    out += '.section .rodata,"a"\n' + kdesc(NAME)
    open(sys.argv[1], 'w').write(out)
```

```python
from asmlib import *
import gen_chain as C
from gen_chain import sp, sMem,sWq,sWk,sWv,sWo,sDbg,sWs,sH,sW,sXcc,QSCALE,WS_KVM,f32,WS_FL,FL_K,FL_G,FL_P
import math
NAME = 'gated_mix__memory_aug_recurrent_mem_tr__glu_gated_bilinear__prompt_kernel'
WS_QX = 64<<20; WS_ACT = 128<<20; ACT_T = 180224; WS_F2 = 63<<20
WSPIN = 60000
WS_IB = 96<<20; FL_X = 24576
def TM(): return X.get('tm', 128)
sGrp = 20; sSpin = 21; sA, sB, sC, sD = 22, 23, 24, 25
sX, sWg, sWu, sWd, sGw, sOut = 30, 32, 34, 36, 38, 40
MF = 'v_mfma_f32_16x16x32_bf16'
X = {}
def NG3(): return X.get('ng3', 4)

def add64(a, d, s, off):
    o = f's{off}' if isinstance(off, str) is False and False else off
    a(f's_add_u32 s{d}, s{s}, {off}\ns_addc_u32 s{d+1}, s{s+1}, 0')

def poll(a, lab, loads, check, sl=8):
    a(f"""
    s_mov_b32 s{sSpin}, 0
    {lab}_p:
    {loads}
    s_add_u32 s{sSpin}, s{sSpin}, 1
    s_cmp_gt_u32 s{sSpin}, {WSPIN}
    s_cbranch_scc1 {lab}_b
    s_waitcnt vmcnt(0)
    {check}
    s_cbranch_vccz {lab}_b
    s_sleep {sl}
    s_branch {lab}_p
    {lab}_b:
    s_waitcnt vmcnt(0)
    """)

class Filt:
    def __init__(s, a): s.__dict__['a'] = a
    def __getattr__(s, k): return getattr(s.a, k)
    def __setattr__(s, k, v): setattr(s.a, k, v)
    def __call__(s, t):
        if t.startswith('global_store_dwordx4 v6'):
            if X.get('nost'): return None
            if X.get('plain'): t = t.replace(' sc1', '')
            if X.get('nt'): t = t.replace(' sc1', ' sc1 nt')
            if X.get('stb'): t = t.replace(' sc1', X['stb'])
        return s.a(t)
def t1(a):
    a = Filt(a)
    sTile, sBuf, sStr, sW0, sW1, sO0, sO1, sBlk, sM, sXb = 44, 45, 46, 48, 50, 52, 54, 56, 57, 58
    sStep, sFo, sFb = 47, 60, 62
    vOne, vFo, vPf, vPr, vRa, vRd, vXr = 14, 15, 7, 128, 129, 130, 131
    XR = 23; NB1 = X.get('nb1', 16)
    ACC = 16; WF = 80; PK = 112
    vLane, vN, vG, vLin, vTr, vRow, vCh, vA, vXo = 3, 4, 5, 6, 8, 10, 11, 12, 13
    acc = lambda T, hf, v: ACC + 16*T + 8*hf + 4*v
    def prefetch(nk=3, st=896):
        a(f'''
        s_sub_u32 s{sA}, s{sGrp}, 1
        s_lshl_b32 s{sB}, s{sH}, 2
        s_add_u32 s{sB}, s{sB}, s{sW}
        s_mul_i32 s{sB}, s{sB}, 7
        s_add_u32 s{sA}, s{sA}, s{sB}
        v_and_b32 v1, 63, v0
        v_lshlrev_b32 v1, 7, v1
        ''')
        for k in range(nk):
            a(f'''
            s_min_u32 s{sA}, s{sA}, 2047
            s_bitcmp1_b32 s{sA}, 9
            s_cselect_b64 {sp(sO0)}, {sp(sWk)}, {sp(sWq)}
            s_cselect_b64 {sp(sO1)}, {sp(sWo)}, {sp(sWv)}
            s_bitcmp1_b32 s{sA}, 10
            s_cselect_b64 {sp(sO0)}, {sp(sO1)}, {sp(sO0)}
            s_and_b32 s{sB}, s{sA}, 511
            s_lshl_b32 s{sB}, s{sB}, 13
            s_add_u32 s{sO0}, s{sO0}, s{sB}
            s_addc_u32 s{sO0+1}, s{sO0+1}, 0
            global_load_dword v{vPf}, v1, {sp(sO0)}{X.get('pfc', '')}
            s_add_u32 s{sA}, s{sA}, {st}
            ''')
    def pfo():
        a(f'''
        s_sub_u32 s{sA}, s{sGrp}, 5
        s_lshl_b32 s{sA}, s{sA}, 7
        s_lshl_b32 s{sB}, s{sH}, 2
        s_add_u32 s{sA}, s{sA}, s{sB}
        s_add_u32 s{sA}, s{sA}, s{sW}
        v_and_b32 v1, 63, v0
        v_lshlrev_b32 v1, {X.get('pfs', 7)}, v1
        s_cmp_lt_u32 s{sGrp}, 5
        s_cselect_b64 exec, 0, -1
        ''')
        ps_ = X.get('pfs', 7); nr_ = 512 << (7 - ps_)
        for mat in X.get('pfm', 'o'):
            if mat == 'Q':
                a(f'''
                v_and_b32 v2, 3, v0
                v_lshlrev_b32 v2, 6, v2
                v_bfe_u32 v3, v0, 2, 4
                v_lshl_add_u32 v2, v3, 10, v2
                v_add_u32 v2, 256, v2
                s_min_u32 s{sB}, s{sA}, 255
                s_lshl_b32 s{sB}, s{sB}, 14
                s_add_u32 s{sO0}, s{sWq}, s{sB}
                s_addc_u32 s{sO0+1}, s{sWq+1}, 0
                global_load_dword v{vPf}, v2, {sp(sO0)}
                v_and_b32 v3, 63, v0
                ''')
                continue
            b_ = dict(q=sWq, k=sWk, v=sWv, o=sWo)[mat]
            for k in range((nr_ + 383) // 384):
                a(f'''
                s_add_u32 s{sB}, s{sA}, {384*k}
                s_min_u32 s{sB}, s{sB}, {nr_-1}
                s_lshl_b32 s{sB}, s{sB}, {ps_+6}
                s_add_u32 s{sO0}, s{b_}, s{sB}
                s_addc_u32 s{sO0+1}, s{b_+1}, 0
                global_load_dword v{vPf}, v1, {sp(sO0)}
                ''')
        a('s_mov_b64 exec, -1')
    if X.get('pf') == 1: prefetch()
    if X.get('pf') == 5: pfo()
    a(f'''
    s_add_u32 s{sFb}, s{sWs}, {WS_FL}
    s_addc_u32 s{sFb+1}, s{sWs+1}, 0
    v_mov_b32 v{vOne}, 1
    s_cmp_lg_u32 s{sGrp}, 7
    s_cbranch_scc1 Lt1_nz
    s_cmp_gt_u32 s{sH}, 16
    s_cbranch_scc1 Lt1_nz
    s_cmp_eq_u32 s{sH}, 16
    s_cselect_b32 s{sA}, 0, -1
    v_mov_b32 v{PK}, s{sA}
    v_mov_b32 v{PK+1}, s{sA}
    v_mov_b32 v{PK+2}, s{sA}
    v_mov_b32 v{PK+3}, s{sA}
    s_lshl_b32 s{sA}, s{sH}, 15
    s_add_u32 s{sA}, s{sA}, {C.WS_RA}
    s_cmp_eq_u32 s{sH}, 16
    s_cselect_b32 s{sA}, {WS_FL}, s{sA}
    v_lshl_add_u32 v1, v0, 4, s{sA}
    ''')
    for i in range(8):
        a(f'global_store_dwordx4 v1, {vr(PK,4)}, {sp(sWs)} sc1')
        if i < 7: a('v_add_u32 v1, 4096, v1')
    a(f'''
    s_lshl_b32 s{sA}, s{sH}, 10
    s_add_u32 s{sA}, s{sA}, {C.WS_RM}
    v_lshl_add_u32 v1, v0, 2, s{sA}
    global_store_dword v1, v{PK}, {sp(sWs)} sc1
    s_lshl_b32 s{sA}, s{sH}, 2
    s_add_u32 s{sA}, s{sA}, 32
    s_cmp_eq_u32 s{sH}, 16
    s_cselect_b32 s{sA}, 160, s{sA}
    s_add_u32 s{sA}, s{sA}, s{sW}
    v_mov_b32 v1, s{sA}
    s_waitcnt vmcnt(0)
    s_mov_b64 exec, 1
    global_store_byte v1, v{vOne}, {sp(sDbg)} sc1
    s_mov_b64 exec, -1
    Lt1_nz:
    ''')
    if X.get('pf') == 3:
        a(f's_cmp_ge_u32 s{sH}, 21\ns_cbranch_scc1 Lt1_npf')
        prefetch(4, 588)
        a.label('Lt1_npf')
    if X.get('nowork'): a('s_waitcnt vmcnt(0)\ns_endpgm')
    if X.get('only0'): a(f's_waitcnt vmcnt(0)\ns_cmp_lt_u32 s{sH}, 21\ns_cbranch_scc1 L_t1e')
    a(f'''
    v_and_b32 v{vLane}, 63, v0
    v_and_b32 v{vN}, 15, v0
    v_lshrrev_b32 v{vG}, 4, v{vLane}
    v_lshlrev_b32 v{vLin}, 4, v{vLane}
    s_sub_u32 s{sB}, s{sGrp}, 5
    s_sub_u32 s{sA}, s{sH}, {NB1}
    s_and_b32 s{sBlk}, s{sA}, 1
    s_add_u32 s{sBlk}, s{sBlk}, 2
    s_lshr_b32 s{sA}, s{sA}, 1
    s_cmp_lt_u32 s{sH}, {NB1}
    s_cselect_b32 s{sBlk}, 1, s{sBlk}
    s_cselect_b32 s{sA}, s{sH}, s{sA}
    s_cselect_b32 s{sStep}, {NB1}, {(32-NB1)//2}
    s_mul_i32 s{sTile}, s{sB}, s{sStep}
    s_add_u32 s{sTile}, s{sTile}, s{sA}
    s_mul_i32 s{sStep}, s{sStep}, 3
    s_lshl_b32 s{sA}, s{sGrp}, 5
    s_add_u32 s{sA}, s{sA}, s{sH}
    s_sub_u32 s{sA}, s{sA}, 32
    s_cmp_lt_u32 s{sGrp}, 5
    s_cselect_b32 s{sBlk}, 0, s{sBlk}
    s_cselect_b32 s{sTile}, s{sA}, s{sTile}
    s_cselect_b32 s{sStep}, 128, s{sStep}
    ; W prefetch rows: 32*((4*(blk-1)+w)&15) + lane%32
    s_lshl_b32 s{sA}, s{sBlk}, 2
    s_add_u32 s{sA}, s{sA}, s{sW}
    s_and_b32 s{sA}, s{sA}, 7
    s_lshl_b32 s{sA}, s{sA}, 6
    v_add_u32 v{vPr}, s{sA}, v{vLane}
    ; DMA lane: row = l/4 + 128w ; chunk = (l%4) ^ (2*bit5)
    v_lshrrev_b32 v{vRow}, 2, v{vLane}
    s_lshl_b32 s{sA}, s{sW}, 7
    v_add_u32 v{vRow}, s{sA}, v{vRow}
    v_lshrrev_b32 v{vCh}, 4, v{vLane}
    v_and_b32 v{vCh}, 2, v{vCh}
    v_xor_b32 v{vCh}, v{vCh}, v{vLane}
    v_and_b32 v{vCh}, 3, v{vCh}
    v_lshlrev_b32 v{vCh}, 4, v{vCh}
    s_mov_b32 s{sBuf}, 0
    ''')
    def wsrc(tag, tile):
        a(f'''
        s_cmp_ge_u32 s{tile}, 192
        s_cbranch_scc1 Lt1_{tag}_gu
        s_lshr_b32 s{sA}, s{tile}, 6
        s_cmp_eq_u32 s{sA}, {X.get('vf', 0)}
        s_cselect_b64 {sp(sW0)}, {sp(sWk)}, {sp(sWv)}
        s_cmp_eq_u32 s{sA}, 2
        s_cselect_b64 {sp(sW0)}, {sp(sWq)}, {sp(sW0)}
        s_and_b32 s{sA}, s{tile}, 63
        s_lshl_b32 s{sA}, s{sA}, 7
        s_add_u32 s{sW0}, s{sW0}, s{sA}
        s_addc_u32 s{sW0+1}, s{sW0+1}, 0
        s_add_u32 s{sW1}, s{sW0}, 64
        s_addc_u32 s{sW1+1}, s{sW0+1}, 0
        s_mov_b32 s{sStr}, 8192
        s_branch Lt1_{tag}_e
        Lt1_{tag}_gu:
        s_min_u32 s{sA}, s{tile}, 234
        s_sub_u32 s{sA}, s{sA}, 192
        s_lshl_b32 s{sA}, s{sA}, 6
        s_add_u32 s{sW0}, s{sWg}, s{sA}
        s_addc_u32 s{sW0+1}, s{sWg+1}, 0
        s_add_u32 s{sW1}, s{sWu}, s{sA}
        s_addc_u32 s{sW1+1}, s{sWu+1}, 0
        s_mov_b32 s{sStr}, 2752
        Lt1_{tag}_e:
        v_mad_u32_u24 v{vA}, v{vRow}, s{sStr}, v{vCh}
        s_lshl_b32 s{sStr}, s{sStr}, 4
        ''')
    def dma(i):
        r = [f's_add_u32 m0, s{sM}, {i*1024}', f'global_load_lds_dwordx4 v{vA}, {sp(sW0)}',
             f's_add_u32 m0, s{sM}, {32768+i*1024}', f'global_load_lds_dwordx4 v{vA}, {sp(sW1)}']
        if i < 7: r.append(f'v_add_u32 v{vA}, s{sStr}, v{vA}')
        return r
    a.label('Lt1_job')
    wsrc('p', sTile)
    a(f's_lshl_b32 s{sM}, s{sW}, 13')
    for i in range(8):
        for x in dma(i): a(x)
    a(f'''
    s_lshl_b32 s{sA}, s{sBlk}, 18
    s_lshl_b32 s{sB}, s{sW}, 16
    s_add_u32 s{sA}, s{sA}, s{sB}
    s_add_u32 s{sXb}, s{sX}, s{sA}
    s_addc_u32 s{sXb+1}, s{sX+1}, 0
    s_mul_i32 s{sD}, s{sW}, {XR*1040}
    s_add_u32 s{sD}, s{sD}, 65536
    v_mov_b32 v{vXo}, v{vLin}
    v_mul_u32_u24 v{vXr}, 1040, v{vN}
    v_lshl_add_u32 v{vXr}, v{vG}, 4, v{vXr}
    v_add_u32 v{vXr}, s{sD}, v{vXr}
    ''')
    xt = {}
    def xdma(r):
        a(f's_add_u32 m0, s{sD}, {(r%XR)*1040 - (r%4)*1024}')
        xt[r] = a(f'global_load_lds_dwordx4 v{vXo}, {sp(sXb)} offset:{(r%4)*1024}')
        if r % 4 == 3: a(f'v_add_u32 v{vXo}, 4096, v{vXo}')
    for r in range(XR): xdma(r)
    if X.get('pf') == 2: prefetch()
    if X.get('pf') == 4: pfo()
    nx = XR
    for T in range(4):
        b = (16*T) % XR
        a(f'v_add_u32 v1, {b*1040}, v{vXr}')
        if b + 16 > XR: a(f'v_cmp_le_u32 vcc, {XR-b}, v{vN}\nv_subrev_u32 v2, {XR*1040}, v1\nv_cndmask_b32 v1, v1, v2, vcc')
        a.wvm(xt[16*T+15])
        for ks in range(16): a(f'ds_read_b128 {vr(64*T+4*ks,4,"a")}, v1 offset:{ks*64}')
        if nx < 64:
            a('s_waitcnt lgkmcnt(0)')
            for r in range(nx, min(nx+16, 64)): xdma(r)
            nx = min(nx+16, 64)
    a(f'''
    v_lshlrev_b32 v{vTr}, 9, v{vG}
    v_and_b32 v1, 12, v{vLane}
    v_lshl_add_u32 v{vTr}, v1, 4, v{vTr}
    v_and_b32 v1, 3, v{vLane}
    v_lshl_add_u32 v{vTr}, v1, 3, v{vTr}
    v_and_b32 v1, 1, v{vG}
    v_lshl_add_u32 v{vTr}, v1, 5, v{vTr}
    v_xor_b32 v{vTr+1}, 32, v{vTr}
    ''')
    a(f'''
    v_mov_b32 v{vFo}, {FL_G+1536}
    s_mov_b64 {sp(sFo)}, 0
    v_mov_b32 v{vRa}, 160
    v_mov_b32 v{vRd}, 0x01010101
    s_cmp_lg_u32 s{sW}, 0
    s_cbranch_scc1 Lt1_n0
    global_load_dword v{vRd}, v{vRa}, {sp(sDbg)} sc1
    Lt1_n0:
    s_waitcnt lgkmcnt(0)
    s_barrier
    ''')
    if C.TL:
        a(f's_cmp_ge_u32 s{sBlk}, 4\ns_cbranch_scc1 Lt1_tile')
        C.tl(a, 1, 1, f's{sGrp}')
    if X.get('dly'):
        a(f's_cmp_lt_u32 s{sGrp}, {X.get("dlg", 5)}\ns_cbranch_scc1 Lt1_tile\ns_cmp_lt_u32 s{sH}, {X.get("dlh", 0)}\ns_cbranch_scc1 Lt1_tile')
        for _ in range(X['dly']): a('s_sleep 33')
    a.label('Lt1_tile')
    if X.get('wpf', 1):
        a(f's_lshl_b32 s{sD}, s{sStep}, 1\ns_add_u32 s{sD}, s{sD}, s{sTile}')
        wsrc('f', sD)
        a(f'''
        s_lshr_b32 s{sStr}, s{sStr}, 4
        v_mul_u32_u24 v1, s{sStr}, v{vPr}
        global_load_dword v{vPf}, v1, {sp(sW0)}
        global_load_dword v{vPf}, v1, {sp(sW1)}
        ''')
    a(f's_add_u32 s{sD}, s{sTile}, s{sStep}')
    wsrc('n', sD)
    a(f's_xor_b32 s{sM}, s{sM}, 65536')
    a(f'''
    s_lshr_b32 s{sA}, s{sTile}, 6
    s_cmp_eq_u32 s{sA}, {1-X.get('vf', 0)}
    s_cbranch_scc1 Lt1_mv
    ''')
    def frags(ks):
        return [f'ds_read_b64_tr_b16 {vr(WF+16*(ks%2)+8*hf+4*v+2*q,2)}, v{vTr+v} offset:{hf*32768+ks*2048+q*256}'
                for hf in range(2) for v in range(2) for q in range(2)]
    def flag(n):
        a(f's_waitcnt vmcnt({n})\ns_mov_b64 exec, {sp(sFo)}\nglobal_store_byte v{vFo}, v{vOne}, {sp(sFb)} sc1\ns_mov_b64 exec, -1')
    def mainloop(swap):
        a.nds = 0
        tg = None
        for x in frags(0): tg = a(x)
        for ks in range(16):
            fill = (frags(ks+1) if ks < 15 else [])
            d = (dma(2*ks) + dma(2*ks+1)) if ks < 4 and not X.get('nodma') else []
            a.wds(tg)
            if ks == X.get('fks', 8): flag(16 + 2*X.get('wpf', 1))
            n = 0
            for hf in range(2):
                for v in range(2):
                    for T in range(4):
                        w_ = vr(WF+16*(ks%2)+8*hf+4*v,4); x_ = vr(64*T+4*ks,4,'a'); c = vr(acc(T,hf,v),4)
                        p, q = (w_, x_) if swap else (x_, w_)
                        a(f'{MF} {c}, {p}, {q}, {c if ks else 0}')
                        if fill and n < 8: tg = a(fill.pop(0))
                        elif d:
                            a(d.pop(0))
                            if d and d[0].startswith('global'): a(d.pop(0))
                        n += 1
            assert not fill and not d
        a(f'''
        v_xor_b32 v{vTr}, 0x10000, v{vTr}
        v_xor_b32 v{vTr+1}, 0x10000, v{vTr+1}
        s_waitcnt vmcnt(0)
        v_cmp_ne_u32 vcc, 0x01010101, v{vRd}
        s_cbranch_vccz Lt1_rd{int(swap)}
        ''')
        poll(a, f'Lt1_r{int(swap)}', f'global_load_dword v{vRd}, v{vRa}, {sp(sDbg)} sc1', f'v_cmp_ne_u32 vcc, 0x01010101, v{vRd}', 8)
        a(f'Lt1_rd{int(swap)}:\ns_barrier')
    def kvbase(base):
        a(f'''
        s_lshl_b32 s{sA}, s{sBlk}, 21
        s_lshl_b32 s{sB}, s{sW}, 19
        s_add_u32 s{sA}, s{sA}, s{sB}
        s_and_b32 s{sB}, s{sTile}, 63
        s_lshl_b32 s{sB}, s{sB}, 12
        s_add_u32 s{sA}, s{sA}, s{sB}
        s_add_u32 s{sA}, s{sA}, {base}
        s_add_u32 s{sO0}, s{sWs}, s{sA}
        s_addc_u32 s{sO0+1}, s{sWs+1}, 0
        s_add_u32 s{sO1}, s{sO0}, {C.KST}
        s_addc_u32 s{sO1+1}, s{sO0+1}, 0
        ''')
    def pack(d, c0, c1):
        a(f'v_cvt_pk_bf16_f32 v{d}, v{c0}, v{c0+1}\nv_cvt_pk_bf16_f32 v{d+1}, v{c0+2}, v{c0+3}')
        a(f'v_cvt_pk_bf16_f32 v{d+2}, v{c1}, v{c1+1}\nv_cvt_pk_bf16_f32 v{d+3}, v{c1+2}, v{c1+3}')
    mainloop(True)
    a(f'''
    s_cmp_ge_u32 s{sTile}, 192
    s_cbranch_scc1 Lt1_eg
    s_mov_b32 s{sC}, 0
    s_cmp_lt_u32 s{sTile}, 128
    s_cbranch_scc1 Lt1_ek
    s_mov_b32 s{sC}, {QSCALE}
    ''')
    for r in range(64): a(f'v_mul_f32 v{ACC+r}, s{sC}, v{ACC+r}')
    a(f's_mov_b32 s{sC}, {WS_QX}')
    a.label('Lt1_ek')
    kvbase(f's{sC}')
    i = 0
    for T in range(4):
        for hf in range(2):
            d = PK + 4*(i%4); i += 1
            pack(d, acc(T,hf,0), acc(T,hf,1))
            a(f'global_store_dwordx4 v{vLin}, {vr(d,4)}, {sp(sO1 if T//2 else sO0)} offset:{hf*2048+(T%2)*1024} sc1')
    if TM() < 128:
        a(f'''
        s_cmp_lg_u32 s{sBlk}, 7
        s_cbranch_scc1 Lt1_next
        s_cmp_ge_u32 s{sTile}, 64
        s_cbranch_scc1 Lt1_next
        s_lshl_b32 s{sA}, s{sW}, 18
        s_lshl_b32 s{sB}, s{sTile}, 11
        s_add_u32 s{sA}, s{sA}, s{sB}
        s_add_u32 s{sA}, s{sA}, {WS_KVM+56*131072}
        s_add_u32 s{sO0}, s{sWs}, s{sA}
        s_addc_u32 s{sO0+1}, s{sWs+1}, 0
        s_add_u32 s{sO1}, s{sO0}, 131072
        s_addc_u32 s{sO1+1}, s{sO0+1}, 0
        v_mov_b64 {vr(WF,2)}, -1
        v_mov_b64 {vr(WF+2,2)}, -1
        ''')
        for j in range(4): a(f'global_store_dwordx4 v{vLin}, {vr(WF,4)}, {sp(sO1 if j//2 else sO0)} offset:{(j%2)*1024} sc1')
    a('s_branch Lt1_next')
    a.label('Lt1_eg')
    a(f'''
    s_lshl_b32 s{sA}, s{sBlk}, 4
    s_lshl_b32 s{sB}, s{sW}, 2
    s_add_u32 s{sA}, s{sA}, s{sB}
    s_mul_i32 s{sA}, s{sA}, {ACT_T}
    s_sub_u32 s{sB}, s{sTile}, 64
    s_lshl_b32 s{sB}, s{sB}, 10
    s_add_u32 s{sA}, s{sA}, s{sB}
    s_add_u32 s{sA}, s{sA}, {WS_ACT}
    s_add_u32 s{sO0}, s{sWs}, s{sA}
    s_addc_u32 s{sO0+1}, s{sWs+1}, 0
    ''')
    for T in range(4):
        for r in range(8): a(f'v_mul_f32 v{acc(T,0,0)+r}, v{acc(T,0,0)+r}, v{acc(T,1,0)+r}')
        d = PK + 4*T
        pack(d, acc(T,0,0), acc(T,0,1))
        a(f'global_store_dwordx4 v{vLin}, {vr(d,4)}, {sp(sO0)} sc1')
        if T < 3: a(f's_add_u32 s{sO0}, s{sO0}, {ACT_T}\ns_addc_u32 s{sO0+1}, s{sO0+1}, 0')
    a('s_branch Lt1_next')
    a.label('Lt1_mv')
    mainloop(False)
    kvbase(C.WS_V)
    i = 0
    for s_ in range(2):
        for hf in range(2):
            for u in range(2):
                d = PK + 4*(i%4); i += 1
                pack(d, acc(2*s_,hf,u), acc(2*s_+1,hf,u))
                a(f'global_store_dwordx4 v{vLin}, {vr(d,4)}, {sp(sO1 if s_ else sO0)} offset:{hf*2048+u*1024} sc1')
    a.label('Lt1_next')
    a(f'''
    s_lshl_b32 s{sA}, s{sBlk}, 2
    s_add_u32 s{sA}, s{sA}, s{sW}
    s_lshl_b32 s{sB}, s{sTile}, 5
    s_add_u32 s{sB}, s{sB}, s{sA}
    s_add_u32 s{sB}, s{sB}, {FL_G-192*32}
    s_lshl_b32 s{sA}, s{sA}, 3
    s_bfe_u32 s{sC}, s{sTile}, 0x50001
    s_lshl_b32 s{sC}, s{sC}, 8
    s_add_u32 s{sA}, s{sA}, s{sC}
    s_lshr_b32 s{sC}, s{sTile}, 6
    s_lshl_b32 s{sC}, s{sC}, 1
    s_add_u32 s{sA}, s{sA}, s{sC}
    s_and_b32 s{sC}, s{sTile}, 1
    s_add_u32 s{sA}, s{sA}, s{sC}
    s_add_u32 s{sA}, s{sA}, {FL_K}
    s_cmp_ge_u32 s{sTile}, 192
    s_cselect_b32 s{sA}, s{sB}, s{sA}
    v_mov_b32 v{vFo}, s{sA}
    s_mov_b64 {sp(sFo)}, 1
    ''')
    if X.get('ef', 1):
        a(f's_cmp_ge_u32 s{sBlk}, {X.get("ef", 1)}\ns_cbranch_scc1 Lt1_nef\ns_add_u32 s{sA}, s{sTile}, s{sStep}\ns_sub_u32 s{sA}, s{sA}, 128\ns_cmp_ge_u32 s{sA}, s{sStep}\ns_cbranch_scc1 Lt1_nef')
        flag(0)
        a(f's_mov_b64 {sp(sFo)}, 0\nLt1_nef:')
    if C.TL:
        a(f's_cmp_ge_u32 s{sTile}, 128\ns_cbranch_scc1 Lt1_ntl\ns_cmp_ge_u32 s{sBlk}, 2\ns_cbranch_scc1 Lt1_ntl')
        C.tl(a, 2, 1, f's{sGrp}')
        a.label('Lt1_ntl')
    if X.get('slp'): a(f's_cmp_lt_u32 s{sBlk}, {X.get("slb", 4)}\ns_cbranch_scc1 Lt1_nsl\ns_sleep {X["slp"]}\nLt1_nsl:')
    a(f'''
    s_add_u32 s{sTile}, s{sTile}, s{sStep}
    s_cmp_lt_u32 s{sTile}, 235
    s_cbranch_scc1 Lt1_tile
    ''')
    flag(0)
    a(f'''
    s_cmp_lg_u32 s{sBlk}, 0
    s_cbranch_scc1 Lt1_end
    s_and_b32 s{sBlk}, s{sH}, 3
    s_add_u32 s{sBlk}, s{sBlk}, 4
    s_lshl_b32 s{sTile}, s{sGrp}, 3
    s_lshr_b32 s{sA}, s{sH}, 2
    s_add_u32 s{sTile}, s{sTile}, s{sA}
    s_sub_u32 s{sTile}, s{sTile}, 8
    s_mov_b32 s{sStep}, 32
    s_branch Lt1_job
    Lt1_end:
    ''')
    C.tl(a, 3, 1, f's{sGrp}')

def t2(a):
    sT, sHd, sK, sQ, sKM, sO, sFl, sMk, sF2, sV = 44, 45, 46, 48, 50, 52, 54, 56, 64, 66
    vLane, vN, vG, vLin, vKw, vKr, vL2, vNeg = 3, 4, 5, 6, 7, 8, 9, 10
    Q, KX, VX, KM, KT, S, O, P = 16, 48, 80, 112, 128, 144, 176, 240
    DP = 'row_mask:0xf bank_mask:0xf'
    a(f'''
    s_sub_u32 s{sT}, s{sGrp}, {NG3()+1}
    s_lshl_b32 s{sT}, s{sT}, 2
    s_lshr_b32 s{sA}, s{sH}, 3
    s_add_u32 s{sT}, s{sT}, s{sA}
    s_and_b32 s{sHd}, s{sH}, 7
    s_lshl_b32 s{sHd}, s{sHd}, 2
    s_add_u32 s{sHd}, s{sHd}, s{sW}
    s_lshl_b32 s{sA}, s{sW}, 12
    v_lshlrev_b32 v{vKw}, 5, v{vN}
    v_lshl_add_u32 v{vKw}, v{vG}, 3, v{vKw}
    v_add_u32 v{vKw}, s{sA}, v{vKw}
    v_lshlrev_b32 v{vKr}, 3, v{vLane}
    v_add_u32 v{vKr}, s{sA}, v{vKr}
    v_mov_b32 v{vNeg}, 0xff800000
    v_lshlrev_b32 v1, 2, v{vG}
    s_lshl_b32 s{sA}, s{sHd}, 7
    s_add_u32 s{sA}, s{sA}, {WS_FL+FL_P}
    s_add_u32 s{sFl}, s{sWs}, s{sA}
    s_addc_u32 s{sFl+1}, s{sWs+1}, 0
    ''')
    for r in range(4):
        a(f'v_add_u32 v2, {r}, v1\nv_cmp_le_u32 {sp(sMk+2*r)}, v2, v{vN}')
    a(f'''
    s_lshl_b32 s{sA}, s{sHd}, 8
    s_add_u32 s{sA}, s{sA}, {WS_FL+FL_K}
    v_lshl_add_u32 v1, v{vLane}, 2, s{sA}
    v_and_b32 v{Q}, 1, v{vLane}
    v_mul_u32_u24 v{Q}, 0x0101, v{Q}
    v_lshlrev_b32 v{Q}, 16, v{Q}
    s_barrier
    ''')
    poll(a, 'Lt2_w', f'global_load_dword v2, v1, {sp(sWs)} sc1', f'v_or_b32 v2, v2, v{Q}\nv_cmp_ne_u32 vcc, 0x01010101, v2', 32)
    C.tl(a, 4, 1, f's{sGrp}')
    a.label('Lt2_seg')
    a(f'''
    s_lshl_b32 s{sA}, s{sT}, 5
    s_add_u32 s{sA}, s{sA}, s{sHd}
    s_lshl_b32 s{sB}, s{sA}, 13
    s_add_u32 s{sB}, s{sB}, 4096
    s_add_u32 s{sK}, s{sWs}, s{sB}
    s_addc_u32 s{sK+1}, s{sWs+1}, 0
    s_add_u32 s{sQ}, s{sK}, {WS_QX}
    s_addc_u32 s{sQ+1}, s{sK+1}, 0
    s_add_u32 s{sV}, s{sK}, {C.WS_V}
    s_addc_u32 s{sV+1}, s{sK+1}, 0
    s_lshl_b32 s{sB}, s{sA}, 12
    s_add_u32 s{sB}, s{sB}, {WS_KVM}
    s_add_u32 s{sKM}, s{sWs}, s{sB}
    s_addc_u32 s{sKM+1}, s{sWs+1}, 0
    s_lshl_b32 s{sB}, s{sA}, 2
    s_add_u32 s{sB}, s{sB}, {WS_F2}
    s_add_u32 s{sF2}, s{sWs}, s{sB}
    s_addc_u32 s{sF2+1}, s{sWs+1}, 0
    s_mul_i32 s{sB}, s{sT}, {2*ACT_T}
    s_lshl_b32 s{sC}, s{sHd}, 12
    s_add_u32 s{sB}, s{sB}, s{sC}
    s_add_u32 s{sB}, s{sB}, {WS_ACT}
    s_add_u32 s{sO}, s{sWs}, s{sB}
    s_addc_u32 s{sO+1}, s{sWs+1}, 0
    ''')
    a.nvm = 0; tq = {}
    for w in range(4):
        for T in range(2):
            va = vLin; off = w*2048 - 4096
            a(f'global_load_dwordx4 {vr(Q+8*w+4*T,4)}, v{va}, {sp(sQ)} offset:{off+T*1024} sc1')
            tq[w] = a(f'global_load_dwordx4 {vr(KX+8*w+4*T,4)}, v{va}, {sp(sK)} offset:{off+T*1024} sc1')
    for w in range(4):
        for u in range(2):
            va = vLin; off = w*2048 - 4096
            a(f'global_load_dwordx4 {vr(VX+8*w+4*u,4)}, v{va}, {sp(sV)} offset:{off+u*1024} sc1')
    S00, S01, S11, M0, M1 = S, S+4, S+8, S+12, S+16
    for w in range(4):
        a.wvm(tq[w])
        for (d, tk, tq_) in ((S00,0,0),(S01,0,1),(S11,1,1)):
            a(f'{MF} {vr(d,4)}, {vr(KX+8*w+4*tk,4)}, {vr(Q+8*w+4*tq_,4)}, {vr(d,4) if w else 0}')
    for r in range(4):
        a(f'v_cndmask_b32 v{S00+r}, v{vNeg}, v{S00+r}, {sp(sMk+2*r)}')
        a(f'v_cndmask_b32 v{S11+r}, v{vNeg}, v{S11+r}, {sp(sMk+2*r)}')
    mx0, mx1, t0, t1_ = S+20, S+21, S+22, S+23
    a(f'''
    v_max3_f32 v{mx0}, v{S00}, v{S00+1}, v{S00+2}
    v_max_f32 v{mx0}, v{mx0}, v{S00+3}
    v_max3_f32 v{mx1}, v{S01}, v{S01+1}, v{S01+2}
    v_max3_f32 v{mx1}, v{mx1}, v{S01+3}, v{S11}
    v_max3_f32 v{mx1}, v{mx1}, v{S11+1}, v{S11+2}
    v_max_f32 v{mx1}, v{mx1}, v{S11+3}
    s_add_u32 s{sA}, s{sT}, 2
    v_mov_b32 v1, 0
    s_mov_b32 s{sSpin}, 0
    Lt2_p:
    global_load_dword v2, v1, {sp(sFl)} sc1
    s_add_u32 s{sSpin}, s{sSpin}, 1
    s_cmp_gt_u32 s{sSpin}, {WSPIN}
    s_cbranch_scc1 Lt2_go
    s_waitcnt vmcnt(0)
    v_cmp_le_u32 vcc, s{sA}, v2
    s_cbranch_vccnz Lt2_go
    s_sleep 4
    s_branch Lt2_p
    Lt2_go:
    ''')
    for w in range(4): a(f'global_load_dwordx4 {vr(KM+4*w,4)}, v{vLin}, {sp(sKM)} offset:{w*1024} sc1')
    a('s_waitcnt vmcnt(0)')
    for w in range(4):
        for u in range(2): a(f'ds_write_b32 v{vKw}, v{KM+4*w+u} offset:{w*1024+u*512}')
    a('s_waitcnt lgkmcnt(0)')
    for w in range(4):
        for v in range(2): a(f'ds_read_b64_tr_b16 {vr(KT+4*w+2*v,2)}, v{vKr} offset:{w*1024+v*512}')
    a('s_waitcnt lgkmcnt(0)')
    for w in range(4):
        for T, d in ((0,M0),(1,M1)):
            a(f'{MF} {vr(d,4)}, {vr(KT+4*w,4)}, {vr(Q+8*w+4*T,4)}, {vr(d,4) if w else 0}')
    def xred(op, x, y):
        a(f'''
        v_mov_b32 v{t0}, v{x}
        v_mov_b32 v{t1_}, v{y}
        v_permlane16_swap_b32 v{x}, v{t0}
        v_permlane16_swap_b32 v{y}, v{t1_}
        {op} v{x}, v{x}, v{t0}
        {op} v{y}, v{y}, v{t1_}
        v_mov_b32 v{t0}, v{x}
        v_mov_b32 v{t1_}, v{y}
        v_permlane32_swap_b32 v{x}, v{t0}
        v_permlane32_swap_b32 v{y}, v{t1_}
        {op} v{x}, v{x}, v{t0}
        {op} v{y}, v{y}, v{t1_}
        ''')
    a(f'v_max3_f32 v{mx0}, v{mx0}, v{M0}, v{M0+1}\nv_max3_f32 v{mx1}, v{mx1}, v{M1}, v{M1+1}')
    xred('v_max_f32', mx0, mx1)
    e0 = [S00+r for r in range(4)] + [M0, M0+1]; e1 = [S01+r for r in range(8)] + [M1, M1+1]
    for r in e0: a(f'v_sub_f32 v{r}, v{r}, v{mx0}')
    for r in e1: a(f'v_sub_f32 v{r}, v{r}, v{mx1}')
    for r in e0 + e1: a(f'v_exp_f32 v{r}, v{r}')
    P0, P1, Z0, Z1 = P, P+4, P+8, P+12
    a(f'''
    v_cvt_pk_bf16_f32 v{P0}, v{S00}, v{S00+1}
    v_cvt_pk_bf16_f32 v{P0+1}, v{S00+2}, v{S00+3}
    v_mov_b64 {vr(P0+2,2)}, 0
    v_cvt_pk_bf16_f32 v{P1}, v{S01}, v{S01+1}
    v_cvt_pk_bf16_f32 v{P1+1}, v{S01+2}, v{S01+3}
    v_cvt_pk_bf16_f32 v{P1+2}, v{S11}, v{S11+1}
    v_cvt_pk_bf16_f32 v{P1+3}, v{S11+2}, v{S11+3}
    v_cvt_pk_bf16_f32 v{Z0}, v{M0}, v{M0+1}
    v_mov_b32 v{Z0+1}, 0
    v_mov_b32 v{Z0+2}, 0
    v_mov_b32 v{Z0+3}, v{Z0}
    v_cvt_pk_bf16_f32 v{Z1}, v{M1}, v{M1+1}
    v_mov_b32 v{Z1+1}, 0
    v_mov_b32 v{Z1+2}, 0
    v_mov_b32 v{Z1+3}, v{Z1}
    ''')
    oa = lambda T, w, u: O + 32*T + 8*w + 4*u
    for T in range(2):
        for w in range(4):
            for u in range(2):
                a(f'{MF} {vr(oa(T,w,u),4)}, {vr(VX+8*w+4*u,4)}, {vr(P+4*T,4)}, 0')
    for T in range(2):
        for w in range(4):
            for u in range(2):
                a(f'v_mfma_f32_16x16x16_bf16 {vr(oa(T,w,u),4)}, {vr(KM+4*w+2,2)}, {vr(Z0+4*T+2*u,2)}, {vr(oa(T,w,u),4)}')
    for e in (e0, e1):
        for r in e[1:]: a(f'v_add_f32 v{e[0]}, v{e[0]}, v{r}')
    xred('v_add_f32', e0[0], e1[0])
    a(f'v_rcp_f32 v{e0[0]}, v{e0[0]}\nv_rcp_f32 v{e1[0]}, v{e1[0]}')
    for T in range(2):
        l = (e0, e1)[T][0]
        for w in range(4):
            b = oa(T,w,0)
            for r in range(8): a(f'v_mul_f32 v{b+r}, v{b+r}, v{l}')
            for r in range(4): a(f'v_cvt_pk_bf16_f32 v{b+r}, v{b+2*r}, v{b+2*r+1}')
            a(f'global_store_dwordx4 v{vLin}, {vr(b,4)}, {sp(sO)} offset:{w*1024} sc1')
        if T == 0: a(f's_add_u32 s{sO}, s{sO}, {ACT_T}\ns_addc_u32 s{sO+1}, s{sO+1}, 0')
    a(f'''
    v_mov_b32 v2, 1
    s_waitcnt vmcnt(0)
    s_mov_b64 exec, 1
    global_store_dword v1, v2, {sp(sF2)} sc1
    s_mov_b64 exec, -1
    s_add_u32 s{sT}, s{sT}, {4*(7-NG3())}
    s_cmp_lt_u32 s{sT}, {TM()//2}
    s_cbranch_scc1 Lt2_seg
    ''')

def t3(a):
    sTau, sAo, sAh, sXa, sF2, sOo, sLb, sTm, sRb = 44, 46, 48, 50, 52, 54, 56, 58, 60
    vLane, vN, vG, vLin, vD, vTr, vXo, vFl, vRs, vOo = 3, 4, 5, 6, 7, 8, 9, 10, 11, 12
    AC = 16; GW = 32; XB = 48; HB = 64; OB = 128; R = 108
    a(f'''
    s_lshl_b32 s{sLb}, s{sW}, 15
    ; DMA lane: row = l/2, chunk = l%2 ; row stride 1024
    v_lshrrev_b32 v{vD}, 1, v{vLane}
    v_lshlrev_b32 v{vD}, 10, v{vD}
    v_and_b32 v1, 1, v{vLane}
    v_lshl_add_u32 v{vD}, v1, 4, v{vD}
    s_lshl_b32 s{sA}, s{sH}, 5
    v_add_u32 v{vD}, s{sA}, v{vD}
    v_lshlrev_b32 v{vTr}, 3, v{vLane}
    v_add_u32 v{vTr}, s{sLb}, v{vTr}
    s_lshl_b32 s{sA}, s{sW}, 20
    s_add_u32 s{sTm}, s{sWo}, s{sA}
    s_addc_u32 s{sTm+1}, s{sWo+1}, 0
    s_barrier
    ''')
    for b in range(32):
        a(f's_add_u32 m0, s{sLb}, {b*1024}\nglobal_load_lds_dwordx4 v{vD}, {sp(sTm)}')
        a(f's_add_u32 s{sTm}, s{sTm}, 32768\ns_addc_u32 s{sTm+1}, s{sTm+1}, 0')
    a(f'''
    v_lshlrev_b32 v1, 4, v{vG}
    s_lshl_b32 s{sA}, s{sW}, 8
    v_add_u32 v1, s{sA}, v1
    v_lshl_add_u32 v{vXo}, v{vN}, 10, v1
    ''')
    for k in range(4): a(f'global_load_dwordx4 {vr(GW+4*k,4)}, v1, {sp(sGw)} offset:{64*k}')
    a('s_waitcnt vmcnt(0)')
    for b in range(32):
        for v in range(2): a(f'ds_read_b64_tr_b16 {vr(4*b+2*v,2,"a")}, v{vTr} offset:{b*1024+v*512}')
    a(f'''
    s_mul_i32 s{sRb}, s{sW}, 11
    s_cmp_eq_u32 s{sW}, 3
    s_subb_u32 s{sRb}, s{sRb}, 0
    s_lshl_b32 s{sA}, s{sRb}, 15
    s_add_u32 s{sTm}, s{sWd}, s{sA}
    s_addc_u32 s{sTm+1}, s{sWd+1}, 0
    s_waitcnt lgkmcnt(0)
    ''')
    for b in range(11):
        a(f's_add_u32 m0, s{sLb}, {b*1024}\nglobal_load_lds_dwordx4 v{vD}, {sp(sTm)}')
        if b < 10: a(f's_add_u32 s{sTm}, s{sTm}, 32768\ns_addc_u32 s{sTm+1}, s{sTm+1}, 0')
    a('s_waitcnt vmcnt(0)')
    for b in range(11):
        for v in range(2): a(f'ds_read_b64_tr_b16 {vr(128+4*b+2*v,2,"a")}, v{vTr} offset:{b*1024+v*512}')
    a(f'''
    s_waitcnt lgkmcnt(0)
    s_cmp_lg_u32 s{sW}, 3
    s_cbranch_scc1 Lt3_nz
    ''')
    for r in range(4): a(f'v_accvgpr_write_b32 a{128+r}, 0')
    a(f'''
    Lt3_nz:
    s_add_u32 s{sTau}, s{sGrp}, {X.get('rot', 0) - 1}
    s_cmp_ge_u32 s{sTau}, {NG3()}
    s_cselect_b32 s{sA}, {NG3()}, 0
    s_sub_u32 s{sTau}, s{sTau}, s{sA}
    v_and_b32 v{vFl}, 7, v{vLane}
    v_lshlrev_b32 v{vFl}, 2, v{vFl}
    s_lshl_b32 s{sA}, s{sW}, 5
    v_add_u32 v{vFl}, s{sA}, v{vFl}
    s_mul_i32 s{sA}, s{sW}, 3072
    s_add_u32 s{sA}, s{sA}, 131072
    v_add_u32 v{vRs}, s{sA}, v{vLin}
    v_lshlrev_b32 v{vOo}, 10, v{vN}
    v_lshl_add_u32 v{vOo}, v{vG}, 3, v{vOo}
    s_lshl_b32 s{sA}, s{sH}, 5
    v_add_u32 v{vOo}, s{sA}, v{vOo}
    ''')
    vQ, vIn, vNeg, vBr, vO4, vQi, Sel = 108, 116, 127, 13, 14, 15, 28
    vKm, vOw, vPs, vKw = 48, 52, 56, 57
    sIb, sKM, sQ, sK, sV, sFast, sBb, sSl, sT4 = 62, 52, 46, 64, 66, 68, 69, 26, 27
    Q, KX, VX, KM, KT, S0, Mm, O, P, Z, Ls, One = 128, 144, 176, 184, 200, 216, 224, 232, 240, 244, 248, 252
    mx, m2, t0, lx = 228, 229, 230, 231
    G_, Bm = AC+4, AC
    Y = 64; OX = 144; IN = 160; PS = 96; Dr = 24
    L_O = 131072 + 12288
    DP = 'row_mask:0xf bank_mask:0xf'
    T4 = TM() < 128; NS = -(-(128-TM()) // NG3()); PJ = X.get('pj', 1)
    state = [Q+i for i in range(16)] + [O+i for i in range(8)] + [mx, lx, G_] + [Bm+i for i in range(4)]
    park = [f'a{i}' for i in range(172,256)] + [f'v{i}' for i in (112,113,114,115,120,121,122,123,124,125,126)]
    assert NS * len(state) <= len(park)
    def xred(op, x):
        a(f'''
        v_mov_b32 v{t0}, v{x}
        v_permlane16_swap_b32 v{x}, v{t0}
        {op} v{x}, v{x}, v{t0}
        v_mov_b32 v{t0}, v{x}
        v_permlane32_swap_b32 v{x}, v{t0}
        {op} v{x}, v{x}, v{t0}
        ''')
    if T4:
        a(f'''
        s_mul_i32 s{sA}, s{sGrp}, {NS*524288}
        s_add_u32 s{sA}, s{sA}, {WS_IB}
        s_add_u32 s{sIb}, s{sWs}, s{sA}
        s_addc_u32 s{sIb+1}, s{sWs+1}, 0
        s_lshr_b32 s{sA}, s{sH}, 3
        s_lshl_b32 s{sA}, s{sA}, 17
        s_lshl_b32 s{sB}, s{sW}, 15
        s_add_u32 s{sA}, s{sA}, s{sB}
        s_and_b32 s{sB}, s{sH}, 7
        s_lshl_b32 s{sB}, s{sB}, 7
        s_add_u32 s{sA}, s{sA}, s{sB}
        v_lshrrev_b32 v1, 3, v{vLane}
        v_lshl_add_u32 v1, v1, 10, s{sA}
        v_and_b32 v2, 7, v{vLane}
        v_lshl_add_u32 v{vIn}, v2, 4, v1
        v_add_u32 v{vIn+1}, 8192, v{vIn}
        v_add_u32 v{vIn+2}, 16384, v{vIn}
        v_add_u32 v{vIn+3}, 24576, v{vIn}
        s_lshl_b32 s{sA}, s{sH}, 5
        v_subrev_u32 v{vD}, s{sA}, v{vD}
        s_mov_b32 s{sBb}, 0
        s_mov_b32 s{sSl}, 0
        s_lshl_b32 s{sA}, s{sH}, 17
        s_lshl_b32 s{sB}, s{sW}, 8
        s_add_u32 s{sA}, s{sA}, s{sB}
        s_add_u32 s{sTm}, s{sWo}, s{sA}
        s_addc_u32 s{sTm+1}, s{sWo+1}, 0
        s_lshl_b32 s{sA}, s{sW}, 11
        v_add_u32 v{vQ}, s{sA}, v{vLin}
        v_xor_b32 v{vQ+1}, 2048, v{vQ}
        v_xor_b32 v{vQ+2}, 4096, v{vQ}
        v_xor_b32 v{vQ+3}, 6144, v{vQ}
        v_mov_b32 v{vNeg}, 0xff800000
        ; q = (2n+g)%16 ; selector rows 0..7
        v_lshl_add_u32 v1, v{vN}, 1, v{vG}
        v_and_b32 v1, 15, v1
        s_lshl_b32 s{sA}, s{sH}, 5
        s_lshl_b32 s{sB}, s{sW}, 3
        s_add_u32 s{sA}, s{sA}, s{sB}
        v_lshl_add_u32 v{vO4}, v1, 10, s{sA}
        s_lshl_b32 s{sA}, s{sW}, 8
        s_add_u32 s{sA}, s{sA}, 131072
        v_lshl_add_u32 v{vBr}, v1, 4, s{sA}
        v_and_b32 v1, 1, v{vN}
        v_lshlrev_b32 v1, 4, v1
        v_mov_b32 v2, 0x3f80
        v_lshlrev_b32 v1, v1, v2
        v_lshrrev_b32 v2, 1, v{vN}
        ''')
        for i in range(4): a(f'v_cmp_eq_u32 vcc, {i}, v2\nv_cndmask_b32 v{Sel+i}, 0, v1, vcc')
    a(f'v_add_u32 v1, {WS_FL+FL_G}, v{vLin}\ns_cmp_lg_u32 s{sW}, 0\ns_cbranch_scc1 Lt3_w_b')
    if T4:
        a(f'''
        s_lshl_b32 s{sA}, s{sH}, 8
        s_add_u32 s{sA}, s{sA}, {WS_FL+FL_K}
        v_lshl_add_u32 v{HB+9}, v{vLane}, 2, s{sA}
        v_and_b32 v{HB+10}, 1, v{vLane}
        v_mul_u32_u24 v{HB+10}, 0x0101, v{HB+10}
        v_lshlrev_b32 v{HB+10}, 16, v{HB+10}
        ''')
    poll(a, 'Lt3_w', f'global_load_dwordx4 {vr(HB,4)}, v1, {sp(sWs)} sc1\nglobal_load_dwordx4 {vr(HB+4,4)}, v1, {sp(sWs)} offset:352 sc1' + (f'\nglobal_load_dword v{HB+8}, v{HB+9}, {sp(sWs)} sc1' if T4 else ''),
         (f'v_or_b32 v{HB+8}, v{HB+8}, v{HB+10}\n' if T4 else '') + '\n'.join([f'v_and_b32 v{HB}, v{HB}, v{HB+i}' for i in range(1,8+T4)]) + f'\nv_cmp_ne_u32 vcc, 0x01010101, v{HB}', 64)
    a('s_barrier')
    C.tl(a, 4, 1, f's{sGrp}')
    def pre(tau):
        a(f'''
        s_mul_i32 s{sA}, s{tau}, {ACT_T}
        s_lshl_b32 s{sB}, s{sRb}, 10
        s_add_u32 s{sB}, s{sB}, s{sA}
        s_add_u32 s{sB}, s{sB}, {WS_ACT+4096+128*1024}
        s_add_u32 s{sAh}, s{sWs}, s{sB}
        s_addc_u32 s{sAh+1}, s{sWs+1}, 0
        s_lshl_b32 s{sA}, s{tau}, 14
        s_add_u32 s{sXa}, s{sX}, s{sA}
        s_addc_u32 s{sXa+1}, s{sX+1}, 0
        ''')
        for k in range(4): a(f'global_load_dwordx4 {vr(XB+4*k,4)}, v{vXo}, {sp(sXa)} offset:{64*k}')
        for b in range(11):
            if b == 8: a(f's_add_u32 s{sAh}, s{sAh}, 8192\ns_addc_u32 s{sAh+1}, s{sAh+1}, 0')
            th = a(f'global_load_dwordx4 {vr(HB+4*b,4)}, v{vLin}, {sp(sAh)} offset:{(b%8)*1024-4096} sc1')
        return th
    def gb():
        for k in range(4): a(f'{MF} {vr(AC+8,4)}, {vr(GW+4*k,4)}, {vr(XB+4*k,4)}, {vr(AC+8,4) if k else 0}')
        for b in range(11): a(f'{MF} {vr(AC+4,4)}, {vr(128+4*b,4,"a")}, {vr(HB+4*b,4)}, {vr(AC+4,4) if b else 0}')
    def sigm(g):
        a(f'''
        v_mul_f32 v{g}, {f32(-math.log2(math.e))}, v{g}
        v_exp_f32 v{g}, v{g}
        v_add_f32 v{g}, 1.0, v{g}
        v_rcp_f32 v{g}, v{g}
        v_sub_f32 v{g+1}, 1.0, v{g}
        ''')
    a.label('Lt3_tile')
    if T4:
        a(f'''
        s_cmp_lt_u32 s{sTau}, {TM() - NG3()*(NS+PJ)}
        s_cbranch_scc1 Lt3_np
        s_cmp_ge_u32 s{sSl}, {NS}
        s_cbranch_scc1 Lt3_np
        s_add_u32 s{sT4}, s{sTau}, {NG3()*(NS+PJ)}
        s_cmp_ge_u32 s{sT4}, 128
        s_cbranch_scc1 Lt3_pb
        s_lshl_b32 s{sA}, s{sSl}, 19
        s_add_u32 s{sKM}, s{sIb}, s{sA}
        s_addc_u32 s{sKM+1}, s{sIb+1}, 0
        v_mov_b64 {vr(P,2)}, -1
        v_mov_b64 {vr(P+2,2)}, -1
        ''')
        a.nvm = 0; a.nds = 0
        for i in range(4): a(f'global_store_dwordx4 v{vIn+i}, {vr(P,4)}, {sp(sKM)} sc1')
        th = pre(sT4)
        a(f'''
        s_lshr_b32 s{sA}, s{sT4}, 1
        s_lshl_b32 s{sA}, s{sA}, 5
        s_add_u32 s{sA}, s{sA}, s{sH}
        s_lshl_b32 s{sB}, s{sA}, 13
        s_add_u32 s{sK}, s{sWs}, s{sB}
        s_addc_u32 s{sK+1}, s{sWs+1}, 0
        s_and_b32 s{sC}, s{sT4}, 1
        s_lshl_b32 s{sB}, s{sC}, 10
        s_add_u32 s{sB}, s{sB}, {WS_QX}
        s_add_u32 s{sQ}, s{sK}, s{sB}
        s_addc_u32 s{sQ+1}, s{sK+1}, 0
        s_add_u32 s{sV}, s{sK}, {C.WS_V}
        s_addc_u32 s{sV+1}, s{sK+1}, 0
        s_lshl_b32 s{sC}, s{sC}, 4
        v_lshlrev_b32 v1, 2, v{vG}
        v_sub_u32 v{vQi}, v{vN}, v1
        v_add_u32 v{vQi}, s{sC}, v{vQi}
        v_and_b32 v1, 0x4000, v{vRs}
        v_or_b32 v1, v{vBr}, v1
        ''')
        for i in range(4):
            a(f'global_load_dwordx4 {vr(Q+4*i,4)}, v{vQ+i}, {sp(sQ)} sc1')
            for kt in range(2): tk = a(f'global_load_dwordx4 {vr(KX+8*i+4*kt,4)}, v{vQ+i}, {sp(sK)} offset:{1024*kt} sc1')
        for u in range(2): tv = a(f'global_load_dwordx4 {vr(VX+4*u,4)}, v{vQ}, {sp(sV)} offset:{1024*u} sc1')
        a.wvm(th)
        if X.get('iw', 2) == 2:
            for i in range(4): a(f'global_load_dwordx4 {vr(KT+4*i,4)}, v{vIn+i}, {sp(sKM)} sc1')
        gb()
        a(f'''
        ds_write_b32 v{vRs}, v{AC+8} offset:2048
        ds_write_b128 v{vRs}, {vr(AC+4,4)} offset:1024
        ''')
        a.wvm(tk)
        for i in range(4):
            for kt in range(2): a(f'{MF} {vr(S0+4*kt,4)}, {vr(KX+8*i+4*kt,4)}, {vr(Q+4*i,4)}, {vr(S0+4*kt,4) if i else 0}')
        a('s_waitcnt lgkmcnt(0)\ns_barrier')
        for w in range(4):
            a(f'ds_read_b128 {vr(HB+4*w,4)}, v1 offset:{3072*w+1024}\nds_read_b32 v{HB+16+w}, v1 offset:{3072*w+2048}')
        for r in range(8): a(f'v_cmp_le_i32 vcc, {16*(r//4)+r%4}, v{vQi}\nv_cndmask_b32 v{S0+r}, v{vNeg}, v{S0+r}, vcc')
        a(f'''
        v_max3_f32 v{mx}, v{S0}, v{S0+1}, v{S0+2}
        v_max3_f32 v{mx}, v{mx}, v{S0+3}, v{S0+4}
        v_max3_f32 v{mx}, v{mx}, v{S0+5}, v{S0+6}
        v_max_f32 v{mx}, v{mx}, v{S0+7}
        ''')
        xred('v_max_f32', mx)
        for r in range(8): a(f'v_sub_f32 v{S0+r}, v{S0+r}, v{mx}')
        for r in range(8): a(f'v_exp_f32 v{S0+r}, v{S0+r}')
        for r in range(4): a(f'v_cvt_pk_bf16_f32 v{P+r}, v{S0+2*r}, v{S0+2*r+1}')
        a.wvm(tv)
        for u in range(2): a(f'{MF} {vr(O+4*u,4)}, {vr(VX+4*u,4)}, {vr(P,4)}, 0')
        a(f'v_add_f32 v{lx}, v{S0}, v{S0+1}')
        for r in range(2,8): a(f'v_add_f32 v{lx}, v{lx}, v{S0+r}')
        xred('v_add_f32', lx)
        a('s_waitcnt lgkmcnt(0)')
        for r in range(4):
            a(f'v_add_f32 v{Bm+r}, v{HB+r}, v{HB+4+r}\nv_add_f32 v{HB+8+r}, v{HB+8+r}, v{HB+12+r}\nv_add_f32 v{Bm+r}, v{Bm+r}, v{HB+8+r}')
        a(f'''
        v_add_f32 v{G_}, v{HB+16}, v{HB+17}
        v_add_f32 v{G_+1}, v{HB+18}, v{HB+19}
        v_add_f32 v{G_}, v{G_}, v{G_+1}
        ''')
        sigm(G_)
        for r in range(4): a(f'v_mul_f32 v{Bm+r}, v{Bm+r}, v{G_+1}')
        a(f'v_xor_b32 v{vRs}, 0x4000, v{vRs}')
        for k in range(NS):
            if k < NS-1: a(f's_cmp_lg_u32 s{sSl}, {k}\ns_cbranch_scc1 Lt3_pk{k+1}')
            for r, d in zip(state, park[k*len(state):]): a(f'v_accvgpr_write_b32 {d}, v{r}' if d[0] == 'a' else f'v_mov_b32 {d}, v{r}')
            if k < NS-1: a(f's_branch Lt3_pe\nLt3_pk{k+1}:')
        a(f'''
        Lt3_pb:
        s_lshl_b32 s{sA}, s{sGrp}, 6
        s_add_u32 s{sA}, s{sA}, s{sH}
        s_add_u32 s{sA}, s{sA}, {WS_FL+FL_X}
        v_mov_b32 v1, s{sA}
        s_lshl_b32 s{sA}, s{sXcc}, 1
        s_add_u32 s{sA}, s{sA}, 1
        v_mov_b32 v2, s{sA}
        s_cmp_eq_u32 s{sW}, 0
        s_cselect_b64 exec, 1, 0
        global_store_byte v1, v2, {sp(sWs)} sc1
        s_mov_b64 exec, -1
        Lt3_pe:
        s_add_u32 s{sSl}, s{sSl}, 1
        Lt3_np:
        ''')
    def pre2(tau, tag):
        pre(tau)
        a(f'''
        s_lshr_b32 s{sA}, s{tau}, 1
        s_lshl_b32 s{sA}, s{sA}, 7
        s_add_u32 s{sA}, s{sA}, {WS_F2}
        s_add_u32 s{sF2}, s{sWs}, s{sA}
        s_addc_u32 s{sF2+1}, s{sWs+1}, 0
        global_load_dword v2, v{vFl}, {sp(sF2)} sc1
        ''')
        if not T4: return
        if tag == 'd': a(f's_cmp_ge_u32 s{sBb}, 32\ns_cbranch_scc1 Lt3_nd')
        a(f'''
        s_lshl_b32 s{sB}, s{sBb}, 10
        s_add_u32 m0, s{sLb}, s{sB}
        s_and_b32 s{sB}, s{sBb}, 2
        s_xor_b32 s{sB}, s{sB}, s{sW}
        s_lshl_b32 s{sB}, s{sB}, 15
        s_lshr_b32 s{sA}, s{sBb}, 2
        s_lshl_b32 s{sA}, s{sA}, 5
        s_add_u32 s{sA}, s{sA}, s{sB}
        v_add_u32 v1, s{sA}, v{vD}
        global_load_lds_dwordx4 v1, {sp(sTm)}
        s_add_u32 m0, m0, 1024
        v_xor_b32 v1, 0x8000, v1
        global_load_lds_dwordx4 v1, {sp(sTm)}
        s_add_u32 s{sBb}, s{sBb}, 2
        ''')
        assert TM() // NG3() >= 16
    pre2(sTau, 'd')
    a.label('Lt3_nd')
    a(f'''
    s_mul_i32 s{sA}, s{sTau}, {ACT_T}
    s_add_u32 s{sA}, s{sA}, {WS_ACT+4096}
    s_lshl_b32 s{sB}, s{sW}, 15
    s_add_u32 s{sB}, s{sB}, s{sA}
    s_add_u32 s{sAo}, s{sWs}, s{sB}
    s_addc_u32 s{sAo+1}, s{sWs+1}, 0
    s_lshl_b32 s{sA}, s{sTau}, 14
    s_add_u32 s{sOo}, s{sOut}, s{sA}
    s_addc_u32 s{sOo+1}, s{sOut+1}, 0
    s_mov_b32 s{sSpin}, 0
    Lt3_p:
    s_waitcnt vmcnt(0)
    v_cmp_ne_u32 vcc, 1, v2
    s_cbranch_vccz Lt3_go
    s_add_u32 s{sSpin}, s{sSpin}, 1
    s_cmp_gt_u32 s{sSpin}, {WSPIN}
    s_cbranch_scc1 Lt3_go
    s_sleep 4
    global_load_dword v2, v{vFl}, {sp(sF2)} sc1
    s_branch Lt3_p
    Lt3_go:
    ''')
    if C.TL and X.get('cu'):
        a(f's_cmp_eq_u32 s{sSpin}, 0\ns_cbranch_scc1 Lt3_cu\ns_cmp_lt_u32 s{sTau}, 30\ns_cbranch_scc1 Lt3_cu\ns_cmp_eq_u32 s84, s70\ns_cbranch_scc1 Lt3_cu\ns_mov_b32 s84, s70')
        C.tl(a, 3, 1, f's{sGrp}')
        a.label('Lt3_cu')
    a.nvm = 0; tg = []
    for b in range(32):
        if b and b % 8 == 0: a(f's_add_u32 s{sAo}, s{sAo}, 8192\ns_addc_u32 s{sAo+1}, s{sAo+1}, 0')
        tg.append(a(f'global_load_dwordx4 {vr(OB+4*b,4)}, v{vLin}, {sp(sAo)} offset:{(b%8)*1024-4096} sc1'))
    gb()
    def omm():
        for b in range(32):
            a.wvm(tg[b])
            a(f'{MF} {vr(AC,4)}, {vr(4*b,4,"a")}, {vr(OB+4*b,4)}, {vr(AC,4) if b else 0}')
    PP = X.get('pp', 0)
    if PP:
        assert PP <= TM() - NG3()*(NS+PJ) and PP <= 15*NG3()
        a(f's_add_u32 s{sD}, s{sTau}, {NG3()}\ns_cmp_ge_u32 s{sD}, {PP}\ns_cbranch_scc1 Lt3_o2')
        pre2(sD, 'p'); omm()
        a('s_branch Lt3_o3\nLt3_o2:'); a.nvm = 32
    omm()
    a.label('Lt3_o3')
    a(f'''
    ds_write_b128 v{vRs}, {vr(AC+4,4)} offset:1024
    ds_write_b128 v{vRs}, {vr(AC+8,4)} offset:2048
    ds_write_b128 v{vRs}, {vr(AC,4)}
    s_waitcnt lgkmcnt(0)
    s_barrier
    s_cmp_lg_u32 s{sW}, 0
    s_cbranch_scc1 Lt3_nx
    ''')
    for w in range(1,4):
        for j in range(3): a(f'ds_read_b128 {vr(OB+12*w+4*j,4)}, v{vRs} offset:{3072*w+1024*j}')
    a('s_waitcnt lgkmcnt(0)')
    for w in range(1,4):
        for r in range(9): a(f'v_add_f32 v{AC+r}, v{AC+r}, v{OB+12*w+r}')
    g = AC+8
    sigm(g)
    for r in range(4): a(f'v_mul_f32 v{AC+r}, v{AC+r}, v{g}\nv_fmac_f32 v{AC+r}, v{AC+4+r}, v{g+1}')
    a(f'''
    v_cvt_pk_bf16_f32 v{AC}, v{AC}, v{AC+1}
    v_cvt_pk_bf16_f32 v{AC+1}, v{AC+2}, v{AC+3}
    global_store_dwordx2 v{vOo}, {vr(AC,2)}, {sp(sOo)}
    Lt3_nx:
    v_xor_b32 v{vRs}, 0x4000, v{vRs}
    s_add_u32 s{sTau}, s{sTau}, {NG3()}
    s_cmp_lt_u32 s{sTau}, {PP}
    s_cbranch_scc1 Lt3_nd
    s_cmp_lt_u32 s{sTau}, {TM()}
    s_cbranch_scc1 Lt3_tile
    ''')
    if not T4: return
    if C.TL and X.get('t4s'): C.tl(a, 6, 1, f's{sGrp}')
    a(f'''
    s_lshl_b32 s{sA}, s{sGrp}, 6
    s_add_u32 s{sA}, s{sA}, {WS_FL+FL_X}
    v_and_b32 v1, 7, v{vLane}
    v_lshl_add_u32 v1, v1, 2, s{sA}
    global_load_dword v2, v1, {sp(sWs)} sc1
    ''')
    for b in range(32):
        for v in range(2): a(f'ds_read_b64_tr_b16 {vr(4*b+2*v,2,"a")}, v{vTr} offset:{b*1024+v*512}')
    a(f'''
    s_lshl_b32 s{sA}, s{sW}, 10
    v_add_u32 v{vKm}, s{sA}, v{vLin}
    v_add_u32 v{vOw}, {L_O}, v{vKm}
    ''')
    for i in range(1,4): a(f'v_xor_b32 v{vKm+i}, {1024*i}, v{vKm}\nv_xor_b32 v{vOw+i}, {1024*i}, v{vOw}')
    a(f'''
    s_lshl_b32 s{sA}, s{sW}, 17
    s_lshl_b32 s{sB}, s{sH}, 10
    s_add_u32 s{sA}, s{sA}, s{sB}
    v_lshl_add_u32 v{vPs}, v{vG}, 15, s{sA}
    v_lshl_add_u32 v{vPs}, v{vN}, 3, v{vPs}
    v_lshl_add_u32 v{vKw}, v{vN}, 5, s{sLb}
    v_lshl_add_u32 v{vKw}, v{vG}, 3, v{vKw}
    v_mov_b32 v{One}, 0x3f803f80
    v_mov_b32 v{One+1}, 0x3f803f80
    v_mov_b32 v{Z+1}, 0
    v_mov_b32 v{Z+2}, 0
    s_mov_b32 s{sSl}, 0
    s_waitcnt vmcnt(0)
    v_and_b32 v{Q}, 0x01010101, v2
    v_cmp_ne_u32 vcc, 0x01010101, v{Q}
    s_cbranch_vccz Lt4_x_b
    ''')
    poll(a, 'Lt4_x', f'global_load_dword v2, v1, {sp(sWs)} sc1', f'v_and_b32 v{Q}, 0x01010101, v2\nv_cmp_ne_u32 vcc, 0x01010101, v{Q}', 8)
    a(f'''
    s_lshl_b32 s{sA}, s{sXcc}, 1
    s_add_u32 s{sA}, s{sA}, 1
    s_mul_i32 s{sA}, s{sA}, 0x01010101
    v_cmp_ne_u32 vcc, s{sA}, v2
    s_waitcnt lgkmcnt(0)
    s_mov_b32 s{sFast}, vcc_lo
    ''')
    if C.TL and X.get('t4s'): C.tl(a, 7, 1, f's{sGrp}')
    def wbl(lab):
        a(f's_lshl_b32 s{sA}, s{sH}, 2\ns_add_u32 s{sA}, s{sA}, s{sW}\ns_cmp_lg_u32 s{sA}, {X.get("wbw", 0)}\ns_cbranch_scc1 {lab}\nbuffer_wbl2 sc1\n{lab}:')
    if X.get('wbt'): wbl('Lt4_wb0')
    a.label('Lt4_tile')
    if C.TL and X.get('t4s') and not X.get('cu'): C.tl(a, 3, 1, f's{sGrp}')
    a(f'''
    s_lshl_b32 s{sA}, s{sTau}, 14
    s_add_u32 s{sOo}, s{sOut}, s{sA}
    s_addc_u32 s{sOo+1}, s{sOut+1}, 0
    s_lshr_b32 s{sA}, s{sTau}, 1
    s_lshl_b32 s{sA}, s{sA}, 5
    s_add_u32 s{sA}, s{sA}, s{sH}
    s_lshl_b32 s{sB}, s{sA}, 12
    s_add_u32 s{sB}, s{sB}, {WS_KVM}
    s_add_u32 s{sKM}, s{sWs}, s{sB}
    s_addc_u32 s{sKM+1}, s{sWs+1}, 0
    ''')
    if X.get('iw', 2) == 1:
        for i in range(4): a(f'global_load_dwordx4 {vr(IN+4*i,4)}, v{vIn+i}, {sp(sIb)} sc1')
    for i in range(4): a(f'global_load_dwordx4 {vr(KM+4*i,4)}, v{vKm+i}, {sp(sKM)} sc1')
    for k in range(NS):
        if k < NS-1: a(f's_cmp_lg_u32 s{sSl}, {k}\ns_cbranch_scc1 Lt4_pk{k+1}')
        for r, d in zip(state, park[k*len(state):]): a(f'v_accvgpr_read_b32 v{r}, {d}' if d[0] == 'a' else f'v_mov_b32 v{r}, {d}')
        if k < NS-1: a(f's_branch Lt4_pe\nLt4_pk{k+1}:')
    a(f'''
    Lt4_pe:
    s_mov_b32 s{sSpin}, 0
    s_branch Lt4_p
    Lt4_r:
    s_add_u32 s{sSpin}, s{sSpin}, 1
    s_cmp_gt_u32 s{sSpin}, {WSPIN}
    s_cbranch_scc1 Lt4_go
    {f"s_sleep {X.get('ks', 1)}" if X.get('ks', 1) else ''}
    ''')
    for i in range(4): a(f'global_load_dwordx4 {vr(KM+4*i,4)}, v{vKm+i}, {sp(sKM)} sc1')
    a.label('Lt4_p')
    for i in range(4): a(f's_waitcnt vmcnt({3-i})\nds_write2st64_b32 v{vKw}, v{KM+4*i}, v{KM+4*i+1} offset0:{4*i} offset1:{4*i+2}')
    a.nds = 0; tx = []
    for i in range(4):
        for v in range(2): tx.append(a(f'ds_read_b64_tr_b16 {vr(KT+4*i+2*v,2)}, v{vTr} offset:{i*1024+v*512}'))
    a(f'''
    v_max3_u32 v{t0}, v{KM}, v{KM+1}, v{KM+2}
    v_max3_u32 v{t0}, v{t0}, v{KM+3}, v{KM+4}
    v_max3_u32 v{t0}, v{t0}, v{KM+5}, v{KM+8}
    v_max3_u32 v{t0}, v{t0}, v{KM+9}, v{KM+12}
    v_max_u32 v{t0}, v{t0}, v{KM+13}
    v_cmp_eq_u32 vcc, -1, v{t0}
    s_cbranch_vccnz Lt4_r
    Lt4_go:
    ''')
    if C.TL: C.tl(a, 1, 1, f's{sGrp}')
    for i in range(4):
        a.wds(tx[2*i+1])
        a(f'{MF} {vr(Mm,4)}, {vr(KT+4*i,4)}, {vr(Q+4*i,4)}, {vr(Mm,4) if i else 0}')
    a(f'''
    v_max3_f32 v{m2}, v{mx}, v{Mm}, v{Mm+1}
    v_max3_f32 v{t0}, v{mx}, v{Mm}, v{Mm+1}
    v_permlane16_swap_b32 v{m2}, v{t0}
    v_max_f32 v{Mm+2}, v{m2}, v{t0}
    v_max_f32 v{m2}, v{m2}, v{t0}
    v_permlane32_swap_b32 v{m2}, v{Mm+2}
    v_max_f32 v{m2}, v{m2}, v{Mm+2}
    v_sub_f32 v{mx}, v{mx}, v{m2}
    v_sub_f32 v{Mm}, v{Mm}, v{m2}
    v_sub_f32 v{Mm+1}, v{Mm+1}, v{m2}
    v_exp_f32 v{mx}, v{mx}
    v_exp_f32 v{Mm}, v{Mm}
    v_exp_f32 v{Mm+1}, v{Mm+1}
    v_mul_f32 v{Ls}, v{lx}, v{mx}
    v_cvt_pk_bf16_f32 v{Z}, v{Mm}, v{Mm+1}
    v_cvt_pk_bf16_f32 v{Z+3}, v{Mm}, v{Mm+1}
    v_mul_f32 v{O}, v{O}, v{mx}
    v_mul_f32 v{O+1}, v{O+1}, v{mx}
    v_mfma_f32_16x16x16_bf16 {vr(Ls,4)}, {vr(One,2)}, {vr(Z,2)}, {vr(Ls,4)}
    v_mul_f32 v{O+2}, v{O+2}, v{mx}
    v_mul_f32 v{O+3}, v{O+3}, v{mx}
    v_mul_f32 v{O+4}, v{O+4}, v{mx}
    v_mul_f32 v{O+5}, v{O+5}, v{mx}
    v_mfma_f32_16x16x16_bf16 {vr(O,4)}, {vr(KM+2,2)}, {vr(Z,2)}, {vr(O,4)}
    v_mul_f32 v{O+6}, v{O+6}, v{mx}
    v_mul_f32 v{O+7}, v{O+7}, v{mx}
    v_mfma_f32_16x16x16_bf16 {vr(O+4,4)}, {vr(KM+2,2)}, {vr(Z+2,2)}, {vr(O+4,4)}
    v_rcp_f32 v{Ls}, v{Ls}
    ''')
    for r in range(4): a(f'v_mul_f32 v{O+r}, v{O+r}, v{Ls}')
    for r in range(2): a(f'v_cvt_pk_bf16_f32 v{OX+r}, v{O+2*r}, v{O+2*r+1}')
    for r in range(4,8): a(f'v_mul_f32 v{O+r}, v{O+r}, v{Ls}')
    for r in range(2,4): a(f'v_cvt_pk_bf16_f32 v{OX+r}, v{O+2*r}, v{O+2*r+1}')
    a(f'ds_write_b128 v{vOw}, {vr(OX,4)}')
    W_ = lambda c, i: a(f'{MF} {vr(Y+4*c,4)}, {vr(16*c+4*i,4,"a")}, {vr(OX+4*i,4)}, {vr(Y+4*c,4) if i else 0}')
    W_(0,0); W_(1,0)
    a('s_waitcnt lgkmcnt(0)\ns_barrier')
    a.nds = 0; to = [a(f'ds_read_b128 {vr(OX+4*i,4)}, v{vOw+i}') for i in range(1,4)]
    for c in range(2,8): W_(c,0)
    a(f's_cmp_lg_u32 s{sFast}, 0\ns_cbranch_scc1 Lt4_s')
    if X.get('fts'): a(f's_cmp_lt_u32 s{sTau}, {X["fts"]}\ns_cbranch_scc1 Lt4_s')
    def wo(sc):
        a.nds = 3
        def st(c): return [f'v_cvt_pk_bf16_f32 v{PS+2*(c%4)}, v{Y+4*c}, v{Y+4*c+1}', f'v_cvt_pk_bf16_f32 v{PS+2*(c%4)+1}, v{Y+4*c+2}, v{Y+4*c+3}',
                           f'global_store_dwordx2 v{vPs}, {vr(PS+2*(c%4),2)}, {sp(sIb)} offset:{128*c}{sc}']
        q_ = []
        for c in range(0,8,2):
            for i in range(1,4):
                if c == 0: a.wds(to[i-1])
                for d in range(2):
                    W_(c+d, i)
                    if q_ and (i > 1 or d): a(q_.pop(0))
                    if q_ and q_[0].startswith('global'): a(q_.pop(0))
            for x_ in q_: a(x_)
            q_ = st(c) + st(c+1)
        for x_ in q_: a(x_)
    wo(''); a('s_branch Lt4_e'); a.label('Lt4_s'); wo(' sc1'); a.label('Lt4_e')
    if C.TL: C.tl(a, 2, 1, f's{sGrp}')
    if X.get('wb5'):
        a(f's_cmp_lt_u32 s{sTau}, {X["wb5"]}\ns_cbranch_scc1 Lt4_wb5')
        wbl('Lt4_wb5')
    a.nops(X.get('iz', 0))
    a(f'''
    s_mov_b32 s{sSpin}, 0
    Lt4_i:
    ''')
    for i in range(4): a(f'global_load_dwordx4 {vr(IN+4*i,4)}, v{vIn+i}, {sp(sIb)} sc1')
    a(f's_add_u32 s{sSpin}, s{sSpin}, 1\ns_cmp_gt_u32 s{sSpin}, {WSPIN}\ns_cbranch_scc1 Lt4_f')
    for i in range(4):
        r = IN+4*i
        a(f's_waitcnt vmcnt({3-i})\n{MF} {vr(Dr,4)}, {vr(Sel,4)}, {vr(r,4)}, {vr(Dr,4) if i else 0}')
        a(f'v_max3_u32 v{t0}, v{t0 if i else r}, v{r}, v{r+1}\nv_max3_u32 v{t0}, v{t0}, v{r+2}, v{r+3}')
    a(f'''
    v_cmp_eq_u32 vcc, -1, v{t0}
    s_cbranch_vccnz Lt4_i
    Lt4_f:
    ''')
    if X.get('wb6'):
        a(f's_cmp_lt_u32 s{sTau}, {X["wb6"]}\ns_cbranch_scc1 Lt4_wb6')
        wbl('Lt4_wb6')
    for r in range(4): a(f'v_add_f32_dpp v{Dr+r}, v{Dr+r}, v{Dr+r} row_ror:8 {DP}')
    for r in range(4): a(f'v_fma_f32 v{Dr+r}, v{Dr+r}, v{G_}, v{Bm+r}')
    a(f'''
    s_mov_b64 exec, 0x00ff00ff
    v_cvt_pk_bf16_f32 v{Dr}, v{Dr}, v{Dr+1}
    v_cvt_pk_bf16_f32 v{Dr+1}, v{Dr+2}, v{Dr+3}
    global_store_dwordx2 v{vO4}, {vr(Dr,2)}, {sp(sOo)}
    s_mov_b64 exec, -1
    s_waitcnt vmcnt(1)
    s_add_u32 s{sSl}, s{sSl}, 1
    s_add_u32 s{sIb}, s{sIb}, 524288
    s_addc_u32 s{sIb+1}, s{sIb+1}, 0
    s_add_u32 s{sTau}, s{sTau}, {NG3()}
    ''')
    if X.get('wb4'):
        a(f's_cmp_ge_u32 s{sTau}, {X["wb4"]}\ns_cbranch_scc1 Lt4_wb1')
        wbl('Lt4_wb1')
    a(f'''
    s_cmp_lt_u32 s{sTau}, 128
    s_cbranch_scc1 Lt4_tile
    ''')
    if X.get('wbd'):
        a(f's_cmp_ge_u32 s{sTau}, {X["wbd"]}\ns_cbranch_scc1 Lt4_wbe')
        a(f's_lshl_b32 s{sA}, s{sH}, 2\ns_add_u32 s{sA}, s{sA}, s{sW}\ns_cmp_lg_u32 s{sA}, {X.get("wbw", 0)}\ns_cbranch_scc1 Lt4_wbe')
        if X.get('wbm', 'f') == 'f':
            a(f'v_and_b32 v1, 31, v0\nv_lshlrev_b32 v1, 7, v1\nv_add_u32 v1, {WS_FL+FL_P}, v1')
            poll(a, 'Lt4_wbd', f'global_load_dword v2, v1, {sp(sWs)} sc1', f'v_cmp_gt_u32 vcc, 0x41, v2', 2)
        else:
            a(f'v_and_b32 v1, 63, v0\nv_lshlrev_b32 v1, 11, v1\nv_add_u32 v1, {WS_KVM+63*131072}, v1')
            poll(a, 'Lt4_wbd', f'global_load_dword v2, v1, {sp(sWs)} sc1', f'v_cmp_eq_u32 vcc, -1, v2', 2)
        a('buffer_wbl2 sc1\nLt4_wbe:')

def build(name=NAME, **kw):
    a = Asm()
    a.raw(khead(name))
    a(f'''
    s_cmp_ge_u32 s2, 256
    s_cbranch_scc1 L_done
    s_load_dwordx2 {sp(sDbg)}, s[0:1], 104
    s_load_dwordx2 {sp(sMem)}, s[0:1], 8
    s_load_dwordx4 s[8:11], s[0:1], 24
    s_load_dwordx2 {sp(sWq)}, s[0:1], 16
    s_load_dwordx2 {sp(sWo)}, s[0:1], 40
    s_load_dwordx2 {sp(sWs)}, s[0:1], 112
    s_load_dwordx2 {sp(sX)}, s[0:1], 0
    s_load_dwordx8 s[32:39], s[0:1], 64
    s_load_dwordx2 {sp(sOut)}, s[0:1], 96
    s_getreg_b32 s{sXcc}, hwreg(HW_REG_XCC_ID)
    s_and_b32 s{sXcc}, s{sXcc}, 15
    v_lshrrev_b32 v4, 6, v0
    s_lshr_b32 s{sH}, s2, 3
    {f's_xor_b32 s2, s2, s{sH}' if X.get('perm') else ''}
    {f's_xor_b32 s{sH}, s{sH}, {X["hx"]}' if X.get('hx') else ''}
    s_add_u32 s{sGrp}, s2, {8-X.get('cg', 1)}
    s_and_b32 s{sGrp}, s{sGrp}, 7
    v_readfirstlane_b32 s{sW}, v4
    s_waitcnt lgkmcnt(0)
    ''')
    C.tl(a, 0, 1, f's{sGrp}')
    a(f's_cmp_lg_u32 s{sGrp}, 0\ns_cbranch_scc1 L_work')
    C.chain(a, 'c', mega=True, **kw)
    a('s_endpgm')
    a.label('L_work')
    t1(a)
    if X.get('t1only'):
        a.label('L_t1e')
        C.tl(a, 5, 2, f's{sGrp}')
        a('s_endpgm')
    a(f's_cmp_le_u32 s{sGrp}, {NG3()}\ns_cbranch_scc1 L_t3')
    t2(a)
    C.tl(a, 5, 2, f's{sGrp}')
    a('s_endpgm')
    a.label('L_t3')
    t3(a)
    C.tl(a, 5, 2, f's{sGrp}')
    a.label('L_done')
    a('s_endpgm')
    assert a.check_branches() == 0
    return a

if __name__ == '__main__':
    import sys
    kw = eval(sys.argv[2]) if len(sys.argv) > 2 else {}
    C.TL = kw.pop('tl', False)
    X.update(kw.pop('x', {}))
    WS_QX = X.get('qx', 64) << 20
    ref = open('gated_mix__memory_aug_recurrent_mem_tr__glu_gated_bilinear__prompt.s.ref').read().split('\n')
    head = [l for l in ref if l.startswith(';') and '@launch' not in l]
    out = '\n'.join(head) + '\n; @launch grid=(256,1,1) block=(256,1,1) lds=163840\n'
    out += '.amdgcn_target "amdgcn-amd-amdhsa--gfx950"\n.text\n' + build(**kw).text()
    out += '.section .rodata,"a"\n' + kdesc(NAME)
    open(sys.argv[1], 'w').write(out)
```

```python
from asmlib import *
import struct, math
WS_KV = 0; WS_V = 16<<20; KST = 32*8192; WS_QX = 32<<20; WS_KVM = 48<<20; WS_RA = 60<<20; WS_RM = 61<<20; WS_PROF = 62<<20
WS_OX = 200<<20
RA_SLOT = 128*2048; RM_SLOT = 8192
SLAB = 131072
def f32(x): return struct.unpack('<I', struct.pack('<f', x))[0]
QSCALE = f32(128**-0.5 * math.log2(math.e))

M=0; QV=32; KA=40; KX=48; XO=40; VX=56; S=64; T=96
vIdx,vLin,vKr,vTc,vXw,vXr,vPst,vMst,vLw,vOw,vM0,vM1,HK,_,HV,_2 = range(112,128)
sMem,sWq,sWk,sWv,sWo,sDbg,sWs = 4,6,8,10,12,14,16
sH,sW,sT,sSpin = 18,19,20,21
sTmp=22; sLb=24; sA=25; sB=26; sC=27
sKV=30; sKVM=32; sSt0=34; sSt1=36; sAld=38; sArs=40; sMld=42; sMst=44
sRA=46; sRAo=48; sRMl=50; sRMs=52
sB1=54; sSel=56; sPm=64; sPub=66; sM0kv=68; sQc=69
sFl=28; sXcc=3; sFm=100; sRdy=86; sVer=87; sFK=84; sGot=88; sNx=89
WS_FL = 63<<20; FL_K = 8192; FL_G = 16384; FL_P = 20480
ROLE_LDS = 163832
VERIFY = None
sP=70
SPIN=200000
NL = chr(10)
def sp(x): return f's[{x}:{x+1}]'

LDS_BLK = [('q',0),('q',1),('k',0),('k',6),('k',7),('o',5),('o',6),('o',7)]
NQ = 5
KVS = 2304
L_KV = SLAB+8192; L_MQ = SLAB; L_X = SLAB+28672; L_O = SLAB+26624
REG_BLK = [(m,i) for m in 'qkvo' for i in range(8) if (m,i) not in LDS_BLK]
def dest(b):
    i = REG_BLK.index(b)
    return ('a', 16*i) if i < 16 else ('v', 128 + 16*(i-16))

WS_TL = (62<<20) + 65536
TL = False
TLN = 0
def tl(a, i, v1, role_hi):
    if not TL: return
    if TL == 2:
        ch = (role_hi == 0)
        if i > 5: return
        a(f"""
        s_memrealtime s[90:91]
        s_waitcnt lgkmcnt(0)
        s_mov_b32 s{74+i}, s90
        """)
        if (ch and i == 4) or (not ch and i == 5):
            global TLN
            TLN += 1
            idx = [0,2,3,4] if ch else [0,3,4,5]
            a(f"""
            s_lshl_b32 s97, s{sH}, 2
            s_add_u32 s97, s97, s{sW}
            """)
            if not ch: a(f's_xor_b32 s96, {role_hi}, 5\ns_or_b32 s97, s97, s96')
            a(f's_cmp_lg_u32 s97, 0\ns_cbranch_scc1 Ltl2_{TLN}')
            for k_, j in enumerate(idx): a(f'v_mov_b32 v{v1+4+k_}, s{74+j}')
            a(f"""
            v_mov_b32 v{v1}, {32 if ch else 48}
            s_mov_b64 exec, 1
            global_store_dwordx4 v{v1}, v[{v1+4}:{v1+7}], {sp(sDbg)} sc1
            s_mov_b64 exec, -1
            Ltl2_{TLN}:
            """)
        return
    ch = (role_hi == 0)
    a(f"""
    s_memrealtime s[98:99]
    s_memtime s[90:91]
    s_waitcnt lgkmcnt(0)
    s_mov_b32 s{70+i}, s98
    """)
    if i < 6: a(f's_mov_b32 s{78+i}, s90')
    if (ch and i == 4) or (not ch and i == 5):
        a(f"""
        s_lshl_b32 s97, {role_hi}, 5
        s_add_u32 s97, s97, s{sH}
        s_lshl_b32 s97, s97, 2
        s_add_u32 s97, s97, s{sW}
        s_lshl_b32 s97, s97, 6
        s_add_u32 s97, s97, {WS_TL}
        v_mov_b32 v{v1}, s97
        s_mov_b64 exec, 1
        """)
        for j in range(14): a(f'v_mov_b32 v{v1+1}, s{70+j}\nglobal_store_dword v{v1}, v{v1+1}, {sp(sWs)} offset:{4*j}\ns_nop 1')
        if ch: a(f'v_mov_b32 v{v1+1}, s{sSpin}\nglobal_store_dword v{v1}, v{v1+1}, {sp(sWs)} offset:56\ns_nop 1\nv_mov_b32 v{v1+1}, s94\nglobal_store_dword v{v1}, v{v1+1}, {sp(sWs)} offset:60\ns_nop 1')
        a('s_mov_b64 exec, -1')

def chain(a, tag, sc='', mega=False, prof=False, nsteps=64, preA=56, preB=44, gapA=48, gapB=48, sgq=-3, pKx=12, pB2=5, ntr=2, rdw=1, wx=1, g7=32, stamps=(), wnt=' nt', ont=None, mord='qkv', warm=22, fkb=22, fke=28, arr=10, fst=0, opipe=1, tls=(0,8,16), opt=(), tsc=' sc1', tdist=1, skip=(), ra=0, hp=0, dA=28, dB=28, gL=28, gL2=40, b1=5, b2=1, word=0, n3=1, w4=None, bb=1, psw=0, wo=0, dw=0, mk=1, wB=None, pb1=5, yd=0, ckp=(3,5,7,8), kp=3, qo=0, g0p=8, nvo=0, wsh=0, vmf=0, fc=0, nr0=2, ps=0, pmf=21, pad=23, g56=(18,19,20,26,27,28), ft=0, nc=0, wb=0, vp=None, ox=0, thr=0, thi=0, the=24, ex=0, exc=0, lp=0, lpf=0, hlp=(), kvp=0, flp=0, ht=(), ntb=(), nts=(), thv=None, thm=0xa2222222):
    L = lambda x: f'L{tag}_{x}'
    DIR = True
    stc = (' ' + sc) if sc else ''
    LE = L('end')
    if ont is None: ont = wnt
    if yd and vp is None: vp = 'kv@Q2 d2@Q10 d3@Q13 rm@Q15 d0@Q17 fl@Q19 d1@Q21 tc@Q24 r0@Q27 r1@Q30'
    if vp is None: vp = 'kv@A0 d2@A2 d3@Q0 rm@Q2 d0@Q4 fl@Q6 d1@Q9 tc@Q12 r0@Q16 r1@Q20' if hp else 'kv@P0 d2@A2 d3@A6 rm@Q2 d0@Q4 fl@Q6 d1@Q9 tc@Q12 r0@Q16 r1@Q20'
    if w4: ra = 4; rdw = 1 if dw and mk == 1 else 0
    L_X = SLAB+18432 if ps else SLAB+28672
    L_S = SLAB+28672
    kvnow = any(x_[:2] == 'kv' and x_[3] in 'CW' for x_ in vp.split())
    staged = {}
    def B(m, i, u):
        if (m,i) in staged: return vr(staged[(m,i)] + 8*u, 8)
        k, b = dest((m,i)); return vr(b + 8*u, 8, k)
    def SM(acc, A, m, i, u): a(f'v_smfmac_f32_16x16x64_bf16 {vr(acc,4)}, {vr(A,4)}, {B(m,i,u)}, v{vIdx}')
    def stg(blk, r):
        slot = LDS_BLK.index(blk); staged[blk] = r
        return [f'ds_read_b128 {vr(r+4*i,4)}, v{vLw} offset:{slot*4096+i*1024}' for i in range(4)]
    AK = {}
    def stamp(i):
        if prof and i in stamps: a(f's_memtime {sp(sP+2*stamps.index(i))}')
        if f'ak:{i}' in opt: a.wvm(max(AK['vt'][o_] for o_ in ('d0','d1','tc'))); stamp('ak')

    lane,n_,g_,t1,t2,t3 = T,T+1,T+2,T+3,T+4,T+5
    vWa, vOa = KX+4, T+9
    vTr = VX
    vL4, vFd, vFk = T+6, T+7, KX
    vTo = KX+2
    a(f'''
    v_and_b32 v{lane}, 63, v0
    v_and_b32 v{n_}, 15, v0
    v_lshrrev_b32 v{g_}, 4, v{lane}
    v_lshlrev_b32 v{vLin}, 4, v{lane}
    s_lshl_b32 s{sLb}, s{sW}, 15
    s_mul_i32 s{sA}, s{sW}, {KVS}
    s_add_u32 s{sM0kv}, s{sA}, {L_KV}
    v_add_u32 v{vLw}, s{sLb}, v{vLin}
    ; cooperative qkv DMA: instr i=gb, r'=lane/16, p=lane%16 holds chunk p^(2r'+8gb0) of row 32(w&1)+8(w>>1)+4gb1+gb0+16(r'&1)+2(r'>>1)
    v_and_b32 v{t1}, 1, v{g_}
    v_lshrrev_b32 v{t3}, 1, v{g_}          ; gb1
    v_lshlrev_b32 v{t2}, 1, v{g_}
    v_xor_b32 v{t2}, v{t2}, v{n_}
    v_lshlrev_b32 v{t2}, 4, v{t2}
    v_lshl_add_u32 v{t2}, v{t1}, {13 if dw else 17}, v{t2}
    v_lshl_add_u32 v{t2}, v{t3}, 14, v{t2}
    s_and_b32 s{sA}, s{sW}, 1
    s_lshl_b32 s{sA}, s{sA}, {15 if dw else 18}
    s_lshr_b32 s{sB}, s{sW}, 1
    s_lshl_b32 s{sB}, s{sB}, {18 if dw else 16}
    s_add_u32 s{sA}, s{sA}, s{sB}
    s_lshl_b32 s{sB}, s{sH}, 8
    s_add_u32 s{sA}, s{sA}, s{sB}
    v_add_u32 v{vWa}, s{sA}, v{t2}
    v_xor_b32 v{t2}, 128, v{vWa}
    v_add_u32 v{vWa+1}, {(8 if dw else 1)*8192-1024}, v{t2}
    v_add_u32 v{vWa+2}, {(16 if dw else 4)*8192-2048}, v{vWa}
    v_add_u32 v{vWa+3}, {(24 if dw else 5)*8192-3072}, v{t2}
    ; wo rows: 16*gb0+4*gb1+bit3 ; chunk = (l%8)^(4*gb0)
    v_lshlrev_b32 v{vOa}, 4, v{t1}
    v_lshl_add_u32 v{vOa}, v{t3}, 2, v{vOa}
    v_bfe_u32 v{vTr}, v{lane}, 3, 1
    v_add_u32 v{vOa}, v{vOa}, v{vTr}
    v_lshlrev_b32 v{vTr}, 2, v{t1}
    v_xor_b32 v{vTr}, v{vTr}, v{lane}
    v_and_b32 v{vTr}, 7, v{vTr}
    v_lshlrev_b32 v{vTr}, 4, v{vTr}
    v_lshl_add_u32 v{vOa}, v{vOa}, 10, v{vTr}
    s_lshl_b32 s{sA}, s{sH}, 17
    s_lshl_b32 s{sB}, s{sW}, 8
    s_add_u32 s{sA}, s{sA}, s{sB}
    v_add_u32 v{vOa}, s{sA}, v{vOa}
    ''')
    if ex == 1:
        for J in range(4): a(f'''
        v_add_u32 v{vWa+J}, {1024*J}, v{vWa+J}
        v_lshrrev_b32 v{t2}, 13, v{vWa+J}
        v_and_b32 v{vWa+J}, 255, v{vWa+J}
        v_lshl_add_u32 v{vWa+J}, v{t2}, 8, v{vWa+J}
        s_min_u32 s{sA}, s{sH}, 30
        s_lshl_b32 s{sA}, s{sA}, 17
        s_add_u32 s{sA}, s{sA}, {4096-1024*J}
        v_add_u32 v{vWa+J}, s{sA}, v{vWa+J}
        ''')
    if ex == 2:
        for J in range(4): a(f'v_xor_b32 v{vWa+J}, {256*J}, v{vWa+J}')
    if ex == 3: a(f's_and_b32 s{sA}, s{sH}, 3\ns_cmp_lg_u32 s{sA}, {exc}\ns_cbranch_scc1 L_done')
    if ex == 4: a(f's_and_b32 s{sA}, s{sH}, 16\ns_cmp_lg_u32 s{sA}, {exc}\ns_cbranch_scc1 L_done')
    if ox: a(f'''
    s_add_u32 s{sTmp}, s{sWs}, {WS_OX-256}
    s_addc_u32 s{sTmp+1}, s{sWs+1}, 0
    s_cmp_eq_u32 s{sW}, 1
    s_cselect_b64 {sp(sWo)}, {sp(sTmp)}, {sp(sWo)}
    s_cselect_b32 s{sNx}, 256, 0
    ''')
    def dma(bi):
        slot = bi % 8; tg = None
        if bi < 24:
            base = {'q': sWq, 'k': sWk, 'v': sWv}[mord[bi//8]]
            a(f's_add_u32 s{sTmp}, s{base}, {slot<<(14 if ex == 1 else 19)}\ns_addc_u32 s{sTmp+1}, s{base+1}, 0\ns_add_u32 m0, s{sLb}, {slot*4096}')
            if bi in nts:
                AK['nts'] = AK.get('nts', 0) + 1; l1, l2 = L(f'nta{AK["nts"]}'), L(f'ntb{AK["nts"]}')
                a(f's_bitcmp0_b32 {thm:#x}, s{sH}\ns_cbranch_scc1 {l1}')
                for J in range(4): a(f'global_load_lds_dwordx4 v{vWa+J}, {sp(sTmp)} offset:{J*1024}{" nt" if thv is None else wnt}')
                a(f's_branch {l2}'); a.label(l1); a.nvm -= 4
            for J in range(4):
                if thv is not None and bi in nts: a(f's_waitcnt vmcnt({thv if isinstance(thv, int) else thv[J]})')
                tg = a(f'global_load_lds_dwordx4 v{vWa+J}, {sp(sTmp)} offset:{J*1024}{" nt" if bi in ntb else wnt}')
            if bi in nts: a.label(l2)
            return tg
        i = slot
        a(f's_xor_b32 s{sA}, s{sW}, {i//2}\ns_lshl_b32 s{sA}, s{sA}, 15')
        if ox: a(f's_mul_i32 s{sB}, s{sNx}, {(0,2,3,0)[i//2] if ox == 1 else 1}\ns_add_u32 s{sA}, s{sA}, s{sB}')
        for J in range(4):
            off = (i%2)*128 + (8*(J>>1) + 2*(J&1))*1024
            a(f's_add_u32 s{sB}, s{sA}, {off}\ns_add_u32 s{sTmp}, s{sWo}, s{sB}\ns_addc_u32 s{sTmp+1}, s{sWo+1}, 0')
            a(f's_add_u32 m0, s{sLb}, {slot*4096+J*1024}')
            tg = a(f'global_load_lds_dwordx4 v{vOa}, {sp(sTmp)}{ont}')
        return tg
    vPq, vPo, vPd = QV, QV+1, QV+2
    if lp: a(f'''
    s_lshr_b32 s{sA}, s{sW}, 1
    s_lshl_b32 s{sA}, s{sA}, 19
    s_and_b32 s{sB}, s{sW}, 1
    s_lshl_b32 s{sB}, s{sB}, 7
    s_add_u32 s{sA}, s{sA}, s{sB}
    s_lshl_b32 s{sB}, s{sH}, 8
    s_add_u32 s{sA}, s{sA}, s{sB}
    v_lshl_add_u32 v{vPq}, v{lane}, 13, s{sA}
    s_lshl_b32 s{sA}, s{sH}, 17
    s_lshl_b32 s{sB}, s{sW}, 8
    s_add_u32 s{sA}, s{sA}, s{sB}
    v_lshrrev_b32 v{vPo}, 1, v{lane}
    v_lshlrev_b32 v{vPo}, 10, v{vPo}
    v_and_b32 v{vPd}, 1, v{lane}
    v_lshl_add_u32 v{vPo}, v{vPd}, 7, v{vPo}
    v_add_u32 v{vPo}, s{sA}, v{vPo}
    ''')
    vH = QV+4
    if hlp:
        a(f'''
        s_and_b32 s{sA}, s{sH}, 3
        s_xor_b32 s{sB}, s{sA}, 1
        s_lshl_b32 s{sB}, s{sB}, 8
        s_sub_u32 s{sC}, s{sA}, 1
        s_max_i32 s{sC}, s{sC}, 0
        s_lshl_b32 s{sC}, s{sC}, 19
        s_cmp_eq_u32 s{sA}, 1
        s_cselect_b32 s{sA}, 0, -1
        ''')
        for J in range(4): a(f'''
        v_xor_b32 v{vH+J}, s{sB}, v{vWa+J}
        v_add_u32 v{vH+J}, s{sC}, v{vH+J}
        v_and_b32 v{vH+J}, s{sA}, v{vH+J}
        ''')
    def help_(j):
        base = {'q': sWq, 'k': sWk, 'v': sWv}[mord[j//8]]
        assert j % 8 <= 5
        a(f's_add_u32 s{sTmp}, s{base}, {(j%8)<<19}\ns_addc_u32 s{sTmp+1}, s{base+1}, 0')
        for J in range(4): a(f'global_load_dwordx4 {vr(KA,4)}, v{vH+J}, {sp(sTmp)} offset:{J*1024}')
    vHt = QV+8
    if ht:
        a(f'''
        s_and_b32 s{sA}, s{sH}, 3
        s_sub_u32 s{sC}, s{sA}, 1
        s_max_i32 s{sC}, s{sC}, 0
        s_mul_i32 s{sB}, s{sW}, 3
        s_add_u32 s{sC}, s{sC}, s{sB}
        s_cmp_eq_u32 s{sA}, 1
        s_cselect_b32 s{sNx}, 99, s{sC}
        s_min_u32 s{sC}, s{sC}, 7
        s_sub_u32 s{sC}, 7, s{sC}
        s_lshl_b32 s{sC}, s{sC}, 19
        s_andn2_b32 s{sA}, s{sH}, 3
        s_lshl_b32 s{sA}, s{sA}, 8
        s_add_u32 s{sC}, s{sC}, s{sA}
        s_add_u32 s{sC}, s{sC}, 384
        v_lshl_add_u32 v{vHt}, v{lane}, 13, s{sC}
        ''')
    def htouch(when):
        for wh, mi, nb, off in ht:
            if wh != when: continue
            base = {'q': sWq, 'k': sWk, 'v': sWv}[mord[mi]]
            a(f's_cmp_lt_u32 s{sNx}, {nb}\ns_cselect_b64 exec, -1, 0\nglobal_load_dword v{vHt+1}, v{vHt}, {sp(base)} offset:{off}\ns_mov_b64 exec, -1')
    def lpre(j):
        if j >= 32 or j % 2: return
        if j < 24:
            base = {'q': sWq, 'k': sWk, 'v': sWv}[mord[j//8]]
            a(f's_add_u32 s{sTmp}, s{base}, {(j%8)<<19}\ns_addc_u32 s{sTmp+1}, s{base+1}, 0\nglobal_load_dword v{vPd}, v{vPq}, {sp(sTmp)}')
        else:
            a(f's_xor_b32 s{sA}, s{sW}, {(j%8)//2}\ns_lshl_b32 s{sA}, s{sA}, 15\ns_add_u32 s{sTmp}, s{sWo}, s{sA}\ns_addc_u32 s{sTmp+1}, s{sWo+1}, 0\nglobal_load_dword v{vPd}, v{vPo}, {sp(sTmp)}')
    dtag = {}
    def fkeval(v):
        a(f"""
        v_cmp_eq_u32 vcc, 0x01010101, v{v}
        s_or_b32 s{sTmp}, vcc_lo, 0xaaaaaaaa
        s_or_b32 s{sTmp+1}, vcc_hi, 0xaaaaaaaa
        s_ff0_i32_b64 s{sRdy}, {sp(sTmp)}
        s_min_u32 s{sRdy}, s{sRdy}, 100
        """)
    def first():
        a(f'''
        s_lshl_b32 s{sA}, s{sXcc}, 1
        s_add_u32 s{sA}, s{sA}, 1
        s_mul_i32 s{sXcc}, s{sA}, 0x01010101
        v_mov_b32 v{S}, s{sH}
        v_mov_b32 v{S+1}, s{sA}
        s_cmp_eq_u32 s{sW}, 0
        s_cselect_b32 s{sFm}, 1, 0
        s_mov_b32 s{sFm+1}, 0
        s_mov_b64 exec, {sp(sFm)}
        global_store_byte v{S}, v{S+1}, {sp(sDbg)} sc1
        s_mov_b64 exec, -1
        v_lshlrev_b32 v{S+2}, 4, v{n_}
        v_lshl_add_u32 v{S+2}, v{g_}, 10, v{S+2}
        s_lshl_b32 s{sA}, s{sW}, 8
        v_add_u32 v{S+2}, s{sA}, v{S+2}
        v_add_u32 v{S+3}, 3072, v{S+2}
        s_lshl_b32 s{sA}, s{sW}, 11
        s_add_u32 m0, s{sA}, {L_MQ}
        global_load_lds_dwordx4 v{S+2}, {sp(sMem)}
        global_load_lds_dwordx4 v{S+3}, {sp(sMem)} offset:1024
        ''')
    if thr: a(f's_and_b32 s{sNx}, s{sH}, 3' if not lp else f's_mov_b32 s{sNx}, 0')
    if lpf:
        for j in range(8 + lp): lpre(j)
    for bi in range(8):
        htouch(bi - 8)
        if bi == fst: first()
        if thi and bi >= 8 - thi:
            a(f's_cmp_eq_u32 s{sNx}, 1\ns_cbranch_scc1 {L(f"ti{bi}")}')
            a.wvm(dtag[bi-8+thi]); a.label(L(f'ti{bi}'))
        dtag[bi] = dma(bi)
    if lp and not lpf:
        for j in range(8, 8 + lp): lpre(j)
    if 'a' in tls: tl(a, 5 + tls.index('a'), T+12, 0)
    if 'b' in tls: tl(a, 5 + tls.index('b'), T+12, 0)
    a(f'''
    v_lshrrev_b32 v{t2}, 2, v{n_}
    v_and_b32 v{t3}, 3, v{lane}
    s_lshl_b32 s{sA}, s{sW}, 6
    v_lshl_add_u32 v{vTr}, v{t3}, 3, s{sA}
    v_lshlrev_b32 v{vTr+1}, 5, v{t2}
    v_lshl_add_u32 v{vTr+1}, v{t1}, 7, v{vTr+1}
    v_xor_b32 v{vTr}, v{vTr}, v{vTr+1}
    v_lshl_add_u32 v{vTr}, v{t2}, 8, v{vTr}
    v_lshl_add_u32 v{vTr}, v{g_}, 10, v{vTr}
    v_xor_b32 v{vTr+1}, 32, v{vTr}
    v_add_u32 v{vTr+2}, 0x10000, v{vTr}
    v_add_u32 v{vTr+3}, 0x10000, v{vTr+1}
    ; wo tr-read: gb*256 + bit2*128 + gb0*64 + bit3*32 + c4*8 (u flips bit 6)
    v_lshlrev_b32 v{vTo}, 8, v{g_}
    v_lshl_add_u32 v{vTo}, v{t1}, 6, v{vTo}
    {f'v_and_b32 v{vTo+1}, 2, v{lane}{NL}v_lshl_add_u32 v{vTo}, v{vTo+1}, 2, v{vTo}{NL}v_and_b32 v{vTo+1}, 1, v{lane}{NL}v_lshlrev_b32 v{vTo+1}, 6, v{vTo+1}{NL}v_xor_b32 v{vTo}, v{vTo}, v{vTo+1}' if w4 and not dw else f'v_lshl_add_u32 v{vTo}, v{t3}, 3, v{vTo}'}
    v_and_b32 v{vTo+1}, 4, v{lane}
    v_lshl_add_u32 v{vTo}, v{vTo+1}, 5, v{vTo}
    v_and_b32 v{vTo+1}, 8, v{lane}
    v_lshl_add_u32 v{vTo}, v{vTo+1}, 2, v{vTo}
    v_add_u32 v{vTo}, s{sLb}, v{vTo}
    v_xor_b32 v{vTo+1}, {16 if w4 and not dw else 64}, v{vTo}
    v_xor_b32 v{vXw}, v{g_}, v{t2}
    v_lshlrev_b32 v{vXw}, 3, v{vXw}
    v_lshl_add_u32 v{vXw}, v{n_}, 5, v{vXw}
    s_lshl_b32 s{sA}, s{sW}, 10
    s_add_u32 s{sA}, s{sA}, {L_X}
    v_add_u32 v{vXw}, s{sA}, v{vXw}
    v_xor_b32 v{vXr}, v{t3}, v{g_}
    v_lshlrev_b32 v{vXr}, 3, v{vXr}
    v_lshl_add_u32 v{vXr}, v{t2}, 5, v{vXr}
    v_lshl_add_u32 v{vXr}, v{g_}, 7, v{vXr}
    v_add_u32 v{vXr}, {L_X}, v{vXr}
    v_lshl_add_u32 v{vPst}, v{t2}, 2, v{g_}
    v_lshlrev_b32 v{vPst}, 11, v{vPst}
    v_lshl_add_u32 v{vPst}, v{t3}, 4, v{vPst}
    s_lshl_b32 s{sA}, s{sW}, 16
    s_lshl_b32 s{sB}, s{sH}, 6
    s_add_u32 s{sA}, s{sA}, s{sB}
    v_add_u32 v{vPst}, s{sA}, v{vPst}
    ''')
    if w4: a(f'''
    ; reducer CU = 8w + 4(n/8) + g, wave G ; off = cu*8192 + G*2048 + h*64 + (n%8)*8 (+4096 imm bias)
    v_lshrrev_b32 v{vPst}, {4 if dw else 3}, v{n_}
    v_lshl_add_u32 v{vPst}, v{vPst}, 2, v{g_}
    v_mul_u32_u24 v{vMst}, {psw}, v{vPst}
    v_add_u32 v{vMst}, s{sB}, v{vMst}
    v_and_b32 v{vMst}, 0x7ff, v{vMst}
    v_lshl_add_u32 v{vPst}, v{vPst}, 13, v{vMst}
    v_and_b32 v{vMst}, {15 if dw else 7}, v{lane}
    v_lshl_add_u32 v{vPst}, v{vMst}, {2 if dw else 3}, v{vPst}
    s_lshl_b32 s{sA}, s{sW}, 16
    s_add_u32 s{sA}, s{sA}, 4096
    v_add_u32 v{vPst}, s{sA}, v{vPst}
    ''')
    a(f'''
    ; publish: (c/2)*32 + p*16 + (c%2)*8 + (i/2)*4
    v_mov_b32 v{vMst}, 0
    {chr(10).join(f'v_bfe_u32 v{t2}, v{lane}, {b_}, 1{chr(10)}v_lshl_add_u32 v{vMst}, v{t2}, {o_}, v{vMst}' for b_, o_ in {0: ((5,5),(2,4),(4,3),(1,2)), 1: ((5,5),(0,4),(4,3)), 2: ((2,5),(4,4),(1,3),(0,2)), 4: ((1,5),(4,4),(0,3),(5,2)), 5: ((0,5),(4,4),(5,3),(1,2)), 6: ((5,5),(4,4),(1,3),(0,2))}[6 if dw else 5 if w4 else ra])}
    ; O write: L_O + w*512 + (g*8+t)*16 + half*8 ; t = 2*(n/4)+n%2
    v_lshlrev_b32 v{vOw}, 7, v{g_}
    v_and_b32 v{t2}, 12, v{lane}
    v_lshl_add_u32 v{vOw}, v{t2}, 3, v{vOw}
    v_and_b32 v{t2}, 1, v{lane}
    v_lshl_add_u32 v{vOw}, v{t2}, 4, v{vOw}
    v_and_b32 v{t2}, 2, v{lane}
    v_lshl_add_u32 v{vOw}, v{t2}, 2, v{vOw}
    s_lshl_b32 s{sA}, s{sW}, 9
    s_add_u32 s{sA}, s{sA}, {L_O}
    v_add_u32 v{vOw}, s{sA}, v{vOw}
    s_mov_b32 s{sB1}, 0xcccccccc
    s_mov_b32 s{sB1+1}, 0xcccccccc
    s_mov_b32 s{sPm}, {0xaaaaaaaa if ra == 1 else 0xf0f0f0f0}
    s_mov_b32 s{sPm+1}, {0xaaaaaaaa if ra == 1 else 0xf0f0f0f0}
    s_mov_b32 s{sPub}, {(0x00550055, 0x00030003, 0x00ff00ff, 0, 0x000f000f)[ra]}
    s_mov_b32 s{sPub+1}, {(0x00550055, 0x00030003, 0, 0, 0x000f000f)[ra]}
    s_mov_b32 s{sQc}, {QSCALE}
    v_mov_b32 v{t2}, 0x4444
    v_mov_b32 v{t3}, 0xeeee
    v_cndmask_b32 v{vIdx}, v{t2}, v{t3}, {sp(sB1)}
    v_cndmask_b32 v{vM0}, -1, 0, {sp(sB1)}
    v_cndmask_b32 v{vM1}, 0, -1, {sp(sB1)}
    ''')
    for i in range(4):
        m_ = {0: 0x00110011 << i, 1: 0x11111111, 2: 0x55555555 << (i%2), 4: 0x00550055 << (i%2 + 8*(i//2))}[ra]
        a(f's_mov_b32 s{sSel+2*i}, {m_}\ns_mov_b32 s{sSel+2*i+1}, {m_}')
    a(f'''
    s_lshl_b32 s{sA}, s{sH}, 2
    s_add_u32 s{sA}, s{sA}, s{sW}
    s_add_u32 s{sRA}, s{sWs}, {WS_RA}
    s_addc_u32 s{sRA+1}, s{sWs+1}, 0
    s_mov_b32 s{sC}, s{sA}
    ''')
    if hp: a(f'''
    s_lshr_b32 s{sB}, s{sA}, 1
    s_and_b32 s{sB}, s{sB}, 15
    s_and_b32 s{sC}, s{sA}, 0x60
    s_or_b32 s{sC}, s{sC}, s{sB}
    s_and_b32 s{sB}, s{sA}, 1
    s_lshl_b32 s{sB}, s{sB}, 4
    s_or_b32 s{sC}, s{sC}, s{sB}
    ''')
    a(f'''
    s_lshl_b32 s{sB}, s{sC}, 11
    s_add_u32 s{sRAo}, s{sRA}, s{sB}
    s_addc_u32 s{sRAo+1}, s{sRA+1}, 0
    ''')
    if w4: a(f'''
    s_and_b32 s{sC}, s{sH}, 24
    s_lshl_b32 s{sC}, s{sC}, 2
    s_and_b32 s{sB}, s{sH}, 7
    s_add_u32 s{sC}, s{sC}, s{sB}
    s_lshl_b32 s{sB}, s{sW}, 3
    s_add_u32 s{sC}, s{sC}, s{sB}
    ''')
    a(f'''
    s_lshl_b32 s{sB}, s{sC}, 6
    s_add_u32 s{sB}, s{sB}, {WS_RM}
    s_add_u32 s{sRMs}, s{sWs}, s{sB}
    s_addc_u32 s{sRMs+1}, s{sWs+1}, 0
    s_lshl_b32 s{sB}, s{sW}, 11
    s_add_u32 s{sB}, s{sB}, {WS_RM}
    s_add_u32 s{sRMl}, s{sWs}, s{sB}
    s_addc_u32 s{sRMl+1}, s{sWs+1}, 0
    s_lshl_b32 s{sB}, s{sA}, 11
    s_add_u32 s{sKV}, s{sWs}, s{sB}
    s_addc_u32 s{sKV+1}, s{sWs+1}, 0
    s_lshl_b32 s{sB}, s{sA}, 10
    s_add_u32 s{sB}, s{sB}, {WS_KVM-(32 if kvnow else 64)*4096}
    s_add_u32 s{sKVM}, s{sWs}, s{sB}
    s_addc_u32 s{sKVM+1}, s{sWs+1}, 0
    s_lshl_b32 s{sB}, s{sH}, 7
    s_add_u32 s{sB}, s{sB}, {WS_FL+FL_P}
    s_add_u32 s{sFl}, s{sWs}, s{sB}
    s_addc_u32 s{sFl+1}, s{sWs+1}, 0
    s_lshl_b32 s{sB}, s{sH}, 8
    s_add_u32 s{sB}, s{sB}, {WS_FL+FL_K}
    s_add_u32 s{sFK}, s{sWs}, s{sB}
    s_addc_u32 s{sFK+1}, s{sWs+1}, 0
    ; touch/flag lanes: 0-31 V half of the own K/V record (advances per step), 32-63 ready flags of this head
    s_sub_u32 s{sB}, s{sB}, {2048+256}
    v_lshl_add_u32 v{vTc}, v{lane}, 3, s{sB}
    s_lshl_b32 s{sB}, s{sA}, 11
    s_add_u32 s{sB}, s{sB}, {WS_V-2048}
    v_lshl_add_u32 v{t2}, v{lane}, 6, s{sB}
    v_cmp_gt_u32 vcc, 32, v{lane}
    v_cndmask_b32 v{vTc}, v{vTc}, v{t2}, vcc
    s_mov_b32 s{sRdy}, {0 if mega else 100}
    v_lshlrev_b32 v{vL4}, 2, v{lane}
    v_mov_b64 {vr(HK,2)}, 0
    v_mov_b64 {vr(HV,2)}, 0
    ; M(0) gather: lane(row: b0=t%2,b1=half,b3:2=t/2 ; ga): byte = t*256 + (64s + 16(ea%4) + 4ga + 2half + ea/4)*2
    v_lshrrev_b32 v{t2}, 2, v{n_}
    v_lshlrev_b32 v{t2}, 9, v{t2}
    v_and_b32 v{t3}, 1, v{lane}
    v_lshl_add_u32 v{t2}, v{t3}, 8, v{t2}
    v_lshl_add_u32 v{t2}, v{g_}, {5 if dw else 3}, v{t2}
    v_and_b32 v{t3}, 2, v{lane}
    v_lshl_add_u32 v{t2}, v{t3}, 1, v{t2}
    s_lshl_b32 s{sA}, s{sW}, 11
    s_add_u32 s{sA}, s{sA}, {L_MQ}
    v_add_u32 v{t2}, s{sA}, v{t2}
    ''')
    if 'c' in tls: tl(a, 5 + tls.index('c'), T+12, 0)
    def warmup():
        a(f"""
        v_lshlrev_b32 v{t1}, 7, v{n_}
        v_and_b32 v{t3}, 1, v{g_}
        v_lshl_add_u32 v{t2}, v{t3}, 18, v{t1}
        global_load_dword v{vFd}, v{t2}, {sp(sRAo)} sc1
        v_lshl_add_u32 v{t1}, v{t3}, 13, v{t1}
        global_load_dword v{vFd}, v{t1}, {sp(sRMl)} sc1
        """)
    def park(pj): return dest(('o', pj+1)) if pj < NQ-1 else ('v', S+16)
    for w in range(1,4): a(f's_cmp_eq_u32 s{sW}, {w}\ns_cbranch_scc1 {L(f"pw{w}")}')
    nvm0, nds0 = a.nvm, a.nds
    for w in range(4):
        a.label(L(f'pw{w}'))
        a.nvm, a.nds = nvm0, nds0
        for bi in range(24):
            m, i = mord[bi//8], (bi%8) ^ (2*w); slot = bi % 8
            a.wvm(dtag[bi]); a('s_barrier')
            if bi in tls: tl(a, 5 + tls.index(bi), t1, 0)
            if bi and thr and bi < the:
                a(f's_cmp_eq_u32 s{sNx}, 1\ns_cbranch_scc1 {L(f"th{w}_{bi}")}')
                a.wvm(dtag[bi+thr]); a.label(L(f'th{w}_{bi}'))
            htouch(bi)
            if bi: dtag[bi+7] = dma(bi+7)
            if bi and lp: lpre(bi+7+lp)
            for hb, hj in hlp:
                if hb == bi: help_(hj)
            k, b = park(LDS_BLK.index((m,i))) if (m,i) in LDS_BLK else dest((m,i))
            for u in range(2):
                for J in range(4):
                    a(f'ds_read_b64_tr_b16 {vr(b+8*u+2*J,2,k)}, v{vTr+u+2*(J//2)} offset:{slot*4096+(J%2)*32768}')
            if bi == fst:
                for s_ in range(2):
                    for ea in range(8): a(f'ds_read_u16 v{S+8*s_+ea}, v{t2} offset:{(64*s_ + (4*(ea//2) + ea%2 if dw else 16*(ea%4) + ea//4))*2}')
            if bi == fst + 1:
                for r in range(8): a(f'v_lshl_or_b32 v{M+r}, v{S+2*r+1}, 16, v{S+2*r}')
            if bi == arr and 'p3' not in opt: a(f'global_load_dword v{vFd}, v{vL4}, {sp(sDbg)} sc1')
            if bi == arr + 8 and 'p3' not in opt:
                msk = ((1 << 24) - 1) | (1 << 40) if mega else 0xff
                a(f"""
                s_mov_b32 s{sSpin}, 0
                {L(f'tb{w}')}:
                v_and_b32 v{t1}, 0x01010101, v{vFd}
                v_cmp_ne_u32 vcc, 0x01010101, v{t1}
                s_and_b32 s{sA}, vcc_lo, {msk & 0xffffffff}
                s_and_b32 s{sB}, vcc_hi, {msk >> 32}
                s_or_b32 s{sA}, s{sA}, s{sB}
                s_cbranch_scc0 {L(f'tbo{w}')}
                s_sleep 4
                global_load_dword v{vFd}, v{vL4}, {sp(sDbg)} sc1
                s_add_u32 s{sSpin}, s{sSpin}, 1
                s_cmp_gt_u32 s{sSpin}, {SPIN}
                s_cbranch_scc1 {L('end')}
                s_waitcnt vmcnt(0)
                s_branch {L(f'tb{w}')}
                {L(f'tbo{w}')}:
                v_cmp_ne_u32 vcc, s{sXcc}, v{vFd}
                s_and_b32 s{sXcc}, vcc_lo, 0xff
                """)
                a.nvm -= 1
            if bi == warm: warmup()
            if mega and bi == fkb: ftag = a(f'global_load_dword v{vFk}, v{vL4}, {sp(sFK)} sc1')
            a('s_waitcnt lgkmcnt(0)')
        if w < 3: a(f's_branch {L("pwe")}')
    a.label(L('pwe'))
    tl(a, 1, t1, 0)
    def k0():
        a(f"""
        s_mov_b32 m0, s{sM0kv}
        s_nop 0
        global_load_lds_dwordx4 v{vLin}, {sp(sKV)} sc1
        global_load_lds_dwordx4 v{vLin}, {sp(sKV)} offset:1024 sc1
        global_load_lds_dword v{vTc}, {sp(sWs)} offset:2048 sc1
        """)
    for bi in range(24, 32):
        slot = bi % 8
        a.wvm(dtag[bi])
        if bi == 24: a('s_barrier'); dtag[31] = dma(31)
        if bi == warm: warmup()
        if mega and bi == fkb: ftag = a(f'global_load_dword v{vFk}, v{vL4}, {sp(sFK)} sc1')
        if bi == fke:
            if mega:
                a.wvm(ftag)
                fkeval(vFk)
                a(f's_cmp_lg_u32 s{sRdy}, 0\ns_cbranch_scc1 {L("k1")}')
                for _ in range(3): a(f'global_load_dword v{vFk}, v{vL4}, {sp(sFK)} sc1')
                a(f's_branch {L("k2")}')
                a.nvm -= 3
                a.label(L('k1'))
            k0()
            a.label(L('k2'))
        tmp = S + 16*(slot%2)
        k, b = dest(('o', slot)) if slot < NQ else ('v', tmp)
        for u in range(2):
            for J in range(4):
                a(f'ds_read_b64_tr_b16 {vr(b+8*u+2*J,2,k)}, v{vTo+u} offset:{slot*4096+J*1024}')
        if slot >= NQ or not opipe: a('s_waitcnt lgkmcnt(0)')
        k, b = park(slot) if slot < NQ else ('v', tmp)
        for u in range(2):
            for hf in range(2):
                a(f'ds_write_b128 v{vLw}, {vr(b+8*u+4*hf,4,k)} offset:{slot*4096+u*2048+hf*1024}')
        if not opipe: a('s_waitcnt lgkmcnt(0)')
    tl(a, 2, t1, 0)
    if 'ponly' in opt: a(f's_branch {LE}')
    if mega:
        a(f"""
        s_cmp_lg_u32 s{sRdy}, 0
        s_cbranch_scc1 {L("kwe")}
        s_mov_b32 s{sSpin}, 0
        {L('kw')}:
        s_waitcnt vmcnt(0)
        """)
        fkeval(vFk)
        a(f"""
        s_cmp_lg_u32 s{sRdy}, 0
        s_cbranch_scc1 {L("kwd")}
        s_sleep 2
        global_load_dword v{vFk}, v{vL4}, {sp(sFK)} sc1
        s_add_u32 s{sSpin}, s{sSpin}, 1
        s_cmp_gt_u32 s{sSpin}, {SPIN}
        s_cbranch_scc1 {L('end')}
        s_branch {L("kw")}
        """)
        a.label(L('kwd'))
        k0()
        a.label(L('kwe'))
    sKN = sWo
    a(f"""
    s_mov_b64 {sp(sKN)}, {sp(sKV)}
    s_mov_b32 s{sT}, 0
    s_mov_b32 s{sSpin}, 0
    """)
    tl(a, 3, t1, 0)
    if prof:
        for i in range(8): a(f's_mov_b32 s{sP+20+i}, 0')
        a(f's_memtime {sp(sP+28)}')
    def tstamp(idx, T=T):
        if 'ts' not in opt and 'tc' not in opt and 'tb' not in opt: return
        a(f"""
        {'s_memrealtime' if 'ts' in opt else 's_memtime'} s[96:97]
        {'s_memrealtime s[94:95]' if 'tb' in opt else ''}
        s_lshl_b32 s{sA}, s{sH}, 2
        s_add_u32 s{sA}, s{sA}, s{sW}
        s_lshl_b32 s{sA}, s{sA}, 6
        s_add_u32 s{sA}, s{sA}, {idx}
        s_lshl_b32 s{sA}, s{sA}, 2
        s_add_u32 s{sA}, s{sA}, {WS_PROF+131072}
        v_mov_b32 v{T}, s{sA}
        s_waitcnt lgkmcnt(0)
        {f's_bitcmp1_b32 s{sW}, 0{NL}s_cselect_b32 s96, s94, s96' if 'tb' in opt else ''}
        v_mov_b32 v{T+1}, s96
        s_mov_b64 exec, 1
        global_store_dword v{T}, v{T+1}, {sp(sWs)}
        """)
        if 'tk' in opt:
            for j_ in range(len(stamps)-1): a(f's_sub_u32 s96, s{sP+2*j_+2}, s{sP+2*j_}\nv_add_u32 v{T}, 32768, v{T}\nv_mov_b32 v{T+2+j_}, s96\nglobal_store_dword v{T}, v{T+2+j_}, {sp(sWs)}')
        a('s_mov_b64 exec, -1')
    tstamp(63)
    DPPM = 'row_mask:0xf bank_mask:0xf'
    QA = T+8; VA = QV; P2 = VX; S0 = S; S1 = S+16; K0 = M+16
    NEG = M+4; Sel = T+4; Dr = T+8
    if yd: K0 = KX; P2 = M+16; NEG = T+5
    sB0, sOne, sHalf = 4, 8, 10
    a(f'''
    s_not_b64 {sp(sB0)}, {sp(sB1)}
    s_mov_b32 s{sOne}, 0x3f803f80
    s_mov_b32 s{sOne+1}, 0x3f803f80
    s_mov_b32 s{sHalf}, 0x3f003f00
    s_mov_b32 s{sHalf+1}, 0x3f003f00
    ''')
    def pre1(L=None):
        n0 = len(a.items)
        if TL and L:
            a(f's_cmp_lg_u32 s{sT}, 24\ns_cbranch_scc1 {L("tls")}\ns_memtime s[92:93]\ns_memrealtime s[76:77]\ns_mov_b32 s{sSpin}, 0')
            a.label(L('tls')); n0 += 4
        if ps:
            a(f'v_lshrrev_b32 v{T+5}, 2, v{vLin}\nv_add_u32 v{T+3}, m0, v{vLin}')
            if L and mega: a(f'v_add_u32 v{T+6}, m0, v{T+5}\nds_read_b32 v{T+6}, v{T+6} offset:2048')
            a(f'''
            ds_read_b128 {vr(KX,4)}, v{T+3}
            ds_read_b128 {vr(KX+4,4)}, v{T+3} offset:1024
            v_add_u32 v{T+3}, s{sLb}, v{T+5}
            v_mov_b32 v{T+7}, 0
            v_add_u32 v{T+5}, {L_S}, v{T+5}
            ds_write_b32 v{T+3}, v{T+7}
            ''')
        elif L and mega: a(f'v_lshrrev_b32 v{T+5}, 2, v{vLin}\nv_add_u32 v{T+6}, m0, v{T+5}\nds_read_b32 v{T+6}, v{T+6} offset:2048')
        a(f"""
        s_and_b32 s{sA}, s{sT}, 1
        s_lshl_b32 s{sC}, s{sA}, 13
        s_add_u32 s{sMld}, s{sRMl}, s{sC}
        s_addc_u32 s{sMld+1}, s{sRMl+1}, 0
        s_xor_b32 s{sB}, s{sA}, 1
        """)
        if yd: a(f's_mov_b32 m0, s{sLb}')
        if yd == 1: a(f's_mov_b32 s{sGot}, 0')
        for x_ in stg(('k',0), K0): a(x_)
        for i in range(0,16,2): a(f'v_mov_b64 {vr(VA+i,2)}, 0')
        for i in range(0,8,2): a(f'v_mov_b64 {vr(QA+i,2)}, 0')
        return len(a.items) - n0
    def pre2(L=None):
        n0 = len(a.items)
        a(f's_mov_b32 exec_hi, 0\nv_add_u32 v{vTc}, {KST}, v{vTc}\ns_mov_b32 exec_hi, -1')
        a(f"""
        s_lshl_b32 s{sC}, s{sB}, 13
        s_add_u32 s{sMst}, s{sRMs}, s{sC}
        s_addc_u32 s{sMst+1}, s{sRMs+1}, 0
        s_lshl_b32 s{sC}, s{sB}, 18
        s_add_u32 s{sArs}, s{sRAo}, s{sC}
        s_addc_u32 s{sArs+1}, s{sRAo+1}, 0
        s_lshl_b32 s{sC}, s{sA}, 18
        s_add_u32 s{sSt0}, s{sRA}, s{sC}
        s_addc_u32 s{sSt0+1}, s{sRA+1}, 0
        s_add_u32 s{sSt1}, s{sSt0}, 32768
        s_addc_u32 s{sSt1+1}, s{sSt0+1}, 0
        s_add_u32 s{sAld}, s{sRAo}, s{sC}
        s_addc_u32 s{sAld+1}, s{sRAo+1}, 0
        s_add_u32 s{sKV}, s{sKN}, {WS_V}
        s_addc_u32 s{sKV+1}, s{sKN+1}, 0
        s_add_u32 s{sKN}, s{sKN}, {KST}
        s_addc_u32 s{sKN+1}, s{sKN+1}, 0
        s_add_u32 s{sKVM}, s{sKVM}, {32*4096}
        s_addc_u32 s{sKVM+1}, s{sKVM+1}, 0
        """)
        if not ps: a(f"""
        s_mul_i32 s{sC}, s{sB}, {4*KVS}
        s_add_u32 {f's{sVer}' if yd == 2 else 'm0'}, s{sC}, s{sM0kv}
        s_mul_i32 s{sC}, s{sA}, {4*KVS}
        s_add_u32 s{sC}, s{sC}, {L_KV}
        v_add_u32 v{vKr}, s{sC}, v{vLin}
        """)
        a(f"""
        s_lshl_b32 s{sC}, s{sW}, 11
        s_add_u32 s{sC}, s{sC}, {L_MQ}
        v_add_u32 v{T+3}, s{sC}, v{vLin}
        s_add_u32 s{sC}, s{sT}, {int(kvnow)}
        v_mov_b32 v{T+4}, s{sC}
        """)
        for i in range(1,4): a(f'v_xor_b32 v{T+i-1}, {i*2048}, v{T+3}')
        if L and mega:
            a(f'''
            s_waitcnt lgkmcnt(0)
            v_cmp_eq_u32 vcc, 0x01010101, v{T+6}
            s_add_u32 s{sA}, s{sT}, 1
            s_ff0_i32_b32 s{sRdy}, vcc_hi
            s_lshl_b32 s{sRdy}, s{sRdy}, 1
            s_cmp_lt_u32 s{sA}, s{sRdy}
            s_cbranch_scc0 {L('rp')}
            ''')
        return len(a.items) - n0
    def ldM(r):
        if yd: a(f'global_load_lds_dwordx4 v{vLin}, {sp(sMld)} sc1\nglobal_load_lds_dwordx4 v{vLin}, {sp(sMld)} offset:1024 sc1')
        else: a(f'global_load_dwordx4 {vr(r,4)}, v{vLin}, {sp(sMld)} sc1\nglobal_load_dwordx4 {vr(r+4,4)}, v{vLin}, {sp(sMld)} offset:1024 sc1')
    def ldA(r):
        if ra == 1:
            for i in range(8): a(f'global_load_dword v{r+i}, v{T+1}, {sp(sAld)} offset:{256*i} sc1')
            return
        if ra == 2:
            for i in range(4): a(f'global_load_dwordx2 {vr(r+2*i,2)}, v{T+1}, {sp(sAld)} offset:{512*i} sc1')
            return
        a(f'global_load_dwordx4 {vr(r,4)}, v{vLin}, {sp(sAld)} sc1\nglobal_load_dwordx4 {vr(r+4,4)}, v{vLin}, {sp(sAld)} offset:1024 sc1')
    def spin(): a(f's_add_u32 s{sSpin}, s{sSpin}, 1\ns_cmp_gt_u32 s{sSpin}, {SPIN}\ns_cbranch_scc1 {LE}')
    acc = {'q': QA, 'k': KA, 'v': VA}
    def P_(m, sg, u): SM(acc[m]+4*u, M+4*sg, m, sg, u)
    for x_ in stg(('q',0), S0) + stg(('q',1), S1): a(x_)
    for r in range(8): a(f'v_min_u32 v{M+r}, -2, v{M+r}')
    if yd: a(f's_lshl_b32 s{sLb}, s{sW}, 11\ns_add_u32 s{sLb}, s{sLb}, {L_MQ}')
    if ps: a(f'''
    s_lshl_b32 s{sLb}, s{sW}, 10
    v_add_u32 v{vKr}, s{sLb}, v{vXr}
    s_add_u32 s{sLb}, s{sLb}, {L_X+4096}
    v_add_u32 v{T}, s{sLb}, v{vLin}
    v_mov_b64 {vr(T+4,2)}, 0
    v_mov_b64 {vr(T+6,2)}, 0
    ds_write_b128 v{T}, {vr(T+4,4)}
    s_lshl_b32 s{sLb}, s{sW}, 8
    s_add_u32 s{sLb}, s{sLb}, {L_S}
    s_waitcnt vmcnt(0)
    ''')
    pre1(); pre2()
    if yd: a(f'ds_write_b128 v{T+3}, {vr(M,4)}\nds_write_b128 v{T+3}, {vr(M+4,4)} offset:1024')
    a('s_waitcnt vmcnt(0) lgkmcnt(0)')
    if mega: a(f's_cmp_lg_u32 s{sXcc}, 0\ns_cbranch_scc1 {L("s_try")}')
    a(f's_branch {L("try")}')
    staged0 = dict(staged)
    def loop(L, stc, mk=mk, rdw=rdw):
        staged.clear(); staged.update(staged0)
        dm = [f'global_load_lds_dwordx4 v{vLin}, {sp(sKN)} offset:{j*1024} sc1' for j in range(2)] + \
             [f'global_load_dwordx4 {vr(KX+4*j,4)}, v{vLin}, {sp(sKV)} offset:{(j-2)*1024} sc1' for j in (2,3)]
        kvb = int('kv@B0' in vp.split()); kvst = f'global_store_dwordx4 v{vLin}, {vr(HK,4)}, {sp(sKVM)} sc1'
        a.label(L('retry'))
        spin()
        if prof: a(f's_add_u32 s{sP+26}, s{sP+26}, 59')
        if TL: a(f's_add_u32 s{sSpin}, s{sSpin}, 255')
        if yd == 2:
            a('s_nop 2')
            for i in range(0,4,2): a(f'v_mov_b64 {vr(QA+i,2)}, 0')
            for i in range(0,8,2): a(f'v_mov_b64 {vr(KA+i,2)}, 0')
            a(f's_waitcnt vmcnt({kvb})')
            ldM(None)
            if kvb: a(kvst)
        elif yd:
            a(f's_waitcnt lgkmcnt(0)\ns_cmp_eq_u32 s{sGot}, 0\ns_cbranch_scc1 {L("r1")}\ns_barrier')
            ldM(None)
            a.label(L('r1'))
            a(f's_mov_b32 s{sGot}, 1\ns_sub_u32 s{sC}, m0, s{sM0kv}\ns_add_u32 s{sC}, s{sC}, {L_KV}')
            for i in range(4): a(f's_xor_b32 s{sA}, s{sW}, {i}\ns_mul_i32 s{sA}, s{sA}, {KVS}\ns_add_u32 s{sA}, s{sA}, s{sC}\nv_add_u32 v{T+(i-1)%4}, s{sA}, v{vLin}')
            for i in range(0,8,2): a(f'v_mov_b64 {vr(KA+i,2)}, 0')
            for i in range(0,8,2): a(f'v_mov_b64 {vr(QA+i,2)}, 0')
            a('s_waitcnt vmcnt(0)')
        else:
            a(f's_waitcnt vmcnt({kvb})')
            for i in range(0,8,2): a(f'v_mov_b64 {vr(M+i,2)}, {vr(P2+i,2)}')
            ldM(P2)
            if kvb: a(kvst)
            for i in range(0,8,2): a(f'v_mov_b64 {vr(QA+i,2)}, 0')
        a(f's_branch {L("try")}')
        a.label(L('step'))
        n = pre1(L)
        if wB:
            cur = n + 3
            for w_ in (3,2,1,0):
                a.nops(wB[w_] - cur - (2 if w_ else 0)); cur = max(cur + (2 if w_ else 0), wB[w_])
                if w_: a(f's_cmp_eq_u32 s{sW}, {w_}\ns_cbranch_scc1 {L("p1")}')
            a.label(L('p1'))
        else: a.nops(preB - n - 3)
        ldM(M)
        n = pre2(L); a.nops(gapB - n - 2)
        a.label(L('rk'))
        ldM(P2)
        if kvb: a(kvst)
        a(f's_waitcnt vmcnt({2+kvb}) lgkmcnt(0)')
        a.label(L('try'))
        a.nds = 0; a.nvm = 2 + kvb; set2 = 2
        stamp('a0')
        ck = M+8
        if not yd:
            mw = [f'ds_write_b128 v{T+3}, {vr(M,4)}', f'ds_write_b128 v{T+3}, {vr(M+4,4)} offset:1024']
            if wsh == 3: mw = [f'ds_write_b64 v{T+3}, {vr(M+2*i,2)} offset:{(i//2)*1024+(i%2)*8}' for i in range(4)]
            for _ in range({0:2, 1:0, 2:1, 3:0, 4:0}[wsh]): a(mw.pop(0))
            P_('q',0,0)
            for _ in range({0:0, 1:1, 2:1, 3:2, 4:2}[wsh]): a(mw.pop(0))
            stamp('w0')
            a(f'v_max_u32 v{ck}, v{M}, v{M+4}' if fc else f'v_max3_u32 v{ck}, v{M}, v{M+2}, v{M+4}')
            if fc == 2: a(f'v_cmp_eq_u32 vcc, -1, v{ck}')
            P_('q',0,1)
            for x_ in mw: a(x_)
            stamp('w1')
            if fc == 2: a(f's_cbranch_vccnz {L("retry")}')
            elif fc:
                a(f'v_cmp_eq_u32 vcc, -1, v{ck}')
                P_('q',1,0); a(f's_cbranch_vccnz {L("retry")}')
            else:
                a(f'v_max_u32 v{ck}, v{ck}, v{M+6}')
                if mk == 8: a(f'v_max3_u32 v{ck}, v{ck}, v{M+1}, v{M+3}\nv_max3_u32 v{ck}, v{ck}, v{M+5}, v{M+7}')
                P_('q',1,0); a(f'v_cmp_eq_u32 vcc, -1, v{ck}')
                P_('q',1,1); a(f's_cbranch_vccnz {L("retry")}')
        rlate = any(x_[0] == 'r' and x_[1] != 'm' and x_[3] in 'CW' for x_ in vp.split())
        NG2 = T if rlate else NEG
        rs = [f'global_store_dwordx4 v{vLin}, {vr(NG2,4)}, {sp(sArs)} offset:{1024*i}{stc}' for i in range(2)]
        if rdw: rs = [f'global_store_dword v{vLin}, v{NG2}, {sp(sArs)} offset:{1024*i}{stc}' for i in range(2)]
        vops = dict(d0=dm[0], d1=dm[1], d2=dm[2], d3=dm[3], r0=rs[0], r1=rs[1],
                    kv=f'global_store_dwordx4 v{vLin}, {vr(HK,4)}, {sp(sKVM)} sc1',
                    fl=f's_mov_b64 exec, {sp(sFm)}\nglobal_store_dword v{vLin}, v{T+4}, {sp(sFl)} sc1\ns_mov_b64 exec, -1',
                    tc=f'global_load_lds_dword v{vTc}, {sp(sWs)} offset:2048{tsc}',
                    rm=f'global_store_dword v{vMst}, v{NEG}, {sp(sMst)}{stc}')
        if kvp:
            vops['kv'] = (f's_cmp_lt_u32 s{sT}, {kvp}\ns_cselect_b64 exec, 0, -1\nglobal_store_dwordx4 v{vLin}, {vr(HK,4)}, {sp(sKVM)} sc1\ns_mov_b64 exec, -1')
        if flp:
            vops['fl'] = (f's_cmp_lt_u32 s{sT}, {flp}\ns_cselect_b64 exec, 0, {sp(sFm)}\nglobal_store_dword v{vLin}, v{T+4}, {sp(sFl)} sc1\ns_mov_b64 exec, -1')
        vt = {}; AK['vt'] = vt
        def VM(slot):
            for x_ in vp.split():
                o, s_ = x_.split('@')
                if s_ != slot: continue
                k_ = slot[0]; n_ = int(slot[1:])
                if yd == 2: assert k_ != 'Q' or n_ > 2 + (o[0] == 'r')
                if yd == 1 and o != 'kv': assert k_ != 'Q' or n_ > ckp[3] + 1 + (o[0] == 'r') * 2
                if o[0] == 'r': assert k_ == 'Q' and (1 if o == 'rm' or rdw else 4) <= n_ or k_ == 'V' or k_ in 'CW' and o != 'rm'
                if o == 'fl': assert k_ in 'AQV'
                if o == 'kv': assert k_ in 'PACW' or k_ == 'Q' and n_ < 21
                if o in ('d0', 'd1', 'tc'): assert 'd2' in vt and 'd3' in vt and 'rm' in vt
                if o in skip: vt[o] = a.nvm; continue
                vt[o] = a(vops[o])
            stamp(slot)
        mt = {}
        def rdM(sg): mt[sg] = a(f'ds_read_b128 {vr(M+4*sg,4)}, v{T+(sg//2-1)%4} offset:{1024*(sg%2)}')
        vq = [(sg,u) for sg in ((4,5,6,7,0,1,2,3) if yd else (0,1,4,5,6,7,2,3)) for u in (0,1)]
        def V_():
            sg, u = vq.pop(0); P_('v', sg, u)
        g1 = stg(('k',6), S0) + stg(('k',7), S1); tg1 = []
        def G1(i):
            if sgq <= i < sgq + 8: tg1.append(a(g1[i-sgq]))
        rq = [2,3,4,5,6,7]
        for j in range(3-fc,0 if yd else 12):
            if j == 3 - fc: pass
            elif j < 4: P_('q',1,j%2)
            elif j < 8: P_('k',(j-4)//2,j%2)
            else: V_()
            if vmf and j >= 4: VM('P0' if j == 4 else f'A{j-5}')
            if j > pb1 - 1 and rq and (rq[0] < 4 or j >= 3 + rq[0]//2): rdM(rq.pop(0))
            if j >= 9: G1(j-12)
            if not vmf and j >= 4: VM('P0' if j == 4 else f'A{j-5}')
            if j == pb1 - 1:
                a(f's_waitcnt lgkmcnt(0)\ns_barrier')
                stamp('a1')
                for _ in range(nr0): rdM(rq.pop(0))
        if yd == 1:
            a('s_barrier'); stamp('a1'); rq = list(range(8))
        if yd == 2: rq = [0,1]
        while rq: rdM(rq.pop(0))
        stamp('a2')
        QP = T+6; D0 = T; D1 = T+8; Dm = VA; X = XO
        def half(r, d): return [f'v_add_f32 v{r}, v{r}, v{r+2}', f'v_add_f32 v{r+1}, v{r+1}, v{r+3}', f'v_cvt_pk_bf16_f32 v{d}, v{r}, v{r+1}']
        a.wds(mt[0 if yd else 2])
        seq = [('q',s_,0) for s_ in range(2,8)] + [('q',2,1),('q',3,1),('k',6,0),('k',6,1),('k',7,0),('k',7,1)] + \
              [('q',s_,1) for s_ in range(4,8)] + [('k',s_,0) for s_ in range(2,6)] + [('k',s_,1) for s_ in range(2,6)]
        z0 = [f'v_mov_b64 {vr(M+2*i,2)}, 0' for i in range(4,8)]
        kx = [f'ds_read_b128 {vr(S+4*i,4)}, v{vKr} offset:{(i//2)*KVS+(i%2)*1024}' for i in range(8)]
        va = {i: f'v_mov_b32 v{NEG+i}, -1' for i in range(1 if rlate or rdw else 4)}
        for i, p_ in enumerate((4,5)): va[p_] = f'v_mov_b64 {vr(M+2*i,2)}, 0'
        wr = {}
        for p_, (r, d, off) in ((7, (QA, QP, 0)), (17, (QA+4, QP+1, 512)), (21, (KA, HK, 4))):
            for j, x_ in enumerate(half(r, d)): va[p_+j] = x_
            wr[p_+3] = f'ds_write_b32 v{vXw}, v{d} offset:{off}'
        xr = [f'ds_read_b64_tr_b16 {vr(X+2*i,2)}, v{vXr} offset:{i*512}' for i in range(8)]
        tx = []
        On = T+12; Cq = T+7
        rV = max([int(x_[4:]) for x_ in vp.split() if x_[0] == 'r' and x_[3] == 'V'] + [-1])
        fv = [f'v_mov_b64 {vr(On,2)}, {sp(sOne)}', f'v_mov_b64 {vr(On+2,2)}, {sp(sHalf)}', f'v_mov_b32 v{Cq}, s{sQc}', f'v_mov_b64 {vr(NEG+2,2)}, 0', f'v_mov_b64 {vr(NEG,2)}, 0']
        g2 = stg(('o',7), M+16)
        if yd:
            ku0 = [('k',s_,0) for s_ in range(1,6)]
            seq = [('q',0,0),('k',0,0),('k',0,1),('q',0,1),('q',1,0),('q',1,1)] + [('q',s_,u) for u in (0,1) for s_ in range(2,8)] + \
                  ku0[:kp] + [('k',6,0),('k',6,1),('k',7,0),('k',7,1)] + ku0[kp:] + [('k',s_,1) for s_ in range(1,6)]
            ck = NEG; got = 0
            va = {ckp[0]: f'v_max3_u32 v{ck}, v{M}, v{M+4}, v{M+8}', ckp[1]: f'v_max3_u32 v{ck}, v{ck}, v{M+12}, v{M+16}', ckp[2]: f'v_max3_u32 v{ck}, v{ck}, v{M+20}, v{M+24}',
                  ckp[3]: f'v_max_u32 v{ck}, v{ck}, v{M+28}', ckp[3]+1: f'v_cmp_eq_u32 vcc, -1, v{ck}', ckp[3]+3: f'v_mov_b32 v{NEG}, -1'}
            wr = {}
            for p_, (r, d, off) in ((13, (QA, QP, 0)), (19, (QA+4, QP+1, 512)), (28, (KA, HK, 4))):
                for j, x_ in enumerate(half(r, d)):
                    assert p_+j not in va
                    va[p_+j] = x_
                wr[p_+3] = f'ds_write_b32 v{vXw}, v{d} offset:{off}'
            fv = fv[:3]; fz = [f'v_mov_b64 {vr(M+2*i,2)}, 0' for i in range(4)]
            p6 = 18 + kp; g0 = ckp[3] + 2; NQK = 32
            if yd == 2:
                ku0 = [('k',s_,0) for s_ in range(2,6)]
                vo = [('v',0,0),('v',0,1),('v',1,0),('v',1,1)][:nvo]
                for x_ in vo: vq.remove(x_[1:])
                seq = [('q',0,0),('k',0,0),('k',0,1),('q',0,1),('q',1,0),('q',1,1),('k',1,0),('k',1,1)] + vo + \
                      ([('q',s_,u) for s_ in range(2,8) for u in (0,1)] if qo else [('q',s_,u) for u in (0,1) for s_ in range(2,8)]) + \
                      ku0[:kp] + [('k',6,0),('k',6,1),('k',7,0),('k',7,1)] + ku0[kp:] + [('k',s_,1) for s_ in range(2,6)]
                NQK = 32 + nvo
                va = {0: f'v_max_u32 v{ck}, v{M}, v{M+4}', 1: f'v_cmp_eq_u32 vcc, -1, v{ck}', 3: f'v_mov_b32 v{NEG}, -1'}
                wr = {}
                for p_, (r, d, off) in ((20 if qo else 15, (QA, QP, 0)), (23 if qo else 21, (QA+4, QP+1, 512)), (29, (KA, HK, 4))):
                    for j, x_ in enumerate(half(r, d)): va[p_+j+nvo] = x_
                    wr[p_+3+nvo] = f'ds_write_b32 v{vXw}, v{d} offset:{off}'
                p6 = 20 + kp + nvo; g0 = g0p
            for i in range(48):
                j = i - NQK
                if i < NQK: P_(*seq[i])
                else: V_()
                if vmf: VM(f'Q{i}' if i < NQK else f'V{j}')
                if yd == 2:
                    nd = 1 if i == 0 else seq[i+1][1] if i < 20 + nvo else 0
                    if i == 2:
                        a(f's_cbranch_vccnz {L("retry")}'); VM('P0'); a('s_barrier'); stamp('a1')
                        rdM(2); rdM(3); a(f's_mov_b32 m0, s{sVer}')
                    if 3 <= i < 7: rdM(i+1)
                else: nd = max([seq[i+1][1] if i < 11 else 0] + [(2,4,6,7)[c_] for c_ in range(4) if ckp[c_] == i])
                if nd > got: a.wds(mt[nd]); got = nd
                if i == g0 and yd == 1: a(f's_cbranch_vccnz {L("retry")}'); stamp('a3')
                if p6 - 1 <= i < p6 + 3: a.wds(tg1[2*(i-p6+1)+1])
                if g0 <= i < g0 + 8: tg1.append(a(g1[i-g0]))
                if i in wr: a(wr[i])
                if p6 + 4 <= i < p6 + 12: tkx = a(kx[i-p6-4])
                if not vmf: VM(f'Q{i}' if i < NQK else f'V{j}')
                if i in va: a(va[i])
                if i == NQK - 1: stamp('b0')
                if j == 1:
                    for x_ in half(KA+4, HK+1): a(x_)
                    wk = a(f'ds_write_b32 v{vXw}, v{HK+1} offset:516')
                if j == pB2: a.wds(wk); a('s_barrier'); stamp('b1')
                if j >= pB2:
                    for _ in range(ntr):
                        if len(tx) < 8: tx.append(a(xr[len(tx)])); busy = i
                if j >= max(g7 - 24, 10 - 2*len(g2)) and g2 and not (tx and busy == i): a(g2.pop(0))
                if j == 2: a(f's_mov_b64 vcc, {sp(sB0)}\ns_cmp_eq_u32 s{sT}, {nsteps-1}')
                if i == 47: a(f's_cbranch_scc1 {L("last")}')
                if 2 <= j and i < 47 and j != pB2:
                    if fv: a(fv.pop(0))
                    elif fz and not any(x_[0] == (0 if len(fz) > 2 else 1) for x_ in vq) and i >= (42 if len(fz) > 2 else 44) - 8*(nvo // 4): a(fz.pop(0))
            fv += fz
        MF = 'v_mfma_f32_16x16x32_bf16'
        p6 = 8
        if ps:
            seq = [('q',s_,u) for u in (0,1) for s_ in range(2,8)] + [('k',6,0),('k',6,1),('k',7,0),('k',7,1)] + [('k',s_,u) for u in (0,1) for s_ in range(2,6)]
            p6 = 12
            for p_ in range(17,20): del va[p_]
            for j, x_ in enumerate(half(QA+4, QP)): va[13+j] = x_
            del wr[20]
            B0 = T+8; B1 = T; DP = T+12
            for u in (0,1):
                wr[10+6*u] = f'ds_write_b64 v{vXw}, {vr(QP,2)} offset:{512*u}\nds_write_b32 v{vXw}, v{QP} offset:{4096+512*u+4}'
                rd_ = f'ds_read_b64_tr_b16 {vr(B0+2*u,2)}, v{vKr} offset:{512*u}\nds_read_b64_tr_b16 {vr(B1+2*u,2)}, v{vKr} offset:{4096+512*u}'
                wr[11+6*u] = rd_
            g5 = None
            xr += [f'ds_read2st64_b32 {vr(D0+2*i,2)}, v{T+5} offset0:{2*i} offset1:{2*i+1}' for i in range(2)]
        for i in range(0 if yd else 36):
            if i < 24: P_(*seq[i])
            else: V_()
            if i < 5: a.wds(mt[i+3])
            if p6 - 1 <= i < p6 + 3: a.wds(tg1[2*(i-p6+1)+1])
            G1(i)
            if i in wr: tw = a(wr[i])
            if ps:
                if i == 17: tq = tw
                if i == 16: g5 = stg(('o',5), S0) + stg(('o',6), S1)
                if i in (pad, pad+1):
                    for r in range(2*(i-pad), 2*(i-pad)+2): a(f'ds_add_f32 v{T+5}, v{DP+r} offset:{256*r}')
                if i in g56: a(g5.pop(0))
            elif pKx <= i < pKx + 8: tkx = a(kx[i-pKx])
            VM(f'Q{i}' if i < 24 else f'V{i-24}')
            if i in va: a(va[i])
            if ps and i == pmf:
                a.wds(tq)
                a(f'{MF} {vr(DP,4)}, {vr(KX,4)}, {vr(B0,4)}, 0\n{MF} {vr(DP,4)}, {vr(KX+4,4)}, {vr(B1,4)}, {vr(DP,4)}')
            if i == 23: stamp('b0')
            if i == 25:
                for x_ in half(KA+4, HK+1): a(x_)
                wk = a(f'ds_write_b32 v{vXw}, v{HK+1} offset:516')
            if i == 24 + pB2: a.wds(wk); a('s_barrier'); stamp('b1')
            if i >= 24 + pB2:
                for _ in range(ntr):
                    if len(tx) < len(xr): tx.append(a(xr[len(tx)])); busy = i
            if i >= max(g7, 34 - 2*len(g2)) and g2 and not (tx and busy == i): a(g2.pop(0))
            if i == 26: a(f's_mov_b64 vcc, {sp(sB0)}\ns_cmp_eq_u32 s{sT}, {nsteps-1}')
            if i == 35: a(f's_cbranch_scc1 {L("last")}')
            if 26 <= i < 35 and i != 24 + pB2 and not (tx and busy == i and ntr > 2) and fv and (len(fv) > 2 or i - 24 > rV): a(fv.pop(0))
        while len(tx) < len(xr): tx.append(a(xr[len(tx)]))
        stamp('c0')
        vf = half(VA, HV) + half(VA+4, HV+1)
        mx = T+4; tm = T+5; ma = T+6; vOr = T+4
        if not ps: g5 = stg(('o',5), S0); g6 = stg(('o',6), S1)
        P = T+8; Dd = T+10; Ba = XO; Bb = XO+4; Po = XO+8; Ls = XO+12
        MF = 'v_mfma_f32_16x16x32_bf16'
        lastc = list(vf)
        mg = [f'v_cndmask_b32_dpp v{D0+r}, v{D1+r}, v{D0+r}, vcc quad_perm:[0,1,0,1] {DPPM}' for r in range(4)] + \
             [f'v_max3_f32 v{mx}, v{D0}, v{D0+1}, v{D0+2}', f'v_max_f32 v{mx}, v{mx}, v{D0+3}']
        rest = g2 + fv
        a.wds(tx[{0: 7, 1: 3, 2: 1}[wx]])
        Dq = Dm
        if ps:
            Dq = D1; g6 = g2 + g5; rest = []
            fl_ = fv + vf[:3] + mg[4:] + vf[3:]
            for i in range(4):
                r = X+4*i; a(f'{MF} {vr(Dq,4)}, {vr(r,4)}, {vr(r,4)}, {vr(Dq,4) if i else 0}')
                stamp(f'M{i}')
                if i == 1: a.wds(tx[9])
                for _ in range(2):
                    if g6: a(g6.pop(0))
                for _ in range(2 if i else 1): a(fl_.pop(0))
            for x_ in fl_: a(x_)
        for i in range(0 if ps else 12):
            if i < 8:
                w_ = i//2; d = (D0, D1)[i%2]
                a(f'{MF} {vr(d,4)}, {vr(S+4*i,4)}, {vr(X+4*w_,4)}, {vr(d,4) if w_ else 0}')
            else:
                r = X+4*(i-8); a(f'{MF} {vr(Dm,4)}, {vr(r,4)}, {vr(r,4)}, {vr(Dm,4) if i > 8 else 0}')
            stamp(f'M{i}')
            if i == 0:
                for _ in range(2):
                    if rest: a(rest.pop(0))
            elif i == 1 and wx == 2: a.wds(tx[3]); a(vf.pop(0))
            elif i == 3 and wx: a.wds(tx[7]); a(vf.pop(0))
            elif i < 4: a(vf.pop(0)); a(vf.pop(0))
            elif i < 8:
                a(g5.pop(0))
                if vf: a(vf.pop(0))
                elif rest: a(rest.pop(0))
                elif i >= 6: a(g6.pop(0))
            elif i == 8: a(g6.pop(0)); a(g6.pop(0))
            else: a(mg.pop(0)); a(mg.pop(0))
        assert not rest
        for x_ in g6: a(x_)
        stamp('c1')
        a(f'v_max_f32_dpp v{mx}, v{mx}, v{mx} quad_perm:[2,3,0,1] {DPPM}')
        a(f'v_mul_f32 v{mx}, v{mx}, v{Cq}')
        a(f'v_mul_f32_dpp v{Dm}, v{Dq+2}, v{Cq} quad_perm:[0,1,0,1] {DPPM}')
        a(f'v_mul_f32_dpp v{Dm+1}, v{Dq+3}, v{Cq} quad_perm:[0,1,0,1] {DPPM}')
        a(f'v_max3_f32 v{tm}, v{mx}, v{Dm}, v{Dm+1}')
        a(f'v_max3_f32 v{mx}, v{mx}, v{Dm}, v{Dm+1}')
        a(z0.pop()); a(z0.pop())
        a(f'v_permlane16_swap_b32 v{mx}, v{tm}\nv_max_f32 v{ma}, v{mx}, v{tm}\nv_max_f32 v{mx}, v{mx}, v{tm}')
        a(z0.pop()); a(z0.pop())
        a(f'v_permlane32_swap_b32 v{mx}, v{ma}\nv_max_f32 v{mx}, v{mx}, v{ma}')
        ex = [Dm, Dm+1, T, T+1, T+2, T+3]
        for r in ex[:2]: a(f'v_sub_f32 v{r}, v{r}, v{mx}')
        for r in ex[2:]: a(f'v_fma_f32 v{r}, v{r}, v{Cq}, -v{mx}')
        for r in ex[:4]: a(f'v_exp_f32 v{r}, v{r}')
        a(f'v_cvt_pk_bf16_f32 v{Dm}, v{Dm}, v{Dm+1}')
        for r in ex[4:]: a(f'v_exp_f32 v{r}, v{r}')
        stamp('c2')
        a.wvm(max(vt['d2'], vt['d3'], vt['rm']))
        a(f"""
        v_cvt_pk_bf16_f32 v{P}, v{T}, v{T+1}
        v_and_b32 v{Dd}, v{Dm}, v{vM0}
        v_and_b32 v{Dd+1}, v{Dm}, v{vM1}
        v_cvt_pk_bf16_f32 v{P+1}, v{T+2}, v{T+3}
        v_and_b32 v{Ba}, v{P}, v{vM0}
        v_mfma_f32_16x16x16_bf16 {vr(Po,4)}, {vr(HV,2)}, {vr(Dd,2)}, 0
        v_and_b32_dpp v{Ba+2}, v{P}, v{vM0} quad_perm:[2,3,0,1] {DPPM}
        v_and_b32 v{Ba+1}, v{P+1}, v{vM0}
        v_mfma_f32_16x16x32_bf16 {vr(Ls,4)}, {vr(On,4)}, {vr(P,4)}, 0
        v_and_b32_dpp v{Ba+3}, v{P+1}, v{vM0} quad_perm:[2,3,0,1] {DPPM}
        v_and_b32_dpp v{Bb}, v{P}, v{vM1} quad_perm:[2,3,0,1] {DPPM}
        v_and_b32_dpp v{Bb+1}, v{P+1}, v{vM1} quad_perm:[2,3,0,1] {DPPM}
        v_mfma_f32_16x16x32_bf16 {vr(Po,4)}, {vr(VX,4)}, {vr(Ba,4)}, {vr(Po,4)}
        v_and_b32 v{Bb+2}, v{P}, v{vM1}
        v_and_b32 v{Bb+3}, v{P+1}, v{vM1}
        v_and_b32 v{vOr}, -9, v{vOw}
        v_xor_b32 v{vOr+1}, 512, v{vOr}
        v_mfma_f32_16x16x32_bf16 {vr(Po,4)}, {vr(VX+4,4)}, {vr(Bb,4)}, {vr(Po,4)}
        v_add_f32_dpp v{Ls}, v{Ls}, v{Ls} quad_perm:[2,3,0,1] {DPPM}
        v_rcp_f32 v{Ls}, v{Ls}
        v_xor_b32 v{vOr+2}, 1024, v{vOr}
        v_xor_b32 v{vOr+3}, 1536, v{vOr}
        """)
        assert not z0
        if rlate: a(f'v_mov_b64 {vr(T,2)}, -1' + ('' if rdw else f'\nv_mov_b64 {vr(T+2,2)}, -1'))
        a(f"""
        v_mul_f32 v{Po}, v{Po}, v{Ls}
        v_mul_f32 v{Po+1}, v{Po+1}, v{Ls}
        v_mul_f32 v{Po+2}, v{Po+2}, v{Ls}
        v_mul_f32 v{Po+3}, v{Po+3}, v{Ls}
        v_cvt_pk_bf16_f32 v{Po}, v{Po}, v{Po+1}
        v_cvt_pk_bf16_f32 v{Po+1}, v{Po+2}, v{Po+3}
        """)
        O = XO
        ow = a(f'ds_write_b64 v{vOw}, {vr(Po,2)}')
        ot = [a(f'ds_read_b128 {vr(O,4)}, v{vOr}')]
        stamp('c3')
        VM('C0')
        a.wds(ow); a('s_barrier')
        stamp('d0')
        for k_ in range(1,4): ot.append(a(f'ds_read_b128 {vr(O+4*k_,4)}, v{vOr+k_}'))
        VM('C1')
        PS = VA
        def W_(G, ki): SM(M+4*G, O+4*ki, 'o', 2*ki+G//2, G%2)
        def cv(G): return [f'v_cvt_pk_bf16_f32 v{PS+2*G+h_}, v{M+4*G+2*h_}, v{M+4*G+2*h_+1}' for h_ in range(2)]
        a.wds(ot[0])
        for G in range(4):
            W_(G, 0); VM(f'W{G}')
        a.wds(ot[1])
        stamp('d1')
        if w4:
            def st_(G):
                c_ = cv(G)
                if dw: return sum([[c_[h_], f'v_min_u32 v{PS+2*G+h_}, -2, v{PS+2*G+h_}', f'global_store_dword v{vPst}, v{PS+2*G+h_}, {sp((sSt0,sSt1)[h_])} offset:{2048*G-4096}{stc}'] for h_ in range(2)], [])
                return [c_[0], f'v_min_u32 v{PS+2*G}, -2, v{PS+2*G}', c_[1], f'global_store_dwordx2 v{vPst}, {vr(PS+2*G,2)}, {sp(sSt0)} offset:{2048*G-4096}{stc}']
            fl_ = [f'v_mov_b32 v{T+2}, 0x3f80', f'v_mov_b32 v{T+3}, 0x3f800000', f'v_cndmask_b32 v{T+2}, v{T+2}, v{T+3}, {sp(sPm)}']
            W_(0,1); a.wds(ot[2]); W_(0,2); a.wds(ot[3]); W_(0,3)
            if wo >= 4:
                sd = lambda G, h_: f'global_store_dword v{vPst}, v{PS+2*G+h_}, {sp((sSt0,sSt1)[h_])} offset:{2048*G-4096}{stc}'
                for G in range(1,4):
                    c_ = cv(G-1)
                    W_(G,1)
                    if G > 1 and wo == 4: a(sd(G-2,1))
                    a(fl_.pop(0))
                    W_(G,2); a(c_[0])
                    if wo == 5: a(c_[1])
                    W_(G,3); a(sd(G-1,0))
                    if wo == 5: a(sd(G-1,1))
                    else: a(c_[1])
                a(f'v_cndmask_b32 v{Sel}, 0, v{T+2}, {sp(sSel)}')
                if wo == 4: a(sd(2,1))
                for i in range(1,4): a(f'v_cndmask_b32 v{Sel+i}, 0, v{T+2}, {sp(sSel+2*i)}')
                for x_ in cv(3) + [sd(3,0), sd(3,1)]: a(x_)
            for G in range(1,4 if wo < 4 else 0):
                q_ = st_(G-1)
                W_(G,1); a(fl_.pop(0))
                if wo == 2 and G == 1:
                    for x_ in q_: a(x_)
                    q_ = []
                W_(G,2)
                for _ in range((6 if wo >= 1 and G == 1 else 3) if dw else 4 if wo >= 1 and G == 1 else 2):
                    if q_: a(q_.pop(0))
                W_(G,3)
                for x_ in q_: a(x_)
            if wo < 4:
                for i in range(4): a(f'v_cndmask_b32 v{Sel+i}, 0, v{T+2}, {sp(sSel+2*i)}')
                for x_ in st_(3): a(x_)
        else:
            W_(0,1); VM('W4'); W_(1,1); a.wds(ot[2]); VM('W5'); W_(0,2); VM('W6'); W_(1,2); a.wds(ot[3]); VM('W7'); W_(0,3); VM('W8'); W_(1,3)
            c0 = cv(0); c1 = cv(1); c2 = cv(2); c3 = cv(3)
            W_(2,1); a(c0[0])
            W_(2,2); a(c0[1]); a(c1[0])
            W_(2,3); a(c1[1]); a(f'v_min_u32 v{PS}, -2, v{PS}')
            W_(3,1); a(f'global_store_dwordx4 v{vPst}, {vr(PS,4)}, {sp(sSt0)}{stc}')
            W_(3,2); a(c2[0])
            W_(3,3); a(c2[1]); a(f'v_min_u32 v{PS+4}, -2, v{PS+4}')
            a(f'v_mov_b32 v{T+2}, 0x3f80\nv_mov_b32 v{T+3}, 0x3f800000')
            a(f'v_cndmask_b32 v{T+2}, v{T+2}, v{T+3}, {sp(sPm)}')
            a(c3[0]); a(c3[1])
            a(f'global_store_dwordx4 v{vPst}, {vr(PS+4,4)}, {sp(sSt1)}{stc}')
        stamp('h0')
        if 'ack' in opt: a('s_waitcnt vmcnt(0)'); stamp('hk')
        n0 = len(a.items)
        for x_ in stg(('q',0), S0) + stg(('q',1), S1): a(x_)
        if not w4:
            for i in range(4): a(f'v_mov_b32 v{Sel+i}, v{T+2}' if ra == 1 else f'v_cndmask_b32 v{Sel+i}, 0, v{T+2}, {sp(sSel+2*i)}')
            if ra in (1,2): a(f'v_lshrrev_b32 v{T+1}, {3-ra}, v{vLin}\nv_cndmask_b32 v{T+3}, -1, -2, {sp(sSel)}')
            a.nops(preA - (len(a.items) - n0))
        else:
            cur = len(a.items) - n0
            for w_ in range(4):
                a.nops(w4[w_] - cur - (2 if w_ < 3 else 0)); cur = max(cur + (2 if w_ < 3 else 0), w4[w_])
                if w_ < 3: a(f's_cmp_eq_u32 s{sW}, {w_}\ns_cbranch_scc1 {L("p0")}')
            a.label(L('p0'))
        R1 = M+8; R2 = P2
        def redA(R):
            if ra == 2:
                a(f"""
                s_waitcnt vmcnt(6)
                v_mfma_f32_16x16x32_bf16 {vr(Dr,4)}, {vr(Sel,4)}, {vr(R,4)}, 0
                s_waitcnt vmcnt(4)
                v_mfma_f32_16x16x32_bf16 {vr(Dr,4)}, {vr(Sel,4)}, {vr(R+4,4)}, {vr(Dr,4)}
                v_max3_u32 v{T}, v{R}, v{R+2}, v{R+4}
                v_max_u32 v{T}, v{T}, v{R+6}
                v_cmp_gt_u32 vcc, v{T}, v{T+3}
                """)
                return
            if ra == 4:
                a(f"""
                s_waitcnt vmcnt(3)
                v_mfma_f32_16x16x32_bf16 {vr(Dr,4)}, {vr(Sel,4)}, {vr(R,4)}, 0
                {f'v_max3_u32 v{T}, v{R}, v{R+1}, v{R+2}' if dw and mk == 8 else ''}
                s_waitcnt vmcnt(2)
                v_mfma_f32_16x16x32_bf16 {vr(Dr,4)}, {vr(Sel,4)}, {vr(R+4,4)}, {vr(Dr,4)}
                {f'v_max3_u32 v{T}, v{T}, v{R+3}, v{R+4}{NL}v_max3_u32 v{T}, v{T}, v{R+5}, v{R+6}{NL}v_max_u32 v{T}, v{T}, v{R+7}' if dw and mk == 8 else f'v_max3_u32 v{T}, v{R}, v{R+2}, v{R+4}{NL}v_max_u32 v{T}, v{T}, v{R+6}' if w4 and not dw else f'v_max_u32 v{T}, v{R}, v{R+4}'}
                v_cmp_eq_u32 vcc, -1, v{T}
                """)
                return
            if ra:
                a(f"""
                s_waitcnt vmcnt(12)
                v_mfma_f32_16x16x32_bf16 {vr(Dr,4)}, {vr(R,4)}, {vr(Sel,4)}, 0
                v_max3_u32 v{T}, v{R}, v{R+1}, v{R+2}
                s_waitcnt vmcnt(8)
                v_mfma_f32_16x16x32_bf16 {vr(Dr,4)}, {vr(R+4,4)}, {vr(Sel,4)}, {vr(Dr,4)}
                v_max3_u32 v{T}, v{T}, v{R+3}, v{R+4}
                v_max3_u32 v{T}, v{T}, v{R+5}, v{R+6}
                v_max_u32 v{T}, v{T}, v{R+7}
                v_cmp_gt_u32 vcc, v{T}, v{T+3}
                """)
                return
            a(f"""
            s_waitcnt vmcnt(3)
            v_mfma_f32_16x16x32_bf16 {vr(Dr,4)}, {vr(R,4)}, {vr(Sel,4)}, 0
            s_waitcnt vmcnt(2)
            v_mfma_f32_16x16x32_bf16 {vr(Dr,4)}, {vr(R+4,4)}, {vr(Sel,4)}, {vr(Dr,4)}
            v_max_u32 v{T}, v{R}, v{R+4}
            v_cmp_eq_u32 vcc, -1, v{T}
            """)
        ldA(R1)
        a.nops(gapA - {0:2, 1:8, 2:4, 4:2}[ra])
        a.label(L('pa'))
        ldA(R2)
        redA(R1)
        if ft: a(f's_cbranch_vccnz {L("pb")}')
        else:
            a(f's_cbranch_vccz {L("qa")}')
            ldA(R1); spin()
            redA(R2)
            a(f's_cbranch_vccnz {L("pa")}')
        a.label(L('qa'))
        stamp('h1')
        if ra > 1:
            for ro in ((8,) if ra == 2 else (8,4)):
                for r in range(2): a(f'v_add_f32_dpp v{Dr+r}, v{Dr+r}, v{Dr+r} row_ror:{ro} {DPPM}')
            a(f"""
            s_mov_b64 exec, {sp(sPub)}
            v_cvt_pk_bf16_f32 v{Dr}, v{Dr}, v{Dr+1}
            {'' if nc else f'v_min_u32 v{Dr}, -2, v{Dr}'}
            global_store_dword v{vMst}, v{Dr}, {sp(sMst)}{stc}
            """)
        elif ra: a(f"""
        s_mov_b64 exec, {sp(sPub)}
        v_cvt_pk_bf16_f32 v{Dr}, v{Dr}, v{Dr+1}
        v_cvt_pk_bf16_f32 v{Dr+1}, v{Dr+2}, v{Dr+3}
        v_min_u32 v{Dr}, -2, v{Dr}
        global_store_dwordx2 v{vMst}, {vr(Dr,2)}, {sp(sMst)}{stc}
        """)
        else: a(f"""
        v_permlane32_swap_b32 v{Dr}, v{Dr+2}
        v_permlane32_swap_b32 v{Dr+1}, v{Dr+3}
        v_add_f32 v{Dr}, v{Dr}, v{Dr+2}
        v_add_f32 v{Dr+1}, v{Dr+1}, v{Dr+3}
        v_permlane16_swap_b32 v{Dr}, v{Dr+1}
        v_add_f32 v{Dr}, v{Dr}, v{Dr+1}
        v_mov_b32_dpp v{Dr+1}, v{Dr} quad_perm:[1,0,3,2] {DPPM}
        v_cvt_pk_bf16_f32 v{Dr}, v{Dr}, v{Dr+1}
        s_mov_b64 exec, {sp(sPub)}
        v_min_u32 v{Dr}, -2, v{Dr}
        global_store_dword v{vMst}, v{Dr}, {sp(sMst)}{stc}
        """)
        stamp('h2')
        a(f"""
        s_mov_b64 exec, -1
        """)
        if w4 and bb: a('s_barrier')
        stamp('h3')
        tstamp(f's{sT}')
        if prof and len(stamps) >= 2:
            a('s_waitcnt lgkmcnt(0)')
            for i in range(len(stamps)-1): a(f's_sub_u32 s{sA}, s{sP+2*i+2}, s{sP+2*i}\ns_add_u32 s{sP+21+i}, s{sP+21+i}, s{sA}')
        if prof:
            a(f's_cmp_lg_u32 s{sT}, 3\ns_cbranch_scc1 {L("pf1")}\ns_memtime {sp(sP+28)}\ns_mov_b32 s{sSpin}, 0')
            for i in range(6): a(f's_mov_b32 s{sP+21+i}, 0')
            a(f'{L("pf1")}:\ns_cmp_lg_u32 s{sT}, {nsteps-2}\ns_cbranch_scc1 {L("pf2")}\ns_memtime {sp(sP)}\ns_waitcnt lgkmcnt(0)\ns_sub_u32 s{sP+20}, s{sP}, s{sP+28}\n{L("pf2")}:')
        a(f's_add_u32 s{sT}, s{sT}, 1\ns_branch {L("step")}')
        if ft:
            a.label(L('pb'))
            ldA(R1); spin()
            redA(R2)
            a(f's_cbranch_vccnz {L("pa")}\ns_branch {L("qa")}')
        a.label(L('rp'))
        if ps: a(f'v_lshrrev_b32 v{T+6}, 2, v{vLin}')
        a(f'global_load_dword v{T+6}, v{T+6 if ps else T+5}, {sp(sFK)} sc1')
        spin()
        a('s_waitcnt vmcnt(0)')
        fkeval(T+6)
        a(f's_cmp_lt_u32 s{sA}, s{sRdy}\ns_cbranch_scc1 {L("rk")}\ns_sleep 2\ns_branch {L("rp")}')
        a.label(L('last'))
        if TL: a(f's_memtime s[94:95]\ns_waitcnt lgkmcnt(0)\ns_sub_u32 s94, s94, s92')
        a('s_nop 7')
        for x_ in lastc: a(x_)
        a(f's_branch {LE}')
    loop(L, stc)
    if mega: loop(lambda x: L('s_' + x), ' sc1', *((8, 0) if dw else ()))
    a.label(L('end'))
    a('s_mov_b64 exec, -1\ns_nop 7')
    a(f'''
    s_add_u32 s{sKVM}, s{sKVM}, {0 if kvnow else 32*4096}
    s_addc_u32 s{sKVM+1}, s{sKVM+1}, 0
    global_store_dwordx4 v{vLin}, {vr(HK,4)}, {sp(sKVM)} sc1
    v_mov_b32 v{T}, 0x41
    s_waitcnt vmcnt(0)
    s_barrier
    s_mov_b64 exec, {sp(sFm)}
    global_store_dword v{vLin}, v{T}, {sp(sFl)} sc1
    s_mov_b64 exec, -1
    ''')
    if wb == 1: a(f's_cmp_lg_u32 s{sW}, 0\ns_cbranch_scc1 {L("nwb")}\nbuffer_wbl2 sc1\n{L("nwb")}:')
    if wb == 2: a(f's_lshl_b32 s{sA}, s{sH}, 2\ns_add_u32 s{sA}, s{sA}, s{sW}\ns_cmp_lg_u32 s{sA}, 0\ns_cbranch_scc1 {L("nwb")}\nbuffer_wbl2 sc1\n{L("nwb")}:')
    if prof:
        for i in range(7): a(f'v_mov_b32 v{T+i}, s{sP+20+i}')
        a(f'''
        v_mov_b32 v{T+7}, s{sSpin}
        s_lshl_b32 s{sA}, s{sH}, 2
        s_add_u32 s{sA}, s{sA}, s{sW}
        s_lshl_b32 s{sA}, s{sA}, 5
        s_add_u32 s{sA}, s{sA}, {WS_PROF}
        v_mov_b32 v{T+8}, s{sA}
        s_mov_b64 exec, 1
        global_store_dwordx4 v{T+8}, {vr(T,4)}, {sp(sWs)}
        global_store_dwordx4 v{T+8}, {vr(T+4,4)}, {sp(sWs)} offset:16
        s_mov_b64 exec, -1
        ''')
    tl(a, 4, T, 0)
    a('s_waitcnt vmcnt(0) lgkmcnt(0)')

def standalone(name='chain_kernel', **kw):
    a = Asm()
    a.raw(khead(name))
    a(f'''
    s_load_dwordx2 {sp(sMem)}, s[0:1], 8
    s_load_dwordx4 s[8:11], s[0:1], 24
    s_load_dwordx2 {sp(sWq)}, s[0:1], 16
    s_load_dwordx2 {sp(sWo)}, s[0:1], 40
    s_load_dwordx2 {sp(sDbg)}, s[0:1], 104
    s_load_dwordx2 {sp(sWs)}, s[0:1], 112
    s_getreg_b32 s{sA}, hwreg(HW_REG_XCC_ID)
    s_and_b32 s{sA}, s{sA}, 15
    s_mov_b32 s{sXcc}, s{sA}
    s_waitcnt lgkmcnt(0)
    s_cmp_lg_u32 s{sA}, 0
    s_cbranch_scc1 L_done_{name}
    v_mov_b32 v1, 0
    v_mov_b32 v2, 1
    v_lshrrev_b32 v4, 6, v0
    v_readfirstlane_b32 s{sW}, v4
    s_cmp_lg_u32 s{sW}, 0
    s_cbranch_scc1 L_t_{name}
    s_mov_b64 exec, 1
    global_atomic_add v3, v1, v2, {sp(sDbg)} offset:252 sc0 sc1
    s_waitcnt vmcnt(0)
    ds_write_b32 v1, v3
    s_waitcnt lgkmcnt(0)
    s_mov_b64 exec, -1
    L_t_{name}:
    s_barrier
    ds_read_b32 v3, v1
    s_waitcnt lgkmcnt(0)
    v_readfirstlane_b32 s{sH}, v3
    s_barrier
    s_cmp_gt_u32 s{sH}, 31
    s_cbranch_scc1 L_done_{name}
    ''')
    chain(a, name, **kw)
    a.label(f'L_done_{name}')
    a('s_endpgm')
    bad = a.check_branches()
    assert bad == 0
    return a

if __name__ == '__main__':
    import sys
    variants = eval(sys.argv[1]) if len(sys.argv) > 1 else [dict()]
    out = ''.join(f'; @launch kernel=c{i}_kernel grid=(256,1,1) block=(256,1,1) lds=163840\n' for i in range(len(variants)))
    out += '.amdgcn_target "amdgcn-amd-amdhsa--gfx950"\n.text\n'
    for i, v in enumerate(variants):
        a = standalone(f'c{i}_kernel', prof=True, **v); out += a.text()
    out += '.section .rodata,"a"\n' + ''.join(kdesc(f'c{i}_kernel') for i in range(len(variants)))
    open('chain.s','w').write(out)
    open('chain.json','w').write(repr(variants))
```

```python
from asmlib import *
import gen_chain as C
from gen_chain import sp, sMem,sWq,sWk,sWv,sWo,sDbg,sWs,sH,sW,sXcc,QSCALE,WS_KVM,f32,WS_FL,FL_K,FL_G,FL_P
import math
NAME = 'gated_mix__memory_aug_recurrent_mem_tr__glu_gated_bilinear__prompt_kernel'
WS_QX = 64<<20; WS_ACT = 128<<20; ACT_T = 180224; WS_F2 = 63<<20
WSPIN = 60000
WS_IB = 96<<20; FL_X = 24576
def TM(): return X.get('tm', 128)
sGrp = 20; sSpin = 21; sA, sB, sC, sD = 22, 23, 24, 25
sX, sWg, sWu, sWd, sGw, sOut = 30, 32, 34, 36, 38, 40
MF = 'v_mfma_f32_16x16x32_bf16'
X = {}
def NG3(): return X.get('ng3', 4)

def add64(a, d, s, off):
    o = f's{off}' if isinstance(off, str) is False and False else off
    a(f's_add_u32 s{d}, s{s}, {off}\ns_addc_u32 s{d+1}, s{s+1}, 0')

def poll(a, lab, loads, check, sl=8):
    a(f"""
    s_mov_b32 s{sSpin}, 0
    {lab}_p:
    {loads}
    s_add_u32 s{sSpin}, s{sSpin}, 1
    s_cmp_gt_u32 s{sSpin}, {WSPIN}
    s_cbranch_scc1 {lab}_b
    s_waitcnt vmcnt(0)
    {check}
    s_cbranch_vccz {lab}_b
    s_sleep {sl}
    s_branch {lab}_p
    {lab}_b:
    s_waitcnt vmcnt(0)
    """)

class Filt:
    def __init__(s, a): s.__dict__['a'] = a
    def __getattr__(s, k): return getattr(s.a, k)
    def __setattr__(s, k, v): setattr(s.a, k, v)
    def __call__(s, t):
        if t.startswith('global_store_dwordx4 v6'):
            if X.get('nost'): return None
            if X.get('plain'): t = t.replace(' sc1', '')
            if X.get('nt'): t = t.replace(' sc1', ' sc1 nt')
            if X.get('stb'): t = t.replace(' sc1', X['stb'])
        return s.a(t)
def t1(a):
    a = Filt(a)
    sTile, sBuf, sStr, sW0, sW1, sO0, sO1, sBlk, sM, sXb = 44, 45, 46, 48, 50, 52, 54, 56, 57, 58
    sStep, sFo, sFb = 47, 60, 62
    vOne, vFo, vPf, vPr, vRa, vRd, vXr = 14, 15, 7, 128, 129, 130, 131
    XR = 23; NB1 = X.get('nb1', 16)
    ACC = 16; WF = 80; PK = 112
    vLane, vN, vG, vLin, vTr, vRow, vCh, vA, vXo = 3, 4, 5, 6, 8, 10, 11, 12, 13
    acc = lambda T, hf, v: ACC + 16*T + 8*hf + 4*v
    def prefetch(nk=3, st=896):
        a(f'''
        s_sub_u32 s{sA}, s{sGrp}, 1
        s_lshl_b32 s{sB}, s{sH}, 2
        s_add_u32 s{sB}, s{sB}, s{sW}
        s_mul_i32 s{sB}, s{sB}, 7
        s_add_u32 s{sA}, s{sA}, s{sB}
        v_and_b32 v1, 63, v0
        v_lshlrev_b32 v1, 7, v1
        ''')
        for k in range(nk):
            a(f'''
            s_min_u32 s{sA}, s{sA}, 2047
            s_bitcmp1_b32 s{sA}, 9
            s_cselect_b64 {sp(sO0)}, {sp(sWk)}, {sp(sWq)}
            s_cselect_b64 {sp(sO1)}, {sp(sWo)}, {sp(sWv)}
            s_bitcmp1_b32 s{sA}, 10
            s_cselect_b64 {sp(sO0)}, {sp(sO1)}, {sp(sO0)}
            s_and_b32 s{sB}, s{sA}, 511
            s_lshl_b32 s{sB}, s{sB}, 13
            s_add_u32 s{sO0}, s{sO0}, s{sB}
            s_addc_u32 s{sO0+1}, s{sO0+1}, 0
            global_load_dword v{vPf}, v1, {sp(sO0)}{X.get('pfc', '')}
            s_add_u32 s{sA}, s{sA}, {st}
            ''')
    def pfo(mats=None):
        a(f'''
        s_sub_u32 s{sA}, s{sGrp}, 5
        s_lshl_b32 s{sA}, s{sA}, 7
        s_lshl_b32 s{sB}, s{sH}, 2
        s_add_u32 s{sA}, s{sA}, s{sB}
        s_add_u32 s{sA}, s{sA}, s{sW}
        v_and_b32 v1, 63, v0
        v_lshlrev_b32 v1, {X.get('pfs', 7)}, v1
        {'v_mov_b32 v2, 0' if set(mats or X.get('pfm', 'o')) & set('CDQ') else ''}
        s_cmp_lt_u32 s{sGrp}, 5
        s_cselect_b64 exec, 0, -1
        ''')
        ps_ = X.get('pfs', 7); nr_ = 512 << (7 - ps_)
        for mat in (mats or X.get('pfm', 'o')):
            if mat in 'CD':
                a(f'''
                v_and_b32 v2, 63, v0
                v_lshlrev_b32 v2, 10, v2
                s_lshr_b32 s{sB}, s{sA}, 2
                s_lshl_b32 s{sB}, s{sB}, 1
                s_and_b32 s{sC}, s{sA}, 1
                s_add_u32 s{sB}, s{sB}, s{sC}
                s_cmp_eq_u32 s{sGrp}, 6
                s_cselect_b64 {sp(sO0)}, {sp(sWv)}, {sp(sWk)}
                s_cmp_eq_u32 s{sGrp}, 7
                s_cselect_b64 {sp(sO0)}, {sp(sWq)}, {sp(sO0)}
                s_and_b32 s{sB}, s{sB}, 63
                s_lshl_b32 s{sB}, s{sB}, 16
                s_add_u32 s{sO0}, s{sO0}, s{sB}
                s_addc_u32 s{sO0+1}, s{sO0+1}, 0
                s_mov_b64 {sp(sO1)}, exec
                s_bitcmp{0 if mat == 'C' else 1}_b32 s{sW}, 1
                s_cselect_b64 exec, exec, 0
                global_load_dword v{vPf}, v2, {sp(sO0)} offset:{384 if mat == 'C' else 256}
                s_mov_b64 exec, {sp(sO1)}
                ''')
                continue
            if mat == 'Q':
                a(f'''
                v_and_b32 v2, 3, v0
                v_lshlrev_b32 v2, 6, v2
                v_bfe_u32 v3, v0, 2, 4
                v_lshl_add_u32 v2, v3, 10, v2
                v_add_u32 v2, 256, v2
                s_min_u32 s{sB}, s{sA}, 255
                s_lshl_b32 s{sB}, s{sB}, 14
                s_add_u32 s{sO0}, s{sWq}, s{sB}
                s_addc_u32 s{sO0+1}, s{sWq+1}, 0
                global_load_dword v{vPf}, v2, {sp(sO0)}
                v_and_b32 v3, 63, v0
                ''')
                continue
            b_ = dict(q=sWq, k=sWk, v=sWv, o=sWo)[mat]
            for k in range((nr_ + 383) // 384):
                a(f'''
                s_add_u32 s{sB}, s{sA}, {384*k}
                s_min_u32 s{sB}, s{sB}, {nr_-1}
                s_lshl_b32 s{sB}, s{sB}, {ps_+6}
                s_add_u32 s{sO0}, s{b_}, s{sB}
                s_addc_u32 s{sO0+1}, s{b_+1}, 0
                global_load_dword v{vPf}, v1, {sp(sO0)}
                ''')
        a('s_mov_b64 exec, -1')
    if X.get('pf') == 1: prefetch()
    if X.get('pf') == 5: pfo()
    if X.get('pfe'): pfo(X['pfe'])
    a(f'''
    s_add_u32 s{sFb}, s{sWs}, {WS_FL}
    s_addc_u32 s{sFb+1}, s{sWs+1}, 0
    v_mov_b32 v{vOne}, 1
    s_cmp_lg_u32 s{sGrp}, 7
    s_cbranch_scc1 Lt1_nz
    s_cmp_gt_u32 s{sH}, 16
    s_cbranch_scc1 Lt1_nz
    s_cmp_eq_u32 s{sH}, 16
    s_cselect_b32 s{sA}, 0, -1
    v_mov_b32 v{PK}, s{sA}
    v_mov_b32 v{PK+1}, s{sA}
    v_mov_b32 v{PK+2}, s{sA}
    v_mov_b32 v{PK+3}, s{sA}
    s_lshl_b32 s{sA}, s{sH}, 15
    s_add_u32 s{sA}, s{sA}, {C.WS_RA}
    s_cmp_eq_u32 s{sH}, 16
    s_cselect_b32 s{sA}, {WS_FL}, s{sA}
    v_lshl_add_u32 v1, v0, 4, s{sA}
    ''')
    for i in range(8):
        a(f'global_store_dwordx4 v1, {vr(PK,4)}, {sp(sWs)} sc1')
        if i < 7: a('v_add_u32 v1, 4096, v1')
    a(f'''
    s_lshl_b32 s{sA}, s{sH}, 10
    s_add_u32 s{sA}, s{sA}, {C.WS_RM}
    v_lshl_add_u32 v1, v0, 2, s{sA}
    global_store_dword v1, v{PK}, {sp(sWs)} sc1
    s_lshl_b32 s{sA}, s{sH}, 2
    s_add_u32 s{sA}, s{sA}, 32
    s_cmp_eq_u32 s{sH}, 16
    s_cselect_b32 s{sA}, 160, s{sA}
    s_add_u32 s{sA}, s{sA}, s{sW}
    v_mov_b32 v1, s{sA}
    s_waitcnt vmcnt(0)
    s_mov_b64 exec, 1
    global_store_byte v1, v{vOne}, {sp(sDbg)} sc1
    s_mov_b64 exec, -1
    Lt1_nz:
    ''')
    if X.get('pf') == 3:
        a(f's_cmp_ge_u32 s{sH}, 21\ns_cbranch_scc1 Lt1_npf')
        prefetch(4, 588)
        a.label('Lt1_npf')
    if X.get('nowork'): a('s_waitcnt vmcnt(0)\ns_endpgm')
    if X.get('only0'): a(f's_waitcnt vmcnt(0)\ns_cmp_lt_u32 s{sH}, 21\ns_cbranch_scc1 L_t1e')
    a(f'''
    v_and_b32 v{vLane}, 63, v0
    v_and_b32 v{vN}, 15, v0
    v_lshrrev_b32 v{vG}, 4, v{vLane}
    v_lshlrev_b32 v{vLin}, 4, v{vLane}
    s_sub_u32 s{sB}, s{sGrp}, 5
    s_sub_u32 s{sA}, s{sH}, {NB1}
    s_and_b32 s{sBlk}, s{sA}, 1
    s_add_u32 s{sBlk}, s{sBlk}, 2
    s_lshr_b32 s{sA}, s{sA}, 1
    s_cmp_lt_u32 s{sH}, {NB1}
    s_cselect_b32 s{sBlk}, 1, s{sBlk}
    s_cselect_b32 s{sA}, s{sH}, s{sA}
    s_cselect_b32 s{sStep}, {NB1}, {(32-NB1)//2}
    s_mul_i32 s{sTile}, s{sB}, s{sStep}
    s_add_u32 s{sTile}, s{sTile}, s{sA}
    s_mul_i32 s{sStep}, s{sStep}, 3
    s_lshl_b32 s{sA}, s{sGrp}, 5
    s_add_u32 s{sA}, s{sA}, s{sH}
    s_sub_u32 s{sA}, s{sA}, 32
    s_cmp_lt_u32 s{sGrp}, 5
    s_cselect_b32 s{sBlk}, 0, s{sBlk}
    s_cselect_b32 s{sTile}, s{sA}, s{sTile}
    s_cselect_b32 s{sStep}, 128, s{sStep}
    ; W prefetch rows: 32*((4*(blk-1)+w)&15) + lane%32
    s_lshl_b32 s{sA}, s{sBlk}, 2
    s_add_u32 s{sA}, s{sA}, s{sW}
    s_and_b32 s{sA}, s{sA}, 7
    s_lshl_b32 s{sA}, s{sA}, 6
    v_add_u32 v{vPr}, s{sA}, v{vLane}
    ; DMA lane: row = l/4 + 128w ; chunk = (l%4) ^ (2*bit5)
    v_lshrrev_b32 v{vRow}, 2, v{vLane}
    s_lshl_b32 s{sA}, s{sW}, 7
    v_add_u32 v{vRow}, s{sA}, v{vRow}
    v_lshrrev_b32 v{vCh}, 4, v{vLane}
    v_and_b32 v{vCh}, 2, v{vCh}
    v_xor_b32 v{vCh}, v{vCh}, v{vLane}
    v_and_b32 v{vCh}, 3, v{vCh}
    v_lshlrev_b32 v{vCh}, 4, v{vCh}
    s_mov_b32 s{sBuf}, 0
    ''')
    def wsrc(tag, tile):
        a(f'''
        s_cmp_ge_u32 s{tile}, 192
        s_cbranch_scc1 Lt1_{tag}_gu
        s_lshr_b32 s{sA}, s{tile}, 6
        s_cmp_eq_u32 s{sA}, {X.get('vf', 0)}
        s_cselect_b64 {sp(sW0)}, {sp(sWk)}, {sp(sWv)}
        s_cmp_eq_u32 s{sA}, 2
        s_cselect_b64 {sp(sW0)}, {sp(sWq)}, {sp(sW0)}
        s_and_b32 s{sA}, s{tile}, 63
        s_lshl_b32 s{sA}, s{sA}, 7
        s_add_u32 s{sW0}, s{sW0}, s{sA}
        s_addc_u32 s{sW0+1}, s{sW0+1}, 0
        s_add_u32 s{sW1}, s{sW0}, 64
        s_addc_u32 s{sW1+1}, s{sW0+1}, 0
        s_mov_b32 s{sStr}, 8192
        s_branch Lt1_{tag}_e
        Lt1_{tag}_gu:
        s_min_u32 s{sA}, s{tile}, 234
        s_sub_u32 s{sA}, s{sA}, 192
        s_lshl_b32 s{sA}, s{sA}, 6
        s_add_u32 s{sW0}, s{sWg}, s{sA}
        s_addc_u32 s{sW0+1}, s{sWg+1}, 0
        s_add_u32 s{sW1}, s{sWu}, s{sA}
        s_addc_u32 s{sW1+1}, s{sWu+1}, 0
        s_mov_b32 s{sStr}, 2752
        Lt1_{tag}_e:
        v_mad_u32_u24 v{vA}, v{vRow}, s{sStr}, v{vCh}
        s_lshl_b32 s{sStr}, s{sStr}, 4
        ''')
    def dma(i):
        r = [f's_add_u32 m0, s{sM}, {i*1024}', f'global_load_lds_dwordx4 v{vA}, {sp(sW0)}',
             f's_add_u32 m0, s{sM}, {32768+i*1024}', f'global_load_lds_dwordx4 v{vA}, {sp(sW1)}']
        if i < 7: r.append(f'v_add_u32 v{vA}, s{sStr}, v{vA}')
        return r
    a.label('Lt1_job')
    wsrc('p', sTile)
    a(f's_lshl_b32 s{sM}, s{sW}, 13')
    for i in range(8):
        for x in dma(i): a(x)
    a(f'''
    s_lshl_b32 s{sA}, s{sBlk}, 18
    s_lshl_b32 s{sB}, s{sW}, 16
    s_add_u32 s{sA}, s{sA}, s{sB}
    s_add_u32 s{sXb}, s{sX}, s{sA}
    s_addc_u32 s{sXb+1}, s{sX+1}, 0
    s_mul_i32 s{sD}, s{sW}, {XR*1040}
    s_add_u32 s{sD}, s{sD}, 65536
    v_mov_b32 v{vXo}, v{vLin}
    v_mul_u32_u24 v{vXr}, 1040, v{vN}
    v_lshl_add_u32 v{vXr}, v{vG}, 4, v{vXr}
    v_add_u32 v{vXr}, s{sD}, v{vXr}
    ''')
    xt = {}
    def xdma(r):
        a(f's_add_u32 m0, s{sD}, {(r%XR)*1040 - (r%4)*1024}')
        xt[r] = a(f'global_load_lds_dwordx4 v{vXo}, {sp(sXb)} offset:{(r%4)*1024}')
        if r % 4 == 3: a(f'v_add_u32 v{vXo}, 4096, v{vXo}')
    for r in range(XR): xdma(r)
    if X.get('pf') == 2: prefetch()
    if X.get('pf') == 4: pfo()
    nx = XR
    for T in range(4):
        b = (16*T) % XR
        a(f'v_add_u32 v1, {b*1040}, v{vXr}')
        if b + 16 > XR: a(f'v_cmp_le_u32 vcc, {XR-b}, v{vN}\nv_subrev_u32 v2, {XR*1040}, v1\nv_cndmask_b32 v1, v1, v2, vcc')
        a.wvm(xt[16*T+15])
        for ks in range(16): a(f'ds_read_b128 {vr(64*T+4*ks,4,"a")}, v1 offset:{ks*64}')
        if nx < 64:
            a('s_waitcnt lgkmcnt(0)')
            for r in range(nx, min(nx+16, 64)): xdma(r)
            nx = min(nx+16, 64)
    a(f'''
    v_lshlrev_b32 v{vTr}, 9, v{vG}
    v_and_b32 v1, 12, v{vLane}
    v_lshl_add_u32 v{vTr}, v1, 4, v{vTr}
    v_and_b32 v1, 3, v{vLane}
    v_lshl_add_u32 v{vTr}, v1, 3, v{vTr}
    v_and_b32 v1, 1, v{vG}
    v_lshl_add_u32 v{vTr}, v1, 5, v{vTr}
    v_xor_b32 v{vTr+1}, 32, v{vTr}
    ''')
    a(f'''
    v_mov_b32 v{vFo}, {FL_G+1536}
    s_mov_b64 {sp(sFo)}, 0
    v_mov_b32 v{vRa}, 160
    v_mov_b32 v{vRd}, 0x01010101
    s_cmp_lg_u32 s{sW}, 0
    s_cbranch_scc1 Lt1_n0
    global_load_dword v{vRd}, v{vRa}, {sp(sDbg)} sc1
    Lt1_n0:
    s_waitcnt lgkmcnt(0)
    s_barrier
    ''')
    if C.TL:
        a(f's_cmp_ge_u32 s{sBlk}, 4\ns_cbranch_scc1 Lt1_tile')
        C.tl(a, 1, 1, f's{sGrp}')
    if X.get('dly'):
        a(f's_cmp_lt_u32 s{sGrp}, {X.get("dlg", 5)}\ns_cbranch_scc1 Lt1_tile\ns_cmp_lt_u32 s{sH}, {X.get("dlh", 0)}\ns_cbranch_scc1 Lt1_tile')
        for _ in range(X['dly']): a('s_sleep 33')
    a.label('Lt1_tile')
    if X.get('wpf', 1):
        a(f's_lshl_b32 s{sD}, s{sStep}, 1\ns_add_u32 s{sD}, s{sD}, s{sTile}')
        wsrc('f', sD)
        a(f'''
        s_lshr_b32 s{sStr}, s{sStr}, 4
        v_mul_u32_u24 v1, s{sStr}, v{vPr}
        global_load_dword v{vPf}, v1, {sp(sW0)}
        global_load_dword v{vPf}, v1, {sp(sW1)}
        ''')
    a(f's_add_u32 s{sD}, s{sTile}, s{sStep}')
    wsrc('n', sD)
    a(f's_xor_b32 s{sM}, s{sM}, 65536')
    a(f'''
    s_lshr_b32 s{sA}, s{sTile}, 6
    s_cmp_eq_u32 s{sA}, {1-X.get('vf', 0)}
    s_cbranch_scc1 Lt1_mv
    ''')
    def frags(ks):
        return [f'ds_read_b64_tr_b16 {vr(WF+16*(ks%2)+8*hf+4*v+2*q,2)}, v{vTr+v} offset:{hf*32768+ks*2048+q*256}'
                for hf in range(2) for v in range(2) for q in range(2)]
    def flag(n):
        a(f's_waitcnt vmcnt({n})\ns_mov_b64 exec, {sp(sFo)}\nglobal_store_byte v{vFo}, v{vOne}, {sp(sFb)} sc1\ns_mov_b64 exec, -1')
    def mainloop(swap):
        a.nds = 0
        tg = None
        for x in frags(0): tg = a(x)
        for ks in range(16):
            fill = (frags(ks+1) if ks < 15 else [])
            d = (dma(2*ks) + dma(2*ks+1)) if ks < 4 and not X.get('nodma') else []
            a.wds(tg)
            if ks == X.get('fks', 8): flag(16 + 2*X.get('wpf', 1))
            n = 0
            for hf in range(2):
                for v in range(2):
                    for T in range(4):
                        w_ = vr(WF+16*(ks%2)+8*hf+4*v,4); x_ = vr(64*T+4*ks,4,'a'); c = vr(acc(T,hf,v),4)
                        p, q = (w_, x_) if swap else (x_, w_)
                        a(f'{MF} {c}, {p}, {q}, {c if ks else 0}')
                        if fill and n < 8: tg = a(fill.pop(0))
                        elif d:
                            a(d.pop(0))
                            if d and d[0].startswith('global'): a(d.pop(0))
                        n += 1
            assert not fill and not d
        a(f'''
        v_xor_b32 v{vTr}, 0x10000, v{vTr}
        v_xor_b32 v{vTr+1}, 0x10000, v{vTr+1}
        s_waitcnt vmcnt(0)
        v_cmp_ne_u32 vcc, 0x01010101, v{vRd}
        s_cbranch_vccz Lt1_rd{int(swap)}
        ''')
        poll(a, f'Lt1_r{int(swap)}', f'global_load_dword v{vRd}, v{vRa}, {sp(sDbg)} sc1', f'v_cmp_ne_u32 vcc, 0x01010101, v{vRd}', 8)
        a(f'Lt1_rd{int(swap)}:\ns_barrier')
    def kvbase(base):
        a(f'''
        s_lshl_b32 s{sA}, s{sBlk}, 21
        s_lshl_b32 s{sB}, s{sW}, 19
        s_add_u32 s{sA}, s{sA}, s{sB}
        s_and_b32 s{sB}, s{sTile}, 63
        s_lshl_b32 s{sB}, s{sB}, 12
        s_add_u32 s{sA}, s{sA}, s{sB}
        s_add_u32 s{sA}, s{sA}, {base}
        s_add_u32 s{sO0}, s{sWs}, s{sA}
        s_addc_u32 s{sO0+1}, s{sWs+1}, 0
        s_add_u32 s{sO1}, s{sO0}, {C.KST}
        s_addc_u32 s{sO1+1}, s{sO0+1}, 0
        ''')
    def pack(d, c0, c1):
        a(f'v_cvt_pk_bf16_f32 v{d}, v{c0}, v{c0+1}\nv_cvt_pk_bf16_f32 v{d+1}, v{c0+2}, v{c0+3}')
        a(f'v_cvt_pk_bf16_f32 v{d+2}, v{c1}, v{c1+1}\nv_cvt_pk_bf16_f32 v{d+3}, v{c1+2}, v{c1+3}')
    mainloop(True)
    a(f'''
    s_cmp_ge_u32 s{sTile}, 192
    s_cbranch_scc1 Lt1_eg
    s_mov_b32 s{sC}, 0
    s_cmp_lt_u32 s{sTile}, 128
    s_cbranch_scc1 Lt1_ek
    s_mov_b32 s{sC}, {QSCALE}
    ''')
    for r in range(64): a(f'v_mul_f32 v{ACC+r}, s{sC}, v{ACC+r}')
    a(f's_mov_b32 s{sC}, {WS_QX}')
    a.label('Lt1_ek')
    kvbase(f's{sC}')
    i = 0
    for T in range(4):
        for hf in range(2):
            d = PK + 4*(i%4); i += 1
            pack(d, acc(T,hf,0), acc(T,hf,1))
            a(f'global_store_dwordx4 v{vLin}, {vr(d,4)}, {sp(sO1 if T//2 else sO0)} offset:{hf*2048+(T%2)*1024} sc1')
    if TM() < 128:
        a(f'''
        s_cmp_lg_u32 s{sBlk}, 7
        s_cbranch_scc1 Lt1_next
        s_cmp_ge_u32 s{sTile}, 64
        s_cbranch_scc1 Lt1_next
        s_lshl_b32 s{sA}, s{sW}, 18
        s_lshl_b32 s{sB}, s{sTile}, 11
        s_add_u32 s{sA}, s{sA}, s{sB}
        s_add_u32 s{sA}, s{sA}, {WS_KVM+56*131072}
        s_add_u32 s{sO0}, s{sWs}, s{sA}
        s_addc_u32 s{sO0+1}, s{sWs+1}, 0
        s_add_u32 s{sO1}, s{sO0}, 131072
        s_addc_u32 s{sO1+1}, s{sO0+1}, 0
        v_mov_b64 {vr(WF,2)}, -1
        v_mov_b64 {vr(WF+2,2)}, -1
        ''')
        for j in range(4): a(f'global_store_dwordx4 v{vLin}, {vr(WF,4)}, {sp(sO1 if j//2 else sO0)} offset:{(j%2)*1024} sc1')
    a('s_branch Lt1_next')
    a.label('Lt1_eg')
    a(f'''
    s_lshl_b32 s{sA}, s{sBlk}, 4
    s_lshl_b32 s{sB}, s{sW}, 2
    s_add_u32 s{sA}, s{sA}, s{sB}
    s_mul_i32 s{sA}, s{sA}, {ACT_T}
    s_sub_u32 s{sB}, s{sTile}, 64
    s_lshl_b32 s{sB}, s{sB}, 10
    s_add_u32 s{sA}, s{sA}, s{sB}
    s_add_u32 s{sA}, s{sA}, {WS_ACT}
    s_add_u32 s{sO0}, s{sWs}, s{sA}
    s_addc_u32 s{sO0+1}, s{sWs+1}, 0
    ''')
    for T in range(4):
        for r in range(8): a(f'v_mul_f32 v{acc(T,0,0)+r}, v{acc(T,0,0)+r}, v{acc(T,1,0)+r}')
        d = PK + 4*T
        pack(d, acc(T,0,0), acc(T,0,1))
        a(f'global_store_dwordx4 v{vLin}, {vr(d,4)}, {sp(sO0)} sc1')
        if T < 3: a(f's_add_u32 s{sO0}, s{sO0}, {ACT_T}\ns_addc_u32 s{sO0+1}, s{sO0+1}, 0')
    a('s_branch Lt1_next')
    a.label('Lt1_mv')
    mainloop(False)
    kvbase(C.WS_V)
    i = 0
    for s_ in range(2):
        for hf in range(2):
            for u in range(2):
                d = PK + 4*(i%4); i += 1
                pack(d, acc(2*s_,hf,u), acc(2*s_+1,hf,u))
                a(f'global_store_dwordx4 v{vLin}, {vr(d,4)}, {sp(sO1 if s_ else sO0)} offset:{hf*2048+u*1024} sc1')
    a.label('Lt1_next')
    a(f'''
    s_lshl_b32 s{sA}, s{sBlk}, 2
    s_add_u32 s{sA}, s{sA}, s{sW}
    s_lshl_b32 s{sB}, s{sTile}, 5
    s_add_u32 s{sB}, s{sB}, s{sA}
    s_add_u32 s{sB}, s{sB}, {FL_G-192*32}
    s_lshl_b32 s{sA}, s{sA}, 3
    s_bfe_u32 s{sC}, s{sTile}, 0x50001
    s_lshl_b32 s{sC}, s{sC}, 8
    s_add_u32 s{sA}, s{sA}, s{sC}
    s_lshr_b32 s{sC}, s{sTile}, 6
    s_lshl_b32 s{sC}, s{sC}, 1
    s_add_u32 s{sA}, s{sA}, s{sC}
    s_and_b32 s{sC}, s{sTile}, 1
    s_add_u32 s{sA}, s{sA}, s{sC}
    s_add_u32 s{sA}, s{sA}, {FL_K}
    s_cmp_ge_u32 s{sTile}, 192
    s_cselect_b32 s{sA}, s{sB}, s{sA}
    v_mov_b32 v{vFo}, s{sA}
    s_mov_b64 {sp(sFo)}, 1
    ''')
    if X.get('ef', 1):
        a(f's_cmp_ge_u32 s{sBlk}, {X.get("ef", 1)}\ns_cbranch_scc1 Lt1_nef\ns_add_u32 s{sA}, s{sTile}, s{sStep}\ns_sub_u32 s{sA}, s{sA}, 128\ns_cmp_ge_u32 s{sA}, s{sStep}\ns_cbranch_scc1 Lt1_nef')
        flag(0)
        a(f's_mov_b64 {sp(sFo)}, 0\nLt1_nef:')
    if C.TL:
        a(f's_cmp_ge_u32 s{sTile}, 128\ns_cbranch_scc1 Lt1_ntl\ns_cmp_ge_u32 s{sBlk}, 2\ns_cbranch_scc1 Lt1_ntl')
        C.tl(a, 2, 1, f's{sGrp}')
        a.label('Lt1_ntl')
    if X.get('slp'): a(f's_cmp_lt_u32 s{sBlk}, {X.get("slb", 4)}\ns_cbranch_scc1 Lt1_nsl\ns_sleep {X["slp"]}\nLt1_nsl:')
    a(f'''
    s_add_u32 s{sTile}, s{sTile}, s{sStep}
    s_cmp_lt_u32 s{sTile}, 235
    s_cbranch_scc1 Lt1_tile
    ''')
    flag(0)
    a(f'''
    s_cmp_lg_u32 s{sBlk}, 0
    s_cbranch_scc1 Lt1_end
    s_and_b32 s{sBlk}, s{sH}, 3
    s_add_u32 s{sBlk}, s{sBlk}, 4
    s_lshl_b32 s{sTile}, s{sGrp}, 3
    s_lshr_b32 s{sA}, s{sH}, 2
    s_add_u32 s{sTile}, s{sTile}, s{sA}
    s_sub_u32 s{sTile}, s{sTile}, 8
    s_mov_b32 s{sStep}, 32
    s_branch Lt1_job
    Lt1_end:
    ''')
    C.tl(a, 3, 1, f's{sGrp}')

def t2(a):
    sT, sHd, sK, sQ, sKM, sO, sFl, sMk, sF2, sV = 44, 45, 46, 48, 50, 52, 54, 56, 64, 66
    vLane, vN, vG, vLin, vKw, vKr, vL2, vNeg = 3, 4, 5, 6, 7, 8, 9, 10
    Q, KX, VX, KM, KT, S, O, P = 16, 48, 80, 112, 128, 144, 176, 240
    DP = 'row_mask:0xf bank_mask:0xf'
    a(f'''
    s_sub_u32 s{sT}, s{sGrp}, {NG3()+1}
    s_lshl_b32 s{sT}, s{sT}, 2
    s_lshr_b32 s{sA}, s{sH}, 3
    s_add_u32 s{sT}, s{sT}, s{sA}
    s_and_b32 s{sHd}, s{sH}, 7
    s_lshl_b32 s{sHd}, s{sHd}, 2
    s_add_u32 s{sHd}, s{sHd}, s{sW}
    s_lshl_b32 s{sA}, s{sW}, 12
    v_lshlrev_b32 v{vKw}, 5, v{vN}
    v_lshl_add_u32 v{vKw}, v{vG}, 3, v{vKw}
    v_add_u32 v{vKw}, s{sA}, v{vKw}
    v_lshlrev_b32 v{vKr}, 3, v{vLane}
    v_add_u32 v{vKr}, s{sA}, v{vKr}
    v_mov_b32 v{vNeg}, 0xff800000
    v_lshlrev_b32 v1, 2, v{vG}
    s_lshl_b32 s{sA}, s{sHd}, 7
    s_add_u32 s{sA}, s{sA}, {WS_FL+FL_P}
    s_add_u32 s{sFl}, s{sWs}, s{sA}
    s_addc_u32 s{sFl+1}, s{sWs+1}, 0
    ''')
    for r in range(4):
        a(f'v_add_u32 v2, {r}, v1\nv_cmp_le_u32 {sp(sMk+2*r)}, v2, v{vN}')
    a(f'''
    s_lshl_b32 s{sA}, s{sHd}, 8
    s_add_u32 s{sA}, s{sA}, {WS_FL+FL_K}
    v_lshl_add_u32 v1, v{vLane}, 2, s{sA}
    v_and_b32 v{Q}, 1, v{vLane}
    v_mul_u32_u24 v{Q}, 0x0101, v{Q}
    v_lshlrev_b32 v{Q}, 16, v{Q}
    s_barrier
    ''')
    poll(a, 'Lt2_w', f'global_load_dword v2, v1, {sp(sWs)} sc1', f'v_or_b32 v2, v2, v{Q}\nv_cmp_ne_u32 vcc, 0x01010101, v2', 32)
    C.tl(a, 4, 1, f's{sGrp}')
    a.label('Lt2_seg')
    a(f'''
    s_lshl_b32 s{sA}, s{sT}, 5
    s_add_u32 s{sA}, s{sA}, s{sHd}
    s_lshl_b32 s{sB}, s{sA}, 13
    s_add_u32 s{sB}, s{sB}, 4096
    s_add_u32 s{sK}, s{sWs}, s{sB}
    s_addc_u32 s{sK+1}, s{sWs+1}, 0
    s_add_u32 s{sQ}, s{sK}, {WS_QX}
    s_addc_u32 s{sQ+1}, s{sK+1}, 0
    s_add_u32 s{sV}, s{sK}, {C.WS_V}
    s_addc_u32 s{sV+1}, s{sK+1}, 0
    s_lshl_b32 s{sB}, s{sA}, 12
    s_add_u32 s{sB}, s{sB}, {WS_KVM}
    s_add_u32 s{sKM}, s{sWs}, s{sB}
    s_addc_u32 s{sKM+1}, s{sWs+1}, 0
    s_lshl_b32 s{sB}, s{sA}, 2
    s_add_u32 s{sB}, s{sB}, {WS_F2}
    s_add_u32 s{sF2}, s{sWs}, s{sB}
    s_addc_u32 s{sF2+1}, s{sWs+1}, 0
    s_mul_i32 s{sB}, s{sT}, {2*ACT_T}
    s_lshl_b32 s{sC}, s{sHd}, 12
    s_add_u32 s{sB}, s{sB}, s{sC}
    s_add_u32 s{sB}, s{sB}, {WS_ACT}
    s_add_u32 s{sO}, s{sWs}, s{sB}
    s_addc_u32 s{sO+1}, s{sWs+1}, 0
    ''')
    a.nvm = 0; tq = {}
    for w in range(4):
        for T in range(2):
            va = vLin; off = w*2048 - 4096
            a(f'global_load_dwordx4 {vr(Q+8*w+4*T,4)}, v{va}, {sp(sQ)} offset:{off+T*1024} sc1')
            tq[w] = a(f'global_load_dwordx4 {vr(KX+8*w+4*T,4)}, v{va}, {sp(sK)} offset:{off+T*1024} sc1')
    for w in range(4):
        for u in range(2):
            va = vLin; off = w*2048 - 4096
            a(f'global_load_dwordx4 {vr(VX+8*w+4*u,4)}, v{va}, {sp(sV)} offset:{off+u*1024} sc1')
    S00, S01, S11, M0, M1 = S, S+4, S+8, S+12, S+16
    for w in range(4):
        a.wvm(tq[w])
        for (d, tk, tq_) in ((S00,0,0),(S01,0,1),(S11,1,1)):
            a(f'{MF} {vr(d,4)}, {vr(KX+8*w+4*tk,4)}, {vr(Q+8*w+4*tq_,4)}, {vr(d,4) if w else 0}')
    for r in range(4):
        a(f'v_cndmask_b32 v{S00+r}, v{vNeg}, v{S00+r}, {sp(sMk+2*r)}')
        a(f'v_cndmask_b32 v{S11+r}, v{vNeg}, v{S11+r}, {sp(sMk+2*r)}')
    mx0, mx1, t0, t1_ = S+20, S+21, S+22, S+23
    a(f'''
    v_max3_f32 v{mx0}, v{S00}, v{S00+1}, v{S00+2}
    v_max_f32 v{mx0}, v{mx0}, v{S00+3}
    v_max3_f32 v{mx1}, v{S01}, v{S01+1}, v{S01+2}
    v_max3_f32 v{mx1}, v{mx1}, v{S01+3}, v{S11}
    v_max3_f32 v{mx1}, v{mx1}, v{S11+1}, v{S11+2}
    v_max_f32 v{mx1}, v{mx1}, v{S11+3}
    s_add_u32 s{sA}, s{sT}, 2
    v_mov_b32 v1, 0
    s_mov_b32 s{sSpin}, 0
    Lt2_p:
    global_load_dword v2, v1, {sp(sFl)} sc1
    s_add_u32 s{sSpin}, s{sSpin}, 1
    s_cmp_gt_u32 s{sSpin}, {WSPIN}
    s_cbranch_scc1 Lt2_go
    s_waitcnt vmcnt(0)
    v_cmp_le_u32 vcc, s{sA}, v2
    s_cbranch_vccnz Lt2_go
    s_sleep 4
    s_branch Lt2_p
    Lt2_go:
    ''')
    for w in range(4): a(f'global_load_dwordx4 {vr(KM+4*w,4)}, v{vLin}, {sp(sKM)} offset:{w*1024} sc1')
    a('s_waitcnt vmcnt(0)')
    for w in range(4):
        for u in range(2): a(f'ds_write_b32 v{vKw}, v{KM+4*w+u} offset:{w*1024+u*512}')
    a('s_waitcnt lgkmcnt(0)')
    for w in range(4):
        for v in range(2): a(f'ds_read_b64_tr_b16 {vr(KT+4*w+2*v,2)}, v{vKr} offset:{w*1024+v*512}')
    a('s_waitcnt lgkmcnt(0)')
    for w in range(4):
        for T, d in ((0,M0),(1,M1)):
            a(f'{MF} {vr(d,4)}, {vr(KT+4*w,4)}, {vr(Q+8*w+4*T,4)}, {vr(d,4) if w else 0}')
    def xred(op, x, y):
        a(f'''
        v_mov_b32 v{t0}, v{x}
        v_mov_b32 v{t1_}, v{y}
        v_permlane16_swap_b32 v{x}, v{t0}
        v_permlane16_swap_b32 v{y}, v{t1_}
        {op} v{x}, v{x}, v{t0}
        {op} v{y}, v{y}, v{t1_}
        v_mov_b32 v{t0}, v{x}
        v_mov_b32 v{t1_}, v{y}
        v_permlane32_swap_b32 v{x}, v{t0}
        v_permlane32_swap_b32 v{y}, v{t1_}
        {op} v{x}, v{x}, v{t0}
        {op} v{y}, v{y}, v{t1_}
        ''')
    a(f'v_max3_f32 v{mx0}, v{mx0}, v{M0}, v{M0+1}\nv_max3_f32 v{mx1}, v{mx1}, v{M1}, v{M1+1}')
    xred('v_max_f32', mx0, mx1)
    e0 = [S00+r for r in range(4)] + [M0, M0+1]; e1 = [S01+r for r in range(8)] + [M1, M1+1]
    for r in e0: a(f'v_sub_f32 v{r}, v{r}, v{mx0}')
    for r in e1: a(f'v_sub_f32 v{r}, v{r}, v{mx1}')
    for r in e0 + e1: a(f'v_exp_f32 v{r}, v{r}')
    P0, P1, Z0, Z1 = P, P+4, P+8, P+12
    a(f'''
    v_cvt_pk_bf16_f32 v{P0}, v{S00}, v{S00+1}
    v_cvt_pk_bf16_f32 v{P0+1}, v{S00+2}, v{S00+3}
    v_mov_b64 {vr(P0+2,2)}, 0
    v_cvt_pk_bf16_f32 v{P1}, v{S01}, v{S01+1}
    v_cvt_pk_bf16_f32 v{P1+1}, v{S01+2}, v{S01+3}
    v_cvt_pk_bf16_f32 v{P1+2}, v{S11}, v{S11+1}
    v_cvt_pk_bf16_f32 v{P1+3}, v{S11+2}, v{S11+3}
    v_cvt_pk_bf16_f32 v{Z0}, v{M0}, v{M0+1}
    v_mov_b32 v{Z0+1}, 0
    v_mov_b32 v{Z0+2}, 0
    v_mov_b32 v{Z0+3}, v{Z0}
    v_cvt_pk_bf16_f32 v{Z1}, v{M1}, v{M1+1}
    v_mov_b32 v{Z1+1}, 0
    v_mov_b32 v{Z1+2}, 0
    v_mov_b32 v{Z1+3}, v{Z1}
    ''')
    oa = lambda T, w, u: O + 32*T + 8*w + 4*u
    for T in range(2):
        for w in range(4):
            for u in range(2):
                a(f'{MF} {vr(oa(T,w,u),4)}, {vr(VX+8*w+4*u,4)}, {vr(P+4*T,4)}, 0')
    for T in range(2):
        for w in range(4):
            for u in range(2):
                a(f'v_mfma_f32_16x16x16_bf16 {vr(oa(T,w,u),4)}, {vr(KM+4*w+2,2)}, {vr(Z0+4*T+2*u,2)}, {vr(oa(T,w,u),4)}')
    for e in (e0, e1):
        for r in e[1:]: a(f'v_add_f32 v{e[0]}, v{e[0]}, v{r}')
    xred('v_add_f32', e0[0], e1[0])
    a(f'v_rcp_f32 v{e0[0]}, v{e0[0]}\nv_rcp_f32 v{e1[0]}, v{e1[0]}')
    for T in range(2):
        l = (e0, e1)[T][0]
        for w in range(4):
            b = oa(T,w,0)
            for r in range(8): a(f'v_mul_f32 v{b+r}, v{b+r}, v{l}')
            for r in range(4): a(f'v_cvt_pk_bf16_f32 v{b+r}, v{b+2*r}, v{b+2*r+1}')
            a(f'global_store_dwordx4 v{vLin}, {vr(b,4)}, {sp(sO)} offset:{w*1024} sc1')
        if T == 0: a(f's_add_u32 s{sO}, s{sO}, {ACT_T}\ns_addc_u32 s{sO+1}, s{sO+1}, 0')
    a(f'''
    v_mov_b32 v2, 1
    s_waitcnt vmcnt(0)
    s_mov_b64 exec, 1
    global_store_dword v1, v2, {sp(sF2)} sc1
    s_mov_b64 exec, -1
    s_add_u32 s{sT}, s{sT}, {4*(7-NG3())}
    s_cmp_lt_u32 s{sT}, {TM()//2}
    s_cbranch_scc1 Lt2_seg
    ''')

def t3(a):
    sTau, sAo, sAh, sXa, sF2, sOo, sLb, sTm, sRb = 44, 46, 48, 50, 52, 54, 56, 58, 60
    vLane, vN, vG, vLin, vD, vTr, vXo, vFl, vRs, vOo = 3, 4, 5, 6, 7, 8, 9, 10, 11, 12
    AC = 16; GW = 32; XB = 48; HB = 64; OB = 128; R = 108
    a(f'''
    s_lshl_b32 s{sLb}, s{sW}, 15
    ; DMA lane: row = l/2, chunk = l%2 ; row stride 1024
    v_lshrrev_b32 v{vD}, 1, v{vLane}
    v_lshlrev_b32 v{vD}, 10, v{vD}
    v_and_b32 v1, 1, v{vLane}
    v_lshl_add_u32 v{vD}, v1, 4, v{vD}
    s_lshl_b32 s{sA}, s{sH}, 5
    v_add_u32 v{vD}, s{sA}, v{vD}
    v_lshlrev_b32 v{vTr}, 3, v{vLane}
    v_add_u32 v{vTr}, s{sLb}, v{vTr}
    s_lshl_b32 s{sA}, s{sW}, 20
    s_add_u32 s{sTm}, s{sWo}, s{sA}
    s_addc_u32 s{sTm+1}, s{sWo+1}, 0
    s_barrier
    ''')
    for b in range(32):
        a(f's_add_u32 m0, s{sLb}, {b*1024}\nglobal_load_lds_dwordx4 v{vD}, {sp(sTm)}')
        a(f's_add_u32 s{sTm}, s{sTm}, 32768\ns_addc_u32 s{sTm+1}, s{sTm+1}, 0')
    a(f'''
    v_lshlrev_b32 v1, 4, v{vG}
    s_lshl_b32 s{sA}, s{sW}, 8
    v_add_u32 v1, s{sA}, v1
    v_lshl_add_u32 v{vXo}, v{vN}, 10, v1
    ''')
    for k in range(4): a(f'global_load_dwordx4 {vr(GW+4*k,4)}, v1, {sp(sGw)} offset:{64*k}')
    a('s_waitcnt vmcnt(0)')
    for b in range(32):
        for v in range(2): a(f'ds_read_b64_tr_b16 {vr(4*b+2*v,2,"a")}, v{vTr} offset:{b*1024+v*512}')
    a(f'''
    s_mul_i32 s{sRb}, s{sW}, 11
    s_cmp_eq_u32 s{sW}, 3
    s_subb_u32 s{sRb}, s{sRb}, 0
    s_lshl_b32 s{sA}, s{sRb}, 15
    s_add_u32 s{sTm}, s{sWd}, s{sA}
    s_addc_u32 s{sTm+1}, s{sWd+1}, 0
    s_waitcnt lgkmcnt(0)
    ''')
    for b in range(11):
        a(f's_add_u32 m0, s{sLb}, {b*1024}\nglobal_load_lds_dwordx4 v{vD}, {sp(sTm)}')
        if b < 10: a(f's_add_u32 s{sTm}, s{sTm}, 32768\ns_addc_u32 s{sTm+1}, s{sTm+1}, 0')
    a('s_waitcnt vmcnt(0)')
    for b in range(11):
        for v in range(2): a(f'ds_read_b64_tr_b16 {vr(128+4*b+2*v,2,"a")}, v{vTr} offset:{b*1024+v*512}')
    a(f'''
    s_waitcnt lgkmcnt(0)
    s_cmp_lg_u32 s{sW}, 3
    s_cbranch_scc1 Lt3_nz
    ''')
    for r in range(4): a(f'v_accvgpr_write_b32 a{128+r}, 0')
    a(f'''
    Lt3_nz:
    s_add_u32 s{sTau}, s{sGrp}, {X.get('rot', 0) - 1}
    s_cmp_ge_u32 s{sTau}, {NG3()}
    s_cselect_b32 s{sA}, {NG3()}, 0
    s_sub_u32 s{sTau}, s{sTau}, s{sA}
    v_and_b32 v{vFl}, 7, v{vLane}
    v_lshlrev_b32 v{vFl}, 2, v{vFl}
    s_lshl_b32 s{sA}, s{sW}, 5
    v_add_u32 v{vFl}, s{sA}, v{vFl}
    s_mul_i32 s{sA}, s{sW}, 3072
    s_add_u32 s{sA}, s{sA}, 131072
    v_add_u32 v{vRs}, s{sA}, v{vLin}
    v_lshlrev_b32 v{vOo}, 10, v{vN}
    v_lshl_add_u32 v{vOo}, v{vG}, 3, v{vOo}
    s_lshl_b32 s{sA}, s{sH}, 5
    v_add_u32 v{vOo}, s{sA}, v{vOo}
    ''')
    vQ, vIn, vNeg, vBr, vO4, vQi, Sel = 108, 116, 127, 13, 14, 15, 28
    vKm, vOw, vPs, vKw = 48, 52, 56, 57
    sIb, sKM, sQ, sK, sV, sFast, sBb, sSl, sT4 = 62, 52, 46, 64, 66, 68, 69, 26, 27
    Q, KX, VX, KM, KT, S0, Mm, O, P, Z, Ls, One = 128, 144, 176, 184, 200, 216, 224, 232, 240, 244, 248, 252
    mx, m2, t0, lx = 228, 229, 230, 231
    G_, Bm = AC+4, AC
    Y = 64; OX = 144; IN = 160; PS = 96; Dr = 24
    L_O = 131072 + 12288
    DP = 'row_mask:0xf bank_mask:0xf'
    T4 = TM() < 128; NS = -(-(128-TM()) // NG3()); PJ = X.get('pj', 1)
    state = [Q+i for i in range(16)] + [O+i for i in range(8)] + [mx, lx, G_] + [Bm+i for i in range(4)]
    park = [f'a{i}' for i in range(172,256)] + [f'v{i}' for i in (112,113,114,115,120,121,122,123,124,125,126)]
    assert NS * len(state) <= len(park)
    def xred(op, x):
        a(f'''
        v_mov_b32 v{t0}, v{x}
        v_permlane16_swap_b32 v{x}, v{t0}
        {op} v{x}, v{x}, v{t0}
        v_mov_b32 v{t0}, v{x}
        v_permlane32_swap_b32 v{x}, v{t0}
        {op} v{x}, v{x}, v{t0}
        ''')
    if T4:
        a(f'''
        s_mul_i32 s{sA}, s{sGrp}, {NS*524288}
        s_add_u32 s{sA}, s{sA}, {WS_IB}
        s_add_u32 s{sIb}, s{sWs}, s{sA}
        s_addc_u32 s{sIb+1}, s{sWs+1}, 0
        s_lshr_b32 s{sA}, s{sH}, 3
        s_lshl_b32 s{sA}, s{sA}, 17
        s_lshl_b32 s{sB}, s{sW}, 15
        s_add_u32 s{sA}, s{sA}, s{sB}
        s_and_b32 s{sB}, s{sH}, 7
        s_lshl_b32 s{sB}, s{sB}, 7
        s_add_u32 s{sA}, s{sA}, s{sB}
        v_lshrrev_b32 v1, 3, v{vLane}
        v_lshl_add_u32 v1, v1, 10, s{sA}
        v_and_b32 v2, 7, v{vLane}
        v_lshl_add_u32 v{vIn}, v2, 4, v1
        v_add_u32 v{vIn+1}, 8192, v{vIn}
        v_add_u32 v{vIn+2}, 16384, v{vIn}
        v_add_u32 v{vIn+3}, 24576, v{vIn}
        s_lshl_b32 s{sA}, s{sH}, 5
        v_subrev_u32 v{vD}, s{sA}, v{vD}
        s_mov_b32 s{sBb}, 0
        s_mov_b32 s{sSl}, 0
        s_lshl_b32 s{sA}, s{sH}, 17
        s_lshl_b32 s{sB}, s{sW}, 8
        s_add_u32 s{sA}, s{sA}, s{sB}
        s_add_u32 s{sTm}, s{sWo}, s{sA}
        s_addc_u32 s{sTm+1}, s{sWo+1}, 0
        s_lshl_b32 s{sA}, s{sW}, 11
        v_add_u32 v{vQ}, s{sA}, v{vLin}
        v_xor_b32 v{vQ+1}, 2048, v{vQ}
        v_xor_b32 v{vQ+2}, 4096, v{vQ}
        v_xor_b32 v{vQ+3}, 6144, v{vQ}
        v_mov_b32 v{vNeg}, 0xff800000
        ; q = (2n+g)%16 ; selector rows 0..7
        v_lshl_add_u32 v1, v{vN}, 1, v{vG}
        v_and_b32 v1, 15, v1
        s_lshl_b32 s{sA}, s{sH}, 5
        s_lshl_b32 s{sB}, s{sW}, 3
        s_add_u32 s{sA}, s{sA}, s{sB}
        v_lshl_add_u32 v{vO4}, v1, 10, s{sA}
        s_lshl_b32 s{sA}, s{sW}, 8
        s_add_u32 s{sA}, s{sA}, 131072
        v_lshl_add_u32 v{vBr}, v1, 4, s{sA}
        v_and_b32 v1, 1, v{vN}
        v_lshlrev_b32 v1, 4, v1
        v_mov_b32 v2, 0x3f80
        v_lshlrev_b32 v1, v1, v2
        v_lshrrev_b32 v2, 1, v{vN}
        ''')
        for i in range(4): a(f'v_cmp_eq_u32 vcc, {i}, v2\nv_cndmask_b32 v{Sel+i}, 0, v1, vcc')
    a(f'v_add_u32 v1, {WS_FL+FL_G}, v{vLin}\ns_cmp_lg_u32 s{sW}, 0\ns_cbranch_scc1 Lt3_w_b')
    if T4:
        a(f'''
        s_lshl_b32 s{sA}, s{sH}, 8
        s_add_u32 s{sA}, s{sA}, {WS_FL+FL_K}
        v_lshl_add_u32 v{HB+9}, v{vLane}, 2, s{sA}
        v_and_b32 v{HB+10}, 1, v{vLane}
        v_mul_u32_u24 v{HB+10}, 0x0101, v{HB+10}
        v_lshlrev_b32 v{HB+10}, 16, v{HB+10}
        ''')
    poll(a, 'Lt3_w', f'global_load_dwordx4 {vr(HB,4)}, v1, {sp(sWs)} sc1\nglobal_load_dwordx4 {vr(HB+4,4)}, v1, {sp(sWs)} offset:352 sc1' + (f'\nglobal_load_dword v{HB+8}, v{HB+9}, {sp(sWs)} sc1' if T4 else ''),
         (f'v_or_b32 v{HB+8}, v{HB+8}, v{HB+10}\n' if T4 else '') + '\n'.join([f'v_and_b32 v{HB}, v{HB}, v{HB+i}' for i in range(1,8+T4)]) + f'\nv_cmp_ne_u32 vcc, 0x01010101, v{HB}', 64)
    a('s_barrier')
    C.tl(a, 4, 1, f's{sGrp}')
    def pre(tau):
        a(f'''
        s_mul_i32 s{sA}, s{tau}, {ACT_T}
        s_lshl_b32 s{sB}, s{sRb}, 10
        s_add_u32 s{sB}, s{sB}, s{sA}
        s_add_u32 s{sB}, s{sB}, {WS_ACT+4096+128*1024}
        s_add_u32 s{sAh}, s{sWs}, s{sB}
        s_addc_u32 s{sAh+1}, s{sWs+1}, 0
        s_lshl_b32 s{sA}, s{tau}, 14
        s_add_u32 s{sXa}, s{sX}, s{sA}
        s_addc_u32 s{sXa+1}, s{sX+1}, 0
        ''')
        for k in range(4): a(f'global_load_dwordx4 {vr(XB+4*k,4)}, v{vXo}, {sp(sXa)} offset:{64*k}')
        for b in range(11):
            if b == 8: a(f's_add_u32 s{sAh}, s{sAh}, 8192\ns_addc_u32 s{sAh+1}, s{sAh+1}, 0')
            th = a(f'global_load_dwordx4 {vr(HB+4*b,4)}, v{vLin}, {sp(sAh)} offset:{(b%8)*1024-4096} sc1')
        return th
    def gb():
        for k in range(4): a(f'{MF} {vr(AC+8,4)}, {vr(GW+4*k,4)}, {vr(XB+4*k,4)}, {vr(AC+8,4) if k else 0}')
        for b in range(11): a(f'{MF} {vr(AC+4,4)}, {vr(128+4*b,4,"a")}, {vr(HB+4*b,4)}, {vr(AC+4,4) if b else 0}')
    def sigm(g):
        a(f'''
        v_mul_f32 v{g}, {f32(-math.log2(math.e))}, v{g}
        v_exp_f32 v{g}, v{g}
        v_add_f32 v{g}, 1.0, v{g}
        v_rcp_f32 v{g}, v{g}
        v_sub_f32 v{g+1}, 1.0, v{g}
        ''')
    a.label('Lt3_tile')
    if T4:
        a(f'''
        s_cmp_lt_u32 s{sTau}, {TM() - NG3()*(NS+PJ)}
        s_cbranch_scc1 Lt3_np
        s_cmp_ge_u32 s{sSl}, {NS}
        s_cbranch_scc1 Lt3_np
        s_add_u32 s{sT4}, s{sTau}, {NG3()*(NS+PJ)}
        s_cmp_ge_u32 s{sT4}, 128
        s_cbranch_scc1 Lt3_pb
        s_lshl_b32 s{sA}, s{sSl}, 19
        s_add_u32 s{sKM}, s{sIb}, s{sA}
        s_addc_u32 s{sKM+1}, s{sIb+1}, 0
        v_mov_b64 {vr(P,2)}, -1
        v_mov_b64 {vr(P+2,2)}, -1
        ''')
        a.nvm = 0; a.nds = 0
        for i in range(4): a(f'global_store_dwordx4 v{vIn+i}, {vr(P,4)}, {sp(sKM)} sc1')
        th = pre(sT4)
        a(f'''
        s_lshr_b32 s{sA}, s{sT4}, 1
        s_lshl_b32 s{sA}, s{sA}, 5
        s_add_u32 s{sA}, s{sA}, s{sH}
        s_lshl_b32 s{sB}, s{sA}, 13
        s_add_u32 s{sK}, s{sWs}, s{sB}
        s_addc_u32 s{sK+1}, s{sWs+1}, 0
        s_and_b32 s{sC}, s{sT4}, 1
        s_lshl_b32 s{sB}, s{sC}, 10
        s_add_u32 s{sB}, s{sB}, {WS_QX}
        s_add_u32 s{sQ}, s{sK}, s{sB}
        s_addc_u32 s{sQ+1}, s{sK+1}, 0
        s_add_u32 s{sV}, s{sK}, {C.WS_V}
        s_addc_u32 s{sV+1}, s{sK+1}, 0
        s_lshl_b32 s{sC}, s{sC}, 4
        v_lshlrev_b32 v1, 2, v{vG}
        v_sub_u32 v{vQi}, v{vN}, v1
        v_add_u32 v{vQi}, s{sC}, v{vQi}
        v_and_b32 v1, 0x4000, v{vRs}
        v_or_b32 v1, v{vBr}, v1
        ''')
        for i in range(4):
            a(f'global_load_dwordx4 {vr(Q+4*i,4)}, v{vQ+i}, {sp(sQ)} sc1')
            for kt in range(2): tk = a(f'global_load_dwordx4 {vr(KX+8*i+4*kt,4)}, v{vQ+i}, {sp(sK)} offset:{1024*kt} sc1')
        for u in range(2): tv = a(f'global_load_dwordx4 {vr(VX+4*u,4)}, v{vQ}, {sp(sV)} offset:{1024*u} sc1')
        a.wvm(th)
        if X.get('iw', 2) == 2:
            for i in range(4): a(f'global_load_dwordx4 {vr(KT+4*i,4)}, v{vIn+i}, {sp(sKM)} sc1')
        gb()
        a(f'''
        ds_write_b32 v{vRs}, v{AC+8} offset:2048
        ds_write_b128 v{vRs}, {vr(AC+4,4)} offset:1024
        ''')
        a.wvm(tk)
        for i in range(4):
            for kt in range(2): a(f'{MF} {vr(S0+4*kt,4)}, {vr(KX+8*i+4*kt,4)}, {vr(Q+4*i,4)}, {vr(S0+4*kt,4) if i else 0}')
        a('s_waitcnt lgkmcnt(0)\ns_barrier')
        for w in range(4):
            a(f'ds_read_b128 {vr(HB+4*w,4)}, v1 offset:{3072*w+1024}\nds_read_b32 v{HB+16+w}, v1 offset:{3072*w+2048}')
        for r in range(8): a(f'v_cmp_le_i32 vcc, {16*(r//4)+r%4}, v{vQi}\nv_cndmask_b32 v{S0+r}, v{vNeg}, v{S0+r}, vcc')
        a(f'''
        v_max3_f32 v{mx}, v{S0}, v{S0+1}, v{S0+2}
        v_max3_f32 v{mx}, v{mx}, v{S0+3}, v{S0+4}
        v_max3_f32 v{mx}, v{mx}, v{S0+5}, v{S0+6}
        v_max_f32 v{mx}, v{mx}, v{S0+7}
        ''')
        xred('v_max_f32', mx)
        for r in range(8): a(f'v_sub_f32 v{S0+r}, v{S0+r}, v{mx}')
        for r in range(8): a(f'v_exp_f32 v{S0+r}, v{S0+r}')
        for r in range(4): a(f'v_cvt_pk_bf16_f32 v{P+r}, v{S0+2*r}, v{S0+2*r+1}')
        a.wvm(tv)
        for u in range(2): a(f'{MF} {vr(O+4*u,4)}, {vr(VX+4*u,4)}, {vr(P,4)}, 0')
        a(f'v_add_f32 v{lx}, v{S0}, v{S0+1}')
        for r in range(2,8): a(f'v_add_f32 v{lx}, v{lx}, v{S0+r}')
        xred('v_add_f32', lx)
        a('s_waitcnt lgkmcnt(0)')
        for r in range(4):
            a(f'v_add_f32 v{Bm+r}, v{HB+r}, v{HB+4+r}\nv_add_f32 v{HB+8+r}, v{HB+8+r}, v{HB+12+r}\nv_add_f32 v{Bm+r}, v{Bm+r}, v{HB+8+r}')
        a(f'''
        v_add_f32 v{G_}, v{HB+16}, v{HB+17}
        v_add_f32 v{G_+1}, v{HB+18}, v{HB+19}
        v_add_f32 v{G_}, v{G_}, v{G_+1}
        ''')
        sigm(G_)
        for r in range(4): a(f'v_mul_f32 v{Bm+r}, v{Bm+r}, v{G_+1}')
        a(f'v_xor_b32 v{vRs}, 0x4000, v{vRs}')
        for k in range(NS):
            if k < NS-1: a(f's_cmp_lg_u32 s{sSl}, {k}\ns_cbranch_scc1 Lt3_pk{k+1}')
            for r, d in zip(state, park[k*len(state):]): a(f'v_accvgpr_write_b32 {d}, v{r}' if d[0] == 'a' else f'v_mov_b32 {d}, v{r}')
            if k < NS-1: a(f's_branch Lt3_pe\nLt3_pk{k+1}:')
        a(f'''
        Lt3_pb:
        s_lshl_b32 s{sA}, s{sGrp}, 6
        s_add_u32 s{sA}, s{sA}, s{sH}
        s_add_u32 s{sA}, s{sA}, {WS_FL+FL_X}
        v_mov_b32 v1, s{sA}
        s_lshl_b32 s{sA}, s{sXcc}, 1
        s_add_u32 s{sA}, s{sA}, 1
        v_mov_b32 v2, s{sA}
        s_cmp_eq_u32 s{sW}, 0
        s_cselect_b64 exec, 1, 0
        global_store_byte v1, v2, {sp(sWs)} sc1
        s_mov_b64 exec, -1
        Lt3_pe:
        s_add_u32 s{sSl}, s{sSl}, 1
        Lt3_np:
        ''')
    def pre2(tau, tag):
        pre(tau)
        a(f'''
        s_lshr_b32 s{sA}, s{tau}, 1
        s_lshl_b32 s{sA}, s{sA}, 7
        s_add_u32 s{sA}, s{sA}, {WS_F2}
        s_add_u32 s{sF2}, s{sWs}, s{sA}
        s_addc_u32 s{sF2+1}, s{sWs+1}, 0
        global_load_dword v2, v{vFl}, {sp(sF2)} sc1
        ''')
        if not T4: return
        if tag == 'd': a(f's_cmp_ge_u32 s{sBb}, 32\ns_cbranch_scc1 Lt3_nd')
        a(f'''
        s_lshl_b32 s{sB}, s{sBb}, 10
        s_add_u32 m0, s{sLb}, s{sB}
        s_and_b32 s{sB}, s{sBb}, 2
        s_xor_b32 s{sB}, s{sB}, s{sW}
        s_lshl_b32 s{sB}, s{sB}, 15
        s_lshr_b32 s{sA}, s{sBb}, 2
        s_lshl_b32 s{sA}, s{sA}, 5
        s_add_u32 s{sA}, s{sA}, s{sB}
        v_add_u32 v1, s{sA}, v{vD}
        global_load_lds_dwordx4 v1, {sp(sTm)}
        s_add_u32 m0, m0, 1024
        v_xor_b32 v1, 0x8000, v1
        global_load_lds_dwordx4 v1, {sp(sTm)}
        s_add_u32 s{sBb}, s{sBb}, 2
        ''')
        assert TM() // NG3() >= 16
    pre2(sTau, 'd')
    a.label('Lt3_nd')
    a(f'''
    s_mul_i32 s{sA}, s{sTau}, {ACT_T}
    s_add_u32 s{sA}, s{sA}, {WS_ACT+4096}
    s_lshl_b32 s{sB}, s{sW}, 15
    s_add_u32 s{sB}, s{sB}, s{sA}
    s_add_u32 s{sAo}, s{sWs}, s{sB}
    s_addc_u32 s{sAo+1}, s{sWs+1}, 0
    s_lshl_b32 s{sA}, s{sTau}, 14
    s_add_u32 s{sOo}, s{sOut}, s{sA}
    s_addc_u32 s{sOo+1}, s{sOut+1}, 0
    s_mov_b32 s{sSpin}, 0
    Lt3_p:
    s_waitcnt vmcnt(0)
    v_cmp_ne_u32 vcc, 1, v2
    s_cbranch_vccz Lt3_go
    s_add_u32 s{sSpin}, s{sSpin}, 1
    s_cmp_gt_u32 s{sSpin}, {WSPIN}
    s_cbranch_scc1 Lt3_go
    s_sleep 4
    global_load_dword v2, v{vFl}, {sp(sF2)} sc1
    s_branch Lt3_p
    Lt3_go:
    ''')
    if C.TL and X.get('cu'):
        a(f's_cmp_eq_u32 s{sSpin}, 0\ns_cbranch_scc1 Lt3_cu\ns_cmp_lt_u32 s{sTau}, 30\ns_cbranch_scc1 Lt3_cu\ns_cmp_eq_u32 s84, s70\ns_cbranch_scc1 Lt3_cu\ns_mov_b32 s84, s70')
        C.tl(a, 3, 1, f's{sGrp}')
        a.label('Lt3_cu')
    a.nvm = 0; tg = []
    for b in range(32):
        if b and b % 8 == 0: a(f's_add_u32 s{sAo}, s{sAo}, 8192\ns_addc_u32 s{sAo+1}, s{sAo+1}, 0')
        tg.append(a(f'global_load_dwordx4 {vr(OB+4*b,4)}, v{vLin}, {sp(sAo)} offset:{(b%8)*1024-4096} sc1'))
    gb()
    def omm():
        for b in range(32):
            a.wvm(tg[b])
            a(f'{MF} {vr(AC,4)}, {vr(4*b,4,"a")}, {vr(OB+4*b,4)}, {vr(AC,4) if b else 0}')
    PP = X.get('pp', 0)
    if PP:
        assert PP <= TM() - NG3()*(NS+PJ) and PP <= 15*NG3()
        a(f's_add_u32 s{sD}, s{sTau}, {NG3()}\ns_cmp_ge_u32 s{sD}, {PP}\ns_cbranch_scc1 Lt3_o2')
        pre2(sD, 'p'); omm()
        a('s_branch Lt3_o3\nLt3_o2:'); a.nvm = 32
    omm()
    a.label('Lt3_o3')
    a(f'''
    ds_write_b128 v{vRs}, {vr(AC+4,4)} offset:1024
    ds_write_b128 v{vRs}, {vr(AC+8,4)} offset:2048
    ds_write_b128 v{vRs}, {vr(AC,4)}
    s_waitcnt lgkmcnt(0)
    s_barrier
    s_cmp_lg_u32 s{sW}, 0
    s_cbranch_scc1 Lt3_nx
    ''')
    for w in range(1,4):
        for j in range(3): a(f'ds_read_b128 {vr(OB+12*w+4*j,4)}, v{vRs} offset:{3072*w+1024*j}')
    a('s_waitcnt lgkmcnt(0)')
    for w in range(1,4):
        for r in range(9): a(f'v_add_f32 v{AC+r}, v{AC+r}, v{OB+12*w+r}')
    g = AC+8
    sigm(g)
    for r in range(4): a(f'v_mul_f32 v{AC+r}, v{AC+r}, v{g}\nv_fmac_f32 v{AC+r}, v{AC+4+r}, v{g+1}')
    a(f'''
    v_cvt_pk_bf16_f32 v{AC}, v{AC}, v{AC+1}
    v_cvt_pk_bf16_f32 v{AC+1}, v{AC+2}, v{AC+3}
    global_store_dwordx2 v{vOo}, {vr(AC,2)}, {sp(sOo)}
    Lt3_nx:
    v_xor_b32 v{vRs}, 0x4000, v{vRs}
    s_add_u32 s{sTau}, s{sTau}, {NG3()}
    s_cmp_lt_u32 s{sTau}, {PP}
    s_cbranch_scc1 Lt3_nd
    s_cmp_lt_u32 s{sTau}, {TM()}
    s_cbranch_scc1 Lt3_tile
    ''')
    if not T4: return
    if C.TL and X.get('t4s'): C.tl(a, 6, 1, f's{sGrp}')
    a(f'''
    s_lshl_b32 s{sA}, s{sGrp}, 6
    s_add_u32 s{sA}, s{sA}, {WS_FL+FL_X}
    v_and_b32 v1, 7, v{vLane}
    v_lshl_add_u32 v1, v1, 2, s{sA}
    global_load_dword v2, v1, {sp(sWs)} sc1
    ''')
    for b in range(32):
        for v in range(2): a(f'ds_read_b64_tr_b16 {vr(4*b+2*v,2,"a")}, v{vTr} offset:{b*1024+v*512}')
    a(f'''
    s_lshl_b32 s{sA}, s{sW}, 10
    v_add_u32 v{vKm}, s{sA}, v{vLin}
    v_add_u32 v{vOw}, {L_O}, v{vKm}
    ''')
    for i in range(1,4): a(f'v_xor_b32 v{vKm+i}, {1024*i}, v{vKm}\nv_xor_b32 v{vOw+i}, {1024*i}, v{vOw}')
    a(f'''
    s_lshl_b32 s{sA}, s{sW}, 17
    s_lshl_b32 s{sB}, s{sH}, 10
    s_add_u32 s{sA}, s{sA}, s{sB}
    v_lshl_add_u32 v{vPs}, v{vG}, 15, s{sA}
    v_lshl_add_u32 v{vPs}, v{vN}, 3, v{vPs}
    v_lshl_add_u32 v{vKw}, v{vN}, 5, s{sLb}
    v_lshl_add_u32 v{vKw}, v{vG}, 3, v{vKw}
    v_mov_b32 v{One}, 0x3f803f80
    v_mov_b32 v{One+1}, 0x3f803f80
    v_mov_b32 v{Z+1}, 0
    v_mov_b32 v{Z+2}, 0
    s_mov_b32 s{sSl}, 0
    s_waitcnt vmcnt(0)
    v_and_b32 v{Q}, 0x01010101, v2
    v_cmp_ne_u32 vcc, 0x01010101, v{Q}
    s_cbranch_vccz Lt4_x_b
    ''')
    poll(a, 'Lt4_x', f'global_load_dword v2, v1, {sp(sWs)} sc1', f'v_and_b32 v{Q}, 0x01010101, v2\nv_cmp_ne_u32 vcc, 0x01010101, v{Q}', 8)
    a(f'''
    s_lshl_b32 s{sA}, s{sXcc}, 1
    s_add_u32 s{sA}, s{sA}, 1
    s_mul_i32 s{sA}, s{sA}, 0x01010101
    v_cmp_ne_u32 vcc, s{sA}, v2
    s_waitcnt lgkmcnt(0)
    s_mov_b32 s{sFast}, vcc_lo
    ''')
    if C.TL and X.get('t4s'): C.tl(a, 7, 1, f's{sGrp}')
    def wbl(lab):
        a(f's_lshl_b32 s{sA}, s{sH}, 2\ns_add_u32 s{sA}, s{sA}, s{sW}\ns_cmp_lg_u32 s{sA}, {X.get("wbw", 0)}\ns_cbranch_scc1 {lab}\nbuffer_wbl2 sc1\n{lab}:')
    if X.get('wbt'): wbl('Lt4_wb0')
    a.label('Lt4_tile')
    if C.TL and X.get('t4s') and not X.get('cu'): C.tl(a, 3, 1, f's{sGrp}')
    a(f'''
    s_lshl_b32 s{sA}, s{sTau}, 14
    s_add_u32 s{sOo}, s{sOut}, s{sA}
    s_addc_u32 s{sOo+1}, s{sOut+1}, 0
    s_lshr_b32 s{sA}, s{sTau}, 1
    s_lshl_b32 s{sA}, s{sA}, 5
    s_add_u32 s{sA}, s{sA}, s{sH}
    s_lshl_b32 s{sB}, s{sA}, 12
    s_add_u32 s{sB}, s{sB}, {WS_KVM}
    s_add_u32 s{sKM}, s{sWs}, s{sB}
    s_addc_u32 s{sKM+1}, s{sWs+1}, 0
    ''')
    if X.get('iw', 2) == 1:
        for i in range(4): a(f'global_load_dwordx4 {vr(IN+4*i,4)}, v{vIn+i}, {sp(sIb)} sc1')
    for i in range(4): a(f'global_load_dwordx4 {vr(KM+4*i,4)}, v{vKm+i}, {sp(sKM)} sc1')
    for k in range(NS):
        if k < NS-1: a(f's_cmp_lg_u32 s{sSl}, {k}\ns_cbranch_scc1 Lt4_pk{k+1}')
        for r, d in zip(state, park[k*len(state):]): a(f'v_accvgpr_read_b32 v{r}, {d}' if d[0] == 'a' else f'v_mov_b32 v{r}, {d}')
        if k < NS-1: a(f's_branch Lt4_pe\nLt4_pk{k+1}:')
    a(f'''
    Lt4_pe:
    s_mov_b32 s{sSpin}, 0
    s_branch Lt4_p
    Lt4_r:
    s_add_u32 s{sSpin}, s{sSpin}, 1
    s_cmp_gt_u32 s{sSpin}, {WSPIN}
    s_cbranch_scc1 Lt4_go
    {f"s_sleep {X.get('ks', 1)}" if X.get('ks', 1) else ''}
    ''')
    for i in range(4): a(f'global_load_dwordx4 {vr(KM+4*i,4)}, v{vKm+i}, {sp(sKM)} sc1')
    a.label('Lt4_p')
    for i in range(4): a(f's_waitcnt vmcnt({3-i})\nds_write2st64_b32 v{vKw}, v{KM+4*i}, v{KM+4*i+1} offset0:{4*i} offset1:{4*i+2}')
    a.nds = 0; tx = []
    for i in range(4):
        for v in range(2): tx.append(a(f'ds_read_b64_tr_b16 {vr(KT+4*i+2*v,2)}, v{vTr} offset:{i*1024+v*512}'))
    a(f'''
    v_max3_u32 v{t0}, v{KM}, v{KM+1}, v{KM+2}
    v_max3_u32 v{t0}, v{t0}, v{KM+3}, v{KM+4}
    v_max3_u32 v{t0}, v{t0}, v{KM+5}, v{KM+8}
    v_max3_u32 v{t0}, v{t0}, v{KM+9}, v{KM+12}
    v_max_u32 v{t0}, v{t0}, v{KM+13}
    v_cmp_eq_u32 vcc, -1, v{t0}
    s_cbranch_vccnz Lt4_r
    Lt4_go:
    ''')
    if C.TL: C.tl(a, 1, 1, f's{sGrp}')
    for i in range(4):
        a.wds(tx[2*i+1])
        a(f'{MF} {vr(Mm,4)}, {vr(KT+4*i,4)}, {vr(Q+4*i,4)}, {vr(Mm,4) if i else 0}')
    a(f'''
    v_max3_f32 v{m2}, v{mx}, v{Mm}, v{Mm+1}
    v_max3_f32 v{t0}, v{mx}, v{Mm}, v{Mm+1}
    v_permlane16_swap_b32 v{m2}, v{t0}
    v_max_f32 v{Mm+2}, v{m2}, v{t0}
    v_max_f32 v{m2}, v{m2}, v{t0}
    v_permlane32_swap_b32 v{m2}, v{Mm+2}
    v_max_f32 v{m2}, v{m2}, v{Mm+2}
    v_sub_f32 v{mx}, v{mx}, v{m2}
    v_sub_f32 v{Mm}, v{Mm}, v{m2}
    v_sub_f32 v{Mm+1}, v{Mm+1}, v{m2}
    v_exp_f32 v{mx}, v{mx}
    v_exp_f32 v{Mm}, v{Mm}
    v_exp_f32 v{Mm+1}, v{Mm+1}
    v_mul_f32 v{Ls}, v{lx}, v{mx}
    v_cvt_pk_bf16_f32 v{Z}, v{Mm}, v{Mm+1}
    v_cvt_pk_bf16_f32 v{Z+3}, v{Mm}, v{Mm+1}
    v_mul_f32 v{O}, v{O}, v{mx}
    v_mul_f32 v{O+1}, v{O+1}, v{mx}
    v_mfma_f32_16x16x16_bf16 {vr(Ls,4)}, {vr(One,2)}, {vr(Z,2)}, {vr(Ls,4)}
    v_mul_f32 v{O+2}, v{O+2}, v{mx}
    v_mul_f32 v{O+3}, v{O+3}, v{mx}
    v_mul_f32 v{O+4}, v{O+4}, v{mx}
    v_mul_f32 v{O+5}, v{O+5}, v{mx}
    v_mfma_f32_16x16x16_bf16 {vr(O,4)}, {vr(KM+2,2)}, {vr(Z,2)}, {vr(O,4)}
    v_mul_f32 v{O+6}, v{O+6}, v{mx}
    v_mul_f32 v{O+7}, v{O+7}, v{mx}
    v_mfma_f32_16x16x16_bf16 {vr(O+4,4)}, {vr(KM+2,2)}, {vr(Z+2,2)}, {vr(O+4,4)}
    v_rcp_f32 v{Ls}, v{Ls}
    ''')
    for r in range(4): a(f'v_mul_f32 v{O+r}, v{O+r}, v{Ls}')
    for r in range(2): a(f'v_cvt_pk_bf16_f32 v{OX+r}, v{O+2*r}, v{O+2*r+1}')
    for r in range(4,8): a(f'v_mul_f32 v{O+r}, v{O+r}, v{Ls}')
    for r in range(2,4): a(f'v_cvt_pk_bf16_f32 v{OX+r}, v{O+2*r}, v{O+2*r+1}')
    a(f'ds_write_b128 v{vOw}, {vr(OX,4)}')
    W_ = lambda c, i: a(f'{MF} {vr(Y+4*c,4)}, {vr(16*c+4*i,4,"a")}, {vr(OX+4*i,4)}, {vr(Y+4*c,4) if i else 0}')
    W_(0,0); W_(1,0)
    a('s_waitcnt lgkmcnt(0)\ns_barrier')
    a.nds = 0; to = [a(f'ds_read_b128 {vr(OX+4*i,4)}, v{vOw+i}') for i in range(1,4)]
    for c in range(2,8): W_(c,0)
    a(f's_cmp_lg_u32 s{sFast}, 0\ns_cbranch_scc1 Lt4_s')
    if X.get('fts'): a(f's_cmp_lt_u32 s{sTau}, {X["fts"]}\ns_cbranch_scc1 Lt4_s')
    def wo(sc):
        a.nds = 3
        def st(c): return [f'v_cvt_pk_bf16_f32 v{PS+2*(c%4)}, v{Y+4*c}, v{Y+4*c+1}', f'v_cvt_pk_bf16_f32 v{PS+2*(c%4)+1}, v{Y+4*c+2}, v{Y+4*c+3}',
                           f'global_store_dwordx2 v{vPs}, {vr(PS+2*(c%4),2)}, {sp(sIb)} offset:{128*c}{sc}']
        q_ = []
        for c in range(0,8,2):
            for i in range(1,4):
                if c == 0: a.wds(to[i-1])
                for d in range(2):
                    W_(c+d, i)
                    if q_ and (i > 1 or d): a(q_.pop(0))
                    if q_ and q_[0].startswith('global'): a(q_.pop(0))
            for x_ in q_: a(x_)
            q_ = st(c) + st(c+1)
        for x_ in q_: a(x_)
    wo(''); a('s_branch Lt4_e'); a.label('Lt4_s'); wo(' sc1'); a.label('Lt4_e')
    if C.TL: C.tl(a, 2, 1, f's{sGrp}')
    if X.get('wb5'):
        a(f's_cmp_lt_u32 s{sTau}, {X["wb5"]}\ns_cbranch_scc1 Lt4_wb5')
        wbl('Lt4_wb5')
    a.nops(X.get('iz', 0))
    a(f'''
    s_mov_b32 s{sSpin}, 0
    Lt4_i:
    ''')
    for i in range(4): a(f'global_load_dwordx4 {vr(IN+4*i,4)}, v{vIn+i}, {sp(sIb)} sc1')
    a(f's_add_u32 s{sSpin}, s{sSpin}, 1\ns_cmp_gt_u32 s{sSpin}, {WSPIN}\ns_cbranch_scc1 Lt4_f')
    for i in range(4):
        r = IN+4*i
        a(f's_waitcnt vmcnt({3-i})\n{MF} {vr(Dr,4)}, {vr(Sel,4)}, {vr(r,4)}, {vr(Dr,4) if i else 0}')
        a(f'v_max3_u32 v{t0}, v{t0 if i else r}, v{r}, v{r+1}\nv_max3_u32 v{t0}, v{t0}, v{r+2}, v{r+3}')
    a(f'''
    v_cmp_eq_u32 vcc, -1, v{t0}
    s_cbranch_vccnz Lt4_i
    Lt4_f:
    ''')
    if X.get('wb6'):
        a(f's_cmp_lt_u32 s{sTau}, {X["wb6"]}\ns_cbranch_scc1 Lt4_wb6')
        wbl('Lt4_wb6')
    for r in range(4): a(f'v_add_f32_dpp v{Dr+r}, v{Dr+r}, v{Dr+r} row_ror:8 {DP}')
    for r in range(4): a(f'v_fma_f32 v{Dr+r}, v{Dr+r}, v{G_}, v{Bm+r}')
    a(f'''
    s_mov_b64 exec, 0x00ff00ff
    v_cvt_pk_bf16_f32 v{Dr}, v{Dr}, v{Dr+1}
    v_cvt_pk_bf16_f32 v{Dr+1}, v{Dr+2}, v{Dr+3}
    global_store_dwordx2 v{vO4}, {vr(Dr,2)}, {sp(sOo)}
    s_mov_b64 exec, -1
    s_waitcnt vmcnt(1)
    s_add_u32 s{sSl}, s{sSl}, 1
    s_add_u32 s{sIb}, s{sIb}, 524288
    s_addc_u32 s{sIb+1}, s{sIb+1}, 0
    s_add_u32 s{sTau}, s{sTau}, {NG3()}
    ''')
    if X.get('wb4'):
        a(f's_cmp_ge_u32 s{sTau}, {X["wb4"]}\ns_cbranch_scc1 Lt4_wb1')
        wbl('Lt4_wb1')
    a(f'''
    s_cmp_lt_u32 s{sTau}, 128
    s_cbranch_scc1 Lt4_tile
    ''')
    if X.get('wbd'):
        a(f's_cmp_ge_u32 s{sTau}, {X["wbd"]}\ns_cbranch_scc1 Lt4_wbe')
        a(f's_lshl_b32 s{sA}, s{sH}, 2\ns_add_u32 s{sA}, s{sA}, s{sW}\ns_cmp_lg_u32 s{sA}, {X.get("wbw", 0)}\ns_cbranch_scc1 Lt4_wbe')
        if X.get('wbm', 'f') == 'f':
            a(f'v_and_b32 v1, 31, v0\nv_lshlrev_b32 v1, 7, v1\nv_add_u32 v1, {WS_FL+FL_P}, v1')
            poll(a, 'Lt4_wbd', f'global_load_dword v2, v1, {sp(sWs)} sc1', f'v_cmp_gt_u32 vcc, 0x41, v2', 2)
        else:
            a(f'v_and_b32 v1, 63, v0\nv_lshlrev_b32 v1, 11, v1\nv_add_u32 v1, {WS_KVM+63*131072}, v1')
            poll(a, 'Lt4_wbd', f'global_load_dword v2, v1, {sp(sWs)} sc1', f'v_cmp_eq_u32 vcc, -1, v2', 2)
        a('buffer_wbl2 sc1\nLt4_wbe:')

def build(name=NAME, **kw):
    a = Asm()
    a.raw(khead(name))
    a(f'''
    s_cmp_ge_u32 s2, 256
    s_cbranch_scc1 L_done
    s_load_dwordx2 {sp(sDbg)}, s[0:1], 104
    s_load_dwordx2 {sp(sMem)}, s[0:1], 8
    s_load_dwordx4 s[8:11], s[0:1], 24
    s_load_dwordx2 {sp(sWq)}, s[0:1], 16
    s_load_dwordx2 {sp(sWo)}, s[0:1], 40
    s_load_dwordx2 {sp(sWs)}, s[0:1], 112
    s_load_dwordx2 {sp(sX)}, s[0:1], 0
    s_load_dwordx8 s[32:39], s[0:1], 64
    s_load_dwordx2 {sp(sOut)}, s[0:1], 96
    s_getreg_b32 s{sXcc}, hwreg(HW_REG_XCC_ID)
    s_and_b32 s{sXcc}, s{sXcc}, 15
    v_lshrrev_b32 v4, 6, v0
    s_lshr_b32 s{sH}, s2, 3
    {f's_xor_b32 s2, s2, s{sH}' if X.get('perm') else ''}
    {f's_xor_b32 s{sH}, s{sH}, {X["hx"]}' if X.get('hx') else ''}
    s_add_u32 s{sGrp}, s2, {8-X.get('cg', 1)}
    s_and_b32 s{sGrp}, s{sGrp}, 7
    v_readfirstlane_b32 s{sW}, v4
    s_waitcnt lgkmcnt(0)
    ''')
    C.tl(a, 0, 1, f's{sGrp}')
    a(f's_cmp_lg_u32 s{sGrp}, 0\ns_cbranch_scc1 L_work')
    C.chain(a, 'c', mega=True, **kw)
    a('s_endpgm')
    a.label('L_work')
    t1(a)
    if X.get('t1only'):
        a.label('L_t1e')
        C.tl(a, 5, 2, f's{sGrp}')
        a('s_endpgm')
    a(f's_cmp_le_u32 s{sGrp}, {NG3()}\ns_cbranch_scc1 L_t3')
    t2(a)
    C.tl(a, 5, 2, f's{sGrp}')
    a('s_endpgm')
    a.label('L_t3')
    t3(a)
    C.tl(a, 5, 2, f's{sGrp}')
    a.label('L_done')
    a('s_endpgm')
    assert a.check_branches() == 0
    return a

if __name__ == '__main__':
    import sys
    kw = eval(sys.argv[2]) if len(sys.argv) > 2 else {}
    C.TL = kw.pop('tl', False)
    X.update(kw.pop('x', {}))
    WS_QX = X.get('qx', 64) << 20
    ref = open('gated_mix__memory_aug_recurrent_mem_tr__glu_gated_bilinear__prompt.s.ref').read().split('\n')
    head = [l for l in ref if l.startswith(';') and '@launch' not in l]
    out = '\n'.join(head) + '\n; @launch grid=(256,1,1) block=(256,1,1) lds=163840\n'
    out += '.amdgcn_target "amdgcn-amd-amdhsa--gfx950"\n.text\n' + build(**kw).text()
    out += '.section .rodata,"a"\n' + kdesc(NAME)
    open(sys.argv[1], 'w').write(out)
```

```python
from asmlib import *
import struct, math
WS_KV = 0; WS_V = 16<<20; KST = 32*8192; WS_QX = 32<<20; WS_KVM = 48<<20; WS_RA = 60<<20; WS_RM = 61<<20; WS_PROF = 62<<20
WS_OX = 200<<20
RA_SLOT = 128*2048; RM_SLOT = 8192
SLAB = 131072
def f32(x): return struct.unpack('<I', struct.pack('<f', x))[0]
QSCALE = f32(128**-0.5 * math.log2(math.e))

M=0; QV=32; KA=40; KX=48; XO=40; VX=56; S=64; T=96
vIdx,vLin,vKr,vTc,vXw,vXr,vPst,vMst,vLw,vOw,vM0,vM1,HK,_,HV,_2 = range(112,128)
sMem,sWq,sWk,sWv,sWo,sDbg,sWs = 4,6,8,10,12,14,16
sH,sW,sT,sSpin = 18,19,20,21
sTmp=22; sLb=24; sA=25; sB=26; sC=27
sKV=30; sKVM=32; sSt0=34; sSt1=36; sAld=38; sArs=40; sMld=42; sMst=44
sRA=46; sRAo=48; sRMl=50; sRMs=52
sB1=54; sSel=56; sPm=64; sPub=66; sM0kv=68; sQc=69
sFl=28; sXcc=3; sFm=100; sRdy=86; sVer=87; sFK=84; sGot=88; sNx=89
WS_FL = 63<<20; FL_K = 8192; FL_G = 16384; FL_P = 20480
ROLE_LDS = 163832
VERIFY = None
sP=70
SPIN=200000
NL = chr(10)
def sp(x): return f's[{x}:{x+1}]'

LDS_BLK = [('q',0),('q',1),('k',0),('k',6),('k',7),('o',5),('o',6),('o',7)]
NQ = 5
KVS = 2304
L_KV = SLAB+8192; L_MQ = SLAB; L_X = SLAB+28672; L_O = SLAB+26624
REG_BLK = [(m,i) for m in 'qkvo' for i in range(8) if (m,i) not in LDS_BLK]
def dest(b):
    i = REG_BLK.index(b)
    return ('a', 16*i) if i < 16 else ('v', 128 + 16*(i-16))

WS_TL = (62<<20) + 65536
TL = False
TLN = 0
def tl(a, i, v1, role_hi):
    if not TL: return
    if TL == 2:
        ch = (role_hi == 0)
        if i > 5: return
        a(f"""
        s_memrealtime s[90:91]
        s_waitcnt lgkmcnt(0)
        s_mov_b32 s{74+i}, s90
        """)
        if (ch and i == 4) or (not ch and i == 5):
            global TLN
            TLN += 1
            idx = [0,2,3,4] if ch else [0,3,4,5]
            a(f"""
            s_lshl_b32 s97, s{sH}, 2
            s_add_u32 s97, s97, s{sW}
            """)
            if not ch: a(f's_xor_b32 s96, {role_hi}, 5\ns_or_b32 s97, s97, s96')
            a(f's_cmp_lg_u32 s97, 0\ns_cbranch_scc1 Ltl2_{TLN}')
            for k_, j in enumerate(idx): a(f'v_mov_b32 v{v1+4+k_}, s{74+j}')
            a(f"""
            v_mov_b32 v{v1}, {32 if ch else 48}
            s_mov_b64 exec, 1
            global_store_dwordx4 v{v1}, v[{v1+4}:{v1+7}], {sp(sDbg)} sc1
            s_mov_b64 exec, -1
            Ltl2_{TLN}:
            """)
        return
    ch = (role_hi == 0)
    a(f"""
    s_memrealtime s[98:99]
    s_memtime s[90:91]
    s_waitcnt lgkmcnt(0)
    s_mov_b32 s{70+i}, s98
    """)
    if i < 6: a(f's_mov_b32 s{78+i}, s90')
    if (ch and i == 4) or (not ch and i == 5):
        a(f"""
        s_lshl_b32 s97, {role_hi}, 5
        s_add_u32 s97, s97, s{sH}
        s_lshl_b32 s97, s97, 2
        s_add_u32 s97, s97, s{sW}
        s_lshl_b32 s97, s97, 6
        s_add_u32 s97, s97, {WS_TL}
        v_mov_b32 v{v1}, s97
        s_mov_b64 exec, 1
        """)
        for j in range(14): a(f'v_mov_b32 v{v1+1}, s{70+j}\nglobal_store_dword v{v1}, v{v1+1}, {sp(sWs)} offset:{4*j}\ns_nop 1')
        if ch: a(f'v_mov_b32 v{v1+1}, s{sSpin}\nglobal_store_dword v{v1}, v{v1+1}, {sp(sWs)} offset:56\ns_nop 1\nv_mov_b32 v{v1+1}, s94\nglobal_store_dword v{v1}, v{v1+1}, {sp(sWs)} offset:60\ns_nop 1')
        a('s_mov_b64 exec, -1')

def chain(a, tag, sc='', mega=False, prof=False, nsteps=64, preA=56, preB=44, gapA=48, gapB=48, sgq=-3, pKx=12, pB2=5, ntr=2, rdw=1, wx=1, g7=32, stamps=(), wnt=' nt', ont=None, mord='qkv', warm=22, fkb=22, fke=28, arr=10, fst=0, opipe=1, tls=(0,8,16), opt=(), tsc=' sc1', tdist=1, skip=(), ra=0, hp=0, dA=28, dB=28, gL=28, gL2=40, b1=5, b2=1, word=0, n3=1, w4=None, bb=1, psw=0, wo=0, dw=0, mk=1, wB=None, pb1=5, yd=0, ckp=(3,5,7,8), kp=3, qo=0, g0p=8, nvo=0, wsh=0, vmf=0, fc=0, nr0=2, ps=0, pmf=21, pad=23, g56=(18,19,20,26,27,28), ft=0, nc=0, wb=0, vp=None, ox=0, thr=0, thi=0, the=24, ex=0, exc=0, lp=0, lpf=0, hlp=(), kvp=0, flp=0, ht=(), ntb=(), nts=(), thv=None, thm=0xa2222222, al=None):
    L = lambda x: f'L{tag}_{x}'
    DIR = True
    stc = (' ' + sc) if sc else ''
    LE = L('end')
    if ont is None: ont = wnt
    if yd and vp is None: vp = 'kv@Q2 d2@Q10 d3@Q13 rm@Q15 d0@Q17 fl@Q19 d1@Q21 tc@Q24 r0@Q27 r1@Q30'
    if vp is None: vp = 'kv@A0 d2@A2 d3@Q0 rm@Q2 d0@Q4 fl@Q6 d1@Q9 tc@Q12 r0@Q16 r1@Q20' if hp else 'kv@P0 d2@A2 d3@A6 rm@Q2 d0@Q4 fl@Q6 d1@Q9 tc@Q12 r0@Q16 r1@Q20'
    if w4: ra = 4; rdw = 1 if dw and mk == 1 else 0
    L_X = SLAB+18432 if ps else SLAB+28672
    L_S = SLAB+28672
    kvnow = any(x_[:2] == 'kv' and x_[3] in 'CW' for x_ in vp.split())
    staged = {}
    def B(m, i, u):
        if (m,i) in staged: return vr(staged[(m,i)] + 8*u, 8)
        k, b = dest((m,i)); return vr(b + 8*u, 8, k)
    def SM(acc, A, m, i, u): a(f'v_smfmac_f32_16x16x64_bf16 {vr(acc,4)}, {vr(A,4)}, {B(m,i,u)}, v{vIdx}')
    def stg(blk, r):
        slot = LDS_BLK.index(blk); staged[blk] = r
        return [f'ds_read_b128 {vr(r+4*i,4)}, v{vLw} offset:{slot*4096+i*1024}' for i in range(4)]
    AK = {}
    def stamp(i):
        if prof and i in stamps: a(f's_memtime {sp(sP+2*stamps.index(i))}')
        if f'ak:{i}' in opt: a.wvm(max(AK['vt'][o_] for o_ in ('d0','d1','tc'))); stamp('ak')

    lane,n_,g_,t1,t2,t3 = T,T+1,T+2,T+3,T+4,T+5
    vWa, vOa = KX+4, T+9
    vTr = VX
    vL4, vFd, vFk = T+6, T+7, KX
    vTo = KX+2
    a(f'''
    v_and_b32 v{lane}, 63, v0
    v_and_b32 v{n_}, 15, v0
    v_lshrrev_b32 v{g_}, 4, v{lane}
    v_lshlrev_b32 v{vLin}, 4, v{lane}
    s_lshl_b32 s{sLb}, s{sW}, 15
    s_mul_i32 s{sA}, s{sW}, {KVS}
    s_add_u32 s{sM0kv}, s{sA}, {L_KV}
    v_add_u32 v{vLw}, s{sLb}, v{vLin}
    ; cooperative qkv DMA: instr i=gb, r'=lane/16, p=lane%16 holds chunk p^(2r'+8gb0) of row 32(w&1)+8(w>>1)+4gb1+gb0+16(r'&1)+2(r'>>1)
    v_and_b32 v{t1}, 1, v{g_}
    v_lshrrev_b32 v{t3}, 1, v{g_}          ; gb1
    v_lshlrev_b32 v{t2}, 1, v{g_}
    v_xor_b32 v{t2}, v{t2}, v{n_}
    v_lshlrev_b32 v{t2}, 4, v{t2}
    v_lshl_add_u32 v{t2}, v{t1}, {13 if dw else 17}, v{t2}
    v_lshl_add_u32 v{t2}, v{t3}, 14, v{t2}
    s_and_b32 s{sA}, s{sW}, 1
    s_lshl_b32 s{sA}, s{sA}, {15 if dw else 18}
    s_lshr_b32 s{sB}, s{sW}, 1
    s_lshl_b32 s{sB}, s{sB}, {18 if dw else 16}
    s_add_u32 s{sA}, s{sA}, s{sB}
    s_lshl_b32 s{sB}, s{sH}, 8
    s_add_u32 s{sA}, s{sA}, s{sB}
    v_add_u32 v{vWa}, s{sA}, v{t2}
    v_xor_b32 v{t2}, 128, v{vWa}
    v_add_u32 v{vWa+1}, {(8 if dw else 1)*8192-1024}, v{t2}
    v_add_u32 v{vWa+2}, {(16 if dw else 4)*8192-2048}, v{vWa}
    v_add_u32 v{vWa+3}, {(24 if dw else 5)*8192-3072}, v{t2}
    ; wo rows: 16*gb0+4*gb1+bit3 ; chunk = (l%8)^(4*gb0)
    v_lshlrev_b32 v{vOa}, 4, v{t1}
    v_lshl_add_u32 v{vOa}, v{t3}, 2, v{vOa}
    v_bfe_u32 v{vTr}, v{lane}, 3, 1
    v_add_u32 v{vOa}, v{vOa}, v{vTr}
    v_lshlrev_b32 v{vTr}, 2, v{t1}
    v_xor_b32 v{vTr}, v{vTr}, v{lane}
    v_and_b32 v{vTr}, 7, v{vTr}
    v_lshlrev_b32 v{vTr}, 4, v{vTr}
    v_lshl_add_u32 v{vOa}, v{vOa}, 10, v{vTr}
    s_lshl_b32 s{sA}, s{sH}, 17
    s_lshl_b32 s{sB}, s{sW}, 8
    s_add_u32 s{sA}, s{sA}, s{sB}
    v_add_u32 v{vOa}, s{sA}, v{vOa}
    ''')
    if ex == 1:
        for J in range(4): a(f'''
        v_add_u32 v{vWa+J}, {1024*J}, v{vWa+J}
        v_lshrrev_b32 v{t2}, 13, v{vWa+J}
        v_and_b32 v{vWa+J}, 255, v{vWa+J}
        v_lshl_add_u32 v{vWa+J}, v{t2}, 8, v{vWa+J}
        s_min_u32 s{sA}, s{sH}, 30
        s_lshl_b32 s{sA}, s{sA}, 17
        s_add_u32 s{sA}, s{sA}, {4096-1024*J}
        v_add_u32 v{vWa+J}, s{sA}, v{vWa+J}
        ''')
    if ex == 2:
        for J in range(4): a(f'v_xor_b32 v{vWa+J}, {256*J}, v{vWa+J}')
    if ex == 3: a(f's_and_b32 s{sA}, s{sH}, 3\ns_cmp_lg_u32 s{sA}, {exc}\ns_cbranch_scc1 L_done')
    if ex == 4: a(f's_and_b32 s{sA}, s{sH}, 16\ns_cmp_lg_u32 s{sA}, {exc}\ns_cbranch_scc1 L_done')
    if ox: a(f'''
    s_add_u32 s{sTmp}, s{sWs}, {WS_OX-256}
    s_addc_u32 s{sTmp+1}, s{sWs+1}, 0
    s_cmp_eq_u32 s{sW}, 1
    s_cselect_b64 {sp(sWo)}, {sp(sTmp)}, {sp(sWo)}
    s_cselect_b32 s{sNx}, 256, 0
    ''')
    def dma(bi):
        slot = bi % 8; tg = None
        if bi < 24:
            base = {'q': sWq, 'k': sWk, 'v': sWv}[mord[bi//8]]
            a(f's_add_u32 s{sTmp}, s{base}, {slot<<(14 if ex == 1 else 19)}\ns_addc_u32 s{sTmp+1}, s{base+1}, 0\ns_add_u32 m0, s{sLb}, {slot*4096}')
            if bi in nts:
                AK['nts'] = AK.get('nts', 0) + 1; l1, l2 = L(f'nta{AK["nts"]}'), L(f'ntb{AK["nts"]}')
                a(f's_bitcmp0_b32 {thm:#x}, s{sH}\ns_cbranch_scc1 {l1}')
                for J in range(4): a(f'global_load_lds_dwordx4 v{vWa+J}, {sp(sTmp)} offset:{J*1024}{" nt" if thv is None else wnt}')
                a(f's_branch {l2}'); a.label(l1); a.nvm -= 4
            for J in range(4):
                if thv is not None and bi in nts: a(f's_waitcnt vmcnt({thv if isinstance(thv, int) else thv[J]})')
                tg = a(f'global_load_lds_dwordx4 v{vWa+J}, {sp(sTmp)} offset:{J*1024}{" nt" if bi in ntb else wnt}')
            if bi in nts: a.label(l2)
            return tg
        i = slot
        a(f's_xor_b32 s{sA}, s{sW}, {i//2}\ns_lshl_b32 s{sA}, s{sA}, 15')
        if ox: a(f's_mul_i32 s{sB}, s{sNx}, {(0,2,3,0)[i//2] if ox == 1 else 1}\ns_add_u32 s{sA}, s{sA}, s{sB}')
        for J in range(4):
            off = (i%2)*128 + (8*(J>>1) + 2*(J&1))*1024
            a(f's_add_u32 s{sB}, s{sA}, {off}\ns_add_u32 s{sTmp}, s{sWo}, s{sB}\ns_addc_u32 s{sTmp+1}, s{sWo+1}, 0')
            a(f's_add_u32 m0, s{sLb}, {slot*4096+J*1024}')
            tg = a(f'global_load_lds_dwordx4 v{vOa}, {sp(sTmp)}{ont}')
        return tg
    vPq, vPo, vPd = QV, QV+1, QV+2
    if lp: a(f'''
    s_lshr_b32 s{sA}, s{sW}, 1
    s_lshl_b32 s{sA}, s{sA}, 19
    s_and_b32 s{sB}, s{sW}, 1
    s_lshl_b32 s{sB}, s{sB}, 7
    s_add_u32 s{sA}, s{sA}, s{sB}
    s_lshl_b32 s{sB}, s{sH}, 8
    s_add_u32 s{sA}, s{sA}, s{sB}
    v_lshl_add_u32 v{vPq}, v{lane}, 13, s{sA}
    s_lshl_b32 s{sA}, s{sH}, 17
    s_lshl_b32 s{sB}, s{sW}, 8
    s_add_u32 s{sA}, s{sA}, s{sB}
    v_lshrrev_b32 v{vPo}, 1, v{lane}
    v_lshlrev_b32 v{vPo}, 10, v{vPo}
    v_and_b32 v{vPd}, 1, v{lane}
    v_lshl_add_u32 v{vPo}, v{vPd}, 7, v{vPo}
    v_add_u32 v{vPo}, s{sA}, v{vPo}
    ''')
    vH = QV+4
    if hlp:
        a(f'''
        s_and_b32 s{sA}, s{sH}, 3
        s_xor_b32 s{sB}, s{sA}, 1
        s_lshl_b32 s{sB}, s{sB}, 8
        s_sub_u32 s{sC}, s{sA}, 1
        s_max_i32 s{sC}, s{sC}, 0
        s_lshl_b32 s{sC}, s{sC}, 19
        s_cmp_eq_u32 s{sA}, 1
        s_cselect_b32 s{sA}, 0, -1
        ''')
        for J in range(4): a(f'''
        v_xor_b32 v{vH+J}, s{sB}, v{vWa+J}
        v_add_u32 v{vH+J}, s{sC}, v{vH+J}
        v_and_b32 v{vH+J}, s{sA}, v{vH+J}
        ''')
    def help_(j):
        base = {'q': sWq, 'k': sWk, 'v': sWv}[mord[j//8]]
        assert j % 8 <= 5
        a(f's_add_u32 s{sTmp}, s{base}, {(j%8)<<19}\ns_addc_u32 s{sTmp+1}, s{base+1}, 0')
        for J in range(4): a(f'global_load_dwordx4 {vr(KA,4)}, v{vH+J}, {sp(sTmp)} offset:{J*1024}')
    vHt = QV+8
    if ht:
        a(f'''
        s_and_b32 s{sA}, s{sH}, 3
        s_sub_u32 s{sC}, s{sA}, 1
        s_max_i32 s{sC}, s{sC}, 0
        s_mul_i32 s{sB}, s{sW}, 3
        s_add_u32 s{sC}, s{sC}, s{sB}
        s_cmp_eq_u32 s{sA}, 1
        s_cselect_b32 s{sNx}, 99, s{sC}
        s_min_u32 s{sC}, s{sC}, 7
        s_sub_u32 s{sC}, 7, s{sC}
        s_lshl_b32 s{sC}, s{sC}, 19
        s_andn2_b32 s{sA}, s{sH}, 3
        s_lshl_b32 s{sA}, s{sA}, 8
        s_add_u32 s{sC}, s{sC}, s{sA}
        s_add_u32 s{sC}, s{sC}, 384
        v_lshl_add_u32 v{vHt}, v{lane}, 13, s{sC}
        ''')
    def htouch(when):
        for wh, mi, nb, off in ht:
            if wh != when: continue
            base = {'q': sWq, 'k': sWk, 'v': sWv}[mord[mi]]
            a(f's_cmp_lt_u32 s{sNx}, {nb}\ns_cselect_b64 exec, -1, 0\nglobal_load_dword v{vHt+1}, v{vHt}, {sp(base)} offset:{off}\ns_mov_b64 exec, -1')
    def lpre(j):
        if j >= 32 or j % 2: return
        if j < 24:
            base = {'q': sWq, 'k': sWk, 'v': sWv}[mord[j//8]]
            a(f's_add_u32 s{sTmp}, s{base}, {(j%8)<<19}\ns_addc_u32 s{sTmp+1}, s{base+1}, 0\nglobal_load_dword v{vPd}, v{vPq}, {sp(sTmp)}')
        else:
            a(f's_xor_b32 s{sA}, s{sW}, {(j%8)//2}\ns_lshl_b32 s{sA}, s{sA}, 15\ns_add_u32 s{sTmp}, s{sWo}, s{sA}\ns_addc_u32 s{sTmp+1}, s{sWo+1}, 0\nglobal_load_dword v{vPd}, v{vPo}, {sp(sTmp)}')
    dtag = {}
    def fkeval(v):
        a(f"""
        v_cmp_eq_u32 vcc, 0x01010101, v{v}
        s_or_b32 s{sTmp}, vcc_lo, 0xaaaaaaaa
        s_or_b32 s{sTmp+1}, vcc_hi, 0xaaaaaaaa
        s_ff0_i32_b64 s{sRdy}, {sp(sTmp)}
        s_min_u32 s{sRdy}, s{sRdy}, 100
        """)
    def first():
        a(f'''
        s_lshl_b32 s{sA}, s{sXcc}, 1
        s_add_u32 s{sA}, s{sA}, 1
        s_mul_i32 s{sXcc}, s{sA}, 0x01010101
        v_mov_b32 v{S}, s{sH}
        v_mov_b32 v{S+1}, s{sA}
        s_cmp_eq_u32 s{sW}, 0
        s_cselect_b32 s{sFm}, 1, 0
        s_mov_b32 s{sFm+1}, 0
        s_mov_b64 exec, {sp(sFm)}
        global_store_byte v{S}, v{S+1}, {sp(sDbg)} sc1
        s_mov_b64 exec, -1
        v_lshlrev_b32 v{S+2}, 4, v{n_}
        v_lshl_add_u32 v{S+2}, v{g_}, 10, v{S+2}
        s_lshl_b32 s{sA}, s{sW}, 8
        v_add_u32 v{S+2}, s{sA}, v{S+2}
        v_add_u32 v{S+3}, 3072, v{S+2}
        s_lshl_b32 s{sA}, s{sW}, 11
        s_add_u32 m0, s{sA}, {L_MQ}
        global_load_lds_dwordx4 v{S+2}, {sp(sMem)}
        global_load_lds_dwordx4 v{S+3}, {sp(sMem)} offset:1024
        ''')
    if thr: a(f's_and_b32 s{sNx}, s{sH}, 3' if not lp else f's_mov_b32 s{sNx}, 0')
    if lpf:
        for j in range(8 + lp): lpre(j)
    for bi in range(8):
        htouch(bi - 8)
        if bi == fst: first()
        if thi and bi >= 8 - thi:
            a(f's_cmp_eq_u32 s{sNx}, 1\ns_cbranch_scc1 {L(f"ti{bi}")}')
            a.wvm(dtag[bi-8+thi]); a.label(L(f'ti{bi}'))
        dtag[bi] = dma(bi)
    if lp and not lpf:
        for j in range(8, 8 + lp): lpre(j)
    if 'a' in tls: tl(a, 5 + tls.index('a'), T+12, 0)
    if 'b' in tls: tl(a, 5 + tls.index('b'), T+12, 0)
    a(f'''
    v_lshrrev_b32 v{t2}, 2, v{n_}
    v_and_b32 v{t3}, 3, v{lane}
    s_lshl_b32 s{sA}, s{sW}, 6
    v_lshl_add_u32 v{vTr}, v{t3}, 3, s{sA}
    v_lshlrev_b32 v{vTr+1}, 5, v{t2}
    v_lshl_add_u32 v{vTr+1}, v{t1}, 7, v{vTr+1}
    v_xor_b32 v{vTr}, v{vTr}, v{vTr+1}
    v_lshl_add_u32 v{vTr}, v{t2}, 8, v{vTr}
    v_lshl_add_u32 v{vTr}, v{g_}, 10, v{vTr}
    v_xor_b32 v{vTr+1}, 32, v{vTr}
    v_add_u32 v{vTr+2}, 0x10000, v{vTr}
    v_add_u32 v{vTr+3}, 0x10000, v{vTr+1}
    ; wo tr-read: gb*256 + bit2*128 + gb0*64 + bit3*32 + c4*8 (u flips bit 6)
    v_lshlrev_b32 v{vTo}, 8, v{g_}
    v_lshl_add_u32 v{vTo}, v{t1}, 6, v{vTo}
    {f'v_and_b32 v{vTo+1}, 2, v{lane}{NL}v_lshl_add_u32 v{vTo}, v{vTo+1}, 2, v{vTo}{NL}v_and_b32 v{vTo+1}, 1, v{lane}{NL}v_lshlrev_b32 v{vTo+1}, 6, v{vTo+1}{NL}v_xor_b32 v{vTo}, v{vTo}, v{vTo+1}' if w4 and not dw else f'v_lshl_add_u32 v{vTo}, v{t3}, 3, v{vTo}'}
    v_and_b32 v{vTo+1}, 4, v{lane}
    v_lshl_add_u32 v{vTo}, v{vTo+1}, 5, v{vTo}
    v_and_b32 v{vTo+1}, 8, v{lane}
    v_lshl_add_u32 v{vTo}, v{vTo+1}, 2, v{vTo}
    v_add_u32 v{vTo}, s{sLb}, v{vTo}
    v_xor_b32 v{vTo+1}, {16 if w4 and not dw else 64}, v{vTo}
    v_xor_b32 v{vXw}, v{g_}, v{t2}
    v_lshlrev_b32 v{vXw}, 3, v{vXw}
    v_lshl_add_u32 v{vXw}, v{n_}, 5, v{vXw}
    s_lshl_b32 s{sA}, s{sW}, 10
    s_add_u32 s{sA}, s{sA}, {L_X}
    v_add_u32 v{vXw}, s{sA}, v{vXw}
    v_xor_b32 v{vXr}, v{t3}, v{g_}
    v_lshlrev_b32 v{vXr}, 3, v{vXr}
    v_lshl_add_u32 v{vXr}, v{t2}, 5, v{vXr}
    v_lshl_add_u32 v{vXr}, v{g_}, 7, v{vXr}
    v_add_u32 v{vXr}, {L_X}, v{vXr}
    v_lshl_add_u32 v{vPst}, v{t2}, 2, v{g_}
    v_lshlrev_b32 v{vPst}, 11, v{vPst}
    v_lshl_add_u32 v{vPst}, v{t3}, 4, v{vPst}
    s_lshl_b32 s{sA}, s{sW}, 16
    s_lshl_b32 s{sB}, s{sH}, 6
    s_add_u32 s{sA}, s{sA}, s{sB}
    v_add_u32 v{vPst}, s{sA}, v{vPst}
    ''')
    if w4: a(f'''
    ; reducer CU = 8w + 4(n/8) + g, wave G ; off = cu*8192 + G*2048 + h*64 + (n%8)*8 (+4096 imm bias)
    v_lshrrev_b32 v{vPst}, {4 if dw else 3}, v{n_}
    v_lshl_add_u32 v{vPst}, v{vPst}, 2, v{g_}
    v_mul_u32_u24 v{vMst}, {psw}, v{vPst}
    v_add_u32 v{vMst}, s{sB}, v{vMst}
    v_and_b32 v{vMst}, 0x7ff, v{vMst}
    v_lshl_add_u32 v{vPst}, v{vPst}, 13, v{vMst}
    v_and_b32 v{vMst}, {15 if dw else 7}, v{lane}
    v_lshl_add_u32 v{vPst}, v{vMst}, {2 if dw else 3}, v{vPst}
    s_lshl_b32 s{sA}, s{sW}, 16
    s_add_u32 s{sA}, s{sA}, 4096
    v_add_u32 v{vPst}, s{sA}, v{vPst}
    ''')
    a(f'''
    ; publish: (c/2)*32 + p*16 + (c%2)*8 + (i/2)*4
    v_mov_b32 v{vMst}, 0
    {chr(10).join(f'v_bfe_u32 v{t2}, v{lane}, {b_}, 1{chr(10)}v_lshl_add_u32 v{vMst}, v{t2}, {o_}, v{vMst}' for b_, o_ in {0: ((5,5),(2,4),(4,3),(1,2)), 1: ((5,5),(0,4),(4,3)), 2: ((2,5),(4,4),(1,3),(0,2)), 4: ((1,5),(4,4),(0,3),(5,2)), 5: ((0,5),(4,4),(5,3),(1,2)), 6: ((5,5),(4,4),(1,3),(0,2))}[6 if dw else 5 if w4 else ra])}
    ; O write: L_O + w*512 + (g*8+t)*16 + half*8 ; t = 2*(n/4)+n%2
    v_lshlrev_b32 v{vOw}, 7, v{g_}
    v_and_b32 v{t2}, 12, v{lane}
    v_lshl_add_u32 v{vOw}, v{t2}, 3, v{vOw}
    v_and_b32 v{t2}, 1, v{lane}
    v_lshl_add_u32 v{vOw}, v{t2}, 4, v{vOw}
    v_and_b32 v{t2}, 2, v{lane}
    v_lshl_add_u32 v{vOw}, v{t2}, 2, v{vOw}
    s_lshl_b32 s{sA}, s{sW}, 9
    s_add_u32 s{sA}, s{sA}, {L_O}
    v_add_u32 v{vOw}, s{sA}, v{vOw}
    s_mov_b32 s{sB1}, 0xcccccccc
    s_mov_b32 s{sB1+1}, 0xcccccccc
    s_mov_b32 s{sPm}, {0xaaaaaaaa if ra == 1 else 0xf0f0f0f0}
    s_mov_b32 s{sPm+1}, {0xaaaaaaaa if ra == 1 else 0xf0f0f0f0}
    s_mov_b32 s{sPub}, {(0x00550055, 0x00030003, 0x00ff00ff, 0, 0x000f000f)[ra]}
    s_mov_b32 s{sPub+1}, {(0x00550055, 0x00030003, 0, 0, 0x000f000f)[ra]}
    s_mov_b32 s{sQc}, {QSCALE}
    v_mov_b32 v{t2}, 0x4444
    v_mov_b32 v{t3}, 0xeeee
    v_cndmask_b32 v{vIdx}, v{t2}, v{t3}, {sp(sB1)}
    v_cndmask_b32 v{vM0}, -1, 0, {sp(sB1)}
    v_cndmask_b32 v{vM1}, 0, -1, {sp(sB1)}
    ''')
    for i in range(4):
        m_ = {0: 0x00110011 << i, 1: 0x11111111, 2: 0x55555555 << (i%2), 4: 0x00550055 << (i%2 + 8*(i//2))}[ra]
        a(f's_mov_b32 s{sSel+2*i}, {m_}\ns_mov_b32 s{sSel+2*i+1}, {m_}')
    a(f'''
    s_lshl_b32 s{sA}, s{sH}, 2
    s_add_u32 s{sA}, s{sA}, s{sW}
    s_add_u32 s{sRA}, s{sWs}, {WS_RA}
    s_addc_u32 s{sRA+1}, s{sWs+1}, 0
    s_mov_b32 s{sC}, s{sA}
    ''')
    if hp: a(f'''
    s_lshr_b32 s{sB}, s{sA}, 1
    s_and_b32 s{sB}, s{sB}, 15
    s_and_b32 s{sC}, s{sA}, 0x60
    s_or_b32 s{sC}, s{sC}, s{sB}
    s_and_b32 s{sB}, s{sA}, 1
    s_lshl_b32 s{sB}, s{sB}, 4
    s_or_b32 s{sC}, s{sC}, s{sB}
    ''')
    a(f'''
    s_lshl_b32 s{sB}, s{sC}, 11
    s_add_u32 s{sRAo}, s{sRA}, s{sB}
    s_addc_u32 s{sRAo+1}, s{sRA+1}, 0
    ''')
    if w4: a(f'''
    s_and_b32 s{sC}, s{sH}, 24
    s_lshl_b32 s{sC}, s{sC}, 2
    s_and_b32 s{sB}, s{sH}, 7
    s_add_u32 s{sC}, s{sC}, s{sB}
    s_lshl_b32 s{sB}, s{sW}, 3
    s_add_u32 s{sC}, s{sC}, s{sB}
    ''')
    a(f'''
    s_lshl_b32 s{sB}, s{sC}, 6
    s_add_u32 s{sB}, s{sB}, {WS_RM}
    s_add_u32 s{sRMs}, s{sWs}, s{sB}
    s_addc_u32 s{sRMs+1}, s{sWs+1}, 0
    s_lshl_b32 s{sB}, s{sW}, 11
    s_add_u32 s{sB}, s{sB}, {WS_RM}
    s_add_u32 s{sRMl}, s{sWs}, s{sB}
    s_addc_u32 s{sRMl+1}, s{sWs+1}, 0
    s_lshl_b32 s{sB}, s{sA}, 11
    s_add_u32 s{sKV}, s{sWs}, s{sB}
    s_addc_u32 s{sKV+1}, s{sWs+1}, 0
    s_lshl_b32 s{sB}, s{sA}, 10
    s_add_u32 s{sB}, s{sB}, {WS_KVM-(32 if kvnow else 64)*4096}
    s_add_u32 s{sKVM}, s{sWs}, s{sB}
    s_addc_u32 s{sKVM+1}, s{sWs+1}, 0
    s_lshl_b32 s{sB}, s{sH}, 7
    s_add_u32 s{sB}, s{sB}, {WS_FL+FL_P}
    s_add_u32 s{sFl}, s{sWs}, s{sB}
    s_addc_u32 s{sFl+1}, s{sWs+1}, 0
    s_lshl_b32 s{sB}, s{sH}, 8
    s_add_u32 s{sB}, s{sB}, {WS_FL+FL_K}
    s_add_u32 s{sFK}, s{sWs}, s{sB}
    s_addc_u32 s{sFK+1}, s{sWs+1}, 0
    ; touch/flag lanes: 0-31 V half of the own K/V record (advances per step), 32-63 ready flags of this head
    s_sub_u32 s{sB}, s{sB}, {2048+256}
    v_lshl_add_u32 v{vTc}, v{lane}, 3, s{sB}
    s_lshl_b32 s{sB}, s{sA}, 11
    s_add_u32 s{sB}, s{sB}, {WS_V-2048}
    v_lshl_add_u32 v{t2}, v{lane}, 6, s{sB}
    v_cmp_gt_u32 vcc, 32, v{lane}
    v_cndmask_b32 v{vTc}, v{vTc}, v{t2}, vcc
    s_mov_b32 s{sRdy}, {0 if mega else 100}
    v_lshlrev_b32 v{vL4}, 2, v{lane}
    v_mov_b64 {vr(HK,2)}, 0
    v_mov_b64 {vr(HV,2)}, 0
    ; M(0) gather: lane(row: b0=t%2,b1=half,b3:2=t/2 ; ga): byte = t*256 + (64s + 16(ea%4) + 4ga + 2half + ea/4)*2
    v_lshrrev_b32 v{t2}, 2, v{n_}
    v_lshlrev_b32 v{t2}, 9, v{t2}
    v_and_b32 v{t3}, 1, v{lane}
    v_lshl_add_u32 v{t2}, v{t3}, 8, v{t2}
    v_lshl_add_u32 v{t2}, v{g_}, {5 if dw else 3}, v{t2}
    v_and_b32 v{t3}, 2, v{lane}
    v_lshl_add_u32 v{t2}, v{t3}, 1, v{t2}
    s_lshl_b32 s{sA}, s{sW}, 11
    s_add_u32 s{sA}, s{sA}, {L_MQ}
    v_add_u32 v{t2}, s{sA}, v{t2}
    ''')
    if 'c' in tls: tl(a, 5 + tls.index('c'), T+12, 0)
    def warmup():
        a(f"""
        v_lshlrev_b32 v{t1}, 7, v{n_}
        v_and_b32 v{t3}, 1, v{g_}
        v_lshl_add_u32 v{t2}, v{t3}, 18, v{t1}
        global_load_dword v{vFd}, v{t2}, {sp(sRAo)} sc1
        v_lshl_add_u32 v{t1}, v{t3}, 13, v{t1}
        global_load_dword v{vFd}, v{t1}, {sp(sRMl)} sc1
        """)
    def park(pj): return dest(('o', pj+1)) if pj < NQ-1 else ('v', S+16)
    for w in range(1,4): a(f's_cmp_eq_u32 s{sW}, {w}\ns_cbranch_scc1 {L(f"pw{w}")}')
    nvm0, nds0 = a.nvm, a.nds
    for w in range(4):
        a.label(L(f'pw{w}'))
        a.nvm, a.nds = nvm0, nds0
        for bi in range(24):
            m, i = mord[bi//8], (bi%8) ^ (2*w); slot = bi % 8
            a.wvm(dtag[bi]); a('s_barrier')
            if bi in tls: tl(a, 5 + tls.index(bi), t1, 0)
            if bi and thr and bi < the:
                a(f's_cmp_eq_u32 s{sNx}, 1\ns_cbranch_scc1 {L(f"th{w}_{bi}")}')
                a.wvm(dtag[bi+thr]); a.label(L(f'th{w}_{bi}'))
            htouch(bi)
            if bi: dtag[bi+7] = dma(bi+7)
            if bi and lp: lpre(bi+7+lp)
            for hb, hj in hlp:
                if hb == bi: help_(hj)
            k, b = park(LDS_BLK.index((m,i))) if (m,i) in LDS_BLK else dest((m,i))
            for u in range(2):
                for J in range(4):
                    a(f'ds_read_b64_tr_b16 {vr(b+8*u+2*J,2,k)}, v{vTr+u+2*(J//2)} offset:{slot*4096+(J%2)*32768}')
            if bi == fst:
                for s_ in range(2):
                    for ea in range(8): a(f'ds_read_u16 v{S+8*s_+ea}, v{t2} offset:{(64*s_ + (4*(ea//2) + ea%2 if dw else 16*(ea%4) + ea//4))*2}')
            if bi == fst + 1:
                for r in range(8): a(f'v_lshl_or_b32 v{M+r}, v{S+2*r+1}, 16, v{S+2*r}')
            if bi == arr and 'p3' not in opt: a(f'global_load_dword v{vFd}, v{vL4}, {sp(sDbg)} sc1')
            if bi == arr + 8 and 'p3' not in opt:
                msk = ((1 << 24) - 1) | (1 << 40) if mega else 0xff
                a(f"""
                s_mov_b32 s{sSpin}, 0
                {L(f'tb{w}')}:
                v_and_b32 v{t1}, 0x01010101, v{vFd}
                v_cmp_ne_u32 vcc, 0x01010101, v{t1}
                s_and_b32 s{sA}, vcc_lo, {msk & 0xffffffff}
                s_and_b32 s{sB}, vcc_hi, {msk >> 32}
                s_or_b32 s{sA}, s{sA}, s{sB}
                s_cbranch_scc0 {L(f'tbo{w}')}
                s_sleep 4
                global_load_dword v{vFd}, v{vL4}, {sp(sDbg)} sc1
                s_add_u32 s{sSpin}, s{sSpin}, 1
                s_cmp_gt_u32 s{sSpin}, {SPIN}
                s_cbranch_scc1 {L('end')}
                s_waitcnt vmcnt(0)
                s_branch {L(f'tb{w}')}
                {L(f'tbo{w}')}:
                v_cmp_ne_u32 vcc, s{sXcc}, v{vFd}
                s_and_b32 s{sXcc}, vcc_lo, 0xff
                """)
                a.nvm -= 1
            if bi == warm: warmup()
            if mega and bi == fkb: ftag = a(f'global_load_dword v{vFk}, v{vL4}, {sp(sFK)} sc1')
            a('s_waitcnt lgkmcnt(0)')
        if w < 3: a(f's_branch {L("pwe")}')
    a.label(L('pwe'))
    tl(a, 1, t1, 0)
    def k0():
        a(f"""
        s_mov_b32 m0, s{sM0kv}
        s_nop 0
        global_load_lds_dwordx4 v{vLin}, {sp(sKV)} sc1
        global_load_lds_dwordx4 v{vLin}, {sp(sKV)} offset:1024 sc1
        global_load_lds_dword v{vTc}, {sp(sWs)} offset:2048 sc1
        """)
    for bi in range(24, 32):
        slot = bi % 8
        a.wvm(dtag[bi])
        if bi == 24: a('s_barrier'); dtag[31] = dma(31)
        if bi == warm: warmup()
        if mega and bi == fkb: ftag = a(f'global_load_dword v{vFk}, v{vL4}, {sp(sFK)} sc1')
        if bi == fke:
            if mega:
                a.wvm(ftag)
                fkeval(vFk)
                a(f's_cmp_lg_u32 s{sRdy}, 0\ns_cbranch_scc1 {L("k1")}')
                for _ in range(3): a(f'global_load_dword v{vFk}, v{vL4}, {sp(sFK)} sc1')
                a(f's_branch {L("k2")}')
                a.nvm -= 3
                a.label(L('k1'))
            k0()
            a.label(L('k2'))
        tmp = S + 16*(slot%2)
        k, b = dest(('o', slot)) if slot < NQ else ('v', tmp)
        for u in range(2):
            for J in range(4):
                a(f'ds_read_b64_tr_b16 {vr(b+8*u+2*J,2,k)}, v{vTo+u} offset:{slot*4096+J*1024}')
        if slot >= NQ or not opipe: a('s_waitcnt lgkmcnt(0)')
        k, b = park(slot) if slot < NQ else ('v', tmp)
        for u in range(2):
            for hf in range(2):
                a(f'ds_write_b128 v{vLw}, {vr(b+8*u+4*hf,4,k)} offset:{slot*4096+u*2048+hf*1024}')
        if not opipe: a('s_waitcnt lgkmcnt(0)')
    tl(a, 2, t1, 0)
    if 'ponly' in opt: a(f's_branch {LE}')
    if mega:
        a(f"""
        s_cmp_lg_u32 s{sRdy}, 0
        s_cbranch_scc1 {L("kwe")}
        s_mov_b32 s{sSpin}, 0
        {L('kw')}:
        s_waitcnt vmcnt(0)
        """)
        fkeval(vFk)
        a(f"""
        s_cmp_lg_u32 s{sRdy}, 0
        s_cbranch_scc1 {L("kwd")}
        s_sleep 2
        global_load_dword v{vFk}, v{vL4}, {sp(sFK)} sc1
        s_add_u32 s{sSpin}, s{sSpin}, 1
        s_cmp_gt_u32 s{sSpin}, {SPIN}
        s_cbranch_scc1 {L('end')}
        s_branch {L("kw")}
        """)
        a.label(L('kwd'))
        k0()
        a.label(L('kwe'))
    sKN = sWo
    a(f"""
    s_mov_b64 {sp(sKN)}, {sp(sKV)}
    s_mov_b32 s{sT}, 0
    s_mov_b32 s{sSpin}, 0
    """)
    tl(a, 3, t1, 0)
    if prof:
        for i in range(8): a(f's_mov_b32 s{sP+20+i}, 0')
        a(f's_memtime {sp(sP+28)}')
    def tstamp(idx, T=T):
        if 'ts' not in opt and 'tc' not in opt and 'tb' not in opt: return
        a(f"""
        {'s_memrealtime' if 'ts' in opt else 's_memtime'} s[96:97]
        {'s_memrealtime s[94:95]' if 'tb' in opt else ''}
        s_lshl_b32 s{sA}, s{sH}, 2
        s_add_u32 s{sA}, s{sA}, s{sW}
        s_lshl_b32 s{sA}, s{sA}, 6
        s_add_u32 s{sA}, s{sA}, {idx}
        s_lshl_b32 s{sA}, s{sA}, 2
        s_add_u32 s{sA}, s{sA}, {WS_PROF+131072}
        v_mov_b32 v{T}, s{sA}
        s_waitcnt lgkmcnt(0)
        {f's_bitcmp1_b32 s{sW}, 0{NL}s_cselect_b32 s96, s94, s96' if 'tb' in opt else ''}
        v_mov_b32 v{T+1}, s96
        s_mov_b64 exec, 1
        global_store_dword v{T}, v{T+1}, {sp(sWs)}
        """)
        if 'tk' in opt:
            for j_ in range(len(stamps)-1): a(f's_sub_u32 s96, s{sP+2*j_+2}, s{sP+2*j_}\nv_add_u32 v{T}, 32768, v{T}\nv_mov_b32 v{T+2+j_}, s96\nglobal_store_dword v{T}, v{T+2+j_}, {sp(sWs)}')
        a('s_mov_b64 exec, -1')
    tstamp(63)
    DPPM = 'row_mask:0xf bank_mask:0xf'
    QA = T+8; VA = QV; P2 = VX; S0 = S; S1 = S+16; K0 = M+16
    NEG = M+4; Sel = T+4; Dr = T+8
    if yd: K0 = KX; P2 = M+16; NEG = T+5
    sB0, sOne, sHalf = 4, 8, 10
    a(f'''
    s_not_b64 {sp(sB0)}, {sp(sB1)}
    s_mov_b32 s{sOne}, 0x3f803f80
    s_mov_b32 s{sOne+1}, 0x3f803f80
    s_mov_b32 s{sHalf}, 0x3f003f00
    s_mov_b32 s{sHalf+1}, 0x3f003f00
    ''')
    def pre1(L=None):
        n0 = len(a.items)
        if TL and L:
            a(f's_cmp_lg_u32 s{sT}, 24\ns_cbranch_scc1 {L("tls")}\ns_memtime s[92:93]\ns_memrealtime s[76:77]\ns_mov_b32 s{sSpin}, 0')
            a.label(L('tls')); n0 += 4
        if ps:
            a(f'v_lshrrev_b32 v{T+5}, 2, v{vLin}\nv_add_u32 v{T+3}, m0, v{vLin}')
            if L and mega: a(f'v_add_u32 v{T+6}, m0, v{T+5}\nds_read_b32 v{T+6}, v{T+6} offset:2048')
            a(f'''
            ds_read_b128 {vr(KX,4)}, v{T+3}
            ds_read_b128 {vr(KX+4,4)}, v{T+3} offset:1024
            v_add_u32 v{T+3}, s{sLb}, v{T+5}
            v_mov_b32 v{T+7}, 0
            v_add_u32 v{T+5}, {L_S}, v{T+5}
            ds_write_b32 v{T+3}, v{T+7}
            ''')
        elif L and mega: a(f'v_lshrrev_b32 v{T+5}, 2, v{vLin}\nv_add_u32 v{T+6}, m0, v{T+5}\nds_read_b32 v{T+6}, v{T+6} offset:2048')
        a(f"""
        s_and_b32 s{sA}, s{sT}, 1
        s_lshl_b32 s{sC}, s{sA}, 13
        s_add_u32 s{sMld}, s{sRMl}, s{sC}
        s_addc_u32 s{sMld+1}, s{sRMl+1}, 0
        s_xor_b32 s{sB}, s{sA}, 1
        """)
        if yd: a(f's_mov_b32 m0, s{sLb}')
        if yd == 1: a(f's_mov_b32 s{sGot}, 0')
        for x_ in stg(('k',0), K0): a(x_)
        for i in range(0,16,2): a(f'v_mov_b64 {vr(VA+i,2)}, 0')
        for i in range(0,8,2): a(f'v_mov_b64 {vr(QA+i,2)}, 0')
        return len(a.items) - n0
    def pre2(L=None):
        n0 = len(a.items)
        a(f's_mov_b32 exec_hi, 0\nv_add_u32 v{vTc}, {KST}, v{vTc}\ns_mov_b32 exec_hi, -1')
        a(f"""
        s_lshl_b32 s{sC}, s{sB}, 13
        s_add_u32 s{sMst}, s{sRMs}, s{sC}
        s_addc_u32 s{sMst+1}, s{sRMs+1}, 0
        s_lshl_b32 s{sC}, s{sB}, 18
        s_add_u32 s{sArs}, s{sRAo}, s{sC}
        s_addc_u32 s{sArs+1}, s{sRAo+1}, 0
        s_lshl_b32 s{sC}, s{sA}, 18
        s_add_u32 s{sSt0}, s{sRA}, s{sC}
        s_addc_u32 s{sSt0+1}, s{sRA+1}, 0
        s_add_u32 s{sSt1}, s{sSt0}, 32768
        s_addc_u32 s{sSt1+1}, s{sSt0+1}, 0
        s_add_u32 s{sAld}, s{sRAo}, s{sC}
        s_addc_u32 s{sAld+1}, s{sRAo+1}, 0
        s_add_u32 s{sKV}, s{sKN}, {WS_V}
        s_addc_u32 s{sKV+1}, s{sKN+1}, 0
        s_add_u32 s{sKN}, s{sKN}, {KST}
        s_addc_u32 s{sKN+1}, s{sKN+1}, 0
        s_add_u32 s{sKVM}, s{sKVM}, {32*4096}
        s_addc_u32 s{sKVM+1}, s{sKVM+1}, 0
        """)
        if not ps: a(f"""
        s_mul_i32 s{sC}, s{sB}, {4*KVS}
        s_add_u32 {f's{sVer}' if yd == 2 else 'm0'}, s{sC}, s{sM0kv}
        s_mul_i32 s{sC}, s{sA}, {4*KVS}
        s_add_u32 s{sC}, s{sC}, {L_KV}
        v_add_u32 v{vKr}, s{sC}, v{vLin}
        """)
        a(f"""
        s_lshl_b32 s{sC}, s{sW}, 11
        s_add_u32 s{sC}, s{sC}, {L_MQ}
        v_add_u32 v{T+3}, s{sC}, v{vLin}
        s_add_u32 s{sC}, s{sT}, {int(kvnow)}
        v_mov_b32 v{T+4}, s{sC}
        """)
        for i in range(1,4): a(f'v_xor_b32 v{T+i-1}, {i*2048}, v{T+3}')
        if L and mega:
            a(f'''
            s_waitcnt lgkmcnt(0)
            v_cmp_eq_u32 vcc, 0x01010101, v{T+6}
            s_add_u32 s{sA}, s{sT}, 1
            s_ff0_i32_b32 s{sRdy}, vcc_hi
            s_lshl_b32 s{sRdy}, s{sRdy}, 1
            s_cmp_lt_u32 s{sA}, s{sRdy}
            s_cbranch_scc0 {L('rp')}
            ''')
        return len(a.items) - n0
    def ldM(r):
        if yd: a(f'global_load_lds_dwordx4 v{vLin}, {sp(sMld)} sc1\nglobal_load_lds_dwordx4 v{vLin}, {sp(sMld)} offset:1024 sc1')
        else: a(f'global_load_dwordx4 {vr(r,4)}, v{vLin}, {sp(sMld)} sc1\nglobal_load_dwordx4 {vr(r+4,4)}, v{vLin}, {sp(sMld)} offset:1024 sc1')
    def ldA(r):
        if ra == 1:
            for i in range(8): a(f'global_load_dword v{r+i}, v{T+1}, {sp(sAld)} offset:{256*i} sc1')
            return
        if ra == 2:
            for i in range(4): a(f'global_load_dwordx2 {vr(r+2*i,2)}, v{T+1}, {sp(sAld)} offset:{512*i} sc1')
            return
        a(f'global_load_dwordx4 {vr(r,4)}, v{vLin}, {sp(sAld)} sc1\nglobal_load_dwordx4 {vr(r+4,4)}, v{vLin}, {sp(sAld)} offset:1024 sc1')
    def spin(): a(f's_add_u32 s{sSpin}, s{sSpin}, 1\ns_cmp_gt_u32 s{sSpin}, {SPIN}\ns_cbranch_scc1 {LE}')
    acc = {'q': QA, 'k': KA, 'v': VA}
    def P_(m, sg, u): SM(acc[m]+4*u, M+4*sg, m, sg, u)
    for x_ in stg(('q',0), S0) + stg(('q',1), S1): a(x_)
    for r in range(8): a(f'v_min_u32 v{M+r}, -2, v{M+r}')
    if yd: a(f's_lshl_b32 s{sLb}, s{sW}, 11\ns_add_u32 s{sLb}, s{sLb}, {L_MQ}')
    if ps: a(f'''
    s_lshl_b32 s{sLb}, s{sW}, 10
    v_add_u32 v{vKr}, s{sLb}, v{vXr}
    s_add_u32 s{sLb}, s{sLb}, {L_X+4096}
    v_add_u32 v{T}, s{sLb}, v{vLin}
    v_mov_b64 {vr(T+4,2)}, 0
    v_mov_b64 {vr(T+6,2)}, 0
    ds_write_b128 v{T}, {vr(T+4,4)}
    s_lshl_b32 s{sLb}, s{sW}, 8
    s_add_u32 s{sLb}, s{sLb}, {L_S}
    s_waitcnt vmcnt(0)
    ''')
    pre1(); pre2()
    if yd: a(f'ds_write_b128 v{T+3}, {vr(M,4)}\nds_write_b128 v{T+3}, {vr(M+4,4)} offset:1024')
    a('s_waitcnt vmcnt(0) lgkmcnt(0)')
    if mega: a(f's_cmp_lg_u32 s{sXcc}, 0\ns_cbranch_scc1 {L("s_try")}')
    a(f's_branch {L("try")}')
    staged0 = dict(staged)
    def loop(L, stc, mk=mk, rdw=rdw):
        staged.clear(); staged.update(staged0)
        dm = [f'global_load_lds_dwordx4 v{vLin}, {sp(sKN)} offset:{j*1024} sc1' for j in range(2)] + \
             [f'global_load_dwordx4 {vr(KX+4*j,4)}, v{vLin}, {sp(sKV)} offset:{(j-2)*1024} sc1' for j in (2,3)]
        kvb = int('kv@B0' in vp.split()); kvst = f'global_store_dwordx4 v{vLin}, {vr(HK,4)}, {sp(sKVM)} sc1'
        a.label(L('retry'))
        spin()
        if prof: a(f's_add_u32 s{sP+26}, s{sP+26}, 59')
        if TL: a(f's_add_u32 s{sSpin}, s{sSpin}, 255')
        if yd == 2:
            a('s_nop 2')
            for i in range(0,4,2): a(f'v_mov_b64 {vr(QA+i,2)}, 0')
            for i in range(0,8,2): a(f'v_mov_b64 {vr(KA+i,2)}, 0')
            a(f's_waitcnt vmcnt({kvb})')
            ldM(None)
            if kvb: a(kvst)
        elif yd:
            a(f's_waitcnt lgkmcnt(0)\ns_cmp_eq_u32 s{sGot}, 0\ns_cbranch_scc1 {L("r1")}\ns_barrier')
            ldM(None)
            a.label(L('r1'))
            a(f's_mov_b32 s{sGot}, 1\ns_sub_u32 s{sC}, m0, s{sM0kv}\ns_add_u32 s{sC}, s{sC}, {L_KV}')
            for i in range(4): a(f's_xor_b32 s{sA}, s{sW}, {i}\ns_mul_i32 s{sA}, s{sA}, {KVS}\ns_add_u32 s{sA}, s{sA}, s{sC}\nv_add_u32 v{T+(i-1)%4}, s{sA}, v{vLin}')
            for i in range(0,8,2): a(f'v_mov_b64 {vr(KA+i,2)}, 0')
            for i in range(0,8,2): a(f'v_mov_b64 {vr(QA+i,2)}, 0')
            a('s_waitcnt vmcnt(0)')
        else:
            a(f's_waitcnt vmcnt({kvb})')
            for i in range(0,8,2): a(f'v_mov_b64 {vr(M+i,2)}, {vr(P2+i,2)}')
            ldM(P2)
            if kvb: a(kvst)
            for i in range(0,8,2): a(f'v_mov_b64 {vr(QA+i,2)}, 0')
        a(f's_branch {L("try")}')
        if al is not None:
            a('.p2align 6')
            for _ in range(al): a('s_nop 0')
        a.label(L('step'))
        n = pre1(L)
        if wB:
            cur = n + 3
            for w_ in (3,2,1,0):
                a.nops(wB[w_] - cur - (2 if w_ else 0)); cur = max(cur + (2 if w_ else 0), wB[w_])
                if w_: a(f's_cmp_eq_u32 s{sW}, {w_}\ns_cbranch_scc1 {L("p1")}')
            a.label(L('p1'))
        else: a.nops(preB - n - 3)
        ldM(M)
        n = pre2(L); a.nops(gapB - n - 2)
        a.label(L('rk'))
        ldM(P2)
        if kvb: a(kvst)
        a(f's_waitcnt vmcnt({2+kvb}) lgkmcnt(0)')
        a.label(L('try'))
        a.nds = 0; a.nvm = 2 + kvb; set2 = 2
        stamp('a0')
        ck = M+8
        if not yd:
            mw = [f'ds_write_b128 v{T+3}, {vr(M,4)}', f'ds_write_b128 v{T+3}, {vr(M+4,4)} offset:1024']
            if wsh == 3: mw = [f'ds_write_b64 v{T+3}, {vr(M+2*i,2)} offset:{(i//2)*1024+(i%2)*8}' for i in range(4)]
            for _ in range({0:2, 1:0, 2:1, 3:0, 4:0}[wsh]): a(mw.pop(0))
            P_('q',0,0)
            for _ in range({0:0, 1:1, 2:1, 3:2, 4:2}[wsh]): a(mw.pop(0))
            stamp('w0')
            a(f'v_max_u32 v{ck}, v{M}, v{M+4}' if fc else f'v_max3_u32 v{ck}, v{M}, v{M+2}, v{M+4}')
            if fc == 2: a(f'v_cmp_eq_u32 vcc, -1, v{ck}')
            P_('q',0,1)
            for x_ in mw: a(x_)
            stamp('w1')
            if fc == 2: a(f's_cbranch_vccnz {L("retry")}')
            elif fc:
                a(f'v_cmp_eq_u32 vcc, -1, v{ck}')
                P_('q',1,0); a(f's_cbranch_vccnz {L("retry")}')
            else:
                a(f'v_max_u32 v{ck}, v{ck}, v{M+6}')
                if mk == 8: a(f'v_max3_u32 v{ck}, v{ck}, v{M+1}, v{M+3}\nv_max3_u32 v{ck}, v{ck}, v{M+5}, v{M+7}')
                P_('q',1,0); a(f'v_cmp_eq_u32 vcc, -1, v{ck}')
                P_('q',1,1); a(f's_cbranch_vccnz {L("retry")}')
        rlate = any(x_[0] == 'r' and x_[1] != 'm' and x_[3] in 'CW' for x_ in vp.split())
        NG2 = T if rlate else NEG
        rs = [f'global_store_dwordx4 v{vLin}, {vr(NG2,4)}, {sp(sArs)} offset:{1024*i}{stc}' for i in range(2)]
        if rdw: rs = [f'global_store_dword v{vLin}, v{NG2}, {sp(sArs)} offset:{1024*i}{stc}' for i in range(2)]
        vops = dict(d0=dm[0], d1=dm[1], d2=dm[2], d3=dm[3], r0=rs[0], r1=rs[1],
                    kv=f'global_store_dwordx4 v{vLin}, {vr(HK,4)}, {sp(sKVM)} sc1',
                    fl=f's_mov_b64 exec, {sp(sFm)}\nglobal_store_dword v{vLin}, v{T+4}, {sp(sFl)} sc1\ns_mov_b64 exec, -1',
                    tc=f'global_load_lds_dword v{vTc}, {sp(sWs)} offset:2048{tsc}',
                    rm=f'global_store_dword v{vMst}, v{NEG}, {sp(sMst)}{stc}')
        if kvp:
            vops['kv'] = (f's_cmp_lt_u32 s{sT}, {kvp}\ns_cselect_b64 exec, 0, -1\nglobal_store_dwordx4 v{vLin}, {vr(HK,4)}, {sp(sKVM)} sc1\ns_mov_b64 exec, -1')
        if flp:
            vops['fl'] = (f's_cmp_lt_u32 s{sT}, {flp}\ns_cselect_b64 exec, 0, {sp(sFm)}\nglobal_store_dword v{vLin}, v{T+4}, {sp(sFl)} sc1\ns_mov_b64 exec, -1')
        vt = {}; AK['vt'] = vt
        def VM(slot):
            for x_ in vp.split():
                o, s_ = x_.split('@')
                if s_ != slot: continue
                k_ = slot[0]; n_ = int(slot[1:])
                if yd == 2: assert k_ != 'Q' or n_ > 2 + (o[0] == 'r')
                if yd == 1 and o != 'kv': assert k_ != 'Q' or n_ > ckp[3] + 1 + (o[0] == 'r') * 2
                if o[0] == 'r': assert k_ == 'Q' and (1 if o == 'rm' or rdw else 4) <= n_ or k_ == 'V' or k_ in 'CW' and o != 'rm'
                if o == 'fl': assert k_ in 'AQV'
                if o == 'kv': assert k_ in 'PACW' or k_ == 'Q' and n_ < 21
                if o in ('d0', 'd1', 'tc'): assert 'd2' in vt and 'd3' in vt and 'rm' in vt
                if o in skip: vt[o] = a.nvm; continue
                vt[o] = a(vops[o])
            stamp(slot)
        mt = {}
        def rdM(sg): mt[sg] = a(f'ds_read_b128 {vr(M+4*sg,4)}, v{T+(sg//2-1)%4} offset:{1024*(sg%2)}')
        vq = [(sg,u) for sg in ((4,5,6,7,0,1,2,3) if yd else (0,1,4,5,6,7,2,3)) for u in (0,1)]
        def V_():
            sg, u = vq.pop(0); P_('v', sg, u)
        g1 = stg(('k',6), S0) + stg(('k',7), S1); tg1 = []
        def G1(i):
            if sgq <= i < sgq + 8: tg1.append(a(g1[i-sgq]))
        rq = [2,3,4,5,6,7]
        for j in range(3-fc,0 if yd else 12):
            if j == 3 - fc: pass
            elif j < 4: P_('q',1,j%2)
            elif j < 8: P_('k',(j-4)//2,j%2)
            else: V_()
            if vmf and j >= 4: VM('P0' if j == 4 else f'A{j-5}')
            if j > pb1 - 1 and rq and (rq[0] < 4 or j >= 3 + rq[0]//2): rdM(rq.pop(0))
            if j >= 9: G1(j-12)
            if not vmf and j >= 4: VM('P0' if j == 4 else f'A{j-5}')
            if j == pb1 - 1:
                a(f's_waitcnt lgkmcnt(0)\ns_barrier')
                stamp('a1')
                for _ in range(nr0): rdM(rq.pop(0))
        if yd == 1:
            a('s_barrier'); stamp('a1'); rq = list(range(8))
        if yd == 2: rq = [0,1]
        while rq: rdM(rq.pop(0))
        stamp('a2')
        QP = T+6; D0 = T; D1 = T+8; Dm = VA; X = XO
        def half(r, d): return [f'v_add_f32 v{r}, v{r}, v{r+2}', f'v_add_f32 v{r+1}, v{r+1}, v{r+3}', f'v_cvt_pk_bf16_f32 v{d}, v{r}, v{r+1}']
        a.wds(mt[0 if yd else 2])
        seq = [('q',s_,0) for s_ in range(2,8)] + [('q',2,1),('q',3,1),('k',6,0),('k',6,1),('k',7,0),('k',7,1)] + \
              [('q',s_,1) for s_ in range(4,8)] + [('k',s_,0) for s_ in range(2,6)] + [('k',s_,1) for s_ in range(2,6)]
        z0 = [f'v_mov_b64 {vr(M+2*i,2)}, 0' for i in range(4,8)]
        kx = [f'ds_read_b128 {vr(S+4*i,4)}, v{vKr} offset:{(i//2)*KVS+(i%2)*1024}' for i in range(8)]
        va = {i: f'v_mov_b32 v{NEG+i}, -1' for i in range(1 if rlate or rdw else 4)}
        for i, p_ in enumerate((4,5)): va[p_] = f'v_mov_b64 {vr(M+2*i,2)}, 0'
        wr = {}
        for p_, (r, d, off) in ((7, (QA, QP, 0)), (17, (QA+4, QP+1, 512)), (21, (KA, HK, 4))):
            for j, x_ in enumerate(half(r, d)): va[p_+j] = x_
            wr[p_+3] = f'ds_write_b32 v{vXw}, v{d} offset:{off}'
        xr = [f'ds_read_b64_tr_b16 {vr(X+2*i,2)}, v{vXr} offset:{i*512}' for i in range(8)]
        tx = []
        On = T+12; Cq = T+7
        rV = max([int(x_[4:]) for x_ in vp.split() if x_[0] == 'r' and x_[3] == 'V'] + [-1])
        fv = [f'v_mov_b64 {vr(On,2)}, {sp(sOne)}', f'v_mov_b64 {vr(On+2,2)}, {sp(sHalf)}', f'v_mov_b32 v{Cq}, s{sQc}', f'v_mov_b64 {vr(NEG+2,2)}, 0', f'v_mov_b64 {vr(NEG,2)}, 0']
        g2 = stg(('o',7), M+16)
        if yd:
            ku0 = [('k',s_,0) for s_ in range(1,6)]
            seq = [('q',0,0),('k',0,0),('k',0,1),('q',0,1),('q',1,0),('q',1,1)] + [('q',s_,u) for u in (0,1) for s_ in range(2,8)] + \
                  ku0[:kp] + [('k',6,0),('k',6,1),('k',7,0),('k',7,1)] + ku0[kp:] + [('k',s_,1) for s_ in range(1,6)]
            ck = NEG; got = 0
            va = {ckp[0]: f'v_max3_u32 v{ck}, v{M}, v{M+4}, v{M+8}', ckp[1]: f'v_max3_u32 v{ck}, v{ck}, v{M+12}, v{M+16}', ckp[2]: f'v_max3_u32 v{ck}, v{ck}, v{M+20}, v{M+24}',
                  ckp[3]: f'v_max_u32 v{ck}, v{ck}, v{M+28}', ckp[3]+1: f'v_cmp_eq_u32 vcc, -1, v{ck}', ckp[3]+3: f'v_mov_b32 v{NEG}, -1'}
            wr = {}
            for p_, (r, d, off) in ((13, (QA, QP, 0)), (19, (QA+4, QP+1, 512)), (28, (KA, HK, 4))):
                for j, x_ in enumerate(half(r, d)):
                    assert p_+j not in va
                    va[p_+j] = x_
                wr[p_+3] = f'ds_write_b32 v{vXw}, v{d} offset:{off}'
            fv = fv[:3]; fz = [f'v_mov_b64 {vr(M+2*i,2)}, 0' for i in range(4)]
            p6 = 18 + kp; g0 = ckp[3] + 2; NQK = 32
            if yd == 2:
                ku0 = [('k',s_,0) for s_ in range(2,6)]
                vo = [('v',0,0),('v',0,1),('v',1,0),('v',1,1)][:nvo]
                for x_ in vo: vq.remove(x_[1:])
                seq = [('q',0,0),('k',0,0),('k',0,1),('q',0,1),('q',1,0),('q',1,1),('k',1,0),('k',1,1)] + vo + \
                      ([('q',s_,u) for s_ in range(2,8) for u in (0,1)] if qo else [('q',s_,u) for u in (0,1) for s_ in range(2,8)]) + \
                      ku0[:kp] + [('k',6,0),('k',6,1),('k',7,0),('k',7,1)] + ku0[kp:] + [('k',s_,1) for s_ in range(2,6)]
                NQK = 32 + nvo
                va = {0: f'v_max_u32 v{ck}, v{M}, v{M+4}', 1: f'v_cmp_eq_u32 vcc, -1, v{ck}', 3: f'v_mov_b32 v{NEG}, -1'}
                wr = {}
                for p_, (r, d, off) in ((20 if qo else 15, (QA, QP, 0)), (23 if qo else 21, (QA+4, QP+1, 512)), (29, (KA, HK, 4))):
                    for j, x_ in enumerate(half(r, d)): va[p_+j+nvo] = x_
                    wr[p_+3+nvo] = f'ds_write_b32 v{vXw}, v{d} offset:{off}'
                p6 = 20 + kp + nvo; g0 = g0p
            for i in range(48):
                j = i - NQK
                if i < NQK: P_(*seq[i])
                else: V_()
                if vmf: VM(f'Q{i}' if i < NQK else f'V{j}')
                if yd == 2:
                    nd = 1 if i == 0 else seq[i+1][1] if i < 20 + nvo else 0
                    if i == 2:
                        a(f's_cbranch_vccnz {L("retry")}'); VM('P0'); a('s_barrier'); stamp('a1')
                        rdM(2); rdM(3); a(f's_mov_b32 m0, s{sVer}')
                    if 3 <= i < 7: rdM(i+1)
                else: nd = max([seq[i+1][1] if i < 11 else 0] + [(2,4,6,7)[c_] for c_ in range(4) if ckp[c_] == i])
                if nd > got: a.wds(mt[nd]); got = nd
                if i == g0 and yd == 1: a(f's_cbranch_vccnz {L("retry")}'); stamp('a3')
                if p6 - 1 <= i < p6 + 3: a.wds(tg1[2*(i-p6+1)+1])
                if g0 <= i < g0 + 8: tg1.append(a(g1[i-g0]))
                if i in wr: a(wr[i])
                if p6 + 4 <= i < p6 + 12: tkx = a(kx[i-p6-4])
                if not vmf: VM(f'Q{i}' if i < NQK else f'V{j}')
                if i in va: a(va[i])
                if i == NQK - 1: stamp('b0')
                if j == 1:
                    for x_ in half(KA+4, HK+1): a(x_)
                    wk = a(f'ds_write_b32 v{vXw}, v{HK+1} offset:516')
                if j == pB2: a.wds(wk); a('s_barrier'); stamp('b1')
                if j >= pB2:
                    for _ in range(ntr):
                        if len(tx) < 8: tx.append(a(xr[len(tx)])); busy = i
                if j >= max(g7 - 24, 10 - 2*len(g2)) and g2 and not (tx and busy == i): a(g2.pop(0))
                if j == 2: a(f's_mov_b64 vcc, {sp(sB0)}\ns_cmp_eq_u32 s{sT}, {nsteps-1}')
                if i == 47: a(f's_cbranch_scc1 {L("last")}')
                if 2 <= j and i < 47 and j != pB2:
                    if fv: a(fv.pop(0))
                    elif fz and not any(x_[0] == (0 if len(fz) > 2 else 1) for x_ in vq) and i >= (42 if len(fz) > 2 else 44) - 8*(nvo // 4): a(fz.pop(0))
            fv += fz
        MF = 'v_mfma_f32_16x16x32_bf16'
        p6 = 8
        if ps:
            seq = [('q',s_,u) for u in (0,1) for s_ in range(2,8)] + [('k',6,0),('k',6,1),('k',7,0),('k',7,1)] + [('k',s_,u) for u in (0,1) for s_ in range(2,6)]
            p6 = 12
            for p_ in range(17,20): del va[p_]
            for j, x_ in enumerate(half(QA+4, QP)): va[13+j] = x_
            del wr[20]
            B0 = T+8; B1 = T; DP = T+12
            for u in (0,1):
                wr[10+6*u] = f'ds_write_b64 v{vXw}, {vr(QP,2)} offset:{512*u}\nds_write_b32 v{vXw}, v{QP} offset:{4096+512*u+4}'
                rd_ = f'ds_read_b64_tr_b16 {vr(B0+2*u,2)}, v{vKr} offset:{512*u}\nds_read_b64_tr_b16 {vr(B1+2*u,2)}, v{vKr} offset:{4096+512*u}'
                wr[11+6*u] = rd_
            g5 = None
            xr += [f'ds_read2st64_b32 {vr(D0+2*i,2)}, v{T+5} offset0:{2*i} offset1:{2*i+1}' for i in range(2)]
        for i in range(0 if yd else 36):
            if i < 24: P_(*seq[i])
            else: V_()
            if i < 5: a.wds(mt[i+3])
            if p6 - 1 <= i < p6 + 3: a.wds(tg1[2*(i-p6+1)+1])
            G1(i)
            if i in wr: tw = a(wr[i])
            if ps:
                if i == 17: tq = tw
                if i == 16: g5 = stg(('o',5), S0) + stg(('o',6), S1)
                if i in (pad, pad+1):
                    for r in range(2*(i-pad), 2*(i-pad)+2): a(f'ds_add_f32 v{T+5}, v{DP+r} offset:{256*r}')
                if i in g56: a(g5.pop(0))
            elif pKx <= i < pKx + 8: tkx = a(kx[i-pKx])
            VM(f'Q{i}' if i < 24 else f'V{i-24}')
            if i in va: a(va[i])
            if ps and i == pmf:
                a.wds(tq)
                a(f'{MF} {vr(DP,4)}, {vr(KX,4)}, {vr(B0,4)}, 0\n{MF} {vr(DP,4)}, {vr(KX+4,4)}, {vr(B1,4)}, {vr(DP,4)}')
            if i == 23: stamp('b0')
            if i == 25:
                for x_ in half(KA+4, HK+1): a(x_)
                wk = a(f'ds_write_b32 v{vXw}, v{HK+1} offset:516')
            if i == 24 + pB2: a.wds(wk); a('s_barrier'); stamp('b1')
            if i >= 24 + pB2:
                for _ in range(ntr):
                    if len(tx) < len(xr): tx.append(a(xr[len(tx)])); busy = i
            if i >= max(g7, 34 - 2*len(g2)) and g2 and not (tx and busy == i): a(g2.pop(0))
            if i == 26: a(f's_mov_b64 vcc, {sp(sB0)}\ns_cmp_eq_u32 s{sT}, {nsteps-1}')
            if i == 35: a(f's_cbranch_scc1 {L("last")}')
            if 26 <= i < 35 and i != 24 + pB2 and not (tx and busy == i and ntr > 2) and fv and (len(fv) > 2 or i - 24 > rV): a(fv.pop(0))
        while len(tx) < len(xr): tx.append(a(xr[len(tx)]))
        stamp('c0')
        vf = half(VA, HV) + half(VA+4, HV+1)
        mx = T+4; tm = T+5; ma = T+6; vOr = T+4
        if not ps: g5 = stg(('o',5), S0); g6 = stg(('o',6), S1)
        P = T+8; Dd = T+10; Ba = XO; Bb = XO+4; Po = XO+8; Ls = XO+12
        MF = 'v_mfma_f32_16x16x32_bf16'
        lastc = list(vf)
        mg = [f'v_cndmask_b32_dpp v{D0+r}, v{D1+r}, v{D0+r}, vcc quad_perm:[0,1,0,1] {DPPM}' for r in range(4)] + \
             [f'v_max3_f32 v{mx}, v{D0}, v{D0+1}, v{D0+2}', f'v_max_f32 v{mx}, v{mx}, v{D0+3}']
        rest = g2 + fv
        a.wds(tx[{0: 7, 1: 3, 2: 1}[wx]])
        Dq = Dm
        if ps:
            Dq = D1; g6 = g2 + g5; rest = []
            fl_ = fv + vf[:3] + mg[4:] + vf[3:]
            for i in range(4):
                r = X+4*i; a(f'{MF} {vr(Dq,4)}, {vr(r,4)}, {vr(r,4)}, {vr(Dq,4) if i else 0}')
                stamp(f'M{i}')
                if i == 1: a.wds(tx[9])
                for _ in range(2):
                    if g6: a(g6.pop(0))
                for _ in range(2 if i else 1): a(fl_.pop(0))
            for x_ in fl_: a(x_)
        for i in range(0 if ps else 12):
            if i < 8:
                w_ = i//2; d = (D0, D1)[i%2]
                a(f'{MF} {vr(d,4)}, {vr(S+4*i,4)}, {vr(X+4*w_,4)}, {vr(d,4) if w_ else 0}')
            else:
                r = X+4*(i-8); a(f'{MF} {vr(Dm,4)}, {vr(r,4)}, {vr(r,4)}, {vr(Dm,4) if i > 8 else 0}')
            stamp(f'M{i}')
            if i == 0:
                for _ in range(2):
                    if rest: a(rest.pop(0))
            elif i == 1 and wx == 2: a.wds(tx[3]); a(vf.pop(0))
            elif i == 3 and wx: a.wds(tx[7]); a(vf.pop(0))
            elif i < 4: a(vf.pop(0)); a(vf.pop(0))
            elif i < 8:
                a(g5.pop(0))
                if vf: a(vf.pop(0))
                elif rest: a(rest.pop(0))
                elif i >= 6: a(g6.pop(0))
            elif i == 8: a(g6.pop(0)); a(g6.pop(0))
            else: a(mg.pop(0)); a(mg.pop(0))
        assert not rest
        for x_ in g6: a(x_)
        stamp('c1')
        a(f'v_max_f32_dpp v{mx}, v{mx}, v{mx} quad_perm:[2,3,0,1] {DPPM}')
        a(f'v_mul_f32 v{mx}, v{mx}, v{Cq}')
        a(f'v_mul_f32_dpp v{Dm}, v{Dq+2}, v{Cq} quad_perm:[0,1,0,1] {DPPM}')
        a(f'v_mul_f32_dpp v{Dm+1}, v{Dq+3}, v{Cq} quad_perm:[0,1,0,1] {DPPM}')
        a(f'v_max3_f32 v{tm}, v{mx}, v{Dm}, v{Dm+1}')
        a(f'v_max3_f32 v{mx}, v{mx}, v{Dm}, v{Dm+1}')
        a(z0.pop()); a(z0.pop())
        a(f'v_permlane16_swap_b32 v{mx}, v{tm}\nv_max_f32 v{ma}, v{mx}, v{tm}\nv_max_f32 v{mx}, v{mx}, v{tm}')
        a(z0.pop()); a(z0.pop())
        a(f'v_permlane32_swap_b32 v{mx}, v{ma}\nv_max_f32 v{mx}, v{mx}, v{ma}')
        ex = [Dm, Dm+1, T, T+1, T+2, T+3]
        for r in ex[:2]: a(f'v_sub_f32 v{r}, v{r}, v{mx}')
        for r in ex[2:]: a(f'v_fma_f32 v{r}, v{r}, v{Cq}, -v{mx}')
        for r in ex[:4]: a(f'v_exp_f32 v{r}, v{r}')
        a(f'v_cvt_pk_bf16_f32 v{Dm}, v{Dm}, v{Dm+1}')
        for r in ex[4:]: a(f'v_exp_f32 v{r}, v{r}')
        stamp('c2')
        a.wvm(max(vt['d2'], vt['d3'], vt['rm']))
        a(f"""
        v_cvt_pk_bf16_f32 v{P}, v{T}, v{T+1}
        v_and_b32 v{Dd}, v{Dm}, v{vM0}
        v_and_b32 v{Dd+1}, v{Dm}, v{vM1}
        v_cvt_pk_bf16_f32 v{P+1}, v{T+2}, v{T+3}
        v_and_b32 v{Ba}, v{P}, v{vM0}
        v_mfma_f32_16x16x16_bf16 {vr(Po,4)}, {vr(HV,2)}, {vr(Dd,2)}, 0
        v_and_b32_dpp v{Ba+2}, v{P}, v{vM0} quad_perm:[2,3,0,1] {DPPM}
        v_and_b32 v{Ba+1}, v{P+1}, v{vM0}
        v_mfma_f32_16x16x32_bf16 {vr(Ls,4)}, {vr(On,4)}, {vr(P,4)}, 0
        v_and_b32_dpp v{Ba+3}, v{P+1}, v{vM0} quad_perm:[2,3,0,1] {DPPM}
        v_and_b32_dpp v{Bb}, v{P}, v{vM1} quad_perm:[2,3,0,1] {DPPM}
        v_and_b32_dpp v{Bb+1}, v{P+1}, v{vM1} quad_perm:[2,3,0,1] {DPPM}
        v_mfma_f32_16x16x32_bf16 {vr(Po,4)}, {vr(VX,4)}, {vr(Ba,4)}, {vr(Po,4)}
        v_and_b32 v{Bb+2}, v{P}, v{vM1}
        v_and_b32 v{Bb+3}, v{P+1}, v{vM1}
        v_and_b32 v{vOr}, -9, v{vOw}
        v_xor_b32 v{vOr+1}, 512, v{vOr}
        v_mfma_f32_16x16x32_bf16 {vr(Po,4)}, {vr(VX+4,4)}, {vr(Bb,4)}, {vr(Po,4)}
        v_add_f32_dpp v{Ls}, v{Ls}, v{Ls} quad_perm:[2,3,0,1] {DPPM}
        v_rcp_f32 v{Ls}, v{Ls}
        v_xor_b32 v{vOr+2}, 1024, v{vOr}
        v_xor_b32 v{vOr+3}, 1536, v{vOr}
        """)
        assert not z0
        if rlate: a(f'v_mov_b64 {vr(T,2)}, -1' + ('' if rdw else f'\nv_mov_b64 {vr(T+2,2)}, -1'))
        a(f"""
        v_mul_f32 v{Po}, v{Po}, v{Ls}
        v_mul_f32 v{Po+1}, v{Po+1}, v{Ls}
        v_mul_f32 v{Po+2}, v{Po+2}, v{Ls}
        v_mul_f32 v{Po+3}, v{Po+3}, v{Ls}
        v_cvt_pk_bf16_f32 v{Po}, v{Po}, v{Po+1}
        v_cvt_pk_bf16_f32 v{Po+1}, v{Po+2}, v{Po+3}
        """)
        O = XO
        ow = a(f'ds_write_b64 v{vOw}, {vr(Po,2)}')
        ot = [a(f'ds_read_b128 {vr(O,4)}, v{vOr}')]
        stamp('c3')
        VM('C0')
        a.wds(ow); a('s_barrier')
        stamp('d0')
        for k_ in range(1,4): ot.append(a(f'ds_read_b128 {vr(O+4*k_,4)}, v{vOr+k_}'))
        VM('C1')
        PS = VA
        def W_(G, ki): SM(M+4*G, O+4*ki, 'o', 2*ki+G//2, G%2)
        def cv(G): return [f'v_cvt_pk_bf16_f32 v{PS+2*G+h_}, v{M+4*G+2*h_}, v{M+4*G+2*h_+1}' for h_ in range(2)]
        a.wds(ot[0])
        for G in range(4):
            W_(G, 0); VM(f'W{G}')
        a.wds(ot[1])
        stamp('d1')
        if w4:
            def st_(G):
                c_ = cv(G)
                if dw: return sum([[c_[h_], f'v_min_u32 v{PS+2*G+h_}, -2, v{PS+2*G+h_}', f'global_store_dword v{vPst}, v{PS+2*G+h_}, {sp((sSt0,sSt1)[h_])} offset:{2048*G-4096}{stc}'] for h_ in range(2)], [])
                return [c_[0], f'v_min_u32 v{PS+2*G}, -2, v{PS+2*G}', c_[1], f'global_store_dwordx2 v{vPst}, {vr(PS+2*G,2)}, {sp(sSt0)} offset:{2048*G-4096}{stc}']
            fl_ = [f'v_mov_b32 v{T+2}, 0x3f80', f'v_mov_b32 v{T+3}, 0x3f800000', f'v_cndmask_b32 v{T+2}, v{T+2}, v{T+3}, {sp(sPm)}']
            W_(0,1); a.wds(ot[2]); W_(0,2); a.wds(ot[3]); W_(0,3)
            if wo >= 4:
                sd = lambda G, h_: f'global_store_dword v{vPst}, v{PS+2*G+h_}, {sp((sSt0,sSt1)[h_])} offset:{2048*G-4096}{stc}'
                for G in range(1,4):
                    c_ = cv(G-1)
                    W_(G,1)
                    if G > 1 and wo == 4: a(sd(G-2,1))
                    a(fl_.pop(0))
                    W_(G,2); a(c_[0])
                    if wo == 5: a(c_[1])
                    W_(G,3); a(sd(G-1,0))
                    if wo == 5: a(sd(G-1,1))
                    else: a(c_[1])
                a(f'v_cndmask_b32 v{Sel}, 0, v{T+2}, {sp(sSel)}')
                if wo == 4: a(sd(2,1))
                for i in range(1,4): a(f'v_cndmask_b32 v{Sel+i}, 0, v{T+2}, {sp(sSel+2*i)}')
                for x_ in cv(3) + [sd(3,0), sd(3,1)]: a(x_)
            for G in range(1,4 if wo < 4 else 0):
                q_ = st_(G-1)
                W_(G,1); a(fl_.pop(0))
                if wo == 2 and G == 1:
                    for x_ in q_: a(x_)
                    q_ = []
                W_(G,2)
                for _ in range((6 if wo >= 1 and G == 1 else 3) if dw else 4 if wo >= 1 and G == 1 else 2):
                    if q_: a(q_.pop(0))
                W_(G,3)
                for x_ in q_: a(x_)
            if wo < 4:
                for i in range(4): a(f'v_cndmask_b32 v{Sel+i}, 0, v{T+2}, {sp(sSel+2*i)}')
                for x_ in st_(3): a(x_)
        else:
            W_(0,1); VM('W4'); W_(1,1); a.wds(ot[2]); VM('W5'); W_(0,2); VM('W6'); W_(1,2); a.wds(ot[3]); VM('W7'); W_(0,3); VM('W8'); W_(1,3)
            c0 = cv(0); c1 = cv(1); c2 = cv(2); c3 = cv(3)
            W_(2,1); a(c0[0])
            W_(2,2); a(c0[1]); a(c1[0])
            W_(2,3); a(c1[1]); a(f'v_min_u32 v{PS}, -2, v{PS}')
            W_(3,1); a(f'global_store_dwordx4 v{vPst}, {vr(PS,4)}, {sp(sSt0)}{stc}')
            W_(3,2); a(c2[0])
            W_(3,3); a(c2[1]); a(f'v_min_u32 v{PS+4}, -2, v{PS+4}')
            a(f'v_mov_b32 v{T+2}, 0x3f80\nv_mov_b32 v{T+3}, 0x3f800000')
            a(f'v_cndmask_b32 v{T+2}, v{T+2}, v{T+3}, {sp(sPm)}')
            a(c3[0]); a(c3[1])
            a(f'global_store_dwordx4 v{vPst}, {vr(PS+4,4)}, {sp(sSt1)}{stc}')
        stamp('h0')
        if 'ack' in opt: a('s_waitcnt vmcnt(0)'); stamp('hk')
        n0 = len(a.items)
        for x_ in stg(('q',0), S0) + stg(('q',1), S1): a(x_)
        if not w4:
            for i in range(4): a(f'v_mov_b32 v{Sel+i}, v{T+2}' if ra == 1 else f'v_cndmask_b32 v{Sel+i}, 0, v{T+2}, {sp(sSel+2*i)}')
            if ra in (1,2): a(f'v_lshrrev_b32 v{T+1}, {3-ra}, v{vLin}\nv_cndmask_b32 v{T+3}, -1, -2, {sp(sSel)}')
            a.nops(preA - (len(a.items) - n0))
        else:
            cur = len(a.items) - n0
            for w_ in range(4):
                a.nops(w4[w_] - cur - (2 if w_ < 3 else 0)); cur = max(cur + (2 if w_ < 3 else 0), w4[w_])
                if w_ < 3: a(f's_cmp_eq_u32 s{sW}, {w_}\ns_cbranch_scc1 {L("p0")}')
            a.label(L('p0'))
        R1 = M+8; R2 = P2
        def redA(R):
            if ra == 2:
                a(f"""
                s_waitcnt vmcnt(6)
                v_mfma_f32_16x16x32_bf16 {vr(Dr,4)}, {vr(Sel,4)}, {vr(R,4)}, 0
                s_waitcnt vmcnt(4)
                v_mfma_f32_16x16x32_bf16 {vr(Dr,4)}, {vr(Sel,4)}, {vr(R+4,4)}, {vr(Dr,4)}
                v_max3_u32 v{T}, v{R}, v{R+2}, v{R+4}
                v_max_u32 v{T}, v{T}, v{R+6}
                v_cmp_gt_u32 vcc, v{T}, v{T+3}
                """)
                return
            if ra == 4:
                a(f"""
                s_waitcnt vmcnt(3)
                v_mfma_f32_16x16x32_bf16 {vr(Dr,4)}, {vr(Sel,4)}, {vr(R,4)}, 0
                {f'v_max3_u32 v{T}, v{R}, v{R+1}, v{R+2}' if dw and mk == 8 else ''}
                s_waitcnt vmcnt(2)
                v_mfma_f32_16x16x32_bf16 {vr(Dr,4)}, {vr(Sel,4)}, {vr(R+4,4)}, {vr(Dr,4)}
                {f'v_max3_u32 v{T}, v{T}, v{R+3}, v{R+4}{NL}v_max3_u32 v{T}, v{T}, v{R+5}, v{R+6}{NL}v_max_u32 v{T}, v{T}, v{R+7}' if dw and mk == 8 else f'v_max3_u32 v{T}, v{R}, v{R+2}, v{R+4}{NL}v_max_u32 v{T}, v{T}, v{R+6}' if w4 and not dw else f'v_max_u32 v{T}, v{R}, v{R+4}'}
                v_cmp_eq_u32 vcc, -1, v{T}
                """)
                return
            if ra:
                a(f"""
                s_waitcnt vmcnt(12)
                v_mfma_f32_16x16x32_bf16 {vr(Dr,4)}, {vr(R,4)}, {vr(Sel,4)}, 0
                v_max3_u32 v{T}, v{R}, v{R+1}, v{R+2}
                s_waitcnt vmcnt(8)
                v_mfma_f32_16x16x32_bf16 {vr(Dr,4)}, {vr(R+4,4)}, {vr(Sel,4)}, {vr(Dr,4)}
                v_max3_u32 v{T}, v{T}, v{R+3}, v{R+4}
                v_max3_u32 v{T}, v{T}, v{R+5}, v{R+6}
                v_max_u32 v{T}, v{T}, v{R+7}
                v_cmp_gt_u32 vcc, v{T}, v{T+3}
                """)
                return
            a(f"""
            s_waitcnt vmcnt(3)
            v_mfma_f32_16x16x32_bf16 {vr(Dr,4)}, {vr(R,4)}, {vr(Sel,4)}, 0
            s_waitcnt vmcnt(2)
            v_mfma_f32_16x16x32_bf16 {vr(Dr,4)}, {vr(R+4,4)}, {vr(Sel,4)}, {vr(Dr,4)}
            v_max_u32 v{T}, v{R}, v{R+4}
            v_cmp_eq_u32 vcc, -1, v{T}
            """)
        ldA(R1)
        a.nops(gapA - {0:2, 1:8, 2:4, 4:2}[ra])
        a.label(L('pa'))
        ldA(R2)
        redA(R1)
        if ft: a(f's_cbranch_vccnz {L("pb")}')
        else:
            a(f's_cbranch_vccz {L("qa")}')
            ldA(R1); spin()
            redA(R2)
            a(f's_cbranch_vccnz {L("pa")}')
        a.label(L('qa'))
        stamp('h1')
        if ra > 1:
            for ro in ((8,) if ra == 2 else (8,4)):
                for r in range(2): a(f'v_add_f32_dpp v{Dr+r}, v{Dr+r}, v{Dr+r} row_ror:{ro} {DPPM}')
            a(f"""
            s_mov_b64 exec, {sp(sPub)}
            v_cvt_pk_bf16_f32 v{Dr}, v{Dr}, v{Dr+1}
            {'' if nc else f'v_min_u32 v{Dr}, -2, v{Dr}'}
            global_store_dword v{vMst}, v{Dr}, {sp(sMst)}{stc}
            """)
        elif ra: a(f"""
        s_mov_b64 exec, {sp(sPub)}
        v_cvt_pk_bf16_f32 v{Dr}, v{Dr}, v{Dr+1}
        v_cvt_pk_bf16_f32 v{Dr+1}, v{Dr+2}, v{Dr+3}
        v_min_u32 v{Dr}, -2, v{Dr}
        global_store_dwordx2 v{vMst}, {vr(Dr,2)}, {sp(sMst)}{stc}
        """)
        else: a(f"""
        v_permlane32_swap_b32 v{Dr}, v{Dr+2}
        v_permlane32_swap_b32 v{Dr+1}, v{Dr+3}
        v_add_f32 v{Dr}, v{Dr}, v{Dr+2}
        v_add_f32 v{Dr+1}, v{Dr+1}, v{Dr+3}
        v_permlane16_swap_b32 v{Dr}, v{Dr+1}
        v_add_f32 v{Dr}, v{Dr}, v{Dr+1}
        v_mov_b32_dpp v{Dr+1}, v{Dr} quad_perm:[1,0,3,2] {DPPM}
        v_cvt_pk_bf16_f32 v{Dr}, v{Dr}, v{Dr+1}
        s_mov_b64 exec, {sp(sPub)}
        v_min_u32 v{Dr}, -2, v{Dr}
        global_store_dword v{vMst}, v{Dr}, {sp(sMst)}{stc}
        """)
        stamp('h2')
        a(f"""
        s_mov_b64 exec, -1
        """)
        if w4 and bb: a('s_barrier')
        stamp('h3')
        tstamp(f's{sT}')
        if prof and len(stamps) >= 2:
            a('s_waitcnt lgkmcnt(0)')
            for i in range(len(stamps)-1): a(f's_sub_u32 s{sA}, s{sP+2*i+2}, s{sP+2*i}\ns_add_u32 s{sP+21+i}, s{sP+21+i}, s{sA}')
        if prof:
            a(f's_cmp_lg_u32 s{sT}, 3\ns_cbranch_scc1 {L("pf1")}\ns_memtime {sp(sP+28)}\ns_mov_b32 s{sSpin}, 0')
            for i in range(6): a(f's_mov_b32 s{sP+21+i}, 0')
            a(f'{L("pf1")}:\ns_cmp_lg_u32 s{sT}, {nsteps-2}\ns_cbranch_scc1 {L("pf2")}\ns_memtime {sp(sP)}\ns_waitcnt lgkmcnt(0)\ns_sub_u32 s{sP+20}, s{sP}, s{sP+28}\n{L("pf2")}:')
        a(f's_add_u32 s{sT}, s{sT}, 1\ns_branch {L("step")}')
        if ft:
            a.label(L('pb'))
            ldA(R1); spin()
            redA(R2)
            a(f's_cbranch_vccnz {L("pa")}\ns_branch {L("qa")}')
        a.label(L('rp'))
        if ps: a(f'v_lshrrev_b32 v{T+6}, 2, v{vLin}')
        a(f'global_load_dword v{T+6}, v{T+6 if ps else T+5}, {sp(sFK)} sc1')
        spin()
        a('s_waitcnt vmcnt(0)')
        fkeval(T+6)
        a(f's_cmp_lt_u32 s{sA}, s{sRdy}\ns_cbranch_scc1 {L("rk")}\ns_sleep 2\ns_branch {L("rp")}')
        a.label(L('last'))
        if TL: a(f's_memtime s[94:95]\ns_waitcnt lgkmcnt(0)\ns_sub_u32 s94, s94, s92')
        a('s_nop 7')
        for x_ in lastc: a(x_)
        a(f's_branch {LE}')
    loop(L, stc)
    if mega: loop(lambda x: L('s_' + x), ' sc1', *((8, 0) if dw else ()))
    a.label(L('end'))
    a('s_mov_b64 exec, -1\ns_nop 7')
    a(f'''
    s_add_u32 s{sKVM}, s{sKVM}, {0 if kvnow else 32*4096}
    s_addc_u32 s{sKVM+1}, s{sKVM+1}, 0
    global_store_dwordx4 v{vLin}, {vr(HK,4)}, {sp(sKVM)} sc1
    v_mov_b32 v{T}, 0x41
    s_waitcnt vmcnt(0)
    s_barrier
    s_mov_b64 exec, {sp(sFm)}
    global_store_dword v{vLin}, v{T}, {sp(sFl)} sc1
    s_mov_b64 exec, -1
    ''')
    if wb == 1: a(f's_cmp_lg_u32 s{sW}, 0\ns_cbranch_scc1 {L("nwb")}\nbuffer_wbl2 sc1\n{L("nwb")}:')
    if wb == 2: a(f's_lshl_b32 s{sA}, s{sH}, 2\ns_add_u32 s{sA}, s{sA}, s{sW}\ns_cmp_lg_u32 s{sA}, 0\ns_cbranch_scc1 {L("nwb")}\nbuffer_wbl2 sc1\n{L("nwb")}:')
    if prof:
        for i in range(7): a(f'v_mov_b32 v{T+i}, s{sP+20+i}')
        a(f'''
        v_mov_b32 v{T+7}, s{sSpin}
        s_lshl_b32 s{sA}, s{sH}, 2
        s_add_u32 s{sA}, s{sA}, s{sW}
        s_lshl_b32 s{sA}, s{sA}, 5
        s_add_u32 s{sA}, s{sA}, {WS_PROF}
        v_mov_b32 v{T+8}, s{sA}
        s_mov_b64 exec, 1
        global_store_dwordx4 v{T+8}, {vr(T,4)}, {sp(sWs)}
        global_store_dwordx4 v{T+8}, {vr(T+4,4)}, {sp(sWs)} offset:16
        s_mov_b64 exec, -1
        ''')
    tl(a, 4, T, 0)
    a('s_waitcnt vmcnt(0) lgkmcnt(0)')

def standalone(name='chain_kernel', **kw):
    a = Asm()
    a.raw(khead(name))
    a(f'''
    s_load_dwordx2 {sp(sMem)}, s[0:1], 8
    s_load_dwordx4 s[8:11], s[0:1], 24
    s_load_dwordx2 {sp(sWq)}, s[0:1], 16
    s_load_dwordx2 {sp(sWo)}, s[0:1], 40
    s_load_dwordx2 {sp(sDbg)}, s[0:1], 104
    s_load_dwordx2 {sp(sWs)}, s[0:1], 112
    s_getreg_b32 s{sA}, hwreg(HW_REG_XCC_ID)
    s_and_b32 s{sA}, s{sA}, 15
    s_mov_b32 s{sXcc}, s{sA}
    s_waitcnt lgkmcnt(0)
    s_cmp_lg_u32 s{sA}, 0
    s_cbranch_scc1 L_done_{name}
    v_mov_b32 v1, 0
    v_mov_b32 v2, 1
    v_lshrrev_b32 v4, 6, v0
    v_readfirstlane_b32 s{sW}, v4
    s_cmp_lg_u32 s{sW}, 0
    s_cbranch_scc1 L_t_{name}
    s_mov_b64 exec, 1
    global_atomic_add v3, v1, v2, {sp(sDbg)} offset:252 sc0 sc1
    s_waitcnt vmcnt(0)
    ds_write_b32 v1, v3
    s_waitcnt lgkmcnt(0)
    s_mov_b64 exec, -1
    L_t_{name}:
    s_barrier
    ds_read_b32 v3, v1
    s_waitcnt lgkmcnt(0)
    v_readfirstlane_b32 s{sH}, v3
    s_barrier
    s_cmp_gt_u32 s{sH}, 31
    s_cbranch_scc1 L_done_{name}
    ''')
    chain(a, name, **kw)
    a.label(f'L_done_{name}')
    a('s_endpgm')
    bad = a.check_branches()
    assert bad == 0
    return a

if __name__ == '__main__':
    import sys
    variants = eval(sys.argv[1]) if len(sys.argv) > 1 else [dict()]
    out = ''.join(f'; @launch kernel=c{i}_kernel grid=(256,1,1) block=(256,1,1) lds=163840\n' for i in range(len(variants)))
    out += '.amdgcn_target "amdgcn-amd-amdhsa--gfx950"\n.text\n'
    for i, v in enumerate(variants):
        a = standalone(f'c{i}_kernel', prof=True, **v); out += a.text()
    out += '.section .rodata,"a"\n' + ''.join(kdesc(f'c{i}_kernel') for i in range(len(variants)))
    open('chain.s','w').write(out)
    open('chain.json','w').write(repr(variants))
```
